```python
import torch

def _softmax(x, axis=-1):
    return torch.softmax(x, dim=axis)
def _gelu(x):
    return torch.nn.functional.gelu(x, approximate="tanh")
def _silu(x):
    return torch.nn.functional.silu(x)
def _sigmoid(x):
    return torch.sigmoid(x)
def _layernorm(x, axis=-1, eps=1e-5):
    m = x.mean(dim=axis, keepdim=True)
    v = x.var(dim=axis, keepdim=True, unbiased=False)
    return (x - m) / torch.sqrt(v + eps)
def _scatter_add(tgt, idx, src, axis=0):
    return tgt.clone().index_add_(axis, idx, src)
def _segment_sum(src, seg, n):
    out = torch.zeros((n,) + src.shape[1:], dtype=src.dtype)
    return out.index_add_(0, seg, src)
def _pad(x, pw):
    flat = tuple(v for pair in reversed(pw) for v in pair)
    return torch.nn.functional.pad(x, flat)

kernel_name = 'concat_heads__mha_block_cached__gqa_block_cached__near_ridge'

def setup_inputs():

    _w = (lambda a: (lambda t: t.to(torch.bfloat16) if t.is_floating_point() else t)(torch.as_tensor(a)))
    def _A_setup():
        B, Sq, D = 8, 144, 576
        H, Sk, Dh = 32, 512, 128
        return {
            "x": _w((lambda *s: torch.randn(*s, dtype=torch.bfloat16) * 0.8)(B, Sq, D)),
            "k_cache": _w((lambda *s: torch.randn(*s, dtype=torch.bfloat16) * 0.8)(B, H, Sk, Dh)),
            "v_cache": _w((lambda *s: torch.randn(*s, dtype=torch.bfloat16) * 0.05)(B, H, Sk, Dh)),
            "wq": _w((lambda *s: torch.randn(*s, dtype=torch.bfloat16) * 0.8)(D, H * Dh) * (D ** -0.5)),
            "wo": _w((lambda *s: torch.randn(*s, dtype=torch.bfloat16) * 0.05)(H * Dh, D) * ((H * Dh) ** -0.5)),
        }
    _A_in = _A_setup()

    def _B_setup():
        B, Sq, D = 8, 144, 576
        Hq, Hkv, Sk, Dh = 32, 32, 512, 128
        assert Hq % Hkv == 0, (Hq, Hkv)
        return {
            "x": _w((lambda *s: torch.randn(*s, dtype=torch.bfloat16) * 0.8)(B, Sq, D)),
            "k_cache": _w((lambda *s: torch.randn(*s, dtype=torch.bfloat16) * 0.8)(B, Hkv, Sk, Dh)),
            "v_cache": _w((lambda *s: torch.randn(*s, dtype=torch.bfloat16) * 0.05)(B, Hkv, Sk, Dh)),
            "wq": _w((lambda *s: torch.randn(*s, dtype=torch.bfloat16) * 0.8)(D, Hq * Dh) * (D ** -0.5)),
            "wo": _w((lambda *s: torch.randn(*s, dtype=torch.bfloat16) * 0.05)(Hq * Dh, D) * ((Hq * Dh) ** -0.5)),
        }
    _B_in = _B_setup()

    return {
        "A_x": _A_in["x"],
        "A_k_cache": _A_in["k_cache"],
        "A_v_cache": _A_in["v_cache"],
        "A_wq": _A_in["wq"],
        "A_wo": _A_in["wo"],
        "B_x": _B_in["x"],
        "B_k_cache": _B_in["k_cache"],
        "B_v_cache": _B_in["v_cache"],
        "B_wq": _B_in["wq"],
        "B_wo": _B_in["wo"],
    }

def reference(A_x, A_k_cache, A_v_cache, A_wq, A_wo, B_x, B_k_cache, B_v_cache, B_wq, B_wo):
    def _A_ref(x, k_cache, v_cache, wq, wo):
        B, Sq, D = x.shape
        H, Dh = 32, 128
        q = (lambda x, *d: x.permute(*d))((x @ wq).reshape(B, Sq, H, Dh), 0, 2, 1, 3)
        scores = torch.einsum("bhqd,bhkd->bhqk", q, k_cache) * (Dh ** -0.5)
        p = _softmax(scores, axis=-1)
        o = torch.einsum("bhqk,bhkd->bhqd", p, v_cache)
        return (lambda x, *d: x.permute(*d))(o, 0, 2, 1, 3).reshape(B, Sq, H * Dh) @ wo

    def _B_ref(x, k_cache, v_cache, wq, wo):
        B, Sq, D = x.shape
        Hq, Dh = 32, 128
        Hkv = k_cache.shape[1]
        rep = Hq // Hkv
        q = (lambda x, *d: x.permute(*d))((x @ wq).reshape(B, Sq, Hq, Dh), 0, 2, 1, 3)
        k = (lambda x, n, axis: torch.repeat_interleave(x, n, dim=axis))(k_cache, rep, axis=1)
        v = (lambda x, n, axis: torch.repeat_interleave(x, n, dim=axis))(v_cache, rep, axis=1)
        scores = torch.einsum("bhqd,bhkd->bhqk", q, k) * (Dh ** -0.5)
        p = _softmax(scores, axis=-1)
        o = torch.einsum("bhqk,bhkd->bhqd", p, v)
        return (lambda x, *d: x.permute(*d))(o, 0, 2, 1, 3).reshape(B, Sq, Hq * Dh) @ wo

    a = _A_ref(A_x, A_k_cache, A_v_cache, A_wq, A_wo)
    b = _B_ref(B_x, B_k_cache, B_v_cache, B_wq, B_wo)
    return torch.concatenate([a, b], axis=-1)
```

```python
import re

def vr(a, n=1):
    return 'v%d' % a if n == 1 else 'v[%d:%d]' % (a, a + n - 1)
def sr(a, n=1):
    return 's%d' % a if n == 1 else 's[%d:%d]' % (a, a + n - 1)

_RNG = re.compile(r'^([vs])\[(\d+):(\d+)\]$')
_ONE = re.compile(r'^([vs])(\d+)$')
def regs(tok):
    tok = tok.strip()
    if tok.startswith('-'): tok = tok[1:]
    if tok.startswith('abs('): tok = tok[4:-1]
    m = _RNG.match(tok)
    if m: return ['%s%d' % (m.group(1), i) for i in range(int(m.group(2)), int(m.group(3)) + 1)]
    m = _ONE.match(tok)
    if m: return [tok]
    if tok in ('vcc', 'm0', 'exec', 'scc'): return [tok]
    if tok in ('vcc_lo', 'vcc_hi'): return ['vcc']
    return []

TRANS = ('v_exp_f32', 'v_rcp_f32', 'v_log_f32', 'v_rsq_f32', 'v_sqrt_f32')

class Ins:
    __slots__ = ('text', 'kind', 'w', 'r', 'passes', 'srcc', 'ab', 'target', 'cond', 'nstates', 'wide', 'dma', 'addr_r')
    def __init__(s, text, kind, w=(), r=(), passes=0, srcc=(), ab=(), target=None, cond=False, nstates=1, wide=(), dma=False):
        s.text, s.kind, s.w, s.r = text, kind, set(w), set(r)
        s.passes, s.srcc, s.ab = passes, tuple(srcc), set(ab)
        s.target, s.cond, s.nstates, s.wide, s.dma = target, cond, nstates, set(wide), dma

def parse(text):
    t = text.split(';')[0].strip()
    if t.endswith(':'):
        return Ins(t, 'label', target=t[:-1], nstates=0)
    parts = t.split(None, 1)
    op = parts[0]
    ops = []
    if len(parts) > 1:
        depth = 0; cur = ''
        for ch in parts[1]:
            if ch in '[(': depth += 1
            if ch in '])': depth -= 1
            if ch == ',' and depth == 0: ops.append(cur.strip()); cur = ''
            else: cur += ch
        ops.append(cur.strip())
    def first_tok(x): return x.split()[0] if x.split() else ''
    o = [first_tok(x) for x in ops]
    R = lambda *idx: [x for i in idx if i < len(o) for x in regs(o[i])]
    if op.startswith('v_mfma'):
        passes = 8 if '32x32' in op else 4
        return Ins(t, 'mfma', w=R(0), r=R(1, 2, 3), passes=passes, srcc=R(3), ab=R(1, 2))
    if op.startswith('v_permlane'):
        return Ins(t, 'perm', w=R(0, 1), r=R(0, 1))
    if op in ('v_readfirstlane_b32', 'v_readlane_b32'):
        return Ins(t, 'rfl', w=R(0), r=R(1, 2))
    if op.startswith('v_cmp'):
        return Ins(t, 'valu', w=R(0), r=R(1, 2))
    if op.startswith('v_cndmask'):
        return Ins(t, 'valu', w=R(0), r=R(1, 2, 3))
    if op.startswith('v_'):
        kind = 'trans' if op.replace('_e32', '').replace('_e64', '') in TRANS else 'valu'
        r = R(*range(1, len(o)))
        if op.startswith('v_fmac') or op.startswith('v_dot2c'): r += R(0)
        return Ins(t, kind, w=R(0), r=r)
    if op.startswith('ds_read') or op.startswith('ds_bpermute'):
        return Ins(t, 'ds_r', w=R(0), r=R(*range(1, len(o))))
    if op.startswith('ds_write') or op.startswith('ds_add'):
        return Ins(t, 'ds_w', r=R(*range(0, len(o))))
    if op.startswith('buffer_load'):
        if re.search(r'\blds\b', t):
            return Ins(t, 'vmem', r=R(0, 1, 2) + ['m0'], dma=True)
        return Ins(t, 'vmem', w=R(0), r=R(1, 2, 3))
    if op.startswith('buffer_store'):
        wide = R(0) if ('x3' in op or 'x4' in op) else []
        return Ins(t, 'vmem', r=R(0, 1, 2, 3), wide=wide)
    if op.startswith('buffer_atomic'):
        w = R(0) if 'sc0' in t else []
        return Ins(t, 'vmem', w=w, r=R(0, 1, 2, 3))
    if op in ('buffer_wbl2', 'buffer_inv'):
        return Ins(t, 'vmem')
    if op == 's_nop':
        return Ins(t, 'nop', nstates=int(o[0]) + 1)
    if op == 's_waitcnt':
        return Ins(t, 'wait')
    if op == 's_barrier':
        return Ins(t, 'barrier')
    if op == 's_endpgm':
        return Ins(t, 'end')
    if op == 's_branch':
        return Ins(t, 'branch', target=o[0])
    if op.startswith('s_cbranch'):
        return Ins(t, 'branch', target=o[0], cond=True)
    if op.startswith('s_load') or op in ('s_memtime', 's_memrealtime'):
        return Ins(t, 'smem', w=R(0), r=R(1, 2))
    if op.startswith('s_cmp') or op.startswith('s_bitcmp'):
        return Ins(t, 'salu', w=['scc'], r=R(0, 1))
    if op in ('s_setprio', 's_sleep'):
        return Ins(t, 'salu')
    if op.startswith('s_'):
        return Ins(t, 'salu', w=R(0), r=R(*range(1, len(o))))
    raise ValueError('unknown op: ' + text)

VALU_KINDS = ('valu', 'trans', 'perm', 'rfl')

def need_states(p, c):
    n = 0
    pv = p.kind in VALU_KINDS
    cv = c.kind in VALU_KINDS
    pw_v = {x for x in p.w if x[0] == 'v' and x != 'vcc'}
    pw_s = {x for x in p.w if x[0] == 's' and x != 'scc' or x == 'vcc'}
    if pv and c.kind == 'mfma' and pw_v & c.r: n = max(n, 2)
    if p.kind == 'mfma':
        big = p.passes == 8
        if c.kind == 'mfma':
            if p.w & c.ab: n = max(n, 12 if big else 8)
            if p.w & set(c.srcc):
                same = set(c.srcc) == p.w and c.passes == p.passes
                if not same: n = max(n, 10 if big else 6)
            elif p.w & c.w:
                n = max(n, 12 if big else 8)
        elif cv or c.kind in ('vmem', 'ds_r', 'ds_w'):
            if p.w & (c.r | c.w): n = max(n, 12 if big else 8)
        if cv and set(p.srcc) & c.w: n = max(n, 7 if big else 3)
    if p.kind == 'trans' and cv and c.kind != 'trans' and pw_v & c.r: n = max(n, 1)
    if pv and c.kind == 'perm' and pw_v & c.r: n = max(n, 2)
    if pv and c.kind == 'rfl' and pw_v & c.r: n = max(n, 1)
    if pv and pw_s:
        if cv and pw_s & c.r: n = max(n, 4 if c.kind == 'rfl' else 2)
        if c.kind == 'vmem' and pw_s & c.r: n = max(n, 5)
    if p.kind == 'salu' and 'm0' in p.w and c.kind == 'vmem' and c.dma: n = max(n, 1)
    if p.kind == 'vmem' and p.wide and (p.wide & c.w): n = max(n, 2 if cv else 1)
    return n

class Prog:
    def __init__(s):
        s.ins = []
    def __call__(s, text):
        for line in text.split('\n'):
            line = line.strip()
            if not line or line.startswith(';'): continue
            m = re.match(r'^s_cselect_b32 (s\d+), (\S+), (\S+)$', line)
            if m:
                lit = lambda t: re.match(r'^(0x[0-9a-f]+|\d+)$', t) and int(t, 0) > 64
                if lit(m.group(2)) and lit(m.group(3)):
                    s.ins.append(parse('s_mov_b32 %s, %s' % (m.group(1), m.group(3))))
                    s.ins.append(parse('s_cmov_b32 %s, %s' % (m.group(1), m.group(2))))
                    continue
            s.ins.append(parse(line))
    def extend(s, lst):
        for x in lst:
            if isinstance(x, str): s(x)
            else: s.ins.append(x)

    def _succ(s, ins):
        lab = {x.target: i for i, x in enumerate(ins) if x.kind == 'label'}
        succ = []
        for i, x in enumerate(ins):
            if x.kind == 'end': succ.append([])
            elif x.kind == 'branch':
                succ.append(([i + 1] if x.cond else []) + [lab[x.target]])
            else: succ.append([i + 1] if i + 1 < len(ins) else [])
        return succ

    def insert_lgkm(s):
        ins = s.ins
        succ = s._succ(ins)
        need = {}
        seen = set()
        stack = [(0, ())]
        while stack:
            i, q = stack.pop()
            if (i, q) in seen: continue
            seen.add((i, q))
            assert len(seen) < 400000, 'lgkm state explosion'
            x = ins[i]
            q = list(q)
            if x.kind == 'wait':
                m = re.search(r'lgkmcnt\((\d+)\)', x.text)
                if m:
                    k = int(m.group(1)); q = q[len(q) - k:] if k < len(q) else q
                    if k == 0: q = []
            else:
                touched = x.r | x.w
                k = None
                for pos, d in enumerate(q):
                    if d == 'SMEM':
                        continue
                    if set(d) & touched: k = len(q) - 1 - pos
                if x.kind == 'barrier' and q: k = 0
                if x.kind == 'end': k = None
                if i in need: k = need[i] if k is None else min(k, need[i])
                if k is not None:
                    k = min(k, 15)
                    if i not in need or k < need[i]:
                        need[i] = k
                        seen = set(); stack = [(0, ())]
                        continue
                    q = q[len(q) - k:] if k < len(q) else q
                    if k == 0: q = []
                if x.kind == 'ds_r': q.append(tuple(sorted(x.w)))
                elif x.kind == 'ds_w': q.append(())
                elif x.kind == 'smem':
                    pass
            for j in succ[i]: stack.append((j, tuple(q)))
        out = []
        for i, x in enumerate(ins):
            if i in need: out.append(parse('s_waitcnt lgkmcnt(%d)' % need[i]))
            out.append(x)
        s.ins = out

    def insert_nops(s):
        while True:
            ins = s.ins
            succ = s._succ(ins)
            pred = [[] for _ in ins]
            for i, l in enumerate(succ):
                for j in l: pred[j].append(i)
            fix = {}
            for i, c in enumerate(ins):
                if c.kind in ('label', 'nop', 'wait', 'branch', 'barrier', 'end', 'salu', 'smem'): continue
                worst = 0
                st = [(p, 0) for p in pred[i]]
                best = {}
                while st:
                    j, d = st.pop()
                    if d >= 12: continue
                    if j in best and best[j] <= d: continue
                    best[j] = d
                    p = ins[j]
                    n = need_states(p, c)
                    if n > d: worst = max(worst, n - d)
                    for k in pred[j]: st.append((k, d + p.nstates))
                if worst: fix[i] = worst; break
            if not fix: return
            (i, n), = fix.items()
            s.ins = ins[:i] + [parse('s_nop %d' % (n - 1))] + ins[i:]

    def finish(s):
        s.insert_lgkm()
        s.insert_nops()
        return '\n'.join(('' if x.kind == 'label' else '    ') + x.text for x in s.ins) + '\n'

def interleave(main, fill, per=None, start=0):
    cost = lambda t: 2 if t.split()[0] in TRANS else 1
    tot = sum(cost(f) for f in fill)
    n = len(main) - start
    out = []; k = 0; acc = 0
    for i, g in enumerate(main):
        out += g
        if i >= start:
            goal = tot * (i - start + 1) / n
            while k < len(fill) and acc + cost(fill[k]) / 2 <= goal:
                acc += cost(fill[k]); out.append(fill[k]); k += 1
    out += fill[k:]
    return out
```

```python
import sys, struct, math
from asmlib import *

NAME = 'concat_heads__mha_block_cached__gqa_block_cached__near_ridge'
def f2u(x): return struct.unpack('<I', struct.pack('<f', x))[0]
CSCALE = f2u(math.log2(math.e) / math.sqrt(128.0))

OPT = dict(nt_kv='nt', nt_w='', nt_x='', ostore='', stamps=0, touch=0, k2nb=3, nt_wo='', nt_o='')
for a in sys.argv[2:]:
    k, v = a.split('=')
    OPT[k] = int(v) if v.lstrip('-').isdigit() else v

WS_O_BR = 36 * 256 * 1024
WS_PART = 0x1400000
WS_STAMP = 0x4000000

def lanes(P, dst, expr_list):
    for e in expr_list: P(e)

def k1():
    P = Prog()
    O, S, CN, Q, PP, O9, Q9, S9, CN9, P9 = 0, 64, 96, 112, 144, 160, 192, 208, 212, 216
    L, L9, VOK, VOV, AK, AK9, AV9 = 218, 219, 220, 221, 222, 223, 224
    VA = 226
    T0, T1, AL, AL9, X0, X1 = 230, 231, 232, 233, 234, 235
    FB = [236, 240, 244, 248, 252]
    TID = 225
    ACC = [64, 80, 144, 192]; ACC9 = [208, 226]
    SETA = dict(B=112, A=[116, 120, 124, 128]); SETB = dict(B=132, A=[136, 140, 236, 240])
    F9B, F9A = 244, [248, 252]
    QW = [230, 231, 232, 233]; QX = [234, 235]; QX9 = 216; QW9 = [217, 218]; VOR = 219
    sW, sWP, sP, sB, sJ, sBR = 24, 25, 26, 27, 28, 29
    sCNT, sMSTEP, sD1, sD2, sD3, sSO, sSOSTEP, sMSUB, sIB, sDL = 30, 31, 32, 33, 34, 35, 36, 37, 38, 39
    sIS, sSK, sSV, sDK, sDV, sT, sCL, sRARE, sTMP, sTM2, sMW = 40, 41, 42, 43, 44, 45, 46, 47, 48, 49, 50
    sKP, sVP = 51, 52
    STG0, STGS = 87040, 25600
    stamp_n = [0]
    def stamp(k):
        if OPT['stamps']:
            P('s_memrealtime s[%d:%d]' % (70 + 2 * k, 71 + 2 * k))
    P(f'''
    s_cmp_ge_u32 s2, 256
    s_cbranch_scc1 K1_END
    s_and_b32 s3, s2, 7
    s_lshr_b32 s{sBR}, s3, 2
    s_mul_i32 s6, s{sBR}, 40
    s_add_u32 s4, s0, s6
    s_addc_u32 s5, s1, 0
    s_load_dwordx8 s[56:63], s[4:5], 0
    s_load_dwordx2 s[64:65], s[0:1], 96
    ''')
    stamp(0)
    P(f'''
    v_lshrrev_b32 v1, 6, v0
    v_and_b32 v{TID}, 63, v0
    v_readfirstlane_b32 s{sW}, v1
    s_lshr_b32 s6, s2, 3
    s_and_b32 s3, s3, 3
    s_lshl_b32 s3, s3, 2
    s_and_b32 s7, s6, 3
    s_add_u32 s{sJ}, s3, s7
    s_lshr_b32 s{sB}, s6, 2
    s_and_b32 s{sWP}, s{sW}, 3
    s_lshr_b32 s{sP}, s{sW}, 2
    v_lshrrev_b32 v2, 4, v{TID}
    v_and_b32 v3, 15, v{TID}
    ''')
    P(f'''
    s_and_b32 s3, s{sWP}, 2
    v_lshlrev_b32 v4, 2, v2
    v_xor_b32 v4, v4, v3
    v_xor_b32 v4, s3, v4
    v_lshlrev_b32 v4, 4, v4
    s_lshl_b32 s3, s{sWP}, 2
    v_add_u32 v5, s3, v2
    v_lshl_add_u32 v{VOV}, v5, 8, v4
    v_lshl_add_u32 v6, v5, 13, v4
    v_xor_b32 v7, v5, v3
    v_lshlrev_b32 v7, 4, v7
    v_lshl_add_u32 v{VOK}, v5, 8, v7
    v_lshrrev_b32 v8, 2, v{TID}
    v_and_b32 v9, 3, v{TID}
    v_xor_b32 v9, v9, v2
    v_mul_u32_u24 v8, 1152, v8
    v_lshl_add_u32 v8, v9, 4, v8
    s_cmp_lt_u32 s{sW}, 4
    s_cselect_b64 vcc, -1, 0
    v_cndmask_b32 v{VOR}, v8, v6, vcc
    ''')
    P(f'''
    s_cselect_b32 s{sMSTEP}, 4096, 1024
    s_cselect_b32 s{sD1}, 131072, 18432
    s_cselect_b32 s{sD2}, 256, 36864
    s_mov_b32 s{sD3}, 131328
    s_cselect_b32 s{sSOSTEP}, 262144, 64
    s_lshl_b32 s3, s{sWP}, 10
    s_mul_i32 s6, s{sWP}, 3072
    s_add_u32 s6, s6, 16384
    s_mul_i32 s7, s{sWP}, 55296
    s_cmp_lt_u32 s{sW}, 4
    s_cselect_b32 s{sMSUB}, s3, s6
    s_cselect_b32 s{sSO}, 0, s7
    s_lshl_b32 s6, s{sB}, 5
    s_lshl_b32 s7, s{sJ}, 1
    s_add_u32 s6, s6, s7
    s_lshl_b32 s{sTMP}, s6, 17
    s_add_u32 s6, s6, s{sP}
    s_lshl_b32 s{sTM2}, s6, 17
    s_mul_i32 s6, s{sB}, 165888
    s_lshl_b32 s7, s{sJ}, 9
    s_waitcnt lgkmcnt(0)
    s_add_u32 s56, s56, s6
    s_addc_u32 s57, s57, 0
    s_add_u32 s62, s62, s7
    s_addc_u32 s63, s63, 0
    s_sub_u32 s7, {576*8192}, s7
    s_add_u32 s12, s58, s{sTM2}
    s_addc_u32 s13, s59, 0
    s_mov_b32 s14, 131072
    s_mov_b32 s15, 0x20000
    s_add_u32 s16, s60, s{sTM2}
    s_addc_u32 s17, s61, 0
    s_mov_b32 s18, 131072
    s_mov_b32 s19, 0x20000
    s_add_u32 s58, s58, s{sTMP}
    s_addc_u32 s59, s59, 0
    s_cmp_lt_u32 s{sW}, 4
    s_cselect_b32 s8, s62, s56
    s_cselect_b32 s9, s63, s57
    s_cselect_b32 s10, s7, 165888
    s_mov_b32 s11, 0x20000
    s_cmp_eq_u32 s{sW}, 7
    s_cbranch_scc1 K1_KPRE
    ''')
    def issue_stage():
        ntw = OPT['nt_w']
        return f'''
    s_add_u32 m0, s{sIB}, s{sMSUB}
    s_add_u32 s{sTMP}, s{sSO}, s{sD1}
    buffer_load_dwordx4 v{VOR}, s[8:11], s{sSO} offen {ntw} lds
    s_add_u32 m0, m0, s{sMSTEP}
    s_add_u32 s{sTM2}, s{sSO}, s{sD2}
    buffer_load_dwordx4 v{VOR}, s[8:11], s{sTMP} offen {ntw} lds
    s_add_u32 m0, m0, s{sMSTEP}
    s_add_u32 s{sTMP}, s{sSO}, s{sD3}
    buffer_load_dwordx4 v{VOR}, s[8:11], s{sTM2} offen {ntw} lds
    s_cmp_ge_u32 s{sW}, 4
    s_cbranch_scc1 @L
    s_add_u32 m0, m0, s{sMSTEP}
    s_nop 0
    buffer_load_dwordx4 v{VOR}, s[8:11], s{sTMP} offen {ntw} lds
    @L:
    s_add_u32 s{sSO}, s{sSO}, s{sSOSTEP}
    '''
    P(f's_mov_b32 s{sIB}, {STG0}')
    P(f's_mov_b32 s{sCNT}, 0')
    P('K1_PRO:')
    P(issue_stage().replace('@L', 'K1_PRO1'))
    P(f'''
    s_add_u32 s{sIB}, s{sIB}, {STGS}
    s_add_u32 s{sCNT}, s{sCNT}, 1
    s_cmp_lt_u32 s{sCNT}, 3
    s_cbranch_scc1 K1_PRO
    s_branch K1_INIT
    K1_KPRE:
    s_mov_b32 s8, s58
    s_mov_b32 s9, s59
    s_mov_b32 s10, 262144
    v_xor_b32 v10, 0x4c0, v{VOK}
    v_xor_b32 v11, 0x880, v{VOK}
    v_xor_b32 v12, 0xcc0-0x400+0x400, v{VOK}
    s_mov_b32 s{sCNT}, 0
    ''')
    P.ins = P.ins[:-4]
    def xorc(wp): return (3 ^ wp) * 1024 + (((3 ^ wp) * 4) << 4)
    P(f'''
    v_xor_b32 v10, {xorc(0)}, v{VOK}
    v_xor_b32 v11, {xorc(1)}, v{VOK}
    v_xor_b32 v12, {xorc(2)}, v{VOK}
    s_mov_b32 s{sCNT}, 0
    K1_KPL:
    ''')
    nk = OPT['nt_kv']
    P(f'''
    s_and_b32 s3, s{sCNT}, 3
    s_lshl_b32 s3, s3, 12
    s_bfe_u32 s6, s{sCNT}, 0x10002
    s_lshr_b32 s7, s{sCNT}, 3
    s_lshl_b32 s{sTMP}, s6, 17
    s_add_u32 s{sTMP}, s{sTMP}, s3
    s_lshl_b32 s{sTM2}, s7, 14
    s_add_u32 s{sTMP}, s{sTMP}, s{sTM2}
    s_lshl_b32 s6, s6, 14
    s_add_u32 s3, s3, s6
    s_xor_b32 s7, s7, 1
    s_lshl_b32 s7, s7, 15
    s_add_u32 m0, s3, s7
    s_add_u32 s{sCNT}, s{sCNT}, 1
    buffer_load_dwordx4 v10, s[8:11], s{sTMP} offen {nk} lds
    s_add_u32 m0, m0, 1024
    s_nop 0
    buffer_load_dwordx4 v11, s[8:11], s{sTMP} offen {nk} lds
    s_add_u32 m0, m0, 1024
    s_nop 0
    buffer_load_dwordx4 v12, s[8:11], s{sTMP} offen {nk} lds
    s_add_u32 m0, m0, 1024
    s_cmp_lt_u32 s{sCNT}, 16
    buffer_load_dwordx4 v{VOK}, s[8:11], s{sTMP} offen {nk} lds
    s_cbranch_scc1 K1_KPL
    K1_INIT:
    ''')
    P(f'''
    v_bfe_u32 v10, v{TID}, 2, 2
    v_and_b32 v11, 3, v{TID}
    v_lshrrev_b32 v12, 5, v{TID}
    v_and_b32 v13, 1, v2
    ''')
    P(f'''
    v_and_b32 v15, 1, v11
    v_lshl_add_u32 v15, v13, 1, v15
    v_lshlrev_b32 v16, 2, v10
    v_xor_b32 v15, v15, v16
    v_lshlrev_b32 v17, 1, v12
    v_xor_b32 v15, v15, v17
    v_lshl_add_u32 v17, v12, 3, v10
    v_lshlrev_b32 v17, 8, v17
    v_lshl_add_u32 v14, v15, 4, v17
    v_lshrrev_b32 v15, 1, v11
    v_lshl_add_u32 v14, v15, 3, v14
    s_lshl_b32 s3, s{sP}, 13
    s_add_u32 s3, s3, {STG0}
    v_add_u32 v{QW[0]}, s3, v14
    v_xor_b32 v{QW[1]}, 64, v{QW[0]}
    v_xor_b32 v{QW[2]}, 0x80, v{QW[0]}
    v_xor_b32 v{QW[3]}, 0xc0, v{QW[0]}
    v_mov_b32 v{X1+0-0}, v14
    ''')
    P.ins = P.ins[:-1]
    HOLD = 212
    P(f'v_mov_b32 v{HOLD}, v14')
    P(f'''
    s_lshl_b32 s6, s{sWP}, 2
    v_add_u32 v18, s6, v15
    v_xor_b32 v18, v18, v16
    v_lshlrev_b32 v19, 1, v13
    v_xor_b32 v18, v18, v19
    v_lshl_add_u32 v20, v2, 3, v10
    v_lshlrev_b32 v20, 8, v20
    v_lshl_add_u32 v18, v18, 4, v20
    v_and_b32 v20, 1, v11
    v_lshl_add_u32 v18, v20, 3, v18
    v_add_u32 v{QW9[0]}, s3, v18
    v_xor_b32 v{QW9[1]}, 32, v{QW9[0]}
    ''')
    P(f'''
    v_and_b32 v21, 31, v{TID}
    v_xor_b32 v22, v12, v10
    v_lshlrev_b32 v22, 4, v22
    v_lshl_add_u32 v22, v21, 6, v22
    s_lshl_b32 s6, s{sWP}, 11
    s_add_u32 s6, s6, {STG0 + 16384}
    v_add_u32 v{QX[0]}, s6, v22
    v_xor_b32 v{QX[1]}, 32, v{QX[0]}
    v_xor_b32 v22, v2, v10
    v_lshlrev_b32 v22, 4, v22
    v_lshl_add_u32 v22, v3, 6, v22
    v_add_u32 v{QX9}, {STG0 + 16384 + 8192}, v22
    ''')
    P(f'''
    v_and_b32 v23, 1, v10
    v_lshlrev_b32 v23, 1, v23
    v_lshrrev_b32 v24, 1, v10
    v_or_b32 v23, v23, v24
    v_lshl_add_u32 v23, v23, 2, v11
    s_lshl_b32 s3, s{sP}, 14
    s_add_u32 s6, s3, 32768
    v_lshl_add_u32 v24, v13, 4, v23
    v_xor_b32 v25, v12, v23
    v_lshlrev_b32 v25, 4, v25
    v_lshl_add_u32 v24, v24, 8, v25
    v_add_u32 v{AK}, s6, v24
    s_lshl_b32 s7, s{sWP}, 12
    s_add_u32 s6, s6, s7
    v_xor_b32 v25, v2, v23
    v_lshlrev_b32 v25, 4, v25
    v_lshl_add_u32 v25, v23, 8, v25
    v_add_u32 v{AK9}, s6, v25
    ''')
    P(f'''
    v_lshl_add_u32 v24, v13, 1, v12
    v_lshl_add_u32 v24, v24, 2, v10
    v_xor_b32 v25, v15, v16
    v_xor_b32 v25, v25, v19
    v_lshlrev_b32 v25, 4, v25
    v_lshl_add_u32 v25, v24, 8, v25
    v_lshl_add_u32 v25, v20, 3, v25
    s_add_u32 s6, s3, s7
    v_add_u32 v{AV9}, s6, v25
    ''')
    z = list(range(O, O + 64)) + list(range(CN, CN + 16)) + list(range(O9, O9 + 32)) + [213, 214, 215]
    for a in ACC: z += list(range(a, a + 16))
    for a in ACC9: z += list(range(a, a + 4))
    for r in z: P(f'v_mov_b32 v{r}, 0')
    P(f'''
    s_mov_b32 s{sIB}, {STG0}
    s_mov_b32 s{sCNT}, 0
    s_mov_b32 s{sDL}, {STGS}
    s_cmp_eq_u32 s{sW}, 7
    s_cbranch_scc1 K1_W0
    s_waitcnt vmcnt(6)
    K1_W0:
    s_barrier
    ''')
    stamp(1)
    def rd_set(st, kk):
        o = [f'ds_read_b128 {vr(st["B"], 4)}, v{QX[kk]}']
        for dt in range(4):
            for j in range(2):
                o.append(f'ds_read_b64_tr_b16 {vr(st["A"][dt] + 2 * j, 2)}, v{QW[dt]} offset:{kk * 4096 + j * 1024}')
        return o
    def mf32(d, a, b, c=None):
        return f'v_mfma_f32_32x32x16_bf16 {vr(d, 16)}, {vr(a, 4)}, {vr(b, 4)}, {vr(d if c is None else c, 16)}'
    def mf16(d, a, b, c=None):
        return f'v_mfma_f32_16x16x32_bf16 {vr(d, 4)}, {vr(a, 4)}, {vr(b, 4)}, {vr(d if c is None else c, 4)}'
    def mf16h(d, a, b):
        return f'v_mfma_f32_16x16x16_bf16 {vr(d, 4)}, {vr(a, 2)}, {vr(b, 2)}, {vr(d, 4)}'
    P.extend(rd_set(SETA, 0))
    P('K1_QL:')
    rb = rd_set(SETB, 1)
    r9 = [f'ds_read_b128 {vr(F9B, 4)}, v{QX9}'] + [f'ds_read_b64_tr_b16 {vr(F9A[t] + 2 * j, 2)}, v{QW9[t]} offset:{j * 1024}' for t in range(2) for j in range(2)]
    upd = [f'v_add_u32 v{r}, s{sDL}, v{r}' for r in QW + QX + [QX9] + QW9]
    P.extend(rb[:5]); P(mf32(ACC[0], SETA['A'][0], SETA['B']))
    P.extend(rb[5:]); P(mf32(ACC[1], SETA['A'][1], SETA['B']))
    P.extend(r9); P(mf32(ACC[2], SETA['A'][2], SETA['B']))
    P.extend(upd[:5]); P(mf32(ACC[3], SETA['A'][3], SETA['B'])); P.extend(upd[5:])
    P(f'''
    s_cmp_eq_u32 s{sW}, 7
    s_cbranch_scc1 K1_QB7
    s_waitcnt vmcnt(3)
    s_cmp_lt_u32 s{sCNT}, 16
    s_cbranch_scc1 K1_QW
    s_waitcnt vmcnt(0)
    K1_QW:
    s_barrier
    s_cmp_ge_u32 s{sCNT}, 15
    s_cbranch_scc1 K1_QC
    ''')
    P(issue_stage().replace('@L', 'K1_QI'))
    P(f'''
    s_branch K1_QC
    K1_QB7:
    s_barrier
    K1_QC:
    ''')
    ra = rd_set(SETA, 0)
    P.extend(ra[:5]); P(mf32(ACC[0], SETB['A'][0], SETB['B']))
    P.extend(ra[5:]); P(mf32(ACC[1], SETB['A'][1], SETB['B']))
    P(f'''
    s_add_u32 s{sIB}, s{sIB}, {STGS}
    s_cmp_eq_u32 s{sIB}, {STG0 + 3 * STGS}
    s_cselect_b32 s{sIB}, {STG0}, s{sIB}
    ''')
    P(mf32(ACC[2], SETB['A'][2], SETB['B']))
    P(f'''
    s_cmp_eq_u32 s{sIB}, {STG0 + 2 * STGS}
    s_cselect_b32 s{sDL}, {-2 * STGS & 0xffffffff}, {STGS}
    ''')
    P(mf32(ACC[3], SETB['A'][3], SETB['B']))
    P(f's_add_u32 s{sCNT}, s{sCNT}, 1')
    P(mf16(ACC9[0], F9A[0], F9B)); P(f's_cmp_lt_u32 s{sCNT}, 18'); P(mf16(ACC9[1], F9A[1], F9B))
    P('s_cbranch_scc1 K1_QL')
    stamp(2)
    P(f's_mov_b32 s3, {CSCALE}')
    P(f'''
    v_and_b32 v{T0}, 15, v{TID}
    v_lshrrev_b32 v{T1}, 4, v{TID}
    v_mul_u32_u24 v{T0}, 272, v{T0}
    s_mul_i32 s6, s{sP}, 4352
    s_add_u32 s6, s6, 65536
    v_add_u32 v{T0}, s6, v{T0}
    v_lshl_add_u32 v{AL}, v{T1}, 4, v{T0}
    v_lshl_add_u32 v{T0}, v{T1}, 3, v{T0}
    s_lshl_b32 s6, s{sWP}, 6
    v_add_u32 v{T0}, s6, v{T0}
    ''')
    for t in range(2):
        for i in range(4): P(f'v_mul_f32 v{ACC9[t] + i}, s3, v{ACC9[t] + i}')
        P(f'v_cvt_pk_bf16_f32 v{ACC9[t]}, v{ACC9[t]}, v{ACC9[t] + 1}')
        P(f'v_cvt_pk_bf16_f32 v{ACC9[t] + 1}, v{ACC9[t] + 2}, v{ACC9[t] + 3}')
        P(f'ds_write_b64 v{T0}, {vr(ACC9[t], 2)} offset:{t * 32}')
    for dt in range(4):
        for i in range(16): P(f'v_mul_f32 v{ACC[dt] + i}, s3, v{ACC[dt] + i}')
        for i in range(8): P(f'v_cvt_pk_bf16_f32 v{Q + dt * 8 + i}, v{ACC[dt] + 2 * i}, v{ACC[dt] + 2 * i + 1}')
    P(f'''
    s_lshl_b32 s3, s{sP}, 14
    v_add_u32 v{VA}, s3, v{HOLD}
    v_xor_b32 v{VA + 1}, 64, v{VA}
    v_xor_b32 v{VA + 2}, 0x80, v{VA}
    v_xor_b32 v{VA + 3}, 0xc0, v{VA}
    v_mov_b32 v{HOLD}, 0
    v_mov_b32 v{L}, 0
    v_mov_b32 v{L9}, 0
    s_barrier
    ''')
    for kk in range(4): P(f'ds_read_b128 {vr(Q9 + 4 * kk, 4)}, v{AL} offset:{kk * 64}')
    P(f'''
    s_mov_b32 s{sCNT}, 0
    s_mov_b32 s{sKP}, 32768
    s_mov_b32 s{sVP}, 0
    s_mov_b32 s{sIS}, 131072
    s_mov_b32 s{sSK}, 32768
    s_mov_b32 s{sSV}, 0
    s_mov_b32 s{sT}, 0xff800000
    s_mov_b32 s{sCL}, 0xff800000
    s_mov_b32 s{sRARE}, 0
    s_lshl_b32 s{sMW}, s{sWP}, 10
    s_add_u32 s{sMW}, s{sMW}, s3
    K1_TOP:
    s_waitcnt vmcnt(4)
    s_cmp_lt_u32 s{sCNT}, 8
    s_cbranch_scc1 K1_TB
    s_waitcnt vmcnt(0)
    K1_TB:
    s_barrier
    ''')
    def ring_next(s):
        return f'''
    s_sub_u32 s{s}, s{s}, 32768
    s_cselect_b32 s3, 163840, 0
    s_add_u32 s{s}, s{s}, s3
    '''
    def dma_tile(vo, srd, so):
        o = f's_add_u32 m0, s{sIS}, s{sMW}\n'
        for n in range(4):
            if n: o += f's_add_u32 m0, m0, 4096\n'
            o += f's_add_u32 s{sTMP}, s{so}, {n * 4096}\n' if n else 's_nop 0\n'
            o += f'buffer_load_dwordx4 v{vo}, s[{srd}:{srd + 3}], s{sTMP if n else so} offen {nk} lds\n'
        o += f's_add_u32 s{so}, s{so}, 16384\n' + ring_next(sIS)
        return o
    P(f'''
    s_cmp_ge_u32 s{sCNT}, 7
    s_cbranch_scc1 K1_NI
    ''')
    P(dma_tile(VOV, 16, sSV))
    P(f'''
    s_cmp_eq_u32 s{sCNT}, 6
    s_cbranch_scc1 K1_IV
    ''')
    P(dma_tile(VOK, 12, sSK))
    P('s_branch K1_NI\nK1_IV:')
    P(dma_tile(VOV, 16, sSV))
    P('K1_NI:')
    P(f'''
    s_cmp_eq_u32 s{sCNT}, 1
    s_cselect_b32 s6, 32768, 65536
    s_cmp_eq_u32 s{sCNT}, 0
    s_cselect_b32 s6, 0, s6
    s_sub_u32 s7, s{sKP}, s6
    s_cselect_b32 s3, 163840, 0
    s_add_u32 s7, s7, s3
    s_sub_u32 s{sDK}, s7, s{sKP}
    s_mov_b32 s{sKP}, s7
    s_and_b32 s6, s{sCNT}, 7
    s_cmp_lt_u32 s6, 2
    s_cselect_b32 s6, 32768, 65536
    s_cmp_eq_u32 s{sCNT}, 0
    s_cselect_b32 s6, 0, s6
    s_sub_u32 s7, s{sVP}, s6
    s_cselect_b32 s3, 163840, 0
    s_add_u32 s7, s7, s3
    s_sub_u32 s{sDV}, s7, s{sVP}
    s_mov_b32 s{sVP}, s7
    v_add_u32 v{AK}, s{sDK}, v{AK}
    v_add_u32 v{AK9}, s{sDK}, v{AK9}
    ''')
    vupd = [f'v_add_u32 v{VA + i}, s{sDV}, v{VA + i}' for i in range(4)] + [f'v_add_u32 v{AV9}, s{sDV}, v{AV9}']
    P(f'''
    s_cmp_eq_u32 s{sCNT}, 8
    s_cbranch_scc1 K1_PVO
    ''')
    itA = []
    for kk in range(8):
        for mt in range(2):
            tmp = [T0, T1][kk & 1]
            pre = [f'v_xor_b32 v{tmp}, {kk << 5}, v{AK}'] if (mt == 0 and kk) else []
            ad = tmp if kk else AK
            itA.append(dict(pre=pre, rd=lambda F, ad=ad, mt=mt: [f'ds_read_b128 {vr(F, 4)}, v{ad} offset:{mt * 8192}'],
                            mf=lambda F, kk=kk, mt=mt: mf32(S + 16 * mt, F, Q + 4 * kk, CN if kk == 0 else None)))
    for kk in range(4):
        tmp = [T0, T1][kk & 1]
        pre = [f'v_xor_b32 v{tmp}, {kk << 6}, v{AK9}'] if kk else []
        ad = tmp if kk else AK9
        itA.append(dict(pre=pre, rd=lambda F, ad=ad: [f'ds_read_b128 {vr(F, 4)}, v{ad}'],
                        mf=lambda F, kk=kk: mf16(S9, F, Q9 + 4 * kk, CN9 if kk == 0 else None)))
    itC = []
    for ks in range(4):
        for dt in range(4):
            itC.append(dict(pre=[], rd=lambda F, ks=ks, dt=dt: [f'ds_read_b64_tr_b16 {vr(F + 2 * j, 2)}, v{VA + dt} offset:{ks * 4096 + j * 1024}' for j in range(2)],
                            mf=lambda F, ks=ks, dt=dt: mf32(O + 16 * dt, F, PP + 4 * ks)))
    for d9 in range(8):
        tmp = [X0, X1][d9 & 1]
        pre = [f'v_xor_b32 v{tmp}, {d9 << 5}, v{AV9}'] if d9 else []
        ad = tmp if d9 else AV9
        itC.append(dict(pre=pre, rd=lambda F, ad=ad: [f'ds_read_b64_tr_b16 {vr(F, 2)}, v{ad}'],
                        mf=lambda F, d9=d9: mf16h(O9 + 4 * d9, F, P9)))
    def stream(items, nb=len(FB)):
        head = []
        for i in range(min(nb, len(items))): head += items[i]['pre'] + items[i]['rd'](FB[i % nb])
        groups = []
        for i, it in enumerate(items):
            g = [it['mf'](FB[i % nb])]
            if i + nb < len(items): g += items[i + nb]['pre'] + items[i + nb]['rd'](FB[i % nb])
            groups.append(g)
        return head, groups
    head, groups = stream(itA + itC)
    nA = len(itA)
    P.extend(head)
    for i in range(nA):
        P.extend(groups[i])
        if i == 2: P.extend(vupd)
    P(f'v_max3_f32 v{T1}, v{S9}, v{S9 + 1}, v{S9 + 2}')
    P(f'v_max3_f32 v{T0}, v{S}, v{S + 1}, v{S + 2}')
    P(f'v_max3_f32 v{X0}, v{S + 16}, v{S + 17}, v{S + 18}')
    P(f'v_max_f32 v{T1}, v{T1}, v{S9 + 3}')
    for i in range(6):
        P(f'v_max3_f32 v{T0}, v{T0}, v{S + 3 + 2 * i}, v{S + 4 + 2 * i}')
        P(f'v_max3_f32 v{X0}, v{X0}, v{S + 19 + 2 * i}, v{S + 20 + 2 * i}')
    P(f'v_max3_f32 v{T0}, v{T0}, v{S + 15}, v{S + 31}')
    P(f'v_max_f32 v{T0}, v{T0}, v{X0}')
    P(f'v_max_f32 v{X0}, v{T0}, v{T1}')
    P(f'''
    v_cmp_lt_f32 vcc, s{sT}, v{X0}
    s_cbranch_vccnz K1_RARE1
    K1_R1B:
    s_cmp_eq_u32 s{sCNT}, 0
    s_cbranch_scc1 K1_CP
    ''')
    fill = []
    for ks in range(4):
        b = S + 8 * ks
        for i in range(0, 8, 2):
            fill += [(0, f'v_exp_f32 v{b + i}, v{b + i}'), (0, f'v_exp_f32 v{b + i + 1}, v{b + i + 1}')]
            if i: fill += [(0, f'v_add_f32 v{L}, v{L}, v{b + i - 2}'), (0, f'v_add_f32 v{L}, v{L}, v{b + i - 1}')]
        if ks == 3:
            fill += [(0, f'v_exp_f32 v{S9 + i}, v{S9 + i}') for i in range(4)]
        fill += [(0, f'v_add_f32 v{L}, v{L}, v{b + 6}'), (0, f'v_add_f32 v{L}, v{L}, v{b + 7}')]
        fill += [(4 * ks + 3, f'v_cvt_pk_bf16_f32 v{PP + 4 * ks + i}, v{b + 2 * i}, v{b + 2 * i + 1}') for i in range(4)]
    fill += [(0, f'v_add_f32 v{L9}, v{L9}, v{S9 + i}') for i in range(4)]
    fill += [(23, f'v_cvt_pk_bf16_f32 v{P9 + i}, v{S9 + 2 * i}, v{S9 + 2 * i + 1}') for i in range(2)]
    cost = lambda t: 2 if 'exp' in t else 1
    tot = sum(cost(t) for _, t in fill)
    gC = groups[nA:]
    wts = [32] * 16 + [16] * 8
    k = 0; acc = 0; cw = 0
    for i, g in enumerate(gC):
        P.extend(g); cw += wts[i]
        goal = tot * cw / sum(wts)
        while k < len(fill) and fill[k][0] <= i and acc + cost(fill[k][1]) <= goal + 1:
            acc += cost(fill[k][1]); P(fill[k][1]); k += 1
    while k < len(fill): P(fill[k][1]); k += 1
    P(f'''
    s_cmp_lg_u32 s{sRARE}, 0
    s_cbranch_scc1 K1_RARE2
    K1_NEXT:
    s_add_u32 s{sCNT}, s{sCNT}, 1
    s_branch K1_TOP
    K1_CP:
    s_mov_b32 s{sRARE}, 0
    ''')
    for _, t in fill: P(t)
    P('s_branch K1_NEXT')
    P('K1_RARE1:')
    P(f'''
    v_mov_b32 v{X0}, v{T0}
    v_mov_b32 v{X1}, v{T1}
    v_permlane32_swap_b32 v{T0}, v{X0}
    v_permlane32_swap_b32 v{T1}, v{X1}
    v_max3_f32 v{T0}, v{T0}, v{X0}, s{sCL}
    v_max_f32 v{T1}, v{T1}, v{X1}
    v_mov_b32 v{X1}, v{T1}
    v_max_f32 v{AL}, 0, v{T0}
    v_permlane16_swap_b32 v{T1}, v{X1}
    v_max3_f32 v{T1}, v{T1}, v{X1}, s{sCL}
    v_max_f32 v{AL9}, 0, v{T1}
    v_exp_f32 v{AL}, -v{AL}
    v_exp_f32 v{AL9}, -v{AL9}
    ''')
    for i in range(32): P(f'v_sub_f32 v{S + i}, v{S + i}, v{T0}')
    for i in range(16): P(f'v_sub_f32 v{CN + i}, v{CN + i}, v{T0}')
    for i in range(4): P(f'v_sub_f32 v{S9 + i}, v{S9 + i}, v{T1}')
    for i in range(4): P(f'v_sub_f32 v{CN9 + i}, v{CN9 + i}, v{T1}')
    P(f'''
    v_mul_f32 v{L}, v{L}, v{AL}
    v_mul_f32 v{L9}, v{L9}, v{AL9}
    s_mov_b32 s{sT}, {f2u(8.0)}
    s_mov_b32 s{sCL}, 0
    s_mov_b32 s{sRARE}, 1
    s_branch K1_R1B
    K1_RARE2:
    ''')
    for i in range(64): P(f'v_mul_f32 v{O + i}, v{O + i}, v{AL}')
    for i in range(32): P(f'v_mul_f32 v{O9 + i}, v{O9 + i}, v{AL9}')
    P(f'''
    s_mov_b32 s{sRARE}, 0
    s_branch K1_NEXT
    K1_PVO:
    ''')
    stamp(3)
    P.extend(vupd)
    head, groups = stream(itC)
    P.extend(head)
    epi = f'''
    s_mul_i32 s6, s{sBR}, {WS_O_BR}
    s_add_u32 s20, s64, s6
    s_addc_u32 s21, s65, 0
    s_mov_b32 s22, {WS_O_BR}
    s_mov_b32 s23, 0x20000
    s_lshl_b32 s6, s{sJ}, 1
    s_add_u32 s6, s6, s{sP}
    s_lshl_b32 s6, s6, 13
    s_lshl_b32 s7, s{sB}, 2
    s_add_u32 s7, s7, s{sWP}
    s_lshl_b32 s7, s7, 18
    s_add_u32 s{sSK}, s6, s7
    s_add_u32 s{sSV}, s{sSK}, 4096
    s_lshr_b32 s7, s{sB}, 1
    s_add_u32 s7, s7, 32
    s_lshl_b32 s7, s7, 18
    s_add_u32 s{sIS}, s6, s7
    s_lshl_b32 s7, s{sWP}, 11
    s_add_u32 s{sIS}, s{sIS}, s7
    s_and_b32 s7, s{sB}, 1
    s_lshl_b32 s7, s7, 8
    s_add_u32 s{sIS}, s{sIS}, s7
    v_mov_b32 v{T0}, v{L}
    v_mov_b32 v{T1}, v{L9}
    v_lshlrev_b32 v{VOK}, 4, v{TID}
    v_permlane32_swap_b32 v{L}, v{T0}
    v_permlane32_swap_b32 v{L9}, v{T1}
    v_add_f32 v{L}, v{L}, v{T0}
    v_add_f32 v{L9}, v{L9}, v{T1}
    v_mov_b32 v{T1}, v{L9}
    v_rcp_f32 v{AL}, v{L}
    v_permlane16_swap_b32 v{L9}, v{T1}
    v_add_f32 v{CN9 + 1}, v{L9}, v{T1}
    '''.strip().split('\n')
    for i, g in enumerate(groups):
        P.extend(g)
        if i < len(epi) // 2: P.extend(epi[2 * i:2 * i + 2])
    P.extend(epi[2 * (len(epi) // 2):] if len(groups) >= len(epi) // 2 else epi[2 * len(groups):])
    P(f'''
    s_lshl_b32 s6, s{sW}, 13
    s_add_u32 s6, s6, 65536
    v_add_u32 v{T0}, s6, v{VOK}
    v_and_b32 v{T1}, 15, v{TID}
    v_lshlrev_b32 v{T1}, 3, v{T1}
    s_lshl_b32 s7, s{sW}, 7
    v_add_u32 v{X0}, s7, v{T1}
    ds_write_b64 v{X0}, {vr(CN9, 2)}
    ''')
    for d9 in range(8): P(f'ds_write_b128 v{T0}, {vr(O9 + 4 * d9, 4)} offset:{d9 * 1024}')
    os_ = OPT['ostore']
    for dt in range(4):
        for i in range(16): P(f'v_mul_f32 v{O + 16 * dt + i}, v{O + 16 * dt + i}, v{AL}')
        for hf in range(2):
            d = S + 8 * dt + 4 * hf
            for i in range(4): P(f'v_cvt_pk_bf16_f32 v{d + i}, v{O + 16 * dt + 8 * hf + 2 * i}, v{O + 16 * dt + 8 * hf + 2 * i + 1}')
            ks = 2 * dt + hf
            P(f'buffer_store_dwordx4 {vr(d, 4)}, v{VOK}, s[20:23], s{sSK if ks < 4 else sSV} offen offset:{(ks & 3) * 1024} {os_}')
    P('s_barrier')
    P(f'''
    s_lshl_b32 s6, s{sP}, 9
    v_add_u32 v{X0}, s6, v{T1}
    s_lshl_b32 s6, s{sP}, 15
    s_lshl_b32 s7, s{sWP}, 11
    s_add_u32 s6, s6, s7
    s_add_u32 s6, s6, 65536
    v_add_u32 v{T0}, s6, v{VOK}
    ''')
    ST = 0
    for w in range(4): P(f'ds_read_b64 {vr(ST + 2 * w, 2)}, v{X0} offset:{w * 128}')
    for w in range(4):
        for t in range(2): P(f'ds_read_b128 {vr(8 + 8 * w + 4 * t, 4)}, v{T0} offset:{w * 8192 + t * 1024}')
    P(f'''
    v_min3_f32 v40, v0, v2, v4
    v_min_f32 v40, v40, v6
    ''')
    for w in range(4): P(f'v_sub_f32 v{2 * w}, v40, v{2 * w}')
    for w in range(4): P(f'v_exp_f32 v{2 * w}, v{2 * w}')
    P(f'''
    v_lshrrev_b32 v42, 5, v{TID}
    v_bfe_u32 v43, v{TID}, 4, 1
    v_mul_f32 v41, v0, v1
    v_fmac_f32 v41, v2, v3
    v_fmac_f32 v41, v4, v5
    v_fmac_f32 v41, v6, v7
    v_rcp_f32 v41, v41
    v_lshlrev_b32 v44, 1, v{T1}
    v_lshl_add_u32 v44, v42, 9, v44
    v_lshl_add_u32 v44, v43, 3, v44
    ''')
    for w in range(4): P(f'v_mul_f32 v{2 * w}, v{2 * w}, v41')
    for i in range(8): P(f'v_mul_f32 v{8 + i}, v{8 + i}, v0')
    for w in range(1, 4):
        for i in range(8): P(f'v_fmac_f32 v{8 + i}, v{8 + 8 * w + i}, v{2 * w}')
    for t in range(2):
        P(f'v_cvt_pk_bf16_f32 v{46 + 2 * t}, v{8 + 4 * t}, v{9 + 4 * t}')
        P(f'v_cvt_pk_bf16_f32 v{47 + 2 * t}, v{10 + 4 * t}, v{11 + 4 * t}')
        P(f'buffer_store_dwordx2 {vr(46 + 2 * t, 2)}, v44, s[20:23], s{sIS} offen offset:{t * 1024} {os_}')
    if OPT['stamps']:
        P('s_waitcnt vmcnt(0)')
        stamp(4)
        P(f'''
        s_waitcnt lgkmcnt(0)
        s_add_u32 s20, s64, {WS_STAMP}
        s_addc_u32 s21, s65, 0
        s_mov_b32 s22, 0x100000
        s_lshl_b32 s6, s2, 3
        s_add_u32 s6, s6, s{sW}
        s_lshl_b32 s6, s6, 6
        v_mov_b32 v2, s6
        s_mov_b64 exec, 1
        ''')
        for k in range(5):
            P(f'v_mov_b32 v4, s{70 + 2 * k}\nv_mov_b32 v5, s{71 + 2 * k}\nbuffer_store_dwordx2 v[4:5], v2, s[20:23], 0 offen offset:{8 * k}\ns_nop 1')
    P('K1_END:\ns_endpgm')
    return P.finish()

def k2():
    P = Prog()
    NB = OPT['k2nb']; STG = 40960
    ACC = [[16 * (2 * i + j) for j in range(2)] for i in range(3)]
    SA = dict(A=[96, 100, 104], B=[108, 112]); SB = dict(A=[116, 120, 124], B=[128, 132])
    AA = [136, 137, 138]; AB = 139; VW, VO, TID = 140, 141, 142
    sW, sWN, sWQ, sBR, sKS, sQB, sN3, sIDX = 24, 25, 26, 27, 28, 29, 30, 31
    sCNT, sIB, sDL, sSW, sSO, sTMP, sMW, sMO = 32, 33, 34, 35, 36, 37, 38, 39
    P(f'''
    s_cmp_ge_u32 s2, 216
    s_cbranch_scc1 K2_END
    s_and_b32 s3, s2, 7
    s_lshr_b32 s{sBR}, s3, 2
    s_and_b32 s{sKS}, s3, 3
    s_mul_i32 s6, s{sBR}, 40
    s_add_u32 s4, s0, s6
    s_addc_u32 s5, s1, 0
    s_load_dwordx2 s[56:57], s[4:5], 32
    s_load_dwordx2 s[58:59], s[0:1], 96
    v_lshrrev_b32 v1, 6, v0
    v_and_b32 v{TID}, 63, v0
    v_readfirstlane_b32 s{sW}, v1
    s_lshr_b32 s{sIDX}, s2, 3
    s_mul_i32 s{sQB}, s{sIDX}, 43
    s_lshr_b32 s{sQB}, s{sQB}, 7
    s_mul_i32 s6, s{sQB}, 3
    s_sub_u32 s{sN3}, s{sIDX}, s6
    s_and_b32 s{sWN}, s{sW}, 1
    s_lshr_b32 s{sWQ}, s{sW}, 1
    v_lshrrev_b32 v2, 3, v{TID}
    v_and_b32 v3, 7, v{TID}
    v_bfe_u32 v4, v{TID}, 4, 1
    v_lshlrev_b32 v4, 2, v4
    v_xor_b32 v3, v3, v4
    s_lshl_b32 s6, s{sW}, 3
    v_add_u32 v2, s6, v2
    v_mul_u32_u24 v2, 1152, v2
    v_lshl_add_u32 v{VW}, v3, 4, v2
    v_lshlrev_b32 v{VO}, 4, v{TID}
    s_mul_i32 s6, s{sKS}, {1024 * 1152}
    s_mul_i32 s7, s{sN3}, 384
    s_add_u32 s6, s6, s7
    s_mul_i32 s7, s{sBR}, {WS_O_BR}
    s_lshl_b32 s3, s{sQB}, 20
    s_add_u32 s7, s7, s3
    s_lshl_b32 s3, s{sKS}, 16
    s_add_u32 s7, s7, s3
    s_lshl_b32 s{sMW}, s{sW}, 10
    s_lshl_b32 s{sMO}, s{sW}, 12
    s_add_u32 s{sMO}, s{sMO}, 24576
    s_mov_b32 s{sSW}, 0
    s_lshl_b32 s{sSO}, s{sW}, 18
    s_waitcnt lgkmcnt(0)
    s_add_u32 s8, s56, s6
    s_addc_u32 s9, s57, 0
    s_sub_u32 s10, {4096 * 1152}, s6
    s_mov_b32 s11, 0x20000
    s_add_u32 s12, s58, s7
    s_addc_u32 s13, s59, 0
    s_mov_b32 s14, 0x100000
    s_mov_b32 s15, 0x20000
    ''')
    def issue():
        o = f's_add_u32 m0, s{sIB}, s{sMO}\ns_nop 0\n'
        for e in range(4): o += f'buffer_load_dwordx4 v{VO}, s[12:15], s{sSO} offen offset:{e * 1024} {OPT["nt_o"]} lds\n'
        o += f's_add_u32 s{sSO}, s{sSO}, 4096\n'
        for gr in range(3):
            for e in range(2):
                o += f's_add_u32 m0, s{sIB}, s{sMW}\n' if (gr, e) == (0, 0) else 's_add_u32 m0, m0, 4096\n'
                o += f's_add_u32 s{sTMP}, s{sSW}, {e * 32 * 1152 + gr * 128}\n'
                o += f'buffer_load_dwordx4 v{VW}, s[8:11], s{sTMP} offen {OPT["nt_wo"]} lds\n'
        o += f's_add_u32 s{sSW}, s{sSW}, {64 * 1152}\n'
        return o
    P(f's_mov_b32 s{sIB}, 0\ns_mov_b32 s{sCNT}, 0\nK2_PRO:')
    P(issue())
    P(f'''
    s_add_u32 s{sIB}, s{sIB}, {STG}
    s_add_u32 s{sCNT}, s{sCNT}, 1
    s_cmp_lt_u32 s{sCNT}, {NB}
    s_cbranch_scc1 K2_PRO
    v_lshrrev_b32 v2, 4, v{TID}
    v_bfe_u32 v10, v{TID}, 2, 2
    v_and_b32 v11, 3, v{TID}
    v_lshrrev_b32 v12, 5, v{TID}
    v_and_b32 v13, 1, v2
    v_and_b32 v15, 1, v11
    v_lshl_add_u32 v15, v13, 1, v15
    v_lshrrev_b32 v16, 1, v10
    v_lshlrev_b32 v16, 2, v16
    v_xor_b32 v15, v15, v16
    v_lshl_add_u32 v17, v12, 3, v10
    v_lshlrev_b32 v17, 7, v17
    v_lshl_add_u32 v14, v15, 4, v17
    v_lshrrev_b32 v15, 1, v11
    v_lshl_add_u32 v14, v15, 3, v14
    v_xor_b32 v15, 64, v14
    s_cmp_eq_u32 s{sWN}, 0
    s_cselect_b64 vcc, -1, 0
    s_cselect_b32 s6, 0, 8192
    s_cselect_b32 s7, 0, 16384
    s_cselect_b32 s3, 8192, 16384
    v_cndmask_b32 v16, v15, v14, vcc
    v_cndmask_b32 v17, v14, v15, vcc
    v_add_u32 v{AA[0]}, s6, v16
    v_add_u32 v{AA[1]}, s7, v17
    v_add_u32 v{AA[2]}, s3, v16
    s_lshl_b32 s6, s{sWQ}, 13
    s_add_u32 s6, s6, 24576
    v_add_u32 v{AB}, s6, v{VO}
    ''')
    for r in range(96): P(f'v_mov_b32 v{r}, 0')
    P(f'''
    s_mov_b32 s{sIB}, 0
    s_mov_b32 s{sCNT}, 0
    s_mov_b32 s{sDL}, {STG}
    s_waitcnt vmcnt({10 * (NB - 1)})
    s_barrier
    ''')
    def rd(st, kk):
        o = []
        for j in range(2): o.append(f'ds_read_b128 {vr(st["B"][j], 4)}, v{AB} offset:{j * 4096 + kk * 1024}')
        for i in range(3):
            for j in range(2): o.append(f'ds_read_b64_tr_b16 {vr(st["A"][i] + 2 * j, 2)}, v{AA[i]} offset:{kk * 2048 + j * 512}')
        return o
    def mm(st):
        return [f'v_mfma_f32_32x32x16_bf16 {vr(ACC[i][j], 16)}, {vr(st["A"][i], 4)}, {vr(st["B"][j], 4)}, {vr(ACC[i][j], 16)}' for i in range(3) for j in range(2)]
    def step(cur, rds, extra=()):
        m = mm(cur); extra = list(extra)
        rds = list(rds)
        P.extend(rds[:4]); P(m[0]); P.extend(rds[4:6]); P(m[1]); P.extend(rds[6:]); P(m[2])
        P.extend(extra[:2]); P(m[3]); P.extend(extra[2:4]); P(m[4]); P.extend(extra[4:]); P(m[5])
    P.extend(rd(SA, 0))
    P('K2_L:')
    step(SA, rd(SB, 1))
    step(SB, rd(SA, 2))
    step(SA, rd(SB, 3), [f'v_add_u32 v{r}, s{sDL}, v{r}' for r in AA + [AB]])
    P(f'''
    s_waitcnt vmcnt({10 * (NB - 2)})
    s_cmp_lt_u32 s{sCNT}, {16 - NB + 1}
    s_cbranch_scc1 K2_W
    s_waitcnt vmcnt(0)
    K2_W:
    s_barrier
    s_cmp_ge_u32 s{sCNT}, {16 - NB}
    s_cbranch_scc1 K2_C
    ''')
    P(issue())
    P('K2_C:')
    step(SB, rd(SA, 0), [f's_add_u32 s{sIB}, s{sIB}, {STG}', f's_cmp_eq_u32 s{sIB}, {NB * STG}', f's_cselect_b32 s{sIB}, 0, s{sIB}',
                         f's_cmp_eq_u32 s{sIB}, {(NB - 1) * STG}', f's_cselect_b32 s{sDL}, {-(NB - 1) * STG & 0xffffffff}, {STG}',
                         f's_add_u32 s{sCNT}, s{sCNT}, 1', f's_cmp_lt_u32 s{sCNT}, 16'])
    P('s_cbranch_scc1 K2_L')
    P(f'''
    s_mul_i32 s6, s{sBR}, 27
    s_add_u32 s6, s6, s{sIDX}
    s_lshl_b32 s6, s6, 2
    s_add_u32 s6, s6, s{sKS}
    s_lshl_b32 s6, s6, 2
    s_add_u32 s6, s6, s{sW}
    s_mul_i32 s6, s6, 24576
    s_add_u32 s6, s6, {WS_PART}
    s_add_u32 s16, s58, s6
    s_addc_u32 s17, s59, 0
    s_mov_b32 s18, 24576
    s_mov_b32 s19, 0x20000
    ''')
    for t in range(6):
        P(f's_mov_b32 s3, {t * 4096}')
        for qd in range(4): P(f'buffer_store_dwordx4 {vr(16 * t + 4 * qd, 4)}, v{VO}, s[16:19], s3 offen offset:{qd * 1024}')
    P('K2_END:\ns_endpgm')
    return P.finish()

def k3():
    P = Prog()
    P(f'''
    s_cmp_ge_u32 s2, 648
    s_cbranch_scc1 K3_END
    s_load_dwordx2 s[56:57], s[0:1], 80
    s_load_dwordx2 s[58:59], s[0:1], 96
    v_lshrrev_b32 v1, 6, v0
    v_and_b32 v2, 63, v0
    v_readfirstlane_b32 s3, v1
    s_lshl_b32 s4, s2, 2
    s_add_u32 s4, s4, s3
    s_and_b32 s20, s4, 1
    s_lshr_b32 s4, s4, 1
    s_mul_hi_u32 s5, s4, {(2**32 + 5) // 6}
    s_mul_i32 s6, s5, 6
    s_sub_u32 s21, s4, s6
    s_and_b32 s22, s5, 3
    s_lshr_b32 s23, s5, 2
    s_cmp_ge_u32 s23, 27
    s_cselect_b32 s24, 1, 0
    s_mul_i32 s6, s24, 27
    s_sub_u32 s25, s23, s6
    s_mul_i32 s26, s25, 43
    s_lshr_b32 s26, s26, 7
    s_mul_i32 s6, s26, 3
    s_sub_u32 s27, s25, s6
    s_lshl_b32 s6, s23, 4
    s_add_u32 s6, s6, s22
    s_mul_i32 s6, s6, 24576
    s_lshl_b32 s7, s21, 12
    s_add_u32 s6, s6, s7
    s_lshl_b32 s7, s20, 11
    s_add_u32 s6, s6, s7
    s_add_u32 s6, s6, {WS_PART}
    v_lshlrev_b32 v3, 4, v2
    s_waitcnt lgkmcnt(0)
    s_add_u32 s8, s58, s6
    s_addc_u32 s9, s59, 0
    s_mov_b32 s10, {4 * 98304}
    s_mov_b32 s11, 0x20000
    s_mov_b32 s12, s56
    s_mov_b32 s13, s57
    s_mov_b32 s14, {1152 * 2304}
    s_mov_b32 s15, 0x20000
    ''')
    for k in range(4):
        P(f's_mov_b32 s3, {k * 98304}')
        P(f'buffer_load_dwordx4 {vr(8 + 8 * k, 4)}, v3, s[8:11], s3 offen')
        P(f'buffer_load_dwordx4 {vr(12 + 8 * k, 4)}, v3, s[8:11], s3 offen offset:1024')
    P(f'''
    s_lshr_b32 s28, s22, 1
    s_lshl_b32 s28, s28, 1
    s_and_b32 s6, s21, 1
    s_add_u32 s28, s28, s6
    s_and_b32 s6, s22, 1
    s_mul_i32 s6, s6, 96
    s_lshr_b32 s7, s21, 1
    s_lshl_b32 s7, s7, 5
    s_add_u32 s6, s6, s7
    s_mul_i32 s7, s27, 192
    s_add_u32 s6, s6, s7
    s_lshl_b32 s7, s20, 4
    s_add_u32 s6, s6, s7
    s_mul_i32 s7, s24, 576
    s_add_u32 s6, s6, s7
    s_lshl_b32 s29, s6, 1
    v_and_b32 v4, 31, v2
    v_lshrrev_b32 v5, 5, v2
    v_and_b32 v6, 15, v2
    v_bfe_u32 v7, v2, 4, 1
    v_mul_u32_u24 v7, 144, v7
    v_add_u32 v6, v6, v7
    s_mul_i32 s6, s26, 144
    s_lshl_b32 s7, s28, 5
    s_add_u32 s6, s6, s7
    s_mul_i32 s7, s28, 288
    s_add_u32 s7, s7, 128
    s_cmp_lt_u32 s26, 8
    s_cselect_b64 vcc, -1, 0
    s_cselect_b32 s6, s6, s7
    v_cndmask_b32 v4, v6, v4, vcc
    v_add_u32 v4, s6, v4
    v_mul_u32_u24 v4, 2304, v4
    v_lshl_add_u32 v4, v5, 4, v4
    s_waitcnt vmcnt(4)
    ''')
    for i in range(8): P(f'v_add_f32 v{8 + i}, v{8 + i}, v{16 + i}')
    P('s_waitcnt vmcnt(0)')
    for i in range(8): P(f'v_add_f32 v{24 + i}, v{24 + i}, v{32 + i}')
    for i in range(8): P(f'v_add_f32 v{8 + i}, v{8 + i}, v{24 + i}')
    for i in range(4): P(f'v_cvt_pk_bf16_f32 v{40 + i}, v{8 + 2 * i}, v{9 + 2 * i}')
    P('buffer_store_dwordx4 v[40:43], v4, s[12:15], s29 offen')
    P('K3_END:\ns_endpgm')
    return P.finish()

def desc(name, vg, sg=96):
    return f'''.amdhsa_kernel {name}
  .amdhsa_next_free_vgpr {vg}
  .amdhsa_next_free_sgpr {sg}
  .amdhsa_accum_offset {(vg + 3) // 4 * 4}
  .amdhsa_group_segment_fixed_size 0
  .amdhsa_kernarg_size 104
  .amdhsa_user_sgpr_count 2
  .amdhsa_user_sgpr_kernarg_segment_ptr 1
  .amdhsa_system_sgpr_workgroup_id_x 1
  .amdhsa_float_denorm_mode_32 3
.end_amdhsa_kernel
'''

def main():
    ref = open('cdna_kernels/%s.s.ref' % NAME).read().split('\n')
    hdr = [l for l in ref if l.startswith(';') and '@launch' not in l and 'Override launch' not in l and 'grid=ceil' not in l]
    hdr = hdr[:14]
    ks = [('attn_kernel', k1(), 256, '(256,1,1)', '(512,1,1)', 163840),
          ('oproj_kernel', k2(), 144, '(216,1,1)', '(256,1,1)', OPT['k2nb'] * 40960),
          ('reduce_kernel', k3(), 48, '(648,1,1)', '(256,1,1)', 0)]
    out = '\n'.join(hdr) + '\n'
    for n, _, _, g, b, l in ks: out += f'; @launch kernel={n} grid={g} block={b} lds={l}\n'
    out += '.amdgcn_target "amdgcn-amd-amdhsa--gfx950"\n.text\n'
    for n, body, _, _, _, _ in ks:
        out += f'.globl {n}\n.p2align 8\n.type {n},@function\n{n}:\n{body}'
    out += '.section .rodata,"a"\n'
    for n, _, vg, _, _, _ in ks: out += '.p2align 6\n' + desc(n, vg)
    open(sys.argv[1], 'w').write(out)
main()
```

```python
import re

def vr(a, n=1):
    return 'v%d' % a if n == 1 else 'v[%d:%d]' % (a, a + n - 1)
def sr(a, n=1):
    return 's%d' % a if n == 1 else 's[%d:%d]' % (a, a + n - 1)

_RNG = re.compile(r'^([vs])\[(\d+):(\d+)\]$')
_ONE = re.compile(r'^([vs])(\d+)$')
def regs(tok):
    tok = tok.strip()
    if tok.startswith('-'): tok = tok[1:]
    if tok.startswith('abs('): tok = tok[4:-1]
    m = _RNG.match(tok)
    if m: return ['%s%d' % (m.group(1), i) for i in range(int(m.group(2)), int(m.group(3)) + 1)]
    m = _ONE.match(tok)
    if m: return [tok]
    if tok in ('vcc', 'm0', 'exec', 'scc'): return [tok]
    if tok in ('vcc_lo', 'vcc_hi'): return ['vcc']
    return []

TRANS = ('v_exp_f32', 'v_rcp_f32', 'v_log_f32', 'v_rsq_f32', 'v_sqrt_f32')

class Ins:
    __slots__ = ('text', 'kind', 'w', 'r', 'passes', 'srcc', 'ab', 'target', 'cond', 'nstates', 'wide', 'dma', 'addr_r')
    def __init__(s, text, kind, w=(), r=(), passes=0, srcc=(), ab=(), target=None, cond=False, nstates=1, wide=(), dma=False):
        s.text, s.kind, s.w, s.r = text, kind, set(w), set(r)
        s.passes, s.srcc, s.ab = passes, tuple(srcc), set(ab)
        s.target, s.cond, s.nstates, s.wide, s.dma = target, cond, nstates, set(wide), dma

def parse(text):
    x = _parse(text)
    m = re.search(r';\s*need\s+(\S+)', text)
    if m: x.r |= set(regs(m.group(1)))
    return x

def _parse(text):
    t = text.split(';')[0].strip()
    if t.endswith(':'):
        return Ins(t, 'label', target=t[:-1], nstates=0)
    parts = t.split(None, 1)
    op = parts[0]
    ops = []
    if len(parts) > 1:
        depth = 0; cur = ''
        for ch in parts[1]:
            if ch in '[(': depth += 1
            if ch in '])': depth -= 1
            if ch == ',' and depth == 0: ops.append(cur.strip()); cur = ''
            else: cur += ch
        ops.append(cur.strip())
    def first_tok(x): return x.split()[0] if x.split() else ''
    o = [first_tok(x) for x in ops]
    R = lambda *idx: [x for i in idx if i < len(o) for x in regs(o[i])]
    if op.startswith('v_mfma'):
        passes = 8 if '32x32' in op else 4
        return Ins(t, 'mfma', w=R(0), r=R(1, 2, 3), passes=passes, srcc=R(3), ab=R(1, 2))
    if op.startswith('v_permlane'):
        return Ins(t, 'perm', w=R(0, 1), r=R(0, 1))
    if op in ('v_readfirstlane_b32', 'v_readlane_b32'):
        return Ins(t, 'rfl', w=R(0), r=R(1, 2))
    if op.startswith('v_cmp'):
        return Ins(t, 'valu', w=R(0), r=R(1, 2))
    if op.startswith('v_cndmask'):
        return Ins(t, 'valu', w=R(0), r=R(1, 2, 3))
    if op.startswith('v_'):
        kind = 'trans' if op.replace('_e32', '').replace('_e64', '') in TRANS else 'valu'
        r = R(*range(1, len(o)))
        if op.startswith('v_fmac') or op.startswith('v_dot2c'): r += R(0)
        return Ins(t, kind, w=R(0), r=r)
    if op.startswith('ds_read') or op.startswith('ds_bpermute'):
        return Ins(t, 'ds_r', w=R(0), r=R(*range(1, len(o))))
    if op.startswith('ds_write') or op.startswith('ds_add'):
        return Ins(t, 'ds_w', r=R(*range(0, len(o))))
    if op.startswith('buffer_load'):
        if re.search(r'\blds\b', t):
            return Ins(t, 'vmem', r=R(0, 1, 2) + ['m0'], dma=True)
        return Ins(t, 'vmem', w=R(0), r=R(1, 2, 3))
    if op.startswith('buffer_store'):
        wide = R(0) if ('x3' in op or 'x4' in op) else []
        return Ins(t, 'vmem', r=R(0, 1, 2, 3), wide=wide)
    if op.startswith('buffer_atomic'):
        w = R(0) if 'sc0' in t else []
        return Ins(t, 'vmem', w=w, r=R(0, 1, 2, 3))
    if op in ('buffer_wbl2', 'buffer_inv'):
        return Ins(t, 'vmem')
    if op == 's_nop':
        return Ins(t, 'nop', nstates=int(o[0]) + 1)
    if op == 's_waitcnt':
        return Ins(t, 'wait')
    if op == 's_barrier':
        return Ins(t, 'barrier')
    if op == 's_endpgm':
        return Ins(t, 'end')
    if op == 's_branch':
        return Ins(t, 'branch', target=o[0])
    if op.startswith('s_cbranch'):
        return Ins(t, 'branch', target=o[0], cond=True)
    if op.startswith('s_load') or op in ('s_memtime', 's_memrealtime'):
        return Ins(t, 'smem', w=R(0), r=R(1, 2))
    if op.startswith('s_cmp') or op.startswith('s_bitcmp'):
        return Ins(t, 'salu', w=['scc'], r=R(0, 1))
    if op in ('s_setprio', 's_sleep'):
        return Ins(t, 'salu')
    if op.startswith('s_'):
        return Ins(t, 'salu', w=R(0), r=R(*range(1, len(o))))
    raise ValueError('unknown op: ' + text)

VALU_KINDS = ('valu', 'trans', 'perm', 'rfl')

def need_states(p, c):
    n = 0
    pv = p.kind in VALU_KINDS
    cv = c.kind in VALU_KINDS
    pw_v = {x for x in p.w if x[0] == 'v' and x != 'vcc'}
    pw_s = {x for x in p.w if x[0] == 's' and x != 'scc' or x == 'vcc'}
    if pv and c.kind == 'mfma' and pw_v & c.r: n = max(n, 2)
    if p.kind == 'mfma':
        big = p.passes == 8
        if c.kind == 'mfma':
            if p.w & c.ab: n = max(n, 12 if big else 8)
            if p.w & set(c.srcc):
                same = set(c.srcc) == p.w and c.passes == p.passes
                if not same: n = max(n, 10 if big else 6)
            elif p.w & c.w:
                n = max(n, 12 if big else 8)
        elif cv or c.kind in ('vmem', 'ds_r', 'ds_w'):
            if p.w & (c.r | c.w): n = max(n, 12 if big else 8)
        if cv and set(p.srcc) & c.w: n = max(n, 7 if big else 3)
    if p.kind == 'trans' and cv and c.kind != 'trans' and pw_v & c.r: n = max(n, 1)
    if pv and c.kind == 'perm' and pw_v & c.r: n = max(n, 2)
    if pv and c.kind == 'rfl' and pw_v & c.r: n = max(n, 1)
    if pv and pw_s:
        if cv and pw_s & c.r: n = max(n, 4 if c.kind == 'rfl' else 2)
        if c.kind == 'vmem' and pw_s & c.r: n = max(n, 5)
    if p.kind == 'salu' and 'm0' in p.w and c.kind == 'vmem' and c.dma: n = max(n, 1)
    if p.kind == 'vmem' and p.wide and (p.wide & c.w): n = max(n, 2 if cv else 1)
    return n

class Prog:
    def __init__(s):
        s.ins = []
    def __call__(s, text):
        for line in text.split('\n'):
            line = line.strip()
            if not line or line.startswith(';'): continue
            m = re.match(r'^s_cselect_b32 (s\d+), (\S+), (\S+)$', line)
            if m:
                lit = lambda t: re.match(r'^(0x[0-9a-f]+|\d+)$', t) and int(t, 0) > 64
                if lit(m.group(2)) and lit(m.group(3)):
                    s.ins.append(parse('s_mov_b32 %s, %s' % (m.group(1), m.group(3))))
                    s.ins.append(parse('s_cmov_b32 %s, %s' % (m.group(1), m.group(2))))
                    continue
            s.ins.append(parse(line))
    def extend(s, lst):
        for x in lst:
            if isinstance(x, str): s(x)
            else: s.ins.append(x)

    def _succ(s, ins):
        lab = {x.target: i for i, x in enumerate(ins) if x.kind == 'label'}
        succ = []
        for i, x in enumerate(ins):
            if x.kind == 'end': succ.append([])
            elif x.kind == 'branch':
                succ.append(([i + 1] if x.cond else []) + [lab[x.target]])
            else: succ.append([i + 1] if i + 1 < len(ins) else [])
        return succ

    def insert_lgkm(s):
        ins = s.ins
        succ = s._succ(ins)
        need = {}
        seen = set()
        stack = [(0, ())]
        while stack:
            i, q = stack.pop()
            if (i, q) in seen: continue
            seen.add((i, q))
            assert len(seen) < 400000, 'lgkm state explosion'
            x = ins[i]
            q = list(q)
            if x.kind == 'wait':
                m = re.search(r'lgkmcnt\((\d+)\)', x.text)
                if m:
                    k = int(m.group(1)); q = q[len(q) - k:] if k < len(q) else q
                    if k == 0: q = []
            else:
                touched = x.r | x.w
                k = None
                for pos, d in enumerate(q):
                    if d == 'SMEM':
                        continue
                    if set(d) & touched: k = len(q) - 1 - pos
                if x.kind == 'barrier' and q: k = 0
                if x.kind == 'end': k = None
                if i in need: k = need[i] if k is None else min(k, need[i])
                if k is not None:
                    k = min(k, 15)
                    if i not in need or k < need[i]:
                        need[i] = k
                        seen = set(); stack = [(0, ())]
                        continue
                    q = q[len(q) - k:] if k < len(q) else q
                    if k == 0: q = []
                if x.kind == 'ds_r': q.append(tuple(sorted(x.w)))
                elif x.kind == 'ds_w': q.append(())
                elif x.kind == 'smem':
                    pass
            for j in succ[i]: stack.append((j, tuple(q)))
        out = []
        for i, x in enumerate(ins):
            if i in need: out.append(parse('s_waitcnt lgkmcnt(%d)' % need[i]))
            out.append(x)
        s.ins = out

    def insert_nops(s):
        while True:
            ins = s.ins
            succ = s._succ(ins)
            pred = [[] for _ in ins]
            for i, l in enumerate(succ):
                for j in l: pred[j].append(i)
            fix = {}
            for i, c in enumerate(ins):
                if c.kind in ('label', 'nop', 'wait', 'branch', 'barrier', 'end', 'salu', 'smem'): continue
                worst = 0
                st = [(p, 0) for p in pred[i]]
                best = {}
                while st:
                    j, d = st.pop()
                    if d >= 12: continue
                    if j in best and best[j] <= d: continue
                    best[j] = d
                    p = ins[j]
                    n = need_states(p, c)
                    if n > d: worst = max(worst, n - d)
                    for k in pred[j]: st.append((k, d + p.nstates))
                if worst: fix[i] = worst; break
            if not fix: return
            (i, n), = fix.items()
            s.ins = ins[:i] + [parse('s_nop %d' % (n - 1))] + ins[i:]

    def finish(s):
        s.insert_lgkm()
        s.insert_nops()
        return '\n'.join(('' if x.kind == 'label' else '    ') + x.text for x in s.ins) + '\n'

def interleave(main, fill, per=None, start=0):
    cost = lambda t: 2 if t.split()[0] in TRANS else 1
    tot = sum(cost(f) for f in fill)
    n = len(main) - start
    out = []; k = 0; acc = 0
    for i, g in enumerate(main):
        out += g
        if i >= start:
            goal = tot * (i - start + 1) / n
            while k < len(fill) and acc + cost(fill[k]) / 2 <= goal:
                acc += cost(fill[k]); out.append(fill[k]); k += 1
    out += fill[k:]
    return out
```

```python
import sys, struct, math
from asmlib import *

NAME = 'concat_heads__mha_block_cached__gqa_block_cached__near_ridge'
def f2u(x): return struct.unpack('<I', struct.pack('<f', x))[0]
CSCALE = f2u(math.log2(math.e) / math.sqrt(128.0))

OPT = dict(nt_kv='nt', nt_w='', nt_x='', ostore='', stamps=0, touch=0, k2nb=3, nt_wo='', nt_o='', nodma=0, nobar=0, noexp=0, nolds=0, prio=0, bdelay=1, blk=512, pa=0, pc=1, pairw=1, qdelay=3, wtouch=0)
for a in sys.argv[2:]:
    k, v = a.split('=')
    OPT[k] = int(v) if v.lstrip('-').isdigit() else v

WS_O_BR = 36 * 256 * 1024
WS_PART = 0x1400000
WS_STAMP = 0x4000000

def lanes(P, dst, expr_list):
    for e in expr_list: P(e)

def mf32(d, a, b, c=None):
    return f'v_mfma_f32_32x32x16_bf16 {vr(d, 16)}, {vr(a, 4)}, {vr(b, 4)}, {vr(d if c is None else c, 16)}'
def mf16(d, a, b, c=None):
    return f'v_mfma_f32_16x16x32_bf16 {vr(d, 4)}, {vr(a, 4)}, {vr(b, 4)}, {vr(d if c is None else c, 4)}'
def mf16h(d, a, b):
    return f'v_mfma_f32_16x16x16_bf16 {vr(d, 4)}, {vr(a, 2)}, {vr(b, 2)}, {vr(d, 4)}'

def k1():
    P = Prog()
    O, S, CN, Q, PP, O9, Q9, S9, CN9, P9 = 0, 64, 96, 112, 144, 160, 192, 208, 212, 216
    L, L9, VOK, VOV, AK, AK9, AV9, TID = 218, 219, 220, 221, 222, 223, 224, 225
    VA = 226
    T0, T1, AL, AL9, X0, X1 = 230, 231, 232, 233, 234, 235
    FB = [236, 240, 244, 248, 252]
    ACC = [[0, 16, 32, 48], [64, 80, 144, 176]]; ACC9 = [[160, 164], [168, 172]]
    QW = [230, 231, 232, 233]; QX = [234, 235]; QX9, QW9, VOW, VOX, HOLD = 216, 217, 218, 219, 212
    QB, QB9 = [96, 100], 104
    QF = [112, 116, 120, 124, 128, 132, 136, 140, 236, 240]
    sW, sWP, sP, sB, sJ, sBR = 24, 25, 26, 27, 28, 29
    sCNT, sW0, sX, sMC, sIB, sDL = 30, 31, 33, 35, 36, 37
    sEX = 38
    sIS, sSK, sSV, sDK, sDV, sT, sCL, sRARE, sTMP, sTM2, sMW, sKP, sVP, sKST = 40, 41, 42, 43, 44, 45, 46, 47, 48, 49, 50, 51, 66, 67
    STG0, STGS = 87040, 25600
    QXCH, Q9B = 87040, 87040 + 32768
    nk, ntw = OPT['nt_kv'], OPT['nt_w']
    def stamp(k, at=None):
        if OPT['stamps']:
            if at is not None: P(f's_cmp_lg_u32 s{sCNT}, {at}\ns_cbranch_scc1 K1_ST{k}_{len(P.ins)}'); lbl = P.ins[-1].target
            P(('s_memtime' if OPT['stamps'] == 2 else 's_memrealtime') + ' s[%d:%d]' % (70 + 2 * k, 71 + 2 * k))
            if at is not None: P(f'{lbl}:')
            if k == 1: P('s_memtime s[96:97]')
            if k == 4: P('s_memtime s[98:99]')
    P(f"""
    s_cmp_ge_u32 s2, 256
    s_cbranch_scc1 K1_END
    s_bfe_u32 s{sBR}, s2, 0x10002
    s_mul_i32 s6, s{sBR}, 40
    s_add_u32 s4, s0, s6
    s_addc_u32 s5, s1, 0
    s_load_dwordx8 s[56:63], s[4:5], 0
    s_load_dwordx2 s[64:65], s[0:1], 96
    """)
    stamp(0)
    P(f"""
    v_lshrrev_b32 v1, 6, v0
    v_and_b32 v{TID}, 63, v0
    v_readfirstlane_b32 s{sW}, v1
    v_lshrrev_b32 v2, 4, v{TID}
    v_and_b32 v3, 15, v{TID}
    s_and_b32 s3, s2, 3
    s_lshl_b32 s3, s3, 2
    s_bfe_u32 s7, s2, 0x20003
    s_add_u32 s{sJ}, s3, s7
    s_lshr_b32 s{sB}, s2, 5
    s_and_b32 s{sWP}, s{sW}, 3
    s_lshr_b32 s{sP}, s{sW}, 2
    v_lshlrev_b32 v4, 2, v2
    v_xor_b32 v4, v4, v3
    v_lshlrev_b32 v4, 4, v4
    v_lshl_add_u32 v{VOW}, v2, 13, v4
    v_lshrrev_b32 v8, 2, v{TID}
    v_and_b32 v9, 3, v{TID}
    v_xor_b32 v9, v9, v2
    v_mul_u32_u24 v8, 1152, v8
    v_lshl_add_u32 v{VOX}, v9, 4, v8
    s_lshl_b32 s3, s{sWP}, 2
    v_or_b32 v5, s3, v2
    v_xor_b32 v5, v5, v3
    v_lshlrev_b32 v5, 4, v5
    s_lshl_b32 s{sMW}, s{sWP}, 12
    v_lshl_add_u32 v5, v2, 8, v5
    v_add_u32 v{VOK}, s{sMW}, v5
    v_lshl_add_u32 v5, v2, 8, v4
    v_add_u32 v{VOV}, s{sMW}, v5
    s_lshl_b32 s{sW0}, s{sWP}, 16
    s_mul_i32 s{sX}, s{sWP}, 18432
    s_mul_i32 s{sMC}, s{sWP}, 3072
    s_lshl_b32 s3, s{sWP}, 4
    s_lshl_b64 s[{sEX}:{sEX + 1}], 0xffff, s3
    s_mul_i32 s6, s{sB}, 165888
    s_lshl_b32 s7, s{sJ}, 9
    s_mov_b32 s11, 0x20000
    s_mov_b32 s22, {165888 + 2048}
    s_mov_b32 s23, 0x20000
    s_sub_u32 s10, {576 * 8192}, s7
    s_mov_b32 s{sIB}, {STG0}
    s_lshl_b32 s{sTMP}, s{sB}, 5
    s_lshl_b32 s{sTM2}, s{sJ}, 1
    s_add_u32 s{sTMP}, s{sTMP}, s{sTM2}
    s_lshl_b32 s{sTMP}, s{sTMP}, 17
    s_mov_b32 s14, 262144
    s_mov_b32 s15, 0x20000
    s_mov_b32 s18, 262144
    s_mov_b32 s19, 0x20000
    s_mov_b32 s{sCNT}, 0
    s_cmp_ge_u32 s{sW}, 4
    s_waitcnt lgkmcnt(0)
    s_cbranch_scc1 K1_G1
    s_add_u32 s8, s62, s7
    s_addc_u32 s9, s63, 0
    s_add_u32 s20, s56, s6
    s_addc_u32 s21, s57, 0
    s_sub_u32 s20, s20, 2048
    s_subb_u32 s21, s21, 0
    """)
    def stage_dma():
        o = []
        for hd in range(2):
            o += [f's_add_u32 m0, s{sIB}, s{sMC}' if hd == 0 else 's_add_u32 m0, m0, 12288',
                  f's_add_u32 s3, s{sW0}, {hd * 256}', f'buffer_load_dwordx4 v{VOW}, s[8:11], s3 offen {ntw} lds',
                  f's_add_u32 s3, s{sW0}, {hd * 256 + 32768 - 1024}', f'buffer_load_dwordx4 v{VOW}, s[8:11], s3 offen offset:1024 {ntw} lds',
                  f's_add_u32 s3, s{sX}, {hd * 4 * 18432}', f'buffer_load_dwordx4 v{VOX}, s[20:23], s3 offen offset:2048 {ntw} lds']
        o += [f's_add_u32 m0, s{sIB}, 24576', f's_lshl_b32 s3, s{sCNT}, 6', f's_add_u32 s3, s3, {128 * 1152 + 2048}', f's_mov_b64 exec, s[{sEX}:{sEX + 1}]',
              f'buffer_load_dwordx4 v{VOX}, s[20:23], s3 offen {ntw} lds', 's_mov_b64 exec, -1',
              f's_add_u32 s{sW0}, s{sW0}, 262144', f's_add_u32 s{sX}, s{sX}, 64', f's_add_u32 s{sCNT}, s{sCNT}, 1',
              f's_add_u32 s{sIB}, s{sIB}, {STGS}', f's_cmp_eq_u32 s{sIB}, {STG0 + 3 * STGS}', f's_cselect_b32 s{sIB}, {STG0}, s{sIB}']
        return o
    kvsrd = f"""
    s_add_u32 s12, s58, s{sTMP}
    s_addc_u32 s13, s59, 0
    s_add_u32 s16, s60, s{sTMP}
    s_addc_u32 s17, s61, 0
    """
    lanec = f"""
    v_bfe_u32 v10, v{TID}, 2, 2
    v_and_b32 v11, 3, v{TID}
    v_lshrrev_b32 v12, 5, v{TID}
    v_and_b32 v13, 1, v2
    v_and_b32 v20, 1, v11
    v_lshrrev_b32 v15, 1, v11
    v_lshlrev_b32 v16, 2, v10
    v_lshl_add_u32 v17, v13, 1, v20
    v_xor_b32 v17, v17, v16
    v_lshlrev_b32 v17, 4, v17
    v_lshl_add_u32 v17, v15, 3, v17
    v_lshl_add_u32 v17, v10, 8, v17
    s_lshl_b32 s3, s{sP}, 14
    s_add_u32 s{sMW}, s{sMW}, s3
    s_add_u32 s3, s3, 32768
    v_lshl_add_u32 v18, v12, 10, v17
    v_add_u32 v{VA}, s3, v18
    v_xor_b32 v{VA + 1}, 64, v{VA}
    v_xor_b32 v{VA + 2}, 0x80, v{VA}
    v_xor_b32 v{VA + 3}, 0xc0, v{VA}
    v_bfe_u32 v23, v{TID}, 3, 2
    v_bfe_u32 v24, v{TID}, 2, 1
    v_lshl_add_u32 v25, v23, 2, v11
    v_xor_b32 v25, v25, v12
    v_lshlrev_b32 v25, 4, v25
    v_lshl_add_u32 v25, v11, 8, v25
    v_lshl_add_u32 v25, v24, 10, v25
    v_lshl_add_u32 v25, v23, 12, v25
    v_add_u32 v{AK}, s3, v25
    s_lshl_b32 s7, s{sWP}, 10
    s_add_u32 s6, s3, s7
    v_xor_b32 v25, v2, v3
    v_lshlrev_b32 v25, 4, v25
    v_lshl_add_u32 v25, v11, 8, v25
    v_lshl_add_u32 v25, v10, 12, v25
    v_add_u32 v{AK9}, s6, v25
    v_xor_b32 v25, v15, v16
    v_lshlrev_b32 v25, 4, v25
    v_lshl_add_u32 v25, v20, 3, v25
    v_lshl_add_u32 v25, v10, 8, v25
    v_lshl_add_u32 v25, v2, 12, v25
    v_add_u32 v{AV9}, s6, v25
    v_mul_u32_u24 v26, 272, v3
    v_lshl_add_u32 v27, v2, 4, v26
    s_mul_i32 s6, s{sP}, 4352
    s_add_u32 s6, s6, {Q9B}
    v_add_u32 v{S9}, s6, v27
    v_lshlrev_b32 v27, 4, v{TID}
    s_lshl_b32 s6, s{sWP}, 13
    s_add_u32 s6, s6, {QXCH}
    v_add_u32 v{S9 + 1}, s6, v27
    """
    loopinit = f"""
    s_mov_b32 s{sCNT}, 0
    s_mov_b32 s{sKP}, 32768
    s_mov_b32 s{sVP}, 32768
    s_mov_b32 s{sKST}, 32768
    s_mov_b32 s{sDV}, 0
    s_mov_b32 s{sIS}, 131072
    s_lshl_b32 s{sSV}, s{sP}, 17
    s_add_u32 s{sSK}, s{sSV}, 32768
    s_add_u32 s14, s{sSV}, 131072
    s_mov_b32 s18, s14
    s_mov_b32 s{sT}, 0xff800000
    s_mov_b32 s{sCL}, 0xff800000
    s_mov_b32 s{sRARE}, 0
    """
    P('K1_PRO:')
    P.extend(stage_dma())
    P(f's_cmp_lt_u32 s{sCNT}, 3\ns_cbranch_scc1 K1_PRO')
    stamp(12)
    P(kvsrd); P(lanec)
    for r in list(range(O, O + 64)) + list(range(CN, CN + 16)) + list(range(O9, O9 + 32)) + list(range(CN9, CN9 + 4)): P(f'v_mov_b32 v{r}, 0')
    P('s_waitcnt vmcnt(14)\ns_barrier')
    stamp(1)
    P('K1_LD:')
    if OPT['stamps'] == 2: stamp(5, 11); stamp(6, 12)
    P('s_waitcnt vmcnt(7)')
    if OPT['stamps'] == 2: stamp(3, 11)
    P('s_barrier')
    if OPT['stamps'] == 2: stamp(2, 11)
    P.extend(stage_dma())
    P(f"""
    s_cmp_lt_u32 s{sCNT}, 18
    s_cbranch_scc1 K1_LD
    s_waitcnt vmcnt(7)
    s_barrier
    s_waitcnt vmcnt(0)
    s_barrier
    v_mov_b32 v{L}, 0
    v_mov_b32 v{L9}, 0
    """)
    P(loopinit)
    if OPT['stamps'] == 1: stamp(5); stamp(6); stamp(2)
    P('s_barrier')
    for kk in range(8): P(f'ds_read_b128 {vr(Q + 4 * kk, 4)}, v{S9 + 1} offset:{kk * 1024}')
    for kk in range(4): P(f'ds_read_b128 {vr(Q9 + 4 * kk, 4)}, v{S9} offset:{kk * 64}')
    P('s_barrier\ns_branch K1_HEAD')
    P('K1_G1:')
    if OPT['wtouch']:
        P(f"""
        s_add_u32 s8, s62, s7
        s_addc_u32 s9, s63, 0
        s_add_u32 s20, s56, s6
        s_addc_u32 s21, s57, 0
        s_mov_b32 s22, 165888
        v_lshrrev_b32 v5, 2, v{TID}
        v_and_b32 v6, 3, v{TID}
        v_lshlrev_b32 v6, 7, v6
        v_lshl_add_u32 v5, v5, 13, v6
        v_lshlrev_b32 v6, 7, v{TID}
        s_lshl_b32 s3, s{sB}, 2
        s_add_u32 s3, s3, s{sWP}
        s_mul_i32 s3, s3, {18 * 8192}
        s_bfe_u32 s6, s2, 0x20003
        s_lshl_b32 s6, s6, 2
        s_add_u32 s6, s6, s{sWP}
        s_mul_i32 s6, s6, {81 * 128}
        buffer_load_dword v248, v5, s[8:11], s3 offen {ntw}
        buffer_load_dword v249, v6, s[20:23], s6 offen {ntw}
        s_add_u32 s3, s3, {16 * 8192}
        s_add_u32 s6, s6, {64 * 128}
        s_mov_b64 exec, 0xff
        buffer_load_dword v250, v5, s[8:11], s3 offen {ntw}
        s_mov_b64 exec, 0x1ffff
        buffer_load_dword v251, v6, s[20:23], s6 offen {ntw}
        s_mov_b64 exec, -1
        """)
    P(kvsrd)
    for t in range(2):
        for hd in range(2):
            P(f's_add_u32 m0, s{sMW}, {(1 - t) * 32768 + hd * 16384}\ns_mov_b32 s3, {hd * 131072 + t * 16384}')
            for n in range(4): P(f'buffer_load_dwordx4 v{VOK}, s[12:15], s3 offen offset:{n * 1024} {nk} lds')
    if OPT['touch']:
        P(f'v_lshlrev_b32 v5, 7, v{TID}\ns_lshl_b32 s6, s{sWP}, 13\ns_and_b32 s7, s6, 0x2000\ns_lshr_b32 s6, s6, 14\ns_lshl_b32 s6, s6, 17\ns_add_u32 s6, s6, s7')
        for i, (srd, off) in enumerate([(16, 0), (12, 32768), (16, 16384), (12, 49152)][:OPT['touch']]):
            P(f's_add_u32 s3, s6, {off}\nbuffer_load_dword v{244 + i}, v5, s[{srd}:{srd + 3}], s3 offen {nk}')
    stamp(12)
    P(lanec)
    P(f"""
    v_mul_u32_u24 v18, 3072, v12
    v_add_u32 v18, {STG0}, v18
    v_add_u32 v{QW[0]}, v17, v18
    v_xor_b32 v{QW[1]}, 64, v{QW[0]}
    v_xor_b32 v{QW[2]}, 0x80, v{QW[0]}
    v_xor_b32 v{QW[3]}, 0xc0, v{QW[0]}
    s_lshl_b32 s6, s{sWP}, 2
    v_add_u32 v18, s6, v15
    v_xor_b32 v18, v18, v16
    v_lshlrev_b32 v18, 4, v18
    v_lshl_add_u32 v18, v20, 3, v18
    v_lshl_add_u32 v18, v10, 8, v18
    v_mul_u32_u24 v19, 3072, v2
    v_add_u32 v19, {STG0}, v19
    v_add_u32 v{QW9}, v18, v19
    v_xor_b32 v22, v12, v10
    v_lshlrev_b32 v22, 4, v22
    v_lshl_add_u32 v22, v3, 6, v22
    v_mul_u32_u24 v19, 3072, v13
    s_mul_i32 s6, s{sWP}, 6144
    s_add_u32 s6, s6, {STG0 + 2048}
    v_add3_u32 v{QX[0]}, v22, v19, s6
    v_xor_b32 v{QX[1]}, 32, v{QX[0]}
    v_xor_b32 v22, v2, v10
    v_lshlrev_b32 v22, 4, v22
    v_lshl_add_u32 v22, v3, 6, v22
    v_add_u32 v{QX9}, {STG0 + 24576}, v22
    v_lshl_add_u32 v27, v2, 3, v26
    s_lshl_b32 s6, s{sWP}, 6
    s_add_u32 s6, s6, {Q9B}
    v_add_u32 v{S9 + 2}, s6, v27
    """)
    z = list(range(CN9, CN9 + 4)) + list(range(108, 112)) + [L, L9]
    for hd in range(2):
        for a in ACC[hd]: z += list(range(a, a + 16))
        for a in ACC9[hd]: z += list(range(a, a + 4))
    for r in z: P(f'v_mov_b32 v{r}, 0')
    P(f's_mov_b32 s{sIB}, 0\ns_barrier')
    stamp(1)
    qit = []
    def qmain(kk, hd, dt):
        return (lambda F: [f'ds_read_b64_tr_b16 {vr(F + 2 * j, 2)}, v{QW[dt]} offset:{hd * 12288 + kk * 6144 + j * 1024}' for j in range(2)],
                lambda F: mf32(ACC[hd][dt], F, QB[kk]))
    def q9(hd, t):
        return (lambda F: [f'ds_read_b64_tr_b16 {vr(F + 2 * j, 2)}, v{QW9} offset:{hd * 12288 + t * 32 + j * 1024}' for j in range(2)],
                lambda F: mf16(ACC9[hd][t], F, QB9))
    qit = [qmain(0, hd, dt) for hd in range(2) for dt in range(4)] + [q9(hd, t) for hd in range(2) for t in range(2)] + [qmain(1, hd, dt) for hd in range(2) for dt in range(4)]
    nq = len(QF); NQ = len(qit); QD = OPT['qdelay']
    qrd = lambda i: qit[i % NQ][0](QF[i % nq])
    bheads = [f'ds_read_b128 {vr(QB[0], 4)}, v{QX[0]}', f'ds_read_b128 {vr(QB9, 4)}, v{QX9}']
    upd = [f'v_add_u32 v{r}, s{sDL}, v{r}' for r in QW + QX + [QX9, QW9]]
    P(bheads[0])
    for i in range(nq):
        P.extend(qrd(i))
        if i == 3: P(bheads[1])
    P('K1_QL:')
    if OPT['stamps'] == 2: stamp(5, 8); stamp(6, 9)
    if OPT['stamps'] == 1: stamp(5, 4); stamp(6, 10)
    for i in range(NQ):
        m = qit[i][1](QF[i % nq])
        if i % 2 == 0 and i + 1 < NQ: m += f' ; need {vr(QF[(i + 1) % nq], 4)}'
        P(m)
        j = i + nq - NQ
        if j < 0: P.extend(qrd(i + nq))
        elif j == QD:
            if OPT['stamps'] == 2: stamp(3, 8)
            P(f's_cmp_eq_u32 s{sCNT}, 17\ns_cbranch_scc1 K1_QE\ns_barrier')
            if OPT['stamps'] == 2: stamp(2, 8)
            qpend = [bheads[0]] + [x for jj in range(QD + 1) for x in qrd(jj)]
        elif j > QD:
            qpend += qrd(i + nq)
            n = len(qpend) if i == NQ - 1 else 4
            P.extend(qpend[:n]); qpend = qpend[n:]
        if i == 0: P(f'ds_read_b128 {vr(QB[1], 4)}, v{QX[1]}')
        if i == 2: P(f's_cmp_eq_u32 s{sIB}, 2\ns_cselect_b32 s{sDL}, {-2 * STGS & 0xffffffff}, {STGS}')
        if i == 4: P(f's_add_u32 s{sIB}, s{sIB}, 1\ns_cselect_b32 s{sIB}, 0, s{sIB}'.replace('s_add_u32', 's_addk_i32').replace(f's{sIB}, s{sIB}, 1', f's{sIB}, 1').split('\n')[0])
        if i == 4: P(f's_cmp_eq_u32 s{sIB}, 3\ns_cselect_b32 s{sIB}, 0, s{sIB}')
        if i == 10: P.extend(upd[:4])
        if i == 11: P.extend(upd[4:])
        if i == NQ - 2: P(bheads[1])
    P(f's_add_u32 s{sCNT}, s{sCNT}, 1\ns_branch K1_QL\nK1_QE:')
    for i in range(NQ - nq + QD + 1, NQ): P(qit[i][1](QF[i % nq]))
    if OPT['stamps'] == 1: stamp(2)
    P(f's_mov_b32 s6, {CSCALE}')
    for hd in range(2):
        for t in range(2):
            a = ACC9[hd][t]
            for i in range(4): P(f'v_mul_f32 v{a + i}, s6, v{a + i}')
            P(f'v_cvt_pk_bf16_f32 v{a}, v{a}, v{a + 1}\nv_cvt_pk_bf16_f32 v{a + 1}, v{a + 2}, v{a + 3}')
            P(f'ds_write_b64 v{S9 + 2}, {vr(a, 2)} offset:{hd * 4352 + t * 32}')
    for dt in [0, 1, 2, 3]:
        a = ACC[0][dt]
        for i in range(16): P(f'v_mul_f32 v{a + i}, s6, v{a + i}')
        for hf in range(2):
            for i in range(4): P(f'v_cvt_pk_bf16_f32 v{a + 8 * hf + i}, v{a + 8 * hf + 2 * i}, v{a + 8 * hf + 2 * i + 1}')
            P(f'ds_write_b128 v{S9 + 1}, {vr(a + 8 * hf, 4)} offset:{(2 * dt + hf) * 1024}')
    P(loopinit)
    P('s_waitcnt vmcnt(0)\ns_barrier')
    for kk in range(4): P(f'ds_read_b128 {vr(Q9 + 4 * kk, 4)}, v{S9} offset:{kk * 64}')
    for i in range(16): P(f'v_mul_f32 v{ACC[1][0] + i}, s6, v{ACC[1][0] + i}')
    P('s_barrier')
    for dt in range(4):
        a = ACC[1][dt]
        if dt:
            for i in range(16): P(f'v_mul_f32 v{a + i}, s6, v{a + i}')
        for i in range(8): P(f'v_cvt_pk_bf16_f32 v{Q + dt * 8 + i}, v{a + 2 * i}, v{a + 2 * i + 1}')
    for r in list(range(O, O + 64)) + list(range(CN, CN + 12)) + list(range(O9, O9 + 32)): P(f'v_mov_b32 v{r}, 0')
    P('K1_HEAD:')

    def dma_sites(vo, srd, so):
        out = []
        for n in range(4):
            g = [f's_add_u32 m0, s{sIS}, s{sMW}', f's_sub_u32 s{sIS}, s{sIS}, 32768'] if n == 0 else []
            g.append(f'buffer_load_dwordx4 v{vo}, s[{srd}:{srd + 3}], s{so} offen offset:{n * 1024} {nk} lds')
            if n == 0: g += ['s_cselect_b32 s3, 163840, 0', f's_add_u32 s{sIS}, s{sIS}, s3']
            if n == 3: g.append(f's_add_u32 s{so}, s{so}, 16384')
            out.append(g)
        return out
    dmaV = dma_sites(VOV, 16, sSV); dmaK = dma_sites(VOK, 12, sSK)
    book = f"""s_sub_u32 s7, s{sKP}, s{sKST}
    s_cselect_b32 s3, 163840, 0
    s_add_u32 s7, s7, s3
    s_sub_u32 s{sDK}, s7, s{sKP}
    s_mov_b32 s{sKP}, s7
    s_mov_b32 s{sKST}, 65536
    s_sub_u32 s7, s{sVP}, 65536
    s_cselect_b32 s3, 163840, 0
    s_add_u32 s7, s7, s3
    s_sub_u32 s{sDV}, s7, s{sVP}
    s_mov_b32 s{sVP}, s7""".split('\n')
    vupd = [f'v_add_u32 v{VA + i}, s{sDV}, v{VA + i}' for i in range(4)] + [f'v_add_u32 v{AV9}, s{sDV}, v{AV9}']
    kupd = [f'v_add_u32 v{AK}, s{sDK}, v{AK}', f'v_add_u32 v{AK9}, s{sDK}, v{AK9}']
    def kmain(kk, mt):
        tmp = [T0, T1][kk & 1]
        pre = [f'v_xor_b32 v{tmp}, {kk << 5}, v{AK}'] if (mt == 0 and kk) else []
        ad = tmp if kk else AK
        return dict(rd=lambda F: pre + [f'ds_read_b128 {vr(F, 4)}, v{ad} offset:{mt * 2048}'],
                    mf=lambda F: [mf32(S + 16 * mt, F, Q + 4 * kk, CN if kk == 0 else None)], w=32)
    def k9(kk):
        pre = [f'v_xor_b32 v{X0}, {kk << 6}, v{AK9}'] if kk else []
        ad = X0 if kk else AK9
        return dict(rd=lambda F: pre + [f'ds_read_b128 {vr(F, 4)}, v{ad}'],
                    mf=lambda F: [mf16(S9, F, Q9 + 4 * kk, CN9 if kk == 0 else None)], w=16)
    def vmain(ks, dt):
        mt, u = ks >> 1, ks & 1
        return dict(rd=lambda F: [f'ds_read_b64_tr_b16 {vr(F + 2 * j, 2)}, v{VA + dt} offset:{u * 8192 + j * 4096 + mt * 2048}' for j in range(2)],
                    mf=lambda F: [mf32(O + 16 * dt, F, PP + 4 * ks)], w=32)
    def v9(pp):
        pre = [f'v_xor_b32 v{X1}, {pp << 6}, v{AV9}'] if pp else []
        ad = X1 if pp else AV9
        return dict(rd=lambda F: pre + [f'ds_read_b64_tr_b16 {vr(F + 2 * j, 2)}, v{ad} offset:{32 * j}' for j in range(2)],
                    mf=lambda F: [mf16h(O9 + 4 * (2 * pp + j), F + 2 * j, P9) for j in range(2)], w=32)
    itA = []
    for kk in range(8):
        itA += [kmain(kk, 0), kmain(kk, 1)]
        if 1 <= kk <= 4: itA.append(k9(kk - 1))
    itC = []
    for dt in range(4): itC += [vmain(0, dt), v9(dt)]
    for ks in range(1, 4): itC += [vmain(ks, dt) for dt in range(4)]
    lastP = {0: 6, 1: 11, 2: 15, 3: 19, 9: 7}
    nb = len(FB); items = itA + itC; N = len(items); nA = len(itA)
    assert N % nb == 0 and nA % nb == 0
    RD = lambda i: items[i % N]['rd'](FB[i % nb])
    DL = OPT['bdelay']
    def MF(i, pair=True):
        m = items[i]['mf'](FB[i % nb])
        if pair and OPT['pairw'] and i % 2 == 0 and (i + 1) % nA != 0: m[0] += f' ; need {vr(FB[(i + 1) % nb], 4)}'
        return m
    def sync(lbl, group0, wait='vmcnt(4)'):
        return [f's_cmp_lt_u32 s{sW}, 4', f's_cbranch_scc{0 if group0 else 1} {lbl}', f's_waitcnt {wait}', 's_barrier', f'{lbl}:']
    for i in range(nb): P.extend(RD(i))
    P('K1_TOP:')
    if OPT['pa'] != OPT['pc']: P(f's_setprio {OPT["pa"]}')
    if OPT['stamps'] == 2: stamp(7, 3); stamp(11, 4)
    else: stamp(7, 0); stamp(8, 1); stamp(9, 2); stamp(10, 4); stamp(11, 6)
    for i in range(nA):
        P.extend(MF(i))
        j = i + nb - nA
        if j < 0: P.extend(RD(i + nb))
        elif j == DL:
            P.extend(sync('K1_Y', False))
            for jj in range(DL + 1): P.extend(RD(nA + jj))
        elif j > DL: P.extend(RD(i + nb))
        if i == 2: P.extend(vupd)
        if i == 4: P.extend(book[:6])
        if i == 7: P.extend(book[6:])
        if i in (1, 5, 9, 13): P.extend(dmaV[(i - 1) // 4])
    if OPT['stamps'] == 2: stamp(8, 3)
    P(f"""
    s_cmp_eq_u32 s{sCNT}, 0
    s_cbranch_scc1 K1_CP
    """)
    if OPT['pa'] != OPT['pc']: P(f's_setprio {OPT["pc"]}')
    mx = [f'v_max3_f32 v{T1}, v{S9}, v{S9 + 1}, v{S9 + 2}', f'v_max_f32 v{T1}, v{T1}, v{S9 + 3}', f'v_max3_f32 v{T0}, v{S}, v{S + 1}, v{S + 2}']
    mx += [f'v_max3_f32 v{T0}, v{T0}, v{S + 3 + 2 * i}, v{S + 4 + 2 * i}' for i in range(6)]
    mx += [f'v_max3_f32 v{X0}, v{S + 16}, v{S + 17}, v{S + 18}']
    mx += [f'v_max3_f32 v{X0}, v{X0}, v{S + 19 + 2 * i}, v{S + 20 + 2 * i}' for i in range(6)]
    mx += [f'v_max3_f32 v{X0}, v{X0}, v{S + 15}, v{S + 31}', f'v_max_f32 v{T0}, v{T0}, v{X0}', f'v_max_f32 v{X0}, v{T0}, v{T1}', f'v_cmp_lt_f32 vcc, s{sT}, v{X0}']
    fill = []
    for ks in range(4):
        b = S + 8 * ks
        for i in range(0, 8, 2):
            fill += [(0, f'v_exp_f32 v{b + i}, v{b + i}'), (0, f'v_exp_f32 v{b + i + 1}, v{b + i + 1}')]
            if i: fill += [(0, f'v_add_f32 v{L}, v{L}, v{b + i - 2}'), (0, f'v_add_f32 v{L}, v{L}, v{b + i - 1}')]
        if ks == 0: fill += [(0, f'v_exp_f32 v{S9 + i}, v{S9 + i}') for i in range(4)]
        fill += [(0, f'v_add_f32 v{L}, v{L}, v{b + 6}'), (0, f'v_add_f32 v{L}, v{L}, v{b + 7}')]
        if ks == 0: fill += [(0, f'v_add_f32 v{L9}, v{L9}, v{S9 + i}') for i in range(4)]
        fill += [(lastP[ks], f'v_cvt_pk_bf16_f32 v{PP + 4 * ks + i}, v{b + 2 * i}, v{b + 2 * i + 1}') for i in range(4)]
        if ks == 0: fill += [(lastP[9], f'v_cvt_pk_bf16_f32 v{P9 + i}, v{S9 + 2 * i}, v{S9 + 2 * i + 1}') for i in range(2)]
    cost = lambda t: 2 if 'exp' in t else (0 if 'BR' in t else 1)
    full = [(0, t) for t in kupd + mx] + [(0, 'BR')] + fill
    tot = sum(cost(t) for _, t in full)
    pend = list(full); acc = 0; cw = 0; wsum = sum(it['w'] for it in itC)
    for c in range(len(itC)):
        i = nA + c
        P.extend(MF(i)); cw += itC[c]['w']
        j = i + nb - N
        if j < 0: P.extend(RD(i + nb))
        elif j == DL:
            P.extend(sync('K1_X', True))
            for jj in range(DL + 1): P.extend(RD(jj))
        elif j > DL: P.extend(RD(i + nb))
        if c in (1, 5, 9, 13): P.extend(dmaK[(c - 1) // 4])
        goal = tot * min(1.0, cw / (wsum - 32))
        q = 0
        while q < len(pend) and acc + cost(pend[q][1]) <= goal + 1:
            if pend[q][0] > c: q += 1; continue
            acc += cost(pend[q][1]); t = pend.pop(q)[1]
            P('s_cbranch_vccnz K1_RARE1\nK1_R1B:' if t == 'BR' else t)
    for _, t in pend: P(t)
    if OPT['stamps'] == 2: stamp(10, 3)
    P(f"""
    s_add_u32 s{sCNT}, s{sCNT}, 1
    s_add_u32 s3, s{sCNT}, s{sRARE}
    s_cmp_lt_u32 s3, 8
    s_cbranch_scc1 K1_TOP
    s_cmp_lg_u32 s{sRARE}, 0
    s_cbranch_scc1 K1_RARE2
    K1_NEXT:
    s_cmp_lt_u32 s{sCNT}, 8
    s_cbranch_scc1 K1_TOP
    s_branch K1_PVO
    K1_CP:
    """)
    P.extend(kupd + mx[:-1]); P('s_branch K1_RARE1\nK1_CPB:')
    P(f's_mov_b32 s{sRARE}, 0\ns_mov_b32 s{sCNT}, 1')
    for i, (_, t) in enumerate(fill):
        P(t)
        if i in (4, 24, 44, 64): P.extend(dmaK[(i - 4) // 20])
        if i == len(fill) - 12:
            P.extend(sync('K1_XP', True))
            for jj in range(nb): P.extend(RD(jj))
    P('s_branch K1_TOP')
    P(f"""
    K1_RARE1:
    v_mov_b32 v{X0}, v{T0}
    v_mov_b32 v{X1}, v{T1}
    v_permlane32_swap_b32 v{T0}, v{X0}
    v_permlane32_swap_b32 v{T1}, v{X1}
    v_max3_f32 v{T0}, v{T0}, v{X0}, s{sCL}
    v_max_f32 v{T1}, v{T1}, v{X1}
    v_mov_b32 v{X1}, v{T1}
    v_max_f32 v{AL}, 0, v{T0}
    v_permlane16_swap_b32 v{T1}, v{X1}
    v_max3_f32 v{T1}, v{T1}, v{X1}, s{sCL}
    v_max_f32 v{AL9}, 0, v{T1}
    v_exp_f32 v{AL}, -v{AL}
    v_exp_f32 v{AL9}, -v{AL9}
    """)
    for i in range(32): P(f'v_sub_f32 v{S + i}, v{S + i}, v{T0}')
    for i in range(16): P(f'v_sub_f32 v{CN + i}, v{CN + i}, v{T0}')
    for i in range(4): P(f'v_sub_f32 v{S9 + i}, v{S9 + i}, v{T1}')
    for i in range(4): P(f'v_sub_f32 v{CN9 + i}, v{CN9 + i}, v{T1}')
    P(f"""
    v_mul_f32 v{L}, v{L}, v{AL}
    v_mul_f32 v{L9}, v{L9}, v{AL9}
    s_mov_b32 s{sT}, {f2u(8.0)}
    s_mov_b32 s{sCL}, 0
    s_mov_b32 s{sRARE}, 8
    s_cmp_eq_u32 s{sCNT}, 0
    s_cbranch_scc1 K1_CPB
    s_branch K1_R1B
    K1_RARE2:
    """)
    for i in range(64): P(f'v_mul_f32 v{O + i}, v{O + i}, v{AL}')
    for i in range(32): P(f'v_mul_f32 v{O9 + i}, v{O9 + i}, v{AL9}')
    P(f"""
    s_mov_b32 s{sRARE}, 0
    s_branch K1_NEXT
    K1_PVO:
    """)
    if OPT['stamps'] == 1: stamp(3)
    P.extend(vupd)
    P.extend(sync('K1_Y8', False, 'vmcnt(0)'))
    for i in range(nb): P.extend(RD(nA + i))
    groups = [MF(nA + c) + (RD(nA + c + nb) if c + nb < len(itC) else []) for c in range(len(itC))]
    epi = f'''
    s_mul_i32 s6, s{sBR}, {WS_O_BR}
    s_add_u32 s20, s64, s6
    s_addc_u32 s21, s65, 0
    s_mov_b32 s22, {WS_O_BR}
    s_mov_b32 s23, 0x20000
    s_lshl_b32 s6, s{sJ}, 1
    s_add_u32 s6, s6, s{sP}
    s_lshl_b32 s6, s6, 13
    s_lshl_b32 s7, s{sB}, 2
    s_add_u32 s7, s7, s{sWP}
    s_lshl_b32 s7, s7, 18
    s_add_u32 s{sSK}, s6, s7
    s_add_u32 s{sSV}, s{sSK}, 4096
    s_lshr_b32 s7, s{sB}, 1
    s_add_u32 s7, s7, 32
    s_lshl_b32 s7, s7, 18
    s_add_u32 s{sIS}, s6, s7
    s_lshl_b32 s7, s{sWP}, 11
    s_add_u32 s{sIS}, s{sIS}, s7
    s_and_b32 s7, s{sB}, 1
    s_lshl_b32 s7, s7, 8
    s_add_u32 s{sIS}, s{sIS}, s7
    v_mov_b32 v{T0}, v{L}
    v_mov_b32 v{T1}, v{L9}
    v_lshlrev_b32 v{VOK}, 4, v{TID}
    v_permlane32_swap_b32 v{L}, v{T0}
    v_permlane32_swap_b32 v{L9}, v{T1}
    v_add_f32 v{L}, v{L}, v{T0}
    v_add_f32 v{L9}, v{L9}, v{T1}
    v_mov_b32 v{T1}, v{L9}
    v_rcp_f32 v{AL}, v{L}
    v_permlane16_swap_b32 v{L9}, v{T1}
    v_add_f32 v{CN9 + 1}, v{L9}, v{T1}
    '''.strip().split('\n')
    for i, g in enumerate(groups):
        P.extend(g)
        if i < len(epi) // 2: P.extend(epi[2 * i:2 * i + 2])
    P.extend(epi[2 * (len(epi) // 2):] if len(groups) >= len(epi) // 2 else epi[2 * len(groups):])
    P.extend(sync('K1_X9', True, 'vmcnt(0)'))
    P(f'''
    s_lshl_b32 s6, s{sW}, 13
    s_add_u32 s6, s6, 65536
    v_add_u32 v{T0}, s6, v{VOK}
    v_and_b32 v{T1}, 15, v{TID}
    v_lshlrev_b32 v{T1}, 3, v{T1}
    s_lshl_b32 s7, s{sW}, 7
    s_add_u32 s7, s7, 131072
    v_add_u32 v{X0}, s7, v{T1}
    ds_write_b64 v{X0}, {vr(CN9, 2)}
    ''')
    for d9 in range(8): P(f'ds_write_b128 v{T0}, {vr(O9 + 4 * d9, 4)} offset:{d9 * 1024}')
    os_ = OPT['ostore']
    for dt in range(4):
        for i in range(16): P(f'v_mul_f32 v{O + 16 * dt + i}, v{O + 16 * dt + i}, v{AL}')
        for hf in range(2):
            d = S + 8 * dt + 4 * hf
            for i in range(4): P(f'v_cvt_pk_bf16_f32 v{d + i}, v{O + 16 * dt + 8 * hf + 2 * i}, v{O + 16 * dt + 8 * hf + 2 * i + 1}')
            ks = 2 * dt + hf
            P(f'buffer_store_dwordx4 {vr(d, 4)}, v{VOK}, s[20:23], s{sSK if ks < 4 else sSV} offen offset:{(ks & 3) * 1024} {os_}')
    P('s_barrier')
    P(f'''
    s_lshl_b32 s6, s{sP}, 9
    s_add_u32 s6, s6, 131072
    v_add_u32 v{X0}, s6, v{T1}
    s_lshl_b32 s6, s{sP}, 15
    s_lshl_b32 s7, s{sWP}, 11
    s_add_u32 s6, s6, s7
    s_add_u32 s6, s6, 65536
    v_add_u32 v{T0}, s6, v{VOK}
    ''')
    ST = 0
    for w in range(4): P(f'ds_read_b64 {vr(ST + 2 * w, 2)}, v{X0} offset:{w * 128}')
    for w in range(4):
        for t in range(2): P(f'ds_read_b128 {vr(8 + 8 * w + 4 * t, 4)}, v{T0} offset:{w * 8192 + t * 1024}')
    P(f'''
    v_min3_f32 v40, v0, v2, v4
    v_min_f32 v40, v40, v6
    ''')
    for w in range(4): P(f'v_sub_f32 v{2 * w}, v40, v{2 * w}')
    for w in range(4): P(f'v_exp_f32 v{2 * w}, v{2 * w}')
    P(f'''
    v_lshrrev_b32 v42, 5, v{TID}
    v_bfe_u32 v43, v{TID}, 4, 1
    v_mul_f32 v41, v0, v1
    v_fmac_f32 v41, v2, v3
    v_fmac_f32 v41, v4, v5
    v_fmac_f32 v41, v6, v7
    v_rcp_f32 v41, v41
    v_lshlrev_b32 v44, 1, v{T1}
    v_lshl_add_u32 v44, v42, 9, v44
    v_lshl_add_u32 v44, v43, 3, v44
    ''')
    for w in range(4): P(f'v_mul_f32 v{2 * w}, v{2 * w}, v41')
    for i in range(8): P(f'v_mul_f32 v{8 + i}, v{8 + i}, v0')
    for w in range(1, 4):
        for i in range(8): P(f'v_fmac_f32 v{8 + i}, v{8 + 8 * w + i}, v{2 * w}')
    for t in range(2):
        P(f'v_cvt_pk_bf16_f32 v{46 + 2 * t}, v{8 + 4 * t}, v{9 + 4 * t}')
        P(f'v_cvt_pk_bf16_f32 v{47 + 2 * t}, v{10 + 4 * t}, v{11 + 4 * t}')
        P(f'buffer_store_dwordx2 {vr(46 + 2 * t, 2)}, v44, s[20:23], s{sIS} offen offset:{t * 1024} {os_}')
    if OPT['stamps']:
        P('s_waitcnt vmcnt(0)')
        stamp(4)
        P(f'''
        s_waitcnt lgkmcnt(0)
        s_add_u32 s20, s64, {WS_STAMP}
        s_addc_u32 s21, s65, 0
        s_mov_b32 s22, 0x100000
        s_lshl_b32 s6, s2, 3
        s_add_u32 s6, s6, s{sW}
        s_lshl_b32 s6, s6, 7
        v_mov_b32 v2, s6
        s_mov_b64 exec, 1
        ''')
        for k in range(15):
            P(f'v_mov_b32 v4, s{70 + 2 * k}\nv_mov_b32 v5, s{71 + 2 * k}\nbuffer_store_dwordx2 v[4:5], v2, s[20:23], 0 offen offset:{8 * k}\ns_nop 1')
    P('K1_END:\ns_endpgm')
    a0 = [i for i, x in enumerate(P.ins) if x.text == 'K1_LD:'][0]; a1 = [i for i, x in enumerate(P.ins) if x.text == 'K1_PVO:'][0]
    keep = []
    kp0 = [i for i, x in enumerate(P.ins) if x.text == 'K1_G1:'][0]; kp1 = [i for i, x in enumerate(P.ins) if x.text == 'K1_QL:'][0]
    for i, x in enumerate(P.ins):
        if a0 < i < a1:
            if OPT['nodma'] and x.dma and not (kp0 < i < kp1): continue
            if OPT['nobar'] and x.kind == 'barrier': continue
            if OPT['noexp'] and x.kind in ('valu', 'trans') and ('exp' in x.text or 'v_add_f32' in x.text or 'cvt_pk' in x.text or 'max3' in x.text): continue
            if OPT['nolds'] and x.kind == 'ds_r': continue
        keep.append(x)
    P.ins = keep
    return P.finish()

def k2():
    P = Prog()
    NB = OPT['k2nb']; STG = 40960
    ACC = [[16 * (2 * i + j) for j in range(2)] for i in range(3)]
    SA = dict(A=[96, 100, 104], B=[108, 112]); SB = dict(A=[116, 120, 124], B=[128, 132])
    AA = [136, 137, 138]; AB = 139; VW, VO, TID = 140, 141, 142
    sW, sWN, sWQ, sBR, sKS, sQB, sN3, sIDX = 24, 25, 26, 27, 28, 29, 30, 31
    sCNT, sIB, sDL, sSW, sSO, sTMP, sMW, sMO, sIP, sOST, sWST = 32, 33, 34, 35, 36, 37, 38, 39, 40, 41, 42
    P(f'''
    s_cmp_ge_u32 s2, 216
    s_cbranch_scc1 K2_END
    s_and_b32 s3, s2, 7
    s_lshr_b32 s{sBR}, s3, 2
    s_and_b32 s{sKS}, s3, 3
    s_mul_i32 s6, s{sBR}, 40
    s_add_u32 s4, s0, s6
    s_addc_u32 s5, s1, 0
    s_load_dwordx2 s[56:57], s[4:5], 32
    s_load_dwordx2 s[58:59], s[0:1], 96
    v_lshrrev_b32 v1, 6, v0
    v_and_b32 v{TID}, 63, v0
    v_readfirstlane_b32 s{sW}, v1
    s_lshr_b32 s{sIDX}, s2, 3
    s_mul_i32 s{sQB}, s{sIDX}, 43
    s_lshr_b32 s{sQB}, s{sQB}, 7
    s_mul_i32 s6, s{sQB}, 3
    s_sub_u32 s{sN3}, s{sIDX}, s6
    s_and_b32 s{sWN}, s{sW}, 1
    s_lshr_b32 s{sWQ}, s{sW}, 1
    v_lshrrev_b32 v2, 3, v{TID}
    v_and_b32 v3, 7, v{TID}
    v_bfe_u32 v4, v{TID}, 4, 1
    v_lshlrev_b32 v4, 2, v4
    v_xor_b32 v3, v3, v4
    s_lshl_b32 s6, s{sW}, 3
    v_add_u32 v2, s6, v2
    v_mul_u32_u24 v2, 1152, v2
    v_lshl_add_u32 v{VW}, v3, 4, v2
    v_lshlrev_b32 v{VO}, 4, v{TID}
    s_mul_i32 s6, s{sKS}, {1024 * 1152}
    s_mul_i32 s7, s{sN3}, 384
    s_add_u32 s6, s6, s7
    s_mul_i32 s7, s{sBR}, {WS_O_BR}
    s_lshl_b32 s3, s{sQB}, 20
    s_add_u32 s7, s7, s3
    s_lshl_b32 s3, s{sKS}, 16
    s_add_u32 s7, s7, s3
    s_lshl_b32 s{sMW}, s{sW}, 10
    s_lshl_b32 s{sMO}, s{sW}, 12
    s_add_u32 s{sMO}, s{sMO}, 24576
    s_mov_b32 s{sSW}, 0
    s_lshl_b32 s{sSO}, s{sW}, 18
    s_waitcnt lgkmcnt(0)
    s_add_u32 s8, s56, s6
    s_addc_u32 s9, s57, 0
    s_sub_u32 s10, {4096 * 1152}, s6
    s_mov_b32 s11, 0x20000
    s_add_u32 s12, s58, s7
    s_addc_u32 s13, s59, 0
    s_mov_b32 s14, 0x100000
    s_mov_b32 s15, 0x20000
    ''')
    def issue():
        o = f's_add_u32 m0, s{sIB}, s{sMO}\ns_nop 0\n'
        for e in range(4): o += f'buffer_load_dwordx4 v{VO}, s[12:15], s{sSO} offen offset:{e * 1024} {OPT["nt_o"]} lds\n'
        o += f's_add_u32 s{sSO}, s{sSO}, 4096\n'
        for gr in range(3):
            for e in range(2):
                o += f's_add_u32 m0, s{sIB}, s{sMW}\n' if (gr, e) == (0, 0) else 's_add_u32 m0, m0, 4096\n'
                o += f's_add_u32 s{sTMP}, s{sSW}, {e * 32 * 1152 + gr * 128}\n'
                o += f'buffer_load_dwordx4 v{VW}, s[8:11], s{sTMP} offen {OPT["nt_wo"]} lds\n'
        o += f's_add_u32 s{sSW}, s{sSW}, {64 * 1152}\n'
        return o
    P(f's_mov_b32 s{sIB}, 0\ns_mov_b32 s{sCNT}, 0\nK2_PRO:')
    P(issue())
    P(f'''
    s_add_u32 s{sIB}, s{sIB}, {STG}
    s_add_u32 s{sCNT}, s{sCNT}, 1
    s_cmp_lt_u32 s{sCNT}, {NB}
    s_cbranch_scc1 K2_PRO
    v_lshrrev_b32 v2, 4, v{TID}
    v_bfe_u32 v10, v{TID}, 2, 2
    v_and_b32 v11, 3, v{TID}
    v_lshrrev_b32 v12, 5, v{TID}
    v_and_b32 v13, 1, v2
    v_and_b32 v15, 1, v11
    v_lshl_add_u32 v15, v13, 1, v15
    v_lshrrev_b32 v16, 1, v10
    v_lshlrev_b32 v16, 2, v16
    v_xor_b32 v15, v15, v16
    v_lshl_add_u32 v17, v12, 3, v10
    v_lshlrev_b32 v17, 7, v17
    v_lshl_add_u32 v14, v15, 4, v17
    v_lshrrev_b32 v15, 1, v11
    v_lshl_add_u32 v14, v15, 3, v14
    v_xor_b32 v15, 64, v14
    s_cmp_eq_u32 s{sWN}, 0
    s_cselect_b64 vcc, -1, 0
    s_cselect_b32 s6, 0, 8192
    s_cselect_b32 s7, 0, 16384
    s_cselect_b32 s3, 8192, 16384
    v_cndmask_b32 v16, v15, v14, vcc
    v_cndmask_b32 v17, v14, v15, vcc
    v_add_u32 v{AA[0]}, s6, v16
    v_add_u32 v{AA[1]}, s7, v17
    v_add_u32 v{AA[2]}, s3, v16
    s_lshl_b32 s6, s{sWQ}, 13
    s_add_u32 s6, s6, 24576
    v_add_u32 v{AB}, s6, v{VO}
    ''')
    for r in range(96): P(f'v_mov_b32 v{r}, 0')
    P(f'''
    s_mov_b32 s{sIB}, 0
    s_mov_b32 s{sCNT}, 0
    s_mov_b32 s{sDL}, {STG}
    s_mov_b32 s{sOST}, 4096
    s_mov_b32 s{sWST}, {64 * 1152}
    s_waitcnt vmcnt({10 * (NB - 1)})
    s_barrier
    ''')
    def rd(st, kk):
        o = []
        for j in range(2): o.append(f'ds_read_b128 {vr(st["B"][j], 4)}, v{AB} offset:{j * 4096 + kk * 1024}')
        for i in range(3):
            for j in range(2): o.append(f'ds_read_b64_tr_b16 {vr(st["A"][i] + 2 * j, 2)}, v{AA[i]} offset:{kk * 2048 + j * 512}')
        return o
    def mm(st):
        return [f'v_mfma_f32_32x32x16_bf16 {vr(ACC[i][j], 16)}, {vr(st["A"][i], 4)}, {vr(st["B"][j], 4)}, {vr(ACC[i][j], 16)}' for i in range(3) for j in range(2)]
    def step(cur, rds, extra=(), dm=()):
        m = mm(cur); extra = list(extra); rds = list(rds); dm = list(dm) + [[]] * 3
        P.extend(rds[:4]); P(m[0]); P.extend(rds[4:6]); P(m[1]); P.extend(rds[6:]); P.extend(dm[0]); P(m[2])
        P.extend(extra[:2]); P(m[3]); P.extend(extra[2:4]); P.extend(dm[1]); P(m[4]); P.extend(extra[4:]); P(m[5]); P.extend(dm[2])
    dms = []
    for e in range(4):
        g = [f's_add_u32 m0, s{sIP}, s{sMO}', 's_nop 0'] if e == 0 else []
        g.append(f'buffer_load_dwordx4 v{VO}, s[12:15], s{sSO} offen offset:{e * 1024} {OPT["nt_o"]} lds')
        if e == 3: g.append(f's_add_u32 s{sSO}, s{sSO}, s{sOST}')
        dms.append(g)
    for gr in range(3):
        for e in range(2):
            g = [f's_add_u32 m0, s{sIP}, s{sMW}' if (gr, e) == (0, 0) else 's_add_u32 m0, m0, 4096',
                 f's_add_u32 s{sTMP}, s{sSW}, {e * 32 * 1152 + gr * 128}',
                 f'buffer_load_dwordx4 v{VW}, s[8:11], s{sTMP} offen {OPT["nt_wo"]} lds']
            if (gr, e) == (2, 1): g.append(f's_add_u32 s{sSW}, s{sSW}, s{sWST}')
            dms.append(g)
    P.extend(rd(SA, 0))
    P(f'''
    s_branch K2_E
    K2_L:
    ''')
    step(SA, rd(SB, 1), dm=dms[3:6])
    step(SB, rd(SA, 2), dm=dms[6:8])
    step(SA, rd(SB, 3), [f'v_add_u32 v{r}, s{sDL}, v{r}' for r in AA + [AB]], dm=dms[8:10])
    P('s_branch K2_M\nK2_E:')
    step(SA, rd(SB, 1))
    step(SB, rd(SA, 2))
    step(SA, rd(SB, 3), [f'v_add_u32 v{r}, s{sDL}, v{r}' for r in AA + [AB]])
    P(f'''
    K2_M:
    s_cmp_eq_u32 s{sCNT}, {16 - NB}
    s_cbranch_scc0 K2_W
    s_mov_b32 s{sSO}, 0x40000000
    s_mov_b32 s{sSW}, 0x40000000
    s_mov_b32 s{sOST}, 0
    s_mov_b32 s{sWST}, 0
    K2_W:
    s_mov_b32 s{sIP}, s{sIB}
    s_waitcnt vmcnt({10 * (NB - 2)})
    s_barrier
    ''')
    step(SB, rd(SA, 0), [f's_add_u32 s{sIB}, s{sIB}, {STG}', f's_cmp_eq_u32 s{sIB}, {NB * STG}', f's_cselect_b32 s{sIB}, 0, s{sIB}',
                         f's_cmp_eq_u32 s{sIB}, {(NB - 1) * STG}', f's_cselect_b32 s{sDL}, {-(NB - 1) * STG & 0xffffffff}, {STG}'], dm=dms[0:3])
    P(f's_add_u32 s{sCNT}, s{sCNT}, 1\ns_cmp_lt_u32 s{sCNT}, 16\ns_cbranch_scc1 K2_L')
    P(f'''
    s_mul_i32 s6, s{sBR}, 27
    s_add_u32 s6, s6, s{sIDX}
    s_lshl_b32 s6, s6, 2
    s_add_u32 s6, s6, s{sKS}
    s_lshl_b32 s6, s6, 2
    s_add_u32 s6, s6, s{sW}
    s_mul_i32 s6, s6, 24576
    s_add_u32 s6, s6, {WS_PART}
    s_add_u32 s16, s58, s6
    s_addc_u32 s17, s59, 0
    s_mov_b32 s18, 24576
    s_mov_b32 s19, 0x20000
    ''')
    for t in range(6):
        P(f's_mov_b32 s3, {t * 4096}')
        for qd in range(4): P(f'buffer_store_dwordx4 {vr(16 * t + 4 * qd, 4)}, v{VO}, s[16:19], s3 offen offset:{qd * 1024}')
    P('K2_END:\ns_endpgm')
    return P.finish()

def k3():
    P = Prog()
    P(f'''
    s_cmp_ge_u32 s2, 648
    s_cbranch_scc1 K3_END
    s_load_dwordx2 s[56:57], s[0:1], 80
    s_load_dwordx2 s[58:59], s[0:1], 96
    v_lshrrev_b32 v1, 6, v0
    v_and_b32 v2, 63, v0
    v_readfirstlane_b32 s3, v1
    s_lshl_b32 s4, s2, 2
    s_add_u32 s4, s4, s3
    s_and_b32 s20, s4, 1
    s_lshr_b32 s4, s4, 1
    s_mul_hi_u32 s5, s4, {(2**32 + 5) // 6}
    s_mul_i32 s6, s5, 6
    s_sub_u32 s21, s4, s6
    s_and_b32 s22, s5, 3
    s_lshr_b32 s23, s5, 2
    s_cmp_ge_u32 s23, 27
    s_cselect_b32 s24, 1, 0
    s_mul_i32 s6, s24, 27
    s_sub_u32 s25, s23, s6
    s_mul_i32 s26, s25, 43
    s_lshr_b32 s26, s26, 7
    s_mul_i32 s6, s26, 3
    s_sub_u32 s27, s25, s6
    s_lshl_b32 s6, s23, 4
    s_add_u32 s6, s6, s22
    s_mul_i32 s6, s6, 24576
    s_lshl_b32 s7, s21, 12
    s_add_u32 s6, s6, s7
    s_lshl_b32 s7, s20, 11
    s_add_u32 s6, s6, s7
    s_add_u32 s6, s6, {WS_PART}
    v_lshlrev_b32 v3, 4, v2
    s_waitcnt lgkmcnt(0)
    s_add_u32 s8, s58, s6
    s_addc_u32 s9, s59, 0
    s_mov_b32 s10, {4 * 98304}
    s_mov_b32 s11, 0x20000
    s_mov_b32 s12, s56
    s_mov_b32 s13, s57
    s_mov_b32 s14, {1152 * 2304}
    s_mov_b32 s15, 0x20000
    ''')
    for k in range(4):
        P(f's_mov_b32 s3, {k * 98304}')
        P(f'buffer_load_dwordx4 {vr(8 + 8 * k, 4)}, v3, s[8:11], s3 offen')
        P(f'buffer_load_dwordx4 {vr(12 + 8 * k, 4)}, v3, s[8:11], s3 offen offset:1024')
    P(f'''
    s_lshr_b32 s28, s22, 1
    s_lshl_b32 s28, s28, 1
    s_and_b32 s6, s21, 1
    s_add_u32 s28, s28, s6
    s_and_b32 s6, s22, 1
    s_mul_i32 s6, s6, 96
    s_lshr_b32 s7, s21, 1
    s_lshl_b32 s7, s7, 5
    s_add_u32 s6, s6, s7
    s_mul_i32 s7, s27, 192
    s_add_u32 s6, s6, s7
    s_lshl_b32 s7, s20, 4
    s_add_u32 s6, s6, s7
    s_mul_i32 s7, s24, 576
    s_add_u32 s6, s6, s7
    s_lshl_b32 s29, s6, 1
    v_and_b32 v4, 31, v2
    v_lshrrev_b32 v5, 5, v2
    v_and_b32 v6, 15, v2
    v_bfe_u32 v7, v2, 4, 1
    v_mul_u32_u24 v7, 144, v7
    v_add_u32 v6, v6, v7
    s_mul_i32 s6, s26, 144
    s_lshl_b32 s7, s28, 5
    s_add_u32 s6, s6, s7
    s_mul_i32 s7, s28, 288
    s_add_u32 s7, s7, 128
    s_cmp_lt_u32 s26, 8
    s_cselect_b64 vcc, -1, 0
    s_cselect_b32 s6, s6, s7
    v_cndmask_b32 v4, v6, v4, vcc
    v_add_u32 v4, s6, v4
    v_mul_u32_u24 v4, 2304, v4
    v_lshl_add_u32 v4, v5, 4, v4
    s_waitcnt vmcnt(4)
    ''')
    for i in range(8): P(f'v_add_f32 v{8 + i}, v{8 + i}, v{16 + i}')
    P('s_waitcnt vmcnt(0)')
    for i in range(8): P(f'v_add_f32 v{24 + i}, v{24 + i}, v{32 + i}')
    for i in range(8): P(f'v_add_f32 v{8 + i}, v{8 + i}, v{24 + i}')
    for i in range(4): P(f'v_cvt_pk_bf16_f32 v{40 + i}, v{8 + 2 * i}, v{9 + 2 * i}')
    P('buffer_store_dwordx4 v[40:43], v4, s[12:15], s29 offen')
    P('K3_END:\ns_endpgm')
    return P.finish()

def desc(name, vg, sg=100):
    return f'''.amdhsa_kernel {name}
  .amdhsa_next_free_vgpr {vg}
  .amdhsa_next_free_sgpr {sg}
  .amdhsa_accum_offset {(vg + 3) // 4 * 4}
  .amdhsa_group_segment_fixed_size 0
  .amdhsa_kernarg_size 104
  .amdhsa_user_sgpr_count 2
  .amdhsa_user_sgpr_kernarg_segment_ptr 1
  .amdhsa_system_sgpr_workgroup_id_x 1
  .amdhsa_float_denorm_mode_32 3
.end_amdhsa_kernel
'''

def main():
    ref = open('cdna_kernels/%s.s.ref' % NAME).read().split('\n')
    hdr = [l for l in ref if l.startswith(';') and '@launch' not in l and 'Override launch' not in l and 'grid=ceil' not in l]
    hdr = hdr[:14]
    ks = [('attn_kernel', k1(), 256, '(256,1,1)', '(%d,1,1)' % OPT['blk'], 163840),
          ('oproj_kernel', k2(), 144, '(216,1,1)', '(256,1,1)', OPT['k2nb'] * 40960),
          ('reduce_kernel', k3(), 48, '(648,1,1)', '(256,1,1)', 0)]
    out = '\n'.join(hdr) + '\n'
    for n, _, _, g, b, l in ks: out += f'; @launch kernel={n} grid={g} block={b} lds={l}\n'
    out += '.amdgcn_target "amdgcn-amd-amdhsa--gfx950"\n.text\n'
    for n, body, _, _, _, _ in ks:
        out += f'.globl {n}\n.p2align 8\n.type {n},@function\n{n}:\n{body}'
    out += '.section .rodata,"a"\n'
    for n, _, vg, _, _, _ in ks: out += '.p2align 6\n' + desc(n, vg)
    open(sys.argv[1], 'w').write(out)
main()
```

```python
import sys, struct, math
from asmlib import *

NAME = 'concat_heads__mha_block_cached__gqa_block_cached__near_ridge'
def f2u(x): return struct.unpack('<I', struct.pack('<f', x))[0]
CSCALE = f2u(math.log2(math.e) / math.sqrt(128.0))

OPT = dict(nt_kv='nt', nt_w='', nt_x='', ostore='', stamps=0, touch=0, k2nb=3, nt_wo='', nt_o='', nodma=0, nobar=0, noexp=0, nolds=0, prio=0, bdelay=1, blk=512, pa=0, pc=1, pairw=1, qdelay=3, wtouch=0, kvs=11111111, npre=3, dist=4, sq=9, fused=1, p2nb=3, wot=1, ld2='', spin=200000)
for a in sys.argv[2:]:
    k, v = a.split('=')
    OPT[k] = int(v) if (v.lstrip('-').isdigit() and k != 'kvs') else v

WS_O_BR = 36 * 256 * 1024
WS_PART = 0x1400000
WS_FLAG = 0x3000000
WS_STAMP = 0x4000000

def lanes(P, dst, expr_list):
    for e in expr_list: P(e)

def mf32(d, a, b, c=None):
    return f'v_mfma_f32_32x32x16_bf16 {vr(d, 16)}, {vr(a, 4)}, {vr(b, 4)}, {vr(d if c is None else c, 16)}'
def mf16(d, a, b, c=None):
    return f'v_mfma_f32_16x16x32_bf16 {vr(d, 4)}, {vr(a, 4)}, {vr(b, 4)}, {vr(d if c is None else c, 4)}'
def mf16h(d, a, b):
    return f'v_mfma_f32_16x16x16_bf16 {vr(d, 4)}, {vr(a, 2)}, {vr(b, 2)}, {vr(d, 4)}'


def phase2(P, stamp, env):
    sW, sWP, sBR, sE, sKS, TID = env['sW'], env['sWP'], env['sBR'], env['sE'], env['sKP'], env['TID']
    NB = OPT['p2nb']; STG = 40960
    sIDX, sQB, sN3, sCNT, sIB, sDL, sSW, sSO, sTMP, sMW, sMO, sSPIN = 26, 27, 28, 30, 36, 37, 40, 41, 48, 42, 43, 44
    sNEED = 38
    VW, VO, VF, VP = 140, 141, 142, 143
    done = 'K1_STAMPS' if OPT['stamps'] else 'K1_END'
    def poll(lbl, off):
        return f"""
    s_mov_b32 s{sSPIN}, {OPT['spin']}
    {lbl}:
    buffer_load_dword v{VP}, v{VF}, s[52:55], s{off} offen sc1
    s_sub_u32 s{sSPIN}, s{sSPIN}, 1
    s_cbranch_scc1 {lbl}X
    s_waitcnt vmcnt(0)
    v_cmp_eq_u32 vcc, s{sE}, v{VP}
    s_and_b64 s[6:7], vcc, s[{sNEED}:{sNEED + 1}]
    s_cmp_eq_u64 s[6:7], s[{sNEED}:{sNEED + 1}]
    s_cbranch_scc0 {lbl}
    {lbl}X:
    """
    P(f"""
    s_lshr_b32 s{sIDX}, s2, 3
    s_mul_i32 s{sQB}, s{sIDX}, 43
    s_lshr_b32 s{sQB}, s{sQB}, 7
    s_mul_i32 s6, s{sQB}, 3
    s_sub_u32 s{sN3}, s{sIDX}, s6
    s_and_b32 s3, s2, 7
    s_lshl_b32 s{sTMP}, s3, 7
    v_lshlrev_b32 v{VF}, 2, v{TID}
    v_lshlrev_b32 v{VO}, 4, v{TID}
    v_mov_b32 v{VP}, s{sE}
    s_lshl_b32 s6, s{sIDX}, 2
    s_add_u32 s6, s6, s{sTMP}
    s_waitcnt vmcnt(0)
    s_barrier
    """)
    stamp(4)
    P(f"""
    s_cmp_eq_u32 s{sW}, 4
    s_cbranch_scc0 P2_NF
    s_mov_b64 exec, 1
    buffer_store_dword v{VP}, v{VF}, s[52:55], s6 offen sc1
    s_mov_b64 exec, -1
    P2_NF:
    s_cmp_ge_u32 s{sIDX}, 27
    s_cbranch_scc1 {done}
    s_cmp_ge_u32 s{sW}, 4
    s_cbranch_scc1 P2_G1
    """)
    P(f"""
    v_lshrrev_b32 v2, 3, v{TID}
    v_and_b32 v3, 7, v{TID}
    v_bfe_u32 v4, v{TID}, 4, 1
    v_lshlrev_b32 v4, 2, v4
    v_xor_b32 v3, v3, v4
    s_lshl_b32 s6, s{sW}, 3
    v_add_u32 v2, s6, v2
    v_mul_u32_u24 v2, 1152, v2
    v_lshl_add_u32 v{VW}, v3, 4, v2
    s_mul_i32 s{sSW}, s{sN3}, 384
    s_lshl_b32 s{sMW}, s{sW}, 10
    s_lshl_b32 s{sMO}, s{sW}, 12
    s_add_u32 s{sMO}, s{sMO}, 24576
    s_lshl_b32 s{sSO}, s{sQB}, 20
    s_lshl_b32 s3, s{sKS}, 16
    s_add_u32 s{sSO}, s{sSO}, s3
    s_lshl_b32 s3, s{sW}, 18
    s_add_u32 s{sSO}, s{sSO}, s3
    s_lshl_b32 s3, s{sQB}, 2
    s_lshl_b64 s[{sNEED}:{sNEED + 1}], 15, s3
    s_cmp_eq_u32 s{sQB}, 8
    s_cselect_b32 s{sNEED}, -1, s{sNEED}
    s_cselect_b32 s{sNEED + 1}, 0, s{sNEED + 1}
    s_mov_b32 s{sIB}, 0
    """)
    def issW():
        o = ''
        for gr in range(3):
            for e in range(2):
                o += f's_add_u32 m0, s{sIB}, s{sMW}\n' if (gr, e) == (0, 0) else 's_add_u32 m0, m0, 4096\n'
                o += f's_add_u32 s3, s{sSW}, {e * 32 * 1152 + gr * 128}\n'
                o += f'buffer_load_dwordx4 v{VW}, s[8:11], s3 offen {OPT["nt_wo"]} lds\n'
        return o + f's_add_u32 s{sSW}, s{sSW}, {64 * 1152}\n'
    def issO():
        o = f's_add_u32 m0, s{sIB}, s{sMO}\ns_nop 0\n'
        for e in range(4): o += f'buffer_load_dwordx4 v{VO}, s[20:23], s{sSO} offen offset:{e * 1024} {OPT["ld2"]} lds\n'
        return o + f's_add_u32 s{sSO}, s{sSO}, 4096\n'
    adv = f's_add_u32 s{sIB}, s{sIB}, {STG}\ns_cmp_eq_u32 s{sIB}, {NB * STG}\ns_cselect_b32 s{sIB}, 0, s{sIB}\n'
    P('P2_PW:'); P(issW() + adv + 's_cbranch_scc0 P2_PW')
    P(poll('P2_PO', sTMP))
    stamp(5)
    P('P2_PP:'); P(issO() + adv + 's_cbranch_scc0 P2_PP')
    P(f's_waitcnt vmcnt({4 * (NB - 1)})\ns_barrier')
    for s in range(1, NB - 1):
        P(f's_waitcnt vmcnt({4 * (NB - 1 - s) + 10 * (s - 1)})\ns_barrier'); P(issO() + issW() + adv)
    P(f's_mov_b32 s{sCNT}, {NB - 1}\nP2_LD:\ns_waitcnt vmcnt({10 * (NB - 2)})\ns_barrier')
    P(issO() + issW() + adv)
    P(f's_add_u32 s{sCNT}, s{sCNT}, 1\ns_cmp_lt_u32 s{sCNT}, {17 - NB}\ns_cbranch_scc1 P2_LD')
    for s in range(17 - NB, 16): P(f's_waitcnt vmcnt({10 * (15 - s)})\ns_barrier')
    P('s_barrier\ns_branch P2_RED')
    ACC = [[16 * (2 * i + j) for j in range(2)] for i in range(3)]
    SA = dict(A=[96, 100, 104], B=[108, 112]); SB = dict(A=[116, 120, 124], B=[128, 132])
    AA = [136, 137, 138]; AB = 139
    P(f"""
    P2_G1:
    v_lshrrev_b32 v2, 4, v{TID}
    v_bfe_u32 v10, v{TID}, 2, 2
    v_and_b32 v11, 3, v{TID}
    v_lshrrev_b32 v12, 5, v{TID}
    v_and_b32 v13, 1, v2
    v_and_b32 v15, 1, v11
    v_lshl_add_u32 v15, v13, 1, v15
    v_lshrrev_b32 v16, 1, v10
    v_lshlrev_b32 v16, 2, v16
    v_xor_b32 v15, v15, v16
    v_lshl_add_u32 v17, v12, 3, v10
    v_lshlrev_b32 v17, 7, v17
    v_lshl_add_u32 v14, v15, 4, v17
    v_lshrrev_b32 v15, 1, v11
    v_lshl_add_u32 v14, v15, 3, v14
    v_xor_b32 v15, 64, v14
    s_bitcmp0_b32 s{sW}, 0
    s_cselect_b64 vcc, -1, 0
    s_cselect_b32 s6, 0, 8192
    s_cselect_b32 s7, 0, 16384
    s_cselect_b32 s3, 8192, 16384
    v_cndmask_b32 v16, v15, v14, vcc
    v_cndmask_b32 v17, v14, v15, vcc
    v_add_u32 v{AA[0]}, s6, v16
    v_add_u32 v{AA[1]}, s7, v17
    v_add_u32 v{AA[2]}, s3, v16
    s_lshr_b32 s6, s{sWP}, 1
    s_lshl_b32 s6, s6, 13
    s_add_u32 s6, s6, 24576
    v_add_u32 v{AB}, s6, v{VO}
    s_mul_i32 s6, s{sBR}, 27
    s_add_u32 s6, s6, s{sIDX}
    s_lshl_b32 s6, s6, 2
    s_add_u32 s6, s6, s{sKS}
    s_lshl_b32 s6, s6, 2
    s_add_u32 s6, s6, s{sWP}
    s_mul_i32 s6, s6, 24576
    s_add_u32 s6, s6, {WS_PART}
    s_add_u32 s16, s66, s6
    s_addc_u32 s17, s67, 0
    s_mov_b32 s18, 24576
    s_mov_b32 s19, 0x20000
    s_mov_b32 s{sIB}, 0
    s_mov_b32 s{sCNT}, 0
    """)
    for r in range(96): P(f'v_mov_b32 v{r}, 0')
    P('s_barrier')
    stamp(6)
    def rd(st, kk):
        o = [f'ds_read_b128 {vr(st["B"][j], 4)}, v{AB} offset:{j * 4096 + kk * 1024}' for j in range(2)]
        for i in range(3):
            for j in range(2): o.append(f'ds_read_b64_tr_b16 {vr(st["A"][i] + 2 * j, 2)}, v{AA[i]} offset:{kk * 2048 + j * 512}')
        return o
    def step(cur, rds, extra=()):
        m = [mf32(ACC[i][j], cur['A'][i], cur['B'][j]) for i in range(3) for j in range(2)]
        extra = list(extra)
        m[0] += f' ; need {vr(cur["B"][1], 4)}'; m[2] += f' ; need {vr(cur["A"][2], 4)}'
        P(m[0]); P.extend(rds[:3]); P(m[1]); P.extend(rds[3:6]); P(m[2]); P.extend(rds[6:]); P.extend(extra[:2])
        P(m[3]); P.extend(extra[2:5]); P(m[4]); P.extend(extra[5:]); P(m[5])
    P.extend(rd(SA, 0))
    P('P2_L:')
    step(SA, rd(SB, 1), [f's_cmp_eq_u32 s{sIB}, {NB - 1}', f's_cselect_b32 s{sDL}, {-(NB - 1) * STG & 0xffffffff}, {STG}',
                         f's_add_u32 s{sIB}, s{sIB}, 1', f's_cmp_eq_u32 s{sIB}, {NB}', f's_cselect_b32 s{sIB}, 0, s{sIB}'])
    step(SB, rd(SA, 2))
    step(SA, rd(SB, 3), [f'v_add_u32 v{r}, s{sDL}, v{r}' for r in AA + [AB]])
    P('s_barrier')
    step(SB, rd(SA, 0), [f's_add_u32 s{sCNT}, s{sCNT}, 1', f's_cmp_lt_u32 s{sCNT}, 16'])
    P('s_cbranch_scc1 P2_L')
    stamp(9)
    for t in range(6):
        P(f's_mov_b32 s3, {t * 4096}')
        for qd in range(4): P(f'buffer_store_dwordx4 {vr(16 * t + 4 * qd, 4)}, v{VO}, s[16:19], s3 offen offset:{qd * 1024} sc1')
    P(f"""
    P2_RED:
    s_mul_i32 s6, s{sBR}, 27
    s_add_u32 s6, s6, s{sIDX}
    s_lshl_b32 s{sTMP}, s6, 7
    s_add_u32 s{sTMP}, s{sTMP}, 4096
    s_lshl_b32 s7, s{sKS}, 2
    s_add_u32 s7, s7, s{sTMP}
    s_lshl_b32 s6, s6, 4
    s_add_u32 s6, s6, s{sKS}
    s_mul_i32 s6, s6, 24576
    s_lshl_b32 s3, s{sW}, 12
    s_add_u32 s6, s6, s3
    s_add_u32 s6, s6, {WS_PART}
    s_add_u32 s16, s66, s6
    s_addc_u32 s17, s67, 0
    s_mov_b32 s18, {3 * 98304 + 4096}
    s_mov_b32 s19, 0x20000
    s_mov_b32 s12, s68
    s_mov_b32 s13, s69
    s_mov_b32 s14, {1152 * 2304}
    s_mov_b32 s15, 0x20000
    v_mov_b32 v{VP}, s{sE}
    s_mov_b64 s[{sNEED}:{sNEED + 1}], 15
    s_waitcnt vmcnt(0)
    s_barrier
    s_cmp_eq_u32 s{sW}, 7
    s_cbranch_scc0 P2_NG
    s_mov_b64 exec, 1
    buffer_store_dword v{VP}, v{VF}, s[52:55], s7 offen sc1
    s_mov_b64 exec, -1
    P2_NG:
    s_cmp_ge_u32 s{sW}, 6
    s_cbranch_scc1 {done}
    """)
    stamp(10)
    P(f"""
    s_lshr_b32 s45, s{sKS}, 1
    s_lshl_b32 s45, s45, 1
    s_and_b32 s6, s{sW}, 1
    s_add_u32 s45, s45, s6
    s_and_b32 s6, s{sKS}, 1
    s_mul_i32 s6, s6, 96
    s_lshr_b32 s7, s{sW}, 1
    s_lshl_b32 s7, s7, 5
    s_add_u32 s6, s6, s7
    s_mul_i32 s7, s{sN3}, 192
    s_add_u32 s6, s6, s7
    s_mul_i32 s7, s{sBR}, 576
    s_add_u32 s6, s6, s7
    s_lshl_b32 s46, s6, 1
    v_and_b32 v4, 31, v{TID}
    v_lshrrev_b32 v5, 5, v{TID}
    v_and_b32 v6, 15, v{TID}
    v_bfe_u32 v7, v{TID}, 4, 1
    v_mul_u32_u24 v7, 144, v7
    v_add_u32 v6, v6, v7
    s_mul_i32 s6, s{sQB}, 144
    s_lshl_b32 s7, s45, 5
    s_add_u32 s6, s6, s7
    s_mul_i32 s7, s45, 288
    s_add_u32 s7, s7, 128
    s_cmp_lt_u32 s{sQB}, 8
    s_cselect_b64 vcc, -1, 0
    s_cselect_b32 s6, s6, s7
    v_cndmask_b32 v4, v6, v4, vcc
    v_add_u32 v4, s6, v4
    v_mul_u32_u24 v4, 2304, v4
    v_lshl_add_u32 v4, v5, 4, v4
    """)
    P(poll('P2_PR', sTMP))
    stamp(11)
    for k in range(4):
        P(f's_mov_b32 s3, {k * 98304}')
        for qd in range(4): P(f'buffer_load_dwordx4 {vr(16 + 16 * k + 4 * qd, 4)}, v{VO}, s[16:19], s3 offen offset:{qd * 1024} sc1')
    P('s_waitcnt vmcnt(8)')
    for i in range(16): P(f'v_add_f32 v{16 + i}, v{16 + i}, v{32 + i}')
    P('s_waitcnt vmcnt(0)')
    for i in range(16): P(f'v_add_f32 v{48 + i}, v{48 + i}, v{64 + i}')
    for i in range(16): P(f'v_add_f32 v{16 + i}, v{16 + i}, v{48 + i}')
    for hf in range(2):
        for i in range(4): P(f'v_cvt_pk_bf16_f32 v{80 + 4 * hf + i}, v{16 + 8 * hf + 2 * i}, v{17 + 8 * hf + 2 * i}')
        P(f'buffer_store_dwordx4 {vr(80 + 4 * hf, 4)}, v4, s[12:15], s46 offen offset:{hf * 32}')
    if OPT['stamps']:
        P('s_waitcnt vmcnt(0)'); stamp(8)

def k1():
    P = Prog()
    O, S, CN, Q, PP, O9, Q9, S9, CN9, P9 = 0, 64, 96, 112, 144, 160, 192, 208, 212, 216
    L, L9, VOK, VOV, AK, AK9, AV9, TID = 218, 219, 220, 221, 222, 223, 224, 225
    VA = 226
    T0, T1, AL, AL9, X0, X1 = 230, 231, 232, 233, 234, 235
    FB = [236, 240, 244, 248, 252]
    ACC = [[0, 16, 32, 48], [64, 80, 144, 176]]; ACC9 = [[160, 164], [168, 172]]
    QW = [230, 231, 232, 233]; QX = [234, 235]; QX9, QW9, VOW, VOX, HOLD = 216, 217, 218, 219, 212
    QB, QB9 = [96, 100], 104
    QF = [112, 116, 120, 124, 128, 132, 136, 140, 236, 240]
    sW, sWP, sP, sB, sJ, sBR = 24, 25, 26, 27, 28, 29
    sCNT, sW0, sX, sMC, sIB, sDL = 30, 31, 33, 35, 36, 37
    sEX = 38
    sIS, sSK, sSV, sDK, sDV, sT, sCL, sRARE, sTMP, sTM2, sMW, sKP, sVP, sE = 40, 41, 42, 43, 44, 45, 46, 47, 48, 49, 50, 51, 32, 34
    NSB = 6; STGS = 25600; STG0 = 163840 - NSB * STGS
    QXCH, Q9B = 131072, 98304 + 16384
    nk, ntw = OPT['nt_kv'], OPT['nt_w']
    def stamp(k, at=None):
        if OPT['stamps']:
            if at is not None: P(f's_cmp_lg_u32 s{sCNT}, {at}\ns_cbranch_scc1 K1_ST{k}_{len(P.ins)}'); lbl = P.ins[-1].target
            P(('s_memtime' if OPT['stamps'] == 2 else 's_memrealtime') + ' s[%d:%d]' % (70 + 2 * k, 71 + 2 * k))
            if at is not None: P(f'{lbl}:')
            if k == 1: P('s_memtime s[96:97]')
            if k == 4: P('s_memtime s[98:99]')
    P(f"""
    s_cmp_ge_u32 s2, 256
    s_cbranch_scc1 K1_END
    s_bfe_u32 s{sBR}, s2, 0x10002
    s_mul_i32 s6, s{sBR}, 40
    s_add_u32 s4, s0, s6
    s_addc_u32 s5, s1, 0
    s_load_dwordx8 s[56:63], s[4:5], 0
    s_load_dwordx4 s[64:67], s[0:1], 88
    s_load_dwordx2 s[68:69], s[0:1], 80
    s_load_dwordx2 s[100:101], s[4:5], 32
    """)
    if OPT['stamps']:
        for k in range(70, 100, 2): P(f's_mov_b64 s[{k}:{k + 1}], 0')
    stamp(0)
    P(f"""
    v_lshrrev_b32 v1, 6, v0
    v_and_b32 v{TID}, 63, v0
    v_readfirstlane_b32 s{sW}, v1
    v_lshrrev_b32 v2, 4, v{TID}
    v_and_b32 v3, 15, v{TID}
    s_and_b32 s3, s2, 3
    s_lshl_b32 s3, s3, 2
    s_bfe_u32 s7, s2, 0x20003
    s_add_u32 s{sJ}, s3, s7
    s_lshr_b32 s{sB}, s2, 5
    s_and_b32 s{sWP}, s{sW}, 3
    s_lshr_b32 s{sP}, s{sW}, 2
    v_lshlrev_b32 v4, 2, v2
    v_xor_b32 v4, v4, v3
    v_lshlrev_b32 v4, 4, v4
    v_lshl_add_u32 v{VOW}, v2, 13, v4
    v_lshrrev_b32 v8, 2, v{TID}
    v_and_b32 v9, 3, v{TID}
    v_xor_b32 v9, v9, v2
    v_mul_u32_u24 v8, 1152, v8
    v_lshl_add_u32 v{VOX}, v9, 4, v8
    s_lshl_b32 s3, s{sWP}, 2
    v_or_b32 v5, s3, v2
    v_xor_b32 v5, v5, v3
    v_lshlrev_b32 v5, 4, v5
    s_lshl_b32 s{sMW}, s{sWP}, 12
    v_lshl_add_u32 v5, v2, 8, v5
    v_add_u32 v{VOK}, s{sMW}, v5
    v_lshl_add_u32 v5, v2, 8, v4
    v_add_u32 v{VOV}, s{sMW}, v5
    s_lshl_b32 s{sW0}, s{sWP}, 16
    s_mul_i32 s{sX}, s{sWP}, 18432
    s_mul_i32 s{sMC}, s{sWP}, 3072
    s_lshl_b32 s3, s{sWP}, 4
    s_lshl_b64 s[{sEX}:{sEX + 1}], 0xffff, s3
    s_mul_i32 s6, s{sB}, 165888
    s_lshl_b32 s7, s{sJ}, 9
    s_mov_b32 s11, 0x20000
    s_mov_b32 s22, {165888 + 2048}
    s_mov_b32 s23, 0x20000
    s_sub_u32 s10, {576 * 8192}, s7
    s_mov_b32 s{sIB}, {STG0}
    s_lshl_b32 s{sTMP}, s{sB}, 5
    s_lshl_b32 s{sTM2}, s{sJ}, 1
    s_add_u32 s{sTMP}, s{sTMP}, s{sTM2}
    s_lshl_b32 s{sTMP}, s{sTMP}, 17
    s_mov_b32 s14, 262144
    s_mov_b32 s15, 0x20000
    s_mov_b32 s18, 262144
    s_mov_b32 s19, 0x20000
    s_mov_b32 s{sCNT}, 0
    s_cmp_ge_u32 s{sW}, 4
    s_waitcnt lgkmcnt(0)
    s_cbranch_scc1 K1_G1
    s_add_u32 s8, s62, s7
    s_addc_u32 s9, s63, 0
    s_add_u32 s20, s56, s6
    s_addc_u32 s21, s57, 0
    s_sub_u32 s20, s20, 2048
    s_subb_u32 s21, s21, 0
    """)
    kvsrd = f"""
    s_add_u32 s12, s58, s{sTMP}
    s_addc_u32 s13, s59, 0
    s_add_u32 s16, s60, s{sTMP}
    s_addc_u32 s17, s61, 0
    s_add_u32 s52, s66, {WS_FLAG}
    s_addc_u32 s53, s67, 0
    s_mov_b32 s54, 16384
    s_mov_b32 s55, 0x20000
    """
    lanec = f"""
    v_bfe_u32 v10, v{TID}, 2, 2
    v_and_b32 v11, 3, v{TID}
    v_lshrrev_b32 v12, 5, v{TID}
    v_and_b32 v13, 1, v2
    v_and_b32 v20, 1, v11
    v_lshrrev_b32 v15, 1, v11
    v_lshlrev_b32 v16, 2, v10
    v_lshl_add_u32 v17, v13, 1, v20
    v_xor_b32 v17, v17, v16
    v_lshlrev_b32 v17, 4, v17
    v_lshl_add_u32 v17, v15, 3, v17
    v_lshl_add_u32 v17, v10, 8, v17
    s_lshl_b32 s3, s{sP}, 14
    s_add_u32 s{sMW}, s{sMW}, s3
    s_add_u32 s6, s3, 65536
    v_lshl_add_u32 v18, v12, 10, v17
    v_add_u32 v{VA}, s6, v18
    v_xor_b32 v{VA + 1}, 64, v{VA}
    v_xor_b32 v{VA + 2}, 0x80, v{VA}
    v_xor_b32 v{VA + 3}, 0xc0, v{VA}
    v_bfe_u32 v23, v{TID}, 3, 2
    v_bfe_u32 v24, v{TID}, 2, 1
    v_lshl_add_u32 v25, v23, 2, v11
    v_xor_b32 v25, v25, v12
    v_lshlrev_b32 v25, 4, v25
    v_lshl_add_u32 v25, v11, 8, v25
    v_lshl_add_u32 v25, v24, 10, v25
    v_lshl_add_u32 v25, v23, 12, v25
    v_add_u32 v{AK}, s3, v25
    s_lshl_b32 s7, s{sWP}, 10
    s_add_u32 s6, s3, s7
    v_xor_b32 v25, v2, v3
    v_lshlrev_b32 v25, 4, v25
    v_lshl_add_u32 v25, v11, 8, v25
    v_lshl_add_u32 v25, v10, 12, v25
    v_add_u32 v{AK9}, s6, v25
    v_xor_b32 v25, v15, v16
    v_lshlrev_b32 v25, 4, v25
    v_lshl_add_u32 v25, v20, 3, v25
    v_lshl_add_u32 v25, v10, 8, v25
    v_lshl_add_u32 v25, v2, 12, v25
    s_add_u32 s6, s6, 65536
    v_add_u32 v{AV9}, s6, v25
    v_mul_u32_u24 v26, 272, v3
    v_lshl_add_u32 v27, v2, 4, v26
    s_mul_i32 s6, s{sP}, 4352
    s_add_u32 s6, s6, {Q9B}
    v_add_u32 v{S9}, s6, v27
    v_lshlrev_b32 v27, 4, v{TID}
    s_lshl_b32 s6, s{sWP}, 13
    s_add_u32 s6, s6, {QXCH}
    v_add_u32 v{S9 + 1}, s6, v27
    """
    loopinit = f"""
    s_mov_b32 s{sCNT}, 1
    s_mov_b32 s{sKP}, 32768
    s_mov_b32 s{sVP}, 65536
    s_mov_b32 s{sDK}, 32768
    s_mov_b32 s{sDV}, 0
    s_mov_b32 s{sIS}, 131072
    s_lshl_b32 s3, s{sP}, 17
    s_add_u32 s{sSV}, s3, 16384
    s_add_u32 s{sSK}, s3, 49152
    s_add_u32 s14, s3, 131072
    s_mov_b32 s18, s14
    s_mov_b32 s{sCL}, 0xff800000
    s_mov_b32 s{sRARE}, 0
    """
    getE = f'v_mov_b32 v{AL}, {Q9B + 8704}\nds_read_b32 v{AL}, v{AL}' if OPT['fused'] else ''
    getE2 = f'v_readfirstlane_b32 s{sE}, v{AL}' if OPT['fused'] else ''
    queue = []
    def vm(text, tag): P(text); queue.append(tag)
    def wait_for(tag):
        idx = max(i for i, t in enumerate(queue) if t == tag)
        P(f's_waitcnt vmcnt({min(63, len(queue) - 1 - idx)})')
    def stage(s):
        buf = STG0 + (s % NSB) * STGS
        for hd in range(2):
            P(f's_add_u32 m0, s{sMC}, {buf + hd * 12288}\ns_add_u32 s3, s{sW0}, {s * 262144 + hd * 256}')
            vm(f'buffer_load_dwordx4 v{VOW}, s[8:11], s3 offen {ntw} lds', ('s', s))
            P(f's_add_u32 s3, s3, {32768 - 1024}')
            vm(f'buffer_load_dwordx4 v{VOW}, s[8:11], s3 offen offset:1024 {ntw} lds', ('s', s))
            P(f's_add_u32 s3, s{sX}, {s * 64 + hd * 4 * 18432}')
            vm(f'buffer_load_dwordx4 v{VOX}, s[20:23], s3 offen offset:2048 {ntw} lds', ('s', s))
        P(f's_mov_b32 m0, {buf + 24576}\ns_mov_b32 s3, {s * 64 + 128 * 1152 + 2048}\ns_mov_b64 exec, s[{sEX}:{sEX + 1}]')
        vm(f'buffer_load_dwordx4 v{VOX}, s[20:23], s3 offen {ntw} lds', ('s', s))
        P('s_mov_b64 exec, -1')
    PRE = {(0, 0): [64, 68, 72, 76], (0, 1): [80, 84, 88, 92], (1, 0): [112, 116, 120, 124], (1, 1): [128, 132, 136, 140],
           (2, 0): [192, 196, 200, 204], (2, 1): [236, 240, 244, 248], (3, 0): [96, 100, 104, 252], (3, 1): [144, 148, 152, 156]}
    SRC = {0: (VOK, 12, 0), 1: (VOK, 12, 16384), 2: (VOV, 16, 0), 3: (VOK, 12, 32768)}
    def kvload(u, hd):
        vo, srd, off = SRC[u]
        P(f's_mov_b32 s3, {hd * 131072 + off}')
        for n in range(4): vm(f'buffer_load_dwordx4 {vr(PRE[u, hd][n], 4)}, v{vo}, s[{srd}:{srd + 3}], s3 offen offset:{n * 1024} {nk}', ('k', u, hd))
    def kvdump(u, hd):
        wait_for(('k', u, hd))
        base = u * 32768 + hd * 16384
        for n in range(4): P(f'ds_write_b128 v{[T0, T1][base >> 16]}, {vr(PRE[u, hd][n], 4)} offset:{(base & 0xffff) + n * 1024}')
    kvq = [(u, hd) for u in range(4) for hd in range(2)]
    npre, dist = OPT['npre'], OPT['dist']
    sched = [int(c) for c in str(OPT['kvs'])] + [0] * 30
    assert sum(sched) == 8 and dist <= NSB - 1 and npre <= NSB
    nxt = 0
    for s in range(npre): stage(s); nxt += 1
    stamp(12)
    later = [kvsrd] + [f'v_lshlrev_b32 v{T0}, 4, v{TID}\nv_add_u32 v{T0}, s{sMW}, v{T0}\nv_add_u32 v{T1}, 0x10000, v{T0}', lanec]
    zs = list(range(108, 112)) + list(range(O9, O9 + 32)) + list(range(CN9, CN9 + 4)) + list(range(63, -1, -1))
    later += ['\n'.join(f'v_mov_b32 v{r}, 0' for r in zs[i:i + 26]) for i in range(0, len(zs), 26)]
    P(later.pop(0))
    for s in range(19):
        if OPT['stamps'] == 2 and s == OPT['sq']: stamp(5)
        if OPT['stamps'] == 2 and s == OPT['sq'] + 1: stamp(6)
        if s < 18: wait_for(('s', s))
        if OPT['stamps'] == 2 and s == OPT['sq']: stamp(3)
        P('s_barrier')
        if OPT['stamps'] == 2 and s == OPT['sq']: stamp(2)
        if s == 0: stamp(1)
        n = 0
        while nxt < 18 and nxt <= s + dist and n < 2: stage(nxt); nxt += 1; n += 1
        for _ in range(sched[s]): kvload(*kvq.pop(0))
        if later: P(later.pop(0))
        for u, hd in {13: [(0, 0)], 14: [(0, 1)], 15: [(1, 0), (1, 1)], 16: [(2, 0), (2, 1)], 17: [(3, 0)]}.get(s, []): kvdump(u, hd)
    assert nxt == 18 and not later
    for r in list(range(96, 108)) + [L, L9]: P(f'v_mov_b32 v{r}, 0')
    P(loopinit)
    if OPT['stamps'] == 1: stamp(2)
    P('s_barrier')
    P(getE)
    for kk in range(8): P(f'ds_read_b128 {vr(Q + 4 * kk, 4)}, v{S9 + 1} offset:{kk * 1024}')
    for kk in range(4): P(f'ds_read_b128 {vr(Q9 + 4 * kk, 4)}, v{S9} offset:{kk * 64}')
    P('s_barrier')
    P(getE2)
    kvdump(3, 1)
    P('s_branch K1_HEAD')
    P('K1_G1:')
    P(kvsrd)
    if OPT['fused']:
        P(f"""
        s_mov_b32 s8, s64
        s_mov_b32 s9, s65
        s_mov_b32 s10, 256
        v_mov_b32 v246, 0
        s_cmp_eq_u32 s{sW}, 4
        s_cbranch_scc0 K1_E0
        buffer_load_dword v244, v246, s[52:55], 0 offen sc1
        K1_E0:
        """)
    stamp(12)
    P(lanec)
    P(f"""
    v_mul_u32_u24 v18, 3072, v12
    v_add_u32 v18, {STG0}, v18
    v_add_u32 v{QW[0]}, v17, v18
    v_xor_b32 v{QW[1]}, 64, v{QW[0]}
    v_xor_b32 v{QW[2]}, 0x80, v{QW[0]}
    v_xor_b32 v{QW[3]}, 0xc0, v{QW[0]}
    s_lshl_b32 s6, s{sWP}, 2
    v_add_u32 v18, s6, v15
    v_xor_b32 v18, v18, v16
    v_lshlrev_b32 v18, 4, v18
    v_lshl_add_u32 v18, v20, 3, v18
    v_lshl_add_u32 v18, v10, 8, v18
    v_mul_u32_u24 v19, 3072, v2
    v_add_u32 v19, {STG0}, v19
    v_add_u32 v{QW9}, v18, v19
    v_xor_b32 v22, v12, v10
    v_lshlrev_b32 v22, 4, v22
    v_lshl_add_u32 v22, v3, 6, v22
    v_mul_u32_u24 v19, 3072, v13
    s_mul_i32 s6, s{sWP}, 6144
    s_add_u32 s6, s6, {STG0 + 2048}
    v_add3_u32 v{QX[0]}, v22, v19, s6
    v_xor_b32 v{QX[1]}, 32, v{QX[0]}
    v_xor_b32 v22, v2, v10
    v_lshlrev_b32 v22, 4, v22
    v_lshl_add_u32 v22, v3, 6, v22
    v_add_u32 v{QX9}, {STG0 + 24576}, v22
    v_lshl_add_u32 v27, v2, 3, v26
    s_lshl_b32 s6, s{sWP}, 6
    s_add_u32 s6, s6, {Q9B}
    v_add_u32 v{S9 + 2}, s6, v27
    """)
    z = list(range(CN9, CN9 + 4)) + list(range(108, 112)) + [L, L9]
    for hd in range(2):
        for a in ACC[hd]: z += list(range(a, a + 16))
        for a in ACC9[hd]: z += list(range(a, a + 4))
    for r in z: P(f'v_mov_b32 v{r}, 0')
    if OPT['fused']:
        P(f"""
        s_cmp_eq_u32 s{sW}, 4
        s_cbranch_scc0 K1_E1
        s_waitcnt vmcnt(0)
        v_add_u32 v244, 1, v244
        v_max_u32 v244, 1, v244
        v_mov_b32 v245, 0
        v_mov_b32 v247, v244
        s_mov_b64 exec, 1
        buffer_atomic_cmpswap v[244:245], v246, s[8:11], 0 offen sc0
        s_mov_b64 exec, -1
        K1_E1:
        """)
    P(f's_mov_b32 s{sIB}, 0\ns_barrier')
    stamp(1)
    qit = []
    def qmain(kk, hd, dt):
        return (lambda F: [f'ds_read_b64_tr_b16 {vr(F + 2 * j, 2)}, v{QW[dt]} offset:{hd * 12288 + kk * 6144 + j * 1024}' for j in range(2)],
                lambda F: mf32(ACC[hd][dt], F, QB[kk]))
    def q9(hd, t):
        return (lambda F: [f'ds_read_b64_tr_b16 {vr(F + 2 * j, 2)}, v{QW9} offset:{hd * 12288 + t * 32 + j * 1024}' for j in range(2)],
                lambda F: mf16(ACC9[hd][t], F, QB9))
    qit = [qmain(0, hd, dt) for hd in range(2) for dt in range(4)] + [q9(hd, t) for hd in range(2) for t in range(2)] + [qmain(1, hd, dt) for hd in range(2) for dt in range(4)]
    nq = len(QF); NQ = len(qit); QD = OPT['qdelay']
    qrd = lambda i: qit[i % NQ][0](QF[i % nq])
    bheads = [f'ds_read_b128 {vr(QB[0], 4)}, v{QX[0]}', f'ds_read_b128 {vr(QB9, 4)}, v{QX9}']
    upd = [f'v_add_u32 v{r}, s{sDL}, v{r}' for r in QW + QX + [QX9, QW9]]
    P(bheads[0])
    for i in range(nq):
        P.extend(qrd(i))
        if i == 3: P(bheads[1])
    def qmf(i):
        m = qit[i][1](QF[i % nq])
        if i % 2 == 0 and i + 1 < NQ: m += f' ; need {vr(QF[(i + 1) % nq], 4)}'
        return m
    cut = NQ - nq + QD + 1
    P('s_branch K1_QM\nK1_QL:\ns_barrier')
    if OPT['stamps'] == 2: stamp(2, OPT['sq'])
    qpend = [bheads[0]] + [x for jj in range(QD + 1) for x in qrd(jj)]
    for i in range(cut, NQ):
        P(qmf(i))
        qpend += qrd(i + nq)
        if i == NQ - 2: qpend.append(bheads[1])
        n = len(qpend) if i == NQ - 1 else 4
        P.extend(qpend[:n]); qpend = qpend[n:]
    P('K1_QM:')
    if OPT['stamps'] == 2: stamp(5, OPT['sq'] - 1); stamp(6, OPT['sq'])
    for i in range(cut):
        P(qmf(i))
        if i + nq < NQ: P.extend(qrd(i + nq))
        if i == 0: P(f'ds_read_b128 {vr(QB[1], 4)}, v{QX[1]}')
        if i == 2: P(f's_cmp_eq_u32 s{sIB}, {NSB - 1}\ns_cselect_b32 s{sDL}, {-(NSB - 1) * STGS & 0xffffffff}, {STGS}')
        if i == 4: P(f's_add_u32 s{sIB}, s{sIB}, 1\ns_cmp_eq_u32 s{sIB}, {NSB}\ns_cselect_b32 s{sIB}, 0, s{sIB}')
        if i == 10: P.extend(upd[:4])
        if i == 11:
            P.extend(upd[4:])
            if OPT['stamps'] == 2: stamp(3, OPT['sq'] - 1)
            P(f's_add_u32 s{sCNT}, s{sCNT}, 1\ns_cmp_lt_u32 s{sCNT}, 18')
    P('s_cbranch_scc1 K1_QL\ns_barrier')
    for i in range(cut, NQ): P(qmf(i))
    if OPT['stamps'] == 1: stamp(2)
    P(f's_mov_b32 s6, {CSCALE}')
    for hd in range(2):
        for t in range(2):
            a = ACC9[hd][t]
            for i in range(4): P(f'v_mul_f32 v{a + i}, s6, v{a + i}')
            P(f'v_cvt_pk_bf16_f32 v{a}, v{a}, v{a + 1}\nv_cvt_pk_bf16_f32 v{a + 1}, v{a + 2}, v{a + 3}')
            P(f'ds_write_b64 v{S9 + 2}, {vr(a, 2)} offset:{hd * 4352 + t * 32}')
    for dt in [0, 1, 2, 3]:
        a = ACC[0][dt]
        for i in range(16): P(f'v_mul_f32 v{a + i}, s6, v{a + i}')
        for hf in range(2):
            for i in range(4): P(f'v_cvt_pk_bf16_f32 v{a + 8 * hf + i}, v{a + 8 * hf + 2 * i}, v{a + 8 * hf + 2 * i + 1}')
            P(f'ds_write_b128 v{S9 + 1}, {vr(a + 8 * hf, 4)} offset:{(2 * dt + hf) * 1024}')
    if OPT['fused']:
        P(f"""
        s_cmp_eq_u32 s{sW}, 4
        s_cbranch_scc0 K1_E2
        s_waitcnt vmcnt(0)
        v_cmp_eq_u32 vcc, 0, v244
        v_mov_b32 v246, {Q9B + 8704}
        s_mov_b64 exec, 1
        v_cndmask_b32 v244, v244, v247, vcc
        ds_write_b32 v246, v244
        s_mov_b64 exec, -1
        K1_E2:
        """)
    P(loopinit)
    P('s_barrier')
    P(getE)
    for kk in range(4): P(f'ds_read_b128 {vr(Q9 + 4 * kk, 4)}, v{S9} offset:{kk * 64}')
    for i in range(16): P(f'v_mul_f32 v{ACC[1][0] + i}, s6, v{ACC[1][0] + i}')
    P('s_barrier')
    P(getE2)
    for dt in range(4):
        a = ACC[1][dt]
        if dt:
            for i in range(16): P(f'v_mul_f32 v{a + i}, s6, v{a + i}')
        for i in range(8): P(f'v_cvt_pk_bf16_f32 v{Q + dt * 8 + i}, v{a + 2 * i}, v{a + 2 * i + 1}')
    for r in list(range(O, O + 64)) + list(range(CN, CN + 12)) + list(range(O9, O9 + 32)): P(f'v_mov_b32 v{r}, 0')
    P('K1_HEAD:')

    def dma_sites(vo, srd, so):
        out = []
        for n in range(4):
            g = [f's_add_u32 m0, s{sIS}, s{sMW}', f's_add_u32 s{sIS}, s{sIS}, 32768'] if n == 0 else []
            g.append(f'buffer_load_dwordx4 v{vo}, s[{srd}:{srd + 3}], s{so} offen offset:{n * 1024} {nk} lds')
            if n == 0: g += [f's_cmp_eq_u32 s{sIS}, 163840', f's_cselect_b32 s{sIS}, 0, s{sIS}']
            if n == 3: g.append(f's_add_u32 s{so}, s{so}, 16384')
            out.append(g)
        return out
    dmaV = dma_sites(VOV, 16, sSV); dmaK = dma_sites(VOK, 12, sSK)
    book = f"""s_add_u32 s{sKP}, s{sKP}, 65536
    s_cmp_ge_u32 s{sKP}, 163840
    s_cselect_b32 s3, 163840, 0
    s_sub_u32 s{sKP}, s{sKP}, s3
    s_sub_u32 s{sDK}, 65536, s3
    s_add_u32 s{sVP}, s{sVP}, 65536
    s_cmp_ge_u32 s{sVP}, 163840
    s_cselect_b32 s3, 163840, 0
    s_sub_u32 s{sVP}, s{sVP}, s3
    s_sub_u32 s{sDV}, 65536, s3""".split('\n')
    vupd = [f'v_add_u32 v{VA + i}, s{sDV}, v{VA + i}' for i in range(4)] + [f'v_add_u32 v{AV9}, s{sDV}, v{AV9}']
    kupd = [f'v_add_u32 v{AK}, s{sDK}, v{AK}', f'v_add_u32 v{AK9}, s{sDK}, v{AK9}']
    def kmain(kk, mt):
        tmp = [T0, T1][kk & 1]
        pre = [f'v_xor_b32 v{tmp}, {kk << 5}, v{AK}'] if (mt == 0 and kk) else []
        ad = tmp if kk else AK
        return dict(rd=lambda F: pre + [f'ds_read_b128 {vr(F, 4)}, v{ad} offset:{mt * 2048}'],
                    mf=lambda F: [mf32(S + 16 * mt, F, Q + 4 * kk, CN if kk == 0 else None)], w=32)
    def k9(kk):
        pre = [f'v_xor_b32 v{X0}, {kk << 6}, v{AK9}'] if kk else []
        ad = X0 if kk else AK9
        return dict(rd=lambda F: pre + [f'ds_read_b128 {vr(F, 4)}, v{ad}'],
                    mf=lambda F: [mf16(S9, F, Q9 + 4 * kk, CN9 if kk == 0 else None)], w=16)
    def vmain(ks, dt):
        mt, u = ks >> 1, ks & 1
        return dict(rd=lambda F: [f'ds_read_b64_tr_b16 {vr(F + 2 * j, 2)}, v{VA + dt} offset:{u * 8192 + j * 4096 + mt * 2048}' for j in range(2)],
                    mf=lambda F: [mf32(O + 16 * dt, F, PP + 4 * ks)], w=32)
    def v9(pp):
        pre = [f'v_xor_b32 v{X1}, {pp << 6}, v{AV9}'] if pp else []
        ad = X1 if pp else AV9
        return dict(rd=lambda F: pre + [f'ds_read_b64_tr_b16 {vr(F + 2 * j, 2)}, v{ad} offset:{32 * j}' for j in range(2)],
                    mf=lambda F: [mf16h(O9 + 4 * (2 * pp + j), F + 2 * j, P9) for j in range(2)], w=32)
    itA = []
    for kk in range(8):
        itA += [kmain(kk, 0), kmain(kk, 1)]
        if 1 <= kk <= 4: itA.append(k9(kk - 1))
    itC = []
    for dt in range(4): itC += [vmain(0, dt), v9(dt)]
    for ks in range(1, 4): itC += [vmain(ks, dt) for dt in range(4)]
    lastP = {0: 6, 1: 11, 2: 15, 3: 19, 9: 7}
    nb = len(FB); items = itA + itC; N = len(items); nA = len(itA)
    assert N % nb == 0 and nA % nb == 0
    RD = lambda i: items[i % N]['rd'](FB[i % nb])
    DL = OPT['bdelay']
    def MF(i, pair=True):
        m = items[i]['mf'](FB[i % nb])
        if pair and OPT['pairw'] and i % 2 == 0 and (i + 1) % nA != 0: m[0] += f' ; need {vr(FB[(i + 1) % nb], 4)}'
        return m
    def sync(lbl, group0, wait='vmcnt(4)'):
        return [f's_cmp_lt_u32 s{sW}, 4', f's_cbranch_scc{0 if group0 else 1} {lbl}', f's_waitcnt {wait}', 's_barrier', f'{lbl}:']
    mx = [f'v_max3_f32 v{T1}, v{S9}, v{S9 + 1}, v{S9 + 2}', f'v_max_f32 v{T1}, v{T1}, v{S9 + 3}', f'v_max3_f32 v{T0}, v{S}, v{S + 1}, v{S + 2}']
    mx += [f'v_max3_f32 v{T0}, v{T0}, v{S + 3 + 2 * i}, v{S + 4 + 2 * i}' for i in range(6)]
    mx += [f'v_max3_f32 v{X0}, v{S + 16}, v{S + 17}, v{S + 18}']
    mx += [f'v_max3_f32 v{X0}, v{X0}, v{S + 19 + 2 * i}, v{S + 20 + 2 * i}' for i in range(6)]
    mx += [f'v_max3_f32 v{X0}, v{X0}, v{S + 15}, v{S + 31}', f'v_max_f32 v{T0}, v{T0}, v{X0}', f'v_max_f32 v{X0}, v{T0}, v{T1}', f'v_cmp_lt_f32 vcc, s{sT}, v{X0}']
    fill = []
    for ks in range(4):
        b = S + 8 * ks
        for i in range(0, 8, 2):
            fill += [(0, f'v_exp_f32 v{b + i}, v{b + i}'), (0, f'v_exp_f32 v{b + i + 1}, v{b + i + 1}')]
            if i: fill += [(0, f'v_add_f32 v{L}, v{L}, v{b + i - 2}'), (0, f'v_add_f32 v{L}, v{L}, v{b + i - 1}')]
        if ks == 0: fill += [(0, f'v_exp_f32 v{S9 + i}, v{S9 + i}') for i in range(4)]
        fill += [(0, f'v_add_f32 v{L}, v{L}, v{b + 6}'), (0, f'v_add_f32 v{L}, v{L}, v{b + 7}')]
        if ks == 0: fill += [(0, f'v_add_f32 v{L9}, v{L9}, v{S9 + i}') for i in range(4)]
        fill += [(lastP[ks], f'v_cvt_pk_bf16_f32 v{PP + 4 * ks + i}, v{b + 2 * i}, v{b + 2 * i + 1}') for i in range(4)]
        if ks == 0: fill += [(lastP[9], f'v_cvt_pk_bf16_f32 v{P9 + i}, v{S9 + 2 * i}, v{S9 + 2 * i + 1}') for i in range(2)]
    for i in range(nb): P.extend(RD(i))
    if OPT['stamps'] == 1: stamp(7)
    for i in range(nA):
        P.extend(MF(i))
        if i + nb < nA: P.extend(RD(i + nb))
        if i + nb - nA == DL: P.extend(sync('K1_Y0', False))
    if OPT['pa'] != OPT['pc']: P(f's_setprio {OPT["pc"]}')
    P.extend(kupd + mx[:-1]); P('s_branch K1_RARE1\nK1_CPB:')
    P(f's_mov_b32 s{sRARE}, 0')
    for i, (_, t) in enumerate(fill):
        P(t)
        if i == len(fill) - 12:
            P.extend(sync('K1_XP', True))
            for jj in range(nb): P.extend(RD(jj))
    P('K1_TOP:')
    if OPT['pa'] != OPT['pc']: P(f's_setprio {OPT["pa"]}')
    if OPT['stamps'] == 2: stamp(7, 3); stamp(11, 4)
    for i in range(nA):
        P.extend(MF(i))
        j = i + nb - nA
        if j < 0: P.extend(RD(i + nb))
        elif j == DL:
            P.extend(sync('K1_Y', False))
            for jj in range(DL + 1): P.extend(RD(nA + jj))
        elif j > DL: P.extend(RD(i + nb))
        if i == 2: P.extend(vupd)
        if i == 4: P.extend(book[:5])
        if i == 7: P.extend(book[5:])
        if i in (1, 5, 9, 13): P.extend(dmaV[(i - 1) // 4])
    if OPT['stamps'] == 2: stamp(8, 3)
    if OPT['pa'] != OPT['pc']: P(f's_setprio {OPT["pc"]}')
    cost = lambda t: 2 if 'exp' in t else (0 if 'BR' in t else 1)
    full = [(0, t) for t in kupd + mx] + [(0, 'BR')] + fill
    tot = sum(cost(t) for _, t in full)
    pend = list(full); acc = 0; cw = 0; wsum = sum(it['w'] for it in itC)
    for c in range(len(itC)):
        i = nA + c
        P.extend(MF(i)); cw += itC[c]['w']
        j = i + nb - N
        if j < 0: P.extend(RD(i + nb))
        elif j == DL:
            P.extend(sync('K1_X', True))
            for jj in range(DL + 1): P.extend(RD(jj))
        elif j > DL: P.extend(RD(i + nb))
        if c in (1, 5, 9, 13): P.extend(dmaK[(c - 1) // 4])
        goal = tot * min(1.0, cw / (wsum - 32))
        q = 0
        while q < len(pend) and acc + cost(pend[q][1]) <= goal + 1:
            if pend[q][0] > c: q += 1; continue
            acc += cost(pend[q][1]); t = pend.pop(q)[1]
            P('s_cbranch_vccnz K1_RARE1\nK1_R1B:' if t == 'BR' else t)
    for _, t in pend: P(t)
    if OPT['stamps'] == 2: stamp(10, 3)
    P(f"""
    s_add_u32 s{sCNT}, s{sCNT}, 1
    s_add_u32 s3, s{sCNT}, s{sRARE}
    s_cmp_lt_u32 s3, 8
    s_cbranch_scc1 K1_TOP
    s_cmp_lg_u32 s{sRARE}, 0
    s_cbranch_scc1 K1_RARE2
    K1_NEXT:
    s_cmp_lt_u32 s{sCNT}, 8
    s_cbranch_scc1 K1_TOP
    s_branch K1_PVO
    """)
    P(f"""
    K1_RARE1:
    v_mov_b32 v{X0}, v{T0}
    v_mov_b32 v{X1}, v{T1}
    v_permlane32_swap_b32 v{T0}, v{X0}
    v_permlane32_swap_b32 v{T1}, v{X1}
    v_max3_f32 v{T0}, v{T0}, v{X0}, s{sCL}
    v_max_f32 v{T1}, v{T1}, v{X1}
    v_mov_b32 v{X1}, v{T1}
    v_max_f32 v{AL}, 0, v{T0}
    v_permlane16_swap_b32 v{T1}, v{X1}
    v_max3_f32 v{T1}, v{T1}, v{X1}, s{sCL}
    v_max_f32 v{AL9}, 0, v{T1}
    v_exp_f32 v{AL}, -v{AL}
    v_exp_f32 v{AL9}, -v{AL9}
    """)
    for i in range(32): P(f'v_sub_f32 v{S + i}, v{S + i}, v{T0}')
    for i in range(16): P(f'v_sub_f32 v{CN + i}, v{CN + i}, v{T0}')
    for i in range(4): P(f'v_sub_f32 v{S9 + i}, v{S9 + i}, v{T1}')
    for i in range(4): P(f'v_sub_f32 v{CN9 + i}, v{CN9 + i}, v{T1}')
    P(f"""
    v_mul_f32 v{L}, v{L}, v{AL}
    v_mul_f32 v{L9}, v{L9}, v{AL9}
    s_mov_b32 s{sT}, {f2u(8.0)}
    s_cmp_lg_u32 s{sCL}, 0
    s_mov_b32 s{sCL}, 0
    s_mov_b32 s{sRARE}, 8
    s_cbranch_scc1 K1_CPB
    s_branch K1_R1B
    K1_RARE2:
    """)
    for i in range(64): P(f'v_mul_f32 v{O + i}, v{O + i}, v{AL}')
    for i in range(32): P(f'v_mul_f32 v{O9 + i}, v{O9 + i}, v{AL9}')
    P(f"""
    s_mov_b32 s{sRARE}, 0
    s_branch K1_NEXT
    K1_PVO:
    """)
    if OPT['stamps'] == 1: stamp(3)
    P.extend(vupd)
    if OPT['fused']:
        P(f"""
        s_and_b32 s{sKP}, s2, 3
        s_mul_i32 s6, s{sKP}, {1024 * 1152}
        s_add_u32 s8, s100, s6
        s_addc_u32 s9, s101, 0
        s_sub_u32 s10, {4096 * 1152}, s6
        s_mov_b32 s11, 0x20000
        """)
        if OPT['wot']:
            P(f"""
            s_cmp_lt_u32 s{sW}, 4
            s_cbranch_scc0 K1_WT
            s_lshr_b32 s6, s2, 3
            s_lshl_b32 s6, s6, 2
            s_add_u32 s6, s6, s{sW}
            s_mul_i32 s6, s6, {72 * 128}
            v_lshlrev_b32 v{Q}, 7, v{TID}
            buffer_load_dword v{Q + 1}, v{Q}, s[8:11], s6 offen {OPT['nt_wo']}
            s_add_u32 s6, s6, 8192
            s_mov_b64 exec, 0xff
            buffer_load_dword v{Q + 2}, v{Q}, s[8:11], s6 offen {OPT['nt_wo']}
            s_mov_b64 exec, -1
            K1_WT:
            """)
    P.extend(sync('K1_Y8', False, 'vmcnt(0)'))
    for i in range(nb): P.extend(RD(nA + i))
    groups = [MF(nA + c) + (RD(nA + c + nb) if c + nb < len(itC) else []) for c in range(len(itC))]
    epi = f'''
    s_mul_i32 s6, s{sBR}, {WS_O_BR}
    s_add_u32 s20, s66, s6
    s_addc_u32 s21, s67, 0
    s_mov_b32 s22, {WS_O_BR}
    s_mov_b32 s23, 0x20000
    s_lshl_b32 s6, s{sJ}, 1
    s_add_u32 s6, s6, s{sP}
    s_lshl_b32 s6, s6, 13
    s_lshl_b32 s7, s{sB}, 2
    s_add_u32 s7, s7, s{sWP}
    s_lshl_b32 s7, s7, 18
    s_add_u32 s{sSK}, s6, s7
    s_add_u32 s{sSV}, s{sSK}, 4096
    s_lshr_b32 s7, s{sB}, 1
    s_add_u32 s7, s7, 32
    s_lshl_b32 s7, s7, 18
    s_add_u32 s{sIS}, s6, s7
    s_lshl_b32 s7, s{sWP}, 11
    s_add_u32 s{sIS}, s{sIS}, s7
    s_and_b32 s7, s{sB}, 1
    s_lshl_b32 s7, s7, 8
    s_add_u32 s{sIS}, s{sIS}, s7
    v_mov_b32 v{T0}, v{L}
    v_mov_b32 v{T1}, v{L9}
    v_lshlrev_b32 v{VOK}, 4, v{TID}
    v_permlane32_swap_b32 v{L}, v{T0}
    v_permlane32_swap_b32 v{L9}, v{T1}
    v_add_f32 v{L}, v{L}, v{T0}
    v_add_f32 v{L9}, v{L9}, v{T1}
    v_mov_b32 v{T1}, v{L9}
    v_rcp_f32 v{AL}, v{L}
    v_permlane16_swap_b32 v{L9}, v{T1}
    v_add_f32 v{CN9 + 1}, v{L9}, v{T1}
    '''.strip().split('\n')
    for i, g in enumerate(groups):
        P.extend(g)
        if i < len(epi) // 2: P.extend(epi[2 * i:2 * i + 2])
    P.extend(epi[2 * (len(epi) // 2):] if len(groups) >= len(epi) // 2 else epi[2 * len(groups):])
    P.extend(sync('K1_X9', True, 'vmcnt(2)' if OPT['fused'] and OPT['wot'] else 'vmcnt(0)'))
    P(f'''
    s_lshl_b32 s6, s{sW}, 13
    s_add_u32 s6, s6, 65536
    v_add_u32 v{T0}, s6, v{VOK}
    v_and_b32 v{T1}, 15, v{TID}
    v_lshlrev_b32 v{T1}, 3, v{T1}
    s_lshl_b32 s7, s{sW}, 7
    s_add_u32 s7, s7, 131072
    v_add_u32 v{X0}, s7, v{T1}
    ds_write_b64 v{X0}, {vr(CN9, 2)}
    ''')
    for d9 in range(8): P(f'ds_write_b128 v{T0}, {vr(O9 + 4 * d9, 4)} offset:{d9 * 1024}')
    os_ = 'sc1' if OPT['fused'] else OPT['ostore']
    for dt in range(4):
        for i in range(16): P(f'v_mul_f32 v{O + 16 * dt + i}, v{O + 16 * dt + i}, v{AL}')
        for hf in range(2):
            d = S + 8 * dt + 4 * hf
            for i in range(4): P(f'v_cvt_pk_bf16_f32 v{d + i}, v{O + 16 * dt + 8 * hf + 2 * i}, v{O + 16 * dt + 8 * hf + 2 * i + 1}')
            ks = 2 * dt + hf
            P(f'buffer_store_dwordx4 {vr(d, 4)}, v{VOK}, s[20:23], s{sSK if ks < 4 else sSV} offen offset:{(ks & 3) * 1024} {os_}')
    P('s_barrier')
    P(f'''
    s_lshl_b32 s6, s{sP}, 9
    s_add_u32 s6, s6, 131072
    v_add_u32 v{X0}, s6, v{T1}
    s_lshl_b32 s6, s{sP}, 15
    s_lshl_b32 s7, s{sWP}, 11
    s_add_u32 s6, s6, s7
    s_add_u32 s6, s6, 65536
    v_add_u32 v{T0}, s6, v{VOK}
    ''')
    ST = 0
    for w in range(4): P(f'ds_read_b64 {vr(ST + 2 * w, 2)}, v{X0} offset:{w * 128}')
    for w in range(4):
        for t in range(2): P(f'ds_read_b128 {vr(8 + 8 * w + 4 * t, 4)}, v{T0} offset:{w * 8192 + t * 1024}')
    P(f'''
    v_min3_f32 v40, v0, v2, v4
    v_min_f32 v40, v40, v6
    ''')
    for w in range(4): P(f'v_sub_f32 v{2 * w}, v40, v{2 * w}')
    for w in range(4): P(f'v_exp_f32 v{2 * w}, v{2 * w}')
    P(f'''
    v_lshrrev_b32 v42, 5, v{TID}
    v_bfe_u32 v43, v{TID}, 4, 1
    v_mul_f32 v41, v0, v1
    v_fmac_f32 v41, v2, v3
    v_fmac_f32 v41, v4, v5
    v_fmac_f32 v41, v6, v7
    v_rcp_f32 v41, v41
    v_lshlrev_b32 v44, 1, v{T1}
    v_lshl_add_u32 v44, v42, 9, v44
    v_lshl_add_u32 v44, v43, 3, v44
    ''')
    for w in range(4): P(f'v_mul_f32 v{2 * w}, v{2 * w}, v41')
    for i in range(8): P(f'v_mul_f32 v{8 + i}, v{8 + i}, v0')
    for w in range(1, 4):
        for i in range(8): P(f'v_fmac_f32 v{8 + i}, v{8 + 8 * w + i}, v{2 * w}')
    for t in range(2):
        P(f'v_cvt_pk_bf16_f32 v{46 + 2 * t}, v{8 + 4 * t}, v{9 + 4 * t}')
        P(f'v_cvt_pk_bf16_f32 v{47 + 2 * t}, v{10 + 4 * t}, v{11 + 4 * t}')
        P(f'buffer_store_dwordx2 {vr(46 + 2 * t, 2)}, v44, s[20:23], s{sIS} offen offset:{t * 1024} {os_}')
    if OPT['fused']: phase2(P, stamp, locals())
    if OPT['stamps']:
        P('K1_STAMPS:' if OPT['fused'] else 's_waitcnt vmcnt(0)')
        if not OPT['fused']: stamp(4)
        P(f'''
        s_waitcnt lgkmcnt(0)
        s_add_u32 s20, s66, {WS_STAMP}
        s_addc_u32 s21, s67, 0
        s_mov_b32 s22, 0x100000
        s_mov_b32 s23, 0x20000
        s_lshl_b32 s6, s2, 3
        s_add_u32 s6, s6, s{sW}
        s_lshl_b32 s6, s6, 7
        v_mov_b32 v2, s6
        s_mov_b64 exec, 1
        ''')
        for k in range(15):
            P(f'v_mov_b32 v4, s{70 + 2 * k}\nv_mov_b32 v5, s{71 + 2 * k}\nbuffer_store_dwordx2 v[4:5], v2, s[20:23], 0 offen offset:{8 * k}\ns_nop 1')
    P('K1_END:\ns_endpgm')
    a0 = [i for i, x in enumerate(P.ins) if x.text == 'K1_G1:'][0]; a1 = [i for i, x in enumerate(P.ins) if x.text == 'K1_PVO:'][0]
    keep = []
    kp0 = [i for i, x in enumerate(P.ins) if x.text == 'K1_G1:'][0]; kp1 = [i for i, x in enumerate(P.ins) if x.text == 'K1_QL:'][0]
    for i, x in enumerate(P.ins):
        if a0 < i < a1:
            if OPT['nodma'] and x.dma and not (kp0 < i < kp1): continue
            if OPT['nobar'] and x.kind == 'barrier': continue
            if OPT['noexp'] and x.kind in ('valu', 'trans') and ('exp' in x.text or 'v_add_f32' in x.text or 'cvt_pk' in x.text or 'max3' in x.text): continue
            if OPT['nolds'] and x.kind == 'ds_r': continue
        keep.append(x)
    P.ins = keep
    return P.finish()

def k2():
    P = Prog()
    NB = OPT['k2nb']; STG = 40960
    ACC = [[16 * (2 * i + j) for j in range(2)] for i in range(3)]
    SA = dict(A=[96, 100, 104], B=[108, 112]); SB = dict(A=[116, 120, 124], B=[128, 132])
    AA = [136, 137, 138]; AB = 139; VW, VO, TID = 140, 141, 142
    sW, sWN, sWQ, sBR, sKS, sQB, sN3, sIDX = 24, 25, 26, 27, 28, 29, 30, 31
    sCNT, sIB, sDL, sSW, sSO, sTMP, sMW, sMO, sIP, sOST, sWST = 32, 33, 34, 35, 36, 37, 38, 39, 40, 41, 42
    P(f'''
    s_cmp_ge_u32 s2, 216
    s_cbranch_scc1 K2_END
    s_and_b32 s3, s2, 7
    s_lshr_b32 s{sBR}, s3, 2
    s_and_b32 s{sKS}, s3, 3
    s_mul_i32 s6, s{sBR}, 40
    s_add_u32 s4, s0, s6
    s_addc_u32 s5, s1, 0
    s_load_dwordx2 s[56:57], s[4:5], 32
    s_load_dwordx2 s[58:59], s[0:1], 96
    v_lshrrev_b32 v1, 6, v0
    v_and_b32 v{TID}, 63, v0
    v_readfirstlane_b32 s{sW}, v1
    s_lshr_b32 s{sIDX}, s2, 3
    s_mul_i32 s{sQB}, s{sIDX}, 43
    s_lshr_b32 s{sQB}, s{sQB}, 7
    s_mul_i32 s6, s{sQB}, 3
    s_sub_u32 s{sN3}, s{sIDX}, s6
    s_and_b32 s{sWN}, s{sW}, 1
    s_lshr_b32 s{sWQ}, s{sW}, 1
    v_lshrrev_b32 v2, 3, v{TID}
    v_and_b32 v3, 7, v{TID}
    v_bfe_u32 v4, v{TID}, 4, 1
    v_lshlrev_b32 v4, 2, v4
    v_xor_b32 v3, v3, v4
    s_lshl_b32 s6, s{sW}, 3
    v_add_u32 v2, s6, v2
    v_mul_u32_u24 v2, 1152, v2
    v_lshl_add_u32 v{VW}, v3, 4, v2
    v_lshlrev_b32 v{VO}, 4, v{TID}
    s_mul_i32 s6, s{sKS}, {1024 * 1152}
    s_mul_i32 s7, s{sN3}, 384
    s_add_u32 s6, s6, s7
    s_mul_i32 s7, s{sBR}, {WS_O_BR}
    s_lshl_b32 s3, s{sQB}, 20
    s_add_u32 s7, s7, s3
    s_lshl_b32 s3, s{sKS}, 16
    s_add_u32 s7, s7, s3
    s_lshl_b32 s{sMW}, s{sW}, 10
    s_lshl_b32 s{sMO}, s{sW}, 12
    s_add_u32 s{sMO}, s{sMO}, 24576
    s_mov_b32 s{sSW}, 0
    s_lshl_b32 s{sSO}, s{sW}, 18
    s_waitcnt lgkmcnt(0)
    s_add_u32 s8, s56, s6
    s_addc_u32 s9, s57, 0
    s_sub_u32 s10, {4096 * 1152}, s6
    s_mov_b32 s11, 0x20000
    s_add_u32 s12, s58, s7
    s_addc_u32 s13, s59, 0
    s_mov_b32 s14, 0x100000
    s_mov_b32 s15, 0x20000
    ''')
    def issue():
        o = f's_add_u32 m0, s{sIB}, s{sMO}\ns_nop 0\n'
        for e in range(4): o += f'buffer_load_dwordx4 v{VO}, s[12:15], s{sSO} offen offset:{e * 1024} {OPT["nt_o"]} lds\n'
        o += f's_add_u32 s{sSO}, s{sSO}, 4096\n'
        for gr in range(3):
            for e in range(2):
                o += f's_add_u32 m0, s{sIB}, s{sMW}\n' if (gr, e) == (0, 0) else 's_add_u32 m0, m0, 4096\n'
                o += f's_add_u32 s{sTMP}, s{sSW}, {e * 32 * 1152 + gr * 128}\n'
                o += f'buffer_load_dwordx4 v{VW}, s[8:11], s{sTMP} offen {OPT["nt_wo"]} lds\n'
        o += f's_add_u32 s{sSW}, s{sSW}, {64 * 1152}\n'
        return o
    P(f's_mov_b32 s{sIB}, 0\ns_mov_b32 s{sCNT}, 0\nK2_PRO:')
    P(issue())
    P(f'''
    s_add_u32 s{sIB}, s{sIB}, {STG}
    s_add_u32 s{sCNT}, s{sCNT}, 1
    s_cmp_lt_u32 s{sCNT}, {NB}
    s_cbranch_scc1 K2_PRO
    v_lshrrev_b32 v2, 4, v{TID}
    v_bfe_u32 v10, v{TID}, 2, 2
    v_and_b32 v11, 3, v{TID}
    v_lshrrev_b32 v12, 5, v{TID}
    v_and_b32 v13, 1, v2
    v_and_b32 v15, 1, v11
    v_lshl_add_u32 v15, v13, 1, v15
    v_lshrrev_b32 v16, 1, v10
    v_lshlrev_b32 v16, 2, v16
    v_xor_b32 v15, v15, v16
    v_lshl_add_u32 v17, v12, 3, v10
    v_lshlrev_b32 v17, 7, v17
    v_lshl_add_u32 v14, v15, 4, v17
    v_lshrrev_b32 v15, 1, v11
    v_lshl_add_u32 v14, v15, 3, v14
    v_xor_b32 v15, 64, v14
    s_cmp_eq_u32 s{sWN}, 0
    s_cselect_b64 vcc, -1, 0
    s_cselect_b32 s6, 0, 8192
    s_cselect_b32 s7, 0, 16384
    s_cselect_b32 s3, 8192, 16384
    v_cndmask_b32 v16, v15, v14, vcc
    v_cndmask_b32 v17, v14, v15, vcc
    v_add_u32 v{AA[0]}, s6, v16
    v_add_u32 v{AA[1]}, s7, v17
    v_add_u32 v{AA[2]}, s3, v16
    s_lshl_b32 s6, s{sWQ}, 13
    s_add_u32 s6, s6, 24576
    v_add_u32 v{AB}, s6, v{VO}
    ''')
    for r in range(96): P(f'v_mov_b32 v{r}, 0')
    P(f'''
    s_mov_b32 s{sIB}, 0
    s_mov_b32 s{sCNT}, 0
    s_mov_b32 s{sDL}, {STG}
    s_mov_b32 s{sOST}, 4096
    s_mov_b32 s{sWST}, {64 * 1152}
    s_waitcnt vmcnt({10 * (NB - 1)})
    s_barrier
    ''')
    def rd(st, kk):
        o = []
        for j in range(2): o.append(f'ds_read_b128 {vr(st["B"][j], 4)}, v{AB} offset:{j * 4096 + kk * 1024}')
        for i in range(3):
            for j in range(2): o.append(f'ds_read_b64_tr_b16 {vr(st["A"][i] + 2 * j, 2)}, v{AA[i]} offset:{kk * 2048 + j * 512}')
        return o
    def mm(st):
        return [f'v_mfma_f32_32x32x16_bf16 {vr(ACC[i][j], 16)}, {vr(st["A"][i], 4)}, {vr(st["B"][j], 4)}, {vr(ACC[i][j], 16)}' for i in range(3) for j in range(2)]
    def step(cur, rds, extra=(), dm=()):
        m = mm(cur); extra = list(extra); rds = list(rds); dm = list(dm) + [[]] * 3
        P.extend(rds[:4]); P(m[0]); P.extend(rds[4:6]); P(m[1]); P.extend(rds[6:]); P.extend(dm[0]); P(m[2])
        P.extend(extra[:2]); P(m[3]); P.extend(extra[2:4]); P.extend(dm[1]); P(m[4]); P.extend(extra[4:]); P(m[5]); P.extend(dm[2])
    dms = []
    for e in range(4):
        g = [f's_add_u32 m0, s{sIP}, s{sMO}', 's_nop 0'] if e == 0 else []
        g.append(f'buffer_load_dwordx4 v{VO}, s[12:15], s{sSO} offen offset:{e * 1024} {OPT["nt_o"]} lds')
        if e == 3: g.append(f's_add_u32 s{sSO}, s{sSO}, s{sOST}')
        dms.append(g)
    for gr in range(3):
        for e in range(2):
            g = [f's_add_u32 m0, s{sIP}, s{sMW}' if (gr, e) == (0, 0) else 's_add_u32 m0, m0, 4096',
                 f's_add_u32 s{sTMP}, s{sSW}, {e * 32 * 1152 + gr * 128}',
                 f'buffer_load_dwordx4 v{VW}, s[8:11], s{sTMP} offen {OPT["nt_wo"]} lds']
            if (gr, e) == (2, 1): g.append(f's_add_u32 s{sSW}, s{sSW}, s{sWST}')
            dms.append(g)
    P.extend(rd(SA, 0))
    P(f'''
    s_branch K2_E
    K2_L:
    ''')
    step(SA, rd(SB, 1), dm=dms[3:6])
    step(SB, rd(SA, 2), dm=dms[6:8])
    step(SA, rd(SB, 3), [f'v_add_u32 v{r}, s{sDL}, v{r}' for r in AA + [AB]], dm=dms[8:10])
    P('s_branch K2_M\nK2_E:')
    step(SA, rd(SB, 1))
    step(SB, rd(SA, 2))
    step(SA, rd(SB, 3), [f'v_add_u32 v{r}, s{sDL}, v{r}' for r in AA + [AB]])
    P(f'''
    K2_M:
    s_cmp_eq_u32 s{sCNT}, {16 - NB}
    s_cbranch_scc0 K2_W
    s_mov_b32 s{sSO}, 0x40000000
    s_mov_b32 s{sSW}, 0x40000000
    s_mov_b32 s{sOST}, 0
    s_mov_b32 s{sWST}, 0
    K2_W:
    s_mov_b32 s{sIP}, s{sIB}
    s_waitcnt vmcnt({10 * (NB - 2)})
    s_barrier
    ''')
    step(SB, rd(SA, 0), [f's_add_u32 s{sIB}, s{sIB}, {STG}', f's_cmp_eq_u32 s{sIB}, {NB * STG}', f's_cselect_b32 s{sIB}, 0, s{sIB}',
                         f's_cmp_eq_u32 s{sIB}, {(NB - 1) * STG}', f's_cselect_b32 s{sDL}, {-(NB - 1) * STG & 0xffffffff}, {STG}'], dm=dms[0:3])
    P(f's_add_u32 s{sCNT}, s{sCNT}, 1\ns_cmp_lt_u32 s{sCNT}, 16\ns_cbranch_scc1 K2_L')
    P(f'''
    s_mul_i32 s6, s{sBR}, 27
    s_add_u32 s6, s6, s{sIDX}
    s_lshl_b32 s6, s6, 2
    s_add_u32 s6, s6, s{sKS}
    s_lshl_b32 s6, s6, 2
    s_add_u32 s6, s6, s{sW}
    s_mul_i32 s6, s6, 24576
    s_add_u32 s6, s6, {WS_PART}
    s_add_u32 s16, s58, s6
    s_addc_u32 s17, s59, 0
    s_mov_b32 s18, 24576
    s_mov_b32 s19, 0x20000
    ''')
    for t in range(6):
        P(f's_mov_b32 s3, {t * 4096}')
        for qd in range(4): P(f'buffer_store_dwordx4 {vr(16 * t + 4 * qd, 4)}, v{VO}, s[16:19], s3 offen offset:{qd * 1024}')
    P('K2_END:\ns_endpgm')
    return P.finish()

def k3():
    P = Prog()
    P(f'''
    s_cmp_ge_u32 s2, 648
    s_cbranch_scc1 K3_END
    s_load_dwordx2 s[56:57], s[0:1], 80
    s_load_dwordx2 s[58:59], s[0:1], 96
    v_lshrrev_b32 v1, 6, v0
    v_and_b32 v2, 63, v0
    v_readfirstlane_b32 s3, v1
    s_lshl_b32 s4, s2, 2
    s_add_u32 s4, s4, s3
    s_and_b32 s20, s4, 1
    s_lshr_b32 s4, s4, 1
    s_mul_hi_u32 s5, s4, {(2**32 + 5) // 6}
    s_mul_i32 s6, s5, 6
    s_sub_u32 s21, s4, s6
    s_and_b32 s22, s5, 3
    s_lshr_b32 s23, s5, 2
    s_cmp_ge_u32 s23, 27
    s_cselect_b32 s24, 1, 0
    s_mul_i32 s6, s24, 27
    s_sub_u32 s25, s23, s6
    s_mul_i32 s26, s25, 43
    s_lshr_b32 s26, s26, 7
    s_mul_i32 s6, s26, 3
    s_sub_u32 s27, s25, s6
    s_lshl_b32 s6, s23, 4
    s_add_u32 s6, s6, s22
    s_mul_i32 s6, s6, 24576
    s_lshl_b32 s7, s21, 12
    s_add_u32 s6, s6, s7
    s_lshl_b32 s7, s20, 11
    s_add_u32 s6, s6, s7
    s_add_u32 s6, s6, {WS_PART}
    v_lshlrev_b32 v3, 4, v2
    s_waitcnt lgkmcnt(0)
    s_add_u32 s8, s58, s6
    s_addc_u32 s9, s59, 0
    s_mov_b32 s10, {4 * 98304}
    s_mov_b32 s11, 0x20000
    s_mov_b32 s12, s56
    s_mov_b32 s13, s57
    s_mov_b32 s14, {1152 * 2304}
    s_mov_b32 s15, 0x20000
    ''')
    for k in range(4):
        P(f's_mov_b32 s3, {k * 98304}')
        P(f'buffer_load_dwordx4 {vr(8 + 8 * k, 4)}, v3, s[8:11], s3 offen')
        P(f'buffer_load_dwordx4 {vr(12 + 8 * k, 4)}, v3, s[8:11], s3 offen offset:1024')
    P(f'''
    s_lshr_b32 s28, s22, 1
    s_lshl_b32 s28, s28, 1
    s_and_b32 s6, s21, 1
    s_add_u32 s28, s28, s6
    s_and_b32 s6, s22, 1
    s_mul_i32 s6, s6, 96
    s_lshr_b32 s7, s21, 1
    s_lshl_b32 s7, s7, 5
    s_add_u32 s6, s6, s7
    s_mul_i32 s7, s27, 192
    s_add_u32 s6, s6, s7
    s_lshl_b32 s7, s20, 4
    s_add_u32 s6, s6, s7
    s_mul_i32 s7, s24, 576
    s_add_u32 s6, s6, s7
    s_lshl_b32 s29, s6, 1
    v_and_b32 v4, 31, v2
    v_lshrrev_b32 v5, 5, v2
    v_and_b32 v6, 15, v2
    v_bfe_u32 v7, v2, 4, 1
    v_mul_u32_u24 v7, 144, v7
    v_add_u32 v6, v6, v7
    s_mul_i32 s6, s26, 144
    s_lshl_b32 s7, s28, 5
    s_add_u32 s6, s6, s7
    s_mul_i32 s7, s28, 288
    s_add_u32 s7, s7, 128
    s_cmp_lt_u32 s26, 8
    s_cselect_b64 vcc, -1, 0
    s_cselect_b32 s6, s6, s7
    v_cndmask_b32 v4, v6, v4, vcc
    v_add_u32 v4, s6, v4
    v_mul_u32_u24 v4, 2304, v4
    v_lshl_add_u32 v4, v5, 4, v4
    s_waitcnt vmcnt(4)
    ''')
    for i in range(8): P(f'v_add_f32 v{8 + i}, v{8 + i}, v{16 + i}')
    P('s_waitcnt vmcnt(0)')
    for i in range(8): P(f'v_add_f32 v{24 + i}, v{24 + i}, v{32 + i}')
    for i in range(8): P(f'v_add_f32 v{8 + i}, v{8 + i}, v{24 + i}')
    for i in range(4): P(f'v_cvt_pk_bf16_f32 v{40 + i}, v{8 + 2 * i}, v{9 + 2 * i}')
    P('buffer_store_dwordx4 v[40:43], v4, s[12:15], s29 offen')
    P('K3_END:\ns_endpgm')
    return P.finish()

def desc(name, vg, sg=102):
    return f'''.amdhsa_kernel {name}
  .amdhsa_next_free_vgpr {vg}
  .amdhsa_next_free_sgpr {sg}
  .amdhsa_accum_offset {(vg + 3) // 4 * 4}
  .amdhsa_group_segment_fixed_size 0
  .amdhsa_kernarg_size 104
  .amdhsa_user_sgpr_count 2
  .amdhsa_user_sgpr_kernarg_segment_ptr 1
  .amdhsa_system_sgpr_workgroup_id_x 1
  .amdhsa_float_denorm_mode_32 3
.end_amdhsa_kernel
'''

def main():
    ref = open('cdna_kernels/%s.s.ref' % NAME).read().split('\n')
    hdr = [l for l in ref if l.startswith(';') and '@launch' not in l and 'Override launch' not in l and 'grid=ceil' not in l]
    hdr = hdr[:14]
    ks = [('attn_kernel', k1(), 256, '(256,1,1)', '(%d,1,1)' % OPT['blk'], 163840),
          ('oproj_kernel', k2(), 144, '(216,1,1)', '(256,1,1)', OPT['k2nb'] * 40960),
          ('reduce_kernel', k3(), 48, '(648,1,1)', '(256,1,1)', 0)]
    out = '\n'.join(hdr) + '\n'
    if OPT['fused']:
        ks = [(NAME + '_kernel',) + ks[0][1:]]
        out += f'; @launch grid={ks[0][3]} block={ks[0][4]} lds={ks[0][5]}\n'
    else:
        for n, _, _, g, b, l in ks: out += f'; @launch kernel={n} grid={g} block={b} lds={l}\n'
    out += '.amdgcn_target "amdgcn-amd-amdhsa--gfx950"\n.text\n'
    for n, body, _, _, _, _ in ks:
        out += f'.globl {n}\n.p2align 8\n.type {n},@function\n{n}:\n{body}'
    out += '.section .rodata,"a"\n'
    for n, _, vg, _, _, _ in ks: out += '.p2align 6\n' + desc(n, vg)
    open(sys.argv[1], 'w').write(out)
main()
```

```python
import sys, struct, math
from asmlib import *

NAME = 'concat_heads__mha_block_cached__gqa_block_cached__near_ridge'
def f2u(x): return struct.unpack('<I', struct.pack('<f', x))[0]
CSCALE = f2u(math.log2(math.e) / math.sqrt(128.0))

OPT = dict(nt_kv='nt', nt_w='', nt_x='', ostore='', stamps=0, touch=0, k2nb=3, nt_wo='', nt_o='', nodma=0, nobar=0, noexp=0, nolds=0, prio=0, bdelay=1, blk=512, pa=0, pc=1, pairw=1, qdelay=3, wtouch=0, kvs=11111111, npre=3, dist=4, sq=9, fused=1, p2nb=3, wot=1, ld2='', spin=200000, dbgst=0)
for a in sys.argv[2:]:
    k, v = a.split('=')
    OPT[k] = int(v) if (v.lstrip('-').isdigit() and k != 'kvs') else v

WS_O_BR = 36 * 256 * 1024
WS_PART = 0x1400000
WS_FLAG = 0x3000000
WS_STAMP = 0x4000000

def lanes(P, dst, expr_list):
    for e in expr_list: P(e)

def mf32(d, a, b, c=None):
    return f'v_mfma_f32_32x32x16_bf16 {vr(d, 16)}, {vr(a, 4)}, {vr(b, 4)}, {vr(d if c is None else c, 16)}'
def mf16(d, a, b, c=None):
    return f'v_mfma_f32_16x16x32_bf16 {vr(d, 4)}, {vr(a, 4)}, {vr(b, 4)}, {vr(d if c is None else c, 4)}'
def mf16h(d, a, b):
    return f'v_mfma_f32_16x16x16_bf16 {vr(d, 4)}, {vr(a, 2)}, {vr(b, 2)}, {vr(d, 4)}'


def phase2(P, stamp, env):
    sW, sWP, sBR, sE, sKS, TID = env['sW'], env['sWP'], env['sBR'], env['sE'], env['sKP'], env['TID']
    NB = OPT['p2nb']; STG = 40960
    sIDX, sQB, sN3, sCNT, sIB, sDL, sSW, sSO, sTMP, sMW, sMO, sSPIN = 26, 27, 28, 30, 36, 37, 40, 41, 48, 42, 43, 44
    sNEED = 38
    VW, VO, VF, VP = 140, 141, 142, 143
    done = 'K1_STAMPS' if OPT['stamps'] else 'K1_END'
    def poll(lbl, off):
        return f"""
    s_mov_b32 s{sSPIN}, {OPT['spin']}
    {lbl}:
    buffer_load_dword v{VP}, v{VF}, s[52:55], s{off} offen sc1
    s_sub_u32 s{sSPIN}, s{sSPIN}, 1
    s_cbranch_scc1 {lbl}X
    s_waitcnt vmcnt(0)
    v_cmp_eq_u32 vcc, s{sE}, v{VP}
    s_and_b64 s[6:7], vcc, s[{sNEED}:{sNEED + 1}]
    s_cmp_eq_u64 s[6:7], s[{sNEED}:{sNEED + 1}]
    s_cbranch_scc0 {lbl}
    {lbl}X:
    """
    P(f"""
    s_lshr_b32 s{sIDX}, s2, 3
    s_mul_i32 s{sQB}, s{sIDX}, 43
    s_lshr_b32 s{sQB}, s{sQB}, 7
    s_mul_i32 s6, s{sQB}, 3
    s_sub_u32 s{sN3}, s{sIDX}, s6
    s_and_b32 s3, s2, 7
    s_lshl_b32 s{sTMP}, s3, 7
    v_lshlrev_b32 v{VF}, 2, v{TID}
    v_lshlrev_b32 v{VO}, 4, v{TID}
    v_mov_b32 v{VP}, s{sE}
    s_lshl_b32 s6, s{sIDX}, 2
    s_add_u32 s6, s6, s{sTMP}
    s_waitcnt vmcnt(0)
    s_barrier
    """)
    stamp(4)
    P(f"""
    s_cmp_eq_u32 s{sW}, 4
    s_cbranch_scc0 P2_NF
    s_mov_b64 exec, 1
    buffer_store_dword v{VP}, v{VF}, s[52:55], s6 offen sc1
    s_mov_b64 exec, -1
    P2_NF:
    s_cmp_ge_u32 s{sIDX}, 27
    s_cbranch_scc1 {done}
    s_cmp_ge_u32 s{sW}, 4
    s_cbranch_scc1 P2_G1
    """)
    P(f"""
    v_lshrrev_b32 v2, 3, v{TID}
    v_and_b32 v3, 7, v{TID}
    v_bfe_u32 v4, v{TID}, 4, 1
    v_lshlrev_b32 v4, 2, v4
    v_xor_b32 v3, v3, v4
    s_lshl_b32 s6, s{sW}, 3
    v_add_u32 v2, s6, v2
    v_mul_u32_u24 v2, 1152, v2
    v_lshl_add_u32 v{VW}, v3, 4, v2
    s_mul_i32 s{sSW}, s{sN3}, 384
    s_lshl_b32 s{sMW}, s{sW}, 10
    s_lshl_b32 s{sMO}, s{sW}, 12
    s_add_u32 s{sMO}, s{sMO}, 24576
    s_lshl_b32 s{sSO}, s{sQB}, 20
    s_lshl_b32 s3, s{sKS}, 16
    s_add_u32 s{sSO}, s{sSO}, s3
    s_lshl_b32 s3, s{sW}, 18
    s_add_u32 s{sSO}, s{sSO}, s3
    s_lshl_b32 s3, s{sQB}, 2
    s_lshl_b64 s[{sNEED}:{sNEED + 1}], 15, s3
    s_cmp_eq_u32 s{sQB}, 8
    s_cselect_b32 s{sNEED}, -1, s{sNEED}
    s_cselect_b32 s{sNEED + 1}, 0, s{sNEED + 1}
    s_mov_b32 s{sIB}, 0
    """)
    def issW():
        o = ''
        for gr in range(3):
            for e in range(2):
                o += f's_add_u32 m0, s{sIB}, s{sMW}\n' if (gr, e) == (0, 0) else 's_add_u32 m0, m0, 4096\n'
                o += f's_add_u32 s3, s{sSW}, {e * 32 * 1152 + gr * 128}\n'
                o += f'buffer_load_dwordx4 v{VW}, s[8:11], s3 offen {OPT["nt_wo"]} lds\n'
        return o + f's_add_u32 s{sSW}, s{sSW}, {64 * 1152}\n'
    def issO():
        o = f's_add_u32 m0, s{sIB}, s{sMO}\ns_nop 0\n'
        for e in range(4): o += f'buffer_load_dwordx4 v{VO}, s[20:23], s{sSO} offen offset:{e * 1024} {OPT["ld2"]} lds\n'
        return o + f's_add_u32 s{sSO}, s{sSO}, 4096\n'
    adv = f's_add_u32 s{sIB}, s{sIB}, {STG}\ns_cmp_eq_u32 s{sIB}, {NB * STG}\ns_cselect_b32 s{sIB}, 0, s{sIB}\n'
    P('P2_PW:'); P(issW() + adv + 's_cbranch_scc0 P2_PW')
    P(poll('P2_PO', sTMP))
    stamp(5)
    P('P2_PP:'); P(issO() + adv + 's_cbranch_scc0 P2_PP')
    P(f's_waitcnt vmcnt({4 * (NB - 1)})\ns_barrier')
    for s in range(1, NB - 1):
        P(f's_waitcnt vmcnt({4 * (NB - 1 - s) + 10 * (s - 1)})\ns_barrier'); P(issO() + issW() + adv)
    P(f's_mov_b32 s{sCNT}, {NB - 1}\nP2_LD:\ns_waitcnt vmcnt({10 * (NB - 2)})\ns_barrier')
    P(issO() + issW() + adv)
    P(f's_add_u32 s{sCNT}, s{sCNT}, 1\ns_cmp_lt_u32 s{sCNT}, {17 - NB}\ns_cbranch_scc1 P2_LD')
    for s in range(17 - NB, 16): P(f's_waitcnt vmcnt({10 * (15 - s)})\ns_barrier')
    P('s_barrier\ns_branch P2_RED')
    ACC = [[16 * (2 * i + j) for j in range(2)] for i in range(3)]
    SA = dict(A=[96, 100, 104], B=[108, 112]); SB = dict(A=[116, 120, 124], B=[128, 132])
    AA = [136, 137, 138]; AB = 139
    P(f"""
    P2_G1:
    v_lshrrev_b32 v2, 4, v{TID}
    v_bfe_u32 v10, v{TID}, 2, 2
    v_and_b32 v11, 3, v{TID}
    v_lshrrev_b32 v12, 5, v{TID}
    v_and_b32 v13, 1, v2
    v_and_b32 v15, 1, v11
    v_lshl_add_u32 v15, v13, 1, v15
    v_lshrrev_b32 v16, 1, v10
    v_lshlrev_b32 v16, 2, v16
    v_xor_b32 v15, v15, v16
    v_lshl_add_u32 v17, v12, 3, v10
    v_lshlrev_b32 v17, 7, v17
    v_lshl_add_u32 v14, v15, 4, v17
    v_lshrrev_b32 v15, 1, v11
    v_lshl_add_u32 v14, v15, 3, v14
    v_xor_b32 v15, 64, v14
    s_bitcmp0_b32 s{sW}, 0
    s_cselect_b64 vcc, -1, 0
    s_cselect_b32 s6, 0, 8192
    s_cselect_b32 s7, 0, 16384
    s_cselect_b32 s3, 8192, 16384
    v_cndmask_b32 v16, v15, v14, vcc
    v_cndmask_b32 v17, v14, v15, vcc
    v_add_u32 v{AA[0]}, s6, v16
    v_add_u32 v{AA[1]}, s7, v17
    v_add_u32 v{AA[2]}, s3, v16
    s_lshr_b32 s6, s{sWP}, 1
    s_lshl_b32 s6, s6, 13
    s_add_u32 s6, s6, 24576
    v_add_u32 v{AB}, s6, v{VO}
    s_mul_i32 s6, s{sBR}, 27
    s_add_u32 s6, s6, s{sIDX}
    s_lshl_b32 s6, s6, 2
    s_add_u32 s6, s6, s{sKS}
    s_lshl_b32 s6, s6, 2
    s_add_u32 s6, s6, s{sWP}
    s_mul_i32 s6, s6, 24576
    s_add_u32 s6, s6, {WS_PART}
    s_add_u32 s16, s66, s6
    s_addc_u32 s17, s67, 0
    s_mov_b32 s18, 24576
    s_mov_b32 s19, 0x20000
    s_mov_b32 s{sIB}, 0
    s_mov_b32 s{sCNT}, 0
    """)
    for r in range(96): P(f'v_mov_b32 v{r}, 0')
    P('s_barrier')
    stamp(6)
    def rd(st, kk):
        o = [f'ds_read_b128 {vr(st["B"][j], 4)}, v{AB} offset:{j * 4096 + kk * 1024}' for j in range(2)]
        for i in range(3):
            for j in range(2): o.append(f'ds_read_b64_tr_b16 {vr(st["A"][i] + 2 * j, 2)}, v{AA[i]} offset:{kk * 2048 + j * 512}')
        return o
    def step(cur, rds, extra=()):
        m = [mf32(ACC[i][j], cur['A'][i], cur['B'][j]) for i in range(3) for j in range(2)]
        extra = list(extra)
        m[0] += f' ; need {vr(cur["B"][1], 4)}'; m[2] += f' ; need {vr(cur["A"][2], 4)}'
        P(m[0]); P.extend(rds[:3]); P(m[1]); P.extend(rds[3:6]); P(m[2]); P.extend(rds[6:]); P.extend(extra[:2])
        P(m[3]); P.extend(extra[2:5]); P(m[4]); P.extend(extra[5:]); P(m[5])
    P.extend(rd(SA, 0))
    P('P2_L:')
    step(SA, rd(SB, 1), [f's_cmp_eq_u32 s{sIB}, {NB - 1}', f's_cselect_b32 s{sDL}, {-(NB - 1) * STG & 0xffffffff}, {STG}',
                         f's_add_u32 s{sIB}, s{sIB}, 1', f's_cmp_eq_u32 s{sIB}, {NB}', f's_cselect_b32 s{sIB}, 0, s{sIB}'])
    step(SB, rd(SA, 2))
    step(SA, rd(SB, 3), [f'v_add_u32 v{r}, s{sDL}, v{r}' for r in AA + [AB]])
    P('s_barrier')
    step(SB, rd(SA, 0), [f's_add_u32 s{sCNT}, s{sCNT}, 1', f's_cmp_lt_u32 s{sCNT}, 16'])
    P('s_cbranch_scc1 P2_L')
    stamp(9)
    for t in range(6):
        P(f's_mov_b32 s3, {t * 4096}')
        for qd in range(4): P(f'buffer_store_dwordx4 {vr(16 * t + 4 * qd, 4)}, v{VO}, s[16:19], s3 offen offset:{qd * 1024} sc1')
    P(f"""
    P2_RED:
    s_mul_i32 s6, s{sBR}, 27
    s_add_u32 s6, s6, s{sIDX}
    s_lshl_b32 s{sTMP}, s6, 7
    s_add_u32 s{sTMP}, s{sTMP}, 4096
    s_lshl_b32 s7, s{sKS}, 2
    s_add_u32 s7, s7, s{sTMP}
    s_lshl_b32 s6, s6, 4
    s_add_u32 s6, s6, s{sKS}
    s_mul_i32 s6, s6, 24576
    s_lshl_b32 s3, s{sW}, 12
    s_add_u32 s6, s6, s3
    s_add_u32 s6, s6, {WS_PART}
    s_add_u32 s16, s66, s6
    s_addc_u32 s17, s67, 0
    s_mov_b32 s18, {3 * 98304 + 4096}
    s_mov_b32 s19, 0x20000
    s_mov_b32 s12, s68
    s_mov_b32 s13, s69
    s_mov_b32 s14, {1152 * 2304}
    s_mov_b32 s15, 0x20000
    v_mov_b32 v{VP}, s{sE}
    s_mov_b64 s[{sNEED}:{sNEED + 1}], 15
    s_waitcnt vmcnt(0)
    s_barrier
    s_cmp_eq_u32 s{sW}, 7
    s_cbranch_scc0 P2_NG
    s_mov_b64 exec, 1
    buffer_store_dword v{VP}, v{VF}, s[52:55], s7 offen sc1
    s_mov_b64 exec, -1
    P2_NG:
    s_cmp_ge_u32 s{sW}, 6
    s_cbranch_scc1 {done}
    """)
    stamp(10)
    P(f"""
    s_lshr_b32 s45, s{sKS}, 1
    s_lshl_b32 s45, s45, 1
    s_and_b32 s6, s{sW}, 1
    s_add_u32 s45, s45, s6
    s_and_b32 s6, s{sKS}, 1
    s_mul_i32 s6, s6, 96
    s_lshr_b32 s7, s{sW}, 1
    s_lshl_b32 s7, s7, 5
    s_add_u32 s6, s6, s7
    s_mul_i32 s7, s{sN3}, 192
    s_add_u32 s6, s6, s7
    s_mul_i32 s7, s{sBR}, 576
    s_add_u32 s6, s6, s7
    s_lshl_b32 s46, s6, 1
    v_and_b32 v4, 31, v{TID}
    v_lshrrev_b32 v5, 5, v{TID}
    v_and_b32 v6, 15, v{TID}
    v_bfe_u32 v7, v{TID}, 4, 1
    v_mul_u32_u24 v7, 144, v7
    v_add_u32 v6, v6, v7
    s_mul_i32 s6, s{sQB}, 144
    s_lshl_b32 s7, s45, 5
    s_add_u32 s6, s6, s7
    s_mul_i32 s7, s45, 288
    s_add_u32 s7, s7, 128
    s_cmp_lt_u32 s{sQB}, 8
    s_cselect_b64 vcc, -1, 0
    s_cselect_b32 s6, s6, s7
    v_cndmask_b32 v4, v6, v4, vcc
    v_add_u32 v4, s6, v4
    v_mul_u32_u24 v4, 2304, v4
    v_lshl_add_u32 v4, v5, 4, v4
    """)
    P(poll('P2_PR', sTMP))
    stamp(11)
    for k in range(4):
        P(f's_mov_b32 s3, {k * 98304}')
        for qd in range(4): P(f'buffer_load_dwordx4 {vr(16 + 16 * k + 4 * qd, 4)}, v{VO}, s[16:19], s3 offen offset:{qd * 1024} sc1')
    P('s_waitcnt vmcnt(8)')
    for i in range(16): P(f'v_add_f32 v{16 + i}, v{16 + i}, v{32 + i}')
    P('s_waitcnt vmcnt(0)')
    for i in range(16): P(f'v_add_f32 v{48 + i}, v{48 + i}, v{64 + i}')
    for i in range(16): P(f'v_add_f32 v{16 + i}, v{16 + i}, v{48 + i}')
    for hf in range(2):
        for i in range(4): P(f'v_cvt_pk_bf16_f32 v{80 + 4 * hf + i}, v{16 + 8 * hf + 2 * i}, v{17 + 8 * hf + 2 * i}')
        P(f'buffer_store_dwordx4 {vr(80 + 4 * hf, 4)}, v4, s[12:15], s46 offen offset:{hf * 32}')
    if OPT['stamps']:
        P('s_waitcnt vmcnt(0)'); stamp(8)

def k1():
    P = Prog()
    O, S, CN, Q, PP, O9, Q9, S9, CN9, P9 = 0, 64, 96, 112, 144, 160, 192, 208, 212, 216
    L, L9, VOK, VOV, AK, AK9, AV9, TID = 218, 219, 220, 221, 222, 223, 224, 225
    VA = 226
    T0, T1, AL, AL9, X0, X1 = 230, 231, 232, 233, 234, 235
    FB = [236, 240, 244, 248, 252]
    ACC = [[0, 16, 32, 48], [64, 80, 144, 176]]; ACC9 = [[160, 164], [168, 172]]
    QW = [230, 231, 232, 233]; QX = [234, 235]; QX9, QW9, VOW, VOX, HOLD = 216, 217, 218, 219, 212
    QB, QB9 = [96, 100], 104
    QF = [112, 116, 120, 124, 128, 132, 136, 140, 236, 240]
    sW, sWP, sP, sB, sJ, sBR = 24, 25, 26, 27, 28, 29
    sCNT, sW0, sX, sMC, sIB, sDL = 30, 31, 33, 35, 36, 37
    sEX = 38
    sIS, sSK, sSV, sDK, sDV, sT, sCL, sRARE, sTMP, sTM2, sMW, sKP, sVP, sE = 40, 41, 42, 43, 44, 45, 46, 47, 48, 49, 50, 51, 32, 34
    NSB = 6; STGS = 25600; STG0 = 163840 - NSB * STGS
    QXCH, Q9B = 131072, 98304 + 16384
    nk, ntw = OPT['nt_kv'], OPT['nt_w']
    def stamp(k, at=None):
        if OPT['stamps']:
            if at is not None: P(f's_cmp_lg_u32 s{sCNT}, {at}\ns_cbranch_scc1 K1_ST{k}_{len(P.ins)}'); lbl = P.ins[-1].target
            P(('s_memtime' if OPT['stamps'] == 2 else 's_memrealtime') + ' s[%d:%d]' % (70 + 2 * k, 71 + 2 * k))
            if at is not None: P(f'{lbl}:')
            if k == 1: P('s_memtime s[96:97]')
            if k == 4: P('s_memtime s[98:99]')
    P(f"""
    s_cmp_ge_u32 s2, 256
    s_cbranch_scc1 K1_END
    s_bfe_u32 s{sBR}, s2, 0x10002
    s_mul_i32 s6, s{sBR}, 40
    s_add_u32 s4, s0, s6
    s_addc_u32 s5, s1, 0
    s_load_dwordx8 s[56:63], s[4:5], 0
    s_load_dwordx4 s[64:67], s[0:1], 88
    s_load_dwordx2 s[68:69], s[0:1], 80
    s_load_dwordx2 s[100:101], s[4:5], 32
    """)
    if OPT['stamps']:
        for k in range(70, 100, 2): P(f's_mov_b64 s[{k}:{k + 1}], 0')
    stamp(0)
    P(f"""
    v_lshrrev_b32 v1, 6, v0
    v_and_b32 v{TID}, 63, v0
    v_readfirstlane_b32 s{sW}, v1
    v_lshrrev_b32 v2, 4, v{TID}
    v_and_b32 v3, 15, v{TID}
    s_and_b32 s3, s2, 3
    s_lshl_b32 s3, s3, 2
    s_bfe_u32 s7, s2, 0x20003
    s_add_u32 s{sJ}, s3, s7
    s_lshr_b32 s{sB}, s2, 5
    s_and_b32 s{sWP}, s{sW}, 3
    s_lshr_b32 s{sP}, s{sW}, 2
    v_lshlrev_b32 v4, 2, v2
    v_xor_b32 v4, v4, v3
    v_lshlrev_b32 v4, 4, v4
    v_lshl_add_u32 v{VOW}, v2, 13, v4
    v_lshrrev_b32 v8, 2, v{TID}
    v_and_b32 v9, 3, v{TID}
    v_xor_b32 v9, v9, v2
    v_mul_u32_u24 v8, 1152, v8
    v_lshl_add_u32 v{VOX}, v9, 4, v8
    s_lshl_b32 s3, s{sWP}, 2
    v_or_b32 v5, s3, v2
    v_xor_b32 v5, v5, v3
    v_lshlrev_b32 v5, 4, v5
    s_lshl_b32 s{sMW}, s{sWP}, 12
    v_lshl_add_u32 v5, v2, 8, v5
    v_add_u32 v{VOK}, s{sMW}, v5
    v_lshl_add_u32 v5, v2, 8, v4
    v_add_u32 v{VOV}, s{sMW}, v5
    s_lshl_b32 s{sW0}, s{sWP}, 16
    s_mul_i32 s{sX}, s{sWP}, 18432
    s_mul_i32 s{sMC}, s{sWP}, 3072
    s_lshl_b32 s3, s{sWP}, 4
    s_lshl_b64 s[{sEX}:{sEX + 1}], 0xffff, s3
    s_mul_i32 s6, s{sB}, 165888
    s_lshl_b32 s7, s{sJ}, 9
    s_mov_b32 s11, 0x20000
    s_mov_b32 s22, {165888 + 2048}
    s_mov_b32 s23, 0x20000
    s_sub_u32 s10, {576 * 8192}, s7
    s_mov_b32 s{sIB}, {STG0}
    s_lshl_b32 s{sTMP}, s{sB}, 5
    s_lshl_b32 s{sTM2}, s{sJ}, 1
    s_add_u32 s{sTMP}, s{sTMP}, s{sTM2}
    s_lshl_b32 s{sTMP}, s{sTMP}, 17
    s_mov_b32 s14, 262144
    s_mov_b32 s15, 0x20000
    s_mov_b32 s18, 262144
    s_mov_b32 s19, 0x20000
    s_mov_b32 s{sCNT}, 0
    s_cmp_ge_u32 s{sW}, 4
    s_waitcnt lgkmcnt(0)
    s_cbranch_scc1 K1_G1
    s_add_u32 s8, s62, s7
    s_addc_u32 s9, s63, 0
    s_add_u32 s20, s56, s6
    s_addc_u32 s21, s57, 0
    s_sub_u32 s20, s20, 2048
    s_subb_u32 s21, s21, 0
    """)
    kvsrd = f"""
    s_add_u32 s12, s58, s{sTMP}
    s_addc_u32 s13, s59, 0
    s_add_u32 s16, s60, s{sTMP}
    s_addc_u32 s17, s61, 0
    s_add_u32 s52, s66, {WS_FLAG}
    s_addc_u32 s53, s67, 0
    s_mov_b32 s54, 16384
    s_mov_b32 s55, 0x20000
    """
    lanec = f"""
    v_bfe_u32 v10, v{TID}, 2, 2
    v_and_b32 v11, 3, v{TID}
    v_lshrrev_b32 v12, 5, v{TID}
    v_and_b32 v13, 1, v2
    v_and_b32 v20, 1, v11
    v_lshrrev_b32 v15, 1, v11
    v_lshlrev_b32 v16, 2, v10
    v_lshl_add_u32 v17, v13, 1, v20
    v_xor_b32 v17, v17, v16
    v_lshlrev_b32 v17, 4, v17
    v_lshl_add_u32 v17, v15, 3, v17
    v_lshl_add_u32 v17, v10, 8, v17
    s_lshl_b32 s3, s{sP}, 14
    s_add_u32 s{sMW}, s{sMW}, s3
    s_add_u32 s6, s3, 65536
    v_lshl_add_u32 v18, v12, 10, v17
    v_add_u32 v{VA}, s6, v18
    v_xor_b32 v{VA + 1}, 64, v{VA}
    v_xor_b32 v{VA + 2}, 0x80, v{VA}
    v_xor_b32 v{VA + 3}, 0xc0, v{VA}
    v_bfe_u32 v23, v{TID}, 3, 2
    v_bfe_u32 v24, v{TID}, 2, 1
    v_lshl_add_u32 v25, v23, 2, v11
    v_xor_b32 v25, v25, v12
    v_lshlrev_b32 v25, 4, v25
    v_lshl_add_u32 v25, v11, 8, v25
    v_lshl_add_u32 v25, v24, 10, v25
    v_lshl_add_u32 v25, v23, 12, v25
    v_add_u32 v{AK}, s3, v25
    s_lshl_b32 s7, s{sWP}, 10
    s_add_u32 s6, s3, s7
    v_xor_b32 v25, v2, v3
    v_lshlrev_b32 v25, 4, v25
    v_lshl_add_u32 v25, v11, 8, v25
    v_lshl_add_u32 v25, v10, 12, v25
    v_add_u32 v{AK9}, s6, v25
    v_xor_b32 v25, v15, v16
    v_lshlrev_b32 v25, 4, v25
    v_lshl_add_u32 v25, v20, 3, v25
    v_lshl_add_u32 v25, v10, 8, v25
    v_lshl_add_u32 v25, v2, 12, v25
    s_add_u32 s6, s6, 65536
    v_add_u32 v{AV9}, s6, v25
    v_mul_u32_u24 v26, 272, v3
    v_lshl_add_u32 v27, v2, 4, v26
    s_mul_i32 s6, s{sP}, 4352
    s_add_u32 s6, s6, {Q9B}
    v_add_u32 v{S9}, s6, v27
    v_lshlrev_b32 v27, 4, v{TID}
    s_lshl_b32 s6, s{sWP}, 13
    s_add_u32 s6, s6, {QXCH}
    v_add_u32 v{S9 + 1}, s6, v27
    """
    loopinit = f"""
    s_mov_b32 s{sCNT}, 1
    s_mov_b32 s{sKP}, 32768
    s_mov_b32 s{sVP}, 65536
    s_mov_b32 s{sDK}, 32768
    s_mov_b32 s{sDV}, 0
    s_mov_b32 s{sIS}, 131072
    s_lshl_b32 s3, s{sP}, 17
    s_add_u32 s{sSV}, s3, 16384
    s_add_u32 s{sSK}, s3, 49152
    s_add_u32 s14, s3, 131072
    s_mov_b32 s18, s14
    s_mov_b32 s{sCL}, 0xff800000
    s_mov_b32 s{sRARE}, 0
    """
    getE = f'v_mov_b32 v{AL}, {Q9B + 8704}\nds_read_b32 v{AL}, v{AL}' if OPT['fused'] else ''
    getE2 = f'v_readfirstlane_b32 s{sE}, v{AL}' if OPT['fused'] else ''
    queue = []
    def vm(text, tag): P(text); queue.append(tag)
    def wait_for(tag):
        idx = max(i for i, t in enumerate(queue) if t == tag)
        P(f's_waitcnt vmcnt({min(63, len(queue) - 1 - idx)})')
    def stage(s):
        buf = STG0 + (s % NSB) * STGS
        for hd in range(2):
            P(f's_add_u32 m0, s{sMC}, {buf + hd * 12288}\ns_add_u32 s3, s{sW0}, {s * 262144 + hd * 256}')
            vm(f'buffer_load_dwordx4 v{VOW}, s[8:11], s3 offen {ntw} lds', ('s', s))
            P(f's_add_u32 s3, s3, {32768 - 1024}')
            vm(f'buffer_load_dwordx4 v{VOW}, s[8:11], s3 offen offset:1024 {ntw} lds', ('s', s))
            P(f's_add_u32 s3, s{sX}, {s * 64 + hd * 4 * 18432}')
            vm(f'buffer_load_dwordx4 v{VOX}, s[20:23], s3 offen offset:2048 {ntw} lds', ('s', s))
        P(f's_mov_b32 m0, {buf + 24576}\ns_mov_b32 s3, {s * 64 + 128 * 1152 + 2048}\ns_mov_b64 exec, s[{sEX}:{sEX + 1}]')
        vm(f'buffer_load_dwordx4 v{VOX}, s[20:23], s3 offen {ntw} lds', ('s', s))
        P('s_mov_b64 exec, -1')
    PRE = {(0, 0): [64, 68, 72, 76], (0, 1): [80, 84, 88, 92], (1, 0): [112, 116, 120, 124], (1, 1): [128, 132, 136, 140],
           (2, 0): [192, 196, 200, 204], (2, 1): [236, 240, 244, 248], (3, 0): [96, 100, 104, 252], (3, 1): [144, 148, 152, 156]}
    SRC = {0: (VOK, 12, 0), 1: (VOK, 12, 16384), 2: (VOV, 16, 0), 3: (VOK, 12, 32768)}
    def kvload(u, hd):
        vo, srd, off = SRC[u]
        P(f's_mov_b32 s3, {hd * 131072 + off}')
        for n in range(4): vm(f'buffer_load_dwordx4 {vr(PRE[u, hd][n], 4)}, v{vo}, s[{srd}:{srd + 3}], s3 offen offset:{n * 1024} {nk}', ('k', u, hd))
    def kvdump(u, hd):
        wait_for(('k', u, hd))
        base = u * 32768 + hd * 16384
        for n in range(4): P(f'ds_write_b128 v{[T0, T1][base >> 16]}, {vr(PRE[u, hd][n], 4)} offset:{(base & 0xffff) + n * 1024}')
    kvq = [(u, hd) for u in range(4) for hd in range(2)]
    npre, dist = OPT['npre'], OPT['dist']
    sched = [int(c) for c in str(OPT['kvs'])] + [0] * 30
    assert sum(sched) == 8 and dist <= NSB - 1 and npre <= NSB
    nxt = 0
    for s in range(npre): stage(s); nxt += 1
    stamp(12)
    later = [kvsrd] + [f'v_lshlrev_b32 v{T0}, 4, v{TID}\nv_add_u32 v{T0}, s{sMW}, v{T0}\nv_add_u32 v{T1}, 0x10000, v{T0}', lanec]
    zs = list(range(108, 112)) + list(range(O9, O9 + 32)) + list(range(CN9, CN9 + 4)) + list(range(63, -1, -1))
    later += ['\n'.join(f'v_mov_b32 v{r}, 0' for r in zs[i:i + 26]) for i in range(0, len(zs), 26)]
    P(later.pop(0))
    for s in range(19):
        if OPT['stamps'] == 2 and s == OPT['sq']: stamp(5)
        if OPT['stamps'] == 2 and s == OPT['sq'] + 1: stamp(6)
        if s < 18: wait_for(('s', s))
        if OPT['stamps'] == 2 and s == OPT['sq']: stamp(3)
        P('s_barrier')
        if OPT['stamps'] == 2 and s == OPT['sq']: stamp(2)
        if s == 0: stamp(1)
        n = 0
        while nxt < 18 and nxt <= s + dist and n < 2: stage(nxt); nxt += 1; n += 1
        for _ in range(sched[s]): kvload(*kvq.pop(0))
        if later: P(later.pop(0))
        for u, hd in {13: [(0, 0)], 14: [(0, 1)], 15: [(1, 0), (1, 1)], 16: [(2, 0), (2, 1)], 17: [(3, 0)]}.get(s, []): kvdump(u, hd)
    assert nxt == 18 and not later
    for r in list(range(96, 108)) + [L, L9]: P(f'v_mov_b32 v{r}, 0')
    P(loopinit)
    if OPT['stamps'] == 1: stamp(2)
    P('s_barrier')
    P(getE)
    for kk in range(8): P(f'ds_read_b128 {vr(Q + 4 * kk, 4)}, v{S9 + 1} offset:{kk * 1024}')
    for kk in range(4): P(f'ds_read_b128 {vr(Q9 + 4 * kk, 4)}, v{S9} offset:{kk * 64}')
    P('s_barrier')
    P(getE2)
    kvdump(3, 1)
    P('s_branch K1_HEAD')
    P('K1_G1:')
    P(kvsrd)
    if OPT['fused']:
        P(f"""
        s_mov_b32 s8, s64
        s_mov_b32 s9, s65
        s_mov_b32 s10, 256
        v_mov_b32 v246, 0
        s_cmp_eq_u32 s{sW}, 4
        s_cbranch_scc0 K1_E0
        buffer_load_dword v244, v246, s[52:55], 0 offen sc1
        K1_E0:
        """)
    stamp(12)
    P(lanec)
    P(f"""
    v_mul_u32_u24 v18, 3072, v12
    v_add_u32 v18, {STG0}, v18
    v_add_u32 v{QW[0]}, v17, v18
    v_xor_b32 v{QW[1]}, 64, v{QW[0]}
    v_xor_b32 v{QW[2]}, 0x80, v{QW[0]}
    v_xor_b32 v{QW[3]}, 0xc0, v{QW[0]}
    s_lshl_b32 s6, s{sWP}, 2
    v_add_u32 v18, s6, v15
    v_xor_b32 v18, v18, v16
    v_lshlrev_b32 v18, 4, v18
    v_lshl_add_u32 v18, v20, 3, v18
    v_lshl_add_u32 v18, v10, 8, v18
    v_mul_u32_u24 v19, 3072, v2
    v_add_u32 v19, {STG0}, v19
    v_add_u32 v{QW9}, v18, v19
    v_xor_b32 v22, v12, v10
    v_lshlrev_b32 v22, 4, v22
    v_lshl_add_u32 v22, v3, 6, v22
    v_mul_u32_u24 v19, 3072, v13
    s_mul_i32 s6, s{sWP}, 6144
    s_add_u32 s6, s6, {STG0 + 2048}
    v_add3_u32 v{QX[0]}, v22, v19, s6
    v_xor_b32 v{QX[1]}, 32, v{QX[0]}
    v_xor_b32 v22, v2, v10
    v_lshlrev_b32 v22, 4, v22
    v_lshl_add_u32 v22, v3, 6, v22
    v_add_u32 v{QX9}, {STG0 + 24576}, v22
    v_lshl_add_u32 v27, v2, 3, v26
    s_lshl_b32 s6, s{sWP}, 6
    s_add_u32 s6, s6, {Q9B}
    v_add_u32 v{S9 + 2}, s6, v27
    """)
    z = list(range(CN9, CN9 + 4)) + list(range(108, 112)) + [L, L9]
    for hd in range(2):
        for a in ACC[hd]: z += list(range(a, a + 16))
        for a in ACC9[hd]: z += list(range(a, a + 4))
    for r in z: P(f'v_mov_b32 v{r}, 0')
    if OPT['fused']:
        P(f"""
        s_cmp_eq_u32 s{sW}, 4
        s_cbranch_scc0 K1_E1
        s_waitcnt vmcnt(0)
        v_add_u32 v244, 1, v244
        v_max_u32 v244, 1, v244
        v_mov_b32 v245, 0
        v_mov_b32 v247, v244
        s_mov_b64 exec, 1
        buffer_atomic_cmpswap v[244:245], v246, s[8:11], 0 offen sc0
        s_mov_b64 exec, -1
        K1_E1:
        """)
    P(f's_mov_b32 s{sIB}, 0\ns_barrier')
    stamp(1)
    qit = []
    def qmain(kk, hd, dt):
        return (lambda F: [f'ds_read_b64_tr_b16 {vr(F + 2 * j, 2)}, v{QW[dt]} offset:{hd * 12288 + kk * 6144 + j * 1024}' for j in range(2)],
                lambda F: mf32(ACC[hd][dt], F, QB[kk]))
    def q9(hd, t):
        return (lambda F: [f'ds_read_b64_tr_b16 {vr(F + 2 * j, 2)}, v{QW9} offset:{hd * 12288 + t * 32 + j * 1024}' for j in range(2)],
                lambda F: mf16(ACC9[hd][t], F, QB9))
    qit = [qmain(0, hd, dt) for hd in range(2) for dt in range(4)] + [q9(hd, t) for hd in range(2) for t in range(2)] + [qmain(1, hd, dt) for hd in range(2) for dt in range(4)]
    nq = len(QF); NQ = len(qit); QD = OPT['qdelay']
    qrd = lambda i: qit[i % NQ][0](QF[i % nq])
    bheads = [f'ds_read_b128 {vr(QB[0], 4)}, v{QX[0]}', f'ds_read_b128 {vr(QB9, 4)}, v{QX9}']
    upd = [f'v_add_u32 v{r}, s{sDL}, v{r}' for r in QW + QX + [QX9, QW9]]
    P(bheads[0])
    for i in range(nq):
        P.extend(qrd(i))
        if i == 3: P(bheads[1])
    def qmf(i):
        m = qit[i][1](QF[i % nq])
        if i % 2 == 0 and i + 1 < NQ: m += f' ; need {vr(QF[(i + 1) % nq], 4)}'
        return m
    cut = NQ - nq + QD + 1
    P('s_branch K1_QM\nK1_QL:\ns_barrier')
    if OPT['stamps'] == 2: stamp(2, OPT['sq'])
    qpend = [bheads[0]] + [x for jj in range(QD + 1) for x in qrd(jj)]
    for i in range(cut, NQ):
        P(qmf(i))
        qpend += qrd(i + nq)
        if i == NQ - 2: qpend.append(bheads[1])
        n = len(qpend) if i == NQ - 1 else 4
        P.extend(qpend[:n]); qpend = qpend[n:]
    P('K1_QM:')
    if OPT['stamps'] == 2: stamp(5, OPT['sq'] - 1); stamp(6, OPT['sq'])
    for i in range(cut):
        P(qmf(i))
        if i + nq < NQ: P.extend(qrd(i + nq))
        if i == 0: P(f'ds_read_b128 {vr(QB[1], 4)}, v{QX[1]}')
        if i == 2: P(f's_cmp_eq_u32 s{sIB}, {NSB - 1}\ns_cselect_b32 s{sDL}, {-(NSB - 1) * STGS & 0xffffffff}, {STGS}')
        if i == 4: P(f's_add_u32 s{sIB}, s{sIB}, 1\ns_cmp_eq_u32 s{sIB}, {NSB}\ns_cselect_b32 s{sIB}, 0, s{sIB}')
        if i == 10: P.extend(upd[:4])
        if i == 11:
            P.extend(upd[4:])
            if OPT['stamps'] == 2: stamp(3, OPT['sq'] - 1)
            P(f's_add_u32 s{sCNT}, s{sCNT}, 1\ns_cmp_lt_u32 s{sCNT}, 18')
    P('s_cbranch_scc1 K1_QL\ns_barrier')
    for i in range(cut, NQ): P(qmf(i))
    if OPT['stamps'] == 1: stamp(2)
    P(f's_mov_b32 s6, {CSCALE}')
    for hd in range(2):
        for t in range(2):
            a = ACC9[hd][t]
            for i in range(4): P(f'v_mul_f32 v{a + i}, s6, v{a + i}')
            P(f'v_cvt_pk_bf16_f32 v{a}, v{a}, v{a + 1}\nv_cvt_pk_bf16_f32 v{a + 1}, v{a + 2}, v{a + 3}')
            P(f'ds_write_b64 v{S9 + 2}, {vr(a, 2)} offset:{hd * 4352 + t * 32}')
    for dt in [0, 1, 2, 3]:
        a = ACC[0][dt]
        for i in range(16): P(f'v_mul_f32 v{a + i}, s6, v{a + i}')
        for hf in range(2):
            for i in range(4): P(f'v_cvt_pk_bf16_f32 v{a + 8 * hf + i}, v{a + 8 * hf + 2 * i}, v{a + 8 * hf + 2 * i + 1}')
            P(f'ds_write_b128 v{S9 + 1}, {vr(a + 8 * hf, 4)} offset:{(2 * dt + hf) * 1024}')
    if OPT['fused']:
        P(f"""
        s_cmp_eq_u32 s{sW}, 4
        s_cbranch_scc0 K1_E2
        s_waitcnt vmcnt(0)
        v_cmp_eq_u32 vcc, 0, v244
        v_mov_b32 v246, {Q9B + 8704}
        s_mov_b64 exec, 1
        v_cndmask_b32 v244, v244, v247, vcc
        ds_write_b32 v246, v244
        s_mov_b64 exec, -1
        K1_E2:
        """)
    P(loopinit)
    P('s_barrier')
    P(getE)
    for kk in range(4): P(f'ds_read_b128 {vr(Q9 + 4 * kk, 4)}, v{S9} offset:{kk * 64}')
    for i in range(16): P(f'v_mul_f32 v{ACC[1][0] + i}, s6, v{ACC[1][0] + i}')
    P('s_barrier')
    P(getE2)
    for dt in range(4):
        a = ACC[1][dt]
        if dt:
            for i in range(16): P(f'v_mul_f32 v{a + i}, s6, v{a + i}')
        for i in range(8): P(f'v_cvt_pk_bf16_f32 v{Q + dt * 8 + i}, v{a + 2 * i}, v{a + 2 * i + 1}')
    for r in list(range(O, O + 64)) + list(range(CN, CN + 12)) + list(range(O9, O9 + 32)): P(f'v_mov_b32 v{r}, 0')
    P('K1_HEAD:')

    def dma_sites(vo, srd, so):
        out = []
        for n in range(4):
            g = [f's_add_u32 m0, s{sIS}, s{sMW}', f's_add_u32 s{sIS}, s{sIS}, 32768'] if n == 0 else []
            g.append(f'buffer_load_dwordx4 v{vo}, s[{srd}:{srd + 3}], s{so} offen offset:{n * 1024} {nk} lds')
            if n == 0: g += [f's_cmp_eq_u32 s{sIS}, 163840', f's_cselect_b32 s{sIS}, 0, s{sIS}']
            if n == 3: g.append(f's_add_u32 s{so}, s{so}, 16384')
            out.append(g)
        return out
    dmaV = dma_sites(VOV, 16, sSV); dmaK = dma_sites(VOK, 12, sSK)
    book = f"""s_add_u32 s{sKP}, s{sKP}, 65536
    s_cmp_ge_u32 s{sKP}, 163840
    s_cselect_b32 s3, 163840, 0
    s_sub_u32 s{sKP}, s{sKP}, s3
    s_sub_u32 s{sDK}, 65536, s3
    s_add_u32 s{sVP}, s{sVP}, 65536
    s_cmp_ge_u32 s{sVP}, 163840
    s_cselect_b32 s3, 163840, 0
    s_sub_u32 s{sVP}, s{sVP}, s3
    s_sub_u32 s{sDV}, 65536, s3""".split('\n')
    vupd = [f'v_add_u32 v{VA + i}, s{sDV}, v{VA + i}' for i in range(4)] + [f'v_add_u32 v{AV9}, s{sDV}, v{AV9}']
    kupd = [f'v_add_u32 v{AK}, s{sDK}, v{AK}', f'v_add_u32 v{AK9}, s{sDK}, v{AK9}']
    def kmain(kk, mt):
        tmp = [T0, T1][kk & 1]
        pre = [f'v_xor_b32 v{tmp}, {kk << 5}, v{AK}'] if (mt == 0 and kk) else []
        ad = tmp if kk else AK
        return dict(rd=lambda F: pre + [f'ds_read_b128 {vr(F, 4)}, v{ad} offset:{mt * 2048}'],
                    mf=lambda F: [mf32(S + 16 * mt, F, Q + 4 * kk, CN if kk == 0 else None)], w=32)
    def k9(kk):
        pre = [f'v_xor_b32 v{X0}, {kk << 6}, v{AK9}'] if kk else []
        ad = X0 if kk else AK9
        return dict(rd=lambda F: pre + [f'ds_read_b128 {vr(F, 4)}, v{ad}'],
                    mf=lambda F: [mf16(S9, F, Q9 + 4 * kk, CN9 if kk == 0 else None)], w=16)
    def vmain(ks, dt):
        mt, u = ks >> 1, ks & 1
        return dict(rd=lambda F: [f'ds_read_b64_tr_b16 {vr(F + 2 * j, 2)}, v{VA + dt} offset:{u * 8192 + j * 4096 + mt * 2048}' for j in range(2)],
                    mf=lambda F: [mf32(O + 16 * dt, F, PP + 4 * ks)], w=32)
    def v9(pp):
        pre = [f'v_xor_b32 v{X1}, {pp << 6}, v{AV9}'] if pp else []
        ad = X1 if pp else AV9
        return dict(rd=lambda F: pre + [f'ds_read_b64_tr_b16 {vr(F + 2 * j, 2)}, v{ad} offset:{32 * j}' for j in range(2)],
                    mf=lambda F: [mf16h(O9 + 4 * (2 * pp + j), F + 2 * j, P9) for j in range(2)], w=32)
    itA = []
    for kk in range(8):
        itA += [kmain(kk, 0), kmain(kk, 1)]
        if 1 <= kk <= 4: itA.append(k9(kk - 1))
    itC = []
    for dt in range(4): itC += [vmain(0, dt), v9(dt)]
    for ks in range(1, 4): itC += [vmain(ks, dt) for dt in range(4)]
    lastP = {0: 6, 1: 11, 2: 15, 3: 19, 9: 7}
    nb = len(FB); items = itA + itC; N = len(items); nA = len(itA)
    assert N % nb == 0 and nA % nb == 0
    RD = lambda i: items[i % N]['rd'](FB[i % nb])
    DL = OPT['bdelay']
    def MF(i, pair=True):
        m = items[i]['mf'](FB[i % nb])
        if pair and OPT['pairw'] and i % 2 == 0 and (i + 1) % nA != 0: m[0] += f' ; need {vr(FB[(i + 1) % nb], 4)}'
        return m
    def sync(lbl, group0, wait='vmcnt(4)'):
        return [f's_cmp_lt_u32 s{sW}, 4', f's_cbranch_scc{0 if group0 else 1} {lbl}', f's_waitcnt {wait}', 's_barrier', f'{lbl}:']
    mx = [f'v_max3_f32 v{T1}, v{S9}, v{S9 + 1}, v{S9 + 2}', f'v_max_f32 v{T1}, v{T1}, v{S9 + 3}', f'v_max3_f32 v{T0}, v{S}, v{S + 1}, v{S + 2}']
    mx += [f'v_max3_f32 v{T0}, v{T0}, v{S + 3 + 2 * i}, v{S + 4 + 2 * i}' for i in range(6)]
    mx += [f'v_max3_f32 v{X0}, v{S + 16}, v{S + 17}, v{S + 18}']
    mx += [f'v_max3_f32 v{X0}, v{X0}, v{S + 19 + 2 * i}, v{S + 20 + 2 * i}' for i in range(6)]
    mx += [f'v_max3_f32 v{X0}, v{X0}, v{S + 15}, v{S + 31}', f'v_max_f32 v{T0}, v{T0}, v{X0}', f'v_max_f32 v{X0}, v{T0}, v{T1}', f'v_cmp_lt_f32 vcc, s{sT}, v{X0}']
    fill = []
    for ks in range(4):
        b = S + 8 * ks
        for i in range(0, 8, 2):
            fill += [(0, f'v_exp_f32 v{b + i}, v{b + i}'), (0, f'v_exp_f32 v{b + i + 1}, v{b + i + 1}')]
            if i: fill += [(0, f'v_add_f32 v{L}, v{L}, v{b + i - 2}'), (0, f'v_add_f32 v{L}, v{L}, v{b + i - 1}')]
        if ks == 0: fill += [(0, f'v_exp_f32 v{S9 + i}, v{S9 + i}') for i in range(4)]
        fill += [(0, f'v_add_f32 v{L}, v{L}, v{b + 6}'), (0, f'v_add_f32 v{L}, v{L}, v{b + 7}')]
        if ks == 0: fill += [(0, f'v_add_f32 v{L9}, v{L9}, v{S9 + i}') for i in range(4)]
        fill += [(lastP[ks], f'v_cvt_pk_bf16_f32 v{PP + 4 * ks + i}, v{b + 2 * i}, v{b + 2 * i + 1}') for i in range(4)]
        if ks == 0: fill += [(lastP[9], f'v_cvt_pk_bf16_f32 v{P9 + i}, v{S9 + 2 * i}, v{S9 + 2 * i + 1}') for i in range(2)]
    for i in range(nb): P.extend(RD(i))
    if OPT['stamps'] == 1: stamp(7)
    for i in range(nA):
        P.extend(MF(i))
        if i + nb < nA: P.extend(RD(i + nb))
        if i + nb - nA == DL: P.extend(sync('K1_Y0', False))
    if OPT['pa'] != OPT['pc']: P(f's_setprio {OPT["pc"]}')
    P.extend(kupd + mx[:-1]); P('s_branch K1_RARE1\nK1_CPB:')
    P(f's_mov_b32 s{sRARE}, 0')
    for i, (_, t) in enumerate(fill):
        P(t)
        if i == len(fill) - 12:
            P.extend(sync('K1_XP', True))
            for jj in range(nb): P.extend(RD(jj))
    P('K1_TOP:')
    if OPT['pa'] != OPT['pc']: P(f's_setprio {OPT["pa"]}')
    if OPT['stamps'] == 2: stamp(7, 3); stamp(11, 4)
    for i in range(nA):
        P.extend(MF(i))
        j = i + nb - nA
        if j < 0: P.extend(RD(i + nb))
        elif j == DL:
            P.extend(sync('K1_Y', False))
            for jj in range(DL + 1): P.extend(RD(nA + jj))
        elif j > DL: P.extend(RD(i + nb))
        if i == 2: P.extend(vupd)
        if i == 4: P.extend(book[:5])
        if i == 7: P.extend(book[5:])
        if i in (1, 5, 9, 13): P.extend(dmaV[(i - 1) // 4])
    if OPT['stamps'] == 2: stamp(8, 3)
    if OPT['pa'] != OPT['pc']: P(f's_setprio {OPT["pc"]}')
    cost = lambda t: 2 if 'exp' in t else (0 if 'BR' in t else 1)
    full = [(0, t) for t in kupd + mx] + [(0, 'BR')] + fill
    tot = sum(cost(t) for _, t in full)
    pend = list(full); acc = 0; cw = 0; wsum = sum(it['w'] for it in itC)
    for c in range(len(itC)):
        i = nA + c
        P.extend(MF(i)); cw += itC[c]['w']
        j = i + nb - N
        if j < 0: P.extend(RD(i + nb))
        elif j == DL:
            P.extend(sync('K1_X', True))
            for jj in range(DL + 1): P.extend(RD(jj))
        elif j > DL: P.extend(RD(i + nb))
        if c in (1, 5, 9, 13): P.extend(dmaK[(c - 1) // 4])
        goal = tot * min(1.0, cw / (wsum - 32))
        q = 0
        while q < len(pend) and acc + cost(pend[q][1]) <= goal + 1:
            if pend[q][0] > c: q += 1; continue
            acc += cost(pend[q][1]); t = pend.pop(q)[1]
            P('s_cbranch_vccnz K1_RARE1\nK1_R1B:' if t == 'BR' else t)
    for _, t in pend: P(t)
    if OPT['stamps'] == 2: stamp(10, 3)
    P(f"""
    s_add_u32 s{sCNT}, s{sCNT}, 1
    s_add_u32 s3, s{sCNT}, s{sRARE}
    s_cmp_lt_u32 s3, 8
    s_cbranch_scc1 K1_TOP
    s_cmp_lg_u32 s{sRARE}, 0
    s_cbranch_scc1 K1_RARE2
    K1_NEXT:
    s_cmp_lt_u32 s{sCNT}, 8
    s_cbranch_scc1 K1_TOP
    s_branch K1_PVO
    """)
    P(f"""
    K1_RARE1:
    v_mov_b32 v{X0}, v{T0}
    v_mov_b32 v{X1}, v{T1}
    v_permlane32_swap_b32 v{T0}, v{X0}
    v_permlane32_swap_b32 v{T1}, v{X1}
    v_max3_f32 v{T0}, v{T0}, v{X0}, s{sCL}
    v_max_f32 v{T1}, v{T1}, v{X1}
    v_mov_b32 v{X1}, v{T1}
    v_max_f32 v{AL}, 0, v{T0}
    v_permlane16_swap_b32 v{T1}, v{X1}
    v_max3_f32 v{T1}, v{T1}, v{X1}, s{sCL}
    v_max_f32 v{AL9}, 0, v{T1}
    v_exp_f32 v{AL}, -v{AL}
    v_exp_f32 v{AL9}, -v{AL9}
    """)
    for i in range(32): P(f'v_sub_f32 v{S + i}, v{S + i}, v{T0}')
    for i in range(16): P(f'v_sub_f32 v{CN + i}, v{CN + i}, v{T0}')
    for i in range(4): P(f'v_sub_f32 v{S9 + i}, v{S9 + i}, v{T1}')
    for i in range(4): P(f'v_sub_f32 v{CN9 + i}, v{CN9 + i}, v{T1}')
    P(f"""
    v_mul_f32 v{L}, v{L}, v{AL}
    v_mul_f32 v{L9}, v{L9}, v{AL9}
    s_mov_b32 s{sT}, {f2u(8.0)}
    s_cmp_lg_u32 s{sCL}, 0
    s_mov_b32 s{sCL}, 0
    s_mov_b32 s{sRARE}, 8
    s_cbranch_scc1 K1_CPB
    s_branch K1_R1B
    K1_RARE2:
    """)
    for i in range(64): P(f'v_mul_f32 v{O + i}, v{O + i}, v{AL}')
    for i in range(32): P(f'v_mul_f32 v{O9 + i}, v{O9 + i}, v{AL9}')
    P(f"""
    s_mov_b32 s{sRARE}, 0
    s_branch K1_NEXT
    K1_PVO:
    """)
    if OPT['stamps'] == 1: stamp(3)
    P.extend(vupd)
    if OPT['fused']:
        P(f"""
        s_and_b32 s{sKP}, s2, 3
        s_mul_i32 s6, s{sKP}, {1024 * 1152}
        s_add_u32 s8, s100, s6
        s_addc_u32 s9, s101, 0
        s_sub_u32 s10, {4096 * 1152}, s6
        s_mov_b32 s11, 0x20000
        """)
        if OPT['wot']:
            P(f"""
            s_cmp_lt_u32 s{sW}, 4
            s_cbranch_scc0 K1_WT
            s_lshr_b32 s6, s2, 3
            s_lshl_b32 s6, s6, 2
            s_add_u32 s6, s6, s{sW}
            s_mul_i32 s6, s6, {72 * 128}
            v_lshlrev_b32 v{Q}, 7, v{TID}
            buffer_load_dword v{Q + 1}, v{Q}, s[8:11], s6 offen {OPT['nt_wo']}
            s_add_u32 s6, s6, 8192
            s_mov_b64 exec, 0xff
            buffer_load_dword v{Q + 2}, v{Q}, s[8:11], s6 offen {OPT['nt_wo']}
            s_mov_b64 exec, -1
            K1_WT:
            """)
    P.extend(sync('K1_Y8', False, 'vmcnt(0)'))
    for i in range(nb): P.extend(RD(nA + i))
    groups = [MF(nA + c) + (RD(nA + c + nb) if c + nb < len(itC) else []) for c in range(len(itC))]
    epi = f'''
    s_mul_i32 s6, s{sBR}, {WS_O_BR}
    s_add_u32 s20, s66, s6
    s_addc_u32 s21, s67, 0
    s_mov_b32 s22, {WS_O_BR}
    s_mov_b32 s23, 0x20000
    s_lshl_b32 s6, s{sJ}, 1
    s_add_u32 s6, s6, s{sP}
    s_lshl_b32 s6, s6, 13
    s_lshl_b32 s7, s{sB}, 2
    s_add_u32 s7, s7, s{sWP}
    s_lshl_b32 s7, s7, 18
    s_add_u32 s{sSK}, s6, s7
    s_add_u32 s{sSV}, s{sSK}, 4096
    s_lshr_b32 s7, s{sB}, 1
    s_add_u32 s7, s7, 32
    s_lshl_b32 s7, s7, 18
    s_add_u32 s{sIS}, s6, s7
    s_lshl_b32 s7, s{sWP}, 11
    s_add_u32 s{sIS}, s{sIS}, s7
    s_and_b32 s7, s{sB}, 1
    s_lshl_b32 s7, s7, 8
    s_add_u32 s{sIS}, s{sIS}, s7
    v_mov_b32 v{T0}, v{L}
    v_mov_b32 v{T1}, v{L9}
    v_lshlrev_b32 v{VOK}, 4, v{TID}
    v_permlane32_swap_b32 v{L}, v{T0}
    v_permlane32_swap_b32 v{L9}, v{T1}
    v_add_f32 v{L}, v{L}, v{T0}
    v_add_f32 v{L9}, v{L9}, v{T1}
    v_mov_b32 v{T1}, v{L9}
    v_rcp_f32 v{AL}, v{L}
    v_permlane16_swap_b32 v{L9}, v{T1}
    v_add_f32 v{CN9 + 1}, v{L9}, v{T1}
    '''.strip().split('\n')
    for i, g in enumerate(groups):
        P.extend(g)
        if i < len(epi) // 2: P.extend(epi[2 * i:2 * i + 2])
    P.extend(epi[2 * (len(epi) // 2):] if len(groups) >= len(epi) // 2 else epi[2 * len(groups):])
    P.extend(sync('K1_X9', True, 'vmcnt(2)' if OPT['fused'] and OPT['wot'] else 'vmcnt(0)'))
    P(f'''
    s_lshl_b32 s6, s{sW}, 13
    s_add_u32 s6, s6, 65536
    v_add_u32 v{T0}, s6, v{VOK}
    v_and_b32 v{T1}, 15, v{TID}
    v_lshlrev_b32 v{T1}, 3, v{T1}
    s_lshl_b32 s7, s{sW}, 7
    s_add_u32 s7, s7, 131072
    v_add_u32 v{X0}, s7, v{T1}
    ds_write_b64 v{X0}, {vr(CN9, 2)}
    ''')
    for d9 in range(8): P(f'ds_write_b128 v{T0}, {vr(O9 + 4 * d9, 4)} offset:{d9 * 1024}')
    os_ = 'sc1' if OPT['fused'] else OPT['ostore']
    for dt in range(4):
        for i in range(16): P(f'v_mul_f32 v{O + 16 * dt + i}, v{O + 16 * dt + i}, v{AL}')
        for hf in range(2):
            d = S + 8 * dt + 4 * hf
            for i in range(4): P(f'v_cvt_pk_bf16_f32 v{d + i}, v{O + 16 * dt + 8 * hf + 2 * i}, v{O + 16 * dt + 8 * hf + 2 * i + 1}')
            ks = 2 * dt + hf
            P(f'buffer_store_dwordx4 {vr(d, 4)}, v{VOK}, s[20:23], s{sSK if ks < 4 else sSV} offen offset:{(ks & 3) * 1024} {os_}')
    P('s_barrier')
    P(f'''
    s_lshl_b32 s6, s{sP}, 9
    s_add_u32 s6, s6, 131072
    v_add_u32 v{X0}, s6, v{T1}
    s_lshl_b32 s6, s{sP}, 15
    s_lshl_b32 s7, s{sWP}, 11
    s_add_u32 s6, s6, s7
    s_add_u32 s6, s6, 65536
    v_add_u32 v{T0}, s6, v{VOK}
    ''')
    ST = 0
    for w in range(4): P(f'ds_read_b64 {vr(ST + 2 * w, 2)}, v{X0} offset:{w * 128}')
    for w in range(4):
        for t in range(2): P(f'ds_read_b128 {vr(8 + 8 * w + 4 * t, 4)}, v{T0} offset:{w * 8192 + t * 1024}')
    P(f'''
    v_min3_f32 v40, v0, v2, v4
    v_min_f32 v40, v40, v6
    ''')
    for w in range(4): P(f'v_sub_f32 v{2 * w}, v40, v{2 * w}')
    for w in range(4): P(f'v_exp_f32 v{2 * w}, v{2 * w}')
    P(f'''
    v_lshrrev_b32 v42, 5, v{TID}
    v_bfe_u32 v43, v{TID}, 4, 1
    v_mul_f32 v41, v0, v1
    v_fmac_f32 v41, v2, v3
    v_fmac_f32 v41, v4, v5
    v_fmac_f32 v41, v6, v7
    v_rcp_f32 v41, v41
    v_lshlrev_b32 v44, 1, v{T1}
    v_lshl_add_u32 v44, v42, 9, v44
    v_lshl_add_u32 v44, v43, 3, v44
    ''')
    for w in range(4): P(f'v_mul_f32 v{2 * w}, v{2 * w}, v41')
    for i in range(8): P(f'v_mul_f32 v{8 + i}, v{8 + i}, v0')
    for w in range(1, 4):
        for i in range(8): P(f'v_fmac_f32 v{8 + i}, v{8 + 8 * w + i}, v{2 * w}')
    for t in range(2):
        P(f'v_cvt_pk_bf16_f32 v{46 + 2 * t}, v{8 + 4 * t}, v{9 + 4 * t}')
        P(f'v_cvt_pk_bf16_f32 v{47 + 2 * t}, v{10 + 4 * t}, v{11 + 4 * t}')
        P(f'buffer_store_dwordx2 {vr(46 + 2 * t, 2)}, v44, s[20:23], s{sIS} offen offset:{t * 1024} {os_}')
    if OPT['fused']: phase2(P, stamp, locals())
    if OPT['stamps']:
        P('K1_STAMPS:' if OPT['fused'] else 's_waitcnt vmcnt(0)')
        if not OPT['fused']: stamp(4)
        P(f'''
        s_waitcnt lgkmcnt(0)
        s_add_u32 s20, s66, {WS_STAMP}
        s_addc_u32 s21, s67, 0
        s_mov_b32 s22, 0x100000
        s_mov_b32 s23, 0x20000
        s_lshl_b32 s6, s2, 3
        s_add_u32 s6, s6, s{sW}
        s_lshl_b32 s6, s6, 7
        v_mov_b32 v2, s6
        s_mov_b64 exec, 1
        ''')
        if OPT['dbgst']:
            P('s_mov_b32 s20, s64\ns_mov_b32 s21, s65\ns_mov_b32 s22, 256\nv_mov_b32 v2, 0\ns_not_b32 s70, s70')
            for i, k in enumerate([0, 1, 2, 7, 3, 4, 5, 6, 9, 10, 11, 8]):
                P(f'v_mov_b32 v4, s{70 + 2 * k}\nbuffer_atomic_umax v4, v2, s[20:23], 0 offen offset:{4 + 4 * i}\ns_nop 1')
        for k in range(0 if OPT['dbgst'] else 15):
            P(f'v_mov_b32 v4, s{70 + 2 * k}\nv_mov_b32 v5, s{71 + 2 * k}\nbuffer_store_dwordx2 v[4:5], v2, s[20:23], 0 offen offset:{8 * k}\ns_nop 1')
    P('K1_END:\ns_endpgm')
    a0 = [i for i, x in enumerate(P.ins) if x.text == 'K1_G1:'][0]; a1 = [i for i, x in enumerate(P.ins) if x.text == 'K1_PVO:'][0]
    keep = []
    kp0 = [i for i, x in enumerate(P.ins) if x.text == 'K1_G1:'][0]; kp1 = [i for i, x in enumerate(P.ins) if x.text == 'K1_QL:'][0]
    for i, x in enumerate(P.ins):
        if a0 < i < a1:
            if OPT['nodma'] and x.dma and not (kp0 < i < kp1): continue
            if OPT['nobar'] and x.kind == 'barrier': continue
            if OPT['noexp'] and x.kind in ('valu', 'trans') and ('exp' in x.text or 'v_add_f32' in x.text or 'cvt_pk' in x.text or 'max3' in x.text): continue
            if OPT['nolds'] and x.kind == 'ds_r': continue
        keep.append(x)
    P.ins = keep
    return P.finish()

def k2():
    P = Prog()
    NB = OPT['k2nb']; STG = 40960
    ACC = [[16 * (2 * i + j) for j in range(2)] for i in range(3)]
    SA = dict(A=[96, 100, 104], B=[108, 112]); SB = dict(A=[116, 120, 124], B=[128, 132])
    AA = [136, 137, 138]; AB = 139; VW, VO, TID = 140, 141, 142
    sW, sWN, sWQ, sBR, sKS, sQB, sN3, sIDX = 24, 25, 26, 27, 28, 29, 30, 31
    sCNT, sIB, sDL, sSW, sSO, sTMP, sMW, sMO, sIP, sOST, sWST = 32, 33, 34, 35, 36, 37, 38, 39, 40, 41, 42
    P(f'''
    s_cmp_ge_u32 s2, 216
    s_cbranch_scc1 K2_END
    s_and_b32 s3, s2, 7
    s_lshr_b32 s{sBR}, s3, 2
    s_and_b32 s{sKS}, s3, 3
    s_mul_i32 s6, s{sBR}, 40
    s_add_u32 s4, s0, s6
    s_addc_u32 s5, s1, 0
    s_load_dwordx2 s[56:57], s[4:5], 32
    s_load_dwordx2 s[58:59], s[0:1], 96
    v_lshrrev_b32 v1, 6, v0
    v_and_b32 v{TID}, 63, v0
    v_readfirstlane_b32 s{sW}, v1
    s_lshr_b32 s{sIDX}, s2, 3
    s_mul_i32 s{sQB}, s{sIDX}, 43
    s_lshr_b32 s{sQB}, s{sQB}, 7
    s_mul_i32 s6, s{sQB}, 3
    s_sub_u32 s{sN3}, s{sIDX}, s6
    s_and_b32 s{sWN}, s{sW}, 1
    s_lshr_b32 s{sWQ}, s{sW}, 1
    v_lshrrev_b32 v2, 3, v{TID}
    v_and_b32 v3, 7, v{TID}
    v_bfe_u32 v4, v{TID}, 4, 1
    v_lshlrev_b32 v4, 2, v4
    v_xor_b32 v3, v3, v4
    s_lshl_b32 s6, s{sW}, 3
    v_add_u32 v2, s6, v2
    v_mul_u32_u24 v2, 1152, v2
    v_lshl_add_u32 v{VW}, v3, 4, v2
    v_lshlrev_b32 v{VO}, 4, v{TID}
    s_mul_i32 s6, s{sKS}, {1024 * 1152}
    s_mul_i32 s7, s{sN3}, 384
    s_add_u32 s6, s6, s7
    s_mul_i32 s7, s{sBR}, {WS_O_BR}
    s_lshl_b32 s3, s{sQB}, 20
    s_add_u32 s7, s7, s3
    s_lshl_b32 s3, s{sKS}, 16
    s_add_u32 s7, s7, s3
    s_lshl_b32 s{sMW}, s{sW}, 10
    s_lshl_b32 s{sMO}, s{sW}, 12
    s_add_u32 s{sMO}, s{sMO}, 24576
    s_mov_b32 s{sSW}, 0
    s_lshl_b32 s{sSO}, s{sW}, 18
    s_waitcnt lgkmcnt(0)
    s_add_u32 s8, s56, s6
    s_addc_u32 s9, s57, 0
    s_sub_u32 s10, {4096 * 1152}, s6
    s_mov_b32 s11, 0x20000
    s_add_u32 s12, s58, s7
    s_addc_u32 s13, s59, 0
    s_mov_b32 s14, 0x100000
    s_mov_b32 s15, 0x20000
    ''')
    def issue():
        o = f's_add_u32 m0, s{sIB}, s{sMO}\ns_nop 0\n'
        for e in range(4): o += f'buffer_load_dwordx4 v{VO}, s[12:15], s{sSO} offen offset:{e * 1024} {OPT["nt_o"]} lds\n'
        o += f's_add_u32 s{sSO}, s{sSO}, 4096\n'
        for gr in range(3):
            for e in range(2):
                o += f's_add_u32 m0, s{sIB}, s{sMW}\n' if (gr, e) == (0, 0) else 's_add_u32 m0, m0, 4096\n'
                o += f's_add_u32 s{sTMP}, s{sSW}, {e * 32 * 1152 + gr * 128}\n'
                o += f'buffer_load_dwordx4 v{VW}, s[8:11], s{sTMP} offen {OPT["nt_wo"]} lds\n'
        o += f's_add_u32 s{sSW}, s{sSW}, {64 * 1152}\n'
        return o
    P(f's_mov_b32 s{sIB}, 0\ns_mov_b32 s{sCNT}, 0\nK2_PRO:')
    P(issue())
    P(f'''
    s_add_u32 s{sIB}, s{sIB}, {STG}
    s_add_u32 s{sCNT}, s{sCNT}, 1
    s_cmp_lt_u32 s{sCNT}, {NB}
    s_cbranch_scc1 K2_PRO
    v_lshrrev_b32 v2, 4, v{TID}
    v_bfe_u32 v10, v{TID}, 2, 2
    v_and_b32 v11, 3, v{TID}
    v_lshrrev_b32 v12, 5, v{TID}
    v_and_b32 v13, 1, v2
    v_and_b32 v15, 1, v11
    v_lshl_add_u32 v15, v13, 1, v15
    v_lshrrev_b32 v16, 1, v10
    v_lshlrev_b32 v16, 2, v16
    v_xor_b32 v15, v15, v16
    v_lshl_add_u32 v17, v12, 3, v10
    v_lshlrev_b32 v17, 7, v17
    v_lshl_add_u32 v14, v15, 4, v17
    v_lshrrev_b32 v15, 1, v11
    v_lshl_add_u32 v14, v15, 3, v14
    v_xor_b32 v15, 64, v14
    s_cmp_eq_u32 s{sWN}, 0
    s_cselect_b64 vcc, -1, 0
    s_cselect_b32 s6, 0, 8192
    s_cselect_b32 s7, 0, 16384
    s_cselect_b32 s3, 8192, 16384
    v_cndmask_b32 v16, v15, v14, vcc
    v_cndmask_b32 v17, v14, v15, vcc
    v_add_u32 v{AA[0]}, s6, v16
    v_add_u32 v{AA[1]}, s7, v17
    v_add_u32 v{AA[2]}, s3, v16
    s_lshl_b32 s6, s{sWQ}, 13
    s_add_u32 s6, s6, 24576
    v_add_u32 v{AB}, s6, v{VO}
    ''')
    for r in range(96): P(f'v_mov_b32 v{r}, 0')
    P(f'''
    s_mov_b32 s{sIB}, 0
    s_mov_b32 s{sCNT}, 0
    s_mov_b32 s{sDL}, {STG}
    s_mov_b32 s{sOST}, 4096
    s_mov_b32 s{sWST}, {64 * 1152}
    s_waitcnt vmcnt({10 * (NB - 1)})
    s_barrier
    ''')
    def rd(st, kk):
        o = []
        for j in range(2): o.append(f'ds_read_b128 {vr(st["B"][j], 4)}, v{AB} offset:{j * 4096 + kk * 1024}')
        for i in range(3):
            for j in range(2): o.append(f'ds_read_b64_tr_b16 {vr(st["A"][i] + 2 * j, 2)}, v{AA[i]} offset:{kk * 2048 + j * 512}')
        return o
    def mm(st):
        return [f'v_mfma_f32_32x32x16_bf16 {vr(ACC[i][j], 16)}, {vr(st["A"][i], 4)}, {vr(st["B"][j], 4)}, {vr(ACC[i][j], 16)}' for i in range(3) for j in range(2)]
    def step(cur, rds, extra=(), dm=()):
        m = mm(cur); extra = list(extra); rds = list(rds); dm = list(dm) + [[]] * 3
        P.extend(rds[:4]); P(m[0]); P.extend(rds[4:6]); P(m[1]); P.extend(rds[6:]); P.extend(dm[0]); P(m[2])
        P.extend(extra[:2]); P(m[3]); P.extend(extra[2:4]); P.extend(dm[1]); P(m[4]); P.extend(extra[4:]); P(m[5]); P.extend(dm[2])
    dms = []
    for e in range(4):
        g = [f's_add_u32 m0, s{sIP}, s{sMO}', 's_nop 0'] if e == 0 else []
        g.append(f'buffer_load_dwordx4 v{VO}, s[12:15], s{sSO} offen offset:{e * 1024} {OPT["nt_o"]} lds')
        if e == 3: g.append(f's_add_u32 s{sSO}, s{sSO}, s{sOST}')
        dms.append(g)
    for gr in range(3):
        for e in range(2):
            g = [f's_add_u32 m0, s{sIP}, s{sMW}' if (gr, e) == (0, 0) else 's_add_u32 m0, m0, 4096',
                 f's_add_u32 s{sTMP}, s{sSW}, {e * 32 * 1152 + gr * 128}',
                 f'buffer_load_dwordx4 v{VW}, s[8:11], s{sTMP} offen {OPT["nt_wo"]} lds']
            if (gr, e) == (2, 1): g.append(f's_add_u32 s{sSW}, s{sSW}, s{sWST}')
            dms.append(g)
    P.extend(rd(SA, 0))
    P(f'''
    s_branch K2_E
    K2_L:
    ''')
    step(SA, rd(SB, 1), dm=dms[3:6])
    step(SB, rd(SA, 2), dm=dms[6:8])
    step(SA, rd(SB, 3), [f'v_add_u32 v{r}, s{sDL}, v{r}' for r in AA + [AB]], dm=dms[8:10])
    P('s_branch K2_M\nK2_E:')
    step(SA, rd(SB, 1))
    step(SB, rd(SA, 2))
    step(SA, rd(SB, 3), [f'v_add_u32 v{r}, s{sDL}, v{r}' for r in AA + [AB]])
    P(f'''
    K2_M:
    s_cmp_eq_u32 s{sCNT}, {16 - NB}
    s_cbranch_scc0 K2_W
    s_mov_b32 s{sSO}, 0x40000000
    s_mov_b32 s{sSW}, 0x40000000
    s_mov_b32 s{sOST}, 0
    s_mov_b32 s{sWST}, 0
    K2_W:
    s_mov_b32 s{sIP}, s{sIB}
    s_waitcnt vmcnt({10 * (NB - 2)})
    s_barrier
    ''')
    step(SB, rd(SA, 0), [f's_add_u32 s{sIB}, s{sIB}, {STG}', f's_cmp_eq_u32 s{sIB}, {NB * STG}', f's_cselect_b32 s{sIB}, 0, s{sIB}',
                         f's_cmp_eq_u32 s{sIB}, {(NB - 1) * STG}', f's_cselect_b32 s{sDL}, {-(NB - 1) * STG & 0xffffffff}, {STG}'], dm=dms[0:3])
    P(f's_add_u32 s{sCNT}, s{sCNT}, 1\ns_cmp_lt_u32 s{sCNT}, 16\ns_cbranch_scc1 K2_L')
    P(f'''
    s_mul_i32 s6, s{sBR}, 27
    s_add_u32 s6, s6, s{sIDX}
    s_lshl_b32 s6, s6, 2
    s_add_u32 s6, s6, s{sKS}
    s_lshl_b32 s6, s6, 2
    s_add_u32 s6, s6, s{sW}
    s_mul_i32 s6, s6, 24576
    s_add_u32 s6, s6, {WS_PART}
    s_add_u32 s16, s58, s6
    s_addc_u32 s17, s59, 0
    s_mov_b32 s18, 24576
    s_mov_b32 s19, 0x20000
    ''')
    for t in range(6):
        P(f's_mov_b32 s3, {t * 4096}')
        for qd in range(4): P(f'buffer_store_dwordx4 {vr(16 * t + 4 * qd, 4)}, v{VO}, s[16:19], s3 offen offset:{qd * 1024}')
    P('K2_END:\ns_endpgm')
    return P.finish()

def k3():
    P = Prog()
    P(f'''
    s_cmp_ge_u32 s2, 648
    s_cbranch_scc1 K3_END
    s_load_dwordx2 s[56:57], s[0:1], 80
    s_load_dwordx2 s[58:59], s[0:1], 96
    v_lshrrev_b32 v1, 6, v0
    v_and_b32 v2, 63, v0
    v_readfirstlane_b32 s3, v1
    s_lshl_b32 s4, s2, 2
    s_add_u32 s4, s4, s3
    s_and_b32 s20, s4, 1
    s_lshr_b32 s4, s4, 1
    s_mul_hi_u32 s5, s4, {(2**32 + 5) // 6}
    s_mul_i32 s6, s5, 6
    s_sub_u32 s21, s4, s6
    s_and_b32 s22, s5, 3
    s_lshr_b32 s23, s5, 2
    s_cmp_ge_u32 s23, 27
    s_cselect_b32 s24, 1, 0
    s_mul_i32 s6, s24, 27
    s_sub_u32 s25, s23, s6
    s_mul_i32 s26, s25, 43
    s_lshr_b32 s26, s26, 7
    s_mul_i32 s6, s26, 3
    s_sub_u32 s27, s25, s6
    s_lshl_b32 s6, s23, 4
    s_add_u32 s6, s6, s22
    s_mul_i32 s6, s6, 24576
    s_lshl_b32 s7, s21, 12
    s_add_u32 s6, s6, s7
    s_lshl_b32 s7, s20, 11
    s_add_u32 s6, s6, s7
    s_add_u32 s6, s6, {WS_PART}
    v_lshlrev_b32 v3, 4, v2
    s_waitcnt lgkmcnt(0)
    s_add_u32 s8, s58, s6
    s_addc_u32 s9, s59, 0
    s_mov_b32 s10, {4 * 98304}
    s_mov_b32 s11, 0x20000
    s_mov_b32 s12, s56
    s_mov_b32 s13, s57
    s_mov_b32 s14, {1152 * 2304}
    s_mov_b32 s15, 0x20000
    ''')
    for k in range(4):
        P(f's_mov_b32 s3, {k * 98304}')
        P(f'buffer_load_dwordx4 {vr(8 + 8 * k, 4)}, v3, s[8:11], s3 offen')
        P(f'buffer_load_dwordx4 {vr(12 + 8 * k, 4)}, v3, s[8:11], s3 offen offset:1024')
    P(f'''
    s_lshr_b32 s28, s22, 1
    s_lshl_b32 s28, s28, 1
    s_and_b32 s6, s21, 1
    s_add_u32 s28, s28, s6
    s_and_b32 s6, s22, 1
    s_mul_i32 s6, s6, 96
    s_lshr_b32 s7, s21, 1
    s_lshl_b32 s7, s7, 5
    s_add_u32 s6, s6, s7
    s_mul_i32 s7, s27, 192
    s_add_u32 s6, s6, s7
    s_lshl_b32 s7, s20, 4
    s_add_u32 s6, s6, s7
    s_mul_i32 s7, s24, 576
    s_add_u32 s6, s6, s7
    s_lshl_b32 s29, s6, 1
    v_and_b32 v4, 31, v2
    v_lshrrev_b32 v5, 5, v2
    v_and_b32 v6, 15, v2
    v_bfe_u32 v7, v2, 4, 1
    v_mul_u32_u24 v7, 144, v7
    v_add_u32 v6, v6, v7
    s_mul_i32 s6, s26, 144
    s_lshl_b32 s7, s28, 5
    s_add_u32 s6, s6, s7
    s_mul_i32 s7, s28, 288
    s_add_u32 s7, s7, 128
    s_cmp_lt_u32 s26, 8
    s_cselect_b64 vcc, -1, 0
    s_cselect_b32 s6, s6, s7
    v_cndmask_b32 v4, v6, v4, vcc
    v_add_u32 v4, s6, v4
    v_mul_u32_u24 v4, 2304, v4
    v_lshl_add_u32 v4, v5, 4, v4
    s_waitcnt vmcnt(4)
    ''')
    for i in range(8): P(f'v_add_f32 v{8 + i}, v{8 + i}, v{16 + i}')
    P('s_waitcnt vmcnt(0)')
    for i in range(8): P(f'v_add_f32 v{24 + i}, v{24 + i}, v{32 + i}')
    for i in range(8): P(f'v_add_f32 v{8 + i}, v{8 + i}, v{24 + i}')
    for i in range(4): P(f'v_cvt_pk_bf16_f32 v{40 + i}, v{8 + 2 * i}, v{9 + 2 * i}')
    P('buffer_store_dwordx4 v[40:43], v4, s[12:15], s29 offen')
    P('K3_END:\ns_endpgm')
    return P.finish()

def desc(name, vg, sg=102):
    return f'''.amdhsa_kernel {name}
  .amdhsa_next_free_vgpr {vg}
  .amdhsa_next_free_sgpr {sg}
  .amdhsa_accum_offset {(vg + 3) // 4 * 4}
  .amdhsa_group_segment_fixed_size 0
  .amdhsa_kernarg_size 104
  .amdhsa_user_sgpr_count 2
  .amdhsa_user_sgpr_kernarg_segment_ptr 1
  .amdhsa_system_sgpr_workgroup_id_x 1
  .amdhsa_float_denorm_mode_32 3
.end_amdhsa_kernel
'''

def main():
    ref = open('cdna_kernels/%s.s.ref' % NAME).read().split('\n')
    hdr = [l for l in ref if l.startswith(';') and '@launch' not in l and 'Override launch' not in l and 'grid=ceil' not in l]
    hdr = hdr[:14]
    ks = [('attn_kernel', k1(), 256, '(256,1,1)', '(%d,1,1)' % OPT['blk'], 163840),
          ('oproj_kernel', k2(), 144, '(216,1,1)', '(256,1,1)', OPT['k2nb'] * 40960),
          ('reduce_kernel', k3(), 48, '(648,1,1)', '(256,1,1)', 0)]
    out = '\n'.join(hdr) + '\n'
    if OPT['fused']:
        ks = [(NAME + '_kernel',) + ks[0][1:]]
        out += f'; @launch grid={ks[0][3]} block={ks[0][4]} lds={ks[0][5]}\n'
    else:
        for n, _, _, g, b, l in ks: out += f'; @launch kernel={n} grid={g} block={b} lds={l}\n'
    out += '.amdgcn_target "amdgcn-amd-amdhsa--gfx950"\n.text\n'
    for n, body, _, _, _, _ in ks:
        out += f'.globl {n}\n.p2align 8\n.type {n},@function\n{n}:\n{body}'
    out += '.section .rodata,"a"\n'
    for n, _, vg, _, _, _ in ks: out += '.p2align 6\n' + desc(n, vg)
    open(sys.argv[1], 'w').write(out)
main()
```

```python
import sys, struct, math
from asmlib import *

NAME = 'concat_heads__mha_block_cached__gqa_block_cached__near_ridge'
def f2u(x): return struct.unpack('<I', struct.pack('<f', x))[0]
CSCALE = f2u(math.log2(math.e) / math.sqrt(128.0))

OPT = dict(nt_kv='nt', nt_w='', nt_x='', ostore='', stamps=0, touch=0, k2nb=3, nt_wo='', nt_o='', nodma=0, nobar=0, noexp=0, nolds=0, prio=0, bdelay=1, blk=512, pa=0, pc=1, pairw=1, qdelay=3, wtouch=0, kvs=11111111, npre=3, dist=4, sq=9, fused=1, p2nb=3, wot=1, ld2='', spin=200000, dbgst=0, probe=-1, pwg=8, pw=4)
for a in sys.argv[2:]:
    k, v = a.split('=')
    OPT[k] = int(v) if (v.lstrip('-').isdigit() and k != 'kvs') else v

WS_O_BR = 36 * 256 * 1024
WS_PART = 0x1400000
WS_FLAG = 0x3000000
WS_STAMP = 0x4000000

def lanes(P, dst, expr_list):
    for e in expr_list: P(e)

def mf32(d, a, b, c=None):
    return f'v_mfma_f32_32x32x16_bf16 {vr(d, 16)}, {vr(a, 4)}, {vr(b, 4)}, {vr(d if c is None else c, 16)}'
def mf16(d, a, b, c=None):
    return f'v_mfma_f32_16x16x32_bf16 {vr(d, 4)}, {vr(a, 4)}, {vr(b, 4)}, {vr(d if c is None else c, 4)}'
def mf16h(d, a, b):
    return f'v_mfma_f32_16x16x16_bf16 {vr(d, 4)}, {vr(a, 2)}, {vr(b, 2)}, {vr(d, 4)}'


def phase2(P, stamp, env):
    sW, sWP, sBR, sE, sKS, TID = env['sW'], env['sWP'], env['sBR'], env['sE'], env['sKP'], env['TID']
    NB = OPT['p2nb']; STG = 40960
    sIDX, sQB, sN3, sCNT, sIB, sDL, sSW, sSO, sTMP, sMW, sMO, sSPIN = 26, 27, 28, 30, 36, 37, 40, 41, 48, 42, 43, 44
    sNEED = 38
    VW, VO, VF, VP = 140, 141, 142, 143
    done = 'K1_STAMPS' if OPT['stamps'] else 'K1_END'
    def poll(lbl, off):
        return f"""
    s_mov_b32 s{sSPIN}, {OPT['spin']}
    {lbl}:
    buffer_load_dword v{VP}, v{VF}, s[52:55], s{off} offen sc1
    s_sub_u32 s{sSPIN}, s{sSPIN}, 1
    s_cbranch_scc1 {lbl}X
    s_waitcnt vmcnt(0)
    v_cmp_eq_u32 vcc, s{sE}, v{VP}
    s_and_b64 s[6:7], vcc, s[{sNEED}:{sNEED + 1}]
    s_cmp_eq_u64 s[6:7], s[{sNEED}:{sNEED + 1}]
    s_cbranch_scc0 {lbl}
    {lbl}X:
    """
    P(f"""
    s_lshr_b32 s{sIDX}, s2, 3
    s_mul_i32 s{sQB}, s{sIDX}, 43
    s_lshr_b32 s{sQB}, s{sQB}, 7
    s_mul_i32 s6, s{sQB}, 3
    s_sub_u32 s{sN3}, s{sIDX}, s6
    s_and_b32 s3, s2, 7
    s_lshl_b32 s{sTMP}, s3, 7
    v_lshlrev_b32 v{VF}, 2, v{TID}
    v_lshlrev_b32 v{VO}, 4, v{TID}
    v_mov_b32 v{VP}, s{sE}
    s_lshl_b32 s6, s{sIDX}, 2
    s_add_u32 s6, s6, s{sTMP}
    s_waitcnt vmcnt(0)
    s_barrier
    """)
    stamp(4)
    P(f"""
    s_cmp_eq_u32 s{sW}, 4
    s_cbranch_scc0 P2_NF
    s_mov_b64 exec, 1
    buffer_store_dword v{VP}, v{VF}, s[52:55], s6 offen sc1
    s_mov_b64 exec, -1
    P2_NF:
    s_cmp_ge_u32 s{sIDX}, 27
    s_cbranch_scc1 {done}
    s_cmp_ge_u32 s{sW}, 4
    s_cbranch_scc1 P2_G1
    """)
    P(f"""
    v_lshrrev_b32 v2, 3, v{TID}
    v_and_b32 v3, 7, v{TID}
    v_bfe_u32 v4, v{TID}, 4, 1
    v_lshlrev_b32 v4, 2, v4
    v_xor_b32 v3, v3, v4
    s_lshl_b32 s6, s{sW}, 3
    v_add_u32 v2, s6, v2
    v_mul_u32_u24 v2, 1152, v2
    v_lshl_add_u32 v{VW}, v3, 4, v2
    s_mul_i32 s{sSW}, s{sN3}, 384
    s_lshl_b32 s{sMW}, s{sW}, 10
    s_lshl_b32 s{sMO}, s{sW}, 12
    s_add_u32 s{sMO}, s{sMO}, 24576
    s_lshl_b32 s{sSO}, s{sQB}, 20
    s_lshl_b32 s3, s{sKS}, 16
    s_add_u32 s{sSO}, s{sSO}, s3
    s_lshl_b32 s3, s{sW}, 18
    s_add_u32 s{sSO}, s{sSO}, s3
    s_lshl_b32 s3, s{sQB}, 2
    s_lshl_b64 s[{sNEED}:{sNEED + 1}], 15, s3
    s_cmp_eq_u32 s{sQB}, 8
    s_cselect_b32 s{sNEED}, -1, s{sNEED}
    s_cselect_b32 s{sNEED + 1}, 0, s{sNEED + 1}
    s_mov_b32 s{sIB}, 0
    """)
    def issW():
        o = ''
        for gr in range(3):
            for e in range(2):
                o += f's_add_u32 m0, s{sIB}, s{sMW}\n' if (gr, e) == (0, 0) else 's_add_u32 m0, m0, 4096\n'
                o += f's_add_u32 s3, s{sSW}, {e * 32 * 1152 + gr * 128}\n'
                o += f'buffer_load_dwordx4 v{VW}, s[8:11], s3 offen {OPT["nt_wo"]} lds\n'
        return o + f's_add_u32 s{sSW}, s{sSW}, {64 * 1152}\n'
    def issO():
        o = f's_add_u32 m0, s{sIB}, s{sMO}\ns_nop 0\n'
        for e in range(4): o += f'buffer_load_dwordx4 v{VO}, s[20:23], s{sSO} offen offset:{e * 1024} {OPT["ld2"]} lds\n'
        return o + f's_add_u32 s{sSO}, s{sSO}, 4096\n'
    adv = f's_add_u32 s{sIB}, s{sIB}, {STG}\ns_cmp_eq_u32 s{sIB}, {NB * STG}\ns_cselect_b32 s{sIB}, 0, s{sIB}\n'
    P('P2_PW:'); P(issW() + adv + 's_cbranch_scc0 P2_PW')
    P(poll('P2_PO', sTMP))
    stamp(5)
    P('P2_PP:'); P(issO() + adv + 's_cbranch_scc0 P2_PP')
    P(f's_waitcnt vmcnt({4 * (NB - 1)})\ns_barrier')
    for s in range(1, NB - 1):
        P(f's_waitcnt vmcnt({4 * (NB - 1 - s) + 10 * (s - 1)})\ns_barrier'); P(issO() + issW() + adv)
    P(f's_mov_b32 s{sCNT}, {NB - 1}\nP2_LD:\ns_waitcnt vmcnt({10 * (NB - 2)})\ns_barrier')
    P(issO() + issW() + adv)
    P(f's_add_u32 s{sCNT}, s{sCNT}, 1\ns_cmp_lt_u32 s{sCNT}, {17 - NB}\ns_cbranch_scc1 P2_LD')
    for s in range(17 - NB, 16): P(f's_waitcnt vmcnt({10 * (15 - s)})\ns_barrier')
    P('s_barrier\ns_branch P2_RED')
    ACC = [[16 * (2 * i + j) for j in range(2)] for i in range(3)]
    SA = dict(A=[96, 100, 104], B=[108, 112]); SB = dict(A=[116, 120, 124], B=[128, 132])
    AA = [136, 137, 138]; AB = 139
    P(f"""
    P2_G1:
    v_lshrrev_b32 v2, 4, v{TID}
    v_bfe_u32 v10, v{TID}, 2, 2
    v_and_b32 v11, 3, v{TID}
    v_lshrrev_b32 v12, 5, v{TID}
    v_and_b32 v13, 1, v2
    v_and_b32 v15, 1, v11
    v_lshl_add_u32 v15, v13, 1, v15
    v_lshrrev_b32 v16, 1, v10
    v_lshlrev_b32 v16, 2, v16
    v_xor_b32 v15, v15, v16
    v_lshl_add_u32 v17, v12, 3, v10
    v_lshlrev_b32 v17, 7, v17
    v_lshl_add_u32 v14, v15, 4, v17
    v_lshrrev_b32 v15, 1, v11
    v_lshl_add_u32 v14, v15, 3, v14
    v_xor_b32 v15, 64, v14
    s_bitcmp0_b32 s{sW}, 0
    s_cselect_b64 vcc, -1, 0
    s_cselect_b32 s6, 0, 8192
    s_cselect_b32 s7, 0, 16384
    s_cselect_b32 s3, 8192, 16384
    v_cndmask_b32 v16, v15, v14, vcc
    v_cndmask_b32 v17, v14, v15, vcc
    v_add_u32 v{AA[0]}, s6, v16
    v_add_u32 v{AA[1]}, s7, v17
    v_add_u32 v{AA[2]}, s3, v16
    s_lshr_b32 s6, s{sWP}, 1
    s_lshl_b32 s6, s6, 13
    s_add_u32 s6, s6, 24576
    v_add_u32 v{AB}, s6, v{VO}
    s_mul_i32 s6, s{sBR}, 27
    s_add_u32 s6, s6, s{sIDX}
    s_lshl_b32 s6, s6, 2
    s_add_u32 s6, s6, s{sKS}
    s_lshl_b32 s6, s6, 2
    s_add_u32 s6, s6, s{sWP}
    s_mul_i32 s6, s6, 24576
    s_add_u32 s6, s6, {WS_PART}
    s_add_u32 s16, s66, s6
    s_addc_u32 s17, s67, 0
    s_mov_b32 s18, 24576
    s_mov_b32 s19, 0x20000
    s_mov_b32 s{sIB}, 0
    s_mov_b32 s{sCNT}, 0
    """)
    for r in range(96): P(f'v_mov_b32 v{r}, 0')
    P('s_barrier')
    stamp(6)
    def rd(st, kk):
        o = [f'ds_read_b128 {vr(st["B"][j], 4)}, v{AB} offset:{j * 4096 + kk * 1024}' for j in range(2)]
        for i in range(3):
            for j in range(2): o.append(f'ds_read_b64_tr_b16 {vr(st["A"][i] + 2 * j, 2)}, v{AA[i]} offset:{kk * 2048 + j * 512}')
        return o
    def step(cur, rds, extra=()):
        m = [mf32(ACC[i][j], cur['A'][i], cur['B'][j]) for i in range(3) for j in range(2)]
        extra = list(extra)
        m[0] += f' ; need {vr(cur["B"][1], 4)}'; m[2] += f' ; need {vr(cur["A"][2], 4)}'
        P(m[0]); P.extend(rds[:3]); P(m[1]); P.extend(rds[3:6]); P(m[2]); P.extend(rds[6:]); P.extend(extra[:2])
        P(m[3]); P.extend(extra[2:5]); P(m[4]); P.extend(extra[5:]); P(m[5])
    P.extend(rd(SA, 0))
    P('P2_L:')
    step(SA, rd(SB, 1), [f's_cmp_eq_u32 s{sIB}, {NB - 1}', f's_cselect_b32 s{sDL}, {-(NB - 1) * STG & 0xffffffff}, {STG}',
                         f's_add_u32 s{sIB}, s{sIB}, 1', f's_cmp_eq_u32 s{sIB}, {NB}', f's_cselect_b32 s{sIB}, 0, s{sIB}'])
    step(SB, rd(SA, 2))
    step(SA, rd(SB, 3), [f'v_add_u32 v{r}, s{sDL}, v{r}' for r in AA + [AB]])
    P('s_barrier')
    step(SB, rd(SA, 0), [f's_add_u32 s{sCNT}, s{sCNT}, 1', f's_cmp_lt_u32 s{sCNT}, 16'])
    P('s_cbranch_scc1 P2_L')
    stamp(9)
    for t in range(6):
        P(f's_mov_b32 s3, {t * 4096}')
        for qd in range(4): P(f'buffer_store_dwordx4 {vr(16 * t + 4 * qd, 4)}, v{VO}, s[16:19], s3 offen offset:{qd * 1024} sc1')
    P(f"""
    P2_RED:
    s_mul_i32 s6, s{sBR}, 27
    s_add_u32 s6, s6, s{sIDX}
    s_lshl_b32 s{sTMP}, s6, 7
    s_add_u32 s{sTMP}, s{sTMP}, 4096
    s_lshl_b32 s7, s{sKS}, 2
    s_add_u32 s7, s7, s{sTMP}
    s_lshl_b32 s6, s6, 4
    s_add_u32 s6, s6, s{sKS}
    s_mul_i32 s6, s6, 24576
    s_lshl_b32 s3, s{sW}, 12
    s_add_u32 s6, s6, s3
    s_add_u32 s6, s6, {WS_PART}
    s_add_u32 s16, s66, s6
    s_addc_u32 s17, s67, 0
    s_mov_b32 s18, {3 * 98304 + 4096}
    s_mov_b32 s19, 0x20000
    s_mov_b32 s12, s68
    s_mov_b32 s13, s69
    s_mov_b32 s14, {1152 * 2304}
    s_mov_b32 s15, 0x20000
    v_mov_b32 v{VP}, s{sE}
    s_mov_b64 s[{sNEED}:{sNEED + 1}], 15
    s_waitcnt vmcnt(0)
    s_barrier
    s_cmp_eq_u32 s{sW}, 7
    s_cbranch_scc0 P2_NG
    s_mov_b64 exec, 1
    buffer_store_dword v{VP}, v{VF}, s[52:55], s7 offen sc1
    s_mov_b64 exec, -1
    P2_NG:
    s_cmp_ge_u32 s{sW}, 6
    s_cbranch_scc1 {done}
    """)
    stamp(10)
    P(f"""
    s_lshr_b32 s45, s{sKS}, 1
    s_lshl_b32 s45, s45, 1
    s_and_b32 s6, s{sW}, 1
    s_add_u32 s45, s45, s6
    s_and_b32 s6, s{sKS}, 1
    s_mul_i32 s6, s6, 96
    s_lshr_b32 s7, s{sW}, 1
    s_lshl_b32 s7, s7, 5
    s_add_u32 s6, s6, s7
    s_mul_i32 s7, s{sN3}, 192
    s_add_u32 s6, s6, s7
    s_mul_i32 s7, s{sBR}, 576
    s_add_u32 s6, s6, s7
    s_lshl_b32 s46, s6, 1
    v_and_b32 v4, 31, v{TID}
    v_lshrrev_b32 v5, 5, v{TID}
    v_and_b32 v6, 15, v{TID}
    v_bfe_u32 v7, v{TID}, 4, 1
    v_mul_u32_u24 v7, 144, v7
    v_add_u32 v6, v6, v7
    s_mul_i32 s6, s{sQB}, 144
    s_lshl_b32 s7, s45, 5
    s_add_u32 s6, s6, s7
    s_mul_i32 s7, s45, 288
    s_add_u32 s7, s7, 128
    s_cmp_lt_u32 s{sQB}, 8
    s_cselect_b64 vcc, -1, 0
    s_cselect_b32 s6, s6, s7
    v_cndmask_b32 v4, v6, v4, vcc
    v_add_u32 v4, s6, v4
    v_mul_u32_u24 v4, 2304, v4
    v_lshl_add_u32 v4, v5, 4, v4
    """)
    P(poll('P2_PR', sTMP))
    stamp(11)
    for k in range(4):
        P(f's_mov_b32 s3, {k * 98304}')
        for qd in range(4): P(f'buffer_load_dwordx4 {vr(16 + 16 * k + 4 * qd, 4)}, v{VO}, s[16:19], s3 offen offset:{qd * 1024} sc1')
    P('s_waitcnt vmcnt(8)')
    for i in range(16): P(f'v_add_f32 v{16 + i}, v{16 + i}, v{32 + i}')
    P('s_waitcnt vmcnt(0)')
    for i in range(16): P(f'v_add_f32 v{48 + i}, v{48 + i}, v{64 + i}')
    for i in range(16): P(f'v_add_f32 v{16 + i}, v{16 + i}, v{48 + i}')
    for hf in range(2):
        for i in range(4): P(f'v_cvt_pk_bf16_f32 v{80 + 4 * hf + i}, v{16 + 8 * hf + 2 * i}, v{17 + 8 * hf + 2 * i}')
        P(f'buffer_store_dwordx4 {vr(80 + 4 * hf, 4)}, v4, s[12:15], s46 offen offset:{hf * 32}')
    if OPT['stamps']:
        P('s_waitcnt vmcnt(0)'); stamp(8)

def k1():
    P = Prog()
    O, S, CN, Q, PP, O9, Q9, S9, CN9, P9 = 0, 64, 96, 112, 144, 160, 192, 208, 212, 216
    L, L9, VOK, VOV, AK, AK9, AV9, TID = 218, 219, 220, 221, 222, 223, 224, 225
    VA = 226
    T0, T1, AL, AL9, X0, X1 = 230, 231, 232, 233, 234, 235
    FB = [236, 240, 244, 248, 252]
    ACC = [[0, 16, 32, 48], [64, 80, 144, 176]]; ACC9 = [[160, 164], [168, 172]]
    QW = [230, 231, 232, 233]; QX = [234, 235]; QX9, QW9, VOW, VOX, HOLD = 216, 217, 218, 219, 212
    QB, QB9 = [96, 100], 104
    QF = [112, 116, 120, 124, 128, 132, 136, 140, 236, 240]
    sW, sWP, sP, sB, sJ, sBR = 24, 25, 26, 27, 28, 29
    sCNT, sW0, sX, sMC, sIB, sDL = 30, 31, 33, 35, 36, 37
    sEX = 38
    sIS, sSK, sSV, sDK, sDV, sT, sCL, sRARE, sTMP, sTM2, sMW, sKP, sVP, sE = 40, 41, 42, 43, 44, 45, 46, 47, 48, 49, 50, 51, 32, 34
    NSB = 6; STGS = 25600; STG0 = 163840 - NSB * STGS
    QXCH, Q9B = 131072, 98304 + 16384
    nk, ntw = OPT['nt_kv'], OPT['nt_w']
    def stamp(k, at=None):
        if OPT['stamps']:
            if at is not None: P(f's_cmp_lg_u32 s{sCNT}, {at}\ns_cbranch_scc1 K1_ST{k}_{len(P.ins)}'); lbl = P.ins[-1].target
            P(('s_memtime' if OPT['stamps'] == 2 else 's_memrealtime') + ' s[%d:%d]' % (70 + 2 * k, 71 + 2 * k))
            if at is not None: P(f'{lbl}:')
            if k == 1: P('s_memtime s[96:97]')
            if k == 4: P('s_memtime s[98:99]')
    P(f"""
    s_cmp_ge_u32 s2, 256
    s_cbranch_scc1 K1_END
    s_bfe_u32 s{sBR}, s2, 0x10002
    s_mul_i32 s6, s{sBR}, 40
    s_add_u32 s4, s0, s6
    s_addc_u32 s5, s1, 0
    s_load_dwordx8 s[56:63], s[4:5], 0
    s_load_dwordx4 s[64:67], s[0:1], 88
    s_load_dwordx2 s[68:69], s[0:1], 80
    s_load_dwordx2 s[100:101], s[4:5], 32
    """)
    if OPT['stamps']:
        for k in range(70, 100, 2): P(f's_mov_b64 s[{k}:{k + 1}], 0')
    stamp(0)
    P(f"""
    v_lshrrev_b32 v1, 6, v0
    v_and_b32 v{TID}, 63, v0
    v_readfirstlane_b32 s{sW}, v1
    v_lshrrev_b32 v2, 4, v{TID}
    v_and_b32 v3, 15, v{TID}
    s_and_b32 s3, s2, 3
    s_lshl_b32 s3, s3, 2
    s_bfe_u32 s7, s2, 0x20003
    s_add_u32 s{sJ}, s3, s7
    s_lshr_b32 s{sB}, s2, 5
    s_and_b32 s{sWP}, s{sW}, 3
    s_lshr_b32 s{sP}, s{sW}, 2
    v_lshlrev_b32 v4, 2, v2
    v_xor_b32 v4, v4, v3
    v_lshlrev_b32 v4, 4, v4
    v_lshl_add_u32 v{VOW}, v2, 13, v4
    v_lshrrev_b32 v8, 2, v{TID}
    v_and_b32 v9, 3, v{TID}
    v_xor_b32 v9, v9, v2
    v_mul_u32_u24 v8, 1152, v8
    v_lshl_add_u32 v{VOX}, v9, 4, v8
    s_lshl_b32 s3, s{sWP}, 2
    v_or_b32 v5, s3, v2
    v_xor_b32 v5, v5, v3
    v_lshlrev_b32 v5, 4, v5
    s_lshl_b32 s{sMW}, s{sWP}, 12
    v_lshl_add_u32 v5, v2, 8, v5
    v_add_u32 v{VOK}, s{sMW}, v5
    v_lshl_add_u32 v5, v2, 8, v4
    v_add_u32 v{VOV}, s{sMW}, v5
    s_lshl_b32 s{sW0}, s{sWP}, 16
    s_mul_i32 s{sX}, s{sWP}, 18432
    s_mul_i32 s{sMC}, s{sWP}, 3072
    s_lshl_b32 s3, s{sWP}, 4
    s_lshl_b64 s[{sEX}:{sEX + 1}], 0xffff, s3
    s_mul_i32 s6, s{sB}, 165888
    s_lshl_b32 s7, s{sJ}, 9
    s_mov_b32 s11, 0x20000
    s_mov_b32 s22, {165888 + 2048}
    s_mov_b32 s23, 0x20000
    s_sub_u32 s10, {576 * 8192}, s7
    s_mov_b32 s{sIB}, {STG0}
    s_lshl_b32 s{sTMP}, s{sB}, 5
    s_lshl_b32 s{sTM2}, s{sJ}, 1
    s_add_u32 s{sTMP}, s{sTMP}, s{sTM2}
    s_lshl_b32 s{sTMP}, s{sTMP}, 17
    s_mov_b32 s14, 262144
    s_mov_b32 s15, 0x20000
    s_mov_b32 s18, 262144
    s_mov_b32 s19, 0x20000
    s_mov_b32 s{sCNT}, 0
    s_cmp_ge_u32 s{sW}, 4
    s_waitcnt lgkmcnt(0)
    s_cbranch_scc1 K1_G1
    s_add_u32 s8, s62, s7
    s_addc_u32 s9, s63, 0
    s_add_u32 s20, s56, s6
    s_addc_u32 s21, s57, 0
    s_sub_u32 s20, s20, 2048
    s_subb_u32 s21, s21, 0
    """)
    kvsrd = f"""
    s_add_u32 s12, s58, s{sTMP}
    s_addc_u32 s13, s59, 0
    s_add_u32 s16, s60, s{sTMP}
    s_addc_u32 s17, s61, 0
    s_add_u32 s52, s66, {WS_FLAG}
    s_addc_u32 s53, s67, 0
    s_mov_b32 s54, 16384
    s_mov_b32 s55, 0x20000
    """
    lanec = f"""
    v_bfe_u32 v10, v{TID}, 2, 2
    v_and_b32 v11, 3, v{TID}
    v_lshrrev_b32 v12, 5, v{TID}
    v_and_b32 v13, 1, v2
    v_and_b32 v20, 1, v11
    v_lshrrev_b32 v15, 1, v11
    v_lshlrev_b32 v16, 2, v10
    v_lshl_add_u32 v17, v13, 1, v20
    v_xor_b32 v17, v17, v16
    v_lshlrev_b32 v17, 4, v17
    v_lshl_add_u32 v17, v15, 3, v17
    v_lshl_add_u32 v17, v10, 8, v17
    s_lshl_b32 s3, s{sP}, 14
    s_add_u32 s{sMW}, s{sMW}, s3
    s_add_u32 s6, s3, 65536
    v_lshl_add_u32 v18, v12, 10, v17
    v_add_u32 v{VA}, s6, v18
    v_xor_b32 v{VA + 1}, 64, v{VA}
    v_xor_b32 v{VA + 2}, 0x80, v{VA}
    v_xor_b32 v{VA + 3}, 0xc0, v{VA}
    v_bfe_u32 v23, v{TID}, 3, 2
    v_bfe_u32 v24, v{TID}, 2, 1
    v_lshl_add_u32 v25, v23, 2, v11
    v_xor_b32 v25, v25, v12
    v_lshlrev_b32 v25, 4, v25
    v_lshl_add_u32 v25, v11, 8, v25
    v_lshl_add_u32 v25, v24, 10, v25
    v_lshl_add_u32 v25, v23, 12, v25
    v_add_u32 v{AK}, s3, v25
    s_lshl_b32 s7, s{sWP}, 10
    s_add_u32 s6, s3, s7
    v_xor_b32 v25, v2, v3
    v_lshlrev_b32 v25, 4, v25
    v_lshl_add_u32 v25, v11, 8, v25
    v_lshl_add_u32 v25, v10, 12, v25
    v_add_u32 v{AK9}, s6, v25
    v_xor_b32 v25, v15, v16
    v_lshlrev_b32 v25, 4, v25
    v_lshl_add_u32 v25, v20, 3, v25
    v_lshl_add_u32 v25, v10, 8, v25
    v_lshl_add_u32 v25, v2, 12, v25
    s_add_u32 s6, s6, 65536
    v_add_u32 v{AV9}, s6, v25
    v_mul_u32_u24 v26, 272, v3
    v_lshl_add_u32 v27, v2, 4, v26
    s_mul_i32 s6, s{sP}, 4352
    s_add_u32 s6, s6, {Q9B}
    v_add_u32 v{S9}, s6, v27
    v_lshlrev_b32 v27, 4, v{TID}
    s_lshl_b32 s6, s{sWP}, 13
    s_add_u32 s6, s6, {QXCH}
    v_add_u32 v{S9 + 1}, s6, v27
    """
    loopinit = f"""
    s_mov_b32 s{sCNT}, 1
    s_mov_b32 s{sKP}, 32768
    s_mov_b32 s{sVP}, 65536
    s_mov_b32 s{sDK}, 32768
    s_mov_b32 s{sDV}, 0
    s_mov_b32 s{sIS}, 131072
    s_lshl_b32 s3, s{sP}, 17
    s_add_u32 s{sSV}, s3, 16384
    s_add_u32 s{sSK}, s3, 49152
    s_add_u32 s14, s3, 131072
    s_mov_b32 s18, s14
    s_mov_b32 s{sCL}, 0xff800000
    s_mov_b32 s{sRARE}, 0
    """
    getE = f'v_mov_b32 v{AL}, {Q9B + 8704}\nds_read_b32 v{AL}, v{AL}' if OPT['fused'] else ''
    getE2 = f'v_readfirstlane_b32 s{sE}, v{AL}' if OPT['fused'] else ''
    queue = []
    def vm(text, tag): P(text); queue.append(tag)
    def wait_for(tag):
        idx = max(i for i, t in enumerate(queue) if t == tag)
        P(f's_waitcnt vmcnt({min(63, len(queue) - 1 - idx)})')
    def stage(s):
        buf = STG0 + (s % NSB) * STGS
        for hd in range(2):
            P(f's_add_u32 m0, s{sMC}, {buf + hd * 12288}\ns_add_u32 s3, s{sW0}, {s * 262144 + hd * 256}')
            vm(f'buffer_load_dwordx4 v{VOW}, s[8:11], s3 offen {ntw} lds', ('s', s))
            P(f's_add_u32 s3, s3, {32768 - 1024}')
            vm(f'buffer_load_dwordx4 v{VOW}, s[8:11], s3 offen offset:1024 {ntw} lds', ('s', s))
            P(f's_add_u32 s3, s{sX}, {s * 64 + hd * 4 * 18432}')
            vm(f'buffer_load_dwordx4 v{VOX}, s[20:23], s3 offen offset:2048 {ntw} lds', ('s', s))
        P(f's_mov_b32 m0, {buf + 24576}\ns_mov_b32 s3, {s * 64 + 128 * 1152 + 2048}\ns_mov_b64 exec, s[{sEX}:{sEX + 1}]')
        vm(f'buffer_load_dwordx4 v{VOX}, s[20:23], s3 offen {ntw} lds', ('s', s))
        P('s_mov_b64 exec, -1')
    PRE = {(0, 0): [64, 68, 72, 76], (0, 1): [80, 84, 88, 92], (1, 0): [112, 116, 120, 124], (1, 1): [128, 132, 136, 140],
           (2, 0): [192, 196, 200, 204], (2, 1): [236, 240, 244, 248], (3, 0): [96, 100, 104, 252], (3, 1): [144, 148, 152, 156]}
    SRC = {0: (VOK, 12, 0), 1: (VOK, 12, 16384), 2: (VOV, 16, 0), 3: (VOK, 12, 32768)}
    def kvload(u, hd):
        vo, srd, off = SRC[u]
        P(f's_mov_b32 s3, {hd * 131072 + off}')
        for n in range(4): vm(f'buffer_load_dwordx4 {vr(PRE[u, hd][n], 4)}, v{vo}, s[{srd}:{srd + 3}], s3 offen offset:{n * 1024} {nk}', ('k', u, hd))
    def kvdump(u, hd):
        wait_for(('k', u, hd))
        base = u * 32768 + hd * 16384
        for n in range(4): P(f'ds_write_b128 v{[T0, T1][base >> 16]}, {vr(PRE[u, hd][n], 4)} offset:{(base & 0xffff) + n * 1024}')
    kvq = [(u, hd) for u in range(4) for hd in range(2)]
    npre, dist = OPT['npre'], OPT['dist']
    sched = [int(c) for c in str(OPT['kvs'])] + [0] * 30
    assert sum(sched) == 8 and dist <= NSB - 1 and npre <= NSB
    nxt = 0
    for s in range(npre): stage(s); nxt += 1
    stamp(12)
    later = [kvsrd] + [f'v_lshlrev_b32 v{T0}, 4, v{TID}\nv_add_u32 v{T0}, s{sMW}, v{T0}\nv_add_u32 v{T1}, 0x10000, v{T0}', lanec]
    zs = list(range(108, 112)) + list(range(O9, O9 + 32)) + list(range(CN9, CN9 + 4)) + list(range(63, -1, -1))
    later += ['\n'.join(f'v_mov_b32 v{r}, 0' for r in zs[i:i + 26]) for i in range(0, len(zs), 26)]
    P(later.pop(0))
    for s in range(19):
        if OPT['stamps'] == 2 and s == OPT['sq']: stamp(5)
        if OPT['stamps'] == 2 and s == OPT['sq'] + 1: stamp(6)
        if s < 18: wait_for(('s', s))
        if OPT['stamps'] == 2 and s == OPT['sq']: stamp(3)
        P('s_barrier')
        if OPT['stamps'] == 2 and s == OPT['sq']: stamp(2)
        if s == 0: stamp(1)
        n = 0
        while nxt < 18 and nxt <= s + dist and n < 2: stage(nxt); nxt += 1; n += 1
        for _ in range(sched[s]): kvload(*kvq.pop(0))
        if later: P(later.pop(0))
        for u, hd in {13: [(0, 0)], 14: [(0, 1)], 15: [(1, 0), (1, 1)], 16: [(2, 0), (2, 1)], 17: [(3, 0)]}.get(s, []): kvdump(u, hd)
    assert nxt == 18 and not later
    for r in list(range(96, 108)) + [L, L9]: P(f'v_mov_b32 v{r}, 0')
    P(loopinit)
    if OPT['stamps'] == 1: stamp(2)
    P('s_barrier')
    P(getE)
    for kk in range(8): P(f'ds_read_b128 {vr(Q + 4 * kk, 4)}, v{S9 + 1} offset:{kk * 1024}')
    for kk in range(4): P(f'ds_read_b128 {vr(Q9 + 4 * kk, 4)}, v{S9} offset:{kk * 64}')
    P('s_barrier')
    P(getE2)
    kvdump(3, 1)
    P('s_branch K1_HEAD')
    P('K1_G1:')
    P(kvsrd)
    if OPT['fused']:
        P(f"""
        s_mov_b32 s8, s64
        s_mov_b32 s9, s65
        s_mov_b32 s10, 256
        v_mov_b32 v246, 0
        s_cmp_eq_u32 s{sW}, 4
        s_cbranch_scc0 K1_E0
        buffer_load_dword v244, v246, s[52:55], 0 offen sc1
        K1_E0:
        """)
    stamp(12)
    P(lanec)
    P(f"""
    v_mul_u32_u24 v18, 3072, v12
    v_add_u32 v18, {STG0}, v18
    v_add_u32 v{QW[0]}, v17, v18
    v_xor_b32 v{QW[1]}, 64, v{QW[0]}
    v_xor_b32 v{QW[2]}, 0x80, v{QW[0]}
    v_xor_b32 v{QW[3]}, 0xc0, v{QW[0]}
    s_lshl_b32 s6, s{sWP}, 2
    v_add_u32 v18, s6, v15
    v_xor_b32 v18, v18, v16
    v_lshlrev_b32 v18, 4, v18
    v_lshl_add_u32 v18, v20, 3, v18
    v_lshl_add_u32 v18, v10, 8, v18
    v_mul_u32_u24 v19, 3072, v2
    v_add_u32 v19, {STG0}, v19
    v_add_u32 v{QW9}, v18, v19
    v_xor_b32 v22, v12, v10
    v_lshlrev_b32 v22, 4, v22
    v_lshl_add_u32 v22, v3, 6, v22
    v_mul_u32_u24 v19, 3072, v13
    s_mul_i32 s6, s{sWP}, 6144
    s_add_u32 s6, s6, {STG0 + 2048}
    v_add3_u32 v{QX[0]}, v22, v19, s6
    v_xor_b32 v{QX[1]}, 32, v{QX[0]}
    v_xor_b32 v22, v2, v10
    v_lshlrev_b32 v22, 4, v22
    v_lshl_add_u32 v22, v3, 6, v22
    v_add_u32 v{QX9}, {STG0 + 24576}, v22
    v_lshl_add_u32 v27, v2, 3, v26
    s_lshl_b32 s6, s{sWP}, 6
    s_add_u32 s6, s6, {Q9B}
    v_add_u32 v{S9 + 2}, s6, v27
    """)
    z = list(range(CN9, CN9 + 4)) + list(range(108, 112)) + [L, L9]
    for hd in range(2):
        for a in ACC[hd]: z += list(range(a, a + 16))
        for a in ACC9[hd]: z += list(range(a, a + 4))
    for r in z: P(f'v_mov_b32 v{r}, 0')
    if OPT['fused']:
        P(f"""
        s_cmp_eq_u32 s{sW}, 4
        s_cbranch_scc0 K1_E1
        s_waitcnt vmcnt(0)
        v_add_u32 v244, 1, v244
        v_max_u32 v244, 1, v244
        v_mov_b32 v245, 0
        v_mov_b32 v247, v244
        s_mov_b64 exec, 1
        buffer_atomic_cmpswap v[244:245], v246, s[8:11], 0 offen sc0
        s_mov_b64 exec, -1
        K1_E1:
        """)
    P(f's_mov_b32 s{sIB}, 0\ns_barrier')
    stamp(1)
    qit = []
    def qmain(kk, hd, dt):
        return (lambda F: [f'ds_read_b64_tr_b16 {vr(F + 2 * j, 2)}, v{QW[dt]} offset:{hd * 12288 + kk * 6144 + j * 1024}' for j in range(2)],
                lambda F: mf32(ACC[hd][dt], F, QB[kk]))
    def q9(hd, t):
        return (lambda F: [f'ds_read_b64_tr_b16 {vr(F + 2 * j, 2)}, v{QW9} offset:{hd * 12288 + t * 32 + j * 1024}' for j in range(2)],
                lambda F: mf16(ACC9[hd][t], F, QB9))
    qit = [qmain(0, hd, dt) for hd in range(2) for dt in range(4)] + [q9(hd, t) for hd in range(2) for t in range(2)] + [qmain(1, hd, dt) for hd in range(2) for dt in range(4)]
    nq = len(QF); NQ = len(qit); QD = OPT['qdelay']
    qrd = lambda i: qit[i % NQ][0](QF[i % nq])
    bheads = [f'ds_read_b128 {vr(QB[0], 4)}, v{QX[0]}', f'ds_read_b128 {vr(QB9, 4)}, v{QX9}']
    upd = [f'v_add_u32 v{r}, s{sDL}, v{r}' for r in QW + QX + [QX9, QW9]]
    P(bheads[0])
    for i in range(nq):
        P.extend(qrd(i))
        if i == 3: P(bheads[1])
    def qmf(i):
        m = qit[i][1](QF[i % nq])
        if i % 2 == 0 and i + 1 < NQ: m += f' ; need {vr(QF[(i + 1) % nq], 4)}'
        return m
    cut = NQ - nq + QD + 1
    P('s_branch K1_QM\nK1_QL:\ns_barrier')
    if OPT['stamps'] == 2: stamp(2, OPT['sq'])
    qpend = [bheads[0]] + [x for jj in range(QD + 1) for x in qrd(jj)]
    for i in range(cut, NQ):
        P(qmf(i))
        qpend += qrd(i + nq)
        if i == NQ - 2: qpend.append(bheads[1])
        n = len(qpend) if i == NQ - 1 else 4
        P.extend(qpend[:n]); qpend = qpend[n:]
    P('K1_QM:')
    if OPT['stamps'] == 2: stamp(5, OPT['sq'] - 1); stamp(6, OPT['sq'])
    for i in range(cut):
        P(qmf(i))
        if i + nq < NQ: P.extend(qrd(i + nq))
        if i == 0: P(f'ds_read_b128 {vr(QB[1], 4)}, v{QX[1]}')
        if i == 2: P(f's_cmp_eq_u32 s{sIB}, {NSB - 1}\ns_cselect_b32 s{sDL}, {-(NSB - 1) * STGS & 0xffffffff}, {STGS}')
        if i == 4: P(f's_add_u32 s{sIB}, s{sIB}, 1\ns_cmp_eq_u32 s{sIB}, {NSB}\ns_cselect_b32 s{sIB}, 0, s{sIB}')
        if i == 10: P.extend(upd[:4])
        if i == 11:
            P.extend(upd[4:])
            if OPT['stamps'] == 2: stamp(3, OPT['sq'] - 1)
            P(f's_add_u32 s{sCNT}, s{sCNT}, 1\ns_cmp_lt_u32 s{sCNT}, 18')
    P('s_cbranch_scc1 K1_QL\ns_barrier')
    for i in range(cut, NQ): P(qmf(i))
    if OPT['stamps'] == 1: stamp(2)
    P(f's_mov_b32 s6, {CSCALE}')
    for hd in range(2):
        for t in range(2):
            a = ACC9[hd][t]
            for i in range(4): P(f'v_mul_f32 v{a + i}, s6, v{a + i}')
            P(f'v_cvt_pk_bf16_f32 v{a}, v{a}, v{a + 1}\nv_cvt_pk_bf16_f32 v{a + 1}, v{a + 2}, v{a + 3}')
            P(f'ds_write_b64 v{S9 + 2}, {vr(a, 2)} offset:{hd * 4352 + t * 32}')
    for dt in [0, 1, 2, 3]:
        a = ACC[0][dt]
        for i in range(16): P(f'v_mul_f32 v{a + i}, s6, v{a + i}')
        for hf in range(2):
            for i in range(4): P(f'v_cvt_pk_bf16_f32 v{a + 8 * hf + i}, v{a + 8 * hf + 2 * i}, v{a + 8 * hf + 2 * i + 1}')
            P(f'ds_write_b128 v{S9 + 1}, {vr(a + 8 * hf, 4)} offset:{(2 * dt + hf) * 1024}')
    if OPT['fused']:
        P(f"""
        s_cmp_eq_u32 s{sW}, 4
        s_cbranch_scc0 K1_E2
        s_waitcnt vmcnt(0)
        v_cmp_eq_u32 vcc, 0, v244
        v_mov_b32 v246, {Q9B + 8704}
        s_mov_b64 exec, 1
        v_cndmask_b32 v244, v244, v247, vcc
        ds_write_b32 v246, v244
        s_mov_b64 exec, -1
        K1_E2:
        """)
    P(loopinit)
    P('s_barrier')
    P(getE)
    for kk in range(4): P(f'ds_read_b128 {vr(Q9 + 4 * kk, 4)}, v{S9} offset:{kk * 64}')
    for i in range(16): P(f'v_mul_f32 v{ACC[1][0] + i}, s6, v{ACC[1][0] + i}')
    P('s_barrier')
    P(getE2)
    for dt in range(4):
        a = ACC[1][dt]
        if dt:
            for i in range(16): P(f'v_mul_f32 v{a + i}, s6, v{a + i}')
        for i in range(8): P(f'v_cvt_pk_bf16_f32 v{Q + dt * 8 + i}, v{a + 2 * i}, v{a + 2 * i + 1}')
    for r in list(range(O, O + 64)) + list(range(CN, CN + 12)) + list(range(O9, O9 + 32)): P(f'v_mov_b32 v{r}, 0')
    P('K1_HEAD:')

    def dma_sites(vo, srd, so):
        out = []
        for n in range(4):
            g = [f's_add_u32 m0, s{sIS}, s{sMW}', f's_add_u32 s{sIS}, s{sIS}, 32768'] if n == 0 else []
            g.append(f'buffer_load_dwordx4 v{vo}, s[{srd}:{srd + 3}], s{so} offen offset:{n * 1024} {nk} lds')
            if n == 0: g += [f's_cmp_eq_u32 s{sIS}, 163840', f's_cselect_b32 s{sIS}, 0, s{sIS}']
            if n == 3: g.append(f's_add_u32 s{so}, s{so}, 16384')
            out.append(g)
        return out
    dmaV = dma_sites(VOV, 16, sSV); dmaK = dma_sites(VOK, 12, sSK)
    book = f"""s_add_u32 s{sKP}, s{sKP}, 65536
    s_cmp_ge_u32 s{sKP}, 163840
    s_cselect_b32 s3, 163840, 0
    s_sub_u32 s{sKP}, s{sKP}, s3
    s_sub_u32 s{sDK}, 65536, s3
    s_add_u32 s{sVP}, s{sVP}, 65536
    s_cmp_ge_u32 s{sVP}, 163840
    s_cselect_b32 s3, 163840, 0
    s_sub_u32 s{sVP}, s{sVP}, s3
    s_sub_u32 s{sDV}, 65536, s3""".split('\n')
    vupd = [f'v_add_u32 v{VA + i}, s{sDV}, v{VA + i}' for i in range(4)] + [f'v_add_u32 v{AV9}, s{sDV}, v{AV9}']
    kupd = [f'v_add_u32 v{AK}, s{sDK}, v{AK}', f'v_add_u32 v{AK9}, s{sDK}, v{AK9}']
    def kmain(kk, mt):
        tmp = [T0, T1][kk & 1]
        pre = [f'v_xor_b32 v{tmp}, {kk << 5}, v{AK}'] if (mt == 0 and kk) else []
        ad = tmp if kk else AK
        return dict(rd=lambda F: pre + [f'ds_read_b128 {vr(F, 4)}, v{ad} offset:{mt * 2048}'],
                    mf=lambda F: [mf32(S + 16 * mt, F, Q + 4 * kk, CN if kk == 0 else None)], w=32)
    def k9(kk):
        pre = [f'v_xor_b32 v{X0}, {kk << 6}, v{AK9}'] if kk else []
        ad = X0 if kk else AK9
        return dict(rd=lambda F: pre + [f'ds_read_b128 {vr(F, 4)}, v{ad}'],
                    mf=lambda F: [mf16(S9, F, Q9 + 4 * kk, CN9 if kk == 0 else None)], w=16)
    def vmain(ks, dt):
        mt, u = ks >> 1, ks & 1
        return dict(rd=lambda F: [f'ds_read_b64_tr_b16 {vr(F + 2 * j, 2)}, v{VA + dt} offset:{u * 8192 + j * 4096 + mt * 2048}' for j in range(2)],
                    mf=lambda F: [mf32(O + 16 * dt, F, PP + 4 * ks)], w=32)
    def v9(pp):
        pre = [f'v_xor_b32 v{X1}, {pp << 6}, v{AV9}'] if pp else []
        ad = X1 if pp else AV9
        return dict(rd=lambda F: pre + [f'ds_read_b64_tr_b16 {vr(F + 2 * j, 2)}, v{ad} offset:{32 * j}' for j in range(2)],
                    mf=lambda F: [mf16h(O9 + 4 * (2 * pp + j), F + 2 * j, P9) for j in range(2)], w=32)
    itA = []
    for kk in range(8):
        itA += [kmain(kk, 0), kmain(kk, 1)]
        if 1 <= kk <= 4: itA.append(k9(kk - 1))
    itC = []
    for dt in range(4): itC += [vmain(0, dt), v9(dt)]
    for ks in range(1, 4): itC += [vmain(ks, dt) for dt in range(4)]
    lastP = {0: 6, 1: 11, 2: 15, 3: 19, 9: 7}
    nb = len(FB); items = itA + itC; N = len(items); nA = len(itA)
    assert N % nb == 0 and nA % nb == 0
    RD = lambda i: items[i % N]['rd'](FB[i % nb])
    DL = OPT['bdelay']
    def MF(i, pair=True):
        m = items[i]['mf'](FB[i % nb])
        if pair and OPT['pairw'] and i % 2 == 0 and (i + 1) % nA != 0: m[0] += f' ; need {vr(FB[(i + 1) % nb], 4)}'
        return m
    def sync(lbl, group0, wait='vmcnt(4)'):
        return [f's_cmp_lt_u32 s{sW}, 4', f's_cbranch_scc{0 if group0 else 1} {lbl}', f's_waitcnt {wait}', 's_barrier', f'{lbl}:']
    mx = [f'v_max3_f32 v{T1}, v{S9}, v{S9 + 1}, v{S9 + 2}', f'v_max_f32 v{T1}, v{T1}, v{S9 + 3}', f'v_max3_f32 v{T0}, v{S}, v{S + 1}, v{S + 2}']
    mx += [f'v_max3_f32 v{T0}, v{T0}, v{S + 3 + 2 * i}, v{S + 4 + 2 * i}' for i in range(6)]
    mx += [f'v_max3_f32 v{X0}, v{S + 16}, v{S + 17}, v{S + 18}']
    mx += [f'v_max3_f32 v{X0}, v{X0}, v{S + 19 + 2 * i}, v{S + 20 + 2 * i}' for i in range(6)]
    mx += [f'v_max3_f32 v{X0}, v{X0}, v{S + 15}, v{S + 31}', f'v_max_f32 v{T0}, v{T0}, v{X0}', f'v_max_f32 v{X0}, v{T0}, v{T1}', f'v_cmp_lt_f32 vcc, s{sT}, v{X0}']
    fill = []
    for ks in range(4):
        b = S + 8 * ks
        for i in range(0, 8, 2):
            fill += [(0, f'v_exp_f32 v{b + i}, v{b + i}'), (0, f'v_exp_f32 v{b + i + 1}, v{b + i + 1}')]
            if i: fill += [(0, f'v_add_f32 v{L}, v{L}, v{b + i - 2}'), (0, f'v_add_f32 v{L}, v{L}, v{b + i - 1}')]
        if ks == 0: fill += [(0, f'v_exp_f32 v{S9 + i}, v{S9 + i}') for i in range(4)]
        fill += [(0, f'v_add_f32 v{L}, v{L}, v{b + 6}'), (0, f'v_add_f32 v{L}, v{L}, v{b + 7}')]
        if ks == 0: fill += [(0, f'v_add_f32 v{L9}, v{L9}, v{S9 + i}') for i in range(4)]
        fill += [(lastP[ks], f'v_cvt_pk_bf16_f32 v{PP + 4 * ks + i}, v{b + 2 * i}, v{b + 2 * i + 1}') for i in range(4)]
        if ks == 0: fill += [(lastP[9], f'v_cvt_pk_bf16_f32 v{P9 + i}, v{S9 + 2 * i}, v{S9 + 2 * i + 1}') for i in range(2)]
    for i in range(nb): P.extend(RD(i))
    if OPT['stamps'] == 1: stamp(7)
    for i in range(nA):
        P.extend(MF(i))
        if i + nb < nA: P.extend(RD(i + nb))
        if i + nb - nA == DL: P.extend(sync('K1_Y0', False))
    if OPT['pa'] != OPT['pc']: P(f's_setprio {OPT["pc"]}')
    P.extend(kupd + mx[:-1]); P('s_branch K1_RARE1\nK1_CPB:')
    P(f's_mov_b32 s{sRARE}, 0')
    for i, (_, t) in enumerate(fill):
        P(t)
        if i == len(fill) - 12:
            P.extend(sync('K1_XP', True))
            for jj in range(nb): P.extend(RD(jj))
    P('K1_TOP:')
    if OPT['pa'] != OPT['pc']: P(f's_setprio {OPT["pa"]}')
    if OPT['stamps'] == 2: stamp(7, 3); stamp(11, 4)
    for i in range(nA):
        P.extend(MF(i))
        j = i + nb - nA
        if j < 0: P.extend(RD(i + nb))
        elif j == DL:
            P.extend(sync('K1_Y', False))
            for jj in range(DL + 1): P.extend(RD(nA + jj))
        elif j > DL: P.extend(RD(i + nb))
        if i == 2: P.extend(vupd)
        if i == 4: P.extend(book[:5])
        if i == 7: P.extend(book[5:])
        if i in (1, 5, 9, 13): P.extend(dmaV[(i - 1) // 4])
    if OPT['stamps'] == 2: stamp(8, 3)
    if OPT['pa'] != OPT['pc']: P(f's_setprio {OPT["pc"]}')
    cost = lambda t: 2 if 'exp' in t else (0 if 'BR' in t else 1)
    full = [(0, t) for t in kupd + mx] + [(0, 'BR')] + fill
    tot = sum(cost(t) for _, t in full)
    pend = list(full); acc = 0; cw = 0; wsum = sum(it['w'] for it in itC)
    for c in range(len(itC)):
        i = nA + c
        P.extend(MF(i)); cw += itC[c]['w']
        j = i + nb - N
        if j < 0: P.extend(RD(i + nb))
        elif j == DL:
            P.extend(sync('K1_X', True))
            for jj in range(DL + 1): P.extend(RD(jj))
        elif j > DL: P.extend(RD(i + nb))
        if c in (1, 5, 9, 13): P.extend(dmaK[(c - 1) // 4])
        goal = tot * min(1.0, cw / (wsum - 32))
        q = 0
        while q < len(pend) and acc + cost(pend[q][1]) <= goal + 1:
            if pend[q][0] > c: q += 1; continue
            acc += cost(pend[q][1]); t = pend.pop(q)[1]
            P('s_cbranch_vccnz K1_RARE1\nK1_R1B:' if t == 'BR' else t)
    for _, t in pend: P(t)
    if OPT['stamps'] == 2: stamp(10, 3)
    P(f"""
    s_add_u32 s{sCNT}, s{sCNT}, 1
    s_add_u32 s3, s{sCNT}, s{sRARE}
    s_cmp_lt_u32 s3, 8
    s_cbranch_scc1 K1_TOP
    s_cmp_lg_u32 s{sRARE}, 0
    s_cbranch_scc1 K1_RARE2
    K1_NEXT:
    s_cmp_lt_u32 s{sCNT}, 8
    s_cbranch_scc1 K1_TOP
    s_branch K1_PVO
    """)
    P(f"""
    K1_RARE1:
    v_mov_b32 v{X0}, v{T0}
    v_mov_b32 v{X1}, v{T1}
    v_permlane32_swap_b32 v{T0}, v{X0}
    v_permlane32_swap_b32 v{T1}, v{X1}
    v_max3_f32 v{T0}, v{T0}, v{X0}, s{sCL}
    v_max_f32 v{T1}, v{T1}, v{X1}
    v_mov_b32 v{X1}, v{T1}
    v_max_f32 v{AL}, 0, v{T0}
    v_permlane16_swap_b32 v{T1}, v{X1}
    v_max3_f32 v{T1}, v{T1}, v{X1}, s{sCL}
    v_max_f32 v{AL9}, 0, v{T1}
    v_exp_f32 v{AL}, -v{AL}
    v_exp_f32 v{AL9}, -v{AL9}
    """)
    for i in range(32): P(f'v_sub_f32 v{S + i}, v{S + i}, v{T0}')
    for i in range(16): P(f'v_sub_f32 v{CN + i}, v{CN + i}, v{T0}')
    for i in range(4): P(f'v_sub_f32 v{S9 + i}, v{S9 + i}, v{T1}')
    for i in range(4): P(f'v_sub_f32 v{CN9 + i}, v{CN9 + i}, v{T1}')
    P(f"""
    v_mul_f32 v{L}, v{L}, v{AL}
    v_mul_f32 v{L9}, v{L9}, v{AL9}
    s_mov_b32 s{sT}, {f2u(8.0)}
    s_cmp_lg_u32 s{sCL}, 0
    s_mov_b32 s{sCL}, 0
    s_mov_b32 s{sRARE}, 8
    s_cbranch_scc1 K1_CPB
    s_branch K1_R1B
    K1_RARE2:
    """)
    for i in range(64): P(f'v_mul_f32 v{O + i}, v{O + i}, v{AL}')
    for i in range(32): P(f'v_mul_f32 v{O9 + i}, v{O9 + i}, v{AL9}')
    P(f"""
    s_mov_b32 s{sRARE}, 0
    s_branch K1_NEXT
    K1_PVO:
    """)
    if OPT['stamps'] == 1: stamp(3)
    P.extend(vupd)
    if OPT['fused']:
        P(f"""
        s_and_b32 s{sKP}, s2, 3
        s_mul_i32 s6, s{sKP}, {1024 * 1152}
        s_add_u32 s8, s100, s6
        s_addc_u32 s9, s101, 0
        s_sub_u32 s10, {4096 * 1152}, s6
        s_mov_b32 s11, 0x20000
        """)
        if OPT['wot']:
            P(f"""
            s_cmp_lt_u32 s{sW}, 4
            s_cbranch_scc0 K1_WT
            s_lshr_b32 s6, s2, 3
            s_lshl_b32 s6, s6, 2
            s_add_u32 s6, s6, s{sW}
            s_mul_i32 s6, s6, {72 * 128}
            v_lshlrev_b32 v{Q}, 7, v{TID}
            buffer_load_dword v{Q + 1}, v{Q}, s[8:11], s6 offen {OPT['nt_wo']}
            s_add_u32 s6, s6, 8192
            s_mov_b64 exec, 0xff
            buffer_load_dword v{Q + 2}, v{Q}, s[8:11], s6 offen {OPT['nt_wo']}
            s_mov_b64 exec, -1
            K1_WT:
            """)
    P.extend(sync('K1_Y8', False, 'vmcnt(0)'))
    for i in range(nb): P.extend(RD(nA + i))
    groups = [MF(nA + c) + (RD(nA + c + nb) if c + nb < len(itC) else []) for c in range(len(itC))]
    epi = f'''
    s_mul_i32 s6, s{sBR}, {WS_O_BR}
    s_add_u32 s20, s66, s6
    s_addc_u32 s21, s67, 0
    s_mov_b32 s22, {WS_O_BR}
    s_mov_b32 s23, 0x20000
    s_lshl_b32 s6, s{sJ}, 1
    s_add_u32 s6, s6, s{sP}
    s_lshl_b32 s6, s6, 13
    s_lshl_b32 s7, s{sB}, 2
    s_add_u32 s7, s7, s{sWP}
    s_lshl_b32 s7, s7, 18
    s_add_u32 s{sSK}, s6, s7
    s_add_u32 s{sSV}, s{sSK}, 4096
    s_lshr_b32 s7, s{sB}, 1
    s_add_u32 s7, s7, 32
    s_lshl_b32 s7, s7, 18
    s_add_u32 s{sIS}, s6, s7
    s_lshl_b32 s7, s{sWP}, 11
    s_add_u32 s{sIS}, s{sIS}, s7
    s_and_b32 s7, s{sB}, 1
    s_lshl_b32 s7, s7, 8
    s_add_u32 s{sIS}, s{sIS}, s7
    v_mov_b32 v{T0}, v{L}
    v_mov_b32 v{T1}, v{L9}
    v_lshlrev_b32 v{VOK}, 4, v{TID}
    v_permlane32_swap_b32 v{L}, v{T0}
    v_permlane32_swap_b32 v{L9}, v{T1}
    v_add_f32 v{L}, v{L}, v{T0}
    v_add_f32 v{L9}, v{L9}, v{T1}
    v_mov_b32 v{T1}, v{L9}
    v_rcp_f32 v{AL}, v{L}
    v_permlane16_swap_b32 v{L9}, v{T1}
    v_add_f32 v{CN9 + 1}, v{L9}, v{T1}
    '''.strip().split('\n')
    for i, g in enumerate(groups):
        P.extend(g)
        if i < len(epi) // 2: P.extend(epi[2 * i:2 * i + 2])
    P.extend(epi[2 * (len(epi) // 2):] if len(groups) >= len(epi) // 2 else epi[2 * len(groups):])
    P.extend(sync('K1_X9', True, 'vmcnt(2)' if OPT['fused'] and OPT['wot'] else 'vmcnt(0)'))
    P(f'''
    s_lshl_b32 s6, s{sW}, 13
    s_add_u32 s6, s6, 65536
    v_add_u32 v{T0}, s6, v{VOK}
    v_and_b32 v{T1}, 15, v{TID}
    v_lshlrev_b32 v{T1}, 3, v{T1}
    s_lshl_b32 s7, s{sW}, 7
    s_add_u32 s7, s7, 131072
    v_add_u32 v{X0}, s7, v{T1}
    ds_write_b64 v{X0}, {vr(CN9, 2)}
    ''')
    for d9 in range(8): P(f'ds_write_b128 v{T0}, {vr(O9 + 4 * d9, 4)} offset:{d9 * 1024}')
    os_ = 'sc1' if OPT['fused'] else OPT['ostore']
    for dt in range(4):
        for i in range(16): P(f'v_mul_f32 v{O + 16 * dt + i}, v{O + 16 * dt + i}, v{AL}')
        for hf in range(2):
            d = S + 8 * dt + 4 * hf
            for i in range(4): P(f'v_cvt_pk_bf16_f32 v{d + i}, v{O + 16 * dt + 8 * hf + 2 * i}, v{O + 16 * dt + 8 * hf + 2 * i + 1}')
            ks = 2 * dt + hf
            P(f'buffer_store_dwordx4 {vr(d, 4)}, v{VOK}, s[20:23], s{sSK if ks < 4 else sSV} offen offset:{(ks & 3) * 1024} {os_}')
    P('s_barrier')
    P(f'''
    s_lshl_b32 s6, s{sP}, 9
    s_add_u32 s6, s6, 131072
    v_add_u32 v{X0}, s6, v{T1}
    s_lshl_b32 s6, s{sP}, 15
    s_lshl_b32 s7, s{sWP}, 11
    s_add_u32 s6, s6, s7
    s_add_u32 s6, s6, 65536
    v_add_u32 v{T0}, s6, v{VOK}
    ''')
    ST = 0
    for w in range(4): P(f'ds_read_b64 {vr(ST + 2 * w, 2)}, v{X0} offset:{w * 128}')
    for w in range(4):
        for t in range(2): P(f'ds_read_b128 {vr(8 + 8 * w + 4 * t, 4)}, v{T0} offset:{w * 8192 + t * 1024}')
    P(f'''
    v_min3_f32 v40, v0, v2, v4
    v_min_f32 v40, v40, v6
    ''')
    for w in range(4): P(f'v_sub_f32 v{2 * w}, v40, v{2 * w}')
    for w in range(4): P(f'v_exp_f32 v{2 * w}, v{2 * w}')
    P(f'''
    v_lshrrev_b32 v42, 5, v{TID}
    v_bfe_u32 v43, v{TID}, 4, 1
    v_mul_f32 v41, v0, v1
    v_fmac_f32 v41, v2, v3
    v_fmac_f32 v41, v4, v5
    v_fmac_f32 v41, v6, v7
    v_rcp_f32 v41, v41
    v_lshlrev_b32 v44, 1, v{T1}
    v_lshl_add_u32 v44, v42, 9, v44
    v_lshl_add_u32 v44, v43, 3, v44
    ''')
    for w in range(4): P(f'v_mul_f32 v{2 * w}, v{2 * w}, v41')
    for i in range(8): P(f'v_mul_f32 v{8 + i}, v{8 + i}, v0')
    for w in range(1, 4):
        for i in range(8): P(f'v_fmac_f32 v{8 + i}, v{8 + 8 * w + i}, v{2 * w}')
    for t in range(2):
        P(f'v_cvt_pk_bf16_f32 v{46 + 2 * t}, v{8 + 4 * t}, v{9 + 4 * t}')
        P(f'v_cvt_pk_bf16_f32 v{47 + 2 * t}, v{10 + 4 * t}, v{11 + 4 * t}')
        P(f'buffer_store_dwordx2 {vr(46 + 2 * t, 2)}, v44, s[20:23], s{sIS} offen offset:{t * 1024} {os_}')
    if OPT['fused']: phase2(P, stamp, locals())
    if OPT['stamps']:
        P('K1_STAMPS:' if OPT['fused'] else 's_waitcnt vmcnt(0)')
        if not OPT['fused']: stamp(4)
        P(f'''
        s_waitcnt lgkmcnt(0)
        s_add_u32 s20, s66, {WS_STAMP}
        s_addc_u32 s21, s67, 0
        s_mov_b32 s22, 0x100000
        s_mov_b32 s23, 0x20000
        s_lshl_b32 s6, s2, 3
        s_add_u32 s6, s6, s{sW}
        s_lshl_b32 s6, s6, 7
        v_mov_b32 v2, s6
        s_mov_b64 exec, 1
        ''')
        if OPT['probe'] >= 0:
            k = OPT['probe']
            lo, base = (98, 96) if k == 99 else (70 + 2 * k, 70)
            P(f"""
            s_cmp_lg_u32 s2, {OPT['pwg']}
            s_cbranch_scc1 K1_END
            s_cmp_lg_u32 s{sW}, {OPT['pw']}
            s_cbranch_scc1 K1_END
            s_sub_u32 s6, s{lo}, s{base}
            s_mul_i32 s6, s6, {1 if k == 99 else 10}
            s_memrealtime s[72:73]
            s_waitcnt lgkmcnt(0)
            s_add_u32 s6, s6, s72
            K1_SPIN:
            s_memrealtime s[72:73]
            s_waitcnt lgkmcnt(0)
            s_sub_u32 s7, s72, s6
            s_cmp_lt_i32 s7, 0
            s_cbranch_scc1 K1_SPIN
            s_branch K1_END
            """)
        if OPT['dbgst']:
            P('s_mov_b32 s20, s64\ns_mov_b32 s21, s65\ns_mov_b32 s22, 256\nv_mov_b32 v2, 0\ns_not_b32 s70, s70')
            for i, k in enumerate([0, 1, 2, 7, 3, 4, 5, 6, 9, 10, 11, 8]):
                P(f'v_mov_b32 v4, s{70 + 2 * k}\nbuffer_atomic_umax v4, v2, s[20:23], 0 offen offset:{4 + 4 * i}\ns_nop 1')
        for k in range(0 if OPT['dbgst'] else 15):
            P(f'v_mov_b32 v4, s{70 + 2 * k}\nv_mov_b32 v5, s{71 + 2 * k}\nbuffer_store_dwordx2 v[4:5], v2, s[20:23], 0 offen offset:{8 * k}\ns_nop 1')
    P('K1_END:\ns_endpgm')
    a0 = [i for i, x in enumerate(P.ins) if x.text == 'K1_G1:'][0]; a1 = [i for i, x in enumerate(P.ins) if x.text == 'K1_PVO:'][0]
    keep = []
    kp0 = [i for i, x in enumerate(P.ins) if x.text == 'K1_G1:'][0]; kp1 = [i for i, x in enumerate(P.ins) if x.text == 'K1_QL:'][0]
    for i, x in enumerate(P.ins):
        if a0 < i < a1:
            if OPT['nodma'] and x.dma and not (kp0 < i < kp1): continue
            if OPT['nobar'] and x.kind == 'barrier': continue
            if OPT['noexp'] and x.kind in ('valu', 'trans') and ('exp' in x.text or 'v_add_f32' in x.text or 'cvt_pk' in x.text or 'max3' in x.text): continue
            if OPT['nolds'] and x.kind == 'ds_r': continue
        keep.append(x)
    P.ins = keep
    return P.finish()

def k2():
    P = Prog()
    NB = OPT['k2nb']; STG = 40960
    ACC = [[16 * (2 * i + j) for j in range(2)] for i in range(3)]
    SA = dict(A=[96, 100, 104], B=[108, 112]); SB = dict(A=[116, 120, 124], B=[128, 132])
    AA = [136, 137, 138]; AB = 139; VW, VO, TID = 140, 141, 142
    sW, sWN, sWQ, sBR, sKS, sQB, sN3, sIDX = 24, 25, 26, 27, 28, 29, 30, 31
    sCNT, sIB, sDL, sSW, sSO, sTMP, sMW, sMO, sIP, sOST, sWST = 32, 33, 34, 35, 36, 37, 38, 39, 40, 41, 42
    P(f'''
    s_cmp_ge_u32 s2, 216
    s_cbranch_scc1 K2_END
    s_and_b32 s3, s2, 7
    s_lshr_b32 s{sBR}, s3, 2
    s_and_b32 s{sKS}, s3, 3
    s_mul_i32 s6, s{sBR}, 40
    s_add_u32 s4, s0, s6
    s_addc_u32 s5, s1, 0
    s_load_dwordx2 s[56:57], s[4:5], 32
    s_load_dwordx2 s[58:59], s[0:1], 96
    v_lshrrev_b32 v1, 6, v0
    v_and_b32 v{TID}, 63, v0
    v_readfirstlane_b32 s{sW}, v1
    s_lshr_b32 s{sIDX}, s2, 3
    s_mul_i32 s{sQB}, s{sIDX}, 43
    s_lshr_b32 s{sQB}, s{sQB}, 7
    s_mul_i32 s6, s{sQB}, 3
    s_sub_u32 s{sN3}, s{sIDX}, s6
    s_and_b32 s{sWN}, s{sW}, 1
    s_lshr_b32 s{sWQ}, s{sW}, 1
    v_lshrrev_b32 v2, 3, v{TID}
    v_and_b32 v3, 7, v{TID}
    v_bfe_u32 v4, v{TID}, 4, 1
    v_lshlrev_b32 v4, 2, v4
    v_xor_b32 v3, v3, v4
    s_lshl_b32 s6, s{sW}, 3
    v_add_u32 v2, s6, v2
    v_mul_u32_u24 v2, 1152, v2
    v_lshl_add_u32 v{VW}, v3, 4, v2
    v_lshlrev_b32 v{VO}, 4, v{TID}
    s_mul_i32 s6, s{sKS}, {1024 * 1152}
    s_mul_i32 s7, s{sN3}, 384
    s_add_u32 s6, s6, s7
    s_mul_i32 s7, s{sBR}, {WS_O_BR}
    s_lshl_b32 s3, s{sQB}, 20
    s_add_u32 s7, s7, s3
    s_lshl_b32 s3, s{sKS}, 16
    s_add_u32 s7, s7, s3
    s_lshl_b32 s{sMW}, s{sW}, 10
    s_lshl_b32 s{sMO}, s{sW}, 12
    s_add_u32 s{sMO}, s{sMO}, 24576
    s_mov_b32 s{sSW}, 0
    s_lshl_b32 s{sSO}, s{sW}, 18
    s_waitcnt lgkmcnt(0)
    s_add_u32 s8, s56, s6
    s_addc_u32 s9, s57, 0
    s_sub_u32 s10, {4096 * 1152}, s6
    s_mov_b32 s11, 0x20000
    s_add_u32 s12, s58, s7
    s_addc_u32 s13, s59, 0
    s_mov_b32 s14, 0x100000
    s_mov_b32 s15, 0x20000
    ''')
    def issue():
        o = f's_add_u32 m0, s{sIB}, s{sMO}\ns_nop 0\n'
        for e in range(4): o += f'buffer_load_dwordx4 v{VO}, s[12:15], s{sSO} offen offset:{e * 1024} {OPT["nt_o"]} lds\n'
        o += f's_add_u32 s{sSO}, s{sSO}, 4096\n'
        for gr in range(3):
            for e in range(2):
                o += f's_add_u32 m0, s{sIB}, s{sMW}\n' if (gr, e) == (0, 0) else 's_add_u32 m0, m0, 4096\n'
                o += f's_add_u32 s{sTMP}, s{sSW}, {e * 32 * 1152 + gr * 128}\n'
                o += f'buffer_load_dwordx4 v{VW}, s[8:11], s{sTMP} offen {OPT["nt_wo"]} lds\n'
        o += f's_add_u32 s{sSW}, s{sSW}, {64 * 1152}\n'
        return o
    P(f's_mov_b32 s{sIB}, 0\ns_mov_b32 s{sCNT}, 0\nK2_PRO:')
    P(issue())
    P(f'''
    s_add_u32 s{sIB}, s{sIB}, {STG}
    s_add_u32 s{sCNT}, s{sCNT}, 1
    s_cmp_lt_u32 s{sCNT}, {NB}
    s_cbranch_scc1 K2_PRO
    v_lshrrev_b32 v2, 4, v{TID}
    v_bfe_u32 v10, v{TID}, 2, 2
    v_and_b32 v11, 3, v{TID}
    v_lshrrev_b32 v12, 5, v{TID}
    v_and_b32 v13, 1, v2
    v_and_b32 v15, 1, v11
    v_lshl_add_u32 v15, v13, 1, v15
    v_lshrrev_b32 v16, 1, v10
    v_lshlrev_b32 v16, 2, v16
    v_xor_b32 v15, v15, v16
    v_lshl_add_u32 v17, v12, 3, v10
    v_lshlrev_b32 v17, 7, v17
    v_lshl_add_u32 v14, v15, 4, v17
    v_lshrrev_b32 v15, 1, v11
    v_lshl_add_u32 v14, v15, 3, v14
    v_xor_b32 v15, 64, v14
    s_cmp_eq_u32 s{sWN}, 0
    s_cselect_b64 vcc, -1, 0
    s_cselect_b32 s6, 0, 8192
    s_cselect_b32 s7, 0, 16384
    s_cselect_b32 s3, 8192, 16384
    v_cndmask_b32 v16, v15, v14, vcc
    v_cndmask_b32 v17, v14, v15, vcc
    v_add_u32 v{AA[0]}, s6, v16
    v_add_u32 v{AA[1]}, s7, v17
    v_add_u32 v{AA[2]}, s3, v16
    s_lshl_b32 s6, s{sWQ}, 13
    s_add_u32 s6, s6, 24576
    v_add_u32 v{AB}, s6, v{VO}
    ''')
    for r in range(96): P(f'v_mov_b32 v{r}, 0')
    P(f'''
    s_mov_b32 s{sIB}, 0
    s_mov_b32 s{sCNT}, 0
    s_mov_b32 s{sDL}, {STG}
    s_mov_b32 s{sOST}, 4096
    s_mov_b32 s{sWST}, {64 * 1152}
    s_waitcnt vmcnt({10 * (NB - 1)})
    s_barrier
    ''')
    def rd(st, kk):
        o = []
        for j in range(2): o.append(f'ds_read_b128 {vr(st["B"][j], 4)}, v{AB} offset:{j * 4096 + kk * 1024}')
        for i in range(3):
            for j in range(2): o.append(f'ds_read_b64_tr_b16 {vr(st["A"][i] + 2 * j, 2)}, v{AA[i]} offset:{kk * 2048 + j * 512}')
        return o
    def mm(st):
        return [f'v_mfma_f32_32x32x16_bf16 {vr(ACC[i][j], 16)}, {vr(st["A"][i], 4)}, {vr(st["B"][j], 4)}, {vr(ACC[i][j], 16)}' for i in range(3) for j in range(2)]
    def step(cur, rds, extra=(), dm=()):
        m = mm(cur); extra = list(extra); rds = list(rds); dm = list(dm) + [[]] * 3
        P.extend(rds[:4]); P(m[0]); P.extend(rds[4:6]); P(m[1]); P.extend(rds[6:]); P.extend(dm[0]); P(m[2])
        P.extend(extra[:2]); P(m[3]); P.extend(extra[2:4]); P.extend(dm[1]); P(m[4]); P.extend(extra[4:]); P(m[5]); P.extend(dm[2])
    dms = []
    for e in range(4):
        g = [f's_add_u32 m0, s{sIP}, s{sMO}', 's_nop 0'] if e == 0 else []
        g.append(f'buffer_load_dwordx4 v{VO}, s[12:15], s{sSO} offen offset:{e * 1024} {OPT["nt_o"]} lds')
        if e == 3: g.append(f's_add_u32 s{sSO}, s{sSO}, s{sOST}')
        dms.append(g)
    for gr in range(3):
        for e in range(2):
            g = [f's_add_u32 m0, s{sIP}, s{sMW}' if (gr, e) == (0, 0) else 's_add_u32 m0, m0, 4096',
                 f's_add_u32 s{sTMP}, s{sSW}, {e * 32 * 1152 + gr * 128}',
                 f'buffer_load_dwordx4 v{VW}, s[8:11], s{sTMP} offen {OPT["nt_wo"]} lds']
            if (gr, e) == (2, 1): g.append(f's_add_u32 s{sSW}, s{sSW}, s{sWST}')
            dms.append(g)
    P.extend(rd(SA, 0))
    P(f'''
    s_branch K2_E
    K2_L:
    ''')
    step(SA, rd(SB, 1), dm=dms[3:6])
    step(SB, rd(SA, 2), dm=dms[6:8])
    step(SA, rd(SB, 3), [f'v_add_u32 v{r}, s{sDL}, v{r}' for r in AA + [AB]], dm=dms[8:10])
    P('s_branch K2_M\nK2_E:')
    step(SA, rd(SB, 1))
    step(SB, rd(SA, 2))
    step(SA, rd(SB, 3), [f'v_add_u32 v{r}, s{sDL}, v{r}' for r in AA + [AB]])
    P(f'''
    K2_M:
    s_cmp_eq_u32 s{sCNT}, {16 - NB}
    s_cbranch_scc0 K2_W
    s_mov_b32 s{sSO}, 0x40000000
    s_mov_b32 s{sSW}, 0x40000000
    s_mov_b32 s{sOST}, 0
    s_mov_b32 s{sWST}, 0
    K2_W:
    s_mov_b32 s{sIP}, s{sIB}
    s_waitcnt vmcnt({10 * (NB - 2)})
    s_barrier
    ''')
    step(SB, rd(SA, 0), [f's_add_u32 s{sIB}, s{sIB}, {STG}', f's_cmp_eq_u32 s{sIB}, {NB * STG}', f's_cselect_b32 s{sIB}, 0, s{sIB}',
                         f's_cmp_eq_u32 s{sIB}, {(NB - 1) * STG}', f's_cselect_b32 s{sDL}, {-(NB - 1) * STG & 0xffffffff}, {STG}'], dm=dms[0:3])
    P(f's_add_u32 s{sCNT}, s{sCNT}, 1\ns_cmp_lt_u32 s{sCNT}, 16\ns_cbranch_scc1 K2_L')
    P(f'''
    s_mul_i32 s6, s{sBR}, 27
    s_add_u32 s6, s6, s{sIDX}
    s_lshl_b32 s6, s6, 2
    s_add_u32 s6, s6, s{sKS}
    s_lshl_b32 s6, s6, 2
    s_add_u32 s6, s6, s{sW}
    s_mul_i32 s6, s6, 24576
    s_add_u32 s6, s6, {WS_PART}
    s_add_u32 s16, s58, s6
    s_addc_u32 s17, s59, 0
    s_mov_b32 s18, 24576
    s_mov_b32 s19, 0x20000
    ''')
    for t in range(6):
        P(f's_mov_b32 s3, {t * 4096}')
        for qd in range(4): P(f'buffer_store_dwordx4 {vr(16 * t + 4 * qd, 4)}, v{VO}, s[16:19], s3 offen offset:{qd * 1024}')
    P('K2_END:\ns_endpgm')
    return P.finish()

def k3():
    P = Prog()
    P(f'''
    s_cmp_ge_u32 s2, 648
    s_cbranch_scc1 K3_END
    s_load_dwordx2 s[56:57], s[0:1], 80
    s_load_dwordx2 s[58:59], s[0:1], 96
    v_lshrrev_b32 v1, 6, v0
    v_and_b32 v2, 63, v0
    v_readfirstlane_b32 s3, v1
    s_lshl_b32 s4, s2, 2
    s_add_u32 s4, s4, s3
    s_and_b32 s20, s4, 1
    s_lshr_b32 s4, s4, 1
    s_mul_hi_u32 s5, s4, {(2**32 + 5) // 6}
    s_mul_i32 s6, s5, 6
    s_sub_u32 s21, s4, s6
    s_and_b32 s22, s5, 3
    s_lshr_b32 s23, s5, 2
    s_cmp_ge_u32 s23, 27
    s_cselect_b32 s24, 1, 0
    s_mul_i32 s6, s24, 27
    s_sub_u32 s25, s23, s6
    s_mul_i32 s26, s25, 43
    s_lshr_b32 s26, s26, 7
    s_mul_i32 s6, s26, 3
    s_sub_u32 s27, s25, s6
    s_lshl_b32 s6, s23, 4
    s_add_u32 s6, s6, s22
    s_mul_i32 s6, s6, 24576
    s_lshl_b32 s7, s21, 12
    s_add_u32 s6, s6, s7
    s_lshl_b32 s7, s20, 11
    s_add_u32 s6, s6, s7
    s_add_u32 s6, s6, {WS_PART}
    v_lshlrev_b32 v3, 4, v2
    s_waitcnt lgkmcnt(0)
    s_add_u32 s8, s58, s6
    s_addc_u32 s9, s59, 0
    s_mov_b32 s10, {4 * 98304}
    s_mov_b32 s11, 0x20000
    s_mov_b32 s12, s56
    s_mov_b32 s13, s57
    s_mov_b32 s14, {1152 * 2304}
    s_mov_b32 s15, 0x20000
    ''')
    for k in range(4):
        P(f's_mov_b32 s3, {k * 98304}')
        P(f'buffer_load_dwordx4 {vr(8 + 8 * k, 4)}, v3, s[8:11], s3 offen')
        P(f'buffer_load_dwordx4 {vr(12 + 8 * k, 4)}, v3, s[8:11], s3 offen offset:1024')
    P(f'''
    s_lshr_b32 s28, s22, 1
    s_lshl_b32 s28, s28, 1
    s_and_b32 s6, s21, 1
    s_add_u32 s28, s28, s6
    s_and_b32 s6, s22, 1
    s_mul_i32 s6, s6, 96
    s_lshr_b32 s7, s21, 1
    s_lshl_b32 s7, s7, 5
    s_add_u32 s6, s6, s7
    s_mul_i32 s7, s27, 192
    s_add_u32 s6, s6, s7
    s_lshl_b32 s7, s20, 4
    s_add_u32 s6, s6, s7
    s_mul_i32 s7, s24, 576
    s_add_u32 s6, s6, s7
    s_lshl_b32 s29, s6, 1
    v_and_b32 v4, 31, v2
    v_lshrrev_b32 v5, 5, v2
    v_and_b32 v6, 15, v2
    v_bfe_u32 v7, v2, 4, 1
    v_mul_u32_u24 v7, 144, v7
    v_add_u32 v6, v6, v7
    s_mul_i32 s6, s26, 144
    s_lshl_b32 s7, s28, 5
    s_add_u32 s6, s6, s7
    s_mul_i32 s7, s28, 288
    s_add_u32 s7, s7, 128
    s_cmp_lt_u32 s26, 8
    s_cselect_b64 vcc, -1, 0
    s_cselect_b32 s6, s6, s7
    v_cndmask_b32 v4, v6, v4, vcc
    v_add_u32 v4, s6, v4
    v_mul_u32_u24 v4, 2304, v4
    v_lshl_add_u32 v4, v5, 4, v4
    s_waitcnt vmcnt(4)
    ''')
    for i in range(8): P(f'v_add_f32 v{8 + i}, v{8 + i}, v{16 + i}')
    P('s_waitcnt vmcnt(0)')
    for i in range(8): P(f'v_add_f32 v{24 + i}, v{24 + i}, v{32 + i}')
    for i in range(8): P(f'v_add_f32 v{8 + i}, v{8 + i}, v{24 + i}')
    for i in range(4): P(f'v_cvt_pk_bf16_f32 v{40 + i}, v{8 + 2 * i}, v{9 + 2 * i}')
    P('buffer_store_dwordx4 v[40:43], v4, s[12:15], s29 offen')
    P('K3_END:\ns_endpgm')
    return P.finish()

def desc(name, vg, sg=102):
    return f'''.amdhsa_kernel {name}
  .amdhsa_next_free_vgpr {vg}
  .amdhsa_next_free_sgpr {sg}
  .amdhsa_accum_offset {(vg + 3) // 4 * 4}
  .amdhsa_group_segment_fixed_size 0
  .amdhsa_kernarg_size 104
  .amdhsa_user_sgpr_count 2
  .amdhsa_user_sgpr_kernarg_segment_ptr 1
  .amdhsa_system_sgpr_workgroup_id_x 1
  .amdhsa_float_denorm_mode_32 3
.end_amdhsa_kernel
'''

def main():
    ref = open('cdna_kernels/%s.s.ref' % NAME).read().split('\n')
    hdr = [l for l in ref if l.startswith(';') and '@launch' not in l and 'Override launch' not in l and 'grid=ceil' not in l]
    hdr = hdr[:14]
    ks = [('attn_kernel', k1(), 256, '(256,1,1)', '(%d,1,1)' % OPT['blk'], 163840),
          ('oproj_kernel', k2(), 144, '(216,1,1)', '(256,1,1)', OPT['k2nb'] * 40960),
          ('reduce_kernel', k3(), 48, '(648,1,1)', '(256,1,1)', 0)]
    out = '\n'.join(hdr) + '\n'
    if OPT['fused']:
        ks = [(NAME + '_kernel',) + ks[0][1:]]
        out += f'; @launch grid={ks[0][3]} block={ks[0][4]} lds={ks[0][5]}\n'
    else:
        for n, _, _, g, b, l in ks: out += f'; @launch kernel={n} grid={g} block={b} lds={l}\n'
    out += '.amdgcn_target "amdgcn-amd-amdhsa--gfx950"\n.text\n'
    for n, body, _, _, _, _ in ks:
        out += f'.globl {n}\n.p2align 8\n.type {n},@function\n{n}:\n{body}'
    out += '.section .rodata,"a"\n'
    for n, _, vg, _, _, _ in ks: out += '.p2align 6\n' + desc(n, vg)
    open(sys.argv[1], 'w').write(out)
main()
```

```python
import sys, struct, math
from asmlib import *

NAME = 'concat_heads__mha_block_cached__gqa_block_cached__near_ridge'
def f2u(x): return struct.unpack('<I', struct.pack('<f', x))[0]
CSCALE = f2u(math.log2(math.e) / math.sqrt(128.0))

OPT = dict(nt_kv='nt', nt_w='', nt_x='', ostore='', stamps=0, touch=0, k2nb=3, nt_wo='', nt_o='', nodma=0, nobar=0, noexp=0, nolds=0, prio=0, bdelay=1, blk=512, pa=0, pc=1, pairw=1, qdelay=3, wtouch=2, kvs='000000000000044460a4', nsb=5, dstep=2, trows=13, tlead=0, ptouch=0, tl=0, sp='', ts=-9, npre=5, dist=3, sq=9, fused=1, p2nb=4, wot=1, ld2='', spin=200000, dbgst=0, loc=1, bgwb=0, nomf=0, nokv=0, nost=0, probe=-1, pwg=8, pw=4)
for a in sys.argv[2:]:
    k, v = a.split('=')
    OPT[k] = int(v) if (v.lstrip('-').isdigit() and k not in ('kvs', 'sp')) else v

WS_O_BR = 36 * 256 * 1024
WS_PART = 0x1400000
WS_FLAG = 0x3000000
WS_STAMP = 0x4000000

def lanes(P, dst, expr_list):
    for e in expr_list: P(e)

def mf32(d, a, b, c=None):
    return f'v_mfma_f32_32x32x16_bf16 {vr(d, 16)}, {vr(a, 4)}, {vr(b, 4)}, {vr(d if c is None else c, 16)}'
def mf16(d, a, b, c=None):
    return f'v_mfma_f32_16x16x32_bf16 {vr(d, 4)}, {vr(a, 4)}, {vr(b, 4)}, {vr(d if c is None else c, 4)}'
def mf16h(d, a, b):
    return f'v_mfma_f32_16x16x16_bf16 {vr(d, 4)}, {vr(a, 2)}, {vr(b, 2)}, {vr(d, 4)}'


def phase2(P, stamp, env, part):
    sW, sWP, sBR, sE, sKS, TID = env['sW'], env['sWP'], env['sBR'], env['sE'], env['sKP'], env['TID']
    NB = OPT['p2nb']; STG = 40960
    sIDX, sQB, sN3, sCNT, sIB, sDL, sTMP, sSPIN = 58, 56, 57, 30, 36, 37, 48, 44
    sSW, sSO, sMW, sMO, sPW, sPO, sIBW, sNB, sFL, sLOC = 59, 60, 61, 62, 63, 35, 31, 33, 43, 47
    sNEED = 38
    VW, VO, VF, VP = 140, 141, 142, 143
    done = 'K1_STAMPS' if OPT['stamps'] else 'K1_END'
    def poll(lbl, off):
        return f"""
    s_mov_b32 s{sSPIN}, {OPT['spin']}
    {lbl}:
    buffer_load_dword v{VP}, v{VF}, s[52:55], s{off} offen sc1
    s_sub_u32 s{sSPIN}, s{sSPIN}, 1
    s_cbranch_scc1 {lbl}X
    s_waitcnt vmcnt(0)
    v_cmp_eq_u32 vcc, s{sE}, v{VP}
    s_and_b64 s[6:7], vcc, s[{sNEED}:{sNEED + 1}]
    s_cmp_eq_u64 s[6:7], s[{sNEED}:{sNEED + 1}]
    s_cbranch_scc0 {lbl}
    {lbl}X:
    """
    def flag(lbl, base):
        return f"""
    s_cmp_eq_u32 s{sW}, 4
    s_cbranch_scc0 {lbl}
    s_cmp_eq_u32 s{sLOC}, {-1 if OPT['loc'] == 1 else 0}
    s_cbranch_scc1 {lbl}L
    buffer_wbl2 sc1
    s_waitcnt vmcnt(0)
    {lbl}L:
    s_lshr_b32 s6, s2, 3
    s_lshl_b32 s6, s6, 2
    s_add_u32 s6, s6, s{sTMP}
    s_mov_b64 exec, 1
    buffer_store_dword v{VP}, v{VF}, s[52:55], s6 offen offset:{base} sc1
    s_mov_b64 exec, -1
    {lbl}:
    """
    def issW():
        o = f's_mul_i32 s7, s{sPW}, {64 * 1152}\ns_add_u32 s7, s7, s{sSW}\n'
        for gr in range(3):
            for e in range(2):
                o += f's_add_u32 m0, s{sIBW}, s{sMW}\n' if (gr, e) == (0, 0) else 's_add_u32 m0, m0, 4096\n'
                o += f's_add_u32 s3, s7, {e * 32 * 1152 + gr * 128}\n'
                o += f'buffer_load_dwordx4 v{VW}, s[8:11], s3 offen {OPT["nt_wo"]} lds\n'
        return o + f's_add_u32 s{sPW}, s{sPW}, 1\ns_and_b32 s{sPW}, s{sPW}, 15\ns_add_u32 s{sIBW}, s{sIBW}, {STG}\ns_cmp_eq_u32 s{sIBW}, {NB * STG}\ns_cselect_b32 s{sIBW}, 0, s{sIBW}\n'
    def issO():
        o = f's_add_u32 m0, s{sIB}, s{sMO}\ns_lshl_b32 s7, s{sPO}, 12\ns_add_u32 s7, s7, s{sSO}\n'
        for e in range(4): o += f'buffer_load_dwordx4 v{VO}, s[20:23], s7 offen offset:{e * 1024} {OPT["ld2"]} lds\n'
        return o + f's_add_u32 s{sPO}, s{sPO}, 1\ns_and_b32 s{sPO}, s{sPO}, 15\ns_add_u32 s{sIB}, s{sIB}, {STG}\ns_cmp_eq_u32 s{sIB}, {NB * STG}\ns_cselect_b32 s{sIB}, 0, s{sIB}\n'
    need = f's_lshr_b32 s3, s{sPO}, 2\ns_lshl_b32 s{sNEED}, s{sNB}, s3\ns_mov_b32 s{sNEED + 1}, 0\n'
    if part == 0:
        P(f"""
        s_and_b32 s6, s{env['sJ']}, 3
        s_cmp_eq_u32 s6, 3
        s_cselect_b32 s{sQB}, 8, s{env['sB']}
        s_cselect_b32 s{sN3}, s{env['sB']}, s6
        s_mul_i32 s{sIDX}, s{sQB}, 3
        s_add_u32 s{sIDX}, s{sIDX}, s{sN3}
        s_lshl_b32 s{sPW}, s6, 2
        s_mov_b32 s{sPO}, s{sPW}
        s_and_b32 s3, s2, 7
        s_lshl_b32 s{sTMP}, s3, 7
        v_lshlrev_b32 v{VF}, 2, v{TID}
        v_lshlrev_b32 v{VO}, 4, v{TID}
        v_mov_b32 v{VP}, s{sE}
        v_lshrrev_b32 v116, 3, v{TID}
        v_and_b32 v117, 7, v{TID}
        v_bfe_u32 v118, v{TID}, 4, 1
        v_lshlrev_b32 v118, 2, v118
        v_xor_b32 v117, v117, v118
        s_lshl_b32 s6, s{sWP}, 3
        v_add_u32 v116, s6, v116
        v_mul_u32_u24 v116, 1152, v116
        v_lshl_add_u32 v{VW}, v117, 4, v116
        s_mul_i32 s{sSW}, s{sN3}, 384
        s_lshl_b32 s{sMW}, s{sWP}, 10
        s_lshl_b32 s{sMO}, s{sWP}, 12
        s_add_u32 s{sMO}, s{sMO}, 24576
        s_lshl_b32 s{sSO}, s{sQB}, 20
        s_lshl_b32 s3, s{sKS}, 16
        s_add_u32 s{sSO}, s{sSO}, s3
        s_lshl_b32 s3, s{sWP}, 18
        s_add_u32 s{sSO}, s{sSO}, s3
        s_lshl_b32 s3, s{sQB}, 2
        s_lshl_b32 s{sNB}, 1, s3
        s_cmp_eq_u32 s{sQB}, 8
        s_cselect_b32 s{sNB}, 0x11111111, s{sNB}
        s_mov_b32 s{sFL}, s{sTMP}
        s_mov_b32 s{sIB}, 0
        s_mov_b32 s{sIBW}, 0
        """)
        return
    if part == 3:
        P(f's_cmp_ge_u32 s{sIDX}, 27\ns_cbranch_scc1 P2_W0')
        P(issW()); P('P2_W0:')
        return
    if part == 4:
        P(f"""
        s_getreg_b32 s3, hwreg(HW_REG_XCC_ID, 0, 4)
        s_lshl_b32 s7, s{sE}, 4
        s_add_u32 s3, s3, s7
        s_waitcnt vmcnt(0)
        v_cmp_eq_u32 vcc, s3, v{env['Q'] + 3}
        s_mov_b32 s{sLOC}, vcc_lo
        """)
        return
    if part == 1:
        stamp(4)
        P(f"""
        s_cmp_ge_u32 s{sW}, 4
        s_cbranch_scc1 P2_M
        s_cmp_ge_u32 s{sIDX}, 27
        s_cbranch_scc1 P2_M
        """)
        P(f's_cmp_eq_u32 s{sQB}, 8\ns_cbranch_scc1 P2_M')
        P(issO())
        P('P2_M:')
        if OPT['tl']: stamp(2)
        return
    P(f"""
    s_cmp_ge_u32 s{sW}, 4
    s_cbranch_scc1 P2_G1
    s_cmp_ge_u32 s{sIDX}, 24
    s_cbranch_scc1 P2_SP
    """)
    P(issO() + issW() + 's_waitcnt vmcnt(10)\ns_barrier\ns_branch P2_PR0')
    P(f'P2_SP:\ns_waitcnt vmcnt(0)\ns_barrier\ns_cmp_ge_u32 s{sIDX}, 27\ns_cbranch_scc1 {done}')
    P(issW() + need + poll('P2_PO', sFL) + issO() + issO() + 's_waitcnt vmcnt(4)\ns_barrier')
    P('P2_PR0:')
    stamp(5)
    for s in range(2, NB): P(issO() + issW())
    P(f's_mov_b32 s{sCNT}, 1\nP2_LD:\ns_waitcnt vmcnt({10 * (NB - 2)})\ns_barrier')
    P(f's_and_b32 s3, s{sPO}, 3\ns_cbranch_scc1 P2_NP')
    P(need + poll('P2_PJ', sFL))
    P('P2_NP:')
    P(issO() + issW())
    P(f's_add_u32 s{sCNT}, s{sCNT}, 1\ns_cmp_lt_u32 s{sCNT}, {17 - NB}\ns_cbranch_scc1 P2_LD')
    for s in range(17 - NB, 16): P(f's_waitcnt vmcnt({10 * (15 - s)})\ns_barrier')
    P('s_barrier\ns_branch P2_RED')
    ACC = [[16 * (2 * i + j) for j in range(2)] for i in range(3)]
    SA = dict(A=[96, 100, 104], B=[108, 112]); SB = dict(A=[116, 120, 124], B=[128, 132])
    AA = [136, 137, 138]; AB = 139
    P(f"""
    P2_G1:
    v_lshrrev_b32 v2, 4, v{TID}
    v_bfe_u32 v10, v{TID}, 2, 2
    v_and_b32 v11, 3, v{TID}
    v_lshrrev_b32 v12, 5, v{TID}
    v_and_b32 v13, 1, v2
    v_and_b32 v15, 1, v11
    v_lshl_add_u32 v15, v13, 1, v15
    v_lshrrev_b32 v16, 1, v10
    v_lshlrev_b32 v16, 2, v16
    v_xor_b32 v15, v15, v16
    v_lshl_add_u32 v17, v12, 3, v10
    v_lshlrev_b32 v17, 7, v17
    v_lshl_add_u32 v14, v15, 4, v17
    v_lshrrev_b32 v15, 1, v11
    v_lshl_add_u32 v14, v15, 3, v14
    v_xor_b32 v15, 64, v14
    s_bitcmp0_b32 s{sW}, 0
    s_cselect_b64 vcc, -1, 0
    s_cselect_b32 s6, 0, 8192
    s_cselect_b32 s7, 0, 16384
    s_cselect_b32 s3, 8192, 16384
    v_cndmask_b32 v16, v15, v14, vcc
    v_cndmask_b32 v17, v14, v15, vcc
    v_add_u32 v{AA[0]}, s6, v16
    v_add_u32 v{AA[1]}, s7, v17
    v_add_u32 v{AA[2]}, s3, v16
    s_lshr_b32 s6, s{sWP}, 1
    s_lshl_b32 s6, s6, 13
    s_add_u32 s6, s6, 24576
    v_add_u32 v{AB}, s6, v{VO}
    s_mul_i32 s6, s{sBR}, 27
    s_add_u32 s6, s6, s{sIDX}
    s_lshl_b32 s6, s6, 2
    s_add_u32 s6, s6, s{sKS}
    s_lshl_b32 s6, s6, 2
    s_add_u32 s6, s6, s{sWP}
    s_mul_i32 s6, s6, 12288
    s_add_u32 s6, s6, {WS_PART}
    s_add_u32 s16, s66, s6
    s_addc_u32 s17, s67, 0
    s_mov_b32 s18, 12288
    s_mov_b32 s19, 0x20000
    s_mov_b32 s{sIB}, 0
    s_mov_b32 s{sCNT}, 0
    """)
    for r in range(96): P(f'v_mov_b32 v{r}, 0')
    P('s_waitcnt vmcnt(0)\ns_barrier')
    P(flag('P2_FB', 0))
    P(f's_cmp_ge_u32 s{sIDX}, 27\ns_cbranch_scc1 {done}\ns_cmp_eq_u32 s{sQB}, 8\ns_cbranch_scc0 P2_B0\ns_barrier\nP2_B0:')
    stamp(6)
    def rd(st, kk):
        o = [f'ds_read_b128 {vr(st["B"][j], 4)}, v{AB} offset:{j * 4096 + kk * 1024}' for j in range(2)]
        for i in range(3):
            for j in range(2): o.append(f'ds_read_b64_tr_b16 {vr(st["A"][i] + 2 * j, 2)}, v{AA[i]} offset:{kk * 2048 + j * 512}')
        return o
    def step(cur, rds, extra=()):
        m = [mf32(ACC[i][j], cur['A'][i], cur['B'][j]) for i in range(3) for j in range(2)]
        extra = list(extra)
        m[0] += f' ; need {vr(cur["B"][1], 4)}'; m[2] += f' ; need {vr(cur["A"][2], 4)}'
        P(m[0]); P.extend(rds[:3]); P(m[1]); P.extend(rds[3:6]); P(m[2]); P.extend(rds[6:]); P.extend(extra[:2])
        P(m[3]); P.extend(extra[2:5]); P(m[4]); P.extend(extra[5:]); P(m[5])
    P.extend(rd(SA, 0))
    P('P2_L:')
    step(SA, rd(SB, 1), [f's_cmp_eq_u32 s{sIB}, {NB - 1}', f's_cselect_b32 s{sDL}, {-(NB - 1) * STG & 0xffffffff}, {STG}',
                         f's_add_u32 s{sIB}, s{sIB}, 1', f's_cmp_eq_u32 s{sIB}, {NB}', f's_cselect_b32 s{sIB}, 0, s{sIB}'])
    step(SB, rd(SA, 2))
    step(SA, rd(SB, 3), [f'v_add_u32 v{r}, s{sDL}, v{r}' for r in AA + [AB]])
    P('s_barrier')
    step(SB, rd(SA, 0), [f's_add_u32 s{sCNT}, s{sCNT}, 1', f's_cmp_lt_u32 s{sCNT}, 16'])
    P('s_cbranch_scc1 P2_L')
    stamp(9)
    for t in range(6):
        if t % 2 == 0: P(f's_mov_b32 s3, {t * 2048}')
        for hf in range(2):
            d = 96 + 8 * t + 4 * hf if t < 5 else 144 + 4 * hf
            for i in range(4): P(f'v_cvt_pk_bf16_f32 v{d + i}, v{16 * t + 8 * hf + 2 * i}, v{16 * t + 8 * hf + 2 * i + 1}')
            P(f'buffer_store_dwordx4 {vr(d, 4)}, v{VO}, s[16:19], s3 offen offset:{(t % 2) * 2048 + hf * 1024} sc1')
    P(f"""
    P2_RED:
    s_mul_i32 s6, s{sBR}, 27
    s_add_u32 s6, s6, s{sIDX}
    s_lshl_b32 s{sTMP}, s6, 7
    s_add_u32 s{sTMP}, s{sTMP}, 4096
    s_lshl_b32 s7, s{sKS}, 2
    s_add_u32 s7, s7, s{sTMP}
    s_lshl_b32 s6, s6, 4
    s_add_u32 s6, s6, s{sKS}
    s_mul_i32 s6, s6, 12288
    s_lshl_b32 s3, s{sW}, 11
    s_add_u32 s6, s6, s3
    s_add_u32 s6, s6, {WS_PART}
    s_add_u32 s16, s66, s6
    s_addc_u32 s17, s67, 0
    s_mov_b32 s18, {3 * 49152 + 2048}
    s_mov_b32 s19, 0x20000
    s_mov_b32 s12, s68
    s_mov_b32 s13, s69
    s_mov_b32 s14, {1152 * 2304}
    s_mov_b32 s15, 0x20000
    v_mov_b32 v{VP}, s{sE}
    s_mov_b64 s[{sNEED}:{sNEED + 1}], 15
    s_waitcnt vmcnt(0)
    s_barrier
    s_cmp_eq_u32 s{sW}, 7
    s_cbranch_scc0 P2_NG
    s_mov_b64 exec, 1
    buffer_store_dword v{VP}, v{VF}, s[52:55], s7 offen sc1
    s_mov_b64 exec, -1
    P2_NG:
    s_cmp_ge_u32 s{sW}, 6
    s_cbranch_scc1 {done}
    """)
    stamp(10)
    P(f"""
    s_lshr_b32 s45, s{sKS}, 1
    s_lshl_b32 s45, s45, 1
    s_and_b32 s6, s{sW}, 1
    s_add_u32 s45, s45, s6
    s_and_b32 s6, s{sKS}, 1
    s_mul_i32 s6, s6, 96
    s_lshr_b32 s7, s{sW}, 1
    s_lshl_b32 s7, s7, 5
    s_add_u32 s6, s6, s7
    s_mul_i32 s7, s{sN3}, 192
    s_add_u32 s6, s6, s7
    s_mul_i32 s7, s{sBR}, 576
    s_add_u32 s6, s6, s7
    s_lshl_b32 s46, s6, 1
    v_and_b32 v4, 31, v{TID}
    v_lshrrev_b32 v5, 5, v{TID}
    v_and_b32 v6, 15, v{TID}
    v_bfe_u32 v7, v{TID}, 4, 1
    v_mul_u32_u24 v7, 144, v7
    v_add_u32 v6, v6, v7
    s_mul_i32 s6, s{sQB}, 144
    s_lshl_b32 s7, s45, 5
    s_add_u32 s6, s6, s7
    s_mul_i32 s7, s45, 288
    s_add_u32 s7, s7, 128
    s_cmp_lt_u32 s{sQB}, 8
    s_cselect_b64 vcc, -1, 0
    s_cselect_b32 s6, s6, s7
    v_cndmask_b32 v4, v6, v4, vcc
    v_add_u32 v4, s6, v4
    v_mul_u32_u24 v4, 2304, v4
    v_lshl_add_u32 v4, v5, 4, v4
    """)
    P(poll('P2_PR', sTMP))
    stamp(11)
    for k in range(4):
        P(f's_mov_b32 s3, {k * 49152}')
        for hf in range(2): P(f'buffer_load_dwordx4 {vr(32 + 8 * k + 4 * hf, 4)}, v{VO}, s[16:19], s3 offen offset:{hf * 1024} sc1')
    P('s_mov_b32 s3, 0xffff0000')
    for k in range(4):
        P(f's_waitcnt vmcnt({6 - 2 * k})')
        for i in range(8):
            src = 32 + 8 * k + i
            if k == 0: P(f'v_lshlrev_b32 v{16 + 2 * i}, 16, v{src}\nv_and_b32 v{17 + 2 * i}, s3, v{src}')
            else:
                P(f'v_lshlrev_b32 v{64 + 2 * i}, 16, v{src}\nv_and_b32 v{65 + 2 * i}, s3, v{src}')
        if k:
            for i in range(16): P(f'v_add_f32 v{16 + i}, v{16 + i}, v{64 + i}')
    for hf in range(2):
        for i in range(4): P(f'v_cvt_pk_bf16_f32 v{80 + 4 * hf + i}, v{16 + 8 * hf + 2 * i}, v{17 + 8 * hf + 2 * i}')
        P(f'buffer_store_dwordx4 {vr(80 + 4 * hf, 4)}, v4, s[12:15], s46 offen offset:{hf * 32}')
    if OPT['stamps']:
        P('s_waitcnt vmcnt(0)'); stamp(8)

def k1():
    P = Prog()
    O, S, CN, Q, PP, O9, Q9, S9, CN9, P9 = 0, 64, 96, 112, 144, 160, 192, 208, 212, 216
    L, L9, VOK, VOV, AK, AK9, AV9, TID = 218, 219, 220, 221, 222, 223, 224, 225
    VA = 226
    T0, T1, AL, AL9, X0, X1 = 230, 231, 232, 233, 234, 235
    FB = [236, 240, 244, 248, 252]
    ACC = [[0, 16, 32, 48], [64, 80, 144, 176]]; ACC9 = [[160, 164], [168, 172]]
    QW = [230, 231, 232, 233]; QX = [234, 235]; QX9, QW9, VOW, VOX, HOLD = 216, 217, 218, 219, 212
    QB, QB9 = [96, 100], 104
    QF = [112, 116, 120, 124, 128, 132, 136, 140, 236, 240]
    sW, sWP, sP, sB, sJ, sBR = 24, 25, 26, 27, 28, 29
    sCNT, sW0, sX, sMC, sIB, sDL = 30, 31, 33, 35, 36, 37
    sEX = 38
    sIK, sIK2 = 31, 33
    sIS, sSK, sSV, sDK, sDV, sT, sCL, sRARE, sTMP, sTM2, sMW, sKP, sVP, sE = 40, 41, 42, 43, 44, 45, 46, 47, 48, 49, 50, 51, 32, 34
    NSB = OPT['nsb']; STGS = 25600; STG0 = 163840 - NSB * STGS
    SB0 = (NSB - 18) % NSB
    QXCH, Q9B = 131072, 98304 + 16384
    nk, ntw = OPT['nt_kv'], OPT['nt_w']
    def stamp(k, at=None):
        if OPT['stamps'] == 3: return
        if OPT['stamps']:
            if at is not None: P(f's_cmp_lg_u32 s{sCNT}, {at}\ns_cbranch_scc1 K1_ST{k}_{len(P.ins)}'); lbl = P.ins[-1].target
            P(('s_memtime' if OPT['stamps'] == 2 else 's_memrealtime') + ' s[%d:%d]' % (70 + 2 * k, 71 + 2 * k))
            if at is not None: P(f'{lbl}:')
            if k == 1: P('s_memtime s[96:97]')
            if k == 4: P('s_memtime s[98:99]')
            if k == 2 and OPT['stamps'] == 1: P('s_memtime s[94:95]')
    P(f"""
    s_cmp_ge_u32 s2, 256
    s_cbranch_scc1 K1_END
    s_bfe_u32 s{sBR}, s2, 0x10002
    s_mul_i32 s6, s{sBR}, 40
    s_add_u32 s4, s0, s6
    s_addc_u32 s5, s1, 0
    s_load_dwordx8 s[56:63], s[4:5], 0
    s_load_dwordx4 s[64:67], s[0:1], 88
    s_load_dwordx2 s[68:69], s[0:1], 80
    s_load_dwordx2 s[100:101], s[4:5], 32
    """)
    if OPT['stamps']:
        for k in range(70, 100, 2): P(f's_mov_b64 s[{k}:{k + 1}], 0')
    stamp(0)
    P(f"""
    v_lshrrev_b32 v1, 6, v0
    v_and_b32 v{TID}, 63, v0
    v_readfirstlane_b32 s{sW}, v1
    v_lshrrev_b32 v2, 4, v{TID}
    v_and_b32 v3, 15, v{TID}
    s_and_b32 s3, s2, 3
    s_lshl_b32 s3, s3, 2
    s_bfe_u32 s7, s2, 0x20003
    s_add_u32 s{sJ}, s3, s7
    s_lshr_b32 s{sB}, s2, 5
    s_and_b32 s{sWP}, s{sW}, 3
    s_lshr_b32 s{sP}, s{sW}, 2
    v_lshlrev_b32 v4, 2, v2
    v_xor_b32 v4, v4, v3
    v_lshlrev_b32 v4, 4, v4
    v_lshl_add_u32 v{VOW}, v2, 13, v4
    v_lshrrev_b32 v8, 2, v{TID}
    v_and_b32 v9, 3, v{TID}
    v_xor_b32 v9, v9, v2
    v_mul_u32_u24 v8, 1152, v8
    v_lshl_add_u32 v{VOX}, v9, 4, v8
    s_lshl_b32 s3, s{sWP}, 2
    v_or_b32 v5, s3, v2
    v_xor_b32 v5, v5, v3
    v_lshlrev_b32 v5, 4, v5
    s_lshl_b32 s{sMW}, s{sWP}, 12
    v_lshl_add_u32 v5, v2, 8, v5
    v_add_u32 v{VOK}, s{sMW}, v5
    v_lshl_add_u32 v5, v2, 8, v4
    v_add_u32 v{VOV}, s{sMW}, v5
    s_lshl_b32 s{sW0}, s{sWP}, 16
    s_mul_i32 s{sX}, s{sWP}, 18432
    s_mul_i32 s{sMC}, s{sWP}, 3072
    s_lshl_b32 s3, s{sWP}, 4
    s_lshl_b64 s[{sEX}:{sEX + 1}], 0xffff, s3
    s_mul_i32 s6, s{sB}, 165888
    s_lshl_b32 s7, s{sJ}, 9
    s_mov_b32 s11, 0x20000
    s_mov_b32 s22, {165888 + 2048}
    s_mov_b32 s23, 0x20000
    s_sub_u32 s10, {576 * 8192}, s7
    s_mov_b32 s{sIB}, {STG0}
    s_lshl_b32 s{sTMP}, s{sB}, 5
    s_lshl_b32 s{sTM2}, s{sJ}, 1
    s_add_u32 s{sTMP}, s{sTMP}, s{sTM2}
    s_lshl_b32 s{sTMP}, s{sTMP}, 17
    s_mov_b32 s14, 262144
    s_mov_b32 s15, 0x20000
    s_mov_b32 s18, 262144
    s_mov_b32 s19, 0x20000
    s_mov_b32 s{sCNT}, 0
    s_cmp_ge_u32 s{sW}, 4
    s_waitcnt lgkmcnt(0)
    s_cbranch_scc1 K1_G1
    s_add_u32 s8, s62, s7
    s_addc_u32 s9, s63, 0
    s_add_u32 s20, s56, s6
    s_addc_u32 s21, s57, 0
    s_sub_u32 s20, s20, 2048
    s_subb_u32 s21, s21, 0
    """)
    kvsrd = f"""
    s_add_u32 s12, s58, s{sTMP}
    s_addc_u32 s13, s59, 0
    s_add_u32 s16, s60, s{sTMP}
    s_addc_u32 s17, s61, 0
    s_add_u32 s52, s66, {WS_FLAG}
    s_addc_u32 s53, s67, 0
    s_mov_b32 s54, 16384
    s_mov_b32 s55, 0x20000
    """
    lanec = f"""
    v_bfe_u32 v10, v{TID}, 2, 2
    v_and_b32 v11, 3, v{TID}
    v_lshrrev_b32 v12, 5, v{TID}
    v_and_b32 v13, 1, v2
    v_and_b32 v20, 1, v11
    v_lshrrev_b32 v15, 1, v11
    v_lshlrev_b32 v16, 2, v10
    v_lshl_add_u32 v17, v13, 1, v20
    v_xor_b32 v17, v17, v16
    v_lshlrev_b32 v17, 4, v17
    v_lshl_add_u32 v17, v15, 3, v17
    v_lshl_add_u32 v17, v10, 8, v17
    s_lshl_b32 s3, s{sP}, 14
    s_add_u32 s{sMW}, s{sMW}, s3
    s_add_u32 s6, s3, 65536
    v_lshl_add_u32 v18, v12, 10, v17
    v_add_u32 v{VA}, s6, v18
    v_xor_b32 v{VA + 1}, 64, v{VA}
    v_xor_b32 v{VA + 2}, 0x80, v{VA}
    v_xor_b32 v{VA + 3}, 0xc0, v{VA}
    v_bfe_u32 v23, v{TID}, 3, 2
    v_bfe_u32 v24, v{TID}, 2, 1
    v_lshl_add_u32 v25, v23, 2, v11
    v_xor_b32 v25, v25, v12
    v_lshlrev_b32 v25, 4, v25
    v_lshl_add_u32 v25, v11, 8, v25
    v_lshl_add_u32 v25, v24, 10, v25
    v_lshl_add_u32 v25, v23, 12, v25
    v_add_u32 v{AK}, s3, v25
    s_lshl_b32 s7, s{sWP}, 10
    s_add_u32 s6, s3, s7
    v_xor_b32 v25, v2, v3
    v_lshlrev_b32 v25, 4, v25
    v_lshl_add_u32 v25, v11, 8, v25
    v_lshl_add_u32 v25, v10, 12, v25
    v_add_u32 v{AK9}, s6, v25
    v_xor_b32 v25, v15, v16
    v_lshlrev_b32 v25, 4, v25
    v_lshl_add_u32 v25, v20, 3, v25
    v_lshl_add_u32 v25, v10, 8, v25
    v_lshl_add_u32 v25, v2, 12, v25
    s_add_u32 s6, s6, 65536
    v_add_u32 v{AV9}, s6, v25
    v_mul_u32_u24 v26, 272, v3
    v_lshl_add_u32 v27, v2, 4, v26
    s_mul_i32 s6, s{sP}, 4352
    s_add_u32 s6, s6, {Q9B}
    v_add_u32 v{S9}, s6, v27
    v_lshlrev_b32 v27, 4, v{TID}
    s_lshl_b32 s6, s{sWP}, 13
    s_add_u32 s6, s6, {QXCH}
    v_add_u32 v{S9 + 1}, s6, v27
    """
    loopinit = f"""
    s_mov_b32 s{sCNT}, 1
    s_mov_b32 s{sKP}, 32768
    s_mov_b32 s{sVP}, 65536
    s_mov_b32 s{sDK}, 32768
    s_mov_b32 s{sDV}, 0
    s_mov_b32 s{sIS}, 131072
    s_mov_b32 s{sIK}, 0
    s_lshl_b32 s3, s{sP}, 17
    s_add_u32 s{sSV}, s3, 16384
    s_add_u32 s{sSK}, s3, 49152
    s_mov_b32 s{sCL}, 0xff800000
    s_mov_b32 s{sRARE}, 0
    """
    narrow = f's_lshl_b32 s14, s{sP}, 17\ns_add_u32 s14, s14, 131072\ns_mov_b32 s18, s14'
    getE = f'v_mov_b32 v{AL}, {Q9B + 8704}\nds_read_b32 v{AL}, v{AL}' if OPT['fused'] else ''
    getE2 = f'v_readfirstlane_b32 s{sE}, v{AL}' if OPT['fused'] else ''
    queue = []
    def vm(text, tag): P(text); queue.append(tag)
    def wait_for(tag):
        idx = max(i for i, t in enumerate(queue) if t == tag)
        P(f's_waitcnt vmcnt({min(63, len(queue) - 1 - idx)})')
    def stage(s):
        if OPT['nost'] and s >= 3: queue.append(('s', s)); return
        buf = STG0 + ((s + SB0) % NSB) * STGS
        for hd in range(2):
            P(f's_add_u32 m0, s{sMC}, {buf + hd * 12288}\ns_add_u32 s3, s{sW0}, {s * 262144 + hd * 256}')
            vm(f'buffer_load_dwordx4 v{VOW}, s[8:11], s3 offen {ntw} lds', ('s', s))
            P(f's_add_u32 s3, s3, {32768 - 1024}')
            vm(f'buffer_load_dwordx4 v{VOW}, s[8:11], s3 offen offset:1024 {ntw} lds', ('s', s))
            P(f's_add_u32 s3, s{sX}, {s * 64 + hd * 4 * 18432}')
            vm(f'buffer_load_dwordx4 v{VOX}, s[20:23], s3 offen offset:2048 {ntw} lds', ('s', s))
        P(f's_mov_b32 m0, {buf + 24576}\ns_mov_b32 s3, {s * 64 + 128 * 1152 + 2048}\ns_mov_b64 exec, s[{sEX}:{sEX + 1}]')
        vm(f'buffer_load_dwordx4 v{VOX}, s[20:23], s3 offen {ntw} lds', ('s', s))
        P('s_mov_b64 exec, -1')
    VTW, VTX, sTW, sTX = 232, 233, 45, 46
    def touch(s):
        if s >= 18 or not OPT['tlead']: return
        P(f's_add_u32 s3, s{sTW}, {s * 262144}\ns_add_u32 s6, s{sTX}, {s * 64}\ns_mov_b64 exec, 0x1ff')
        vm(f'buffer_load_dword v{X0}, v{VTW}, s[8:11], s3 offen {ntw}', ('t', s))
        vm(f'buffer_load_dword v{X1}, v{VTX}, s[20:23], s6 offen {ntw}', ('t', s))
        P('s_mov_b64 exec, -1')
    def ltouch():
        TR = OPT['trows']
        P(f"""
        v_lshrrev_b32 v{VTW}, 3, v{TID}
        v_and_b32 v{VTX}, 7, v{TID}
        v_lshlrev_b32 v{VTX}, 6, v{VTX}
        v_lshl_add_u32 v{VTW}, v{VTW}, 13, v{VTX}
        v_lshlrev_b32 v{VTX}, 6, v{TID}
        s_lshl_b32 s3, s{sB}, 2
        s_add_u32 s3, s3, s{sWP}
        s_mul_i32 s3, s3, {TR * 8192}
        s_add_u32 s3, s3, {(576 - 32 * TR) * 8192}
        s_bfe_u32 s6, s2, 0x20003
        s_lshl_b32 s6, s6, 2
        s_add_u32 s6, s6, s{sWP}
        s_mul_i32 s6, s6, {162 * 64}
        s_add_u32 s6, s6, 2048
        """)
        tw = [(i, min(8, TR - 8 * i) * 8) for i in range((TR + 7) // 8)]; tx = [(0, 64), (1, 64), (2, 34)]
        for i in range(3):
            for (lst, v, srd, so, step) in ((tw, VTW, 8, 3, 8 * 8192), (tx, VTX, 20, 6, 4096)):
                if i >= len(lst): continue
                n = lst[i][1]
                if n < 64: P(f's_mov_b64 exec, {hex((1 << n) - 1)}' if n <= 31 else f's_mov_b32 exec_hi, {(1 << (n - 32)) - 1}')
                vm(f'buffer_load_dword v{X0}, v{v}, s[{srd}:{srd + 3}], s{so} offen {ntw}', ('t', 0))
                if n < 64: P('s_mov_b64 exec, -1')
                P(f's_add_u32 s{so}, s{so}, {step}')
    PRE = {(0, 0): [64, 68, 72, 76], (0, 1): [80, 84, 88, 92], (1, 0): [112, 116, 120, 124], (1, 1): [128, 132, 136, 140],
           (2, 0): [192, 196, 200, 204], (2, 1): [236, 240, 244, 248], (3, 0): [96, 100, 104, 252], (3, 1): [144, 148, 152, 156]}
    SRC = {0: (VOK, 12, 0), 1: (VOK, 12, 16384), 2: (VOV, 16, 0), 3: (VOK, 12, 32768)}
    FREE = {(0, 0): 0 if NSB <= 5 else 13, (0, 1): 0 if NSB <= 5 else 13, (1, 0): 15, (1, 1): 15, (2, 0): 16, (2, 1): 16, (3, 0): 17, (3, 1): 19}
    inreg = set()
    def kvload(step, u, hd, n):
        if OPT['nokv'] & 1: return
        vo, srd, off = SRC[u]
        P(f's_mov_b32 s3, {hd * 131072 + off}')
        if step >= FREE[u, hd]:
            P(f's_add_u32 m0, s{sMW}, {u * 32768 + hd * 16384}\ns_nop 0')
            vm(f'buffer_load_dwordx4 v{vo}, s[{srd}:{srd + 3}], s3 offen offset:{n * 1024} {nk} lds', ('k', u))
        else:
            vm(f'buffer_load_dwordx4 {vr(PRE[u, hd][n], 4)}, v{vo}, s[{srd}:{srd + 3}], s3 offen offset:{n * 1024} {nk}', ('r', u, hd)); inreg.add((u, hd, n))
    def kvdump(step):
        if OPT['nokv'] & 2: return
        for (u, hd), f in FREE.items():
            ns = [n for n in range(4) if (u, hd, n) in inreg]
            if f != step or not ns: continue
            wait_for(('r', u, hd))
            base = u * 32768 + hd * 16384
            for n in ns: P(f'ds_write_b128 v{[T0, T1][base >> 16]}, {vr(PRE[u, hd][n], 4)} offset:{(base & 0xffff) + n * 1024}')
    kvq = [(u, hd, n) for u in range(4) for hd in range(2) for n in range(4)]
    npre, dist = OPT['npre'], OPT['dist']
    sched = [int(c, 36) for c in str(OPT['kvs'])] + [0] * 30
    assert sum(sched) == 32 and dist <= NSB - 1 and npre <= NSB
    nxt = 0
    for s in range(npre): stage(s); nxt += 1
    if OPT['tlead']:
        P(f"""
        v_lshlrev_b32 v{VTW}, 6, v{TID}
        v_mul_u32_u24 v{VTX}, 1152, v{TID}
        s_lshl_b32 s{sTW}, s{sB}, 2
        s_add_u32 s{sTW}, s{sTW}, s{sWP}
        s_lshl_b32 s{sTW}, s{sTW}, 13
        s_bfe_u32 s{sTX}, s2, 0x20003
        s_lshl_b32 s{sTX}, s{sTX}, 2
        s_add_u32 s{sTX}, s{sTX}, s{sWP}
        s_mul_i32 s{sTX}, s{sTX}, {9 * 1152}
        s_add_u32 s{sTX}, s{sTX}, 2048
        """)
        for s in range(npre, dist + OPT['tlead']): touch(s)
    if OPT['ts'] == -1: ltouch()
    later = [kvsrd] + [f'v_lshlrev_b32 v{T0}, 4, v{TID}\nv_add_u32 v{T0}, s{sMW}, v{T0}\nv_add_u32 v{T1}, 0x10000, v{T0}', lanec]
    zs = list(range(108, 112)) + list(range(O9, O9 + 32)) + list(range(CN9, CN9 + 4)) + list(range(63, -1, -1))
    later += ['\n'.join(f'v_mov_b32 v{r}, 0' for r in zs[i:i + 26]) for i in range(0, len(zs), 26)]
    P(later.pop(0))
    for s in range(19):
        if OPT['stamps'] == 2 and s == OPT['sq']: stamp(5)
        if OPT['stamps'] == 2 and s == OPT['sq'] + 1: stamp(6)
        if OPT['stamps'] == 3 and OPT['sq'] == 99 and 1 <= s <= 5: P(f's_memtime s[{70 + 6 * s - 4}:{71 + 6 * s - 4}]')
        if s < 18: wait_for(('s', s))
        if OPT['stamps'] == 3 and OPT['sq'] == 99 and 1 <= s <= 4: P(f's_memtime s[{70 + 6 * s - 2}:{71 + 6 * s - 2}]')
        if OPT['stamps'] == 2 and s == OPT['sq']: stamp(3)
        P('s_barrier')
        if OPT['stamps'] == 2 and s == OPT['sq']: stamp(2)
        if s == 0: stamp(1)
        S3 = [0, 1, 2, 3, 4, 5, 6, 8, 10, 12, 13, 14, 15, 16, 18]
        if OPT['stamps'] == 3 and OPT['sq'] == 99:
            if s <= 4: P(f's_memtime s[{70 + 6 * s}:{71 + 6 * s}]')
        elif OPT['stamps'] == 3 and s in S3: P(f's_memtime s[{70 + 2 * S3.index(s)}:{71 + 2 * S3.index(s)}]')
        if OPT['sp']:
            for _ in range(int((str(OPT['sp']) + '0' * 20)[s])):
                assert nxt <= s + NSB - 1
                stage(nxt); nxt += 1
            if OPT['ts'] == s: ltouch()
        n = 0
        while not OPT['sp'] and nxt < 18 and nxt <= s + dist and n < 2: stage(nxt); nxt += 1; n += 1
        touch(s + dist + OPT['tlead'])
        kvdump(s)
        for _ in range(sched[s]): kvload(s, *kvq.pop(0))
        if later: P(later.pop(0))
    assert nxt == 18 and not later
    for r in list(range(96, 108)) + [L, L9]: P(f'v_mov_b32 v{r}, 0')
    P(loopinit)
    if OPT['stamps'] == 1: stamp(2)
    if ('k', 0) in queue: wait_for(('k', 0))
    P('s_barrier')
    P(getE)
    for kk in range(8): P(f'ds_read_b128 {vr(Q + 4 * kk, 4)}, v{S9 + 1} offset:{kk * 1024}')
    for kk in range(4): P(f'ds_read_b128 {vr(Q9 + 4 * kk, 4)}, v{S9} offset:{kk * 64}')
    P('s_barrier')
    P(getE2)
    kvdump(19)
    for _ in range(sched[19]): kvload(19, *kvq.pop(0))
    assert not kvq
    P(narrow)
    after = lambda u: (len(queue) - 1 - max(i for i, t in enumerate(queue) if t == ('k', u))) if ('k', u) in queue else 60
    X1N = min(63, after(1) + 4)
    P('s_branch K1_HEAD')
    P('K1_G1:')
    P(kvsrd)
    if OPT['fused']:
        P(f"""
                v_mov_b32 v246, 0
        s_cmp_eq_u32 s{sW}, 4
        s_cbranch_scc0 K1_E0
        buffer_load_dword v244, v246, s[52:55], 0 offen sc1
        K1_E0:
        """)
    def touches():
        P(f"""
        s_lshl_b32 s7, s{sJ}, 9
        s_mul_i32 s6, s{sB}, 165888
        s_add_u32 s8, s62, s7
        s_addc_u32 s9, s63, 0
        s_add_u32 s20, s56, s6
        s_addc_u32 s21, s57, 0
        s_mov_b32 s22, 165888
        v_lshrrev_b32 v28, 3, v{TID}
        v_and_b32 v29, 7, v{TID}
        v_lshlrev_b32 v29, 6, v29
        v_lshl_add_u32 v28, v28, 13, v29
        v_lshlrev_b32 v29, 6, v{TID}
        s_lshl_b32 s3, s{sB}, 2
        s_add_u32 s3, s3, s{sWP}
        s_mul_i32 s3, s3, {TR * 8192}
        s_add_u32 s3, s3, {(576 - 32 * TR) * 8192}
        s_bfe_u32 s6, s2, 0x20003
        s_lshl_b32 s6, s6, 2
        s_add_u32 s6, s6, s{sWP}
        s_mul_i32 s6, s6, {162 * 64}
        """)
        tw = [(i, min(8, TR - 8 * i) * 8) for i in range((TR + 7) // 8)]; tx = [(0, 64), (1, 64), (2, 34)]
        k = 0
        for i in range(3):
            for (lst, v, srd, so, step) in ((tw, 28, 8, 3, 8 * 8192), (tx, 29, 20, 6, 4096)):
                if i >= len(lst): continue
                n = lst[i][1]
                if n < 64: P(f's_mov_b64 exec, {hex((1 << n) - 1)}' if n <= 31 else f's_mov_b32 exec_hi, {(1 << (n - 32)) - 1}')
                P(f'buffer_load_dword v{248 + k}, v{v}, s[{srd}:{srd + 3}], s{so} offen {ntw}'); k += 1
                if n < 64: P('s_mov_b64 exec, -1')
                P(f's_add_u32 s{so}, s{so}, {step}')
        return k
    def ptouch():
        pg = OPT['ptouch']
        P(f"""
        s_lshl_b32 s7, s{sJ}, 9
        s_mul_i32 s6, s{sB}, 165888
        s_add_u32 s8, s62, s7
        s_addc_u32 s9, s63, 0
        s_add_u32 s20, s56, s6
        s_addc_u32 s21, s57, 0
        s_mov_b32 s22, 165888
        v_lshlrev_b32 v28, 16, v{TID}
        s_lshl_b32 s3, s{sWP}, 20
        s_add_u32 s3, s3, {65536 * 4}
        s_mov_b64 exec, 0xffff
        buffer_load_dword v248, v28, s[8:11], s3 offen
        s_mov_b64 exec, 0xf
        s_mov_b32 s3, {65536 * 68}
        s_cmp_eq_u32 s{sWP}, 0
        s_cbranch_scc0 K1_PT1
        buffer_load_dword v249, v28, s[8:11], s3 offen
        buffer_load_dword v250, v28, s[20:23], 0 offen
        s_branch K1_PT2
        K1_PT1:
        buffer_load_dword v249, v28, s[12:15], 0 offen {nk}
        buffer_load_dword v250, v28, s[16:19], 0 offen {nk}
        K1_PT2:
        s_mov_b64 exec, -1
        """)
    TR = OPT['trows']
    NT = (TR + 7) // 8 + 3
    if OPT['wtouch'] == 1: touches()
    if OPT['ptouch']: ptouch(); NT = 3
    P(lanec)
    if OPT['wtouch'] == 2: touches()
    P(f"""
    v_mul_u32_u24 v18, 3072, v12
    v_add_u32 v18, {STG0 + SB0 * STGS}, v18
    v_add_u32 v{QW[0]}, v17, v18
    v_xor_b32 v{QW[1]}, 64, v{QW[0]}
    v_xor_b32 v{QW[2]}, 0x80, v{QW[0]}
    v_xor_b32 v{QW[3]}, 0xc0, v{QW[0]}
    s_lshl_b32 s6, s{sWP}, 2
    v_add_u32 v18, s6, v15
    v_xor_b32 v18, v18, v16
    v_lshlrev_b32 v18, 4, v18
    v_lshl_add_u32 v18, v20, 3, v18
    v_lshl_add_u32 v18, v10, 8, v18
    v_mul_u32_u24 v19, 3072, v2
    v_add_u32 v19, {STG0 + SB0 * STGS}, v19
    v_add_u32 v{QW9}, v18, v19
    v_xor_b32 v22, v12, v10
    v_lshlrev_b32 v22, 4, v22
    v_lshl_add_u32 v22, v3, 6, v22
    v_mul_u32_u24 v19, 3072, v13
    s_mul_i32 s6, s{sWP}, 6144
    s_add_u32 s6, s6, {STG0 + SB0 * STGS + 2048}
    v_add3_u32 v{QX[0]}, v22, v19, s6
    v_xor_b32 v{QX[1]}, 32, v{QX[0]}
    v_xor_b32 v22, v2, v10
    v_lshlrev_b32 v22, 4, v22
    v_lshl_add_u32 v22, v3, 6, v22
    v_add_u32 v{QX9}, {STG0 + SB0 * STGS + 24576}, v22
    v_lshl_add_u32 v27, v2, 3, v26
    s_lshl_b32 s6, s{sWP}, 6
    s_add_u32 s6, s6, {Q9B}
    v_add_u32 v{S9 + 2}, s6, v27
    """)
    z = list(range(CN9, CN9 + 4)) + list(range(108, 112)) + [L, L9]
    for hd in range(2):
        for a in ACC[hd]: z += list(range(a, a + 16))
        for a in ACC9[hd]: z += list(range(a, a + 4))
    for r in z: P(f'v_mov_b32 v{r}, 0')
    if OPT['fused']:
        P(f"""
        s_cmp_eq_u32 s{sW}, 4
        s_cbranch_scc0 K1_E1
        s_mov_b32 s8, s64
        s_mov_b32 s9, s65
        s_mov_b32 s10, 256
        s_waitcnt vmcnt({NT if OPT['wtouch'] or OPT['ptouch'] else 0})
        v_add_u32 v244, 1, v244
        v_max_u32 v244, 1, v244
        v_mov_b32 v245, 0
        v_mov_b32 v247, v244
        s_mov_b64 exec, 1
        buffer_atomic_cmpswap v[244:245], v246, s[8:11], 0 offen sc0
        s_mov_b64 exec, -1
        K1_E1:
        """)
    P(f's_mov_b32 s{sIB}, {SB0}\ns_barrier')
    stamp(1)
    qit = []
    def qmain(kk, hd, dt):
        return (lambda F: [f'ds_read_b64_tr_b16 {vr(F + 2 * j, 2)}, v{QW[dt]} offset:{hd * 12288 + kk * 6144 + j * 1024}' for j in range(2)],
                lambda F: mf32(ACC[hd][dt], F, QB[kk]))
    def q9(hd, t):
        return (lambda F: [f'ds_read_b64_tr_b16 {vr(F + 2 * j, 2)}, v{QW9} offset:{hd * 12288 + t * 32 + j * 1024}' for j in range(2)],
                lambda F: mf16(ACC9[hd][t], F, QB9))
    qit = [qmain(0, hd, dt) for hd in range(2) for dt in range(4)] + [q9(hd, t) for hd in range(2) for t in range(2)] + [qmain(1, hd, dt) for hd in range(2) for dt in range(4)]
    nq = len(QF); NQ = len(qit); QD = OPT['qdelay']
    qrd = lambda i: qit[i % NQ][0](QF[i % nq])
    bheads = [f'ds_read_b128 {vr(QB[0], 4)}, v{QX[0]}', f'ds_read_b128 {vr(QB9, 4)}, v{QX9}']
    upd = [f'v_add_u32 v{r}, s{sDL}, v{r}' for r in QW + QX + [QX9, QW9]]
    P(bheads[0])
    for i in range(nq):
        P.extend(qrd(i))
        if i == 3: P(bheads[1])
    def qmf(i):
        m = qit[i][1](QF[i % nq])
        if i % 2 == 0 and i + 1 < NQ: m += f' ; need {vr(QF[(i + 1) % nq], 4)}'
        return m
    cut = NQ - nq + QD + 1
    P('s_branch K1_QM\nK1_QL:\ns_barrier')
    if OPT['stamps'] == 2: stamp(2, OPT['sq'])
    qpend = [bheads[0]] + [x for jj in range(QD + 1) for x in qrd(jj)]
    for i in range(cut, NQ):
        P(qmf(i))
        qpend += qrd(i + nq)
        if i == NQ - 2: qpend.append(bheads[1])
        n = len(qpend) if i == NQ - 1 else 4
        P.extend(qpend[:n]); qpend = qpend[n:]
    P('K1_QM:')
    if OPT['stamps'] == 1 and not OPT['fused']: stamp(5, 3); stamp(6, 6); stamp(9, 9); stamp(10, 12)
    if OPT['stamps'] == 2: stamp(5, OPT['sq'] - 1); stamp(6, OPT['sq'])
    for i in range(cut):
        P(qmf(i))
        if i + nq < NQ: P.extend(qrd(i + nq))
        if i == 0: P(f'ds_read_b128 {vr(QB[1], 4)}, v{QX[1]}')
        if i == 2: P(f's_cmp_eq_u32 s{sIB}, {NSB - 1}\ns_cselect_b32 s{sDL}, {-(NSB - 1) * STGS & 0xffffffff}, {STGS}')
        if i == 4: P(f's_add_u32 s{sIB}, s{sIB}, 1\ns_cmp_eq_u32 s{sIB}, {NSB}\ns_cselect_b32 s{sIB}, 0, s{sIB}')
        if i == 10: P.extend(upd[:4])
        if i == 11:
            P.extend(upd[4:])
            if OPT['stamps'] == 2: stamp(3, OPT['sq'] - 1)
            P(f's_add_u32 s{sCNT}, s{sCNT}, 1\ns_cmp_lt_u32 s{sCNT}, 18')
    P('s_cbranch_scc1 K1_QL\ns_barrier')
    for i in range(cut, NQ): P(qmf(i))
    if OPT['stamps'] == 1: stamp(2)
    P(f's_mov_b32 s6, {CSCALE}')
    for hd in range(2):
        for t in range(2):
            a = ACC9[hd][t]
            for i in range(4): P(f'v_mul_f32 v{a + i}, s6, v{a + i}')
            P(f'v_cvt_pk_bf16_f32 v{a}, v{a}, v{a + 1}\nv_cvt_pk_bf16_f32 v{a + 1}, v{a + 2}, v{a + 3}')
            P(f'ds_write_b64 v{S9 + 2}, {vr(a, 2)} offset:{hd * 4352 + t * 32}')
    for dt in [0, 1, 2, 3]:
        a = ACC[0][dt]
        for i in range(16): P(f'v_mul_f32 v{a + i}, s6, v{a + i}')
        for hf in range(2):
            for i in range(4): P(f'v_cvt_pk_bf16_f32 v{a + 8 * hf + i}, v{a + 8 * hf + 2 * i}, v{a + 8 * hf + 2 * i + 1}')
            P(f'ds_write_b128 v{S9 + 1}, {vr(a + 8 * hf, 4)} offset:{(2 * dt + hf) * 1024}')
    P('s_waitcnt vmcnt(0)')
    if OPT['fused']:
        P(f"""
        s_cmp_eq_u32 s{sW}, 4
        s_cbranch_scc0 K1_E2
        s_waitcnt vmcnt(0)
        v_cmp_eq_u32 vcc, 0, v244
        v_mov_b32 v246, {Q9B + 8704}
        s_mov_b64 exec, 1
        v_cndmask_b32 v244, v244, v247, vcc
        ds_write_b32 v246, v244
        s_getreg_b32 s3, hwreg(HW_REG_XCC_ID, 0, 4)
        v_lshl_add_u32 v245, v244, 4, s3
        s_and_b32 s3, s2, 7
        s_lshl_b32 s3, s3, 5
        s_lshr_b32 s7, s2, 3
        s_add_u32 s3, s3, s7
        s_lshl_b32 s3, s3, 2
        v_mov_b32 v246, s3
        buffer_store_dword v245, v246, s[52:55], 0 offen offset:1024 sc1
        s_mov_b64 exec, -1
        K1_E2:
        """)
    P(loopinit); P(narrow)
    P('s_barrier')
    P(getE)
    for kk in range(4): P(f'ds_read_b128 {vr(Q9 + 4 * kk, 4)}, v{S9} offset:{kk * 64}')
    for i in range(16): P(f'v_mul_f32 v{ACC[1][0] + i}, s6, v{ACC[1][0] + i}')
    P('s_barrier')
    P(getE2)
    for dt in range(4):
        a = ACC[1][dt]
        if dt:
            for i in range(16): P(f'v_mul_f32 v{a + i}, s6, v{a + i}')
        for i in range(8): P(f'v_cvt_pk_bf16_f32 v{Q + dt * 8 + i}, v{a + 2 * i}, v{a + 2 * i + 1}')
    for r in list(range(O, O + 64)) + list(range(CN, CN + 12)) + list(range(O9, O9 + 32)): P(f'v_mov_b32 v{r}, 0')
    P('s_barrier\nK1_HEAD:')

    def dma_sites(vo, srd, so, mb):
        out = []
        for n in range(4):
            g = [f's_add_u32 m0, s{mb}, s{sMW}', 's_nop 0'] if n == 0 else []
            g.append(f'buffer_load_dwordx4 v{vo}, s[{srd}:{srd + 3}], s{so} offen offset:{n * 1024} {nk} lds')
            if n == 3: g.append(f's_add_u32 s{so}, s{so}, 16384')
            out.append(g)
        return out
    dmaV = dma_sites(VOV, 16, sSV, sIS); dmaK = dma_sites(VOK, 12, sSK, sIK)
    book = f"""s_mov_b32 s{sIS}, s{sKP}
    s_add_u32 s{sKP}, s{sKP}, 65536
    s_cmp_ge_u32 s{sKP}, 163840
    s_cselect_b32 s3, 163840, 0
    s_sub_u32 s{sKP}, s{sKP}, s3
    s_sub_u32 s{sDK}, 65536, s3
    s_mov_b32 s{sIK}, s{sVP}
    s_add_u32 s{sVP}, s{sVP}, 65536
    s_cmp_ge_u32 s{sVP}, 163840
    s_cselect_b32 s3, 163840, 0
    s_sub_u32 s{sVP}, s{sVP}, s3
    s_sub_u32 s{sDV}, 65536, s3""".split('\n')
    vupd = [f'v_add_u32 v{VA + i}, s{sDV}, v{VA + i}' for i in range(4)] + [f'v_add_u32 v{AV9}, s{sDV}, v{AV9}']
    kupd = [f'v_add_u32 v{AK}, s{sDK}, v{AK}', f'v_add_u32 v{AK9}, s{sDK}, v{AK9}']
    def kmain(kk, mt):
        tmp = [T0, T1][kk & 1]
        pre = [f'v_xor_b32 v{tmp}, {kk << 5}, v{AK}'] if (mt == 0 and kk) else []
        ad = tmp if kk else AK
        return dict(rd=lambda F: pre + [f'ds_read_b128 {vr(F, 4)}, v{ad} offset:{mt * 2048}'],
                    mf=lambda F: [mf32(S + 16 * mt, F, Q + 4 * kk, CN if kk == 0 else None)], w=32)
    def k9(kk):
        pre = [f'v_xor_b32 v{X0}, {kk << 6}, v{AK9}'] if kk else []
        ad = X0 if kk else AK9
        return dict(rd=lambda F: pre + [f'ds_read_b128 {vr(F, 4)}, v{ad}'],
                    mf=lambda F: [mf16(S9, F, Q9 + 4 * kk, CN9 if kk == 0 else None)], w=16)
    def vmain(ks, dt):
        mt, u = ks >> 1, ks & 1
        return dict(rd=lambda F: [f'ds_read_b64_tr_b16 {vr(F + 2 * j, 2)}, v{VA + dt} offset:{u * 8192 + j * 4096 + mt * 2048}' for j in range(2)],
                    mf=lambda F: [mf32(O + 16 * dt, F, PP + 4 * ks)], w=32)
    def v9(pp):
        pre = [f'v_xor_b32 v{X1}, {pp << 6}, v{AV9}'] if pp else []
        ad = X1 if pp else AV9
        return dict(rd=lambda F: pre + [f'ds_read_b64_tr_b16 {vr(F + 2 * j, 2)}, v{ad} offset:{32 * j}' for j in range(2)],
                    mf=lambda F: [mf16h(O9 + 4 * (2 * pp + j), F + 2 * j, P9) for j in range(2)], w=32)
    itA = []
    for kk in range(8):
        itA += [kmain(kk, 0), kmain(kk, 1)]
        if 1 <= kk <= 4: itA.append(k9(kk - 1))
    itC = []
    for dt in range(4): itC += [vmain(0, dt), v9(dt)]
    for ks in range(1, 4): itC += [vmain(ks, dt) for dt in range(4)]
    lastP = {0: 6, 1: 11, 2: 15, 3: 19, 9: 7}
    nb = len(FB); items = itA + itC; N = len(items); nA = len(itA)
    assert N % nb == 0 and nA % nb == 0
    RD = lambda i: items[i % N]['rd'](FB[i % nb])
    DL = OPT['bdelay']
    def MF(i, pair=True):
        m = items[i]['mf'](FB[i % nb])
        if pair and OPT['pairw'] and i % 2 == 0 and (i + 1) % nA != 0: m[0] += f' ; need {vr(FB[(i + 1) % nb], 4)}'
        return m
    def sync(wait='vmcnt(12)'): return [f's_waitcnt {wait}', 's_barrier']
    def gsync(lbl, group0, wait):
        return [f's_cmp_lt_u32 s{sW}, 4', f's_cbranch_scc{0 if group0 else 1} {lbl}', f's_waitcnt {wait}', 's_barrier', f'{lbl}:']
    DS = OPT['dstep']
    mx = [f'v_max3_f32 v{T1}, v{S9}, v{S9 + 1}, v{S9 + 2}', f'v_max_f32 v{T1}, v{T1}, v{S9 + 3}', f'v_max3_f32 v{T0}, v{S}, v{S + 1}, v{S + 2}']
    mx += [f'v_max3_f32 v{T0}, v{T0}, v{S + 3 + 2 * i}, v{S + 4 + 2 * i}' for i in range(6)]
    mx += [f'v_max3_f32 v{X0}, v{S + 16}, v{S + 17}, v{S + 18}']
    mx += [f'v_max3_f32 v{X0}, v{X0}, v{S + 19 + 2 * i}, v{S + 20 + 2 * i}' for i in range(6)]
    mx += [f'v_max3_f32 v{X0}, v{X0}, v{S + 15}, v{S + 31}', f'v_max_f32 v{T0}, v{T0}, v{X0}', f'v_max_f32 v{X0}, v{T0}, v{T1}', f'v_cmp_lt_f32 vcc, s{sT}, v{X0}']
    fill = []
    for ks in range(4):
        b = S + 8 * ks
        for i in range(0, 8, 2):
            fill += [(0, f'v_exp_f32 v{b + i}, v{b + i}'), (0, f'v_exp_f32 v{b + i + 1}, v{b + i + 1}')]
            if i: fill += [(0, f'v_add_f32 v{L}, v{L}, v{b + i - 2}'), (0, f'v_add_f32 v{L}, v{L}, v{b + i - 1}')]
        if ks == 0: fill += [(0, f'v_exp_f32 v{S9 + i}, v{S9 + i}') for i in range(4)]
        fill += [(0, f'v_add_f32 v{L}, v{L}, v{b + 6}'), (0, f'v_add_f32 v{L}, v{L}, v{b + 7}')]
        if ks == 0: fill += [(0, f'v_add_f32 v{L9}, v{L9}, v{S9 + i}') for i in range(4)]
        fill += [(lastP[ks], f'v_cvt_pk_bf16_f32 v{PP + 4 * ks + i}, v{b + 2 * i}, v{b + 2 * i + 1}') for i in range(4)]
        if ks == 0: fill += [(lastP[9], f'v_cvt_pk_bf16_f32 v{P9 + i}, v{S9 + 2 * i}, v{S9 + 2 * i + 1}') for i in range(2)]
    for i in range(nb): P.extend(RD(i))
    if OPT['stamps'] == 1: stamp(7)
    for i in range(nA):
        P.extend(MF(i))
        if i + nb < nA: P.extend(RD(i + nb))
        if i + nb - nA == DL: P.extend(sync('vmcnt(63)'))
        if i in (1, 3, 5, 7): P.extend(dmaV[(i - 1) // 2])
    if OPT['pa'] != OPT['pc']: P(f's_setprio {OPT["pc"]}')
    P.extend(kupd + mx[:-1]); P('s_branch K1_RARE1\nK1_CPB:')
    P(f's_mov_b32 s{sRARE}, 0')
    ktail = [q for q in range(4) if DL + q * DS < nb]
    for i, (_, t) in enumerate(fill):
        P(t)
        if i == len(fill) - 12:
            P.extend(sync(f'vmcnt({X1N})'))
            for jj in range(nb): P.extend(RD(jj))
            for q in ktail: P.extend(dmaK[q])
    P('K1_TOP:')
    if OPT['stamps'] == 1 and not OPT['fused']: stamp(11, 2); stamp(8, 5)
    if OPT['pa'] != OPT['pc']: P(f's_setprio {OPT["pa"]}')
    if OPT['stamps'] == 2: stamp(7, 3); stamp(11, 4)
    def sites(pos, dm):
        return [x for q in range(4) if q * DS == pos for x in dm[q]]
    for i in range(nA):
        P.extend(MF(i))
        j = i + nb - nA
        if j < 0: P.extend(RD(i + nb))
        elif j == DL:
            P.extend(sync())
            for jj in range(DL + 1): P.extend(RD(nA + jj))
        elif j > DL: P.extend(RD(i + nb))
        P.extend(sites(i + nb - DL, dmaK))
        if j >= DL: P.extend(sites(j - DL, dmaV))
        if i == 2: P.extend(vupd)
        if i == 9: P.extend(book[:6])
        if i == 11: P.extend(book[6:])
    if OPT['stamps'] == 2: stamp(8, 3)
    if OPT['pa'] != OPT['pc']: P(f's_setprio {OPT["pc"]}')
    cost = lambda t: 2 if 'exp' in t else (0 if 'BR' in t else 1)
    full = [(0, t) for t in kupd + mx] + [(0, 'BR')] + fill
    tot = sum(cost(t) for _, t in full)
    pend = list(full); acc = 0; cw = 0; wsum = sum(it['w'] for it in itC)
    for c in range(len(itC)):
        i = nA + c
        P.extend(MF(i)); cw += itC[c]['w']
        j = i + nb - N
        if j < 0: P.extend(RD(i + nb))
        elif j == DL:
            P.extend(sync())
            for jj in range(DL + 1): P.extend(RD(jj))
        elif j > DL: P.extend(RD(i + nb))
        P.extend(sites(c + nb - DL, dmaV))
        if j >= DL: P.extend(sites(j - DL, dmaK))
        goal = tot * min(1.0, cw / (wsum - 32))
        q = 0
        while q < len(pend) and acc + cost(pend[q][1]) <= goal + 1:
            if pend[q][0] > c: q += 1; continue
            acc += cost(pend[q][1]); t = pend.pop(q)[1]
            P('s_cbranch_vccnz K1_RARE1\nK1_R1B:' if t == 'BR' else t)
    for _, t in pend: P(t)
    if OPT['stamps'] == 2: stamp(10, 3)
    P(f"""
    s_add_u32 s{sCNT}, s{sCNT}, 1
    s_add_u32 s3, s{sCNT}, s{sRARE}
    s_cmp_lt_u32 s3, 8
    s_cbranch_scc1 K1_TOP
    s_cmp_lg_u32 s{sRARE}, 0
    s_cbranch_scc1 K1_RARE2
    K1_NEXT:
    s_cmp_lt_u32 s{sCNT}, 8
    s_cbranch_scc1 K1_TOP
    s_branch K1_PVO
    """)
    P(f"""
    K1_RARE1:
    v_mov_b32 v{X0}, v{T0}
    v_mov_b32 v{X1}, v{T1}
    v_permlane32_swap_b32 v{T0}, v{X0}
    v_permlane32_swap_b32 v{T1}, v{X1}
    v_max3_f32 v{T0}, v{T0}, v{X0}, s{sCL}
    v_max_f32 v{T1}, v{T1}, v{X1}
    v_mov_b32 v{X1}, v{T1}
    v_max_f32 v{AL}, 0, v{T0}
    v_permlane16_swap_b32 v{T1}, v{X1}
    v_max3_f32 v{T1}, v{T1}, v{X1}, s{sCL}
    v_max_f32 v{AL9}, 0, v{T1}
    v_exp_f32 v{AL}, -v{AL}
    v_exp_f32 v{AL9}, -v{AL9}
    """)
    for i in range(32): P(f'v_sub_f32 v{S + i}, v{S + i}, v{T0}')
    for i in range(16): P(f'v_sub_f32 v{CN + i}, v{CN + i}, v{T0}')
    for i in range(4): P(f'v_sub_f32 v{S9 + i}, v{S9 + i}, v{T1}')
    for i in range(4): P(f'v_sub_f32 v{CN9 + i}, v{CN9 + i}, v{T1}')
    P(f"""
    v_mul_f32 v{L}, v{L}, v{AL}
    v_mul_f32 v{L9}, v{L9}, v{AL9}
    s_mov_b32 s{sT}, {f2u(8.0)}
    s_cmp_lg_u32 s{sCL}, 0
    s_mov_b32 s{sCL}, 0
    s_mov_b32 s{sRARE}, 8
    s_cbranch_scc1 K1_CPB
    s_branch K1_R1B
    K1_RARE2:
    """)
    for i in range(64): P(f'v_mul_f32 v{O + i}, v{O + i}, v{AL}')
    for i in range(32): P(f'v_mul_f32 v{O9 + i}, v{O9 + i}, v{AL9}')
    P(f"""
    s_mov_b32 s{sRARE}, 0
    s_branch K1_NEXT
    K1_PVO:
    """)
    if OPT['stamps'] == 1: stamp(3)
    P.extend(vupd)
    if OPT['fused']:
        P(f"""
        s_and_b32 s{sKP}, s2, 3
        s_mul_i32 s6, s{sKP}, {1024 * 1152}
        s_add_u32 s8, s100, s6
        s_addc_u32 s9, s101, 0
        s_sub_u32 s10, {4096 * 1152}, s6
        s_mov_b32 s11, 0x20000
        """)
        if OPT['wot']:
            P(f"""
            s_lshr_b32 s6, s2, 3
            s_lshl_b32 s6, s6, 3
            s_add_u32 s6, s6, s{sW}
            s_mul_i32 s6, s6, {36 * 128}
            v_lshlrev_b32 v{Q}, 6, v{TID}
            buffer_load_dword v{Q + 1}, v{Q}, s[8:11], s6 offen {OPT['nt_wo']}
            s_add_u32 s6, s6, 4096
            s_mov_b64 exec, 0xff
            buffer_load_dword v{Q + 2}, v{Q}, s[8:11], s6 offen {OPT['nt_wo']}
            s_mov_b64 exec, -1
            """)
    P.extend(sync('vmcnt(2)' if OPT['fused'] and OPT['wot'] else 'vmcnt(0)'))
    if OPT['fused'] and OPT['loc']:
        P(f"""
        s_cmp_eq_u32 s{sW}, 4
        s_cbranch_scc0 K1_XL
        s_and_b32 s3, s2, 7
        s_lshl_b32 s3, s3, 7
        v_lshlrev_b32 v{Q + 3}, 2, v{TID}
        buffer_load_dword v{Q + 3}, v{Q + 3}, s[52:55], s3 offen offset:1024 sc1
        K1_XL:
        """)
    for i in range(nb): P.extend(RD(nA + i))
    groups = [MF(nA + c) + (RD(nA + c + nb) if c + nb < len(itC) else []) for c in range(len(itC))]
    epi = f'''
    s_mul_i32 s6, s{sBR}, {WS_O_BR}
    s_add_u32 s20, s66, s6
    s_addc_u32 s21, s67, 0
    s_mov_b32 s22, {WS_O_BR}
    s_mov_b32 s23, 0x20000
    s_lshl_b32 s6, s{sJ}, 1
    s_add_u32 s6, s6, s{sP}
    s_lshl_b32 s6, s6, 13
    s_lshl_b32 s7, s{sB}, 2
    s_add_u32 s7, s7, s{sWP}
    s_lshl_b32 s7, s7, 18
    s_add_u32 s{sSK}, s6, s7
    s_add_u32 s{sSV}, s{sSK}, 4096
    s_lshr_b32 s7, s{sB}, 1
    s_add_u32 s7, s7, 32
    s_lshl_b32 s7, s7, 18
    s_add_u32 s{sIS}, s6, s7
    s_lshl_b32 s7, s{sWP}, 11
    s_add_u32 s{sIS}, s{sIS}, s7
    s_and_b32 s7, s{sB}, 1
    s_lshl_b32 s7, s7, 8
    s_add_u32 s{sIS}, s{sIS}, s7
    v_mov_b32 v{T0}, v{L}
    v_mov_b32 v{T1}, v{L9}
    v_lshlrev_b32 v{VOK}, 4, v{TID}
    v_permlane32_swap_b32 v{L}, v{T0}
    v_permlane32_swap_b32 v{L9}, v{T1}
    v_add_f32 v{L}, v{L}, v{T0}
    v_add_f32 v{L9}, v{L9}, v{T1}
    v_mov_b32 v{T1}, v{L9}
    v_rcp_f32 v{AL}, v{L}
    v_permlane16_swap_b32 v{L9}, v{T1}
    v_add_f32 v{CN9 + 1}, v{L9}, v{T1}
    '''.strip().split('\n')
    for i, g in enumerate(groups):
        P.extend(g)
        if i < len(epi) // 2: P.extend(epi[2 * i:2 * i + 2])
    P.extend(epi[2 * (len(epi) // 2):] if len(groups) >= len(epi) // 2 else epi[2 * len(groups):])
    if OPT['fused']: phase2(P, stamp, locals(), 0)
    x9 = gsync('K1_X9', True, 'vmcnt(2)')
    P.extend(x9[:-1])
    if OPT['fused']: phase2(P, stamp, locals(), 3)
    P(x9[-1])
    P(f'''
    s_lshl_b32 s6, s{sW}, 13
    s_add_u32 s6, s6, 98304
    v_add_u32 v{T0}, s6, v{VOK}
    v_and_b32 v{T1}, 15, v{TID}
    v_lshlrev_b32 v{T1}, 3, v{T1}
    s_lshl_b32 s7, s{sW}, 7
    s_add_u32 s7, s7, 97280
    v_add_u32 v{X0}, s7, v{T1}
    ds_write_b64 v{X0}, {vr(CN9, 2)}
    ''')
    for d9 in range(8): P(f'ds_write_b128 v{T0}, {vr(O9 + 4 * d9, 4)} offset:{d9 * 1024}')
    os_ = ('' if OPT['loc'] else 'sc1') if OPT['fused'] else OPT['ostore']
    for dt in range(4):
        for i in range(16): P(f'v_mul_f32 v{O + 16 * dt + i}, v{O + 16 * dt + i}, v{AL}')
        for hf in range(2):
            d = S + 8 * dt + 4 * hf
            for i in range(4): P(f'v_cvt_pk_bf16_f32 v{d + i}, v{O + 16 * dt + 8 * hf + 2 * i}, v{O + 16 * dt + 8 * hf + 2 * i + 1}')
            ks = 2 * dt + hf
            P(f'buffer_store_dwordx4 {vr(d, 4)}, v{VOK}, s[20:23], s{sSK if ks < 4 else sSV} offen offset:{(ks & 3) * 1024} {os_}')
    if OPT['fused']: phase2(P, stamp, locals(), 4)
    P('s_barrier')
    if OPT['fused']: phase2(P, stamp, locals(), 1)
    P(f'''
    s_lshl_b32 s6, s{sP}, 9
    s_add_u32 s6, s6, 97280
    v_add_u32 v{X0}, s6, v{T1}
    s_lshl_b32 s6, s{sP}, 15
    s_lshl_b32 s7, s{sWP}, 11
    s_add_u32 s6, s6, s7
    s_add_u32 s6, s6, 98304
    v_add_u32 v{T0}, s6, v{VOK}
    ''')
    ST = 0
    for w in range(4): P(f'ds_read_b64 {vr(ST + 2 * w, 2)}, v{X0} offset:{w * 128}')
    for w in range(4):
        for t in range(2): P(f'ds_read_b128 {vr(8 + 8 * w + 4 * t, 4)}, v{T0} offset:{w * 8192 + t * 1024}')
    P(f'''
    v_min3_f32 v40, v0, v2, v4
    v_min_f32 v40, v40, v6
    ''')
    for w in range(4): P(f'v_sub_f32 v{2 * w}, v40, v{2 * w}')
    for w in range(4): P(f'v_exp_f32 v{2 * w}, v{2 * w}')
    P(f'''
    v_lshrrev_b32 v42, 5, v{TID}
    v_bfe_u32 v43, v{TID}, 4, 1
    v_mul_f32 v41, v0, v1
    v_fmac_f32 v41, v2, v3
    v_fmac_f32 v41, v4, v5
    v_fmac_f32 v41, v6, v7
    v_rcp_f32 v41, v41
    v_lshlrev_b32 v44, 1, v{T1}
    v_lshl_add_u32 v44, v42, 9, v44
    v_lshl_add_u32 v44, v43, 3, v44
    ''')
    for w in range(4): P(f'v_mul_f32 v{2 * w}, v{2 * w}, v41')
    for i in range(8): P(f'v_mul_f32 v{8 + i}, v{8 + i}, v0')
    for w in range(1, 4):
        for i in range(8): P(f'v_fmac_f32 v{8 + i}, v{8 + 8 * w + i}, v{2 * w}')
    for t in range(2):
        P(f'v_cvt_pk_bf16_f32 v{46 + 2 * t}, v{8 + 4 * t}, v{9 + 4 * t}')
        P(f'v_cvt_pk_bf16_f32 v{47 + 2 * t}, v{10 + 4 * t}, v{11 + 4 * t}')
        P(f'buffer_store_dwordx2 {vr(46 + 2 * t, 2)}, v44, s[20:23], s{sIS} offen offset:{t * 1024} {os_}')
    if OPT['fused']: phase2(P, stamp, locals(), 2)
    if OPT['stamps']:
        P('K1_STAMPS:' if OPT['fused'] else 's_waitcnt vmcnt(0)')
        if not OPT['fused']: stamp(4)
        P(f'''
        s_waitcnt lgkmcnt(0)
        s_add_u32 s20, s66, {WS_STAMP}
        s_addc_u32 s21, s67, 0
        s_mov_b32 s22, 0x100000
        s_mov_b32 s23, 0x20000
        s_lshl_b32 s6, s2, 3
        s_add_u32 s6, s6, s{sW}
        s_lshl_b32 s6, s6, 7
        v_mov_b32 v2, s6
        s_mov_b64 exec, 1
        ''')
        if OPT['probe'] >= 0:
            k = OPT['probe']
            lo, base = (98, 96) if k == 99 else (70 + 2 * k, 70)
            P(f"""
            s_cmp_lg_u32 s2, {OPT['pwg']}
            s_cbranch_scc1 K1_END
            s_cmp_lg_u32 s{sW}, {OPT['pw']}
            s_cbranch_scc1 K1_END
            s_sub_u32 s6, s{lo}, s{base}
            s_mul_i32 s6, s6, {1 if k == 99 else 10}
            s_memrealtime s[72:73]
            s_waitcnt lgkmcnt(0)
            s_add_u32 s6, s6, s72
            {'s_add_u32 s6, s70, 30000' if k == 0 else ''}
            K1_SPIN:
            s_memrealtime s[72:73]
            s_waitcnt lgkmcnt(0)
            s_sub_u32 s7, s72, s6
            s_cmp_lt_i32 s7, 0
            s_cbranch_scc1 K1_SPIN
            s_branch K1_END
            """)
        if OPT['dbgst']:
            P('s_mov_b32 s20, s64\ns_mov_b32 s21, s65\ns_mov_b32 s22, 256\nv_mov_b32 v2, 0\ns_not_b32 s70, s70')
            for i, k in enumerate([0, 1, 2, 7, 3, 4, 5, 6, 9, 10, 11, 8]):
                P(f'v_mov_b32 v4, s{70 + 2 * k}\nbuffer_atomic_umax v4, v2, s[20:23], 0 offen offset:{4 + 4 * i}\ns_nop 1')
        for k in range(0 if OPT['dbgst'] else 15):
            P(f'v_mov_b32 v4, s{70 + 2 * k}\nv_mov_b32 v5, s{71 + 2 * k}\nbuffer_store_dwordx2 v[4:5], v2, s[20:23], 0 offen offset:{8 * k}\ns_nop 1')
    P('K1_END:\ns_endpgm')
    a0 = [i for i, x in enumerate(P.ins) if x.text == 'K1_G1:'][0]; a1 = [i for i, x in enumerate(P.ins) if x.text == 'K1_PVO:'][0]
    keep = []
    kt = [i for i, x in enumerate(P.ins) if x.text == 'K1_TOP:'][0]
    kp0 = [i for i, x in enumerate(P.ins) if x.text == 'K1_G1:'][0]; kp1 = [i for i, x in enumerate(P.ins) if x.text == 'K1_QL:'][0]
    for i, x in enumerate(P.ins):
        if a0 < i < a1:
            if OPT['nodma'] and x.dma and not (kp0 < i < kp1): continue
            if OPT['nobar'] and x.kind == 'barrier': continue
            if OPT['noexp'] and x.kind in ('valu', 'trans') and ('exp' in x.text or 'v_add_f32' in x.text or 'cvt_pk' in x.text or 'max3' in x.text): continue
            if OPT['nolds'] and x.kind == 'ds_r': continue
            if OPT['nomf'] and i > kt and (x.kind in ('mfma', 'ds_r', 'trans') or (x.kind == 'valu' and 'v_cmp' not in x.text)): continue
        keep.append(x)
    P.ins = keep
    return P.finish()

def k2():
    P = Prog()
    NB = OPT['k2nb']; STG = 40960
    ACC = [[16 * (2 * i + j) for j in range(2)] for i in range(3)]
    SA = dict(A=[96, 100, 104], B=[108, 112]); SB = dict(A=[116, 120, 124], B=[128, 132])
    AA = [136, 137, 138]; AB = 139; VW, VO, TID = 140, 141, 142
    sW, sWN, sWQ, sBR, sKS, sQB, sN3, sIDX = 24, 25, 26, 27, 28, 29, 30, 31
    sCNT, sIB, sDL, sSW, sSO, sTMP, sMW, sMO, sIP, sOST, sWST = 32, 33, 34, 35, 36, 37, 38, 39, 40, 41, 42
    P(f'''
    s_cmp_ge_u32 s2, 216
    s_cbranch_scc1 K2_END
    s_and_b32 s3, s2, 7
    s_lshr_b32 s{sBR}, s3, 2
    s_and_b32 s{sKS}, s3, 3
    s_mul_i32 s6, s{sBR}, 40
    s_add_u32 s4, s0, s6
    s_addc_u32 s5, s1, 0
    s_load_dwordx2 s[56:57], s[4:5], 32
    s_load_dwordx2 s[58:59], s[0:1], 96
    v_lshrrev_b32 v1, 6, v0
    v_and_b32 v{TID}, 63, v0
    v_readfirstlane_b32 s{sW}, v1
    s_lshr_b32 s{sIDX}, s2, 3
    s_mul_i32 s{sQB}, s{sIDX}, 43
    s_lshr_b32 s{sQB}, s{sQB}, 7
    s_mul_i32 s6, s{sQB}, 3
    s_sub_u32 s{sN3}, s{sIDX}, s6
    s_and_b32 s{sWN}, s{sW}, 1
    s_lshr_b32 s{sWQ}, s{sW}, 1
    v_lshrrev_b32 v2, 3, v{TID}
    v_and_b32 v3, 7, v{TID}
    v_bfe_u32 v4, v{TID}, 4, 1
    v_lshlrev_b32 v4, 2, v4
    v_xor_b32 v3, v3, v4
    s_lshl_b32 s6, s{sW}, 3
    v_add_u32 v2, s6, v2
    v_mul_u32_u24 v2, 1152, v2
    v_lshl_add_u32 v{VW}, v3, 4, v2
    v_lshlrev_b32 v{VO}, 4, v{TID}
    s_mul_i32 s6, s{sKS}, {1024 * 1152}
    s_mul_i32 s7, s{sN3}, 384
    s_add_u32 s6, s6, s7
    s_mul_i32 s7, s{sBR}, {WS_O_BR}
    s_lshl_b32 s3, s{sQB}, 20
    s_add_u32 s7, s7, s3
    s_lshl_b32 s3, s{sKS}, 16
    s_add_u32 s7, s7, s3
    s_lshl_b32 s{sMW}, s{sW}, 10
    s_lshl_b32 s{sMO}, s{sW}, 12
    s_add_u32 s{sMO}, s{sMO}, 24576
    s_mov_b32 s{sSW}, 0
    s_lshl_b32 s{sSO}, s{sW}, 18
    s_waitcnt lgkmcnt(0)
    s_add_u32 s8, s56, s6
    s_addc_u32 s9, s57, 0
    s_sub_u32 s10, {4096 * 1152}, s6
    s_mov_b32 s11, 0x20000
    s_add_u32 s12, s58, s7
    s_addc_u32 s13, s59, 0
    s_mov_b32 s14, 0x100000
    s_mov_b32 s15, 0x20000
    ''')
    def issue():
        o = f's_add_u32 m0, s{sIB}, s{sMO}\ns_nop 0\n'
        for e in range(4): o += f'buffer_load_dwordx4 v{VO}, s[12:15], s{sSO} offen offset:{e * 1024} {OPT["nt_o"]} lds\n'
        o += f's_add_u32 s{sSO}, s{sSO}, 4096\n'
        for gr in range(3):
            for e in range(2):
                o += f's_add_u32 m0, s{sIB}, s{sMW}\n' if (gr, e) == (0, 0) else 's_add_u32 m0, m0, 4096\n'
                o += f's_add_u32 s{sTMP}, s{sSW}, {e * 32 * 1152 + gr * 128}\n'
                o += f'buffer_load_dwordx4 v{VW}, s[8:11], s{sTMP} offen {OPT["nt_wo"]} lds\n'
        o += f's_add_u32 s{sSW}, s{sSW}, {64 * 1152}\n'
        return o
    P(f's_mov_b32 s{sIB}, 0\ns_mov_b32 s{sCNT}, 0\nK2_PRO:')
    P(issue())
    P(f'''
    s_add_u32 s{sIB}, s{sIB}, {STG}
    s_add_u32 s{sCNT}, s{sCNT}, 1
    s_cmp_lt_u32 s{sCNT}, {NB}
    s_cbranch_scc1 K2_PRO
    v_lshrrev_b32 v2, 4, v{TID}
    v_bfe_u32 v10, v{TID}, 2, 2
    v_and_b32 v11, 3, v{TID}
    v_lshrrev_b32 v12, 5, v{TID}
    v_and_b32 v13, 1, v2
    v_and_b32 v15, 1, v11
    v_lshl_add_u32 v15, v13, 1, v15
    v_lshrrev_b32 v16, 1, v10
    v_lshlrev_b32 v16, 2, v16
    v_xor_b32 v15, v15, v16
    v_lshl_add_u32 v17, v12, 3, v10
    v_lshlrev_b32 v17, 7, v17
    v_lshl_add_u32 v14, v15, 4, v17
    v_lshrrev_b32 v15, 1, v11
    v_lshl_add_u32 v14, v15, 3, v14
    v_xor_b32 v15, 64, v14
    s_cmp_eq_u32 s{sWN}, 0
    s_cselect_b64 vcc, -1, 0
    s_cselect_b32 s6, 0, 8192
    s_cselect_b32 s7, 0, 16384
    s_cselect_b32 s3, 8192, 16384
    v_cndmask_b32 v16, v15, v14, vcc
    v_cndmask_b32 v17, v14, v15, vcc
    v_add_u32 v{AA[0]}, s6, v16
    v_add_u32 v{AA[1]}, s7, v17
    v_add_u32 v{AA[2]}, s3, v16
    s_lshl_b32 s6, s{sWQ}, 13
    s_add_u32 s6, s6, 24576
    v_add_u32 v{AB}, s6, v{VO}
    ''')
    for r in range(96): P(f'v_mov_b32 v{r}, 0')
    P(f'''
    s_mov_b32 s{sIB}, 0
    s_mov_b32 s{sCNT}, 0
    s_mov_b32 s{sDL}, {STG}
    s_mov_b32 s{sOST}, 4096
    s_mov_b32 s{sWST}, {64 * 1152}
    s_waitcnt vmcnt({10 * (NB - 1)})
    s_barrier
    ''')
    def rd(st, kk):
        o = []
        for j in range(2): o.append(f'ds_read_b128 {vr(st["B"][j], 4)}, v{AB} offset:{j * 4096 + kk * 1024}')
        for i in range(3):
            for j in range(2): o.append(f'ds_read_b64_tr_b16 {vr(st["A"][i] + 2 * j, 2)}, v{AA[i]} offset:{kk * 2048 + j * 512}')
        return o
    def mm(st):
        return [f'v_mfma_f32_32x32x16_bf16 {vr(ACC[i][j], 16)}, {vr(st["A"][i], 4)}, {vr(st["B"][j], 4)}, {vr(ACC[i][j], 16)}' for i in range(3) for j in range(2)]
    def step(cur, rds, extra=(), dm=()):
        m = mm(cur); extra = list(extra); rds = list(rds); dm = list(dm) + [[]] * 3
        P.extend(rds[:4]); P(m[0]); P.extend(rds[4:6]); P(m[1]); P.extend(rds[6:]); P.extend(dm[0]); P(m[2])
        P.extend(extra[:2]); P(m[3]); P.extend(extra[2:4]); P.extend(dm[1]); P(m[4]); P.extend(extra[4:]); P(m[5]); P.extend(dm[2])
    dms = []
    for e in range(4):
        g = [f's_add_u32 m0, s{sIP}, s{sMO}', 's_nop 0'] if e == 0 else []
        g.append(f'buffer_load_dwordx4 v{VO}, s[12:15], s{sSO} offen offset:{e * 1024} {OPT["nt_o"]} lds')
        if e == 3: g.append(f's_add_u32 s{sSO}, s{sSO}, s{sOST}')
        dms.append(g)
    for gr in range(3):
        for e in range(2):
            g = [f's_add_u32 m0, s{sIP}, s{sMW}' if (gr, e) == (0, 0) else 's_add_u32 m0, m0, 4096',
                 f's_add_u32 s{sTMP}, s{sSW}, {e * 32 * 1152 + gr * 128}',
                 f'buffer_load_dwordx4 v{VW}, s[8:11], s{sTMP} offen {OPT["nt_wo"]} lds']
            if (gr, e) == (2, 1): g.append(f's_add_u32 s{sSW}, s{sSW}, s{sWST}')
            dms.append(g)
    P.extend(rd(SA, 0))
    P(f'''
    s_branch K2_E
    K2_L:
    ''')
    step(SA, rd(SB, 1), dm=dms[3:6])
    step(SB, rd(SA, 2), dm=dms[6:8])
    step(SA, rd(SB, 3), [f'v_add_u32 v{r}, s{sDL}, v{r}' for r in AA + [AB]], dm=dms[8:10])
    P('s_branch K2_M\nK2_E:')
    step(SA, rd(SB, 1))
    step(SB, rd(SA, 2))
    step(SA, rd(SB, 3), [f'v_add_u32 v{r}, s{sDL}, v{r}' for r in AA + [AB]])
    P(f'''
    K2_M:
    s_cmp_eq_u32 s{sCNT}, {16 - NB}
    s_cbranch_scc0 K2_W
    s_mov_b32 s{sSO}, 0x40000000
    s_mov_b32 s{sSW}, 0x40000000
    s_mov_b32 s{sOST}, 0
    s_mov_b32 s{sWST}, 0
    K2_W:
    s_mov_b32 s{sIP}, s{sIB}
    s_waitcnt vmcnt({10 * (NB - 2)})
    s_barrier
    ''')
    step(SB, rd(SA, 0), [f's_add_u32 s{sIB}, s{sIB}, {STG}', f's_cmp_eq_u32 s{sIB}, {NB * STG}', f's_cselect_b32 s{sIB}, 0, s{sIB}',
                         f's_cmp_eq_u32 s{sIB}, {(NB - 1) * STG}', f's_cselect_b32 s{sDL}, {-(NB - 1) * STG & 0xffffffff}, {STG}'], dm=dms[0:3])
    P(f's_add_u32 s{sCNT}, s{sCNT}, 1\ns_cmp_lt_u32 s{sCNT}, 16\ns_cbranch_scc1 K2_L')
    P(f'''
    s_mul_i32 s6, s{sBR}, 27
    s_add_u32 s6, s6, s{sIDX}
    s_lshl_b32 s6, s6, 2
    s_add_u32 s6, s6, s{sKS}
    s_lshl_b32 s6, s6, 2
    s_add_u32 s6, s6, s{sW}
    s_mul_i32 s6, s6, 24576
    s_add_u32 s6, s6, {WS_PART}
    s_add_u32 s16, s58, s6
    s_addc_u32 s17, s59, 0
    s_mov_b32 s18, 24576
    s_mov_b32 s19, 0x20000
    ''')
    for t in range(6):
        P(f's_mov_b32 s3, {t * 4096}')
        for qd in range(4): P(f'buffer_store_dwordx4 {vr(16 * t + 4 * qd, 4)}, v{VO}, s[16:19], s3 offen offset:{qd * 1024}')
    P('K2_END:\ns_endpgm')
    return P.finish()

def k3():
    P = Prog()
    P(f'''
    s_cmp_ge_u32 s2, 648
    s_cbranch_scc1 K3_END
    s_load_dwordx2 s[56:57], s[0:1], 80
    s_load_dwordx2 s[58:59], s[0:1], 96
    v_lshrrev_b32 v1, 6, v0
    v_and_b32 v2, 63, v0
    v_readfirstlane_b32 s3, v1
    s_lshl_b32 s4, s2, 2
    s_add_u32 s4, s4, s3
    s_and_b32 s20, s4, 1
    s_lshr_b32 s4, s4, 1
    s_mul_hi_u32 s5, s4, {(2**32 + 5) // 6}
    s_mul_i32 s6, s5, 6
    s_sub_u32 s21, s4, s6
    s_and_b32 s22, s5, 3
    s_lshr_b32 s23, s5, 2
    s_cmp_ge_u32 s23, 27
    s_cselect_b32 s24, 1, 0
    s_mul_i32 s6, s24, 27
    s_sub_u32 s25, s23, s6
    s_mul_i32 s26, s25, 43
    s_lshr_b32 s26, s26, 7
    s_mul_i32 s6, s26, 3
    s_sub_u32 s27, s25, s6
    s_lshl_b32 s6, s23, 4
    s_add_u32 s6, s6, s22
    s_mul_i32 s6, s6, 24576
    s_lshl_b32 s7, s21, 12
    s_add_u32 s6, s6, s7
    s_lshl_b32 s7, s20, 11
    s_add_u32 s6, s6, s7
    s_add_u32 s6, s6, {WS_PART}
    v_lshlrev_b32 v3, 4, v2
    s_waitcnt lgkmcnt(0)
    s_add_u32 s8, s58, s6
    s_addc_u32 s9, s59, 0
    s_mov_b32 s10, {4 * 98304}
    s_mov_b32 s11, 0x20000
    s_mov_b32 s12, s56
    s_mov_b32 s13, s57
    s_mov_b32 s14, {1152 * 2304}
    s_mov_b32 s15, 0x20000
    ''')
    for k in range(4):
        P(f's_mov_b32 s3, {k * 98304}')
        P(f'buffer_load_dwordx4 {vr(8 + 8 * k, 4)}, v3, s[8:11], s3 offen')
        P(f'buffer_load_dwordx4 {vr(12 + 8 * k, 4)}, v3, s[8:11], s3 offen offset:1024')
    P(f'''
    s_lshr_b32 s28, s22, 1
    s_lshl_b32 s28, s28, 1
    s_and_b32 s6, s21, 1
    s_add_u32 s28, s28, s6
    s_and_b32 s6, s22, 1
    s_mul_i32 s6, s6, 96
    s_lshr_b32 s7, s21, 1
    s_lshl_b32 s7, s7, 5
    s_add_u32 s6, s6, s7
    s_mul_i32 s7, s27, 192
    s_add_u32 s6, s6, s7
    s_lshl_b32 s7, s20, 4
    s_add_u32 s6, s6, s7
    s_mul_i32 s7, s24, 576
    s_add_u32 s6, s6, s7
    s_lshl_b32 s29, s6, 1
    v_and_b32 v4, 31, v2
    v_lshrrev_b32 v5, 5, v2
    v_and_b32 v6, 15, v2
    v_bfe_u32 v7, v2, 4, 1
    v_mul_u32_u24 v7, 144, v7
    v_add_u32 v6, v6, v7
    s_mul_i32 s6, s26, 144
    s_lshl_b32 s7, s28, 5
    s_add_u32 s6, s6, s7
    s_mul_i32 s7, s28, 288
    s_add_u32 s7, s7, 128
    s_cmp_lt_u32 s26, 8
    s_cselect_b64 vcc, -1, 0
    s_cselect_b32 s6, s6, s7
    v_cndmask_b32 v4, v6, v4, vcc
    v_add_u32 v4, s6, v4
    v_mul_u32_u24 v4, 2304, v4
    v_lshl_add_u32 v4, v5, 4, v4
    s_waitcnt vmcnt(4)
    ''')
    for i in range(8): P(f'v_add_f32 v{8 + i}, v{8 + i}, v{16 + i}')
    P('s_waitcnt vmcnt(0)')
    for i in range(8): P(f'v_add_f32 v{24 + i}, v{24 + i}, v{32 + i}')
    for i in range(8): P(f'v_add_f32 v{8 + i}, v{8 + i}, v{24 + i}')
    for i in range(4): P(f'v_cvt_pk_bf16_f32 v{40 + i}, v{8 + 2 * i}, v{9 + 2 * i}')
    P('buffer_store_dwordx4 v[40:43], v4, s[12:15], s29 offen')
    P('K3_END:\ns_endpgm')
    return P.finish()

def desc(name, vg, sg=102):
    return f'''.amdhsa_kernel {name}
  .amdhsa_next_free_vgpr {vg}
  .amdhsa_next_free_sgpr {sg}
  .amdhsa_accum_offset {(vg + 3) // 4 * 4}
  .amdhsa_group_segment_fixed_size 0
  .amdhsa_kernarg_size 104
  .amdhsa_user_sgpr_count 2
  .amdhsa_user_sgpr_kernarg_segment_ptr 1
  .amdhsa_system_sgpr_workgroup_id_x 1
  .amdhsa_float_denorm_mode_32 3
.end_amdhsa_kernel
'''

def main():
    ref = open('cdna_kernels/%s.s.ref' % NAME).read().split('\n')
    hdr = [l for l in ref if l.startswith(';') and '@launch' not in l and 'Override launch' not in l and 'grid=ceil' not in l]
    hdr = hdr[:14]
    ks = [('attn_kernel', k1(), 256, '(256,1,1)', '(%d,1,1)' % OPT['blk'], 163840),
          ('oproj_kernel', k2(), 144, '(216,1,1)', '(256,1,1)', OPT['k2nb'] * 40960),
          ('reduce_kernel', k3(), 48, '(648,1,1)', '(256,1,1)', 0)]
    out = '\n'.join(hdr) + '\n'
    if OPT['fused']:
        ks = [(NAME + '_kernel',) + ks[0][1:]]
        out += f'; @launch grid={ks[0][3]} block={ks[0][4]} lds={ks[0][5]}\n'
    else:
        for n, _, _, g, b, l in ks: out += f'; @launch kernel={n} grid={g} block={b} lds={l}\n'
    out += '.amdgcn_target "amdgcn-amd-amdhsa--gfx950"\n.text\n'
    for n, body, _, _, _, _ in ks:
        out += f'.globl {n}\n.p2align 8\n.type {n},@function\n{n}:\n{body}'
    out += '.section .rodata,"a"\n'
    for n, _, vg, _, _, _ in ks: out += '.p2align 6\n' + desc(n, vg)
    open(sys.argv[1], 'w').write(out)
main()
```

```python
import sys, struct, math
from asmlib import *

NAME = 'concat_heads__mha_block_cached__gqa_block_cached__near_ridge'
def f2u(x): return struct.unpack('<I', struct.pack('<f', x))[0]
CSCALE = f2u(math.log2(math.e) / math.sqrt(128.0))

OPT = dict(nt_kv='nt', nt_w='', nt_x='', ostore='', stamps=0, touch=0, k2nb=3, nt_wo='', nt_o='', nodma=0, nobar=0, noexp=0, nolds=0, prio=0, bdelay=1, blk=512, pa=0, pc=1, pairw=1, qdelay=3, wtouch=0, kvs='000000000000044460a4', nsb=5, dstep=2, trows=15, tlead=0, ptouch=0, tl=0, nopoll=0, ot=-9, opre=0, sp='01111111122111', ts=-1, npre=3, dist=3, sq=9, fused=1, p2nb=3, wot=1, ld2='', spin=200000, dbgst=0, loc=1, bgwb=0, nomf=0, nokv=0, nost=0, probe=-1, pwg=8, pw=4)
for a in sys.argv[2:]:
    k, v = a.split('=')
    OPT[k] = int(v) if (v.lstrip('-').isdigit() and k not in ('kvs', 'sp')) else v

WS_O_BR = 36 * 256 * 1024
WS_PART = 0x1400000
WS_FLAG = 0x3000000
WS_STAMP = 0x4000000

def lanes(P, dst, expr_list):
    for e in expr_list: P(e)

def mf32(d, a, b, c=None):
    return f'v_mfma_f32_32x32x16_bf16 {vr(d, 16)}, {vr(a, 4)}, {vr(b, 4)}, {vr(d if c is None else c, 16)}'
def mf16(d, a, b, c=None):
    return f'v_mfma_f32_16x16x32_bf16 {vr(d, 4)}, {vr(a, 4)}, {vr(b, 4)}, {vr(d if c is None else c, 4)}'
def mf16h(d, a, b):
    return f'v_mfma_f32_16x16x16_bf16 {vr(d, 4)}, {vr(a, 2)}, {vr(b, 2)}, {vr(d, 4)}'


def phase2(P, stamp, env, part):
    sW, sWP, sBR, sE, sKS, TID, sB, sJ = env['sW'], env['sWP'], env['sBR'], env['sE'], env['sKP'], env['TID'], env['sB'], env['sJ']
    NB = 4; WST, OST, OOF = 20480, 18432, 81920
    sJJ, sTID, sCNT, sIB, sDL, sTMP, sSPIN = 56, 58, 30, 36, 37, 48, 44
    sSW, sSO, sMW, sMO, sPW, sPO, sIBW, sNB, sM9, sD2, sS9 = 59, 60, 61, 62, 63, 35, 31, 33, 43, 47, 57
    sNEED = 38
    VW = [120, 121, 122, 123, 124]; VO, VF, VP = 141, 142, 143
    A0, A1, A90, A91, AB, AB9 = 125, 126, 127, 128, 129, 130
    done = 'K1_STAMPS' if OPT['stamps'] else 'K1_END'
    def poll(lbl, off):
        return f"""
    s_mov_b32 s{sSPIN}, {OPT['spin']}
    {lbl}:
    buffer_load_dword v{VP}, v{VF}, s[52:55], s{off} offen sc1
    s_sub_u32 s{sSPIN}, s{sSPIN}, 1
    s_cbranch_scc1 {lbl}X
    s_waitcnt vmcnt(0)
    v_cmp_eq_u32 vcc, s{sE}, v{VP}
    s_and_b64 s[6:7], vcc, s[{sNEED}:{sNEED + 1}]
    s_cmp_eq_u64 s[6:7], s[{sNEED}:{sNEED + 1}]
    s_cbranch_scc0 {lbl}
    {lbl}X:
    """
    def issW():
        o = f's_mul_i32 s7, s{sPW}, {64 * 1152}\ns_add_u32 s7, s7, s{sSW}\ns_add_u32 m0, s{sIBW}, s{sMW}\ns_add_u32 s{sPW}, s{sPW}, 1\n'
        for n in range(5):
            if n == 4: o += 's_add_u32 m0, m0, 4096\ns_nop 0\n'
            o += f'buffer_load_dwordx4 v{VW[n]}, s[8:11], s7 offen offset:{(n & 3) * 1024} {OPT["nt_wo"]} lds\n'
        return o + f's_and_b32 s{sPW}, s{sPW}, 15\ns_add_u32 s{sIBW}, s{sIBW}, {WST}\ns_cmp_eq_u32 s{sIBW}, {NB * WST}\ns_cselect_b32 s{sIBW}, 0, s{sIBW}\n'
    def issO():
        o = f's_add_u32 m0, s{sIB}, s{sMO}\ns_lshl_b32 s7, s{sPO}, 12\ns_add_u32 s7, s7, s{sSO}\n'
        for e in range(4): o += f'buffer_load_dwordx4 v{VO}, s[20:23], s7 offen offset:{e * 1024} {OPT["ld2"]} lds\n'
        o += f's_add_u32 m0, s{sIB}, s{sM9}\ns_lshl_b32 s7, s{sPO}, 11\ns_add_u32 s7, s7, s{sS9}\ns_mov_b32 exec_hi, 0\n'
        o += f'buffer_load_dwordx4 v{VO}, s[20:23], s7 offen {OPT["ld2"]} lds\ns_mov_b32 exec_hi, -1\n'
        return o + f's_add_u32 s{sPO}, s{sPO}, 1\ns_and_b32 s{sPO}, s{sPO}, 15\ns_add_u32 s{sIB}, s{sIB}, {OST}\ns_cmp_eq_u32 s{sIB}, {NB * OST}\ns_cselect_b32 s{sIB}, 0, s{sIB}\n'
    if part == 0:
        o = f"""
        s_and_b32 s{sJJ}, s{sJ}, 3
        s_lshl_b32 s{sTID}, s{sBR}, 3
        s_add_u32 s{sTID}, s{sTID}, s{sB}
        s_lshl_b32 s{sTID}, s{sTID}, 2
        s_add_u32 s{sTID}, s{sTID}, s{sJJ}
        s_lshl_b32 s{sPW}, s{sJJ}, 2
        s_add_u32 s{sPO}, s{sPW}, 4
        s_and_b32 s{sPO}, s{sPO}, 15
        s_and_b32 s3, s2, 7
        s_lshl_b32 s{sTMP}, s3, 7
        v_lshlrev_b32 v{VF}, 2, v{TID}
        v_lshlrev_b32 v{VO}, 4, v{TID}
        v_mov_b32 v{VP}, s{sE}
        v_mov_b32 v140, v{TID}
        s_mul_i32 s{sSW}, s{sJJ}, 288
        s_and_b32 s{sSW}, s{sSW}, 0xffc0
        s_mul_i32 s3, s{sWP}, {16 * 1152}
        s_add_u32 s{sSW}, s{sSW}, s3
        s_mul_i32 s{sMW}, s{sWP}, 5120
        s_lshl_b32 s{sMO}, s{sWP}, 12
        s_add_u32 s{sMO}, s{sMO}, {OOF}
        s_lshl_b32 s{sM9}, s{sWP}, 9
        s_lshl_b32 s{sS9}, s{sKS}, 15
        s_add_u32 s{sS9}, s{sS9}, s{sM9}
        s_add_u32 s{sS9}, s{sS9}, {1 << 20}
        s_add_u32 s{sM9}, s{sM9}, {OOF + 16384}
        s_lshl_b32 s{sSO}, s{sKS}, 16
        s_lshl_b32 s3, s{sWP}, 18
        s_add_u32 s{sSO}, s{sSO}, s3
        s_lshl_b32 s3, s{sB}, 2
        s_lshl_b32 s{sNB}, 1, s3
        s_mov_b32 s{sIB}, 0
        s_mov_b32 s{sIBW}, 0
        s_mov_b32 s3, 52429
        """
        for n in range(5):
            o += f"""
        v_add_u32 v131, {64 * n}, v{TID}
        v_mul_lo_u32 v132, s3, v131
        v_lshrrev_b32 v132, 20, v132
        v_mul_u32_u24 v133, 20, v132
        v_sub_u32 v133, v131, v133
        v_bfe_u32 v134, v132, 3, 1
        v_lshlrev_b32 v134, 1, v134
        v_xor_b32 v133, v133, v134
        v_mul_u32_u24 v132, 1152, v132
        v_lshl_add_u32 v132, v133, 4, v132
        v_add_u32 v{VW[n]}, {3072 - (n & 3) * 1024}, v132
        """
        o += f"""
        v_lshrrev_b32 v131, 4, v{TID}
        v_bfe_u32 v132, v{TID}, 2, 2
        v_lshl_add_u32 v132, v131, 3, v132
        v_mul_u32_u24 v132, 320, v132
        v_bfe_u32 v133, v{TID}, 1, 1
        v_lshl_add_u32 v132, v133, 4, v132
        v_and_b32 v133, 1, v{TID}
        v_lshl_add_u32 v132, v133, 3, v132
        v_and_b32 v133, 1, v131
        v_lshl_add_u32 v134, v133, 5, v132
        v_xor_b32 v135, 1, v133
        v_lshl_add_u32 v135, v135, 5, v132
        v_add_u32 v136, 64, v134
        s_bitcmp0_b32 s{sJJ}, 0
        s_cselect_b64 vcc, -1, 0
        s_lshl_b32 s3, s{sWP}, 6
        v_cndmask_b32 v{A0}, v135, v134, vcc
        v_cndmask_b32 v{A1}, v136, v135, vcc
        v_add_u32 v{A90}, s3, v{A0}
        v_add_u32 v{A91}, s3, v{A1}
        v_and_b32 v132, 15, v{TID}
        v_lshlrev_b32 v132, 4, v132
        v_lshrrev_b32 v131, 1, v131
        v_lshl_add_u32 v134, v133, 9, v132
        v_lshl_add_u32 v134, v131, 10, v134
        v_add_u32 v{AB}, s{sMO}, v134
        v_lshl_add_u32 v134, v133, 8, v132
        v_lshl_add_u32 v134, v131, 9, v134
        v_add_u32 v{AB9}, {OOF + 16384}, v134
        """
        return [l.strip() for l in o.split('\n') if l.strip()]
    if part == 3:
        P(issW()); return
    P(f"""
    s_cmp_ge_u32 s{sW}, 4
    s_cbranch_scc1 P2_G1
    s_waitcnt vmcnt(10)
    s_barrier
    """)
    stamp(5)
    P('v_mov_b32 v137, 163832\nv_mov_b32 v138, 0\nds_write_b32 v137, v138')
    P(issW() + issW() + issW())
    if OPT['tl'] == 2: stamp(2)
    P('s_waitcnt vmcnt(10)')
    if OPT['tl'] == 2: stamp(7)
    P('s_barrier\ns_waitcnt vmcnt(5)\ns_barrier')
    sDONE = sNEED
    P(f"""
    s_lshl_b32 s{sDONE}, 1, s{sJJ}
    s_lshl_b32 s{sNB}, s{sB}, 2
    s_mov_b32 s{sCNT}, 2
    P2_LD:
    s_and_b32 s3, s{sPW}, 3
    s_cbranch_scc1 P2_PN
    s_cmp_lg_u32 s{sW}, 0
    s_cbranch_scc1 P2_PO
    s_mov_b32 s{sSPIN}, {OPT['spin']}
    P2_PJ:
    buffer_load_dword v{VP}, v{VF}, s[52:55], s{sTMP} offen sc1
    s_waitcnt vmcnt(0)
    v_cmp_eq_u32 vcc, s{sE}, v{VP}
    s_sub_u32 s{sSPIN}, s{sSPIN}, 1
    s_cselect_b32 s6, -1, vcc_lo
    s_lshr_b32 s6, s6, s{sNB}
    s_and_b32 s6, s6, 15
    s_andn2_b32 s6, s6, s{sDONE}
    s_cbranch_scc0 P2_PJ
    s_ff1_i32_b32 s6, s6
    s_bitset1_b32 s{sDONE}, s6
    s_lshl_b32 s3, s{sCNT}, 4
    s_or_b32 s3, s3, s6
    v_mov_b32 v138, s3
    ds_write_b32 v137, v138
    s_branch P2_PK
    P2_PO:
    ds_read_b32 v138, v137
    s_waitcnt lgkmcnt(0)
    v_readfirstlane_b32 s6, v138
    s_lshr_b32 s3, s6, 4
    s_cmp_eq_u32 s3, s{sCNT}
    s_cbranch_scc0 P2_PO
    s_and_b32 s6, s6, 3
    P2_PK:
    s_lshl_b32 s{sPW}, s6, 2
    P2_PN:
    s_mov_b32 s{sPO}, s{sPW}
    """)
    P(issO() + issW())
    P(f's_add_u32 s{sCNT}, s{sCNT}, 1\ns_cmp_lt_u32 s{sCNT}, 14\ns_waitcnt vmcnt(10)\ns_barrier\ns_cbranch_scc1 P2_LD')
    P('s_waitcnt vmcnt(0)\ns_barrier\ns_barrier\ns_branch P2_RED')
    ACC = [[4 * (2 * t + j) for j in range(2)] for t in range(9)]; AC9 = [72, 76, 80]
    SET = [dict(A=[144 + 4 * t for t in range(9)], A9=[180, 184], B=[188, 192], B9=196),
           dict(A=[200 + 4 * t for t in range(9)], A9=[236, 240], B=[244, 248], B9=252)]
    P(f"""
    P2_G1:
    s_lshl_b32 s6, s{sTID}, 2
    s_add_u32 s6, s6, s{sKS}
    s_lshl_b32 s6, s6, 2
    s_add_u32 s6, s6, s{sWP}
    s_mul_i32 s6, s6, 11264
    s_add_u32 s6, s6, {WS_PART}
    s_add_u32 s16, s66, s6
    s_addc_u32 s17, s67, 0
    s_mov_b32 s18, 11264
    s_mov_b32 s19, 0x20000
    s_mov_b32 s{sIB}, 0
    s_mov_b32 s{sCNT}, 1
    s_mov_b32 s{sDL}, {WST}
    s_mov_b32 s{sD2}, {OST}
    s_lshr_b32 s6, s2, 3
    s_lshl_b32 s6, s6, 2
    s_add_u32 s{sTMP}, s6, s{sTMP}
    s_barrier
    """)
    stamp(6)
    def rd(st, K):
        o = [f'ds_read_b128 {vr(st["B"][j], 4)}, v{AB} offset:{K * 2048 + j * 256}' for j in range(2)]
        for t in range(9):
            o += [f'ds_read_b64_tr_b16 {vr(st["A"][t] + 2 * j, 2)}, v{[A0, A1][t & 1]} offset:{K * 10240 + j * 1280 + 64 * (t >> 1)}' for j in range(2)]
            if t == 7: o.append(f'ds_read_b128 {vr(st["B9"], 4)}, v{AB9} offset:{K * 1024}')
        for t in range(2):
            o += [f'ds_read_b64_tr_b16 {vr(st["A9"][t] + 2 * j, 2)}, v{[A90, A91][t]} offset:{K * 10240 + j * 1280}' for j in range(2)]
        return o
    def step(cur, rds, extra=(), first=False):
        z = lambda d, a, b: f'v_mfma_f32_16x16x32_bf16 {vr(d, 4)}, {vr(a, 4)}, {vr(b, 4)}, 0' if first else mf16(d, a, b)
        m = []
        for t in range(9): m += [z(ACC[t][0], cur['A'][t], cur['B'][0]), z(ACC[t][1], cur['A'][t], cur['B'][1])]
        m += [z(AC9[2], cur['A'][8], cur['B9']), z(AC9[0], cur['A9'][0], cur['B9']), z(AC9[1], cur['A9'][1], cur['B9'])]
        for i in (0, 6, 12): m[i] += f' ; need {vr(cur["A"][i // 2 + 2], 4)}'
        m[18] += f' ; need {vr(cur["A9"][1], 4)}'
        rds = list(rds); extra = list(extra)
        for i, x in enumerate(m):
            P(x)
            n = 2 if i % 3 != 2 else 1
            if rds: P.extend(rds[:n]); rds = rds[n:]
            elif extra: P.extend(extra[:2]); extra = extra[2:]
        assert not rds
        P.extend(extra)
    upd = [f'v_add_u32 v{r}, s{sDL}, v{r}' for r in (A0, A1, A90, A91)] + [f'v_add_u32 v{r}, s{sD2}, v{r}' for r in (AB, AB9)]
    ring = [f's_add_u32 s{sIB}, s{sIB}, 1', f's_and_b32 s{sIB}, s{sIB}, 3', f's_cmp_eq_u32 s{sIB}, {NB - 1}',
            f's_cselect_b32 s{sDL}, {-(NB - 1) * WST & 0xffffffff}, {WST}', f's_cselect_b32 s{sD2}, {-(NB - 1) * OST & 0xffffffff}, {OST}']
    P.extend(rd(SET[0], 0))
    step(SET[0], rd(SET[1], 1), upd, first=True)
    if OPT['tl'] == 2: stamp(2)
    P('s_waitcnt vmcnt(0)')
    if OPT['tl'] == 2: stamp(7)
    P(f"""
    s_barrier
    s_cmp_eq_u32 s{sW}, 4
    s_cbranch_scc0 P2_M
    """)
    if OPT['loc']:
        P(f"""
        s_getreg_b32 s3, hwreg(HW_REG_XCC_ID, 0, 4)
        s_lshl_b32 s7, s{sE}, 4
        s_add_u32 s3, s3, s7
        v_cmp_eq_u32 vcc, s3, v{env['Q'] + 3}
        s_cmp_eq_u32 vcc_lo, {-1 if OPT['loc'] == 1 else 0}
        s_cbranch_scc1 P2_FL
        buffer_wbl2 sc1
        s_waitcnt vmcnt(0)
        P2_FL:
        """)
    P(f"""
    s_mov_b64 exec, 1
    buffer_store_dword v{VP}, v{VF}, s[52:55], s{sTMP} offen sc1
    s_mov_b64 exec, -1
    s_branch P2_M
    P2_L:
    """)
    if OPT['tl'] == 1: stamp(2, 3); stamp(7, 8); stamp(3, 12)
    step(SET[0], rd(SET[1], 1), upd + [f's_add_u32 s{sCNT}, s{sCNT}, 1'])
    P('s_barrier\nP2_M:')
    step(SET[1], rd(SET[0], 0), ring + [f's_cmp_lt_u32 s{sCNT}, 16'])
    P('s_cbranch_scc1 P2_L')
    stamp(9)
    units = [(ACC[2 * u][j], ACC[2 * u + 1][j]) for j in range(2) for u in range(4)] + [(ACC[8][0], ACC[8][1]), (AC9[0], AC9[1]), (AC9[2], AC9[2])]
    for i, (x, y) in enumerate(units):
        d = 84 + 4 * i if i < 9 else 144 + 4 * i
        P(f'v_cvt_pk_bf16_f32 v{d}, v{x}, v{x + 1}\nv_cvt_pk_bf16_f32 v{d + 1}, v{x + 2}, v{x + 3}')
        P(f'v_cvt_pk_bf16_f32 v{d + 2}, v{y}, v{y + 1}\nv_cvt_pk_bf16_f32 v{d + 3}, v{y + 2}, v{y + 3}')
        if i % 4 == 0: P(f's_mov_b32 s3, {i * 1024}')
        P(f'v_permlane16_swap_b32 v{d}, v{d + 2}\nv_permlane16_swap_b32 v{d + 1}, v{d + 3}')
        P(f'buffer_store_dwordx4 {vr(d, 4)}, v{VO}, s[16:19], s3 offen offset:{(i % 4) * 1024} sc1')
    P(f"""
    P2_RED:
    s_lshl_b32 s{sTMP}, s{sTID}, 7
    s_add_u32 s{sTMP}, s{sTMP}, 4096
    s_lshl_b32 s7, s{sKS}, 2
    s_add_u32 s7, s7, s{sTMP}
    s_lshl_b32 s6, s{sTID}, 4
    s_add_u32 s6, s6, s{sKS}
    s_mul_i32 s6, s6, 11264
    s_add_u32 s6, s6, {WS_PART}
    s_add_u32 s16, s66, s6
    s_addc_u32 s17, s67, 0
    s_mov_b32 s18, {3 * 45056 + 11264}
    s_mov_b32 s19, 0x20000
    s_mul_i32 s6, s{sB}, {144 * 2304}
    s_mul_i32 s3, s{sBR}, 1152
    s_add_u32 s6, s6, s3
    s_mul_i32 s3, s{sJJ}, 288
    s_add_u32 s6, s6, s3
    s_add_u32 s12, s68, s6
    s_addc_u32 s13, s69, 0
    s_sub_u32 s14, {1152 * 2304}, s6
    s_mov_b32 s15, 0x20000
    v_mov_b32 v{VP}, s{sE}
    s_mov_b64 s[{sNEED}:{sNEED + 1}], 15
    v_and_b32 v4, 15, v140
    v_mul_u32_u24 v4, 2304, v4
    v_lshrrev_b32 v5, 5, v140
    v_lshl_add_u32 v4, v5, 4, v4
    v_bfe_u32 v5, v140, 4, 1
    v_lshl_add_u32 v6, v5, 5, v4
    s_lshl_b32 s40, s{sKS}, 1
    s_lshr_b32 s3, s{sW}, 2
    s_add_u32 s40, s40, s3
    s_mul_i32 s40, s40, {16 * 2304}
    s_and_b32 s3, s{sW}, 3
    s_lshl_b32 s3, s3, 6
    s_add_u32 s40, s40, s3
    s_lshl_b32 s41, s{sW}, 10
    s_mul_i32 s42, s{sKS}, {32 * 2304}
    s_add_u32 s42, s42, 256
    s_lshl_b32 s3, s{sKS}, 6
    s_add_u32 s3, s3, {128 * 2304}
    s_cmp_eq_u32 s{sW}, 1
    s_cselect_b32 s42, s3, s42
    s_cselect_b32 s45, 32, 0
    s_cmp_eq_u32 s{sW}, 2
    s_cselect_b32 s42, {128 * 2304 + 256}, s42
    s_cmp_eq_u32 s{sW}, 0
    s_cselect_b32 s45, {16 * 2304}, s45
    v_mul_lo_u32 v7, s45, v5
    v_add_u32 v7, v7, v4
    s_cmp_lg_u32 s{sKS}, 0
    s_cselect_b32 s45, 2, 3
    s_waitcnt vmcnt(0)
    s_barrier
    s_cmp_eq_u32 s{sW}, 7
    s_cbranch_scc0 P2_NG
    s_mov_b64 exec, 1
    buffer_store_dword v{VP}, v{VF}, s[52:55], s7 offen sc1
    s_mov_b64 exec, -1
    P2_NG:
    """)
    stamp(10)
    P(poll('P2_PR', sTMP))
    stamp(11)
    def loads(base, so):
        for k in range(4):
            P(f's_add_u32 s3, s{so}, {k * 45056}\nbuffer_load_dwordx4 {vr(base + 4 * k, 4)}, v{VO}, s[16:19], s3 offen sc1')
    def reduce(base, va, so, left):
        for k in range(4):
            P(f's_waitcnt vmcnt({left + 3 - k})')
            for i in range(4):
                src = base + 4 * k + i; t = 16 if k == 0 else 24
                P(f'v_lshlrev_b32 v{t + 2 * i}, 16, v{src}\nv_and_b32 v{t + 1 + 2 * i}, s46, v{src}')
            if k:
                for i in range(8): P(f'v_add_f32 v{16 + i}, v{16 + i}, v{24 + i}')
        for i in range(4): P(f'v_cvt_pk_bf16_f32 v{base + i}, v{16 + 2 * i}, v{17 + 2 * i}')
        P(f'buffer_store_dwordx4 {vr(base, 4)}, v{va}, s[12:15], s{so} offen')
    P('s_mov_b32 s46, 0xffff0000')
    loads(32, 41)
    P(f's_cmp_lt_u32 s{sW}, s45\ns_cbranch_scc1 P2_R2')
    reduce(32, 6, 40, 0)
    P(f's_branch P2_RE\nP2_R2:\ns_add_u32 s41, s41, 8192')
    loads(48, 41)
    reduce(32, 6, 40, 4)
    reduce(48, 7, 42, 1)
    P('P2_RE:')
    if OPT['stamps']:
        P('s_waitcnt vmcnt(0)'); stamp(8)

def k1():
    P = Prog()
    O, S, CN, Q, PP, O9, Q9, S9, CN9, P9 = 0, 64, 96, 112, 144, 160, 192, 208, 212, 216
    L, L9, VOK, VOV, AK, AK9, AV9, TID = 218, 219, 220, 221, 222, 223, 224, 225
    VA = 226
    T0, T1, AL, AL9, X0, X1 = 230, 231, 232, 233, 234, 235
    FB = [236, 240, 244, 248, 252]
    ACC = [[0, 16, 32, 48], [64, 80, 144, 176]]; ACC9 = [[160, 164], [168, 172]]
    QW = [230, 231, 232, 233]; QX = [234, 235]; QX9, QW9, VOW, VOX, HOLD = 216, 217, 218, 219, 212
    QB, QB9 = [96, 100], 104
    QF = [112, 116, 120, 124, 128, 132, 136, 140, 236, 240]
    sW, sWP, sP, sB, sJ, sBR = 24, 25, 26, 27, 28, 29
    sCNT, sW0, sX, sMC, sIB, sDL = 30, 31, 33, 35, 36, 37
    sEX = 38
    sIK, sIK2 = 31, 33
    sIS, sSK, sSV, sDK, sDV, sT, sCL, sRARE, sTMP, sTM2, sMW, sKP, sVP, sE = 40, 41, 42, 43, 44, 45, 46, 47, 48, 49, 50, 51, 32, 34
    NSB = OPT['nsb']; STGS = 25600; STG0 = 163840 - NSB * STGS
    SB0 = (NSB - 18) % NSB
    QXCH, Q9B = 131072, 98304 + 16384
    nk, ntw = OPT['nt_kv'], OPT['nt_w']
    def stamp(k, at=None):
        if OPT['stamps'] == 3: return
        if OPT['stamps']:
            if at is not None: P(f's_cmp_lg_u32 s{sCNT}, {at}\ns_cbranch_scc1 K1_ST{k}_{len(P.ins)}'); lbl = P.ins[-1].target
            P(('s_memtime' if OPT['stamps'] == 2 else 's_memrealtime') + ' s[%d:%d]' % (70 + 2 * k, 71 + 2 * k))
            if at is not None: P(f'{lbl}:')
            if k == 1: P('s_memtime s[96:97]')
            if k == 4: P('s_memtime s[98:99]')
            if k == 2 and OPT['stamps'] == 1: P('s_memtime s[94:95]')
    P(f"""
    s_cmp_ge_u32 s2, 256
    s_cbranch_scc1 K1_END
    s_bfe_u32 s{sBR}, s2, 0x10002
    s_mul_i32 s6, s{sBR}, 40
    s_add_u32 s4, s0, s6
    s_addc_u32 s5, s1, 0
    s_load_dwordx8 s[56:63], s[4:5], 0
    s_load_dwordx4 s[64:67], s[0:1], 88
    s_load_dwordx2 s[68:69], s[0:1], 80
    s_load_dwordx2 s[100:101], s[4:5], 32
    """)
    if OPT['stamps']:
        for k in range(70, 100, 2): P(f's_mov_b64 s[{k}:{k + 1}], 0')
    stamp(0)
    P(f"""
    v_lshrrev_b32 v1, 6, v0
    v_and_b32 v{TID}, 63, v0
    v_readfirstlane_b32 s{sW}, v1
    v_lshrrev_b32 v2, 4, v{TID}
    v_and_b32 v3, 15, v{TID}
    s_and_b32 s3, s2, 3
    s_lshl_b32 s3, s3, 2
    s_bfe_u32 s7, s2, 0x20003
    s_add_u32 s{sJ}, s3, s7
    s_lshr_b32 s{sB}, s2, 5
    s_and_b32 s{sWP}, s{sW}, 3
    s_lshr_b32 s{sP}, s{sW}, 2
    v_lshlrev_b32 v4, 2, v2
    v_xor_b32 v4, v4, v3
    v_lshlrev_b32 v4, 4, v4
    v_lshl_add_u32 v{VOW}, v2, 13, v4
    v_lshrrev_b32 v8, 2, v{TID}
    v_and_b32 v9, 3, v{TID}
    v_xor_b32 v9, v9, v2
    v_mul_u32_u24 v8, 1152, v8
    v_lshl_add_u32 v{VOX}, v9, 4, v8
    s_lshl_b32 s3, s{sWP}, 2
    v_or_b32 v5, s3, v2
    v_xor_b32 v5, v5, v3
    v_lshlrev_b32 v5, 4, v5
    s_lshl_b32 s{sMW}, s{sWP}, 12
    v_lshl_add_u32 v5, v2, 8, v5
    v_add_u32 v{VOK}, s{sMW}, v5
    v_lshl_add_u32 v5, v2, 8, v4
    v_add_u32 v{VOV}, s{sMW}, v5
    s_lshl_b32 s{sW0}, s{sWP}, 16
    s_mul_i32 s{sX}, s{sWP}, 18432
    s_mul_i32 s{sMC}, s{sWP}, 3072
    s_lshl_b32 s3, s{sWP}, 4
    s_lshl_b64 s[{sEX}:{sEX + 1}], 0xffff, s3
    s_mul_i32 s6, s{sB}, 165888
    s_lshl_b32 s7, s{sJ}, 9
    s_mov_b32 s11, 0x20000
    s_mov_b32 s22, {165888 + 2048}
    s_mov_b32 s23, 0x20000
    s_sub_u32 s10, {576 * 8192}, s7
    s_mov_b32 s{sIB}, {STG0}
    s_lshl_b32 s{sTMP}, s{sB}, 5
    s_lshl_b32 s{sTM2}, s{sJ}, 1
    s_add_u32 s{sTMP}, s{sTMP}, s{sTM2}
    s_lshl_b32 s{sTMP}, s{sTMP}, 17
    s_mov_b32 s14, 262144
    s_mov_b32 s15, 0x20000
    s_mov_b32 s18, 262144
    s_mov_b32 s19, 0x20000
    s_mov_b32 s{sCNT}, 0
    s_cmp_ge_u32 s{sW}, 4
    s_waitcnt lgkmcnt(0)
    s_cbranch_scc1 K1_G1
    s_add_u32 s8, s62, s7
    s_addc_u32 s9, s63, 0
    s_add_u32 s20, s56, s6
    s_addc_u32 s21, s57, 0
    s_sub_u32 s20, s20, 2048
    s_subb_u32 s21, s21, 0
    """)
    kvsrd = f"""
    s_add_u32 s12, s58, s{sTMP}
    s_addc_u32 s13, s59, 0
    s_add_u32 s16, s60, s{sTMP}
    s_addc_u32 s17, s61, 0
    s_add_u32 s52, s66, {WS_FLAG}
    s_addc_u32 s53, s67, 0
    s_mov_b32 s54, 16384
    s_mov_b32 s55, 0x20000
    """
    lanec = f"""
    v_bfe_u32 v10, v{TID}, 2, 2
    v_and_b32 v11, 3, v{TID}
    v_lshrrev_b32 v12, 5, v{TID}
    v_and_b32 v13, 1, v2
    v_and_b32 v20, 1, v11
    v_lshrrev_b32 v15, 1, v11
    v_lshlrev_b32 v16, 2, v10
    v_lshl_add_u32 v17, v13, 1, v20
    v_xor_b32 v17, v17, v16
    v_lshlrev_b32 v17, 4, v17
    v_lshl_add_u32 v17, v15, 3, v17
    v_lshl_add_u32 v17, v10, 8, v17
    s_lshl_b32 s3, s{sP}, 14
    s_add_u32 s{sMW}, s{sMW}, s3
    s_add_u32 s6, s3, 65536
    v_lshl_add_u32 v18, v12, 10, v17
    v_add_u32 v{VA}, s6, v18
    v_xor_b32 v{VA + 1}, 64, v{VA}
    v_xor_b32 v{VA + 2}, 0x80, v{VA}
    v_xor_b32 v{VA + 3}, 0xc0, v{VA}
    v_bfe_u32 v23, v{TID}, 3, 2
    v_bfe_u32 v24, v{TID}, 2, 1
    v_lshl_add_u32 v25, v23, 2, v11
    v_xor_b32 v25, v25, v12
    v_lshlrev_b32 v25, 4, v25
    v_lshl_add_u32 v25, v11, 8, v25
    v_lshl_add_u32 v25, v24, 10, v25
    v_lshl_add_u32 v25, v23, 12, v25
    v_add_u32 v{AK}, s3, v25
    s_lshl_b32 s7, s{sWP}, 10
    s_add_u32 s6, s3, s7
    v_xor_b32 v25, v2, v3
    v_lshlrev_b32 v25, 4, v25
    v_lshl_add_u32 v25, v11, 8, v25
    v_lshl_add_u32 v25, v10, 12, v25
    v_add_u32 v{AK9}, s6, v25
    v_xor_b32 v25, v15, v16
    v_lshlrev_b32 v25, 4, v25
    v_lshl_add_u32 v25, v20, 3, v25
    v_lshl_add_u32 v25, v10, 8, v25
    v_lshl_add_u32 v25, v2, 12, v25
    s_add_u32 s6, s6, 65536
    s_lshl_b32 s7, s{sWP}, 6
    v_xor_b32 v25, s7, v25
    v_add_u32 v{AV9}, s6, v25
    v_mul_u32_u24 v26, 272, v3
    v_lshl_add_u32 v27, v2, 4, v26
    s_mul_i32 s6, s{sP}, 4352
    s_add_u32 s6, s6, {Q9B}
    v_add_u32 v{S9}, s6, v27
    v_lshlrev_b32 v27, 4, v{TID}
    s_lshl_b32 s6, s{sWP}, 13
    s_add_u32 s6, s6, {QXCH}
    v_add_u32 v{S9 + 1}, s6, v27
    """
    loopinit = f"""
    s_mov_b32 s{sCNT}, 1
    s_mov_b32 s{sKP}, 32768
    s_mov_b32 s{sVP}, 65536
    s_mov_b32 s{sDK}, 32768
    s_mov_b32 s{sDV}, 0
    s_mov_b32 s{sIS}, 131072
    s_mov_b32 s{sIK}, 0
    s_lshl_b32 s3, s{sP}, 17
    s_add_u32 s{sSV}, s3, 16384
    s_add_u32 s{sSK}, s3, 49152
    s_mov_b32 s{sCL}, 0xff800000
    s_mov_b32 s{sRARE}, 0
    """
    obase = f"""
    s_lshl_b32 s6, s{sBR}, 3
    s_add_u32 s6, s6, s{sB}
    s_mul_i32 s6, s6, 1179648
    s_mul_i32 s7, s{sWP}, {262144 - 4096}
    s_add_u32 s6, s6, s7
    s_lshl_b32 s7, s{sJ}, 1
    s_add_u32 s7, s7, s{sP}
    s_lshl_b32 s7, s7, 13
    s_add_u32 s6, s6, s7
    s_add_u32 s56, s66, s6
    s_addc_u32 s57, s67, 0
    """
    narrow = f's_lshl_b32 s14, s{sP}, 17\ns_add_u32 s14, s14, 131072\ns_mov_b32 s18, s14'
    getE = f'v_mov_b32 v{AL}, {Q9B + 8704}\nds_read_b32 v{AL}, v{AL}' if OPT['fused'] else ''
    getE2 = f'v_readfirstlane_b32 s{sE}, v{AL}' if OPT['fused'] else ''
    queue = []
    def vm(text, tag): P(text); queue.append(tag)
    def wait_for(tag):
        idx = max(i for i, t in enumerate(queue) if t == tag)
        P(f's_waitcnt vmcnt({min(63, len(queue) - 1 - idx)})')
    def stage(s):
        if OPT['nost'] and s >= 3: queue.append(('s', s)); return
        buf = STG0 + ((s + SB0) % NSB) * STGS
        for hd in range(2):
            P(f's_add_u32 m0, s{sMC}, {buf + hd * 12288}\ns_add_u32 s3, s{sW0}, {s * 262144 + hd * 256}')
            vm(f'buffer_load_dwordx4 v{VOW}, s[8:11], s3 offen {ntw} lds', ('s', s))
            P(f's_add_u32 s3, s3, {32768 - 1024}')
            vm(f'buffer_load_dwordx4 v{VOW}, s[8:11], s3 offen offset:1024 {ntw} lds', ('s', s))
            P(f's_add_u32 s3, s{sX}, {s * 64 + hd * 4 * 18432}')
            vm(f'buffer_load_dwordx4 v{VOX}, s[20:23], s3 offen offset:2048 {ntw} lds', ('s', s))
        P(f's_mov_b32 m0, {buf + 24576}\ns_mov_b32 s3, {s * 64 + 128 * 1152 + 2048}\ns_mov_b64 exec, s[{sEX}:{sEX + 1}]')
        vm(f'buffer_load_dwordx4 v{VOX}, s[20:23], s3 offen {ntw} lds', ('s', s))
        P('s_mov_b64 exec, -1')
    VTW, VTX, sTW, sTX = 232, 233, 45, 46
    def touch(s):
        if s >= 18 or not OPT['tlead']: return
        P(f's_add_u32 s3, s{sTW}, {s * 262144}\ns_add_u32 s6, s{sTX}, {s * 64}\ns_mov_b64 exec, 0x1ff')
        vm(f'buffer_load_dword v{X0}, v{VTW}, s[8:11], s3 offen {ntw}', ('t', s))
        vm(f'buffer_load_dword v{X1}, v{VTX}, s[20:23], s6 offen {ntw}', ('t', s))
        P('s_mov_b64 exec, -1')
    def ltouch():
        TR = OPT['trows']
        P(f"""
        v_lshrrev_b32 v{VTW}, 3, v{TID}
        v_and_b32 v{VTX}, 7, v{TID}
        v_lshlrev_b32 v{VTX}, 6, v{VTX}
        v_lshl_add_u32 v{VTW}, v{VTW}, 13, v{VTX}
        v_lshlrev_b32 v{VTX}, 6, v{TID}
        s_lshl_b32 s3, s{sB}, 2
        s_add_u32 s3, s3, s{sWP}
        s_mul_i32 s3, s3, {TR * 8192}
        s_add_u32 s3, s3, {(576 - 32 * TR) * 8192}
        s_bfe_u32 s6, s2, 0x20003
        s_lshl_b32 s6, s6, 2
        s_add_u32 s6, s6, s{sWP}
        s_mul_i32 s6, s6, {162 * 64}
        s_add_u32 s6, s6, 2048
        """)
        tw = [(i, min(8, TR - 8 * i) * 8) for i in range((TR + 7) // 8)]; tx = [(0, 64), (1, 64), (2, 34)]
        for i in range(3):
            for (lst, v, srd, so, step) in ((tw, VTW, 8, 3, 8 * 8192), (tx, VTX, 20, 6, 4096)):
                if i >= len(lst): continue
                n = lst[i][1]
                if n < 64: P(f's_mov_b64 exec, {hex((1 << n) - 1)}' if n <= 31 else f's_mov_b32 exec_hi, {(1 << (n - 32)) - 1}')
                vm(f'buffer_load_dword v{X0}, v{v}, s[{srd}:{srd + 3}], s{so} offen {ntw}', ('t', 0))
                if n < 64: P('s_mov_b64 exec, -1')
                P(f's_add_u32 s{so}, s{so}, {step}')
    def otouch():
        P(f"""
        s_lshl_b32 s6, s{sBR}, 3
        s_add_u32 s6, s6, s{sB}
        s_mul_i32 s6, s6, 1179648
        s_add_u32 s56, s66, s6
        s_addc_u32 s57, s67, 0
        s_mov_b32 s58, 1179648
        s_mov_b32 s59, 0x20000
        v_lshlrev_b32 v{VTW}, 7, v{TID}
        s_lshl_b32 s3, s{sWP}, 18
        s_lshl_b32 s6, s{sJ}, 14
        s_add_u32 s3, s3, s6
        """)
        vm(f'buffer_load_dword v{X0}, v{VTW}, s[56:59], s3 offen', ('t', 1))
        P('s_add_u32 s3, s3, 8192')
        vm(f'buffer_load_dword v{X0}, v{VTW}, s[56:59], s3 offen', ('t', 1))
        P(f's_lshl_b32 s3, s{sJ}, 13\ns_lshl_b32 s6, s{sWP}, 11\ns_add_u32 s3, s3, s6\ns_add_u32 s3, s3, {1 << 20}\ns_mov_b64 exec, 0xffff')
        vm(f'buffer_load_dword v{X0}, v{VTW}, s[56:59], s3 offen', ('t', 1))
        P('s_mov_b64 exec, -1')
    PRE = {(0, 0): [64, 68, 72, 76], (0, 1): [80, 84, 88, 92], (1, 0): [112, 116, 120, 124], (1, 1): [128, 132, 136, 140],
           (2, 0): [192, 196, 200, 204], (2, 1): [236, 240, 244, 248], (3, 0): [96, 100, 104, 252], (3, 1): [144, 148, 152, 156]}
    SRC = {0: (VOK, 12, 0), 1: (VOK, 12, 16384), 2: (VOV, 16, 0), 3: (VOK, 12, 32768)}
    FREE = {(0, 0): 0 if NSB <= 5 else 13, (0, 1): 0 if NSB <= 5 else 13, (1, 0): 15, (1, 1): 15, (2, 0): 16, (2, 1): 16, (3, 0): 17, (3, 1): 19}
    inreg = set()
    def kvload(step, u, hd, n):
        if OPT['nokv'] & 1: return
        vo, srd, off = SRC[u]
        P(f's_mov_b32 s3, {hd * 131072 + off}')
        if step >= FREE[u, hd]:
            P(f's_add_u32 m0, s{sMW}, {u * 32768 + hd * 16384}\ns_nop 0')
            vm(f'buffer_load_dwordx4 v{vo}, s[{srd}:{srd + 3}], s3 offen offset:{n * 1024} {nk} lds', ('k', u))
        else:
            vm(f'buffer_load_dwordx4 {vr(PRE[u, hd][n], 4)}, v{vo}, s[{srd}:{srd + 3}], s3 offen offset:{n * 1024} {nk}', ('r', u, hd)); inreg.add((u, hd, n))
    def kvdump(step):
        if OPT['nokv'] & 2: return
        for (u, hd), f in FREE.items():
            ns = [n for n in range(4) if (u, hd, n) in inreg]
            if f != step or not ns: continue
            wait_for(('r', u, hd))
            base = u * 32768 + hd * 16384
            for n in ns: P(f'ds_write_b128 v{[T0, T1][base >> 16]}, {vr(PRE[u, hd][n], 4)} offset:{(base & 0xffff) + n * 1024}')
    kvq = [(u, hd, n) for u in range(4) for hd in range(2) for n in range(4)]
    npre, dist = OPT['npre'], OPT['dist']
    sched = [int(c, 36) for c in str(OPT['kvs'])] + [0] * 30
    assert sum(sched) == 32 and dist <= NSB - 1 and npre <= NSB
    nxt = 0
    for s in range(npre): stage(s); nxt += 1
    if OPT['tlead']:
        P(f"""
        v_lshlrev_b32 v{VTW}, 6, v{TID}
        v_mul_u32_u24 v{VTX}, 1152, v{TID}
        s_lshl_b32 s{sTW}, s{sB}, 2
        s_add_u32 s{sTW}, s{sTW}, s{sWP}
        s_lshl_b32 s{sTW}, s{sTW}, 13
        s_bfe_u32 s{sTX}, s2, 0x20003
        s_lshl_b32 s{sTX}, s{sTX}, 2
        s_add_u32 s{sTX}, s{sTX}, s{sWP}
        s_mul_i32 s{sTX}, s{sTX}, {9 * 1152}
        s_add_u32 s{sTX}, s{sTX}, 2048
        """)
        for s in range(npre, dist + OPT['tlead']): touch(s)
    if OPT['ts'] == -1: ltouch()
    later = [kvsrd] + [f'v_lshlrev_b32 v{T0}, 4, v{TID}\nv_add_u32 v{T0}, s{sMW}, v{T0}\nv_add_u32 v{T1}, 0x10000, v{T0}', lanec]
    zs = list(range(108, 112)) + list(range(O9, O9 + 32)) + list(range(CN9, CN9 + 4)) + list(range(63, -1, -1))
    later += ['\n'.join(f'v_mov_b32 v{r}, 0' for r in zs[i:i + 26]) for i in range(0, len(zs), 26)]
    P(later.pop(0))
    for s in range(19):
        if OPT['stamps'] == 2 and s == OPT['sq']: stamp(5)
        if OPT['stamps'] == 2 and s == OPT['sq'] + 1: stamp(6)
        if OPT['stamps'] == 3 and OPT['sq'] == 99 and 1 <= s <= 5: P(f's_memtime s[{70 + 6 * s - 4}:{71 + 6 * s - 4}]')
        if s < 18: wait_for(('s', s))
        if OPT['stamps'] == 3 and OPT['sq'] == 99 and 1 <= s <= 4: P(f's_memtime s[{70 + 6 * s - 2}:{71 + 6 * s - 2}]')
        if OPT['stamps'] == 2 and s == OPT['sq']: stamp(3)
        P('s_barrier')
        if OPT['stamps'] == 2 and s == OPT['sq']: stamp(2)
        if s == 0: stamp(1)
        S3 = [0, 1, 2, 3, 4, 5, 6, 8, 10, 12, 13, 14, 15, 16, 18]
        if OPT['stamps'] == 3 and OPT['sq'] == 99:
            if s <= 4: P(f's_memtime s[{70 + 6 * s}:{71 + 6 * s}]')
        elif OPT['stamps'] == 3 and s in S3: P(f's_memtime s[{70 + 2 * S3.index(s)}:{71 + 2 * S3.index(s)}]')
        if OPT['sp']:
            for _ in range(int((str(OPT['sp']) + '0' * 20)[s])):
                assert nxt <= s + NSB - 1
                stage(nxt); nxt += 1
            if OPT['ts'] == s: ltouch()
            if OPT['ot'] == s: otouch()
        n = 0
        while not OPT['sp'] and nxt < 18 and nxt <= s + dist and n < 2: stage(nxt); nxt += 1; n += 1
        touch(s + dist + OPT['tlead'])
        kvdump(s)
        for _ in range(sched[s]): kvload(s, *kvq.pop(0))
        if later: P(later.pop(0))
    assert nxt == 18 and not later
    for r in list(range(96, 108)) + [L, L9]: P(f'v_mov_b32 v{r}, 0')
    P(loopinit)
    if OPT['stamps'] == 1: stamp(2)
    if ('k', 0) in queue: wait_for(('k', 0))
    P('s_barrier')
    P(getE)
    for kk in range(8): P(f'ds_read_b128 {vr(Q + 4 * kk, 4)}, v{S9 + 1} offset:{kk * 1024}')
    for kk in range(4): P(f'ds_read_b128 {vr(Q9 + 4 * kk, 4)}, v{S9} offset:{kk * 64}')
    P('s_barrier')
    P(getE2)
    kvdump(19)
    for _ in range(sched[19]): kvload(19, *kvq.pop(0))
    assert not kvq
    P(narrow)
    after = lambda u: (len(queue) - 1 - max(i for i, t in enumerate(queue) if t == ('k', u))) if ('k', u) in queue else 60
    X1N = min(63, after(1) + 4)
    P('s_branch K1_HEAD')
    P('K1_G1:')
    P(kvsrd)
    if OPT['fused']:
        P(f"""
                v_mov_b32 v246, 0
        s_cmp_eq_u32 s{sW}, 4
        s_cbranch_scc0 K1_E0
        buffer_load_dword v244, v246, s[52:55], 0 offen sc1
        K1_E0:
        """)
    def touches():
        P(f"""
        s_lshl_b32 s7, s{sJ}, 9
        s_mul_i32 s6, s{sB}, 165888
        s_add_u32 s8, s62, s7
        s_addc_u32 s9, s63, 0
        s_add_u32 s20, s56, s6
        s_addc_u32 s21, s57, 0
        s_mov_b32 s22, 165888
        v_lshrrev_b32 v28, 3, v{TID}
        v_and_b32 v29, 7, v{TID}
        v_lshlrev_b32 v29, 6, v29
        v_lshl_add_u32 v28, v28, 13, v29
        v_lshlrev_b32 v29, 6, v{TID}
        s_lshl_b32 s3, s{sB}, 2
        s_add_u32 s3, s3, s{sWP}
        s_mul_i32 s3, s3, {TR * 8192}
        s_add_u32 s3, s3, {(576 - 32 * TR) * 8192}
        s_bfe_u32 s6, s2, 0x20003
        s_lshl_b32 s6, s6, 2
        s_add_u32 s6, s6, s{sWP}
        s_mul_i32 s6, s6, {162 * 64}
        """)
        tw = [(i, min(8, TR - 8 * i) * 8) for i in range((TR + 7) // 8)]; tx = [(0, 64), (1, 64), (2, 34)]
        k = 0
        for i in range(3):
            for (lst, v, srd, so, step) in ((tw, 28, 8, 3, 8 * 8192), (tx, 29, 20, 6, 4096)):
                if i >= len(lst): continue
                n = lst[i][1]
                if n < 64: P(f's_mov_b64 exec, {hex((1 << n) - 1)}' if n <= 31 else f's_mov_b32 exec_hi, {(1 << (n - 32)) - 1}')
                P(f'buffer_load_dword v{248 + k}, v{v}, s[{srd}:{srd + 3}], s{so} offen {ntw}'); k += 1
                if n < 64: P('s_mov_b64 exec, -1')
                P(f's_add_u32 s{so}, s{so}, {step}')
        return k
    def ptouch():
        pg = OPT['ptouch']
        P(f"""
        s_lshl_b32 s7, s{sJ}, 9
        s_mul_i32 s6, s{sB}, 165888
        s_add_u32 s8, s62, s7
        s_addc_u32 s9, s63, 0
        s_add_u32 s20, s56, s6
        s_addc_u32 s21, s57, 0
        s_mov_b32 s22, 165888
        v_lshlrev_b32 v28, 16, v{TID}
        s_lshl_b32 s3, s{sWP}, 20
        s_add_u32 s3, s3, {65536 * 4}
        s_mov_b64 exec, 0xffff
        buffer_load_dword v248, v28, s[8:11], s3 offen
        s_mov_b64 exec, 0xf
        s_mov_b32 s3, {65536 * 68}
        s_cmp_eq_u32 s{sWP}, 0
        s_cbranch_scc0 K1_PT1
        buffer_load_dword v249, v28, s[8:11], s3 offen
        buffer_load_dword v250, v28, s[20:23], 0 offen
        s_branch K1_PT2
        K1_PT1:
        buffer_load_dword v249, v28, s[12:15], 0 offen {nk}
        buffer_load_dword v250, v28, s[16:19], 0 offen {nk}
        K1_PT2:
        s_mov_b64 exec, -1
        """)
    TR = OPT['trows']
    NT = (TR + 7) // 8 + 3
    if OPT['wtouch'] == 1: touches()
    if OPT['ptouch']: ptouch(); NT = 3
    P(lanec)
    if OPT['wtouch'] == 2: touches()
    P(f"""
    v_mul_u32_u24 v18, 3072, v12
    v_add_u32 v18, {STG0 + SB0 * STGS}, v18
    v_add_u32 v{QW[0]}, v17, v18
    v_xor_b32 v{QW[1]}, 64, v{QW[0]}
    v_xor_b32 v{QW[2]}, 0x80, v{QW[0]}
    v_xor_b32 v{QW[3]}, 0xc0, v{QW[0]}
    s_lshl_b32 s6, s{sWP}, 2
    v_add_u32 v18, s6, v15
    v_xor_b32 v18, v18, v16
    v_lshlrev_b32 v18, 4, v18
    v_lshl_add_u32 v18, v20, 3, v18
    v_lshl_add_u32 v18, v10, 8, v18
    v_mul_u32_u24 v19, 3072, v2
    v_add_u32 v19, {STG0 + SB0 * STGS}, v19
    v_add_u32 v{QW9}, v18, v19
    v_xor_b32 v22, v12, v10
    v_lshlrev_b32 v22, 4, v22
    v_lshl_add_u32 v22, v3, 6, v22
    v_mul_u32_u24 v19, 3072, v13
    s_mul_i32 s6, s{sWP}, 6144
    s_add_u32 s6, s6, {STG0 + SB0 * STGS + 2048}
    v_add3_u32 v{QX[0]}, v22, v19, s6
    v_xor_b32 v{QX[1]}, 32, v{QX[0]}
    v_xor_b32 v22, v2, v10
    v_lshlrev_b32 v22, 4, v22
    v_lshl_add_u32 v22, v3, 6, v22
    v_add_u32 v{QX9}, {STG0 + SB0 * STGS + 24576}, v22
    v_lshl_add_u32 v27, v2, 3, v26
    s_lshl_b32 s6, s{sWP}, 6
    s_add_u32 s6, s6, {Q9B}
    v_add_u32 v{S9 + 2}, s6, v27
    """)
    z = list(range(CN9, CN9 + 4)) + list(range(108, 112)) + [L, L9]
    for hd in range(2):
        for a in ACC[hd]: z += list(range(a, a + 16))
        for a in ACC9[hd]: z += list(range(a, a + 4))
    for r in z: P(f'v_mov_b32 v{r}, 0')
    if OPT['fused']:
        P(f"""
        s_cmp_eq_u32 s{sW}, 4
        s_cbranch_scc0 K1_E1
        s_mov_b32 s8, s64
        s_mov_b32 s9, s65
        s_mov_b32 s10, 256
        s_waitcnt vmcnt({NT if OPT['wtouch'] or OPT['ptouch'] else 0})
        v_add_u32 v244, 1, v244
        v_max_u32 v244, 1, v244
        v_mov_b32 v245, 0
        v_mov_b32 v247, v244
        s_mov_b64 exec, 1
        buffer_atomic_cmpswap v[244:245], v246, s[8:11], 0 offen sc0
        s_mov_b64 exec, -1
        K1_E1:
        """)
    P(f's_mov_b32 s{sIB}, {SB0}\ns_barrier')
    stamp(1)
    qit = []
    def qmain(kk, hd, dt):
        return (lambda F: [f'ds_read_b64_tr_b16 {vr(F + 2 * j, 2)}, v{QW[dt]} offset:{hd * 12288 + kk * 6144 + j * 1024}' for j in range(2)],
                lambda F: mf32(ACC[hd][dt], F, QB[kk]))
    def q9(hd, t):
        return (lambda F: [f'ds_read_b64_tr_b16 {vr(F + 2 * j, 2)}, v{QW9} offset:{hd * 12288 + t * 32 + j * 1024}' for j in range(2)],
                lambda F: mf16(ACC9[hd][t], F, QB9))
    qit = [qmain(0, hd, dt) for hd in range(2) for dt in range(4)] + [q9(hd, t) for hd in range(2) for t in range(2)] + [qmain(1, hd, dt) for hd in range(2) for dt in range(4)]
    nq = len(QF); NQ = len(qit); QD = OPT['qdelay']
    qrd = lambda i: qit[i % NQ][0](QF[i % nq])
    bheads = [f'ds_read_b128 {vr(QB[0], 4)}, v{QX[0]}', f'ds_read_b128 {vr(QB9, 4)}, v{QX9}']
    upd = [f'v_add_u32 v{r}, s{sDL}, v{r}' for r in QW + QX + [QX9, QW9]]
    P(bheads[0])
    for i in range(nq):
        P.extend(qrd(i))
        if i == 3: P(bheads[1])
    def qmf(i):
        m = qit[i][1](QF[i % nq])
        if i % 2 == 0 and i + 1 < NQ: m += f' ; need {vr(QF[(i + 1) % nq], 4)}'
        return m
    cut = NQ - nq + QD + 1
    P('s_branch K1_QM\nK1_QL:\ns_barrier')
    if OPT['stamps'] == 2: stamp(2, OPT['sq'])
    qpend = [bheads[0]] + [x for jj in range(QD + 1) for x in qrd(jj)]
    for i in range(cut, NQ):
        P(qmf(i))
        qpend += qrd(i + nq)
        if i == NQ - 2: qpend.append(bheads[1])
        n = len(qpend) if i == NQ - 1 else 4
        P.extend(qpend[:n]); qpend = qpend[n:]
    P('K1_QM:')
    if OPT['stamps'] == 1 and not OPT['fused']: stamp(5, 3); stamp(6, 6); stamp(9, 9); stamp(10, 12)
    if OPT['stamps'] == 2: stamp(5, OPT['sq'] - 1); stamp(6, OPT['sq'])
    for i in range(cut):
        P(qmf(i))
        if i + nq < NQ: P.extend(qrd(i + nq))
        if i == 0: P(f'ds_read_b128 {vr(QB[1], 4)}, v{QX[1]}')
        if i == 2: P(f's_cmp_eq_u32 s{sIB}, {NSB - 1}\ns_cselect_b32 s{sDL}, {-(NSB - 1) * STGS & 0xffffffff}, {STGS}')
        if i == 4: P(f's_add_u32 s{sIB}, s{sIB}, 1\ns_cmp_eq_u32 s{sIB}, {NSB}\ns_cselect_b32 s{sIB}, 0, s{sIB}')
        if i == 10: P.extend(upd[:4])
        if i == 11:
            P.extend(upd[4:])
            if OPT['stamps'] == 2: stamp(3, OPT['sq'] - 1)
            P(f's_add_u32 s{sCNT}, s{sCNT}, 1\ns_cmp_lt_u32 s{sCNT}, 18')
    P('s_cbranch_scc1 K1_QL\ns_barrier')
    for i in range(cut, NQ): P(qmf(i))
    if OPT['stamps'] == 1: stamp(2)
    P(f's_mov_b32 s6, {CSCALE}')
    for hd in range(2):
        for t in range(2):
            a = ACC9[hd][t]
            for i in range(4): P(f'v_mul_f32 v{a + i}, s6, v{a + i}')
            P(f'v_cvt_pk_bf16_f32 v{a}, v{a}, v{a + 1}\nv_cvt_pk_bf16_f32 v{a + 1}, v{a + 2}, v{a + 3}')
            P(f'ds_write_b64 v{S9 + 2}, {vr(a, 2)} offset:{hd * 4352 + t * 32}')
    for dt in [0, 1, 2, 3]:
        a = ACC[0][dt]
        for i in range(16): P(f'v_mul_f32 v{a + i}, s6, v{a + i}')
        for hf in range(2):
            for i in range(4): P(f'v_cvt_pk_bf16_f32 v{a + 8 * hf + i}, v{a + 8 * hf + 2 * i}, v{a + 8 * hf + 2 * i + 1}')
            P(f'ds_write_b128 v{S9 + 1}, {vr(a + 8 * hf, 4)} offset:{(2 * dt + hf) * 1024}')
    P('s_waitcnt vmcnt(0)')
    if OPT['fused']:
        P(f"""
        s_cmp_eq_u32 s{sW}, 4
        s_cbranch_scc0 K1_E2
        s_waitcnt vmcnt(0)
        v_cmp_eq_u32 vcc, 0, v244
        v_mov_b32 v246, {Q9B + 8704}
        s_mov_b64 exec, 1
        v_cndmask_b32 v244, v244, v247, vcc
        ds_write_b32 v246, v244
        s_getreg_b32 s3, hwreg(HW_REG_XCC_ID, 0, 4)
        v_lshl_add_u32 v245, v244, 4, s3
        s_and_b32 s3, s2, 7
        s_lshl_b32 s3, s3, 5
        s_lshr_b32 s7, s2, 3
        s_add_u32 s3, s3, s7
        s_lshl_b32 s3, s3, 2
        v_mov_b32 v246, s3
        buffer_store_dword v245, v246, s[52:55], 0 offen offset:1024 sc1
        s_mov_b64 exec, -1
        K1_E2:
        """)
    P(loopinit); P(narrow)
    P('s_barrier')
    P(getE)
    for kk in range(4): P(f'ds_read_b128 {vr(Q9 + 4 * kk, 4)}, v{S9} offset:{kk * 64}')
    for i in range(16): P(f'v_mul_f32 v{ACC[1][0] + i}, s6, v{ACC[1][0] + i}')
    P('s_barrier')
    P(getE2)
    for dt in range(4):
        a = ACC[1][dt]
        if dt:
            for i in range(16): P(f'v_mul_f32 v{a + i}, s6, v{a + i}')
        for i in range(8): P(f'v_cvt_pk_bf16_f32 v{Q + dt * 8 + i}, v{a + 2 * i}, v{a + 2 * i + 1}')
    for r in list(range(O, O + 64)) + list(range(CN, CN + 12)) + list(range(O9, O9 + 32)): P(f'v_mov_b32 v{r}, 0')
    P('s_barrier\nK1_HEAD:')

    def dma_sites(vo, srd, so, mb):
        out = []
        for n in range(4):
            g = [f's_add_u32 m0, s{mb}, s{sMW}', 's_nop 0'] if n == 0 else []
            g.append(f'buffer_load_dwordx4 v{vo}, s[{srd}:{srd + 3}], s{so} offen offset:{n * 1024} {nk} lds')
            if n == 3: g.append(f's_add_u32 s{so}, s{so}, 16384')
            out.append(g)
        return out
    dmaV = dma_sites(VOV, 16, sSV, sIS); dmaK = dma_sites(VOK, 12, sSK, sIK)
    pre = OPT['opre'] == 1
    book = f"""s_cmp_lt_u32 s{sCNT}, {8 if pre else 7}
    s_cselect_b32 s{sIS}, s{sKP}, 0x30000
    s_add_u32 s{sKP}, s{sKP}, 65536
    s_cmp_ge_u32 s{sKP}, 163840
    s_cselect_b32 s3, 163840, 0
    s_sub_u32 s{sKP}, s{sKP}, s3
    s_sub_u32 s{sDK}, 65536, s3
    s_cmp_lt_u32 s{sCNT}, 5
    s_cselect_b32 s{sIK}, s{sVP}, 0x30000
    s_add_u32 s{sVP}, s{sVP}, 65536
    s_cmp_ge_u32 s{sVP}, 163840
    s_cselect_b32 s3, 163840, 0
    s_sub_u32 s{sVP}, s{sVP}, s3
    s_sub_u32 s{sDV}, 65536, s3""".split('\n')
    book2 = f"""s_cmp_eq_u32 s{sCNT}, 6
    s_cselect_b32 s{sIK}, s6, s{sIK}
    s_cselect_b32 s12, s56, s12
    s_cselect_b32 s13, s57, s13
    s_cselect_b32 s14, 20480, s14
    s_cselect_b32 s{sSK}, 0, s{sSK}
    s_cmp_eq_u32 s{sCNT}, 7
    s_cselect_b32 s16, s56, s16
    s_cselect_b32 s17, s57, s17
    s_cselect_b32 s18, 20480, s18
    s_cselect_b32 s{sSV}, 4096, s{sSV}""".split('\n') if pre else []
    if pre: book.insert(7, f's_mov_b32 s6, s{sVP}')
    vupd = [f'v_add_u32 v{VA + i}, s{sDV}, v{VA + i}' for i in range(4)] + [f'v_add_u32 v{AV9}, s{sDV}, v{AV9}']
    kupd = [f'v_add_u32 v{AK}, s{sDK}, v{AK}', f'v_add_u32 v{AK9}, s{sDK}, v{AK9}']
    def kmain(kk, mt):
        tmp = [T0, T1][kk & 1]
        pre = [f'v_xor_b32 v{tmp}, {kk << 5}, v{AK}'] if (mt == 0 and kk) else []
        ad = tmp if kk else AK
        return dict(rd=lambda F: pre + [f'ds_read_b128 {vr(F, 4)}, v{ad} offset:{mt * 2048}'],
                    mf=lambda F: [mf32(S + 16 * mt, F, Q + 4 * kk, CN if kk == 0 else None)], w=32)
    def k9(kk):
        pre = [f'v_xor_b32 v{X0}, {kk << 6}, v{AK9}'] if kk else []
        ad = X0 if kk else AK9
        return dict(rd=lambda F: pre + [f'ds_read_b128 {vr(F, 4)}, v{ad}'],
                    mf=lambda F: [mf16(S9, F, Q9 + 4 * kk, CN9 if kk == 0 else None)], w=16)
    def vmain(ks, dt):
        mt, u = ks >> 1, ks & 1
        return dict(rd=lambda F: [f'ds_read_b64_tr_b16 {vr(F + 2 * j, 2)}, v{VA + dt} offset:{u * 8192 + j * 4096 + mt * 2048}' for j in range(2)],
                    mf=lambda F: [mf32(O + 16 * dt, F, PP + 4 * ks)], w=32)
    def v9(pp):
        pre = [f'v_xor_b32 v{X1}, {pp << 6}, v{AV9}'] if pp else []
        ad = X1 if pp else AV9
        return dict(rd=lambda F: pre + [f'ds_read_b64_tr_b16 {vr(F + 2 * j, 2)}, v{ad} offset:{32 * j}' for j in range(2)],
                    mf=lambda F: [mf16h(O9 + 4 * (2 * pp + j), F + 2 * j, P9) for j in range(2)], w=32)
    itA = []
    for kk in range(8):
        itA += [kmain(kk, 0), kmain(kk, 1)]
        if 1 <= kk <= 4: itA.append(k9(kk - 1))
    itC = []
    for dt in range(4): itC += [vmain(0, dt), v9(dt)]
    for ks in range(1, 4): itC += [vmain(ks, dt) for dt in range(4)]
    lastP = {0: 6, 1: 11, 2: 15, 3: 19, 9: 7}
    nb = len(FB); items = itA + itC; N = len(items); nA = len(itA)
    assert N % nb == 0 and nA % nb == 0
    RD = lambda i: items[i % N]['rd'](FB[i % nb])
    DL = OPT['bdelay']
    def MF(i, pair=True):
        m = items[i]['mf'](FB[i % nb])
        if pair and OPT['pairw'] and i % 2 == 0 and (i + 1) % nA != 0: m[0] += f' ; need {vr(FB[(i + 1) % nb], 4)}'
        return m
    def sync(wait='vmcnt(12)'): return [f's_waitcnt {wait}', 's_barrier']
    def gsync(lbl, group0, wait):
        return [f's_cmp_lt_u32 s{sW}, 4', f's_cbranch_scc{0 if group0 else 1} {lbl}', f's_waitcnt {wait}', 's_barrier', f'{lbl}:']
    DS = OPT['dstep']
    mx = [f'v_max3_f32 v{T1}, v{S9}, v{S9 + 1}, v{S9 + 2}', f'v_max_f32 v{T1}, v{T1}, v{S9 + 3}', f'v_max3_f32 v{T0}, v{S}, v{S + 1}, v{S + 2}']
    mx += [f'v_max3_f32 v{T0}, v{T0}, v{S + 3 + 2 * i}, v{S + 4 + 2 * i}' for i in range(6)]
    mx += [f'v_max3_f32 v{X0}, v{S + 16}, v{S + 17}, v{S + 18}']
    mx += [f'v_max3_f32 v{X0}, v{X0}, v{S + 19 + 2 * i}, v{S + 20 + 2 * i}' for i in range(6)]
    mx += [f'v_max3_f32 v{X0}, v{X0}, v{S + 15}, v{S + 31}', f'v_max_f32 v{T0}, v{T0}, v{X0}', f'v_max_f32 v{X0}, v{T0}, v{T1}', f'v_cmp_lt_f32 vcc, s{sT}, v{X0}']
    fill = []
    for ks in range(4):
        b = S + 8 * ks
        for i in range(0, 8, 2):
            fill += [(0, f'v_exp_f32 v{b + i}, v{b + i}'), (0, f'v_exp_f32 v{b + i + 1}, v{b + i + 1}')]
            if i: fill += [(0, f'v_add_f32 v{L}, v{L}, v{b + i - 2}'), (0, f'v_add_f32 v{L}, v{L}, v{b + i - 1}')]
        if ks == 0: fill += [(0, f'v_exp_f32 v{S9 + i}, v{S9 + i}') for i in range(4)]
        fill += [(0, f'v_add_f32 v{L}, v{L}, v{b + 6}'), (0, f'v_add_f32 v{L}, v{L}, v{b + 7}')]
        if ks == 0: fill += [(0, f'v_add_f32 v{L9}, v{L9}, v{S9 + i}') for i in range(4)]
        fill += [(lastP[ks], f'v_cvt_pk_bf16_f32 v{PP + 4 * ks + i}, v{b + 2 * i}, v{b + 2 * i + 1}') for i in range(4)]
        if ks == 0: fill += [(lastP[9], f'v_cvt_pk_bf16_f32 v{P9 + i}, v{S9 + 2 * i}, v{S9 + 2 * i + 1}') for i in range(2)]
    wosrd = f"""
    s_and_b32 s6, s2, 3
    s_mul_i32 s6, s6, {1024 * 1152}
    s_add_u32 s8, s100, s6
    s_addc_u32 s9, s101, 0
    s_sub_u32 s8, s8, 3072
    s_subb_u32 s9, s9, 0
    s_sub_u32 s10, {4096 * 1152 + 3072}, s6
    s_mov_b32 s11, 0x20000
    """
    def wotouch(drop):
        d1, d2, sfx = ('', '', 'lds') if drop else (f'v{Q + 1}, ', f'v{Q + 2}, ', '')
        va = X0 if drop else Q
        return f"""
    s_lshr_b32 s6, s2, 3
    s_lshl_b32 s6, s6, 3
    s_add_u32 s6, s6, s{sW}
    s_mul_i32 s6, s6, {36 * 128}
    s_add_u32 s6, s6, 3072
    {f's_add_u32 m0, s{sIS}, s{sMW}' if drop else ''}
    v_lshlrev_b32 v{va}, 6, v{TID}
    buffer_load_dword {d1}v{va}, s[8:11], s6 offen {OPT['nt_wo']} {sfx}
    s_add_u32 s6, s6, 4096
    s_mov_b64 exec, 0xff
    buffer_load_dword {d2}v{va}, s[8:11], s6 offen {OPT['nt_wo']} {sfx}
    s_mov_b64 exec, -1
    """
    if OPT['wot'] >= 2: P(wosrd)
    if OPT['opre'] == 1: P(obase)
    if OPT['opre'] >= 2:
        P(f"""
        s_lshl_b32 s6, s{sBR}, 3
        s_add_u32 s6, s6, s{sB}
        s_mul_i32 s6, s6, 1179648
        s_add_u32 s56, s66, s6
        s_addc_u32 s57, s67, 0
        s_mov_b32 s58, 1179648
        s_mov_b32 s59, 0x20000
        """)
    opre2 = f"""
    s_cmp_lg_u32 s{sCNT}, {OPT['opre']}
    s_cbranch_scc1 K1_OP
    s_add_u32 m0, s{sIS}, s{sMW}
    s_lshl_b32 s6, s{sJ}, 1
    s_add_u32 s6, s6, s{sP}
    s_lshl_b32 s7, s6, 13
    s_lshl_b32 s3, s{sWP}, 18
    s_add_u32 s7, s7, s3
    v_lshlrev_b32 v{X0}, 7, v{TID}
    buffer_load_dword v{X0}, s[56:59], s7 offen lds
    s_lshl_b32 s6, s6, 12
    s_lshl_b32 s7, s{sWP}, 10
    s_add_u32 s6, s6, s7
    s_add_u32 s6, s6, {1 << 20}
    s_mov_b64 exec, 0xff
    buffer_load_dword v{X0}, s[56:59], s6 offen lds
    s_mov_b64 exec, -1
    K1_OP:
    """
    if OPT['wot'] == 2: P(wotouch(True))
    for i in range(nb): P.extend(RD(i))
    if OPT['stamps'] == 1: stamp(7)
    for i in range(nA):
        P.extend(MF(i))
        if i + nb < nA: P.extend(RD(i + nb))
        if i + nb - nA == DL: P.extend(sync('vmcnt(63)'))
        if i in (1, 3, 5, 7): P.extend(dmaV[(i - 1) // 2])
    if OPT['pa'] != OPT['pc']: P(f's_setprio {OPT["pc"]}')
    P.extend(kupd + mx[:-1]); P('s_branch K1_RARE1\nK1_CPB:')
    P(f's_mov_b32 s{sRARE}, 0')
    ktail = [q for q in range(4) if DL + q * DS < nb]
    for i, (_, t) in enumerate(fill):
        P(t)
        if i == len(fill) - 12:
            P.extend(sync(f'vmcnt({X1N})'))
            for jj in range(nb): P.extend(RD(jj))
            for q in ktail: P.extend(dmaK[q])
    P('K1_TOP:')
    if OPT['stamps'] == 1 and not OPT['fused']: stamp(11, 2); stamp(8, 5)
    if OPT['pa'] != OPT['pc']: P(f's_setprio {OPT["pa"]}')
    if OPT['stamps'] == 2: stamp(7, 3); stamp(11, 4)
    def sites(pos, dm):
        return [x for q in range(4) if q * DS == pos for x in dm[q]]
    for i in range(nA):
        P.extend(MF(i))
        j = i + nb - nA
        if j < 0: P.extend(RD(i + nb))
        elif j == DL:
            P.extend(sync())
            for jj in range(DL + 1): P.extend(RD(nA + jj))
        elif j > DL: P.extend(RD(i + nb))
        P.extend(sites(i + nb - DL, dmaK))
        if j == DL and OPT['wot'] >= 3: P(f's_cmp_lg_u32 s{sCNT}, {OPT["wot"]}\ns_cbranch_scc1 K1_WT' + wotouch(True) + 'K1_WT:')
        if j == DL and OPT['opre'] >= 2: P(opre2)
        if j >= DL: P.extend(sites(j - DL, dmaV))
        if i == 2: P.extend(vupd)
        if i == 9: P.extend(book[:7])
        if i == 11: P.extend(book[7:])
        if i == 13: P.extend(book2)
    if OPT['stamps'] == 2: stamp(8, 3)
    if OPT['pa'] != OPT['pc']: P(f's_setprio {OPT["pc"]}')
    cost = lambda t: 2 if 'exp' in t else (0 if 'BR' in t else 1)
    full = [(0, t) for t in kupd + mx] + [(0, 'BR')] + fill
    tot = sum(cost(t) for _, t in full)
    pend = list(full); acc = 0; cw = 0; wsum = sum(it['w'] for it in itC)
    for c in range(len(itC)):
        i = nA + c
        P.extend(MF(i)); cw += itC[c]['w']
        j = i + nb - N
        if j < 0: P.extend(RD(i + nb))
        elif j == DL:
            P.extend(sync())
            for jj in range(DL + 1): P.extend(RD(jj))
        elif j > DL: P.extend(RD(i + nb))
        P.extend(sites(c + nb - DL, dmaV))
        if j >= DL: P.extend(sites(j - DL, dmaK))
        goal = tot * min(1.0, cw / (wsum - 32))
        q = 0
        while q < len(pend) and acc + cost(pend[q][1]) <= goal + 1:
            if pend[q][0] > c: q += 1; continue
            acc += cost(pend[q][1]); t = pend.pop(q)[1]
            P('s_cbranch_vccnz K1_RARE1\nK1_R1B:' if t == 'BR' else t)
    for _, t in pend: P(t)
    if OPT['stamps'] == 2: stamp(10, 3)
    P(f"""
    s_add_u32 s{sCNT}, s{sCNT}, 1
    s_add_u32 s3, s{sCNT}, s{sRARE}
    s_cmp_lt_u32 s3, 8
    s_cbranch_scc1 K1_TOP
    s_cmp_lg_u32 s{sRARE}, 0
    s_cbranch_scc1 K1_RARE2
    K1_NEXT:
    s_cmp_lt_u32 s{sCNT}, 8
    s_cbranch_scc1 K1_TOP
    s_branch K1_PVO
    """)
    P(f"""
    K1_RARE1:
    v_mov_b32 v{X0}, v{T0}
    v_mov_b32 v{X1}, v{T1}
    v_permlane32_swap_b32 v{T0}, v{X0}
    v_permlane32_swap_b32 v{T1}, v{X1}
    v_max3_f32 v{T0}, v{T0}, v{X0}, s{sCL}
    v_max_f32 v{T1}, v{T1}, v{X1}
    v_mov_b32 v{X1}, v{T1}
    v_max_f32 v{AL}, 0, v{T0}
    v_permlane16_swap_b32 v{T1}, v{X1}
    v_max3_f32 v{T1}, v{T1}, v{X1}, s{sCL}
    v_max_f32 v{AL9}, 0, v{T1}
    v_exp_f32 v{AL}, -v{AL}
    v_exp_f32 v{AL9}, -v{AL9}
    """)
    for i in range(32): P(f'v_sub_f32 v{S + i}, v{S + i}, v{T0}')
    for i in range(16): P(f'v_sub_f32 v{CN + i}, v{CN + i}, v{T0}')
    for i in range(4): P(f'v_sub_f32 v{S9 + i}, v{S9 + i}, v{T1}')
    for i in range(4): P(f'v_sub_f32 v{CN9 + i}, v{CN9 + i}, v{T1}')
    P(f"""
    v_mul_f32 v{L}, v{L}, v{AL}
    v_mul_f32 v{L9}, v{L9}, v{AL9}
    s_mov_b32 s{sT}, {f2u(8.0)}
    s_cmp_lg_u32 s{sCL}, 0
    s_mov_b32 s{sCL}, 0
    s_mov_b32 s{sRARE}, 8
    s_cbranch_scc1 K1_CPB
    s_branch K1_R1B
    K1_RARE2:
    """)
    for i in range(64): P(f'v_mul_f32 v{O + i}, v{O + i}, v{AL}')
    for i in range(32): P(f'v_mul_f32 v{O9 + i}, v{O9 + i}, v{AL9}')
    P(f"""
    s_mov_b32 s{sRARE}, 0
    s_branch K1_NEXT
    K1_PVO:
    """)
    if OPT['stamps'] == 1: stamp(3)
    P.extend(vupd)
    P(f's_and_b32 s{sKP}, s2, 3')
    if OPT['wot'] == 1: P(wosrd + wotouch(False))
    elif OPT['wot'] == 0: P(wosrd)
    P.extend(sync('vmcnt(2)' if OPT['wot'] == 1 else 'vmcnt(0)'))
    if OPT['fused'] and OPT['loc']:
        P(f"""
        s_cmp_eq_u32 s{sW}, 4
        s_cbranch_scc0 K1_XL
        s_and_b32 s3, s2, 7
        s_lshl_b32 s3, s3, 7
        v_lshlrev_b32 v{Q + 3}, 2, v{TID}
        buffer_load_dword v{Q + 3}, v{Q + 3}, s[52:55], s3 offen offset:1024 sc1
        K1_XL:
        """)
    for i in range(nb): P.extend(RD(nA + i))
    groups = [MF(nA + c) + (RD(nA + c + nb) if c + nb < len(itC) else []) for c in range(len(itC))]
    epi = f'''
    s_lshl_b32 s6, s{sBR}, 3
    s_add_u32 s6, s6, s{sB}
    s_mul_i32 s6, s6, 1179648
    s_add_u32 s20, s66, s6
    s_addc_u32 s21, s67, 0
    s_mov_b32 s22, 1179648
    s_mov_b32 s23, 0x20000
    s_lshl_b32 s6, s{sJ}, 1
    s_add_u32 s6, s6, s{sP}
    s_lshl_b32 s7, s6, 13
    s_lshl_b32 s{sSK}, s{sWP}, 18
    s_add_u32 s{sSK}, s{sSK}, s7
    s_add_u32 s{sSV}, s{sSK}, 4096
    s_lshl_b32 s{sIS}, s6, 12
    s_lshl_b32 s7, s{sWP}, 10
    s_add_u32 s{sIS}, s{sIS}, s7
    s_add_u32 s{sIS}, s{sIS}, {1 << 20}
    v_mov_b32 v{T0}, v{L}
    v_mov_b32 v{T1}, v{L9}
    v_lshlrev_b32 v{VOK}, 4, v{TID}
    v_permlane32_swap_b32 v{L}, v{T0}
    v_permlane32_swap_b32 v{L9}, v{T1}
    v_add_f32 v{L}, v{L}, v{T0}
    v_add_f32 v{L9}, v{L9}, v{T1}
    v_mov_b32 v{T1}, v{L9}
    v_rcp_f32 v{AL}, v{L}
    v_permlane16_swap_b32 v{L9}, v{T1}
    v_add_f32 v{CN9 + 1}, v{L9}, v{T1}
    '''.strip().split('\n')
    epi += phase2(P, stamp, locals(), 0)
    per = -(-len(epi) // len(groups))
    i = 0
    for g in groups:
        P.extend(g)
        j = min(len(epi), i + per)
        while j < len(epi) and (epi[j].split()[0] in ('s_addc_u32', 's_cselect_b64', 's_cselect_b32', 'v_cndmask_b32')): j += 1
        P.extend(epi[i:j]); i = j
    P.extend(epi[i:])
    x9 = gsync('K1_X9', True, 'vmcnt(2)')
    P.extend(x9[:-1])
    if OPT['fused']: phase2(P, stamp, locals(), 3)
    P(x9[-1])
    P(f"""
    s_cmp_lt_u32 s{sW}, 4
    s_cselect_b32 s45, 20480, 65536
    s_cselect_b32 s46, 36864, 155648
    s_lshl_b32 s7, s{sWP}, 11
    s_add_u32 s6, s45, s7
    v_add_u32 v{T0}, s6, v{VOK}
    s_add_u32 s6, s46, s7
    v_add_u32 v{X1}, s6, v{VOK}
    v_and_b32 v{T1}, 15, v{TID}
    v_lshlrev_b32 v{T1}, 3, v{T1}
    s_lshl_b32 s7, s{sW}, 7
    s_add_u32 s7, s7, 45056
    v_add_u32 v{X0}, s7, v{T1}
    ds_write_b64 v{X0}, {vr(CN9, 2)}
    s_mul_i32 s6, s{sP}, 36864
    s_lshl_b32 s7, s{sWP}, 12
    s_add_u32 s6, s6, s7
    s_add_u32 s6, s6, 81920
    v_add_u32 v{AL9}, s6, v{VOK}
    """)
    os_ = '' if OPT['loc'] else 'sc1'
    for sl in range(1, 4):
        for t in range(2): P(f'ds_write_b128 v{T0 if sl < 3 else X1}, {vr(O9 + 8 * sl + 4 * t, 4)} offset:{(sl - 1) * 8192 * (sl < 3) + t * 1024}')
    for dt in range(4):
        for i in range(16): P(f'v_mul_f32 v{O + 16 * dt + i}, v{O + 16 * dt + i}, v{AL}')
        for hf in range(2):
            d = S + 8 * dt + 4 * hf
            for i in range(4): P(f'v_cvt_pk_bf16_f32 v{d + i}, v{O + 16 * dt + 8 * hf + 2 * i}, v{O + 16 * dt + 8 * hf + 2 * i + 1}')
            ks = 2 * dt + hf
            P(f'buffer_store_dwordx4 {vr(d, 4)}, v{VOK}, s[20:23], s{sSK if ks < 4 else sSV} offen offset:{(ks & 3) * 1024} {os_}')
            P(f'ds_write_b128 v{AL9}, {vr(d, 4)} offset:{(ks >> 2) * 18432 + (ks & 3) * 1024}')
    P(f"""
    s_lshl_b32 s6, s{sP}, 9
    s_add_u32 s6, s6, 45056
    v_add_u32 v{X0}, s6, v{T1}
    s_xor_b32 s7, s{sWP}, 1
    s_lshl_b32 s7, s7, 11
    s_add_u32 s7, s7, s45
    v_add_u32 v50, s7, v{VOK}
    s_xor_b32 s7, s{sWP}, 2
    s_lshl_b32 s7, s7, 11
    s_add_u32 s7, s7, s45
    s_add_u32 s7, s7, 8192
    v_add_u32 v51, s7, v{VOK}
    s_xor_b32 s7, s{sWP}, 3
    s_lshl_b32 s7, s7, 11
    s_add_u32 s7, s7, s46
    v_add_u32 v52, s7, v{VOK}
    s_lshl_b32 s7, s{sWP}, 7
    v_xor_b32 v{X0}, s7, v{X0}
    v_xor_b32 v53, 0x80, v{X0}
    v_xor_b32 v54, 0x100, v{X0}
    v_xor_b32 v55, 0x180, v{X0}
    v_lshrrev_b32 v42, 5, v{TID}
    v_bfe_u32 v43, v{TID}, 4, 1
    v_lshlrev_b32 v44, 1, v{T1}
    v_lshl_add_u32 v44, v42, 8, v44
    v_lshl_add_u32 v44, v43, 3, v44
    s_lshr_b32 s6, s{sW}, 1
    s_mul_i32 s6, s6, 18432
    s_and_b32 s7, s{sW}, 1
    s_lshl_b32 s7, s7, 10
    s_add_u32 s6, s6, s7
    s_add_u32 s6, s6, {81920 + 16384}
    v_add_u32 v45, s6, v44
    s_barrier
    """)
    stamp(4)
    for w in range(4): P(f'ds_read_b64 {vr(2 * w, 2)}, v{[X0, 53, 54, 55][w]}')
    for w in range(1, 4):
        for t in range(2): P(f'ds_read_b128 {vr(8 + 8 * w + 4 * t, 4)}, v{49 + w} offset:{t * 1024}')
    P('v_min3_f32 v40, v0, v2, v4\nv_min_f32 v40, v40, v6')
    for w in range(4): P(f'v_sub_f32 v{2 * w}, v40, v{2 * w}')
    for w in range(4): P(f'v_exp_f32 v{2 * w}, v{2 * w}')
    P("""
    v_mul_f32 v41, v0, v1
    v_fmac_f32 v41, v2, v3
    v_fmac_f32 v41, v4, v5
    v_fmac_f32 v41, v6, v7
    v_rcp_f32 v41, v41
    """)
    for i in range(8): P(f'v_mul_f32 v{8 + i}, v{O9 + i}, v0')
    for w in range(1, 4):
        for i in range(8): P(f'v_fmac_f32 v{8 + i}, v{8 + 8 * w + i}, v{2 * w}')
    for i in range(8): P(f'v_mul_f32 v{8 + i}, v{8 + i}, v41')
    for t in range(2):
        P(f'v_cvt_pk_bf16_f32 v{46 + 2 * t}, v{8 + 4 * t}, v{9 + 4 * t}')
        P(f'v_cvt_pk_bf16_f32 v{47 + 2 * t}, v{10 + 4 * t}, v{11 + 4 * t}')
        P(f'ds_write_b64 v45, {vr(46 + 2 * t, 2)} offset:{t * 512}')
        P(f'buffer_store_dwordx2 {vr(46 + 2 * t, 2)}, v44, s[20:23], s{sIS} offen offset:{t * 512} {os_}')
    if OPT['fused']: phase2(P, stamp, locals(), 2)
    if OPT['stamps']:
        P('K1_STAMPS:' if OPT['fused'] else 's_waitcnt vmcnt(0)')
        if not OPT['fused']: stamp(4)
        P(f'''
        s_waitcnt lgkmcnt(0)
        s_add_u32 s20, s66, {WS_STAMP}
        s_addc_u32 s21, s67, 0
        s_mov_b32 s22, 0x100000
        s_mov_b32 s23, 0x20000
        s_lshl_b32 s6, s2, 3
        s_add_u32 s6, s6, s{sW}
        s_lshl_b32 s6, s6, 7
        v_mov_b32 v2, s6
        s_mov_b64 exec, 1
        ''')
        if OPT['probe'] >= 0:
            k = OPT['probe']
            lo, base = (98, 96) if k == 99 else (70 + 2 * k, 70)
            P(f"""
            s_cmp_lg_u32 s2, {OPT['pwg']}
            s_cbranch_scc1 K1_END
            s_cmp_lg_u32 s{sW}, {OPT['pw']}
            s_cbranch_scc1 K1_END
            s_sub_u32 s6, s{lo}, s{base}
            s_mul_i32 s6, s6, {1 if k == 99 else 10}
            s_memrealtime s[72:73]
            s_waitcnt lgkmcnt(0)
            s_add_u32 s6, s6, s72
            {'s_add_u32 s6, s70, 30000' if k == 0 else ''}
            K1_SPIN:
            s_memrealtime s[72:73]
            s_waitcnt lgkmcnt(0)
            s_sub_u32 s7, s72, s6
            s_cmp_lt_i32 s7, 0
            s_cbranch_scc1 K1_SPIN
            s_branch K1_END
            """)
        if OPT['dbgst']:
            P('s_mov_b32 s20, s64\ns_mov_b32 s21, s65\ns_mov_b32 s22, 256\nv_mov_b32 v2, 0\ns_not_b32 s70, s70')
            for i, k in enumerate([0, 1, 2, 7, 3, 4, 5, 6, 9, 10, 11, 8]):
                P(f'v_mov_b32 v4, s{70 + 2 * k}\nbuffer_atomic_umax v4, v2, s[20:23], 0 offen offset:{4 + 4 * i}\ns_nop 1')
        for k in range(0 if OPT['dbgst'] else 15):
            P(f'v_mov_b32 v4, s{70 + 2 * k}\nv_mov_b32 v5, s{71 + 2 * k}\nbuffer_store_dwordx2 v[4:5], v2, s[20:23], 0 offen offset:{8 * k}\ns_nop 1')
    P('K1_END:\ns_endpgm')
    a0 = [i for i, x in enumerate(P.ins) if x.text == 'K1_G1:'][0]; a1 = [i for i, x in enumerate(P.ins) if x.text == 'K1_PVO:'][0]
    keep = []
    kt = [i for i, x in enumerate(P.ins) if x.text == 'K1_TOP:'][0]
    kp0 = [i for i, x in enumerate(P.ins) if x.text == 'K1_G1:'][0]; kp1 = [i for i, x in enumerate(P.ins) if x.text == 'K1_QL:'][0]
    for i, x in enumerate(P.ins):
        if a0 < i < a1:
            if OPT['nodma'] and x.dma and not (kp0 < i < kp1): continue
            if OPT['nobar'] and x.kind == 'barrier': continue
            if OPT['noexp'] and x.kind in ('valu', 'trans') and ('exp' in x.text or 'v_add_f32' in x.text or 'cvt_pk' in x.text or 'max3' in x.text): continue
            if OPT['nolds'] and x.kind == 'ds_r': continue
            if OPT['nomf'] and i > kt and (x.kind in ('mfma', 'ds_r', 'trans') or (x.kind == 'valu' and 'v_cmp' not in x.text)): continue
        keep.append(x)
    P.ins = keep
    return P.finish()

def desc(name, vg, sg=102):
    return f'''.amdhsa_kernel {name}
  .amdhsa_next_free_vgpr {vg}
  .amdhsa_next_free_sgpr {sg}
  .amdhsa_accum_offset {(vg + 3) // 4 * 4}
  .amdhsa_group_segment_fixed_size 0
  .amdhsa_kernarg_size 104
  .amdhsa_user_sgpr_count 2
  .amdhsa_user_sgpr_kernarg_segment_ptr 1
  .amdhsa_system_sgpr_workgroup_id_x 1
  .amdhsa_float_denorm_mode_32 3
.end_amdhsa_kernel
'''

def main():
    ref = open('cdna_kernels/%s.s.ref' % NAME).read().split('\n')
    hdr = [l for l in ref if l.startswith(';') and '@launch' not in l and 'Override launch' not in l and 'grid=ceil' not in l]
    hdr = hdr[:14]
    ks = [('attn_kernel', k1(), 256, '(256,1,1)', '(%d,1,1)' % OPT['blk'], 163840),
          ]
    out = '\n'.join(hdr) + '\n'
    if OPT['fused']:
        ks = [(NAME + '_kernel',) + ks[0][1:]]
        out += f'; @launch grid={ks[0][3]} block={ks[0][4]} lds={ks[0][5]}\n'
    else:
        for n, _, _, g, b, l in ks: out += f'; @launch kernel={n} grid={g} block={b} lds={l}\n'
    out += '.amdgcn_target "amdgcn-amd-amdhsa--gfx950"\n.text\n'
    for n, body, _, _, _, _ in ks:
        out += f'.globl {n}\n.p2align 8\n.type {n},@function\n{n}:\n{body}'
    out += '.section .rodata,"a"\n'
    for n, _, vg, _, _, _ in ks: out += '.p2align 6\n' + desc(n, vg)
    open(sys.argv[1], 'w').write(out)
main()
```

```python
import re

def vr(a, n=1):
    return 'v%d' % a if n == 1 else 'v[%d:%d]' % (a, a + n - 1)
def sr(a, n=1):
    return 's%d' % a if n == 1 else 's[%d:%d]' % (a, a + n - 1)

_RNG = re.compile(r'^([vs])\[(\d+):(\d+)\]$')
_ONE = re.compile(r'^([vs])(\d+)$')
def regs(tok):
    tok = tok.strip()
    if tok.startswith('-'): tok = tok[1:]
    if tok.startswith('abs('): tok = tok[4:-1]
    m = _RNG.match(tok)
    if m: return ['%s%d' % (m.group(1), i) for i in range(int(m.group(2)), int(m.group(3)) + 1)]
    m = _ONE.match(tok)
    if m: return [tok]
    if tok in ('vcc', 'm0', 'exec', 'scc'): return [tok]
    if tok in ('vcc_lo', 'vcc_hi'): return ['vcc']
    return []

TRANS = ('v_exp_f32', 'v_rcp_f32', 'v_log_f32', 'v_rsq_f32', 'v_sqrt_f32')

class Ins:
    __slots__ = ('text', 'kind', 'w', 'r', 'passes', 'srcc', 'ab', 'target', 'cond', 'nstates', 'wide', 'dma', 'addr_r')
    def __init__(s, text, kind, w=(), r=(), passes=0, srcc=(), ab=(), target=None, cond=False, nstates=1, wide=(), dma=False):
        s.text, s.kind, s.w, s.r = text, kind, set(w), set(r)
        s.passes, s.srcc, s.ab = passes, tuple(srcc), set(ab)
        s.target, s.cond, s.nstates, s.wide, s.dma = target, cond, nstates, set(wide), dma

def parse(text):
    x = _parse(text)
    m = re.search(r';\s*need\s+(\S+)', text)
    if m: x.r |= set(regs(m.group(1)))
    return x

def _parse(text):
    t = text.split(';')[0].strip()
    if t.endswith(':'):
        return Ins(t, 'label', target=t[:-1], nstates=0)
    parts = t.split(None, 1)
    op = parts[0]
    ops = []
    if len(parts) > 1:
        depth = 0; cur = ''
        for ch in parts[1]:
            if ch in '[(': depth += 1
            if ch in '])': depth -= 1
            if ch == ',' and depth == 0: ops.append(cur.strip()); cur = ''
            else: cur += ch
        ops.append(cur.strip())
    def first_tok(x): return x.split()[0] if x.split() else ''
    o = [first_tok(x) for x in ops]
    R = lambda *idx: [x for i in idx if i < len(o) for x in regs(o[i])]
    if op.startswith('v_mfma'):
        passes = 8 if '32x32' in op else 4
        return Ins(t, 'mfma', w=R(0), r=R(1, 2, 3), passes=passes, srcc=R(3), ab=R(1, 2))
    if op.startswith('v_permlane'):
        return Ins(t, 'perm', w=R(0, 1), r=R(0, 1))
    if op in ('v_readfirstlane_b32', 'v_readlane_b32'):
        return Ins(t, 'rfl', w=R(0), r=R(1, 2))
    if op.startswith('v_cmp'):
        return Ins(t, 'valu', w=R(0), r=R(1, 2))
    if op in ('v_add_co_u32', 'v_addc_co_u32'):
        return Ins(t, 'valu', w=R(0, 1), r=R(2, 3, 4))
    if op.startswith('v_cndmask'):
        return Ins(t, 'valu', w=R(0), r=R(1, 2, 3))
    if op.startswith('v_'):
        kind = 'trans' if op.replace('_e32', '').replace('_e64', '') in TRANS else 'valu'
        r = R(*range(1, len(o)))
        if op.startswith('v_fmac') or op.startswith('v_dot2c'): r += R(0)
        return Ins(t, kind, w=R(0), r=r)
    if op.startswith('ds_read') or op.startswith('ds_bpermute'):
        return Ins(t, 'ds_r', w=R(0), r=R(*range(1, len(o))))
    if op.startswith('ds_write') or op.startswith('ds_add'):
        return Ins(t, 'ds_w', r=R(*range(0, len(o))))
    if op.startswith('buffer_load'):
        if re.search(r'\blds\b', t):
            return Ins(t, 'vmem', r=R(0, 1, 2) + ['m0'], dma=True)
        return Ins(t, 'vmem', w=R(0), r=R(1, 2, 3))
    if op.startswith('global_load'):
        return Ins(t, 'vmem', w=R(0), r=R(1))
    if op.startswith('buffer_store'):
        wide = R(0) if ('x3' in op or 'x4' in op) else []
        return Ins(t, 'vmem', r=R(0, 1, 2, 3), wide=wide)
    if op.startswith('buffer_atomic'):
        w = R(0) if 'sc0' in t else []
        return Ins(t, 'vmem', w=w, r=R(0, 1, 2, 3))
    if op in ('buffer_wbl2', 'buffer_inv'):
        return Ins(t, 'vmem')
    if op == 's_nop':
        return Ins(t, 'nop', nstates=int(o[0]) + 1)
    if op == 's_waitcnt':
        return Ins(t, 'wait')
    if op == 's_barrier':
        return Ins(t, 'barrier')
    if op == 's_endpgm':
        return Ins(t, 'end')
    if op == 's_branch':
        return Ins(t, 'branch', target=o[0])
    if op.startswith('s_cbranch'):
        return Ins(t, 'branch', target=o[0], cond=True)
    if op.startswith('s_load') or op in ('s_memtime', 's_memrealtime'):
        return Ins(t, 'smem', w=R(0), r=R(1, 2))
    if op.startswith('s_cmp') or op.startswith('s_bitcmp'):
        return Ins(t, 'salu', w=['scc'], r=R(0, 1))
    if op in ('s_setprio', 's_sleep'):
        return Ins(t, 'salu')
    if op.startswith('s_'):
        return Ins(t, 'salu', w=R(0), r=R(*range(1, len(o))))
    raise ValueError('unknown op: ' + text)

VALU_KINDS = ('valu', 'trans', 'perm', 'rfl')

def need_states(p, c):
    n = 0
    pv = p.kind in VALU_KINDS
    cv = c.kind in VALU_KINDS
    pw_v = {x for x in p.w if x[0] == 'v' and x != 'vcc'}
    pw_s = {x for x in p.w if x[0] == 's' and x != 'scc' or x == 'vcc'}
    if pv and c.kind == 'mfma' and pw_v & c.r: n = max(n, 2)
    if p.kind == 'mfma':
        big = p.passes == 8
        if c.kind == 'mfma':
            if p.w & c.ab: n = max(n, 12 if big else 8)
            if p.w & set(c.srcc):
                same = set(c.srcc) == p.w and c.passes == p.passes
                if not same: n = max(n, 10 if big else 6)
            elif p.w & c.w:
                n = max(n, 12 if big else 8)
        elif cv or c.kind in ('vmem', 'ds_r', 'ds_w'):
            if p.w & (c.r | c.w): n = max(n, 12 if big else 8)
        if cv and set(p.srcc) & c.w: n = max(n, 7 if big else 3)
    if p.kind == 'trans' and cv and c.kind != 'trans' and pw_v & c.r: n = max(n, 1)
    if pv and c.kind == 'perm' and pw_v & c.r: n = max(n, 2)
    if pv and c.kind == 'rfl' and pw_v & c.r: n = max(n, 1)
    if pv and pw_s:
        if cv and pw_s & c.r: n = max(n, 4 if c.kind == 'rfl' else 2)
        if c.kind == 'vmem' and pw_s & c.r: n = max(n, 5)
    if p.kind == 'salu' and 'm0' in p.w and c.kind == 'vmem' and c.dma: n = max(n, 1)
    if p.kind == 'vmem' and p.wide and (p.wide & c.w): n = max(n, 2 if cv else 1)
    return n

class Prog:
    def __init__(s):
        s.ins = []
    def __call__(s, text):
        for line in text.split('\n'):
            line = line.strip()
            if not line or line.startswith(';'): continue
            m = re.match(r'^s_cselect_b32 (s\d+), (\S+), (\S+)$', line)
            if m:
                lit = lambda t: re.match(r'^(0x[0-9a-f]+|\d+)$', t) and int(t, 0) > 64
                if lit(m.group(2)) and lit(m.group(3)):
                    s.ins.append(parse('s_mov_b32 %s, %s' % (m.group(1), m.group(3))))
                    s.ins.append(parse('s_cmov_b32 %s, %s' % (m.group(1), m.group(2))))
                    continue
            s.ins.append(parse(line))
    def extend(s, lst):
        for x in lst:
            if isinstance(x, str): s(x)
            else: s.ins.append(x)

    def _succ(s, ins):
        lab = {x.target: i for i, x in enumerate(ins) if x.kind == 'label'}
        succ = []
        for i, x in enumerate(ins):
            if x.kind == 'end': succ.append([])
            elif x.kind == 'branch':
                succ.append(([i + 1] if x.cond else []) + [lab[x.target]])
            else: succ.append([i + 1] if i + 1 < len(ins) else [])
        return succ

    def insert_lgkm(s):
        ins = s.ins
        succ = s._succ(ins)
        need = {}
        seen = set()
        stack = [(0, ())]
        while stack:
            i, q = stack.pop()
            if (i, q) in seen: continue
            seen.add((i, q))
            assert len(seen) < 400000, 'lgkm state explosion'
            x = ins[i]
            q = list(q)
            if x.kind == 'wait':
                m = re.search(r'lgkmcnt\((\d+)\)', x.text)
                if m:
                    k = int(m.group(1)); q = q[len(q) - k:] if k < len(q) else q
                    if k == 0: q = []
            else:
                touched = x.r | x.w
                k = None
                for pos, d in enumerate(q):
                    if d == 'SMEM':
                        continue
                    if set(d) & touched: k = len(q) - 1 - pos
                if x.kind == 'barrier' and q: k = 0
                if x.kind == 'end': k = None
                if i in need: k = need[i] if k is None else min(k, need[i])
                if k is not None:
                    k = min(k, 15)
                    if i not in need or k < need[i]:
                        need[i] = k
                        seen = set(); stack = [(0, ())]
                        continue
                    q = q[len(q) - k:] if k < len(q) else q
                    if k == 0: q = []
                if x.kind == 'ds_r': q.append(tuple(sorted(x.w)))
                elif x.kind == 'ds_w': q.append(())
                elif x.kind == 'smem':
                    pass
            for j in succ[i]: stack.append((j, tuple(q)))
        out = []
        for i, x in enumerate(ins):
            if i in need: out.append(parse('s_waitcnt lgkmcnt(%d)' % need[i]))
            out.append(x)
        s.ins = out

    def insert_nops(s):
        while True:
            ins = s.ins
            succ = s._succ(ins)
            pred = [[] for _ in ins]
            for i, l in enumerate(succ):
                for j in l: pred[j].append(i)
            fix = {}
            for i, c in enumerate(ins):
                if c.kind in ('label', 'nop', 'wait', 'branch', 'barrier', 'end', 'salu', 'smem'): continue
                worst = 0
                st = [(p, 0) for p in pred[i]]
                best = {}
                while st:
                    j, d = st.pop()
                    if d >= 12: continue
                    if j in best and best[j] <= d: continue
                    best[j] = d
                    p = ins[j]
                    n = need_states(p, c)
                    if n > d: worst = max(worst, n - d)
                    for k in pred[j]: st.append((k, d + p.nstates))
                if worst: fix[i] = worst; break
            if not fix: return
            (i, n), = fix.items()
            s.ins = ins[:i] + [parse('s_nop %d' % (n - 1))] + ins[i:]

    def finish(s):
        s.insert_lgkm()
        s.insert_nops()
        return '\n'.join(('' if x.kind == 'label' else '    ') + x.text for x in s.ins) + '\n'

def interleave(main, fill, per=None, start=0):
    cost = lambda t: 2 if t.split()[0] in TRANS else 1
    tot = sum(cost(f) for f in fill)
    n = len(main) - start
    out = []; k = 0; acc = 0
    for i, g in enumerate(main):
        out += g
        if i >= start:
            goal = tot * (i - start + 1) / n
            while k < len(fill) and acc + cost(fill[k]) / 2 <= goal:
                acc += cost(fill[k]); out.append(fill[k]); k += 1
    out += fill[k:]
    return out
```

```python
import sys, struct, math
from asmlib import *

NAME = 'concat_heads__mha_block_cached__gqa_block_cached__near_ridge'
def f2u(x): return struct.unpack('<I', struct.pack('<f', x))[0]
CSCALE = f2u(math.log2(math.e) / math.sqrt(128.0))

OPT = dict(nt_kv='nt', nt_w='', nt_x='', ostore='', stamps=0, touch=0, k2nb=3, nt_wo='', nt_o='', nodma=0, nobar=0, noexp=0, nolds=0, prio=0, bdelay=1, blk=512, pa=0, pc=1, pairw=1, qdelay=3, wtouch=0, kvs='000000000000044460a4', nsb=5, dstep=2, trows=15, tlead=0, ptouch=0, tl=0, nopoll=0, ot=-9, opre=0, dyn=0, ctouch=0, sp='01111111122111', ts=-1, npre=3, dist=3, sq=9, fused=1, p2nb=3, wot=1, ld2='', spin=200000, dbgst=0, loc=0, bgwb=0, nomf=0, nokv=0, nost=0, probe=-1, pwg=8, pw=4)
for a in sys.argv[2:]:
    k, v = a.split('=')
    OPT[k] = int(v) if (v.lstrip('-').isdigit() and k not in ('kvs', 'sp')) else v

WS_O_BR = 36 * 256 * 1024
WS_PART = 0x1400000
WS_FLAG = 0x3000000
WS_STAMP = 0x4000000

def lanes(P, dst, expr_list):
    for e in expr_list: P(e)

def mf32(d, a, b, c=None):
    return f'v_mfma_f32_32x32x16_bf16 {vr(d, 16)}, {vr(a, 4)}, {vr(b, 4)}, {vr(d if c is None else c, 16)}'
def mf16(d, a, b, c=None):
    return f'v_mfma_f32_16x16x32_bf16 {vr(d, 4)}, {vr(a, 4)}, {vr(b, 4)}, {vr(d if c is None else c, 4)}'
def mf16h(d, a, b):
    return f'v_mfma_f32_16x16x16_bf16 {vr(d, 4)}, {vr(a, 2)}, {vr(b, 2)}, {vr(d, 4)}'


def phase2(P, stamp, env, part):
    sW, sWP, sBR, sE, sKS, TID, sB, sJ = env['sW'], env['sWP'], env['sBR'], env['sE'], env['sKP'], env['TID'], env['sB'], env['sJ']
    NB = 4; WST, OST, OOF = 20480, 18432, 81920
    sJJ, sTID, sCNT, sIB, sDL, sTMP, sSPIN = 56, 58, 30, 36, 37, 48, 44
    sSW, sSO, sMW, sMO, sPW, sPO, sIBW, sNB, sM9, sD2, sS9 = 59, 60, 61, 62, 63, 35, 31, 33, 43, 47, 57
    sNEED = 38
    VW = [120, 121, 122, 123, 124]; VO, VF, VP = 141, 142, 143
    A0, A1, A90, A91, AB, AB9 = 125, 126, 127, 128, 129, 130
    done = 'K1_STAMPS' if OPT['stamps'] else 'K1_END'
    def poll(lbl, off):
        return f"""
    s_mov_b32 s{sSPIN}, {OPT['spin']}
    {lbl}:
    buffer_load_dword v{VP}, v{VF}, s[52:55], s{off} offen sc1
    s_sub_u32 s{sSPIN}, s{sSPIN}, 1
    s_cbranch_scc1 {lbl}X
    s_waitcnt vmcnt(0)
    v_cmp_eq_u32 vcc, s{sE}, v{VP}
    s_and_b64 s[6:7], vcc, s[{sNEED}:{sNEED + 1}]
    s_cmp_eq_u64 s[6:7], s[{sNEED}:{sNEED + 1}]
    s_cbranch_scc0 {lbl}
    {lbl}X:
    """
    def issW():
        o = f's_mul_i32 s7, s{sPW}, {64 * 1152}\ns_add_u32 s7, s7, s{sSW}\ns_add_u32 m0, s{sIBW}, s{sMW}\ns_add_u32 s{sPW}, s{sPW}, 1\n'
        for n in range(5):
            if n == 4: o += 's_add_u32 m0, m0, 4096\ns_nop 0\n'
            o += f'buffer_load_dwordx4 v{VW[n]}, s[8:11], s7 offen offset:{(n & 3) * 1024} {OPT["nt_wo"]} lds\n'
        return o + f's_and_b32 s{sPW}, s{sPW}, 15\ns_add_u32 s{sIBW}, s{sIBW}, {WST}\ns_cmp_eq_u32 s{sIBW}, {NB * WST}\ns_cselect_b32 s{sIBW}, 0, s{sIBW}\n'
    def issO():
        o = f's_add_u32 m0, s{sIB}, s{sMO}\ns_lshl_b32 s7, s{sPO}, 12\ns_add_u32 s7, s7, s{sSO}\n'
        for e in range(4): o += f'buffer_load_dwordx4 v{VO}, s[20:23], s7 offen offset:{e * 1024} {OPT["ld2"]} lds\n'
        o += f's_add_u32 m0, s{sIB}, s{sM9}\ns_lshl_b32 s7, s{sPO}, 11\ns_add_u32 s7, s7, s{sS9}\ns_mov_b32 exec_hi, 0\n'
        o += f'buffer_load_dwordx4 v{VO}, s[20:23], s7 offen {OPT["ld2"]} lds\ns_mov_b32 exec_hi, -1\n'
        return o + f's_add_u32 s{sPO}, s{sPO}, 1\ns_and_b32 s{sPO}, s{sPO}, 15\ns_add_u32 s{sIB}, s{sIB}, {OST}\ns_cmp_eq_u32 s{sIB}, {NB * OST}\ns_cselect_b32 s{sIB}, 0, s{sIB}\n'
    if part == 0:
        o = f"""
        s_and_b32 s{sJJ}, s{sJ}, 3
        s_lshl_b32 s{sTID}, s{sBR}, 3
        s_add_u32 s{sTID}, s{sTID}, s{sB}
        s_lshl_b32 s{sTID}, s{sTID}, 2
        s_add_u32 s{sTID}, s{sTID}, s{sJJ}
        s_lshl_b32 s{sPW}, s{sJJ}, 2
        s_add_u32 s{sPO}, s{sPW}, 4
        s_and_b32 s{sPO}, s{sPO}, 15
        s_and_b32 s3, s2, 7
        s_lshl_b32 s{sTMP}, s3, 7
        v_lshlrev_b32 v{VF}, 2, v{TID}
        v_lshlrev_b32 v{VO}, 4, v{TID}
        v_mov_b32 v{VP}, s{sE}
        v_mov_b32 v140, v{TID}
        s_mul_i32 s{sSW}, s{sJJ}, 288
        s_and_b32 s{sSW}, s{sSW}, 0xffc0
        s_mul_i32 s3, s{sWP}, {16 * 1152}
        s_add_u32 s{sSW}, s{sSW}, s3
        s_mul_i32 s{sMW}, s{sWP}, 5120
        s_lshl_b32 s{sMO}, s{sWP}, 12
        s_add_u32 s{sMO}, s{sMO}, {OOF}
        s_lshl_b32 s{sM9}, s{sWP}, 9
        s_lshl_b32 s{sS9}, s{sKS}, 15
        s_add_u32 s{sS9}, s{sS9}, s{sM9}
        s_add_u32 s{sS9}, s{sS9}, {1 << 20}
        s_add_u32 s{sM9}, s{sM9}, {OOF + 16384}
        s_lshl_b32 s{sSO}, s{sKS}, 16
        s_lshl_b32 s3, s{sWP}, 18
        s_add_u32 s{sSO}, s{sSO}, s3
        s_lshl_b32 s3, s{sB}, 2
        s_lshl_b32 s{sNB}, 1, s3
        s_mov_b32 s{sIB}, 0
        s_mov_b32 s{sIBW}, 0
        s_mov_b32 s3, 52429
        """
        for n in range(5):
            o += f"""
        v_add_u32 v131, {64 * n}, v{TID}
        v_mul_lo_u32 v132, s3, v131
        v_lshrrev_b32 v132, 20, v132
        v_mul_u32_u24 v133, 20, v132
        v_sub_u32 v133, v131, v133
        v_bfe_u32 v134, v132, 3, 1
        v_lshlrev_b32 v134, 1, v134
        v_xor_b32 v133, v133, v134
        v_mul_u32_u24 v132, 1152, v132
        v_lshl_add_u32 v132, v133, 4, v132
        v_add_u32 v{VW[n]}, {3072 - (n & 3) * 1024}, v132
        """
        o += f"""
        v_lshrrev_b32 v131, 4, v{TID}
        v_bfe_u32 v132, v{TID}, 2, 2
        v_lshl_add_u32 v132, v131, 3, v132
        v_mul_u32_u24 v132, 320, v132
        v_bfe_u32 v133, v{TID}, 1, 1
        v_lshl_add_u32 v132, v133, 4, v132
        v_and_b32 v133, 1, v{TID}
        v_lshl_add_u32 v132, v133, 3, v132
        v_and_b32 v133, 1, v131
        v_lshl_add_u32 v134, v133, 5, v132
        v_xor_b32 v135, 1, v133
        v_lshl_add_u32 v135, v135, 5, v132
        v_add_u32 v136, 64, v134
        s_bitcmp0_b32 s{sJJ}, 0
        s_cselect_b64 vcc, -1, 0
        s_lshl_b32 s3, s{sWP}, 6
        v_cndmask_b32 v{A0}, v135, v134, vcc
        v_cndmask_b32 v{A1}, v136, v135, vcc
        v_add_u32 v{A90}, s3, v{A0}
        v_add_u32 v{A91}, s3, v{A1}
        v_and_b32 v132, 15, v{TID}
        v_lshlrev_b32 v132, 4, v132
        v_lshrrev_b32 v131, 1, v131
        v_lshl_add_u32 v134, v133, 9, v132
        v_lshl_add_u32 v134, v131, 10, v134
        v_add_u32 v{AB}, s{sMO}, v134
        v_lshl_add_u32 v134, v133, 8, v132
        v_lshl_add_u32 v134, v131, 9, v134
        v_add_u32 v{AB9}, {OOF + 16384}, v134
        """
        return [l.strip() for l in o.split('\n') if l.strip()]
    if part == 3:
        P(issW()); return
    P(f"""
    s_cmp_ge_u32 s{sW}, 4
    s_cbranch_scc1 P2_G1
    s_waitcnt vmcnt(10)
    s_barrier
    """)
    stamp(5)
    if OPT['dyn']: P('v_mov_b32 v137, 163832\nv_mov_b32 v138, 0\nds_write_b32 v137, v138')
    P(issW() + issW() + issW())
    if OPT['tl'] == 2: stamp(2)
    P('s_waitcnt vmcnt(10)')
    if OPT['tl'] == 2: stamp(7)
    P('s_barrier\ns_waitcnt vmcnt(5)\ns_barrier')
    sDONE = sNEED
    P(f"""
    s_lshl_b32 s{sDONE}, 1, s{sJJ}
    s_lshl_b32 s{sNB}, s{sB}, 2
    s_mov_b32 s{sCNT}, 2
    P2_LD:
    s_and_b32 s3, s{sPW}, 3
    s_cbranch_scc1 P2_PN
    """)
    if not OPT['dyn']:
        P(f's_lshr_b32 s3, s{sPW}, 2\ns_add_u32 s3, s3, s{sNB}\ns_lshl_b32 s{sNEED}, 1, s3\ns_mov_b32 s{sNEED + 1}, 0' + poll('P2_PF', sTMP))
    else: P(f"""
    s_cmp_lg_u32 s{sW}, 0
    s_cbranch_scc1 P2_PO
    s_mov_b32 s{sSPIN}, {OPT['spin']}
    P2_PJ:
    buffer_load_dword v{VP}, v{VF}, s[52:55], s{sTMP} offen sc1
    s_waitcnt vmcnt(0)
    v_cmp_eq_u32 vcc, s{sE}, v{VP}
    s_sub_u32 s{sSPIN}, s{sSPIN}, 1
    s_cselect_b32 s6, -1, vcc_lo
    s_lshr_b32 s6, s6, s{sNB}
    s_and_b32 s6, s6, 15
    s_andn2_b32 s6, s6, s{sDONE}
    s_cbranch_scc0 P2_PJ
    s_ff1_i32_b32 s6, s6
    s_bitset1_b32 s{sDONE}, s6
    s_lshl_b32 s3, s{sCNT}, 4
    s_or_b32 s3, s3, s6
    v_mov_b32 v138, s3
    ds_write_b32 v137, v138
    s_branch P2_PK
    P2_PO:
    ds_read_b32 v138, v137
    s_waitcnt lgkmcnt(0)
    v_readfirstlane_b32 s6, v138
    s_lshr_b32 s3, s6, 4
    s_cmp_eq_u32 s3, s{sCNT}
    s_cbranch_scc0 P2_PO
    s_and_b32 s6, s6, 3
    P2_PK:
    s_lshl_b32 s{sPW}, s6, 2
    """)
    P(f"""
    P2_PN:
    s_mov_b32 s{sPO}, s{sPW}
    """)
    P(issO() + issW())
    P(f's_add_u32 s{sCNT}, s{sCNT}, 1\ns_cmp_lt_u32 s{sCNT}, 14\ns_waitcnt vmcnt(10)\ns_barrier\ns_cbranch_scc1 P2_LD')
    P('s_waitcnt vmcnt(0)\ns_barrier\ns_barrier\ns_branch P2_RED')
    ACC = [[4 * (2 * t + j) for j in range(2)] for t in range(9)]; AC9 = [72, 76, 80]
    SET = [dict(A=[144 + 4 * t for t in range(9)], A9=[180, 184], B=[188, 192], B9=196),
           dict(A=[200 + 4 * t for t in range(9)], A9=[236, 240], B=[244, 248], B9=252)]
    P(f"""
    P2_G1:
    s_lshl_b32 s6, s{sTID}, 2
    s_add_u32 s6, s6, s{sKS}
    s_lshl_b32 s6, s6, 2
    s_add_u32 s6, s6, s{sWP}
    s_mul_i32 s6, s6, 11264
    s_add_u32 s6, s6, {WS_PART}
    s_add_u32 s16, s66, s6
    s_addc_u32 s17, s67, 0
    s_mov_b32 s18, 11264
    s_mov_b32 s19, 0x20000
    s_mov_b32 s{sIB}, 0
    s_mov_b32 s{sCNT}, 1
    s_mov_b32 s{sDL}, {WST}
    s_mov_b32 s{sD2}, {OST}
    s_lshr_b32 s6, s2, 3
    s_lshl_b32 s6, s6, 2
    s_add_u32 s{sTMP}, s6, s{sTMP}
    s_barrier
    """)
    stamp(6)
    def rd(st, K):
        o = [f'ds_read_b128 {vr(st["B"][j], 4)}, v{AB} offset:{K * 2048 + j * 256}' for j in range(2)]
        for t in range(9):
            o += [f'ds_read_b64_tr_b16 {vr(st["A"][t] + 2 * j, 2)}, v{[A0, A1][t & 1]} offset:{K * 10240 + j * 1280 + 64 * (t >> 1)}' for j in range(2)]
            if t == 7: o.append(f'ds_read_b128 {vr(st["B9"], 4)}, v{AB9} offset:{K * 1024}')
        for t in range(2):
            o += [f'ds_read_b64_tr_b16 {vr(st["A9"][t] + 2 * j, 2)}, v{[A90, A91][t]} offset:{K * 10240 + j * 1280}' for j in range(2)]
        return o
    def step(cur, rds, extra=(), first=False):
        z = lambda d, a, b: f'v_mfma_f32_16x16x32_bf16 {vr(d, 4)}, {vr(a, 4)}, {vr(b, 4)}, 0' if first else mf16(d, a, b)
        m = []
        for t in range(9): m += [z(ACC[t][0], cur['A'][t], cur['B'][0]), z(ACC[t][1], cur['A'][t], cur['B'][1])]
        m += [z(AC9[2], cur['A'][8], cur['B9']), z(AC9[0], cur['A9'][0], cur['B9']), z(AC9[1], cur['A9'][1], cur['B9'])]
        for i in (0, 6, 12): m[i] += f' ; need {vr(cur["A"][i // 2 + 2], 4)}'
        m[18] += f' ; need {vr(cur["A9"][1], 4)}'
        rds = list(rds); extra = list(extra)
        for i, x in enumerate(m):
            P(x)
            n = 2 if i % 3 != 2 else 1
            if rds: P.extend(rds[:n]); rds = rds[n:]
            elif extra: P.extend(extra[:2]); extra = extra[2:]
        assert not rds
        P.extend(extra)
    upd = [f'v_add_u32 v{r}, s{sDL}, v{r}' for r in (A0, A1, A90, A91)] + [f'v_add_u32 v{r}, s{sD2}, v{r}' for r in (AB, AB9)]
    ring = [f's_add_u32 s{sIB}, s{sIB}, 1', f's_and_b32 s{sIB}, s{sIB}, 3', f's_cmp_eq_u32 s{sIB}, {NB - 1}',
            f's_cselect_b32 s{sDL}, {-(NB - 1) * WST & 0xffffffff}, {WST}', f's_cselect_b32 s{sD2}, {-(NB - 1) * OST & 0xffffffff}, {OST}']
    P.extend(rd(SET[0], 0))
    step(SET[0], rd(SET[1], 1), upd, first=True)
    if OPT['tl'] == 2: stamp(2)
    P('s_waitcnt vmcnt(0)')
    if OPT['tl'] == 2: stamp(7)
    P(f"""
    s_barrier
    s_cmp_eq_u32 s{sW}, 4
    s_cbranch_scc0 P2_M
    """)
    if OPT['loc']:
        P(f"""
        s_getreg_b32 s3, hwreg(HW_REG_XCC_ID, 0, 4)
        s_lshl_b32 s7, s{sE}, 4
        s_add_u32 s3, s3, s7
        v_cmp_eq_u32 vcc, s3, v{env['Q'] + 3}
        s_cmp_eq_u32 vcc_lo, {-1 if OPT['loc'] == 1 else 0}
        s_cbranch_scc1 P2_FL
        buffer_wbl2 sc1
        s_waitcnt vmcnt(0)
        P2_FL:
        """)
    P(f"""
    s_mov_b64 exec, 1
    buffer_store_dword v{VP}, v{VF}, s[52:55], s{sTMP} offen sc1
    s_mov_b64 exec, -1
    s_branch P2_M
    P2_L:
    """)
    if OPT['tl'] == 1: stamp(2, 3); stamp(7, 8); stamp(3, 12)
    step(SET[0], rd(SET[1], 1), upd + [f's_add_u32 s{sCNT}, s{sCNT}, 1'])
    P('s_barrier\nP2_M:')
    step(SET[1], rd(SET[0], 0), ring + [f's_cmp_lt_u32 s{sCNT}, 16'])
    P('s_cbranch_scc1 P2_L')
    stamp(9)
    units = [(ACC[2 * u][j], ACC[2 * u + 1][j]) for j in range(2) for u in range(4)] + [(ACC[8][0], ACC[8][1]), (AC9[0], AC9[1]), (AC9[2], AC9[2])]
    for i, (x, y) in enumerate(units):
        d = 84 + 4 * i if i < 9 else 144 + 4 * i
        P(f'v_cvt_pk_bf16_f32 v{d}, v{x}, v{x + 1}\nv_cvt_pk_bf16_f32 v{d + 1}, v{x + 2}, v{x + 3}')
        P(f'v_cvt_pk_bf16_f32 v{d + 2}, v{y}, v{y + 1}\nv_cvt_pk_bf16_f32 v{d + 3}, v{y + 2}, v{y + 3}')
        if i % 4 == 0: P(f's_mov_b32 s3, {i * 1024}')
        P(f'v_permlane16_swap_b32 v{d}, v{d + 2}\nv_permlane16_swap_b32 v{d + 1}, v{d + 3}')
        P(f'buffer_store_dwordx4 {vr(d, 4)}, v{VO}, s[16:19], s3 offen offset:{(i % 4) * 1024} sc1')
    P(f"""
    P2_RED:
    s_lshl_b32 s{sTMP}, s{sTID}, 7
    s_add_u32 s{sTMP}, s{sTMP}, 4096
    s_lshl_b32 s7, s{sKS}, 2
    s_add_u32 s7, s7, s{sTMP}
    s_lshl_b32 s6, s{sTID}, 4
    s_add_u32 s6, s6, s{sKS}
    s_mul_i32 s6, s6, 11264
    s_add_u32 s6, s6, {WS_PART}
    s_add_u32 s16, s66, s6
    s_addc_u32 s17, s67, 0
    s_mov_b32 s18, {3 * 45056 + 11264}
    s_mov_b32 s19, 0x20000
    s_mul_i32 s6, s{sB}, {144 * 2304}
    s_mul_i32 s3, s{sBR}, 1152
    s_add_u32 s6, s6, s3
    s_mul_i32 s3, s{sJJ}, 288
    s_add_u32 s6, s6, s3
    s_add_u32 s12, s68, s6
    s_addc_u32 s13, s69, 0
    s_sub_u32 s14, {1152 * 2304}, s6
    s_mov_b32 s15, 0x20000
    v_mov_b32 v{VP}, s{sE}
    s_mov_b64 s[{sNEED}:{sNEED + 1}], 15
    v_and_b32 v4, 15, v140
    v_mul_u32_u24 v4, 2304, v4
    v_lshrrev_b32 v5, 5, v140
    v_lshl_add_u32 v4, v5, 4, v4
    v_bfe_u32 v5, v140, 4, 1
    v_lshl_add_u32 v6, v5, 5, v4
    s_lshl_b32 s40, s{sKS}, 1
    s_lshr_b32 s3, s{sW}, 2
    s_add_u32 s40, s40, s3
    s_mul_i32 s40, s40, {16 * 2304}
    s_and_b32 s3, s{sW}, 3
    s_lshl_b32 s3, s3, 6
    s_add_u32 s40, s40, s3
    s_lshl_b32 s41, s{sW}, 10
    s_mul_i32 s42, s{sKS}, {32 * 2304}
    s_add_u32 s42, s42, 256
    s_lshl_b32 s3, s{sKS}, 6
    s_add_u32 s3, s3, {128 * 2304}
    s_cmp_eq_u32 s{sW}, 1
    s_cselect_b32 s42, s3, s42
    s_cselect_b32 s45, 32, 0
    s_cmp_eq_u32 s{sW}, 2
    s_cselect_b32 s42, {128 * 2304 + 256}, s42
    s_cmp_eq_u32 s{sW}, 0
    s_cselect_b32 s45, {16 * 2304}, s45
    v_mul_lo_u32 v7, s45, v5
    v_add_u32 v7, v7, v4
    s_cmp_lg_u32 s{sKS}, 0
    s_cselect_b32 s45, 2, 3
    s_waitcnt vmcnt(0)
    s_barrier
    s_cmp_eq_u32 s{sW}, 7
    s_cbranch_scc0 P2_NG
    s_mov_b64 exec, 1
    buffer_store_dword v{VP}, v{VF}, s[52:55], s7 offen sc1
    s_mov_b64 exec, -1
    P2_NG:
    """)
    stamp(10)
    P(poll('P2_PR', sTMP))
    stamp(11)
    def loads(base, so):
        for k in range(4):
            P(f's_add_u32 s3, s{so}, {k * 45056}\nbuffer_load_dwordx4 {vr(base + 4 * k, 4)}, v{VO}, s[16:19], s3 offen sc1')
    def reduce(base, va, so, left):
        for k in range(4):
            P(f's_waitcnt vmcnt({left + 3 - k})')
            for i in range(4):
                src = base + 4 * k + i; t = 16 if k == 0 else 24
                P(f'v_lshlrev_b32 v{t + 2 * i}, 16, v{src}\nv_and_b32 v{t + 1 + 2 * i}, s46, v{src}')
            if k:
                for i in range(8): P(f'v_add_f32 v{16 + i}, v{16 + i}, v{24 + i}')
        for i in range(4): P(f'v_cvt_pk_bf16_f32 v{base + i}, v{16 + 2 * i}, v{17 + 2 * i}')
        P(f'buffer_store_dwordx4 {vr(base, 4)}, v{va}, s[12:15], s{so} offen')
    P('s_mov_b32 s46, 0xffff0000')
    loads(32, 41)
    P(f's_cmp_lt_u32 s{sW}, s45\ns_cbranch_scc1 P2_R2')
    reduce(32, 6, 40, 0)
    P(f's_branch P2_RE\nP2_R2:\ns_add_u32 s41, s41, 8192')
    loads(48, 41)
    reduce(32, 6, 40, 4)
    reduce(48, 7, 42, 1)
    P('P2_RE:')
    if OPT['stamps']:
        P('s_waitcnt vmcnt(0)'); stamp(8)

def k1():
    P = Prog()
    O, S, CN, Q, PP, O9, Q9, S9, CN9, P9 = 0, 64, 96, 112, 144, 160, 192, 208, 212, 216
    L, L9, VOK, VOV, AK, AK9, AV9, TID = 218, 219, 220, 221, 222, 223, 224, 225
    VA = 226
    T0, T1, AL, AL9, X0, X1 = 230, 231, 232, 233, 234, 235
    FB = [236, 240, 244, 248, 252]
    ACC = [[0, 16, 32, 48], [64, 80, 144, 176]]; ACC9 = [[160, 164], [168, 172]]
    QW = [230, 231, 232, 233]; QX = [234, 235]; QX9, QW9, VOW, VOX, HOLD = 216, 217, 218, 219, 212
    QB, QB9 = [96, 100], 104
    QF = [112, 116, 120, 124, 128, 132, 136, 140, 236, 240]
    sW, sWP, sP, sB, sJ, sBR = 24, 25, 26, 27, 28, 29
    sCNT, sW0, sX, sMC, sIB, sDL = 30, 31, 33, 35, 36, 37
    sEX = 38
    sIK, sIK2 = 31, 33
    sIS, sSK, sSV, sDK, sDV, sT, sCL, sRARE, sTMP, sTM2, sMW, sKP, sVP, sE = 40, 41, 42, 43, 44, 45, 46, 47, 48, 49, 50, 51, 32, 34
    NSB = OPT['nsb']; STGS = 25600; STG0 = 163840 - NSB * STGS
    SB0 = (NSB - 18) % NSB
    QXCH, Q9B = 131072, 98304 + 16384
    nk, ntw = OPT['nt_kv'], OPT['nt_w']
    def stamp(k, at=None):
        if OPT['stamps'] == 3: return
        if OPT['stamps']:
            if at is not None: P(f's_cmp_lg_u32 s{sCNT}, {at}\ns_cbranch_scc1 K1_ST{k}_{len(P.ins)}'); lbl = P.ins[-1].target
            P(('s_memtime' if OPT['stamps'] == 2 else 's_memrealtime') + ' s[%d:%d]' % (70 + 2 * k, 71 + 2 * k))
            if at is not None: P(f'{lbl}:')
            if k == 1: P('s_memtime s[96:97]')
            if k == 4: P('s_memtime s[98:99]')
            if k == 2 and OPT['stamps'] == 1: P('s_memtime s[94:95]')
    P(f"""
    s_cmp_ge_u32 s2, 256
    s_cbranch_scc1 K1_END
    s_bfe_u32 s{sBR}, s2, 0x10002
    s_mul_i32 s6, s{sBR}, 40
    s_add_u32 s4, s0, s6
    s_addc_u32 s5, s1, 0
    s_load_dwordx8 s[56:63], s[4:5], 0
    s_load_dwordx4 s[64:67], s[0:1], 88
    s_load_dwordx2 s[68:69], s[0:1], 80
    s_load_dwordx2 s[100:101], s[4:5], 32
    """)
    if OPT['stamps']:
        for k in range(70, 100, 2): P(f's_mov_b64 s[{k}:{k + 1}], 0')
    stamp(0)
    P(f"""
    v_lshrrev_b32 v1, 6, v0
    v_and_b32 v{TID}, 63, v0
    v_readfirstlane_b32 s{sW}, v1
    v_lshrrev_b32 v2, 4, v{TID}
    v_and_b32 v3, 15, v{TID}
    s_and_b32 s3, s2, 3
    s_lshl_b32 s3, s3, 2
    s_bfe_u32 s7, s2, 0x20003
    s_add_u32 s{sJ}, s3, s7
    s_lshr_b32 s{sB}, s2, 5
    s_and_b32 s{sWP}, s{sW}, 3
    s_lshr_b32 s{sP}, s{sW}, 2
    v_lshlrev_b32 v4, 2, v2
    v_xor_b32 v4, v4, v3
    v_lshlrev_b32 v4, 4, v4
    v_lshl_add_u32 v{VOW}, v2, 13, v4
    v_lshrrev_b32 v8, 2, v{TID}
    v_and_b32 v9, 3, v{TID}
    v_xor_b32 v9, v9, v2
    v_mul_u32_u24 v8, 1152, v8
    v_lshl_add_u32 v{VOX}, v9, 4, v8
    s_lshl_b32 s3, s{sWP}, 2
    v_or_b32 v5, s3, v2
    v_xor_b32 v5, v5, v3
    v_lshlrev_b32 v5, 4, v5
    s_lshl_b32 s{sMW}, s{sWP}, 12
    v_lshl_add_u32 v5, v2, 8, v5
    v_add_u32 v{VOK}, s{sMW}, v5
    v_lshl_add_u32 v5, v2, 8, v4
    v_add_u32 v{VOV}, s{sMW}, v5
    s_lshl_b32 s{sW0}, s{sWP}, 16
    s_mul_i32 s{sX}, s{sWP}, 18432
    s_mul_i32 s{sMC}, s{sWP}, 3072
    s_lshl_b32 s3, s{sWP}, 4
    s_lshl_b64 s[{sEX}:{sEX + 1}], 0xffff, s3
    s_mul_i32 s6, s{sB}, 165888
    s_lshl_b32 s7, s{sJ}, 9
    s_mov_b32 s11, 0x20000
    s_mov_b32 s22, {165888 + 2048}
    s_mov_b32 s23, 0x20000
    s_sub_u32 s10, {576 * 8192}, s7
    s_mov_b32 s{sIB}, {STG0}
    s_lshl_b32 s{sTMP}, s{sB}, 5
    s_lshl_b32 s{sTM2}, s{sJ}, 1
    s_add_u32 s{sTMP}, s{sTMP}, s{sTM2}
    s_lshl_b32 s{sTMP}, s{sTMP}, 17
    s_mov_b32 s14, 262144
    s_mov_b32 s15, 0x20000
    s_mov_b32 s18, 262144
    s_mov_b32 s19, 0x20000
    s_mov_b32 s{sCNT}, 0
    s_cmp_ge_u32 s{sW}, 4
    s_waitcnt lgkmcnt(0)
    s_cbranch_scc1 K1_G1
    s_add_u32 s8, s62, s7
    s_addc_u32 s9, s63, 0
    s_add_u32 s20, s56, s6
    s_addc_u32 s21, s57, 0
    s_sub_u32 s20, s20, 2048
    s_subb_u32 s21, s21, 0
    """)
    kvsrd = f"""
    s_add_u32 s12, s58, s{sTMP}
    s_addc_u32 s13, s59, 0
    s_add_u32 s16, s60, s{sTMP}
    s_addc_u32 s17, s61, 0
    s_add_u32 s52, s66, {WS_FLAG}
    s_addc_u32 s53, s67, 0
    s_mov_b32 s54, 16384
    s_mov_b32 s55, 0x20000
    """
    lanec = f"""
    v_bfe_u32 v10, v{TID}, 2, 2
    v_and_b32 v11, 3, v{TID}
    v_lshrrev_b32 v12, 5, v{TID}
    v_and_b32 v13, 1, v2
    v_and_b32 v20, 1, v11
    v_lshrrev_b32 v15, 1, v11
    v_lshlrev_b32 v16, 2, v10
    v_lshl_add_u32 v17, v13, 1, v20
    v_xor_b32 v17, v17, v16
    v_lshlrev_b32 v17, 4, v17
    v_lshl_add_u32 v17, v15, 3, v17
    v_lshl_add_u32 v17, v10, 8, v17
    s_lshl_b32 s3, s{sP}, 14
    s_add_u32 s{sMW}, s{sMW}, s3
    s_add_u32 s6, s3, 65536
    v_lshl_add_u32 v18, v12, 10, v17
    v_add_u32 v{VA}, s6, v18
    v_xor_b32 v{VA + 1}, 64, v{VA}
    v_xor_b32 v{VA + 2}, 0x80, v{VA}
    v_xor_b32 v{VA + 3}, 0xc0, v{VA}
    v_bfe_u32 v23, v{TID}, 3, 2
    v_bfe_u32 v24, v{TID}, 2, 1
    v_lshl_add_u32 v25, v23, 2, v11
    v_xor_b32 v25, v25, v12
    v_lshlrev_b32 v25, 4, v25
    v_lshl_add_u32 v25, v11, 8, v25
    v_lshl_add_u32 v25, v24, 10, v25
    v_lshl_add_u32 v25, v23, 12, v25
    v_add_u32 v{AK}, s3, v25
    s_lshl_b32 s7, s{sWP}, 10
    s_add_u32 s6, s3, s7
    v_xor_b32 v25, v2, v3
    v_lshlrev_b32 v25, 4, v25
    v_lshl_add_u32 v25, v11, 8, v25
    v_lshl_add_u32 v25, v10, 12, v25
    v_add_u32 v{AK9}, s6, v25
    v_xor_b32 v25, v15, v16
    v_lshlrev_b32 v25, 4, v25
    v_lshl_add_u32 v25, v20, 3, v25
    v_lshl_add_u32 v25, v10, 8, v25
    v_lshl_add_u32 v25, v2, 12, v25
    s_add_u32 s6, s6, 65536
    s_lshl_b32 s7, s{sWP}, 6
    v_xor_b32 v25, s7, v25
    v_add_u32 v{AV9}, s6, v25
    v_mul_u32_u24 v26, 272, v3
    v_lshl_add_u32 v27, v2, 4, v26
    s_mul_i32 s6, s{sP}, 4352
    s_add_u32 s6, s6, {Q9B}
    v_add_u32 v{S9}, s6, v27
    v_lshlrev_b32 v27, 4, v{TID}
    s_lshl_b32 s6, s{sWP}, 13
    s_add_u32 s6, s6, {QXCH}
    v_add_u32 v{S9 + 1}, s6, v27
    """
    loopinit = f"""
    s_mov_b32 s{sCNT}, 1
    s_mov_b32 s{sKP}, 32768
    s_mov_b32 s{sVP}, 65536
    s_mov_b32 s{sDK}, 32768
    s_mov_b32 s{sDV}, 0
    s_mov_b32 s{sIS}, 131072
    s_mov_b32 s{sIK}, 0
    s_lshl_b32 s3, s{sP}, 17
    s_add_u32 s{sSV}, s3, 16384
    s_add_u32 s{sSK}, s3, 49152
    s_mov_b32 s{sCL}, 0xff800000
    s_mov_b32 s{sRARE}, 0
    """
    obase = f"""
    s_lshl_b32 s6, s{sBR}, 3
    s_add_u32 s6, s6, s{sB}
    s_mul_i32 s6, s6, 1179648
    s_mul_i32 s7, s{sWP}, {262144 - 4096}
    s_add_u32 s6, s6, s7
    s_lshl_b32 s7, s{sJ}, 1
    s_add_u32 s7, s7, s{sP}
    s_lshl_b32 s7, s7, 13
    s_add_u32 s6, s6, s7
    s_add_u32 s56, s66, s6
    s_addc_u32 s57, s67, 0
    """
    narrow = f's_lshl_b32 s14, s{sP}, 17\ns_add_u32 s14, s14, 131072\ns_mov_b32 s18, s14'
    getE = f'v_mov_b32 v{AL}, {Q9B + 8704}\nds_read_b32 v{AL}, v{AL}' if OPT['fused'] else ''
    getE2 = f'v_readfirstlane_b32 s{sE}, v{AL}' if OPT['fused'] else ''
    queue = []
    def vm(text, tag): P(text); queue.append(tag)
    def wait_for(tag):
        idx = max(i for i, t in enumerate(queue) if t == tag)
        P(f's_waitcnt vmcnt({min(63, len(queue) - 1 - idx)})')
    def stage(s):
        if OPT['nost'] and s >= 3: queue.append(('s', s)); return
        buf = STG0 + ((s + SB0) % NSB) * STGS
        for hd in range(2):
            P(f's_add_u32 m0, s{sMC}, {buf + hd * 12288}\ns_add_u32 s3, s{sW0}, {s * 262144 + hd * 256}')
            vm(f'buffer_load_dwordx4 v{VOW}, s[8:11], s3 offen {ntw} lds', ('s', s))
            P(f's_add_u32 s3, s3, {32768 - 1024}')
            vm(f'buffer_load_dwordx4 v{VOW}, s[8:11], s3 offen offset:1024 {ntw} lds', ('s', s))
            P(f's_add_u32 s3, s{sX}, {s * 64 + hd * 4 * 18432}')
            vm(f'buffer_load_dwordx4 v{VOX}, s[20:23], s3 offen offset:2048 {ntw} lds', ('s', s))
        P(f's_mov_b32 m0, {buf + 24576}\ns_mov_b32 s3, {s * 64 + 128 * 1152 + 2048}\ns_mov_b64 exec, s[{sEX}:{sEX + 1}]')
        vm(f'buffer_load_dwordx4 v{VOX}, s[20:23], s3 offen {ntw} lds', ('s', s))
        P('s_mov_b64 exec, -1')
    VTW, VTX, sTW, sTX = 232, 233, 45, 46
    def touch(s):
        if s >= 18 or not OPT['tlead']: return
        P(f's_add_u32 s3, s{sTW}, {s * 262144}\ns_add_u32 s6, s{sTX}, {s * 64}\ns_mov_b64 exec, 0x1ff')
        vm(f'buffer_load_dword v{X0}, v{VTW}, s[8:11], s3 offen {ntw}', ('t', s))
        vm(f'buffer_load_dword v{X1}, v{VTX}, s[20:23], s6 offen {ntw}', ('t', s))
        P('s_mov_b64 exec, -1')
    def ltouch():
        TR = OPT['trows']
        P(f"""
        v_lshrrev_b32 v{VTW}, 3, v{TID}
        v_and_b32 v{VTX}, 7, v{TID}
        v_lshlrev_b32 v{VTX}, 6, v{VTX}
        v_lshl_add_u32 v{VTW}, v{VTW}, 13, v{VTX}
        v_lshlrev_b32 v{VTX}, 6, v{TID}
        s_lshl_b32 s3, s{sB}, 2
        s_add_u32 s3, s3, s{sWP}
        s_mul_i32 s3, s3, {TR * 8192}
        s_add_u32 s3, s3, {(576 - 32 * TR) * 8192}
        s_bfe_u32 s6, s2, 0x20003
        s_lshl_b32 s6, s6, 2
        s_add_u32 s6, s6, s{sWP}
        s_mul_i32 s6, s6, {162 * 64}
        s_add_u32 s6, s6, 2048
        """)
        tw = [(i, min(8, TR - 8 * i) * 8) for i in range((TR + 7) // 8)]; tx = [(0, 64), (1, 64), (2, 34)]
        for i in range(3):
            for (lst, v, srd, so, step) in ((tw, VTW, 8, 3, 8 * 8192), (tx, VTX, 20, 6, 4096)):
                if i >= len(lst): continue
                n = lst[i][1]
                if n < 64: P(f's_mov_b64 exec, {hex((1 << n) - 1)}' if n <= 31 else f's_mov_b32 exec_hi, {(1 << (n - 32)) - 1}')
                vm(f'buffer_load_dword v{X0}, v{v}, s[{srd}:{srd + 3}], s{so} offen {ntw}', ('t', 0))
                if n < 64: P('s_mov_b64 exec, -1')
                P(f's_add_u32 s{so}, s{so}, {step}')
    def otouch():
        P(f"""
        s_lshl_b32 s6, s{sBR}, 3
        s_add_u32 s6, s6, s{sB}
        s_mul_i32 s6, s6, 1179648
        s_add_u32 s56, s66, s6
        s_addc_u32 s57, s67, 0
        s_mov_b32 s58, 1179648
        s_mov_b32 s59, 0x20000
        v_lshlrev_b32 v{VTW}, 7, v{TID}
        s_lshl_b32 s3, s{sWP}, 18
        s_lshl_b32 s6, s{sJ}, 14
        s_add_u32 s3, s3, s6
        """)
        vm(f'buffer_load_dword v{X0}, v{VTW}, s[56:59], s3 offen', ('t', 1))
        P('s_add_u32 s3, s3, 8192')
        vm(f'buffer_load_dword v{X0}, v{VTW}, s[56:59], s3 offen', ('t', 1))
        P(f's_lshl_b32 s3, s{sJ}, 13\ns_lshl_b32 s6, s{sWP}, 11\ns_add_u32 s3, s3, s6\ns_add_u32 s3, s3, {1 << 20}\ns_mov_b64 exec, 0xffff')
        vm(f'buffer_load_dword v{X0}, v{VTW}, s[56:59], s3 offen', ('t', 1))
        P('s_mov_b64 exec, -1')
    PRE = {(0, 0): [64, 68, 72, 76], (0, 1): [80, 84, 88, 92], (1, 0): [112, 116, 120, 124], (1, 1): [128, 132, 136, 140],
           (2, 0): [192, 196, 200, 204], (2, 1): [236, 240, 244, 248], (3, 0): [96, 100, 104, 252], (3, 1): [144, 148, 152, 156]}
    SRC = {0: (VOK, 12, 0), 1: (VOK, 12, 16384), 2: (VOV, 16, 0), 3: (VOK, 12, 32768)}
    FREE = {(0, 0): 0 if NSB <= 5 else 13, (0, 1): 0 if NSB <= 5 else 13, (1, 0): 15, (1, 1): 15, (2, 0): 16, (2, 1): 16, (3, 0): 17, (3, 1): 19}
    inreg = set()
    def kvload(step, u, hd, n):
        if OPT['nokv'] & 1: return
        vo, srd, off = SRC[u]
        P(f's_mov_b32 s3, {hd * 131072 + off}')
        if step >= FREE[u, hd]:
            P(f's_add_u32 m0, s{sMW}, {u * 32768 + hd * 16384}\ns_nop 0')
            vm(f'buffer_load_dwordx4 v{vo}, s[{srd}:{srd + 3}], s3 offen offset:{n * 1024} {nk} lds', ('k', u))
        else:
            vm(f'buffer_load_dwordx4 {vr(PRE[u, hd][n], 4)}, v{vo}, s[{srd}:{srd + 3}], s3 offen offset:{n * 1024} {nk}', ('r', u, hd)); inreg.add((u, hd, n))
    def kvdump(step):
        if OPT['nokv'] & 2: return
        for (u, hd), f in FREE.items():
            ns = [n for n in range(4) if (u, hd, n) in inreg]
            if f != step or not ns: continue
            wait_for(('r', u, hd))
            base = u * 32768 + hd * 16384
            for n in ns: P(f'ds_write_b128 v{[T0, T1][base >> 16]}, {vr(PRE[u, hd][n], 4)} offset:{(base & 0xffff) + n * 1024}')
    kvq = [(u, hd, n) for u in range(4) for hd in range(2) for n in range(4)]
    npre, dist = OPT['npre'], OPT['dist']
    sched = [int(c, 36) for c in str(OPT['kvs'])] + [0] * 30
    assert sum(sched) == 32 and dist <= NSB - 1 and npre <= NSB
    nxt = 0
    for s in range(npre): stage(s); nxt += 1
    if OPT['tlead']:
        P(f"""
        v_lshlrev_b32 v{VTW}, 6, v{TID}
        v_mul_u32_u24 v{VTX}, 1152, v{TID}
        s_lshl_b32 s{sTW}, s{sB}, 2
        s_add_u32 s{sTW}, s{sTW}, s{sWP}
        s_lshl_b32 s{sTW}, s{sTW}, 13
        s_bfe_u32 s{sTX}, s2, 0x20003
        s_lshl_b32 s{sTX}, s{sTX}, 2
        s_add_u32 s{sTX}, s{sTX}, s{sWP}
        s_mul_i32 s{sTX}, s{sTX}, {9 * 1152}
        s_add_u32 s{sTX}, s{sTX}, 2048
        """)
        for s in range(npre, dist + OPT['tlead']): touch(s)
    if OPT['ts'] == -1: ltouch()
    later = [kvsrd] + [f'v_lshlrev_b32 v{T0}, 4, v{TID}\nv_add_u32 v{T0}, s{sMW}, v{T0}\nv_add_u32 v{T1}, 0x10000, v{T0}', lanec]
    zs = list(range(108, 112)) + list(range(O9, O9 + 32)) + list(range(CN9, CN9 + 4)) + list(range(63, -1, -1))
    later += ['\n'.join(f'v_mov_b32 v{r}, 0' for r in zs[i:i + 26]) for i in range(0, len(zs), 26)]
    P(later.pop(0))
    for s in range(19):
        if OPT['stamps'] == 2 and s == OPT['sq']: stamp(5)
        if OPT['stamps'] == 2 and s == OPT['sq'] + 1: stamp(6)
        if OPT['stamps'] == 3 and OPT['sq'] == 99 and 1 <= s <= 5: P(f's_memtime s[{70 + 6 * s - 4}:{71 + 6 * s - 4}]')
        if s < 18: wait_for(('s', s))
        if OPT['stamps'] == 3 and OPT['sq'] == 99 and 1 <= s <= 4: P(f's_memtime s[{70 + 6 * s - 2}:{71 + 6 * s - 2}]')
        if OPT['stamps'] == 2 and s == OPT['sq']: stamp(3)
        P('s_barrier')
        if OPT['stamps'] == 2 and s == OPT['sq']: stamp(2)
        if s == 0: stamp(1)
        S3 = [0, 1, 2, 3, 4, 5, 6, 8, 10, 12, 13, 14, 15, 16, 18]
        if OPT['stamps'] == 3 and OPT['sq'] == 99:
            if s <= 4: P(f's_memtime s[{70 + 6 * s}:{71 + 6 * s}]')
        elif OPT['stamps'] == 3 and s in S3: P(f's_memtime s[{70 + 2 * S3.index(s)}:{71 + 2 * S3.index(s)}]')
        if OPT['sp']:
            for _ in range(int((str(OPT['sp']) + '0' * 20)[s])):
                assert nxt <= s + NSB - 1
                stage(nxt); nxt += 1
            if OPT['ts'] == s: ltouch()
            if OPT['ot'] == s: otouch()
        n = 0
        while not OPT['sp'] and nxt < 18 and nxt <= s + dist and n < 2: stage(nxt); nxt += 1; n += 1
        touch(s + dist + OPT['tlead'])
        kvdump(s)
        for _ in range(sched[s]): kvload(s, *kvq.pop(0))
        if later: P(later.pop(0))
    assert nxt == 18 and not later
    for r in list(range(96, 108)) + [L, L9]: P(f'v_mov_b32 v{r}, 0')
    P(loopinit)
    if OPT['stamps'] == 1: stamp(2)
    if ('k', 0) in queue: wait_for(('k', 0))
    P('s_barrier')
    P(getE)
    for kk in range(8): P(f'ds_read_b128 {vr(Q + 4 * kk, 4)}, v{S9 + 1} offset:{kk * 1024}')
    for kk in range(4): P(f'ds_read_b128 {vr(Q9 + 4 * kk, 4)}, v{S9} offset:{kk * 64}')
    P('s_barrier')
    P(getE2)
    kvdump(19)
    for _ in range(sched[19]): kvload(19, *kvq.pop(0))
    assert not kvq
    P(narrow)
    after = lambda u: (len(queue) - 1 - max(i for i, t in enumerate(queue) if t == ('k', u))) if ('k', u) in queue else 60
    X1N = min(63, after(1) + 4)
    P('s_branch K1_HEAD')
    P('K1_G1:')
    P(kvsrd)
    if OPT['fused']:
        P(f"""
                v_mov_b32 v246, 0
        s_cmp_eq_u32 s{sW}, 4
        s_cbranch_scc0 K1_E0
        buffer_load_dword v244, v246, s[52:55], 0 offen sc1
        K1_E0:
        """)
    def touches():
        P(f"""
        s_lshl_b32 s7, s{sJ}, 9
        s_mul_i32 s6, s{sB}, 165888
        s_add_u32 s8, s62, s7
        s_addc_u32 s9, s63, 0
        s_add_u32 s20, s56, s6
        s_addc_u32 s21, s57, 0
        s_mov_b32 s22, 165888
        v_lshrrev_b32 v28, 3, v{TID}
        v_and_b32 v29, 7, v{TID}
        v_lshlrev_b32 v29, 6, v29
        v_lshl_add_u32 v28, v28, 13, v29
        v_lshlrev_b32 v29, 6, v{TID}
        s_lshl_b32 s3, s{sB}, 2
        s_add_u32 s3, s3, s{sWP}
        s_mul_i32 s3, s3, {TR * 8192}
        s_add_u32 s3, s3, {(576 - 32 * TR) * 8192}
        s_bfe_u32 s6, s2, 0x20003
        s_lshl_b32 s6, s6, 2
        s_add_u32 s6, s6, s{sWP}
        s_mul_i32 s6, s6, {162 * 64}
        """)
        tw = [(i, min(8, TR - 8 * i) * 8) for i in range((TR + 7) // 8)]; tx = [(0, 64), (1, 64), (2, 34)]
        k = 0
        for i in range(3):
            for (lst, v, srd, so, step) in ((tw, 28, 8, 3, 8 * 8192), (tx, 29, 20, 6, 4096)):
                if i >= len(lst): continue
                n = lst[i][1]
                if n < 64: P(f's_mov_b64 exec, {hex((1 << n) - 1)}' if n <= 31 else f's_mov_b32 exec_hi, {(1 << (n - 32)) - 1}')
                P(f'buffer_load_dword v{248 + k}, v{v}, s[{srd}:{srd + 3}], s{so} offen {ntw}'); k += 1
                if n < 64: P('s_mov_b64 exec, -1')
                P(f's_add_u32 s{so}, s{so}, {step}')
        return k
    def ptouch():
        pg = OPT['ptouch']
        P(f"""
        s_lshl_b32 s7, s{sJ}, 9
        s_mul_i32 s6, s{sB}, 165888
        s_add_u32 s8, s62, s7
        s_addc_u32 s9, s63, 0
        s_add_u32 s20, s56, s6
        s_addc_u32 s21, s57, 0
        s_mov_b32 s22, 165888
        v_lshlrev_b32 v28, 16, v{TID}
        s_lshl_b32 s3, s{sWP}, 20
        s_add_u32 s3, s3, {65536 * 4}
        s_mov_b64 exec, 0xffff
        buffer_load_dword v248, v28, s[8:11], s3 offen
        s_mov_b64 exec, 0xf
        s_mov_b32 s3, {65536 * 68}
        s_cmp_eq_u32 s{sWP}, 0
        s_cbranch_scc0 K1_PT1
        buffer_load_dword v249, v28, s[8:11], s3 offen
        buffer_load_dword v250, v28, s[20:23], 0 offen
        s_branch K1_PT2
        K1_PT1:
        buffer_load_dword v249, v28, s[12:15], 0 offen {nk}
        buffer_load_dword v250, v28, s[16:19], 0 offen {nk}
        K1_PT2:
        s_mov_b64 exec, -1
        """)
    TR = OPT['trows']
    NT = (TR + 7) // 8 + 3
    if OPT['ctouch']:
        P(f"""
        s_cmp_eq_u32 s{sW}, 5
        s_cbranch_scc0 K1_CT
        s_getpc_b64 s[6:7]
        K1_PC:
        s_sub_u32 s6, s6, @PCOFF@
        s_subb_u32 s7, s7, 0
        v_lshlrev_b32 v28, 7, v{TID}
        v_mov_b32 v31, s7
        """)
        for k in range(OPT['ctouch']):
            P(f"""
            v_min_u32 v29, @CODELEN@, v28
            v_add_co_u32 v30, vcc, s6, v29
            v_addc_co_u32 v31, vcc, 0, v31, vcc
            global_load_dword v{252 + k % 4}, v[30:31], off
            v_mov_b32 v31, s7
            v_add_u32 v28, 8192, v28
            """)
        P('K1_CT:')
    if OPT['wtouch'] == 1: touches()
    if OPT['ptouch']: ptouch(); NT = 3
    P(lanec)
    if OPT['wtouch'] == 2: touches()
    P(f"""
    v_mul_u32_u24 v18, 3072, v12
    v_add_u32 v18, {STG0 + SB0 * STGS}, v18
    v_add_u32 v{QW[0]}, v17, v18
    v_xor_b32 v{QW[1]}, 64, v{QW[0]}
    v_xor_b32 v{QW[2]}, 0x80, v{QW[0]}
    v_xor_b32 v{QW[3]}, 0xc0, v{QW[0]}
    s_lshl_b32 s6, s{sWP}, 2
    v_add_u32 v18, s6, v15
    v_xor_b32 v18, v18, v16
    v_lshlrev_b32 v18, 4, v18
    v_lshl_add_u32 v18, v20, 3, v18
    v_lshl_add_u32 v18, v10, 8, v18
    v_mul_u32_u24 v19, 3072, v2
    v_add_u32 v19, {STG0 + SB0 * STGS}, v19
    v_add_u32 v{QW9}, v18, v19
    v_xor_b32 v22, v12, v10
    v_lshlrev_b32 v22, 4, v22
    v_lshl_add_u32 v22, v3, 6, v22
    v_mul_u32_u24 v19, 3072, v13
    s_mul_i32 s6, s{sWP}, 6144
    s_add_u32 s6, s6, {STG0 + SB0 * STGS + 2048}
    v_add3_u32 v{QX[0]}, v22, v19, s6
    v_xor_b32 v{QX[1]}, 32, v{QX[0]}
    v_xor_b32 v22, v2, v10
    v_lshlrev_b32 v22, 4, v22
    v_lshl_add_u32 v22, v3, 6, v22
    v_add_u32 v{QX9}, {STG0 + SB0 * STGS + 24576}, v22
    v_lshl_add_u32 v27, v2, 3, v26
    s_lshl_b32 s6, s{sWP}, 6
    s_add_u32 s6, s6, {Q9B}
    v_add_u32 v{S9 + 2}, s6, v27
    """)
    z = list(range(CN9, CN9 + 4)) + list(range(108, 112)) + [L, L9]
    for hd in range(2):
        for a in ACC[hd]: z += list(range(a, a + 16))
        for a in ACC9[hd]: z += list(range(a, a + 4))
    for r in z: P(f'v_mov_b32 v{r}, 0')
    if OPT['fused']:
        P(f"""
        s_cmp_eq_u32 s{sW}, 4
        s_cbranch_scc0 K1_E1
        s_mov_b32 s8, s64
        s_mov_b32 s9, s65
        s_mov_b32 s10, 256
        s_waitcnt vmcnt({NT if OPT['wtouch'] or OPT['ptouch'] else 0})
        v_add_u32 v244, 1, v244
        v_max_u32 v244, 1, v244
        v_mov_b32 v245, 0
        v_mov_b32 v247, v244
        s_mov_b64 exec, 1
        buffer_atomic_cmpswap v[244:245], v246, s[8:11], 0 offen sc0
        s_mov_b64 exec, -1
        K1_E1:
        """)
    P(f's_mov_b32 s{sIB}, {SB0}\ns_barrier')
    stamp(1)
    qit = []
    def qmain(kk, hd, dt):
        return (lambda F: [f'ds_read_b64_tr_b16 {vr(F + 2 * j, 2)}, v{QW[dt]} offset:{hd * 12288 + kk * 6144 + j * 1024}' for j in range(2)],
                lambda F: mf32(ACC[hd][dt], F, QB[kk]))
    def q9(hd, t):
        return (lambda F: [f'ds_read_b64_tr_b16 {vr(F + 2 * j, 2)}, v{QW9} offset:{hd * 12288 + t * 32 + j * 1024}' for j in range(2)],
                lambda F: mf16(ACC9[hd][t], F, QB9))
    qit = [qmain(0, hd, dt) for hd in range(2) for dt in range(4)] + [q9(hd, t) for hd in range(2) for t in range(2)] + [qmain(1, hd, dt) for hd in range(2) for dt in range(4)]
    nq = len(QF); NQ = len(qit); QD = OPT['qdelay']
    qrd = lambda i: qit[i % NQ][0](QF[i % nq])
    bheads = [f'ds_read_b128 {vr(QB[0], 4)}, v{QX[0]}', f'ds_read_b128 {vr(QB9, 4)}, v{QX9}']
    upd = [f'v_add_u32 v{r}, s{sDL}, v{r}' for r in QW + QX + [QX9, QW9]]
    P(bheads[0])
    for i in range(nq):
        P.extend(qrd(i))
        if i == 3: P(bheads[1])
    def qmf(i):
        m = qit[i][1](QF[i % nq])
        if i % 2 == 0 and i + 1 < NQ: m += f' ; need {vr(QF[(i + 1) % nq], 4)}'
        return m
    cut = NQ - nq + QD + 1
    P('s_branch K1_QM\nK1_QL:\ns_barrier')
    if OPT['stamps'] == 2: stamp(2, OPT['sq'])
    qpend = [bheads[0]] + [x for jj in range(QD + 1) for x in qrd(jj)]
    for i in range(cut, NQ):
        P(qmf(i))
        qpend += qrd(i + nq)
        if i == NQ - 2: qpend.append(bheads[1])
        n = len(qpend) if i == NQ - 1 else 4
        P.extend(qpend[:n]); qpend = qpend[n:]
    P('K1_QM:')
    if OPT['stamps'] == 1 and not OPT['fused']: stamp(5, 3); stamp(6, 6); stamp(9, 9); stamp(10, 12)
    if OPT['stamps'] == 2: stamp(5, OPT['sq'] - 1); stamp(6, OPT['sq'])
    for i in range(cut):
        P(qmf(i))
        if i + nq < NQ: P.extend(qrd(i + nq))
        if i == 0: P(f'ds_read_b128 {vr(QB[1], 4)}, v{QX[1]}')
        if i == 2: P(f's_cmp_eq_u32 s{sIB}, {NSB - 1}\ns_cselect_b32 s{sDL}, {-(NSB - 1) * STGS & 0xffffffff}, {STGS}')
        if i == 4: P(f's_add_u32 s{sIB}, s{sIB}, 1\ns_cmp_eq_u32 s{sIB}, {NSB}\ns_cselect_b32 s{sIB}, 0, s{sIB}')
        if i == 10: P.extend(upd[:4])
        if i == 11:
            P.extend(upd[4:])
            if OPT['stamps'] == 2: stamp(3, OPT['sq'] - 1)
            P(f's_add_u32 s{sCNT}, s{sCNT}, 1\ns_cmp_lt_u32 s{sCNT}, 18')
    P('s_cbranch_scc1 K1_QL\ns_barrier')
    for i in range(cut, NQ): P(qmf(i))
    if OPT['stamps'] == 1: stamp(2)
    P(f's_mov_b32 s6, {CSCALE}')
    for hd in range(2):
        for t in range(2):
            a = ACC9[hd][t]
            for i in range(4): P(f'v_mul_f32 v{a + i}, s6, v{a + i}')
            P(f'v_cvt_pk_bf16_f32 v{a}, v{a}, v{a + 1}\nv_cvt_pk_bf16_f32 v{a + 1}, v{a + 2}, v{a + 3}')
            P(f'ds_write_b64 v{S9 + 2}, {vr(a, 2)} offset:{hd * 4352 + t * 32}')
    for dt in [0, 1, 2, 3]:
        a = ACC[0][dt]
        for i in range(16): P(f'v_mul_f32 v{a + i}, s6, v{a + i}')
        for hf in range(2):
            for i in range(4): P(f'v_cvt_pk_bf16_f32 v{a + 8 * hf + i}, v{a + 8 * hf + 2 * i}, v{a + 8 * hf + 2 * i + 1}')
            P(f'ds_write_b128 v{S9 + 1}, {vr(a + 8 * hf, 4)} offset:{(2 * dt + hf) * 1024}')
    P('s_waitcnt vmcnt(0)')
    if OPT['fused']:
        P(f"""
        s_cmp_eq_u32 s{sW}, 4
        s_cbranch_scc0 K1_E2
        s_waitcnt vmcnt(0)
        v_cmp_eq_u32 vcc, 0, v244
        v_mov_b32 v246, {Q9B + 8704}
        s_mov_b64 exec, 1
        v_cndmask_b32 v244, v244, v247, vcc
        ds_write_b32 v246, v244
        s_getreg_b32 s3, hwreg(HW_REG_XCC_ID, 0, 4)
        v_lshl_add_u32 v245, v244, 4, s3
        s_and_b32 s3, s2, 7
        s_lshl_b32 s3, s3, 5
        s_lshr_b32 s7, s2, 3
        s_add_u32 s3, s3, s7
        s_lshl_b32 s3, s3, 2
        v_mov_b32 v246, s3
        buffer_store_dword v245, v246, s[52:55], 0 offen offset:1024 sc1
        s_mov_b64 exec, -1
        K1_E2:
        """)
    P(loopinit); P(narrow)
    P('s_barrier')
    P(getE)
    for kk in range(4): P(f'ds_read_b128 {vr(Q9 + 4 * kk, 4)}, v{S9} offset:{kk * 64}')
    for i in range(16): P(f'v_mul_f32 v{ACC[1][0] + i}, s6, v{ACC[1][0] + i}')
    P('s_barrier')
    P(getE2)
    for dt in range(4):
        a = ACC[1][dt]
        if dt:
            for i in range(16): P(f'v_mul_f32 v{a + i}, s6, v{a + i}')
        for i in range(8): P(f'v_cvt_pk_bf16_f32 v{Q + dt * 8 + i}, v{a + 2 * i}, v{a + 2 * i + 1}')
    for r in list(range(O, O + 64)) + list(range(CN, CN + 12)) + list(range(O9, O9 + 32)): P(f'v_mov_b32 v{r}, 0')
    P('s_barrier\nK1_HEAD:')

    def dma_sites(vo, srd, so, mb):
        out = []
        for n in range(4):
            g = [f's_add_u32 m0, s{mb}, s{sMW}', 's_nop 0'] if n == 0 else []
            g.append(f'buffer_load_dwordx4 v{vo}, s[{srd}:{srd + 3}], s{so} offen offset:{n * 1024} {nk} lds')
            if n == 3: g.append(f's_add_u32 s{so}, s{so}, 16384')
            out.append(g)
        return out
    dmaV = dma_sites(VOV, 16, sSV, sIS); dmaK = dma_sites(VOK, 12, sSK, sIK)
    pre = OPT['opre'] == 1
    book = f"""s_cmp_lt_u32 s{sCNT}, {8 if pre else 7}
    s_cselect_b32 s{sIS}, s{sKP}, 0x30000
    s_add_u32 s{sKP}, s{sKP}, 65536
    s_cmp_ge_u32 s{sKP}, 163840
    s_cselect_b32 s3, 163840, 0
    s_sub_u32 s{sKP}, s{sKP}, s3
    s_sub_u32 s{sDK}, 65536, s3
    s_cmp_lt_u32 s{sCNT}, 5
    s_cselect_b32 s{sIK}, s{sVP}, 0x30000
    s_add_u32 s{sVP}, s{sVP}, 65536
    s_cmp_ge_u32 s{sVP}, 163840
    s_cselect_b32 s3, 163840, 0
    s_sub_u32 s{sVP}, s{sVP}, s3
    s_sub_u32 s{sDV}, 65536, s3""".split('\n')
    book2 = f"""s_cmp_eq_u32 s{sCNT}, 6
    s_cselect_b32 s{sIK}, s6, s{sIK}
    s_cselect_b32 s12, s56, s12
    s_cselect_b32 s13, s57, s13
    s_cselect_b32 s14, 20480, s14
    s_cselect_b32 s{sSK}, 0, s{sSK}
    s_cmp_eq_u32 s{sCNT}, 7
    s_cselect_b32 s16, s56, s16
    s_cselect_b32 s17, s57, s17
    s_cselect_b32 s18, 20480, s18
    s_cselect_b32 s{sSV}, 4096, s{sSV}""".split('\n') if pre else []
    if pre: book.insert(7, f's_mov_b32 s6, s{sVP}')
    vupd = [f'v_add_u32 v{VA + i}, s{sDV}, v{VA + i}' for i in range(4)] + [f'v_add_u32 v{AV9}, s{sDV}, v{AV9}']
    kupd = [f'v_add_u32 v{AK}, s{sDK}, v{AK}', f'v_add_u32 v{AK9}, s{sDK}, v{AK9}']
    def kmain(kk, mt):
        tmp = [T0, T1][kk & 1]
        pre = [f'v_xor_b32 v{tmp}, {kk << 5}, v{AK}'] if (mt == 0 and kk) else []
        ad = tmp if kk else AK
        return dict(rd=lambda F: pre + [f'ds_read_b128 {vr(F, 4)}, v{ad} offset:{mt * 2048}'],
                    mf=lambda F: [mf32(S + 16 * mt, F, Q + 4 * kk, CN if kk == 0 else None)], w=32)
    def k9(kk):
        pre = [f'v_xor_b32 v{X0}, {kk << 6}, v{AK9}'] if kk else []
        ad = X0 if kk else AK9
        return dict(rd=lambda F: pre + [f'ds_read_b128 {vr(F, 4)}, v{ad}'],
                    mf=lambda F: [mf16(S9, F, Q9 + 4 * kk, CN9 if kk == 0 else None)], w=16)
    def vmain(ks, dt):
        mt, u = ks >> 1, ks & 1
        return dict(rd=lambda F: [f'ds_read_b64_tr_b16 {vr(F + 2 * j, 2)}, v{VA + dt} offset:{u * 8192 + j * 4096 + mt * 2048}' for j in range(2)],
                    mf=lambda F: [mf32(O + 16 * dt, F, PP + 4 * ks)], w=32)
    def v9(pp):
        pre = [f'v_xor_b32 v{X1}, {pp << 6}, v{AV9}'] if pp else []
        ad = X1 if pp else AV9
        return dict(rd=lambda F: pre + [f'ds_read_b64_tr_b16 {vr(F + 2 * j, 2)}, v{ad} offset:{32 * j}' for j in range(2)],
                    mf=lambda F: [mf16h(O9 + 4 * (2 * pp + j), F + 2 * j, P9) for j in range(2)], w=32)
    itA = []
    for kk in range(8):
        itA += [kmain(kk, 0), kmain(kk, 1)]
        if 1 <= kk <= 4: itA.append(k9(kk - 1))
    itC = []
    for dt in range(4): itC += [vmain(0, dt), v9(dt)]
    for ks in range(1, 4): itC += [vmain(ks, dt) for dt in range(4)]
    lastP = {0: 6, 1: 11, 2: 15, 3: 19, 9: 7}
    nb = len(FB); items = itA + itC; N = len(items); nA = len(itA)
    assert N % nb == 0 and nA % nb == 0
    RD = lambda i: items[i % N]['rd'](FB[i % nb])
    DL = OPT['bdelay']
    def MF(i, pair=True):
        m = items[i]['mf'](FB[i % nb])
        if pair and OPT['pairw'] and i % 2 == 0 and (i + 1) % nA != 0: m[0] += f' ; need {vr(FB[(i + 1) % nb], 4)}'
        return m
    def sync(wait='vmcnt(12)'): return [f's_waitcnt {wait}', 's_barrier']
    def gsync(lbl, group0, wait):
        return [f's_cmp_lt_u32 s{sW}, 4', f's_cbranch_scc{0 if group0 else 1} {lbl}', f's_waitcnt {wait}', 's_barrier', f'{lbl}:']
    DS = OPT['dstep']
    mx = [f'v_max3_f32 v{T1}, v{S9}, v{S9 + 1}, v{S9 + 2}', f'v_max_f32 v{T1}, v{T1}, v{S9 + 3}', f'v_max3_f32 v{T0}, v{S}, v{S + 1}, v{S + 2}']
    mx += [f'v_max3_f32 v{T0}, v{T0}, v{S + 3 + 2 * i}, v{S + 4 + 2 * i}' for i in range(6)]
    mx += [f'v_max3_f32 v{X0}, v{S + 16}, v{S + 17}, v{S + 18}']
    mx += [f'v_max3_f32 v{X0}, v{X0}, v{S + 19 + 2 * i}, v{S + 20 + 2 * i}' for i in range(6)]
    mx += [f'v_max3_f32 v{X0}, v{X0}, v{S + 15}, v{S + 31}', f'v_max_f32 v{T0}, v{T0}, v{X0}', f'v_max_f32 v{X0}, v{T0}, v{T1}', f'v_cmp_lt_f32 vcc, s{sT}, v{X0}']
    fill = []
    for ks in range(4):
        b = S + 8 * ks
        for i in range(0, 8, 2):
            fill += [(0, f'v_exp_f32 v{b + i}, v{b + i}'), (0, f'v_exp_f32 v{b + i + 1}, v{b + i + 1}')]
            if i: fill += [(0, f'v_add_f32 v{L}, v{L}, v{b + i - 2}'), (0, f'v_add_f32 v{L}, v{L}, v{b + i - 1}')]
        if ks == 0: fill += [(0, f'v_exp_f32 v{S9 + i}, v{S9 + i}') for i in range(4)]
        fill += [(0, f'v_add_f32 v{L}, v{L}, v{b + 6}'), (0, f'v_add_f32 v{L}, v{L}, v{b + 7}')]
        if ks == 0: fill += [(0, f'v_add_f32 v{L9}, v{L9}, v{S9 + i}') for i in range(4)]
        fill += [(lastP[ks], f'v_cvt_pk_bf16_f32 v{PP + 4 * ks + i}, v{b + 2 * i}, v{b + 2 * i + 1}') for i in range(4)]
        if ks == 0: fill += [(lastP[9], f'v_cvt_pk_bf16_f32 v{P9 + i}, v{S9 + 2 * i}, v{S9 + 2 * i + 1}') for i in range(2)]
    wosrd = f"""
    s_and_b32 s6, s2, 3
    s_mul_i32 s6, s6, {1024 * 1152}
    s_add_u32 s8, s100, s6
    s_addc_u32 s9, s101, 0
    s_sub_u32 s8, s8, 3072
    s_subb_u32 s9, s9, 0
    s_sub_u32 s10, {4096 * 1152 + 3072}, s6
    s_mov_b32 s11, 0x20000
    """
    def wotouch(drop):
        d1, d2, sfx = ('', '', 'lds') if drop else (f'v{Q + 1}, ', f'v{Q + 2}, ', '')
        va = X0 if drop else Q
        return f"""
    s_lshr_b32 s6, s2, 3
    s_lshl_b32 s6, s6, 3
    s_add_u32 s6, s6, s{sW}
    s_mul_i32 s6, s6, {36 * 128}
    s_add_u32 s6, s6, 3072
    {f's_add_u32 m0, s{sIS}, s{sMW}' if drop else ''}
    v_lshlrev_b32 v{va}, 6, v{TID}
    buffer_load_dword {d1}v{va}, s[8:11], s6 offen {OPT['nt_wo']} {sfx}
    s_add_u32 s6, s6, 4096
    s_mov_b64 exec, 0xff
    buffer_load_dword {d2}v{va}, s[8:11], s6 offen {OPT['nt_wo']} {sfx}
    s_mov_b64 exec, -1
    """
    if OPT['wot'] >= 2: P(wosrd)
    if OPT['opre'] == 1: P(obase)
    if OPT['opre'] >= 2:
        P(f"""
        s_lshl_b32 s6, s{sBR}, 3
        s_add_u32 s6, s6, s{sB}
        s_mul_i32 s6, s6, 1179648
        s_add_u32 s56, s66, s6
        s_addc_u32 s57, s67, 0
        s_mov_b32 s58, 1179648
        s_mov_b32 s59, 0x20000
        """)
    opre2 = f"""
    s_cmp_lg_u32 s{sCNT}, {OPT['opre']}
    s_cbranch_scc1 K1_OP
    s_add_u32 m0, s{sIS}, s{sMW}
    s_lshl_b32 s6, s{sJ}, 1
    s_add_u32 s6, s6, s{sP}
    s_lshl_b32 s7, s6, 13
    s_lshl_b32 s3, s{sWP}, 18
    s_add_u32 s7, s7, s3
    v_lshlrev_b32 v{X0}, 7, v{TID}
    buffer_load_dword v{X0}, s[56:59], s7 offen lds
    s_lshl_b32 s6, s6, 12
    s_lshl_b32 s7, s{sWP}, 10
    s_add_u32 s6, s6, s7
    s_add_u32 s6, s6, {1 << 20}
    s_mov_b64 exec, 0xff
    buffer_load_dword v{X0}, s[56:59], s6 offen lds
    s_mov_b64 exec, -1
    K1_OP:
    """
    if OPT['wot'] == 2: P(wotouch(True))
    for i in range(nb): P.extend(RD(i))
    if OPT['stamps'] == 1: stamp(7)
    for i in range(nA):
        P.extend(MF(i))
        if i + nb < nA: P.extend(RD(i + nb))
        if i + nb - nA == DL: P.extend(sync('vmcnt(63)'))
        if i in (1, 3, 5, 7): P.extend(dmaV[(i - 1) // 2])
    if OPT['pa'] != OPT['pc']: P(f's_setprio {OPT["pc"]}')
    P.extend(kupd + mx[:-1]); P('s_branch K1_RARE1\nK1_CPB:')
    P(f's_mov_b32 s{sRARE}, 0')
    ktail = [q for q in range(4) if DL + q * DS < nb]
    for i, (_, t) in enumerate(fill):
        P(t)
        if i == len(fill) - 12:
            P.extend(sync(f'vmcnt({X1N})'))
            for jj in range(nb): P.extend(RD(jj))
            for q in ktail: P.extend(dmaK[q])
    P('K1_TOP:')
    if OPT['stamps'] == 1 and not OPT['fused']: stamp(11, 2); stamp(8, 5)
    if OPT['pa'] != OPT['pc']: P(f's_setprio {OPT["pa"]}')
    if OPT['stamps'] == 2: stamp(7, 3); stamp(11, 4)
    def sites(pos, dm):
        return [x for q in range(4) if q * DS == pos for x in dm[q]]
    for i in range(nA):
        P.extend(MF(i))
        j = i + nb - nA
        if j < 0: P.extend(RD(i + nb))
        elif j == DL:
            P.extend(sync())
            for jj in range(DL + 1): P.extend(RD(nA + jj))
        elif j > DL: P.extend(RD(i + nb))
        P.extend(sites(i + nb - DL, dmaK))
        if j == DL and OPT['wot'] >= 3: P(f's_cmp_lg_u32 s{sCNT}, {OPT["wot"]}\ns_cbranch_scc1 K1_WT' + wotouch(True) + 'K1_WT:')
        if j == DL and OPT['opre'] >= 2: P(opre2)
        if j >= DL: P.extend(sites(j - DL, dmaV))
        if i == 2: P.extend(vupd)
        if i == 9: P.extend(book[:7])
        if i == 11: P.extend(book[7:])
        if i == 13: P.extend(book2)
    if OPT['stamps'] == 2: stamp(8, 3)
    if OPT['pa'] != OPT['pc']: P(f's_setprio {OPT["pc"]}')
    cost = lambda t: 2 if 'exp' in t else (0 if 'BR' in t else 1)
    full = [(0, t) for t in kupd + mx] + [(0, 'BR')] + fill
    tot = sum(cost(t) for _, t in full)
    pend = list(full); acc = 0; cw = 0; wsum = sum(it['w'] for it in itC)
    for c in range(len(itC)):
        i = nA + c
        P.extend(MF(i)); cw += itC[c]['w']
        j = i + nb - N
        if j < 0: P.extend(RD(i + nb))
        elif j == DL:
            P.extend(sync())
            for jj in range(DL + 1): P.extend(RD(jj))
        elif j > DL: P.extend(RD(i + nb))
        P.extend(sites(c + nb - DL, dmaV))
        if j >= DL: P.extend(sites(j - DL, dmaK))
        goal = tot * min(1.0, cw / (wsum - 32))
        q = 0
        while q < len(pend) and acc + cost(pend[q][1]) <= goal + 1:
            if pend[q][0] > c: q += 1; continue
            acc += cost(pend[q][1]); t = pend.pop(q)[1]
            P('s_cbranch_vccnz K1_RARE1\nK1_R1B:' if t == 'BR' else t)
    for _, t in pend: P(t)
    if OPT['stamps'] == 2: stamp(10, 3)
    P(f"""
    s_add_u32 s{sCNT}, s{sCNT}, 1
    s_add_u32 s3, s{sCNT}, s{sRARE}
    s_cmp_lt_u32 s3, 8
    s_cbranch_scc1 K1_TOP
    s_cmp_lg_u32 s{sRARE}, 0
    s_cbranch_scc1 K1_RARE2
    K1_NEXT:
    s_cmp_lt_u32 s{sCNT}, 8
    s_cbranch_scc1 K1_TOP
    s_branch K1_PVO
    """)
    P(f"""
    K1_RARE1:
    v_mov_b32 v{X0}, v{T0}
    v_mov_b32 v{X1}, v{T1}
    v_permlane32_swap_b32 v{T0}, v{X0}
    v_permlane32_swap_b32 v{T1}, v{X1}
    v_max3_f32 v{T0}, v{T0}, v{X0}, s{sCL}
    v_max_f32 v{T1}, v{T1}, v{X1}
    v_mov_b32 v{X1}, v{T1}
    v_max_f32 v{AL}, 0, v{T0}
    v_permlane16_swap_b32 v{T1}, v{X1}
    v_max3_f32 v{T1}, v{T1}, v{X1}, s{sCL}
    v_max_f32 v{AL9}, 0, v{T1}
    v_exp_f32 v{AL}, -v{AL}
    v_exp_f32 v{AL9}, -v{AL9}
    """)
    for i in range(32): P(f'v_sub_f32 v{S + i}, v{S + i}, v{T0}')
    for i in range(16): P(f'v_sub_f32 v{CN + i}, v{CN + i}, v{T0}')
    for i in range(4): P(f'v_sub_f32 v{S9 + i}, v{S9 + i}, v{T1}')
    for i in range(4): P(f'v_sub_f32 v{CN9 + i}, v{CN9 + i}, v{T1}')
    P(f"""
    v_mul_f32 v{L}, v{L}, v{AL}
    v_mul_f32 v{L9}, v{L9}, v{AL9}
    s_mov_b32 s{sT}, {f2u(8.0)}
    s_cmp_lg_u32 s{sCL}, 0
    s_mov_b32 s{sCL}, 0
    s_mov_b32 s{sRARE}, 8
    s_cbranch_scc1 K1_CPB
    s_branch K1_R1B
    K1_RARE2:
    """)
    for i in range(64): P(f'v_mul_f32 v{O + i}, v{O + i}, v{AL}')
    for i in range(32): P(f'v_mul_f32 v{O9 + i}, v{O9 + i}, v{AL9}')
    P(f"""
    s_mov_b32 s{sRARE}, 0
    s_branch K1_NEXT
    K1_PVO:
    """)
    if OPT['stamps'] == 1: stamp(3)
    P.extend(vupd)
    P(f's_and_b32 s{sKP}, s2, 3')
    if OPT['wot'] == 1: P(wosrd + wotouch(False))
    elif OPT['wot'] == 0: P(wosrd)
    P.extend(sync('vmcnt(2)' if OPT['wot'] == 1 else 'vmcnt(0)'))
    if OPT['fused'] and OPT['loc']:
        P(f"""
        s_cmp_eq_u32 s{sW}, 4
        s_cbranch_scc0 K1_XL
        s_and_b32 s3, s2, 7
        s_lshl_b32 s3, s3, 7
        v_lshlrev_b32 v{Q + 3}, 2, v{TID}
        buffer_load_dword v{Q + 3}, v{Q + 3}, s[52:55], s3 offen offset:1024 sc1
        K1_XL:
        """)
    for i in range(nb): P.extend(RD(nA + i))
    groups = [MF(nA + c) + (RD(nA + c + nb) if c + nb < len(itC) else []) for c in range(len(itC))]
    epi = f'''
    s_lshl_b32 s6, s{sBR}, 3
    s_add_u32 s6, s6, s{sB}
    s_mul_i32 s6, s6, 1179648
    s_add_u32 s20, s66, s6
    s_addc_u32 s21, s67, 0
    s_mov_b32 s22, 1179648
    s_mov_b32 s23, 0x20000
    s_lshl_b32 s6, s{sJ}, 1
    s_add_u32 s6, s6, s{sP}
    s_lshl_b32 s7, s6, 13
    s_lshl_b32 s{sSK}, s{sWP}, 18
    s_add_u32 s{sSK}, s{sSK}, s7
    s_add_u32 s{sSV}, s{sSK}, 4096
    s_lshl_b32 s{sIS}, s6, 12
    s_lshl_b32 s7, s{sWP}, 10
    s_add_u32 s{sIS}, s{sIS}, s7
    s_add_u32 s{sIS}, s{sIS}, {1 << 20}
    v_mov_b32 v{T0}, v{L}
    v_mov_b32 v{T1}, v{L9}
    v_lshlrev_b32 v{VOK}, 4, v{TID}
    v_permlane32_swap_b32 v{L}, v{T0}
    v_permlane32_swap_b32 v{L9}, v{T1}
    v_add_f32 v{L}, v{L}, v{T0}
    v_add_f32 v{L9}, v{L9}, v{T1}
    v_mov_b32 v{T1}, v{L9}
    v_rcp_f32 v{AL}, v{L}
    v_permlane16_swap_b32 v{L9}, v{T1}
    v_add_f32 v{CN9 + 1}, v{L9}, v{T1}
    '''.strip().split('\n')
    epi += phase2(P, stamp, locals(), 0)
    per = -(-len(epi) // len(groups))
    i = 0
    for g in groups:
        P.extend(g)
        j = min(len(epi), i + per)
        while j < len(epi) and (epi[j].split()[0] in ('s_addc_u32', 's_cselect_b64', 's_cselect_b32', 'v_cndmask_b32')): j += 1
        P.extend(epi[i:j]); i = j
    P.extend(epi[i:])
    x9 = gsync('K1_X9', True, 'vmcnt(2)')
    P.extend(x9[:-1])
    if OPT['fused']: phase2(P, stamp, locals(), 3)
    P(x9[-1])
    P(f"""
    s_cmp_lt_u32 s{sW}, 4
    s_cselect_b32 s45, 20480, 65536
    s_cselect_b32 s46, 36864, 155648
    s_lshl_b32 s7, s{sWP}, 11
    s_add_u32 s6, s45, s7
    v_add_u32 v{T0}, s6, v{VOK}
    s_add_u32 s6, s46, s7
    v_add_u32 v{X1}, s6, v{VOK}
    v_and_b32 v{T1}, 15, v{TID}
    v_lshlrev_b32 v{T1}, 3, v{T1}
    s_lshl_b32 s7, s{sW}, 7
    s_add_u32 s7, s7, 45056
    v_add_u32 v{X0}, s7, v{T1}
    ds_write_b64 v{X0}, {vr(CN9, 2)}
    s_mul_i32 s6, s{sP}, 36864
    s_lshl_b32 s7, s{sWP}, 12
    s_add_u32 s6, s6, s7
    s_add_u32 s6, s6, 81920
    v_add_u32 v{AL9}, s6, v{VOK}
    """)
    os_ = '' if OPT['loc'] else 'sc1'
    for sl in range(1, 4):
        for t in range(2): P(f'ds_write_b128 v{T0 if sl < 3 else X1}, {vr(O9 + 8 * sl + 4 * t, 4)} offset:{(sl - 1) * 8192 * (sl < 3) + t * 1024}')
    for dt in range(4):
        for i in range(16): P(f'v_mul_f32 v{O + 16 * dt + i}, v{O + 16 * dt + i}, v{AL}')
        for hf in range(2):
            d = S + 8 * dt + 4 * hf
            for i in range(4): P(f'v_cvt_pk_bf16_f32 v{d + i}, v{O + 16 * dt + 8 * hf + 2 * i}, v{O + 16 * dt + 8 * hf + 2 * i + 1}')
            ks = 2 * dt + hf
            P(f'buffer_store_dwordx4 {vr(d, 4)}, v{VOK}, s[20:23], s{sSK if ks < 4 else sSV} offen offset:{(ks & 3) * 1024} {os_}')
            P(f'ds_write_b128 v{AL9}, {vr(d, 4)} offset:{(ks >> 2) * 18432 + (ks & 3) * 1024}')
    P(f"""
    s_lshl_b32 s6, s{sP}, 9
    s_add_u32 s6, s6, 45056
    v_add_u32 v{X0}, s6, v{T1}
    s_xor_b32 s7, s{sWP}, 1
    s_lshl_b32 s7, s7, 11
    s_add_u32 s7, s7, s45
    v_add_u32 v50, s7, v{VOK}
    s_xor_b32 s7, s{sWP}, 2
    s_lshl_b32 s7, s7, 11
    s_add_u32 s7, s7, s45
    s_add_u32 s7, s7, 8192
    v_add_u32 v51, s7, v{VOK}
    s_xor_b32 s7, s{sWP}, 3
    s_lshl_b32 s7, s7, 11
    s_add_u32 s7, s7, s46
    v_add_u32 v52, s7, v{VOK}
    s_lshl_b32 s7, s{sWP}, 7
    v_xor_b32 v{X0}, s7, v{X0}
    v_xor_b32 v53, 0x80, v{X0}
    v_xor_b32 v54, 0x100, v{X0}
    v_xor_b32 v55, 0x180, v{X0}
    v_lshrrev_b32 v42, 5, v{TID}
    v_bfe_u32 v43, v{TID}, 4, 1
    v_lshlrev_b32 v44, 1, v{T1}
    v_lshl_add_u32 v44, v42, 8, v44
    v_lshl_add_u32 v44, v43, 3, v44
    s_lshr_b32 s6, s{sW}, 1
    s_mul_i32 s6, s6, 18432
    s_and_b32 s7, s{sW}, 1
    s_lshl_b32 s7, s7, 10
    s_add_u32 s6, s6, s7
    s_add_u32 s6, s6, {81920 + 16384}
    v_add_u32 v45, s6, v44
    s_barrier
    """)
    stamp(4)
    for w in range(4): P(f'ds_read_b64 {vr(2 * w, 2)}, v{[X0, 53, 54, 55][w]}')
    for w in range(1, 4):
        for t in range(2): P(f'ds_read_b128 {vr(8 + 8 * w + 4 * t, 4)}, v{49 + w} offset:{t * 1024}')
    P('v_min3_f32 v40, v0, v2, v4\nv_min_f32 v40, v40, v6')
    for w in range(4): P(f'v_sub_f32 v{2 * w}, v40, v{2 * w}')
    for w in range(4): P(f'v_exp_f32 v{2 * w}, v{2 * w}')
    P("""
    v_mul_f32 v41, v0, v1
    v_fmac_f32 v41, v2, v3
    v_fmac_f32 v41, v4, v5
    v_fmac_f32 v41, v6, v7
    v_rcp_f32 v41, v41
    """)
    for i in range(8): P(f'v_mul_f32 v{8 + i}, v{O9 + i}, v0')
    for w in range(1, 4):
        for i in range(8): P(f'v_fmac_f32 v{8 + i}, v{8 + 8 * w + i}, v{2 * w}')
    for i in range(8): P(f'v_mul_f32 v{8 + i}, v{8 + i}, v41')
    for t in range(2):
        P(f'v_cvt_pk_bf16_f32 v{46 + 2 * t}, v{8 + 4 * t}, v{9 + 4 * t}')
        P(f'v_cvt_pk_bf16_f32 v{47 + 2 * t}, v{10 + 4 * t}, v{11 + 4 * t}')
        P(f'ds_write_b64 v45, {vr(46 + 2 * t, 2)} offset:{t * 512}')
        P(f'buffer_store_dwordx2 {vr(46 + 2 * t, 2)}, v44, s[20:23], s{sIS} offen offset:{t * 512} {os_}')
    if OPT['fused']: phase2(P, stamp, locals(), 2)
    if OPT['stamps']:
        P('K1_STAMPS:' if OPT['fused'] else 's_waitcnt vmcnt(0)')
        if not OPT['fused']: stamp(4)
        P(f'''
        s_waitcnt lgkmcnt(0)
        s_add_u32 s20, s66, {WS_STAMP}
        s_addc_u32 s21, s67, 0
        s_mov_b32 s22, 0x100000
        s_mov_b32 s23, 0x20000
        s_lshl_b32 s6, s2, 3
        s_add_u32 s6, s6, s{sW}
        s_lshl_b32 s6, s6, 7
        v_mov_b32 v2, s6
        s_mov_b64 exec, 1
        ''')
        if OPT['probe'] >= 0:
            k = OPT['probe']
            lo, base = (98, 96) if k == 99 else (70 + 2 * k, 70)
            P(f"""
            s_cmp_lg_u32 s2, {OPT['pwg']}
            s_cbranch_scc1 K1_END
            s_cmp_lg_u32 s{sW}, {OPT['pw']}
            s_cbranch_scc1 K1_END
            s_sub_u32 s6, s{lo}, s{base}
            s_mul_i32 s6, s6, {1 if k == 99 else 10}
            s_memrealtime s[72:73]
            s_waitcnt lgkmcnt(0)
            s_add_u32 s6, s6, s72
            {'s_add_u32 s6, s70, 30000' if k == 0 else ''}
            K1_SPIN:
            s_memrealtime s[72:73]
            s_waitcnt lgkmcnt(0)
            s_sub_u32 s7, s72, s6
            s_cmp_lt_i32 s7, 0
            s_cbranch_scc1 K1_SPIN
            s_branch K1_END
            """)
        if OPT['dbgst']:
            P('s_mov_b32 s20, s64\ns_mov_b32 s21, s65\ns_mov_b32 s22, 256\nv_mov_b32 v2, 0\ns_not_b32 s70, s70')
            for i, k in enumerate([0, 1, 2, 7, 3, 4, 5, 6, 9, 10, 11, 8]):
                P(f'v_mov_b32 v4, s{70 + 2 * k}\nbuffer_atomic_umax v4, v2, s[20:23], 0 offen offset:{4 + 4 * i}\ns_nop 1')
        for k in range(0 if OPT['dbgst'] else 15):
            P(f'v_mov_b32 v4, s{70 + 2 * k}\nv_mov_b32 v5, s{71 + 2 * k}\nbuffer_store_dwordx2 v[4:5], v2, s[20:23], 0 offen offset:{8 * k}\ns_nop 1')
    P('K1_END:\ns_endpgm')
    a0 = [i for i, x in enumerate(P.ins) if x.text == 'K1_G1:'][0]; a1 = [i for i, x in enumerate(P.ins) if x.text == 'K1_PVO:'][0]
    keep = []
    kt = [i for i, x in enumerate(P.ins) if x.text == 'K1_TOP:'][0]
    kp0 = [i for i, x in enumerate(P.ins) if x.text == 'K1_G1:'][0]; kp1 = [i for i, x in enumerate(P.ins) if x.text == 'K1_QL:'][0]
    for i, x in enumerate(P.ins):
        if a0 < i < a1:
            if OPT['nodma'] and x.dma and not (kp0 < i < kp1): continue
            if OPT['nobar'] and x.kind == 'barrier': continue
            if OPT['noexp'] and x.kind in ('valu', 'trans') and ('exp' in x.text or 'v_add_f32' in x.text or 'cvt_pk' in x.text or 'max3' in x.text): continue
            if OPT['nolds'] and x.kind == 'ds_r': continue
            if OPT['nomf'] and i > kt and (x.kind in ('mfma', 'ds_r', 'trans') or (x.kind == 'valu' and 'v_cmp' not in x.text)): continue
        keep.append(x)
    P.ins = keep
    return P.finish()

def desc(name, vg, sg=102):
    return f'''.amdhsa_kernel {name}
  .amdhsa_next_free_vgpr {vg}
  .amdhsa_next_free_sgpr {sg}
  .amdhsa_accum_offset {(vg + 3) // 4 * 4}
  .amdhsa_group_segment_fixed_size 0
  .amdhsa_kernarg_size 104
  .amdhsa_user_sgpr_count 2
  .amdhsa_user_sgpr_kernarg_segment_ptr 1
  .amdhsa_system_sgpr_workgroup_id_x 1
  .amdhsa_float_denorm_mode_32 3
.end_amdhsa_kernel
'''

def main():
    ref = open('cdna_kernels/%s.s.ref' % NAME).read().split('\n')
    hdr = [l for l in ref if l.startswith(';') and '@launch' not in l and 'Override launch' not in l and 'grid=ceil' not in l]
    hdr = hdr[:14]
    ks = [('attn_kernel', k1(), 256, '(256,1,1)', '(%d,1,1)' % OPT['blk'], 163840),
          ]
    out = '\n'.join(hdr) + '\n'
    if OPT['fused']:
        ks = [(NAME + '_kernel',) + ks[0][1:]]
        out += f'; @launch grid={ks[0][3]} block={ks[0][4]} lds={ks[0][5]}\n'
    else:
        for n, _, _, g, b, l in ks: out += f'; @launch kernel={n} grid={g} block={b} lds={l}\n'
    out += '.amdgcn_target "amdgcn-amd-amdhsa--gfx950"\n.text\n'
    for n, body, _, _, _, _ in ks:
        out += f'.globl {n}\n.p2align 8\n.type {n},@function\n{n}:\n' + 'K1_START:\n' + body.replace('@CODELEN@', 'K1_END-K1_START').replace('@PCOFF@', 'K1_PC-K1_START')
    out += '.section .rodata,"a"\n'
    for n, _, vg, _, _, _ in ks: out += '.p2align 6\n' + desc(n, vg)
    open(sys.argv[1], 'w').write(out)
main()
```

```python
import sys, struct, math
from asmlib import *

NAME = 'concat_heads__mha_block_cached__gqa_block_cached__near_ridge'
def f2u(x): return struct.unpack('<I', struct.pack('<f', x))[0]
CSCALE = f2u(math.log2(math.e) / math.sqrt(128.0))

OPT = dict(nt_kv='nt', nt_w='', nt_x='', ostore='', stamps=0, touch=0, k2nb=3, nt_wo='', nt_o='', nodma=0, nobar=0, noexp=0, nolds=0, prio=0, bdelay=1, blk=512, pa=0, pc=1, pairw=1, qdelay=3, wtouch=0, kvs='000000000000044460a4', nsb=5, dstep=2, trows=15, tlead=0, ptouch=0, tl=0, nopoll=0, ot=-9, opre=0, dyn=0, fb=3, lates=0, qnop=0, anop=0, ctouch=0, sp='01111111122111', ts=-1, npre=3, dist=3, sq=9, fused=1, p2nb=3, wot=1, ld2='', spin=200000, dbgst=0, loc=1, bgwb=0, nomf=0, nokv=0, nost=0, probe=-1, pwg=8, pw=4)
for a in sys.argv[2:]:
    k, v = a.split('=')
    OPT[k] = int(v) if (v.lstrip('-').isdigit() and k not in ('kvs', 'sp')) else v

WS_O_BR = 36 * 256 * 1024
WS_PART = 0x1400000
WS_FLAG = 0x3000000
WS_STAMP = 0x4000000

def lanes(P, dst, expr_list):
    for e in expr_list: P(e)

def mf32(d, a, b, c=None):
    return f'v_mfma_f32_32x32x16_bf16 {vr(d, 16)}, {vr(a, 4)}, {vr(b, 4)}, {vr(d if c is None else c, 16)}'
def mf16(d, a, b, c=None):
    return f'v_mfma_f32_16x16x32_bf16 {vr(d, 4)}, {vr(a, 4)}, {vr(b, 4)}, {vr(d if c is None else c, 4)}'
def mf16h(d, a, b):
    return f'v_mfma_f32_16x16x16_bf16 {vr(d, 4)}, {vr(a, 2)}, {vr(b, 2)}, {vr(d, 4)}'


def phase2(P, stamp, env, part):
    sW, sWP, sBR, sE, sKS, TID, sB, sJ = env['sW'], env['sWP'], env['sBR'], env['sE'], env['sKP'], env['TID'], env['sB'], env['sJ']
    NB = 4; WST, OST, OOF = 20480, 18432, 81920
    sJJ, sTID, sCNT, sIB, sDL, sTMP, sSPIN = 56, 58, 30, 36, 37, 48, 44
    sSW, sSO, sMW, sMO, sPW, sPO, sIBW, sNB, sM9, sD2, sS9 = 59, 60, 61, 62, 63, 35, 31, 33, 43, 47, 57
    sNEED = 38
    VW = [120, 121, 122, 123, 124]; VO, VF, VP = 141, 142, 143
    A0, A1, A90, A91, AB, AB9 = 125, 126, 127, 128, 129, 130
    done = 'K1_STAMPS' if OPT['stamps'] else 'K1_END'
    def poll(lbl, off):
        return f"""
    s_mov_b32 s{sSPIN}, {OPT['spin']}
    {lbl}:
    s_mov_b64 exec, 15
    buffer_load_dword v{VP}, v{VF}, s[52:55], s{off} offen sc1
    s_mov_b64 exec, -1
    s_sub_u32 s{sSPIN}, s{sSPIN}, 1
    s_cbranch_scc1 {lbl}X
    s_waitcnt vmcnt(0)
    v_cmp_eq_u32 vcc, s{sE}, v{VP}
    s_and_b64 s[6:7], vcc, s[{sNEED}:{sNEED + 1}]
    s_cmp_eq_u64 s[6:7], s[{sNEED}:{sNEED + 1}]
    s_cbranch_scc0 {lbl}
    {lbl}X:
    """
    def wb(lbl, first):
        if not OPT['loc']: return ''
        o = ''
        if first: o = f"""
    s_getreg_b32 s3, hwreg(HW_REG_XCC_ID, 0, 4)
    s_lshl_b32 s7, s{sE}, 4
    s_add_u32 s3, s3, s7
    s_waitcnt vmcnt(10)
    v_cmp_eq_u32 vcc, s3, v{env['Q'] + 3}
    s_and_b32 s{sNB}, vcc_lo, 15
    """
        return o + f"""
    s_cmp_eq_u32 s{sNB}, {15 if OPT['loc'] == 1 else 0}
    s_cbranch_scc1 {lbl}
    buffer_wbl2 sc1
    s_waitcnt vmcnt(0)
    {lbl}:
    """
    def issW():
        o = f's_mul_i32 s7, s{sPW}, {64 * 1152}\ns_add_u32 s7, s7, s{sSW}\ns_add_u32 m0, s{sIBW}, s{sMW}\ns_add_u32 s{sPW}, s{sPW}, 1\n'
        for n in range(5):
            if n == 4: o += 's_add_u32 m0, m0, 4096\ns_nop 0\n'
            o += f'buffer_load_dwordx4 v{VW[n]}, s[8:11], s7 offen offset:{(n & 3) * 1024} {OPT["nt_wo"]} lds\n'
        return o + f's_and_b32 s{sPW}, s{sPW}, 15\ns_add_u32 s{sIBW}, s{sIBW}, {WST}\ns_cmp_eq_u32 s{sIBW}, {NB * WST}\ns_cselect_b32 s{sIBW}, 0, s{sIBW}\n'
    def issO():
        o = f's_add_u32 m0, s{sIB}, s{sMO}\ns_lshl_b32 s7, s{sPO}, 12\ns_add_u32 s7, s7, s{sSO}\n'
        for e in range(4): o += f'buffer_load_dwordx4 v{VO}, s[20:23], s7 offen offset:{e * 1024} {OPT["ld2"]} lds\n'
        o += f's_add_u32 m0, s{sIB}, s{sM9}\ns_lshl_b32 s7, s{sPO}, 11\ns_add_u32 s7, s7, s{sS9}\ns_mov_b32 exec_hi, 0\n'
        o += f'buffer_load_dwordx4 v{VO}, s[20:23], s7 offen {OPT["ld2"]} lds\ns_mov_b32 exec_hi, -1\n'
        return o + f's_add_u32 s{sPO}, s{sPO}, 1\ns_and_b32 s{sPO}, s{sPO}, 15\ns_add_u32 s{sIB}, s{sIB}, {OST}\ns_cmp_eq_u32 s{sIB}, {NB * OST}\ns_cselect_b32 s{sIB}, 0, s{sIB}\n'
    if part == 0:
        o = f"""
        s_and_b32 s{sJJ}, s{sJ}, 3
        s_lshl_b32 s{sTID}, s{sBR}, 3
        s_add_u32 s{sTID}, s{sTID}, s{sB}
        s_lshl_b32 s{sTID}, s{sTID}, 2
        s_add_u32 s{sTID}, s{sTID}, s{sJJ}
        s_lshl_b32 s{sPW}, s{sJJ}, 2
        s_add_u32 s{sPO}, s{sPW}, 4
        s_and_b32 s{sPO}, s{sPO}, 15
        s_and_b32 s3, s2, 7
        s_lshl_b32 s3, s3, 3
        s_add_u32 s3, s3, s{sB}
        s_lshl_b32 s{sTMP}, s3, 7
        v_lshlrev_b32 v{VF}, 2, v{TID}
        v_lshlrev_b32 v{VO}, 4, v{TID}
        v_mov_b32 v{VP}, s{sE}
        v_mov_b32 v140, v{TID}
        s_mul_i32 s{sSW}, s{sJJ}, 288
        s_and_b32 s{sSW}, s{sSW}, 0xffc0
        s_mul_i32 s3, s{sWP}, {16 * 1152}
        s_add_u32 s{sSW}, s{sSW}, s3
        s_mul_i32 s{sMW}, s{sWP}, 5120
        s_lshl_b32 s{sMO}, s{sWP}, 12
        s_add_u32 s{sMO}, s{sMO}, {OOF}
        s_lshl_b32 s{sM9}, s{sWP}, 9
        s_lshl_b32 s{sS9}, s{sKS}, 15
        s_add_u32 s{sS9}, s{sS9}, s{sM9}
        s_add_u32 s{sS9}, s{sS9}, {1 << 20}
        s_add_u32 s{sM9}, s{sM9}, {OOF + 16384}
        s_lshl_b32 s{sSO}, s{sKS}, 16
        s_lshl_b32 s3, s{sWP}, 18
        s_add_u32 s{sSO}, s{sSO}, s3
        s_lshl_b32 s3, s{sB}, 2
        s_lshl_b32 s{sNB}, 1, s3
        s_mov_b32 s{sIB}, 0
        s_mov_b32 s{sIBW}, 0
        s_mov_b32 s3, 52429
        """
        for n in range(5):
            o += f"""
        v_add_u32 v131, {64 * n}, v{TID}
        v_mul_lo_u32 v132, s3, v131
        v_lshrrev_b32 v132, 20, v132
        v_mul_u32_u24 v133, 20, v132
        v_sub_u32 v133, v131, v133
        v_bfe_u32 v134, v132, 3, 1
        v_lshlrev_b32 v134, 1, v134
        v_xor_b32 v133, v133, v134
        v_mul_u32_u24 v132, 1152, v132
        v_lshl_add_u32 v132, v133, 4, v132
        v_add_u32 v{VW[n]}, {3072 - (n & 3) * 1024}, v132
        """
        o += f"""
        v_lshrrev_b32 v131, 4, v{TID}
        v_bfe_u32 v132, v{TID}, 2, 2
        v_lshl_add_u32 v132, v131, 3, v132
        v_mul_u32_u24 v132, 320, v132
        v_bfe_u32 v133, v{TID}, 1, 1
        v_lshl_add_u32 v132, v133, 4, v132
        v_and_b32 v133, 1, v{TID}
        v_lshl_add_u32 v132, v133, 3, v132
        v_and_b32 v133, 1, v131
        v_lshl_add_u32 v134, v133, 5, v132
        v_xor_b32 v135, 1, v133
        v_lshl_add_u32 v135, v135, 5, v132
        v_add_u32 v136, 64, v134
        s_bitcmp0_b32 s{sJJ}, 0
        s_cselect_b64 vcc, -1, 0
        s_lshl_b32 s3, s{sWP}, 6
        v_cndmask_b32 v{A0}, v135, v134, vcc
        v_cndmask_b32 v{A1}, v136, v135, vcc
        v_add_u32 v{A90}, s3, v{A0}
        v_add_u32 v{A91}, s3, v{A1}
        v_and_b32 v132, 15, v{TID}
        v_lshlrev_b32 v132, 4, v132
        v_lshrrev_b32 v131, 1, v131
        v_lshl_add_u32 v134, v133, 9, v132
        v_lshl_add_u32 v134, v131, 10, v134
        v_add_u32 v{AB}, s{sMO}, v134
        v_lshl_add_u32 v134, v133, 8, v132
        v_lshl_add_u32 v134, v131, 9, v134
        v_add_u32 v{AB9}, {OOF + 16384}, v134
        """
        return [l.strip() for l in o.split('\n') if l.strip()]
    if part == 3:
        P(issW()); return
    P(f"""
    s_cmp_ge_u32 s{sW}, 4
    s_cbranch_scc1 P2_G1
    s_waitcnt vmcnt(0)
    s_barrier
    """)
    stamp(5)
    fl = f's_mov_b64 exec, 0xff\nbuffer_load_dword v{VP}, v{VF}, s[52:55], s{sTMP} offen sc1\ns_mov_b64 exec, -1\n'
    P('v_mov_b32 v137, 163832\nv_mov_b32 v138, 0\nds_write_b32 v137, v138')
    P(issW() + issW() + issW())
    P(f's_cmp_lg_u32 s{sW}, 0\ns_cbranch_scc1 P2_F0\n{fl}P2_F0:')
    P(f"""
    s_waitcnt vmcnt(10)
    s_barrier
    s_waitcnt vmcnt(5)
    s_barrier
    s_waitcnt vmcnt(0)
    s_mov_b32 s{sNB}, 0
    s_mov_b32 s{sCNT}, 2
    s_sub_u32 s{sPW}, s{sPW}, 2
    P2_LD:
    s_cmp_eq_u32 s{sCNT}, 8
    s_cselect_b32 s3, 8, 2
    s_cselect_b32 s{sNB}, 4, s{sNB}
    s_add_u32 s{sPW}, s{sPW}, s3
    s_and_b32 s{sPW}, s{sPW}, 15
    s_cmp_lg_u32 s{sW}, 0
    s_cbranch_scc1 P2_PO
    s_lshr_b32 s3, s{sPW}, 2
    s_add_u32 s3, s3, s{sNB}
    s_mov_b32 s{sSPIN}, {OPT['spin']}
    P2_PF:
    v_cmp_eq_u32 vcc, s{sE}, v{VP}
    s_bitcmp1_b32 vcc_lo, s3
    s_cbranch_scc1 P2_PG
    {fl}
    s_sub_u32 s{sSPIN}, s{sSPIN}, 1
    s_waitcnt vmcnt(0)
    s_cbranch_scc0 P2_PF
    P2_PG:
    v_mov_b32 v138, s{sCNT}
    ds_write_b32 v137, v138
    s_cmp_lg_u32 s{sCNT}, 6
    s_cbranch_scc1 P2_PN
    {fl}
    s_branch P2_PN
    P2_PO:
    ds_read_b32 v138, v137
    s_waitcnt lgkmcnt(0)
    v_readfirstlane_b32 s6, v138
    s_cmp_eq_u32 s6, s{sCNT}
    s_cbranch_scc0 P2_PO
    P2_PN:
    s_mov_b32 s{sPO}, s{sPW}
    """)
    P(issO() + issW() + 's_waitcnt vmcnt(10)\ns_barrier\n' + issO() + issW())
    P(f's_add_u32 s{sCNT}, s{sCNT}, 2\ns_cmp_lt_u32 s{sCNT}, 14\ns_waitcnt vmcnt(10)\ns_barrier\ns_cbranch_scc1 P2_LD')
    P('s_waitcnt vmcnt(0)\ns_barrier\ns_barrier\ns_branch P2_RED')
    ACC = [[4 * (2 * t + j) for j in range(2)] for t in range(9)]; AC9 = [72, 76, 80]
    SET = [dict(A=[144 + 4 * t for t in range(9)], A9=[180, 184], B=[188, 192], B9=196),
           dict(A=[200 + 4 * t for t in range(9)], A9=[236, 240], B=[244, 248], B9=252)]
    P(f"""
    P2_G1:
    s_lshl_b32 s6, s{sTID}, 2
    s_add_u32 s6, s6, s{sKS}
    s_lshl_b32 s6, s6, 2
    s_add_u32 s6, s6, s{sWP}
    s_mul_i32 s6, s6, 11264
    s_add_u32 s6, s6, {WS_PART}
    s_add_u32 s16, s66, s6
    s_addc_u32 s17, s67, 0
    s_mov_b32 s18, 11264
    s_mov_b32 s19, 0x20000
    s_mov_b32 s{sIB}, 0
    s_mov_b32 s{sCNT}, 1
    s_mov_b32 s{sDL}, {WST}
    s_mov_b32 s{sD2}, {OST}
    s_lshl_b32 s6, s{sJJ}, 2
    s_add_u32 s{sTMP}, s6, s{sTMP}
    s_barrier
    s_cmp_eq_u32 s{sW}, 4
    s_cbranch_scc0 P2_FA
    {wb('P2_WA', True)}
    s_mov_b64 exec, 1
    buffer_store_dword v{VP}, v{VF}, s[52:55], s{sTMP} offen sc1
    s_mov_b64 exec, -1
    P2_FA:
    """)
    stamp(6)
    def rd(st, K):
        o = [f'ds_read_b128 {vr(st["B"][j], 4)}, v{AB} offset:{K * 2048 + j * 256}' for j in range(2)]
        for t in range(9):
            o += [f'ds_read_b64_tr_b16 {vr(st["A"][t] + 2 * j, 2)}, v{[A0, A1][t & 1]} offset:{K * 10240 + j * 1280 + 64 * (t >> 1)}' for j in range(2)]
            if t == 7: o.append(f'ds_read_b128 {vr(st["B9"], 4)}, v{AB9} offset:{K * 1024}')
        for t in range(2):
            o += [f'ds_read_b64_tr_b16 {vr(st["A9"][t] + 2 * j, 2)}, v{[A90, A91][t]} offset:{K * 10240 + j * 1280}' for j in range(2)]
        return o
    last = []
    def step(cur, rds, extra=(), first=False, tailbr=None):
        z = lambda d, a, b: f'v_mfma_f32_16x16x32_bf16 {vr(d, 4)}, {vr(a, 4)}, {vr(b, 4)}, 0' if first else mf16(d, a, b)
        m = []
        for t in range(9): m += [z(ACC[t][0], cur['A'][t], cur['B'][0]), z(ACC[t][1], cur['A'][t], cur['B'][1])]
        m += [z(AC9[2], cur['A'][8], cur['B9']), z(AC9[0], cur['A9'][0], cur['B9']), z(AC9[1], cur['A9'][1], cur['B9'])]
        for i in (0, 6, 12): m[i] += f' ; need {vr(cur["A"][i // 2 + 2], 4)}'
        m[18] += f' ; need {vr(cur["A9"][1], 4)}'
        rds = list(rds); extra = list(extra)
        for i, x in enumerate(m):
            if tailbr and i == len(m) - 1:
                assert not extra and not rds
                P(f's_cbranch_scc1 {tailbr}'); last.append(x)
            P(x)
            n = 2 if i % 3 != 2 else 1
            if rds: P.extend(rds[:n]); rds = rds[n:]
            elif extra: P.extend(extra[:2]); extra = extra[2:]
        assert not rds
        P.extend(extra)
    upd = [f'v_add_u32 v{r}, s{sDL}, v{r}' for r in (A0, A1, A90, A91)] + [f'v_add_u32 v{r}, s{sD2}, v{r}' for r in (AB, AB9)]
    ring = [f's_add_u32 s{sIB}, s{sIB}, 1', f's_and_b32 s{sIB}, s{sIB}, 3', f's_cmp_eq_u32 s{sIB}, {NB - 1}',
            f's_cselect_b32 s{sDL}, {-(NB - 1) * WST & 0xffffffff}, {WST}', f's_cselect_b32 s{sD2}, {-(NB - 1) * OST & 0xffffffff}, {OST}']
    P.extend(rd(SET[0], 0))
    step(SET[0], rd(SET[1], 1), upd, first=True)
    P('s_barrier\ns_branch P2_M\nP2_L:')
    if OPT['tl'] == 1: stamp(2, 3); stamp(7, 8); stamp(3, 12)
    step(SET[0], rd(SET[1], 1), upd + [f's_add_u32 s{sCNT}, s{sCNT}, 1', f's_cmp_eq_u32 s{sCNT}, {OPT["fb"]}'], tailbr='P2_SPEC')
    P('s_barrier\nP2_M:')
    step(SET[1], rd(SET[0], 0), ring + [f's_cmp_lt_u32 s{sCNT}, 16'])
    P('s_cbranch_scc1 P2_L\ns_branch P2_E\nP2_SPEC:\n' + last[0])
    P(f"""
    s_waitcnt vmcnt(0)
    s_barrier
    s_cmp_eq_u32 s{sW}, 4
    s_cbranch_scc0 P2_M
    {wb('P2_WB', False)}
    s_mov_b64 exec, 1
    buffer_store_dword v{VP}, v{VF}, s[52:55], s{sTMP} offen offset:16 sc1
    s_mov_b64 exec, -1
    s_branch P2_M
    P2_E:
    """)
    stamp(9)
    units = [(ACC[2 * u][j], ACC[2 * u + 1][j]) for j in range(2) for u in range(4)] + [(ACC[8][0], ACC[8][1]), (AC9[0], AC9[1]), (AC9[2], AC9[2])]
    for i, (x, y) in enumerate(units):
        d = 84 + 4 * i if i < 9 else 144 + 4 * i
        P(f'v_cvt_pk_bf16_f32 v{d}, v{x}, v{x + 1}\nv_cvt_pk_bf16_f32 v{d + 1}, v{x + 2}, v{x + 3}')
        P(f'v_cvt_pk_bf16_f32 v{d + 2}, v{y}, v{y + 1}\nv_cvt_pk_bf16_f32 v{d + 3}, v{y + 2}, v{y + 3}')
        if i % 4 == 0: P(f's_mov_b32 s3, {i * 1024}')
        P(f'v_permlane16_swap_b32 v{d}, v{d + 2}\nv_permlane16_swap_b32 v{d + 1}, v{d + 3}')
        P(f'buffer_store_dwordx4 {vr(d, 4)}, v{VO}, s[16:19], s3 offen offset:{(i % 4) * 1024} sc1')
    P(f"""
    P2_RED:
    s_lshl_b32 s{sTMP}, s{sTID}, 7
    s_add_u32 s{sTMP}, s{sTMP}, 8192
    s_lshl_b32 s7, s{sKS}, 2
    s_add_u32 s7, s7, s{sTMP}
    s_lshl_b32 s6, s{sTID}, 4
    s_add_u32 s6, s6, s{sKS}
    s_mul_i32 s6, s6, 11264
    s_add_u32 s6, s6, {WS_PART}
    s_add_u32 s16, s66, s6
    s_addc_u32 s17, s67, 0
    s_mov_b32 s18, {3 * 45056 + 11264}
    s_mov_b32 s19, 0x20000
    s_mul_i32 s6, s{sB}, {144 * 2304}
    s_mul_i32 s3, s{sBR}, 1152
    s_add_u32 s6, s6, s3
    s_mul_i32 s3, s{sJJ}, 288
    s_add_u32 s6, s6, s3
    s_add_u32 s12, s68, s6
    s_addc_u32 s13, s69, 0
    s_sub_u32 s14, {1152 * 2304}, s6
    s_mov_b32 s15, 0x20000
    v_mov_b32 v{VP}, s{sE}
    s_mov_b64 s[{sNEED}:{sNEED + 1}], 15
    v_and_b32 v4, 15, v140
    v_mul_u32_u24 v4, 2304, v4
    v_lshrrev_b32 v5, 5, v140
    v_lshl_add_u32 v4, v5, 4, v4
    v_bfe_u32 v5, v140, 4, 1
    v_lshl_add_u32 v6, v5, 5, v4
    s_lshl_b32 s40, s{sKS}, 1
    s_lshr_b32 s3, s{sW}, 2
    s_add_u32 s40, s40, s3
    s_mul_i32 s40, s40, {16 * 2304}
    s_and_b32 s3, s{sW}, 3
    s_lshl_b32 s3, s3, 6
    s_add_u32 s40, s40, s3
    s_lshl_b32 s41, s{sW}, 10
    s_mul_i32 s42, s{sKS}, {32 * 2304}
    s_add_u32 s42, s42, 256
    s_lshl_b32 s3, s{sKS}, 6
    s_add_u32 s3, s3, {128 * 2304}
    s_cmp_eq_u32 s{sW}, 1
    s_cselect_b32 s42, s3, s42
    s_cselect_b32 s45, 32, 0
    s_cmp_eq_u32 s{sW}, 2
    s_cselect_b32 s42, {128 * 2304 + 256}, s42
    s_cmp_eq_u32 s{sW}, 0
    s_cselect_b32 s45, {16 * 2304}, s45
    v_mul_lo_u32 v7, s45, v5
    v_add_u32 v7, v7, v4
    s_cmp_lg_u32 s{sKS}, 0
    s_cselect_b32 s45, 2, 3
    s_waitcnt vmcnt(0)
    s_barrier
    s_cmp_eq_u32 s{sW}, 7
    s_cbranch_scc0 P2_NG
    s_mov_b64 exec, 1
    buffer_store_dword v{VP}, v{VF}, s[52:55], s7 offen sc1
    s_mov_b64 exec, -1
    P2_NG:
    """)
    stamp(10)
    P(poll('P2_PR', sTMP))
    stamp(11)
    def loads(base, so):
        for k in range(4):
            P(f's_add_u32 s3, s{so}, {k * 45056}\nbuffer_load_dwordx4 {vr(base + 4 * k, 4)}, v{VO}, s[16:19], s3 offen sc1')
    def reduce(base, va, so, left):
        for k in range(4):
            P(f's_waitcnt vmcnt({left + 3 - k})')
            for i in range(4):
                src = base + 4 * k + i; t = 16 if k == 0 else 24
                P(f'v_lshlrev_b32 v{t + 2 * i}, 16, v{src}\nv_and_b32 v{t + 1 + 2 * i}, s46, v{src}')
            if k:
                for i in range(8): P(f'v_add_f32 v{16 + i}, v{16 + i}, v{24 + i}')
        for i in range(4): P(f'v_cvt_pk_bf16_f32 v{base + i}, v{16 + 2 * i}, v{17 + 2 * i}')
        P(f'buffer_store_dwordx4 {vr(base, 4)}, v{va}, s[12:15], s{so} offen')
    P('s_mov_b32 s46, 0xffff0000')
    loads(32, 41)
    P(f's_cmp_lt_u32 s{sW}, s45\ns_cbranch_scc1 P2_R2')
    reduce(32, 6, 40, 0)
    P(f's_branch P2_RE\nP2_R2:\ns_add_u32 s41, s41, 8192')
    loads(48, 41)
    reduce(32, 6, 40, 4)
    reduce(48, 7, 42, 1)
    P('P2_RE:')
    if OPT['stamps']:
        P('s_waitcnt vmcnt(0)'); stamp(8)

def k1():
    P = Prog()
    O, S, CN, Q, PP, O9, Q9, S9, CN9, P9 = 0, 64, 96, 112, 144, 160, 192, 208, 212, 216
    L, L9, VOK, VOV, AK, AK9, AV9, TID = 218, 219, 220, 221, 222, 223, 224, 225
    VA = 226
    T0, T1, AL, AL9, X0, X1 = 230, 231, 232, 233, 234, 235
    FB = [236, 240, 244, 248, 252]
    ACC = [[0, 16, 32, 48], [64, 80, 144, 176]]; ACC9 = [[160, 164], [168, 172]]
    QW = [230, 231, 232, 233]; QX = [234, 235]; QX9, QW9, VOW, VOX, HOLD = 216, 217, 218, 219, 212
    QB, QB9 = [96, 100], 104
    QF = [112, 116, 120, 124, 128, 132, 136, 140, 236, 240]
    sW, sWP, sP, sB, sJ, sBR = 24, 25, 26, 27, 28, 29
    sCNT, sW0, sX, sMC, sIB, sDL = 30, 31, 33, 35, 36, 37
    sEX = 38
    sIK, sIK2 = 31, 33
    sIS, sSK, sSV, sDK, sDV, sT, sCL, sRARE, sTMP, sTM2, sMW, sKP, sVP, sE = 40, 41, 42, 43, 44, 45, 46, 47, 48, 49, 50, 51, 32, 34
    NSB = OPT['nsb']; STGS = 25600; STG0 = 163840 - NSB * STGS
    SB0 = (NSB - 18) % NSB
    QXCH, Q9B = 131072, 98304 + 16384
    nk, ntw = OPT['nt_kv'], OPT['nt_w']
    def stamp(k, at=None):
        if OPT['stamps'] == 3: return
        if OPT['stamps']:
            if at is not None: P(f's_cmp_lg_u32 s{sCNT}, {at}\ns_cbranch_scc1 K1_ST{k}_{len(P.ins)}'); lbl = P.ins[-1].target
            P(('s_memtime' if OPT['stamps'] == 2 else 's_memrealtime') + ' s[%d:%d]' % (70 + 2 * k, 71 + 2 * k))
            if at is not None: P(f'{lbl}:')
            if k == 1: P('s_memtime s[96:97]')
            if k == 4: P('s_memtime s[98:99]')
            if k == 2 and OPT['stamps'] == 1: P('s_memtime s[94:95]')
    P(f"""
    s_cmp_ge_u32 s2, 256
    s_cbranch_scc1 K1_END
    s_bfe_u32 s{sBR}, s2, 0x10002
    s_mul_i32 s6, s{sBR}, 40
    s_add_u32 s4, s0, s6
    s_addc_u32 s5, s1, 0
    s_load_dwordx8 s[56:63], s[4:5], 0
    s_load_dwordx4 s[64:67], s[0:1], 88
    s_load_dwordx2 s[68:69], s[0:1], 80
    s_load_dwordx2 s[100:101], s[4:5], 32
    """)
    if OPT['stamps']:
        for k in range(70, 100, 2): P(f's_mov_b64 s[{k}:{k + 1}], 0')
    stamp(0)
    P(f"""
    v_lshrrev_b32 v1, 6, v0
    v_and_b32 v{TID}, 63, v0
    v_readfirstlane_b32 s{sW}, v1
    v_lshrrev_b32 v2, 4, v{TID}
    v_and_b32 v3, 15, v{TID}
    s_and_b32 s3, s2, 3
    s_lshl_b32 s3, s3, 2
    s_bfe_u32 s7, s2, 0x20003
    s_add_u32 s{sJ}, s3, s7
    s_lshr_b32 s{sB}, s2, 5
    s_and_b32 s{sWP}, s{sW}, 3
    s_lshr_b32 s{sP}, s{sW}, 2
    v_lshlrev_b32 v4, 2, v2
    v_xor_b32 v4, v4, v3
    v_lshlrev_b32 v4, 4, v4
    v_lshl_add_u32 v{VOW}, v2, 13, v4
    v_lshrrev_b32 v8, 2, v{TID}
    v_and_b32 v9, 3, v{TID}
    v_xor_b32 v9, v9, v2
    v_mul_u32_u24 v8, 1152, v8
    v_lshl_add_u32 v{VOX}, v9, 4, v8
    s_lshl_b32 s3, s{sWP}, 2
    v_or_b32 v5, s3, v2
    v_xor_b32 v5, v5, v3
    v_lshlrev_b32 v5, 4, v5
    s_lshl_b32 s{sMW}, s{sWP}, 12
    v_lshl_add_u32 v5, v2, 8, v5
    v_add_u32 v{VOK}, s{sMW}, v5
    v_lshl_add_u32 v5, v2, 8, v4
    v_add_u32 v{VOV}, s{sMW}, v5
    s_lshl_b32 s{sW0}, s{sWP}, 16
    s_mul_i32 s{sX}, s{sWP}, 18432
    s_mul_i32 s{sMC}, s{sWP}, 3072
    s_lshl_b32 s3, s{sWP}, 4
    s_lshl_b64 s[{sEX}:{sEX + 1}], 0xffff, s3
    s_mul_i32 s6, s{sB}, 165888
    s_lshl_b32 s7, s{sJ}, 9
    s_mov_b32 s11, 0x20000
    s_mov_b32 s22, {165888 + 2048}
    s_mov_b32 s23, 0x20000
    s_sub_u32 s10, {576 * 8192}, s7
    s_mov_b32 s{sIB}, {STG0}
    s_lshl_b32 s{sTMP}, s{sB}, 5
    s_lshl_b32 s{sTM2}, s{sJ}, 1
    s_add_u32 s{sTMP}, s{sTMP}, s{sTM2}
    s_lshl_b32 s{sTMP}, s{sTMP}, 17
    s_mov_b32 s14, 262144
    s_mov_b32 s15, 0x20000
    s_mov_b32 s18, 262144
    s_mov_b32 s19, 0x20000
    s_mov_b32 s{sCNT}, 0
    s_cmp_ge_u32 s{sW}, 4
    s_waitcnt lgkmcnt(0)
    s_cbranch_scc1 K1_G1
    s_add_u32 s8, s62, s7
    s_addc_u32 s9, s63, 0
    s_add_u32 s20, s56, s6
    s_addc_u32 s21, s57, 0
    s_sub_u32 s20, s20, 2048
    s_subb_u32 s21, s21, 0
    """)
    kvsrd = f"""
    s_add_u32 s12, s58, s{sTMP}
    s_addc_u32 s13, s59, 0
    s_add_u32 s16, s60, s{sTMP}
    s_addc_u32 s17, s61, 0
    s_add_u32 s52, s66, {WS_FLAG}
    s_addc_u32 s53, s67, 0
    s_mov_b32 s54, 16384
    s_mov_b32 s55, 0x20000
    """
    lanec = f"""
    v_bfe_u32 v10, v{TID}, 2, 2
    v_and_b32 v11, 3, v{TID}
    v_lshrrev_b32 v12, 5, v{TID}
    v_and_b32 v13, 1, v2
    v_and_b32 v20, 1, v11
    v_lshrrev_b32 v15, 1, v11
    v_lshlrev_b32 v16, 2, v10
    v_lshl_add_u32 v17, v13, 1, v20
    v_xor_b32 v17, v17, v16
    v_lshlrev_b32 v17, 4, v17
    v_lshl_add_u32 v17, v15, 3, v17
    v_lshl_add_u32 v17, v10, 8, v17
    s_lshl_b32 s3, s{sP}, 14
    s_add_u32 s{sMW}, s{sMW}, s3
    s_add_u32 s6, s3, 65536
    v_lshl_add_u32 v18, v12, 10, v17
    v_add_u32 v{VA}, s6, v18
    v_xor_b32 v{VA + 1}, 64, v{VA}
    v_xor_b32 v{VA + 2}, 0x80, v{VA}
    v_xor_b32 v{VA + 3}, 0xc0, v{VA}
    v_bfe_u32 v23, v{TID}, 3, 2
    v_bfe_u32 v24, v{TID}, 2, 1
    v_lshl_add_u32 v25, v23, 2, v11
    v_xor_b32 v25, v25, v12
    v_lshlrev_b32 v25, 4, v25
    v_lshl_add_u32 v25, v11, 8, v25
    v_lshl_add_u32 v25, v24, 10, v25
    v_lshl_add_u32 v25, v23, 12, v25
    v_add_u32 v{AK}, s3, v25
    s_lshl_b32 s7, s{sWP}, 10
    s_add_u32 s6, s3, s7
    v_xor_b32 v25, v2, v3
    v_lshlrev_b32 v25, 4, v25
    v_lshl_add_u32 v25, v11, 8, v25
    v_lshl_add_u32 v25, v10, 12, v25
    v_add_u32 v{AK9}, s6, v25
    v_xor_b32 v25, v15, v16
    v_lshlrev_b32 v25, 4, v25
    v_lshl_add_u32 v25, v20, 3, v25
    v_lshl_add_u32 v25, v10, 8, v25
    v_lshl_add_u32 v25, v2, 12, v25
    s_add_u32 s6, s6, 65536
    s_lshl_b32 s7, s{sWP}, 6
    v_xor_b32 v25, s7, v25
    v_add_u32 v{AV9}, s6, v25
    v_mul_u32_u24 v26, 272, v3
    v_lshl_add_u32 v27, v2, 4, v26
    s_mul_i32 s6, s{sP}, 4352
    s_add_u32 s6, s6, {Q9B}
    v_add_u32 v{S9}, s6, v27
    v_lshlrev_b32 v27, 4, v{TID}
    s_lshl_b32 s6, s{sWP}, 13
    s_add_u32 s6, s6, {QXCH}
    v_add_u32 v{S9 + 1}, s6, v27
    """
    loopinit = f"""
    s_mov_b32 s{sCNT}, 1
    s_mov_b32 s{sKP}, 32768
    s_mov_b32 s{sVP}, 65536
    s_mov_b32 s{sDK}, 32768
    s_mov_b32 s{sDV}, 0
    s_mov_b32 s{sIS}, 131072
    s_mov_b32 s{sIK}, 0
    s_lshl_b32 s3, s{sP}, 17
    s_add_u32 s{sSV}, s3, 16384
    s_add_u32 s{sSK}, s3, 49152
    s_mov_b32 s{sCL}, 0xff800000
    s_mov_b32 s{sRARE}, 0
    """
    obase = f"""
    s_lshl_b32 s6, s{sBR}, 3
    s_add_u32 s6, s6, s{sB}
    s_mul_i32 s6, s6, 1179648
    s_mul_i32 s7, s{sWP}, {262144 - 4096}
    s_add_u32 s6, s6, s7
    s_lshl_b32 s7, s{sJ}, 1
    s_add_u32 s7, s7, s{sP}
    s_lshl_b32 s7, s7, 13
    s_add_u32 s6, s6, s7
    s_add_u32 s56, s66, s6
    s_addc_u32 s57, s67, 0
    """
    narrow = f's_lshl_b32 s14, s{sP}, 17\ns_add_u32 s14, s14, 131072\ns_mov_b32 s18, s14'
    getE = f'v_mov_b32 v{AL}, {Q9B + 8704}\nds_read_b32 v{AL}, v{AL}' if OPT['fused'] else ''
    getE2 = f'v_readfirstlane_b32 s{sE}, v{AL}' if OPT['fused'] else ''
    queue = []
    def vm(text, tag): P(text); queue.append(tag)
    def wait_for(tag):
        idx = max(i for i, t in enumerate(queue) if t == tag)
        P(f's_waitcnt vmcnt({min(63, len(queue) - 1 - idx)})')
    def stage(s):
        if OPT['nost'] and s >= 3: queue.append(('s', s)); return
        buf = STG0 + ((s + SB0) % NSB) * STGS
        for hd in range(2):
            P(f's_add_u32 m0, s{sMC}, {buf + hd * 12288}\ns_add_u32 s3, s{sW0}, {s * 262144 + hd * 256}')
            vm(f'buffer_load_dwordx4 v{VOW}, s[8:11], s3 offen {ntw} lds', ('s', s))
            P(f's_add_u32 s3, s3, {32768 - 1024}')
            vm(f'buffer_load_dwordx4 v{VOW}, s[8:11], s3 offen offset:1024 {ntw} lds', ('s', s))
            P(f's_add_u32 s3, s{sX}, {s * 64 + hd * 4 * 18432}')
            vm(f'buffer_load_dwordx4 v{VOX}, s[20:23], s3 offen offset:2048 {ntw} lds', ('s', s))
        P(f's_mov_b32 m0, {buf + 24576}\ns_mov_b32 s3, {s * 64 + 128 * 1152 + 2048}\ns_mov_b64 exec, s[{sEX}:{sEX + 1}]')
        vm(f'buffer_load_dwordx4 v{VOX}, s[20:23], s3 offen {ntw} lds', ('s', s))
        P('s_mov_b64 exec, -1')
    VTW, VTX, sTW, sTX = 232, 233, 45, 46
    def touch(s):
        if s >= 18 or not OPT['tlead']: return
        P(f's_add_u32 s3, s{sTW}, {s * 262144}\ns_add_u32 s6, s{sTX}, {s * 64}\ns_mov_b64 exec, 0x1ff')
        vm(f'buffer_load_dword v{X0}, v{VTW}, s[8:11], s3 offen {ntw}', ('t', s))
        vm(f'buffer_load_dword v{X1}, v{VTX}, s[20:23], s6 offen {ntw}', ('t', s))
        P('s_mov_b64 exec, -1')
    def ltouch():
        TR = OPT['trows']
        P(f"""
        v_lshrrev_b32 v{VTW}, 3, v{TID}
        v_and_b32 v{VTX}, 7, v{TID}
        v_lshlrev_b32 v{VTX}, 6, v{VTX}
        v_lshl_add_u32 v{VTW}, v{VTW}, 13, v{VTX}
        v_lshlrev_b32 v{VTX}, 6, v{TID}
        s_lshl_b32 s3, s{sB}, 2
        s_add_u32 s3, s3, s{sWP}
        s_mul_i32 s3, s3, {TR * 8192}
        s_add_u32 s3, s3, {(576 - 32 * TR) * 8192}
        s_bfe_u32 s6, s2, 0x20003
        s_lshl_b32 s6, s6, 2
        s_add_u32 s6, s6, s{sWP}
        s_mul_i32 s6, s6, {162 * 64}
        s_add_u32 s6, s6, 2048
        """)
        tw = [(i, min(8, TR - 8 * i) * 8) for i in range((TR + 7) // 8)]; tx = [(0, 64), (1, 64), (2, 34)]
        for i in range(3):
            for (lst, v, srd, so, step) in ((tw, VTW, 8, 3, 8 * 8192), (tx, VTX, 20, 6, 4096)):
                if i >= len(lst): continue
                n = lst[i][1]
                if n < 64: P(f's_mov_b64 exec, {hex((1 << n) - 1)}' if n <= 31 else f's_mov_b32 exec_hi, {(1 << (n - 32)) - 1}')
                vm(f'buffer_load_dword v{X0}, v{v}, s[{srd}:{srd + 3}], s{so} offen {ntw}', ('t', 0))
                if n < 64: P('s_mov_b64 exec, -1')
                P(f's_add_u32 s{so}, s{so}, {step}')
    def otouch():
        P(f"""
        s_lshl_b32 s6, s{sBR}, 3
        s_add_u32 s6, s6, s{sB}
        s_mul_i32 s6, s6, 1179648
        s_add_u32 s56, s66, s6
        s_addc_u32 s57, s67, 0
        s_mov_b32 s58, 1179648
        s_mov_b32 s59, 0x20000
        v_lshlrev_b32 v{VTW}, 7, v{TID}
        s_lshl_b32 s3, s{sWP}, 18
        s_lshl_b32 s6, s{sJ}, 14
        s_add_u32 s3, s3, s6
        """)
        vm(f'buffer_load_dword v{X0}, v{VTW}, s[56:59], s3 offen', ('t', 1))
        P('s_add_u32 s3, s3, 8192')
        vm(f'buffer_load_dword v{X0}, v{VTW}, s[56:59], s3 offen', ('t', 1))
        P(f's_lshl_b32 s3, s{sJ}, 13\ns_lshl_b32 s6, s{sWP}, 11\ns_add_u32 s3, s3, s6\ns_add_u32 s3, s3, {1 << 20}\ns_mov_b64 exec, 0xffff')
        vm(f'buffer_load_dword v{X0}, v{VTW}, s[56:59], s3 offen', ('t', 1))
        P('s_mov_b64 exec, -1')
    PRE = {(0, 0): [64, 68, 72, 76], (0, 1): [80, 84, 88, 92], (1, 0): [112, 116, 120, 124], (1, 1): [128, 132, 136, 140],
           (2, 0): [192, 196, 200, 204], (2, 1): [236, 240, 244, 248], (3, 0): [96, 100, 104, 252], (3, 1): [144, 148, 152, 156]}
    SRC = {0: (VOK, 12, 0), 1: (VOK, 12, 16384), 2: (VOV, 16, 0), 3: (VOK, 12, 32768)}
    FREE = {(0, 0): 0 if NSB <= 5 else 13, (0, 1): 0 if NSB <= 5 else 13, (1, 0): 15, (1, 1): 15, (2, 0): 16, (2, 1): 16, (3, 0): 17, (3, 1): 19}
    inreg = set()
    def kvload(step, u, hd, n):
        if OPT['nokv'] & 1: return
        vo, srd, off = SRC[u]
        P(f's_mov_b32 s3, {hd * 131072 + off}')
        if step >= FREE[u, hd]:
            P(f's_add_u32 m0, s{sMW}, {u * 32768 + hd * 16384}\ns_nop 0')
            vm(f'buffer_load_dwordx4 v{vo}, s[{srd}:{srd + 3}], s3 offen offset:{n * 1024} {nk} lds', ('k', u))
        else:
            vm(f'buffer_load_dwordx4 {vr(PRE[u, hd][n], 4)}, v{vo}, s[{srd}:{srd + 3}], s3 offen offset:{n * 1024} {nk}', ('r', u, hd)); inreg.add((u, hd, n))
    def kvdump(step):
        if OPT['nokv'] & 2: return
        for (u, hd), f in FREE.items():
            ns = [n for n in range(4) if (u, hd, n) in inreg]
            if f != step or not ns: continue
            wait_for(('r', u, hd))
            base = u * 32768 + hd * 16384
            for n in ns: P(f'ds_write_b128 v{[T0, T1][base >> 16]}, {vr(PRE[u, hd][n], 4)} offset:{(base & 0xffff) + n * 1024}')
    kvq = [(u, hd, n) for u in range(4) for hd in range(2) for n in range(4)]
    npre, dist = OPT['npre'], OPT['dist']
    sched = [int(c, 36) for c in str(OPT['kvs'])] + [0] * 30
    assert sum(sched) == 32 and dist <= NSB - 1 and npre <= NSB
    nxt = 0
    for s in range(npre): stage(s); nxt += 1
    if OPT['tlead']:
        P(f"""
        v_lshlrev_b32 v{VTW}, 6, v{TID}
        v_mul_u32_u24 v{VTX}, 1152, v{TID}
        s_lshl_b32 s{sTW}, s{sB}, 2
        s_add_u32 s{sTW}, s{sTW}, s{sWP}
        s_lshl_b32 s{sTW}, s{sTW}, 13
        s_bfe_u32 s{sTX}, s2, 0x20003
        s_lshl_b32 s{sTX}, s{sTX}, 2
        s_add_u32 s{sTX}, s{sTX}, s{sWP}
        s_mul_i32 s{sTX}, s{sTX}, {9 * 1152}
        s_add_u32 s{sTX}, s{sTX}, 2048
        """)
        for s in range(npre, dist + OPT['tlead']): touch(s)
    if OPT['ts'] == -1: ltouch()
    later = [kvsrd] + [f'v_lshlrev_b32 v{T0}, 4, v{TID}\nv_add_u32 v{T0}, s{sMW}, v{T0}\nv_add_u32 v{T1}, 0x10000, v{T0}', lanec]
    zs = list(range(108, 112)) + list(range(O9, O9 + 32)) + list(range(CN9, CN9 + 4)) + list(range(63, -1, -1))
    later += ['\n'.join(f'v_mov_b32 v{r}, 0' for r in zs[i:i + 26]) for i in range(0, len(zs), 26)]
    P(later.pop(0))
    for s in range(19):
        if OPT['stamps'] == 2 and s == OPT['sq']: stamp(5)
        if OPT['stamps'] == 2 and s == OPT['sq'] + 1: stamp(6)
        if OPT['stamps'] == 3 and OPT['sq'] == 99 and 1 <= s <= 5: P(f's_memtime s[{70 + 6 * s - 4}:{71 + 6 * s - 4}]')
        if s < 18: wait_for(('s', s))
        if OPT['stamps'] == 3 and OPT['sq'] == 99 and 1 <= s <= 4: P(f's_memtime s[{70 + 6 * s - 2}:{71 + 6 * s - 2}]')
        if OPT['stamps'] == 2 and s == OPT['sq']: stamp(3)
        P('s_barrier')
        if OPT['stamps'] == 2 and s == OPT['sq']: stamp(2)
        if s == 0: stamp(1)
        S3 = [0, 1, 2, 3, 4, 5, 6, 8, 10, 12, 13, 14, 15, 16, 18]
        if OPT['stamps'] == 3 and OPT['sq'] == 99:
            if s <= 4: P(f's_memtime s[{70 + 6 * s}:{71 + 6 * s}]')
        elif OPT['stamps'] == 3 and s in S3: P(f's_memtime s[{70 + 2 * S3.index(s)}:{71 + 2 * S3.index(s)}]')
        if OPT['sp']:
            for _ in range(int((str(OPT['sp']) + '0' * 20)[s])):
                assert nxt <= s + NSB - 1
                stage(nxt); nxt += 1
            if OPT['ts'] == s: ltouch()
            if OPT['ot'] == s: otouch()
        n = 0
        while not OPT['sp'] and nxt < 18 and nxt <= s + dist and n < 2: stage(nxt); nxt += 1; n += 1
        touch(s + dist + OPT['tlead'])
        kvdump(s)
        for _ in range(sched[s]): kvload(s, *kvq.pop(0))
        if later: P(later.pop(0))
    assert nxt == 18 and not later
    for r in list(range(96, 108)) + [L, L9]: P(f'v_mov_b32 v{r}, 0')
    P(loopinit)
    if OPT['stamps'] == 1: stamp(2)
    if ('k', 0) in queue: wait_for(('k', 0))
    P('s_barrier')
    P(getE)
    for kk in range(8): P(f'ds_read_b128 {vr(Q + 4 * kk, 4)}, v{S9 + 1} offset:{kk * 1024}')
    for kk in range(4): P(f'ds_read_b128 {vr(Q9 + 4 * kk, 4)}, v{S9} offset:{kk * 64}')
    P('s_barrier')
    P(getE2)
    kvdump(19)
    for _ in range(sched[19]): kvload(19, *kvq.pop(0))
    assert not kvq
    P(narrow)
    after = lambda u: (len(queue) - 1 - max(i for i, t in enumerate(queue) if t == ('k', u))) if ('k', u) in queue else 60
    X1N = min(63, after(1) + 4)
    P('s_branch K1_HEAD')
    P('K1_G1:')
    P(kvsrd)
    if OPT['fused']:
        P(f"""
                v_mov_b32 v246, 0
        s_cmp_eq_u32 s{sW}, 4
        s_cbranch_scc0 K1_E0
        buffer_load_dword v244, v246, s[52:55], 0 offen sc1
        K1_E0:
        """)
    def touches():
        P(f"""
        s_lshl_b32 s7, s{sJ}, 9
        s_mul_i32 s6, s{sB}, 165888
        s_add_u32 s8, s62, s7
        s_addc_u32 s9, s63, 0
        s_add_u32 s20, s56, s6
        s_addc_u32 s21, s57, 0
        s_mov_b32 s22, 165888
        v_lshrrev_b32 v28, 3, v{TID}
        v_and_b32 v29, 7, v{TID}
        v_lshlrev_b32 v29, 6, v29
        v_lshl_add_u32 v28, v28, 13, v29
        v_lshlrev_b32 v29, 6, v{TID}
        s_lshl_b32 s3, s{sB}, 2
        s_add_u32 s3, s3, s{sWP}
        s_mul_i32 s3, s3, {TR * 8192}
        s_add_u32 s3, s3, {(576 - 32 * TR) * 8192}
        s_bfe_u32 s6, s2, 0x20003
        s_lshl_b32 s6, s6, 2
        s_add_u32 s6, s6, s{sWP}
        s_mul_i32 s6, s6, {162 * 64}
        """)
        tw = [(i, min(8, TR - 8 * i) * 8) for i in range((TR + 7) // 8)]; tx = [(0, 64), (1, 64), (2, 34)]
        k = 0
        for i in range(3):
            for (lst, v, srd, so, step) in ((tw, 28, 8, 3, 8 * 8192), (tx, 29, 20, 6, 4096)):
                if i >= len(lst): continue
                n = lst[i][1]
                if n < 64: P(f's_mov_b64 exec, {hex((1 << n) - 1)}' if n <= 31 else f's_mov_b32 exec_hi, {(1 << (n - 32)) - 1}')
                P(f'buffer_load_dword v{248 + k}, v{v}, s[{srd}:{srd + 3}], s{so} offen {ntw}'); k += 1
                if n < 64: P('s_mov_b64 exec, -1')
                P(f's_add_u32 s{so}, s{so}, {step}')
        return k
    def ptouch():
        pg = OPT['ptouch']
        P(f"""
        s_lshl_b32 s7, s{sJ}, 9
        s_mul_i32 s6, s{sB}, 165888
        s_add_u32 s8, s62, s7
        s_addc_u32 s9, s63, 0
        s_add_u32 s20, s56, s6
        s_addc_u32 s21, s57, 0
        s_mov_b32 s22, 165888
        v_lshlrev_b32 v28, 16, v{TID}
        s_lshl_b32 s3, s{sWP}, 20
        s_add_u32 s3, s3, {65536 * 4}
        s_mov_b64 exec, 0xffff
        buffer_load_dword v248, v28, s[8:11], s3 offen
        s_mov_b64 exec, 0xf
        s_mov_b32 s3, {65536 * 68}
        s_cmp_eq_u32 s{sWP}, 0
        s_cbranch_scc0 K1_PT1
        buffer_load_dword v249, v28, s[8:11], s3 offen
        buffer_load_dword v250, v28, s[20:23], 0 offen
        s_branch K1_PT2
        K1_PT1:
        buffer_load_dword v249, v28, s[12:15], 0 offen {nk}
        buffer_load_dword v250, v28, s[16:19], 0 offen {nk}
        K1_PT2:
        s_mov_b64 exec, -1
        """)
    TR = OPT['trows']
    NT = (TR + 7) // 8 + 3
    if OPT['ctouch']:
        P(f"""
        s_cmp_eq_u32 s{sW}, 5
        s_cbranch_scc0 K1_CT
        s_getpc_b64 s[6:7]
        K1_PC:
        s_sub_u32 s6, s6, @PCOFF@
        s_subb_u32 s7, s7, 0
        v_lshlrev_b32 v28, 7, v{TID}
        v_mov_b32 v31, s7
        """)
        for k in range(OPT['ctouch']):
            P(f"""
            v_min_u32 v29, @CODELEN@, v28
            v_add_co_u32 v30, vcc, s6, v29
            v_addc_co_u32 v31, vcc, 0, v31, vcc
            global_load_dword v{252 + k % 4}, v[30:31], off
            v_mov_b32 v31, s7
            v_add_u32 v28, 8192, v28
            """)
        P('K1_CT:')
    if OPT['wtouch'] == 1: touches()
    if OPT['ptouch']: ptouch(); NT = 3
    P(lanec)
    if OPT['wtouch'] == 2: touches()
    P(f"""
    v_mul_u32_u24 v18, 3072, v12
    v_add_u32 v18, {STG0 + SB0 * STGS}, v18
    v_add_u32 v{QW[0]}, v17, v18
    v_xor_b32 v{QW[1]}, 64, v{QW[0]}
    v_xor_b32 v{QW[2]}, 0x80, v{QW[0]}
    v_xor_b32 v{QW[3]}, 0xc0, v{QW[0]}
    s_lshl_b32 s6, s{sWP}, 2
    v_add_u32 v18, s6, v15
    v_xor_b32 v18, v18, v16
    v_lshlrev_b32 v18, 4, v18
    v_lshl_add_u32 v18, v20, 3, v18
    v_lshl_add_u32 v18, v10, 8, v18
    v_mul_u32_u24 v19, 3072, v2
    v_add_u32 v19, {STG0 + SB0 * STGS}, v19
    v_add_u32 v{QW9}, v18, v19
    v_xor_b32 v22, v12, v10
    v_lshlrev_b32 v22, 4, v22
    v_lshl_add_u32 v22, v3, 6, v22
    v_mul_u32_u24 v19, 3072, v13
    s_mul_i32 s6, s{sWP}, 6144
    s_add_u32 s6, s6, {STG0 + SB0 * STGS + 2048}
    v_add3_u32 v{QX[0]}, v22, v19, s6
    v_xor_b32 v{QX[1]}, 32, v{QX[0]}
    v_xor_b32 v22, v2, v10
    v_lshlrev_b32 v22, 4, v22
    v_lshl_add_u32 v22, v3, 6, v22
    v_add_u32 v{QX9}, {STG0 + SB0 * STGS + 24576}, v22
    v_lshl_add_u32 v27, v2, 3, v26
    s_lshl_b32 s6, s{sWP}, 6
    s_add_u32 s6, s6, {Q9B}
    v_add_u32 v{S9 + 2}, s6, v27
    """)
    z = list(range(CN9, CN9 + 4)) + list(range(108, 112)) + [L, L9]
    for hd in range(2):
        for a in ACC[hd]: z += list(range(a, a + 16))
        for a in ACC9[hd]: z += list(range(a, a + 4))
    for r in z: P(f'v_mov_b32 v{r}, 0')
    if OPT['fused']:
        P(f"""
        s_cmp_eq_u32 s{sW}, 4
        s_cbranch_scc0 K1_E1
        s_mov_b32 s8, s64
        s_mov_b32 s9, s65
        s_mov_b32 s10, 256
        s_waitcnt vmcnt({NT if OPT['wtouch'] or OPT['ptouch'] else 0})
        v_add_u32 v244, 1, v244
        v_max_u32 v244, 1, v244
        v_mov_b32 v245, 0
        v_mov_b32 v247, v244
        s_mov_b64 exec, 1
        buffer_atomic_cmpswap v[244:245], v246, s[8:11], 0 offen sc0
        s_mov_b64 exec, -1
        K1_E1:
        """)
    P(f's_mov_b32 s{sIB}, {SB0}\ns_barrier')
    stamp(1)
    qit = []
    def qmain(kk, hd, dt):
        return (lambda F: [f'ds_read_b64_tr_b16 {vr(F + 2 * j, 2)}, v{QW[dt]} offset:{hd * 12288 + kk * 6144 + j * 1024}' for j in range(2)],
                lambda F: mf32(ACC[hd][dt], F, QB[kk]))
    def q9(hd, t):
        return (lambda F: [f'ds_read_b64_tr_b16 {vr(F + 2 * j, 2)}, v{QW9} offset:{hd * 12288 + t * 32 + j * 1024}' for j in range(2)],
                lambda F: mf16(ACC9[hd][t], F, QB9))
    qit = [qmain(0, hd, dt) for hd in range(2) for dt in range(4)] + [q9(hd, t) for hd in range(2) for t in range(2)] + [qmain(1, hd, dt) for hd in range(2) for dt in range(4)]
    nq = len(QF); NQ = len(qit); QD = OPT['qdelay']
    qrd = lambda i: qit[i % NQ][0](QF[i % nq])
    bheads = [f'ds_read_b128 {vr(QB[0], 4)}, v{QX[0]}', f'ds_read_b128 {vr(QB9, 4)}, v{QX9}']
    upd = [f'v_add_u32 v{r}, s{sDL}, v{r}' for r in QW + QX + [QX9, QW9]]
    P(bheads[0])
    for i in range(nq):
        P.extend(qrd(i))
        if i == 3: P(bheads[1])
    def qmf(i):
        m = qit[i][1](QF[i % nq])
        if i % 2 == 0 and i + 1 < NQ: m += f' ; need {vr(QF[(i + 1) % nq], 4)}'
        return m
    cut = NQ - nq + QD + 1
    P('s_branch K1_QM\nK1_QL:\ns_barrier')
    if OPT['stamps'] == 2: stamp(2, OPT['sq'])
    qpend = [bheads[0]] + [x for jj in range(QD + 1) for x in qrd(jj)]
    for i in range(cut, NQ):
        P(qmf(i))
        qpend += qrd(i + nq)
        if i == NQ - 2: qpend.append(bheads[1])
        n = len(qpend) if i == NQ - 1 else 4
        P.extend(qpend[:n]); qpend = qpend[n:]
    P('K1_QM:')
    if OPT['stamps'] == 1 and not OPT['fused']: stamp(5, 3); stamp(6, 6); stamp(9, 9); stamp(10, 12)
    if OPT['stamps'] == 2: stamp(5, OPT['sq'] - 1); stamp(6, OPT['sq'])
    for i in range(cut):
        P(qmf(i))
        if i + nq < NQ: P.extend(qrd(i + nq))
        if i == 0: P(f'ds_read_b128 {vr(QB[1], 4)}, v{QX[1]}')
        if OPT['qnop'] and i % 2 == 1: P(f's_nop {OPT["qnop"]}')
        if i == 2: P(f's_cmp_eq_u32 s{sIB}, {NSB - 1}\ns_cselect_b32 s{sDL}, {-(NSB - 1) * STGS & 0xffffffff}, {STGS}')
        if i == 4: P(f's_add_u32 s{sIB}, s{sIB}, 1\ns_cmp_eq_u32 s{sIB}, {NSB}\ns_cselect_b32 s{sIB}, 0, s{sIB}')
        if i == 10: P.extend(upd[:4])
        if i == 11:
            P.extend(upd[4:])
            if OPT['stamps'] == 2: stamp(3, OPT['sq'] - 1)
            P(f's_add_u32 s{sCNT}, s{sCNT}, 1\ns_cmp_lt_u32 s{sCNT}, 18')
    P('s_cbranch_scc1 K1_QL\ns_barrier')
    for i in range(cut, NQ): P(qmf(i))
    if OPT['stamps'] == 1: stamp(2)
    P(f's_mov_b32 s6, {CSCALE}')
    for hd in range(2):
        for t in range(2):
            a = ACC9[hd][t]
            for i in range(4): P(f'v_mul_f32 v{a + i}, s6, v{a + i}')
            P(f'v_cvt_pk_bf16_f32 v{a}, v{a}, v{a + 1}\nv_cvt_pk_bf16_f32 v{a + 1}, v{a + 2}, v{a + 3}')
            P(f'ds_write_b64 v{S9 + 2}, {vr(a, 2)} offset:{hd * 4352 + t * 32}')
    for dt in [0, 1, 2, 3]:
        a = ACC[0][dt]
        for i in range(16): P(f'v_mul_f32 v{a + i}, s6, v{a + i}')
        for hf in range(2):
            for i in range(4): P(f'v_cvt_pk_bf16_f32 v{a + 8 * hf + i}, v{a + 8 * hf + 2 * i}, v{a + 8 * hf + 2 * i + 1}')
            P(f'ds_write_b128 v{S9 + 1}, {vr(a + 8 * hf, 4)} offset:{(2 * dt + hf) * 1024}')
    P('s_waitcnt vmcnt(0)')
    if OPT['fused']:
        P(f"""
        s_cmp_eq_u32 s{sW}, 4
        s_cbranch_scc0 K1_E2
        s_waitcnt vmcnt(0)
        v_cmp_eq_u32 vcc, 0, v244
        v_mov_b32 v246, {Q9B + 8704}
        s_mov_b64 exec, 1
        v_cndmask_b32 v244, v244, v247, vcc
        ds_write_b32 v246, v244
        s_getreg_b32 s3, hwreg(HW_REG_XCC_ID, 0, 4)
        v_lshl_add_u32 v245, v244, 4, s3
        s_and_b32 s3, s2, 7
        s_lshl_b32 s3, s3, 3
        s_add_u32 s3, s3, s{sB}
        s_lshl_b32 s3, s3, 5
        s_and_b32 s7, s{sJ}, 3
        s_add_u32 s3, s3, s7
        s_lshl_b32 s3, s3, 2
        v_mov_b32 v246, s3
        buffer_store_dword v245, v246, s[52:55], 0 offen offset:32 sc1
        s_mov_b64 exec, -1
        K1_E2:
        """)
    P(loopinit); P(narrow)
    P('s_barrier')
    P(getE)
    for kk in range(4): P(f'ds_read_b128 {vr(Q9 + 4 * kk, 4)}, v{S9} offset:{kk * 64}')
    for i in range(16): P(f'v_mul_f32 v{ACC[1][0] + i}, s6, v{ACC[1][0] + i}')
    P('s_barrier')
    P(getE2)
    for dt in range(4):
        a = ACC[1][dt]
        if dt:
            for i in range(16): P(f'v_mul_f32 v{a + i}, s6, v{a + i}')
        for i in range(8): P(f'v_cvt_pk_bf16_f32 v{Q + dt * 8 + i}, v{a + 2 * i}, v{a + 2 * i + 1}')
    for r in list(range(O, O + 64)) + list(range(CN, CN + 12)) + list(range(O9, O9 + 32)): P(f'v_mov_b32 v{r}, 0')
    P('s_barrier\nK1_HEAD:')

    def dma_sites(vo, srd, so, mb):
        out = []
        for n in range(4):
            g = [f's_add_u32 m0, s{mb}, s{sMW}', 's_nop 0'] if n == 0 else []
            g.append(f'buffer_load_dwordx4 v{vo}, s[{srd}:{srd + 3}], s{so} offen offset:{n * 1024} {nk} lds')
            if n == 3: g.append(f's_add_u32 s{so}, s{so}, 16384')
            out.append(g)
        return out
    dmaV = dma_sites(VOV, 16, sSV, sIS); dmaK = dma_sites(VOK, 12, sSK, sIK)
    pre = OPT['opre'] == 1
    book = f"""s_cmp_lt_u32 s{sCNT}, {8 if pre else 7}
    s_cselect_b32 s{sIS}, s{sKP}, 0x30000
    s_add_u32 s{sKP}, s{sKP}, 65536
    s_cmp_ge_u32 s{sKP}, 163840
    s_cselect_b32 s3, 163840, 0
    s_sub_u32 s{sKP}, s{sKP}, s3
    s_sub_u32 s{sDK}, 65536, s3
    s_cmp_lt_u32 s{sCNT}, 5
    s_cselect_b32 s{sIK}, s{sVP}, 0x30000
    s_add_u32 s{sVP}, s{sVP}, 65536
    s_cmp_ge_u32 s{sVP}, 163840
    s_cselect_b32 s3, 163840, 0
    s_sub_u32 s{sVP}, s{sVP}, s3
    s_sub_u32 s{sDV}, 65536, s3""".split('\n')
    book2 = f"""s_cmp_eq_u32 s{sCNT}, 6
    s_cselect_b32 s{sIK}, s6, s{sIK}
    s_cselect_b32 s12, s56, s12
    s_cselect_b32 s13, s57, s13
    s_cselect_b32 s14, 20480, s14
    s_cselect_b32 s{sSK}, 0, s{sSK}
    s_cmp_eq_u32 s{sCNT}, 7
    s_cselect_b32 s16, s56, s16
    s_cselect_b32 s17, s57, s17
    s_cselect_b32 s18, 20480, s18
    s_cselect_b32 s{sSV}, 4096, s{sSV}""".split('\n') if pre else []
    if pre: book.insert(7, f's_mov_b32 s6, s{sVP}')
    vupd = [f'v_add_u32 v{VA + i}, s{sDV}, v{VA + i}' for i in range(4)] + [f'v_add_u32 v{AV9}, s{sDV}, v{AV9}']
    kupd = [f'v_add_u32 v{AK}, s{sDK}, v{AK}', f'v_add_u32 v{AK9}, s{sDK}, v{AK9}']
    def kmain(kk, mt):
        tmp = [T0, T1][kk & 1]
        pre = [f'v_xor_b32 v{tmp}, {kk << 5}, v{AK}'] if (mt == 0 and kk) else []
        ad = tmp if kk else AK
        return dict(rd=lambda F: pre + [f'ds_read_b128 {vr(F, 4)}, v{ad} offset:{mt * 2048}'],
                    mf=lambda F: [mf32(S + 16 * mt, F, Q + 4 * kk, CN if kk == 0 else None)], w=32)
    def k9(kk):
        pre = [f'v_xor_b32 v{X0}, {kk << 6}, v{AK9}'] if kk else []
        ad = X0 if kk else AK9
        return dict(rd=lambda F: pre + [f'ds_read_b128 {vr(F, 4)}, v{ad}'],
                    mf=lambda F: [mf16(S9, F, Q9 + 4 * kk, CN9 if kk == 0 else None)], w=16)
    def vmain(ks, dt):
        mt, u = ks >> 1, ks & 1
        return dict(rd=lambda F: [f'ds_read_b64_tr_b16 {vr(F + 2 * j, 2)}, v{VA + dt} offset:{u * 8192 + j * 4096 + mt * 2048}' for j in range(2)],
                    mf=lambda F: [mf32(O + 16 * dt, F, PP + 4 * ks)], w=32)
    def v9(pp):
        pre = [f'v_xor_b32 v{X1}, {pp << 6}, v{AV9}'] if pp else []
        ad = X1 if pp else AV9
        return dict(rd=lambda F: pre + [f'ds_read_b64_tr_b16 {vr(F + 2 * j, 2)}, v{ad} offset:{32 * j}' for j in range(2)],
                    mf=lambda F: [mf16h(O9 + 4 * (2 * pp + j), F + 2 * j, P9) for j in range(2)], w=32)
    itA = []
    for kk in range(8):
        itA += [kmain(kk, 0), kmain(kk, 1)]
        if 1 <= kk <= 4: itA.append(k9(kk - 1))
    itC = []
    for dt in range(4): itC += [vmain(0, dt), v9(dt)]
    for ks in range(1, 4): itC += [vmain(ks, dt) for dt in range(4)]
    lastP = {0: 6, 1: 11, 2: 15, 3: 19, 9: 7}
    nb = len(FB); items = itA + itC; N = len(items); nA = len(itA)
    assert N % nb == 0 and nA % nb == 0
    RD = lambda i: items[i % N]['rd'](FB[i % nb])
    DL = OPT['bdelay']
    def MF(i, pair=True):
        m = items[i]['mf'](FB[i % nb])
        if pair and OPT['pairw'] and i % 2 == 0 and (i + 1) % nA != 0: m[0] += f' ; need {vr(FB[(i + 1) % nb], 4)}'
        return m
    def sync(wait='vmcnt(12)'): return [f's_waitcnt {wait}', 's_barrier']
    def gsync(lbl, group0, wait):
        return [f's_cmp_lt_u32 s{sW}, 4', f's_cbranch_scc{0 if group0 else 1} {lbl}', f's_waitcnt {wait}', 's_barrier', f'{lbl}:']
    DS = OPT['dstep']
    mx = [f'v_max3_f32 v{T1}, v{S9}, v{S9 + 1}, v{S9 + 2}', f'v_max_f32 v{T1}, v{T1}, v{S9 + 3}', f'v_max3_f32 v{T0}, v{S}, v{S + 1}, v{S + 2}']
    mx += [f'v_max3_f32 v{T0}, v{T0}, v{S + 3 + 2 * i}, v{S + 4 + 2 * i}' for i in range(6)]
    mx += [f'v_max3_f32 v{X0}, v{S + 16}, v{S + 17}, v{S + 18}']
    mx += [f'v_max3_f32 v{X0}, v{X0}, v{S + 19 + 2 * i}, v{S + 20 + 2 * i}' for i in range(6)]
    mx += [f'v_max3_f32 v{X0}, v{X0}, v{S + 15}, v{S + 31}', f'v_max_f32 v{T0}, v{T0}, v{X0}', f'v_max_f32 v{X0}, v{T0}, v{T1}', f'v_cmp_lt_f32 vcc, s{sT}, v{X0}']
    fill = []
    for ks in range(4):
        b = S + 8 * ks
        for i in range(0, 8, 2):
            fill += [(0, f'v_exp_f32 v{b + i}, v{b + i}'), (0, f'v_exp_f32 v{b + i + 1}, v{b + i + 1}')]
            if i: fill += [(0, f'v_add_f32 v{L}, v{L}, v{b + i - 2}'), (0, f'v_add_f32 v{L}, v{L}, v{b + i - 1}')]
        if ks == 0: fill += [(0, f'v_exp_f32 v{S9 + i}, v{S9 + i}') for i in range(4)]
        fill += [(0, f'v_add_f32 v{L}, v{L}, v{b + 6}'), (0, f'v_add_f32 v{L}, v{L}, v{b + 7}')]
        if ks == 0: fill += [(0, f'v_add_f32 v{L9}, v{L9}, v{S9 + i}') for i in range(4)]
        fill += [(lastP[ks], f'v_cvt_pk_bf16_f32 v{PP + 4 * ks + i}, v{b + 2 * i}, v{b + 2 * i + 1}') for i in range(4)]
        if ks == 0: fill += [(lastP[9], f'v_cvt_pk_bf16_f32 v{P9 + i}, v{S9 + 2 * i}, v{S9 + 2 * i + 1}') for i in range(2)]
    wosrd = f"""
    s_and_b32 s6, s2, 3
    s_mul_i32 s6, s6, {1024 * 1152}
    s_add_u32 s8, s100, s6
    s_addc_u32 s9, s101, 0
    s_sub_u32 s8, s8, 3072
    s_subb_u32 s9, s9, 0
    s_sub_u32 s10, {4096 * 1152 + 3072}, s6
    s_mov_b32 s11, 0x20000
    """
    def wotouch(drop):
        d1, d2, sfx = ('', '', 'lds') if drop else (f'v{Q + 1}, ', f'v{Q + 2}, ', '')
        va = X0 if drop else Q
        return f"""
    s_lshr_b32 s6, s2, 3
    s_lshl_b32 s6, s6, 3
    s_add_u32 s6, s6, s{sW}
    s_mul_i32 s6, s6, {36 * 128}
    s_add_u32 s6, s6, 3072
    {f's_add_u32 m0, s{sIS}, s{sMW}' if drop else ''}
    v_lshlrev_b32 v{va}, 6, v{TID}
    buffer_load_dword {d1}v{va}, s[8:11], s6 offen {OPT['nt_wo']} {sfx}
    s_add_u32 s6, s6, 4096
    s_mov_b64 exec, 0xff
    buffer_load_dword {d2}v{va}, s[8:11], s6 offen {OPT['nt_wo']} {sfx}
    s_mov_b64 exec, -1
    """
    if OPT['wot'] >= 2: P(wosrd)
    if OPT['opre'] == 1: P(obase)
    if OPT['opre'] >= 2:
        P(f"""
        s_lshl_b32 s6, s{sBR}, 3
        s_add_u32 s6, s6, s{sB}
        s_mul_i32 s6, s6, 1179648
        s_add_u32 s56, s66, s6
        s_addc_u32 s57, s67, 0
        s_mov_b32 s58, 1179648
        s_mov_b32 s59, 0x20000
        """)
    opre2 = f"""
    s_cmp_lg_u32 s{sCNT}, {OPT['opre']}
    s_cbranch_scc1 K1_OP
    s_add_u32 m0, s{sIS}, s{sMW}
    s_lshl_b32 s6, s{sJ}, 1
    s_add_u32 s6, s6, s{sP}
    s_lshl_b32 s7, s6, 13
    s_lshl_b32 s3, s{sWP}, 18
    s_add_u32 s7, s7, s3
    v_lshlrev_b32 v{X0}, 7, v{TID}
    buffer_load_dword v{X0}, s[56:59], s7 offen lds
    s_lshl_b32 s6, s6, 12
    s_lshl_b32 s7, s{sWP}, 10
    s_add_u32 s6, s6, s7
    s_add_u32 s6, s6, {1 << 20}
    s_mov_b64 exec, 0xff
    buffer_load_dword v{X0}, s[56:59], s6 offen lds
    s_mov_b64 exec, -1
    K1_OP:
    """
    if OPT['wot'] == 2: P(wotouch(True))
    for i in range(nb): P.extend(RD(i))
    if OPT['stamps'] == 1: stamp(7)
    for i in range(nA):
        P.extend(MF(i))
        if i + nb < nA: P.extend(RD(i + nb))
        if i + nb - nA == DL: P.extend(sync('vmcnt(63)'))
        if i in (1, 3, 5, 7): P.extend(dmaV[(i - 1) // 2])
    if OPT['pa'] != OPT['pc']: P(f's_setprio {OPT["pc"]}')
    P.extend(kupd + mx[:-1]); P('s_branch K1_RARE1\nK1_CPB:')
    P(f's_mov_b32 s{sRARE}, 0')
    ktail = [q for q in range(4) if DL + q * DS < nb]
    for i, (_, t) in enumerate(fill):
        P(t)
        if i == len(fill) - 12:
            P.extend(sync(f'vmcnt({X1N})'))
            for jj in range(nb): P.extend(RD(jj))
            for q in ktail: P.extend(dmaK[q])
    P('K1_TOP:')
    if OPT['stamps'] == 1 and not OPT['fused']: stamp(11, 2); stamp(8, 5)
    if OPT['pa'] != OPT['pc']: P(f's_setprio {OPT["pa"]}')
    if OPT['stamps'] == 2: stamp(7, 3); stamp(11, 4)
    def sites(pos, dm):
        return [x for q in range(4) if q * DS == pos for x in dm[q]]
    for i in range(nA):
        P.extend(MF(i))
        j = i + nb - nA
        if j < 0: P.extend(RD(i + nb))
        elif j == DL:
            P.extend(sync())
            for jj in range(DL + 1): P.extend(RD(nA + jj))
        elif j > DL: P.extend(RD(i + nb))
        P.extend(sites(i + nb - DL, dmaK))
        if j == DL and OPT['wot'] >= 3: P(f's_cmp_lg_u32 s{sCNT}, {OPT["wot"]}\ns_cbranch_scc1 K1_WT' + wotouch(True) + 'K1_WT:')
        if j == DL and OPT['opre'] >= 2: P(opre2)
        if j >= DL: P.extend(sites(j - DL, dmaV))
        if i == 2: P.extend(vupd)
        if OPT['anop'] and i % 2 == 1: P(f's_nop {OPT["anop"]}')
        if i == 9: P.extend(book[:7])
        if i == 11: P.extend(book[7:])
        if i == 13: P.extend(book2)
    if OPT['stamps'] == 2: stamp(8, 3)
    if OPT['pa'] != OPT['pc']: P(f's_setprio {OPT["pc"]}')
    cost = lambda t: 2 if 'exp' in t else (0 if 'BR' in t else 1)
    full = [(0, t) for t in kupd + mx] + [(0, 'BR')] + fill
    tot = sum(cost(t) for _, t in full)
    pend = list(full); acc = 0; cw = 0; wsum = sum(it['w'] for it in itC)
    for c in range(len(itC)):
        i = nA + c
        P.extend(MF(i)); cw += itC[c]['w']
        j = i + nb - N
        if j < 0: P.extend(RD(i + nb))
        elif j == DL:
            P.extend(sync())
            for jj in range(DL + 1): P.extend(RD(jj))
        elif j > DL: P.extend(RD(i + nb))
        P.extend(sites(c + nb - DL, dmaV))
        if j >= DL: P.extend(sites(j - DL, dmaK))
        goal = tot * min(1.0, cw / (wsum - 32))
        q = 0
        while q < len(pend) and acc + cost(pend[q][1]) <= goal + 1:
            if pend[q][0] > c: q += 1; continue
            acc += cost(pend[q][1]); t = pend.pop(q)[1]
            P('s_cbranch_vccnz K1_RARE1\nK1_R1B:' if t == 'BR' else t)
    for _, t in pend: P(t)
    if OPT['stamps'] == 2: stamp(10, 3)
    P(f"""
    s_add_u32 s{sCNT}, s{sCNT}, 1
    s_add_u32 s3, s{sCNT}, s{sRARE}
    s_cmp_lt_u32 s3, 8
    s_cbranch_scc1 K1_TOP
    s_cmp_lg_u32 s{sRARE}, 0
    s_cbranch_scc1 K1_RARE2
    K1_NEXT:
    s_cmp_lt_u32 s{sCNT}, 8
    s_cbranch_scc1 K1_TOP
    s_branch K1_PVO
    """)
    P(f"""
    K1_RARE1:
    v_mov_b32 v{X0}, v{T0}
    v_mov_b32 v{X1}, v{T1}
    v_permlane32_swap_b32 v{T0}, v{X0}
    v_permlane32_swap_b32 v{T1}, v{X1}
    v_max3_f32 v{T0}, v{T0}, v{X0}, s{sCL}
    v_max_f32 v{T1}, v{T1}, v{X1}
    v_mov_b32 v{X1}, v{T1}
    v_max_f32 v{AL}, 0, v{T0}
    v_permlane16_swap_b32 v{T1}, v{X1}
    v_max3_f32 v{T1}, v{T1}, v{X1}, s{sCL}
    v_max_f32 v{AL9}, 0, v{T1}
    v_exp_f32 v{AL}, -v{AL}
    v_exp_f32 v{AL9}, -v{AL9}
    """)
    for i in range(32): P(f'v_sub_f32 v{S + i}, v{S + i}, v{T0}')
    for i in range(16): P(f'v_sub_f32 v{CN + i}, v{CN + i}, v{T0}')
    for i in range(4): P(f'v_sub_f32 v{S9 + i}, v{S9 + i}, v{T1}')
    for i in range(4): P(f'v_sub_f32 v{CN9 + i}, v{CN9 + i}, v{T1}')
    P(f"""
    v_mul_f32 v{L}, v{L}, v{AL}
    v_mul_f32 v{L9}, v{L9}, v{AL9}
    s_mov_b32 s{sT}, {f2u(8.0)}
    s_cmp_lg_u32 s{sCL}, 0
    s_mov_b32 s{sCL}, 0
    s_mov_b32 s{sRARE}, 8
    s_cbranch_scc1 K1_CPB
    s_branch K1_R1B
    K1_RARE2:
    """)
    for i in range(64): P(f'v_mul_f32 v{O + i}, v{O + i}, v{AL}')
    for i in range(32): P(f'v_mul_f32 v{O9 + i}, v{O9 + i}, v{AL9}')
    P(f"""
    s_mov_b32 s{sRARE}, 0
    s_branch K1_NEXT
    K1_PVO:
    """)
    if OPT['stamps'] == 1: stamp(3)
    P.extend(vupd)
    P(f's_and_b32 s{sKP}, s2, 3')
    if OPT['wot'] == 1: P(wosrd + wotouch(False))
    elif OPT['wot'] == 0: P(wosrd)
    P.extend(sync('vmcnt(2)' if OPT['wot'] == 1 else 'vmcnt(0)'))
    if OPT['fused'] and OPT['loc']:
        P(f"""
        s_cmp_eq_u32 s{sW}, 4
        s_cbranch_scc0 K1_XL
        s_and_b32 s3, s2, 7
        s_lshl_b32 s3, s3, 3
        s_add_u32 s3, s3, s{sB}
        s_lshl_b32 s3, s3, 7
        v_lshlrev_b32 v{Q + 3}, 2, v{TID}
        s_mov_b64 exec, 15
        buffer_load_dword v{Q + 3}, v{Q + 3}, s[52:55], s3 offen offset:32 sc1
        s_mov_b64 exec, -1
        K1_XL:
        """)
    for i in range(nb): P.extend(RD(nA + i))
    groups = [MF(nA + c) + (RD(nA + c + nb) if c + nb < len(itC) else []) for c in range(len(itC))]
    epi = f'''
    s_lshl_b32 s6, s{sBR}, 3
    s_add_u32 s6, s6, s{sB}
    s_mul_i32 s6, s6, 1179648
    s_add_u32 s20, s66, s6
    s_addc_u32 s21, s67, 0
    s_mov_b32 s22, 1179648
    s_mov_b32 s23, 0x20000
    s_lshl_b32 s6, s{sJ}, 1
    s_add_u32 s6, s6, s{sP}
    s_lshl_b32 s7, s6, 13
    s_lshl_b32 s{sSK}, s{sWP}, 18
    s_add_u32 s{sSK}, s{sSK}, s7
    s_add_u32 s{sSV}, s{sSK}, 4096
    s_lshl_b32 s{sIS}, s6, 12
    s_lshl_b32 s7, s{sWP}, 10
    s_add_u32 s{sIS}, s{sIS}, s7
    s_add_u32 s{sIS}, s{sIS}, {1 << 20}
    v_mov_b32 v{T0}, v{L}
    v_mov_b32 v{T1}, v{L9}
    v_lshlrev_b32 v{VOK}, 4, v{TID}
    v_permlane32_swap_b32 v{L}, v{T0}
    v_permlane32_swap_b32 v{L9}, v{T1}
    v_add_f32 v{L}, v{L}, v{T0}
    v_add_f32 v{L9}, v{L9}, v{T1}
    v_mov_b32 v{T1}, v{L9}
    v_rcp_f32 v{AL}, v{L}
    v_permlane16_swap_b32 v{L9}, v{T1}
    v_add_f32 v{CN9 + 1}, v{L9}, v{T1}
    '''.strip().split('\n')
    epi += f"""s_cmp_lt_u32 s{sW}, 4
    s_cselect_b32 s45, 118784, 65536
    s_cselect_b32 s46, 135168, 155648
    s_lshl_b32 s7, s{sWP}, 11
    s_add_u32 s6, s45, s7
    v_add_u32 v116, s6, v{VOK}
    s_add_u32 s6, s46, s7
    v_add_u32 v117, s6, v{VOK}
    v_and_b32 v119, 15, v{TID}
    v_lshlrev_b32 v119, 3, v119
    s_lshl_b32 s7, s{sW}, 7
    s_add_u32 s7, s7, 20480
    v_add_u32 v118, s7, v119""".split('\n')
    wr9 = [f'ds_write_b64 v118, {vr(CN9, 2)}'] + [f'ds_write_b128 v{116 if sl < 3 else 117}, {vr(O9 + 8 * sl + 4 * t, 4)} offset:{(sl - 1) * 8192 * (sl < 3) + t * 1024}' for sl in range(1, 4) for t in range(2)]
    n1 = len(epi)
    epi += phase2(P, stamp, locals(), 0)
    epi += f"""s_mul_i32 s6, s{sP}, 36864
    s_lshl_b32 s7, s{sWP}, 12
    s_add_u32 s6, s6, s7
    s_add_u32 s6, s6, 81920
    v_add_u32 v{AL9}, s6, v{VOK}
    s_lshl_b32 s6, s{sW}, 7
    s_add_u32 s6, s6, 20480
    v_add_u32 v{S + 28}, s6, v119
    v_xor_b32 v{S + 29}, 0x80, v{S + 28}
    v_xor_b32 v{S + 30}, 0x100, v{S + 28}
    v_xor_b32 v{S + 31}, 0x180, v{S + 28}
    s_xor_b32 s7, s{sWP}, 1
    s_lshl_b32 s7, s7, 11
    s_add_u32 s7, s7, s45
    v_add_u32 v{S + 25}, s7, v{VOK}
    s_xor_b32 s7, s{sWP}, 2
    s_lshl_b32 s7, s7, 11
    s_add_u32 s7, s7, s45
    s_add_u32 s7, s7, 8192
    v_add_u32 v{S + 26}, s7, v{VOK}
    s_xor_b32 s7, s{sWP}, 3
    s_lshl_b32 s7, s7, 11
    s_add_u32 s7, s7, s46
    v_add_u32 v{S + 27}, s7, v{VOK}
    v_lshrrev_b32 v131, 5, v{TID}
    v_bfe_u32 v132, v{TID}, 4, 1
    v_lshlrev_b32 v137, 1, v119
    v_lshl_add_u32 v137, v131, 8, v137
    v_lshl_add_u32 v137, v132, 3, v137
    s_lshr_b32 s6, s{sW}, 1
    s_mul_i32 s6, s6, 18432
    s_and_b32 s7, s{sW}, 1
    s_lshl_b32 s7, s7, 10
    s_add_u32 s6, s6, s7
    s_add_u32 s6, s6, {81920 + 16384}
    v_add_u32 v138, s6, v137""".split('\n')
    epi = [e.strip() for e in epi]
    per = -(-len(epi) // len(groups))
    i = 0
    for gi, g in enumerate(groups):
        P.extend(g)
        j = min(len(epi), i + per)
        while j < len(epi) and (epi[j].split()[0] in ('s_addc_u32', 's_cselect_b64', 's_cselect_b32', 'v_cndmask_b32')): j += 1
        P.extend(epi[i:j]); i = j
        if gi >= 10 and wr9:
            assert i >= n1
            P(wr9.pop(0))
    P.extend(epi[i:]); P.extend(wr9)
    ST = CN; PT = [None, Q9, Q9 + 8, PP]; R9 = PP + 8
    P('s_barrier')
    for w in range(4): P(f'ds_read_b64 {vr(ST + 2 * w, 2)}, v{S + 28 + w}')
    for w in range(1, 4):
        for t in range(2): P(f'ds_read_b128 {vr(PT[w] + 4 * t, 4)}, v{S + 24 + w} offset:{t * 1024}')
    P(f's_cmp_lt_u32 s{sW}, 4\ns_cbranch_scc0 K1_Z')
    phase2(P, stamp, locals(), 3)
    P('s_barrier\nK1_Z:')
    stamp(4)
    os_ = '' if OPT['loc'] else 'sc1'
    mg = [f'v_min3_f32 v{ST + 8}, v{ST}, v{ST + 2}, v{ST + 4}', f'v_min_f32 v{ST + 8}, v{ST + 8}, v{ST + 6}']
    mg += [f'v_sub_f32 v{ST + 2 * w}, v{ST + 8}, v{ST + 2 * w}' for w in range(4)]
    mg += [f'v_exp_f32 v{ST + 2 * w}, v{ST + 2 * w}' for w in range(4)]
    mg += [f'v_mul_f32 v{ST + 9}, v{ST}, v{ST + 1}'] + [f'v_fmac_f32 v{ST + 9}, v{ST + 2 * w}, v{ST + 2 * w + 1}' for w in range(1, 4)]
    mg += [f'v_rcp_f32 v{ST + 9}, v{ST + 9}']
    mg += [f'v_mul_f32 v{R9 + i}, v{O9 + i}, v{ST}' for i in range(8)]
    for w in range(1, 4): mg += [f'v_fmac_f32 v{R9 + i}, v{PT[w] + i}, v{ST + 2 * w}' for i in range(8)]
    mg += [f'v_mul_f32 v{R9 + i}, v{R9 + i}, v{ST + 9}' for i in range(8)]
    for t in range(2):
        mg += [f'v_cvt_pk_bf16_f32 v{ST + 10 + 2 * t}, v{R9 + 4 * t}, v{R9 + 4 * t + 1}', f'v_cvt_pk_bf16_f32 v{ST + 11 + 2 * t}, v{R9 + 4 * t + 2}, v{R9 + 4 * t + 3}',
               f'ds_write_b64 v138, {vr(ST + 10 + 2 * t, 2)} offset:{t * 512}', f'buffer_store_dwordx2 {vr(ST + 10 + 2 * t, 2)}, v137, s[20:23], s{sIS} offen offset:{t * 512} {os_}']
    for dt in range(4):
        for i in range(16): P(f'v_mul_f32 v{O + 16 * dt + i}, v{O + 16 * dt + i}, v{AL}')
        for hf in range(2):
            d = S + 8 * dt + 4 * hf
            for i in range(4): P(f'v_cvt_pk_bf16_f32 v{d + i}, v{O + 16 * dt + 8 * hf + 2 * i}, v{O + 16 * dt + 8 * hf + 2 * i + 1}')
            ks = 2 * dt + hf
            P(f'ds_write_b128 v{AL9}, {vr(d, 4)} offset:{(ks >> 2) * 18432 + (ks & 3) * 1024}')
            if not OPT['lates']: P(f'buffer_store_dwordx4 {vr(d, 4)}, v{VOK}, s[20:23], s{sSK if ks < 4 else sSV} offen offset:{(ks & 3) * 1024} {os_}')
        if dt == 0: P.extend(mg)
    if OPT['lates']:
        for ks in range(8): P(f'buffer_store_dwordx4 {vr(S + 4 * ks, 4)}, v{VOK}, s[20:23], s{sSK if ks < 4 else sSV} offen offset:{(ks & 3) * 1024} {os_}')
    if OPT['fused']: phase2(P, stamp, locals(), 2)
    if OPT['stamps']:
        P('K1_STAMPS:' if OPT['fused'] else 's_waitcnt vmcnt(0)')
        if not OPT['fused']: stamp(4)
        P(f'''
        s_waitcnt lgkmcnt(0)
        s_add_u32 s20, s66, {WS_STAMP}
        s_addc_u32 s21, s67, 0
        s_mov_b32 s22, 0x100000
        s_mov_b32 s23, 0x20000
        s_lshl_b32 s6, s2, 3
        s_add_u32 s6, s6, s{sW}
        s_lshl_b32 s6, s6, 7
        v_mov_b32 v2, s6
        s_mov_b64 exec, 1
        ''')
        if OPT['probe'] >= 0:
            k = OPT['probe']
            lo, base = (98, 96) if k == 99 else (70 + 2 * k, 70)
            P(f"""
            s_cmp_lg_u32 s2, {OPT['pwg']}
            s_cbranch_scc1 K1_END
            s_cmp_lg_u32 s{sW}, {OPT['pw']}
            s_cbranch_scc1 K1_END
            s_sub_u32 s6, s{lo}, s{base}
            s_mul_i32 s6, s6, {1 if k == 99 else 10}
            s_memrealtime s[72:73]
            s_waitcnt lgkmcnt(0)
            s_add_u32 s6, s6, s72
            {'s_add_u32 s6, s70, 30000' if k == 0 else ''}
            K1_SPIN:
            s_memrealtime s[72:73]
            s_waitcnt lgkmcnt(0)
            s_sub_u32 s7, s72, s6
            s_cmp_lt_i32 s7, 0
            s_cbranch_scc1 K1_SPIN
            s_branch K1_END
            """)
        if OPT['dbgst']:
            P('s_mov_b32 s20, s64\ns_mov_b32 s21, s65\ns_mov_b32 s22, 256\nv_mov_b32 v2, 0\ns_not_b32 s70, s70')
            for i, k in enumerate([0, 1, 2, 7, 3, 4, 5, 6, 9, 10, 11, 8]):
                P(f'v_mov_b32 v4, s{70 + 2 * k}\nbuffer_atomic_umax v4, v2, s[20:23], 0 offen offset:{4 + 4 * i}\ns_nop 1')
        for k in range(0 if OPT['dbgst'] else 15):
            P(f'v_mov_b32 v4, s{70 + 2 * k}\nv_mov_b32 v5, s{71 + 2 * k}\nbuffer_store_dwordx2 v[4:5], v2, s[20:23], 0 offen offset:{8 * k}\ns_nop 1')
    P('K1_END:\ns_endpgm')
    a0 = [i for i, x in enumerate(P.ins) if x.text == 'K1_G1:'][0]; a1 = [i for i, x in enumerate(P.ins) if x.text == 'K1_PVO:'][0]
    keep = []
    kt = [i for i, x in enumerate(P.ins) if x.text == 'K1_TOP:'][0]
    kp0 = [i for i, x in enumerate(P.ins) if x.text == 'K1_G1:'][0]; kp1 = [i for i, x in enumerate(P.ins) if x.text == 'K1_QL:'][0]
    for i, x in enumerate(P.ins):
        if a0 < i < a1:
            if OPT['nodma'] and x.dma and not (kp0 < i < kp1): continue
            if OPT['nobar'] and x.kind == 'barrier': continue
            if OPT['noexp'] and x.kind in ('valu', 'trans') and ('exp' in x.text or 'v_add_f32' in x.text or 'cvt_pk' in x.text or 'max3' in x.text): continue
            if OPT['nolds'] and x.kind == 'ds_r': continue
            if OPT['nomf'] and i > kt and (x.kind in ('mfma', 'ds_r', 'trans') or (x.kind == 'valu' and 'v_cmp' not in x.text)): continue
        keep.append(x)
    P.ins = keep
    return P.finish()

def desc(name, vg, sg=102):
    return f'''.amdhsa_kernel {name}
  .amdhsa_next_free_vgpr {vg}
  .amdhsa_next_free_sgpr {sg}
  .amdhsa_accum_offset {(vg + 3) // 4 * 4}
  .amdhsa_group_segment_fixed_size 0
  .amdhsa_kernarg_size 104
  .amdhsa_user_sgpr_count 2
  .amdhsa_user_sgpr_kernarg_segment_ptr 1
  .amdhsa_system_sgpr_workgroup_id_x 1
  .amdhsa_float_denorm_mode_32 3
.end_amdhsa_kernel
'''

def main():
    ref = open('cdna_kernels/%s.s.ref' % NAME).read().split('\n')
    hdr = [l for l in ref if l.startswith(';') and '@launch' not in l and 'Override launch' not in l and 'grid=ceil' not in l]
    hdr = hdr[:14]
    ks = [('attn_kernel', k1(), 256, '(256,1,1)', '(%d,1,1)' % OPT['blk'], 163840),
          ]
    out = '\n'.join(hdr) + '\n'
    if OPT['fused']:
        ks = [(NAME + '_kernel',) + ks[0][1:]]
        out += f'; @launch grid={ks[0][3]} block={ks[0][4]} lds={ks[0][5]}\n'
    else:
        for n, _, _, g, b, l in ks: out += f'; @launch kernel={n} grid={g} block={b} lds={l}\n'
    out += '.amdgcn_target "amdgcn-amd-amdhsa--gfx950"\n.text\n'
    for n, body, _, _, _, _ in ks:
        out += f'.globl {n}\n.p2align 8\n.type {n},@function\n{n}:\n' + 'K1_START:\n' + body.replace('@CODELEN@', 'K1_END-K1_START').replace('@PCOFF@', 'K1_PC-K1_START')
    out += '.section .rodata,"a"\n'
    for n, _, vg, _, _, _ in ks: out += '.p2align 6\n' + desc(n, vg)
    open(sys.argv[1], 'w').write(out)
main()
```

```python
import sys, struct, math
from asmlib import *

NAME = 'concat_heads__mha_block_cached__gqa_block_cached__near_ridge'
def f2u(x): return struct.unpack('<I', struct.pack('<f', x))[0]
CSCALE = f2u(math.log2(math.e) / math.sqrt(128.0))

OPT = dict(nt_kv='nt', nt_w='', nt_x='', ostore='', stamps=0, touch=0, k2nb=3, nt_wo='', nt_o='', nodma=0, nobar=0, noexp=0, nolds=0, prio=0, bdelay=1, blk=512, pa=0, pc=1, pairw=1, qdelay=3, wtouch=0, kvs='000000000000044460a4', nsb=5, dstep=2, trows=15, tlead=0, ptouch=0, tl=0, nopoll=0, ot=-9, opre=0, dyn=0, fb=3, kpre=0, bs='', bn=16, diag=0, nbar=2, rot=1, rotx=0, rotp=4, lates=0, qnop=0, anop=0, ctouch=0, sp='01111111122111', ts=-1, npre=3, dist=3, sq=9, fused=1, p2nb=3, wot=1, ld2='', spin=200000, dbgst=0, loc=1, bgwb=0, nomf=0, nokv=0, nost=0, probe=-1, pwg=8, pw=4)
for a in sys.argv[2:]:
    k, v = a.split('=')
    OPT[k] = int(v) if (v.lstrip('-').isdigit() and k not in ('kvs', 'sp', 'bs')) else v

WS_O_BR = 36 * 256 * 1024
WS_PART = 0x1400000
WS_FLAG = 0x3000000
WS_STAMP = 0x4000000

def lanes(P, dst, expr_list):
    for e in expr_list: P(e)

def mf32(d, a, b, c=None):
    return f'v_mfma_f32_32x32x16_bf16 {vr(d, 16)}, {vr(a, 4)}, {vr(b, 4)}, {vr(d if c is None else c, 16)}'
def mf16(d, a, b, c=None):
    return f'v_mfma_f32_16x16x32_bf16 {vr(d, 4)}, {vr(a, 4)}, {vr(b, 4)}, {vr(d if c is None else c, 4)}'
def mf16h(d, a, b):
    return f'v_mfma_f32_16x16x16_bf16 {vr(d, 4)}, {vr(a, 2)}, {vr(b, 2)}, {vr(d, 4)}'


def phase2(P, stamp, env, part):
    sW, sWP, sBR, sE, sKS, TID, sB, sJ = env['sW'], env['sWP'], env['sBR'], env['sE'], env['sKP'], env['TID'], env['sB'], env['sJ']
    NB = 4; WST, OST, OOF = 20480, 18432, 81920
    sJJ, sTID, sCNT, sIB, sDL, sTMP, sSPIN = 56, 58, 30, 36, 37, 48, 44
    sSW, sSO, sMW, sMO, sPW, sPO, sIBW, sNB, sM9, sD2, sS9 = 59, 60, 61, 62, 63, 35, 31, 33, 43, 47, 57
    if OPT['stamps'] != 1: stamp = lambda *a: None
    sNEED = 38
    VW = [120, 121, 122, 123, 124]; VO, VF, VP = 141, 142, 143
    A0, A1, A90, A91, AB, AB9 = 125, 126, 127, 128, 129, 130
    done = 'K1_STAMPS' if OPT['stamps'] else 'K1_END'
    def poll(lbl, off):
        return f"""
    s_mov_b32 s{sSPIN}, {OPT['spin']}
    {lbl}:
    s_mov_b64 exec, 15
    buffer_load_dword v{VP}, v{VF}, s[52:55], s{off} offen sc1
    s_mov_b64 exec, -1
    s_sub_u32 s{sSPIN}, s{sSPIN}, 1
    s_cbranch_scc1 {lbl}X
    s_waitcnt vmcnt(0)
    v_cmp_eq_u32 vcc, s{sE}, v{VP}
    s_and_b64 s[6:7], vcc, s[{sNEED}:{sNEED + 1}]
    s_cmp_eq_u64 s[6:7], s[{sNEED}:{sNEED + 1}]
    s_cbranch_scc0 {lbl}
    {lbl}X:
    """
    def wb(lbl, first):
        if not OPT['loc']: return ''
        o = ''
        if first: o = f"""
    s_getreg_b32 s3, hwreg(HW_REG_XCC_ID, 0, 4)
    s_lshl_b32 s7, s{sE}, 4
    s_add_u32 s3, s3, s7
    s_waitcnt vmcnt(10)
    v_cmp_eq_u32 vcc, s3, v{env['Q'] + 3}
    s_and_b32 s{sNB}, vcc_lo, 15
    """
        return o + f"""
    s_cmp_eq_u32 s{sNB}, {15 if OPT['loc'] == 1 else 0}
    s_cbranch_scc1 {lbl}
    buffer_wbl2 sc1
    s_waitcnt vmcnt(0)
    {lbl}:
    """
    def issW():
        o = f's_mul_i32 s7, s{sPW}, {64 * 1152}\ns_add_u32 s7, s7, s{sSW}\ns_add_u32 m0, s{sIBW}, s{sMW}\ns_add_u32 s{sPW}, s{sPW}, 1\n'
        for n in range(5):
            if n == 4: o += 's_add_u32 m0, m0, 4096\ns_nop 0\n'
            o += f'buffer_load_dwordx4 v{VW[n]}, s[8:11], s7 offen offset:{(n & 3) * 1024} {OPT["nt_wo"]} lds\n'
        return o + f's_and_b32 s{sPW}, s{sPW}, 15\ns_add_u32 s{sIBW}, s{sIBW}, {WST}\ns_cmp_eq_u32 s{sIBW}, {NB * WST}\ns_cselect_b32 s{sIBW}, 0, s{sIBW}\n'
    def issO():
        o = f's_add_u32 m0, s{sIB}, s{sMO}\ns_lshl_b32 s7, s{sPO}, 12\ns_add_u32 s7, s7, s{sSO}\n'
        for e in range(4): o += f'buffer_load_dwordx4 v{VO}, s[20:23], s7 offen offset:{e * 1024} {OPT["ld2"]} lds\n'
        o += f's_add_u32 m0, s{sIB}, s{sM9}\ns_lshl_b32 s7, s{sPO}, 11\ns_add_u32 s7, s7, s{sS9}\ns_mov_b32 exec_hi, 0\n'
        o += f'buffer_load_dwordx4 v{VO}, s[20:23], s7 offen {OPT["ld2"]} lds\ns_mov_b32 exec_hi, -1\n'
        return o + f's_add_u32 s{sPO}, s{sPO}, 1\ns_and_b32 s{sPO}, s{sPO}, 15\ns_add_u32 s{sIB}, s{sIB}, {OST}\ns_cmp_eq_u32 s{sIB}, {NB * OST}\ns_cselect_b32 s{sIB}, 0, s{sIB}\n'
    if part == 0:
        o = f"""
        s_and_b32 s{sJJ}, s{sJ}, 3
        s_lshl_b32 s{sTID}, s{sBR}, 3
        s_add_u32 s{sTID}, s{sTID}, s{sB}
        s_lshl_b32 s{sTID}, s{sTID}, 2
        s_add_u32 s{sTID}, s{sTID}, s{sJJ}
        s_lshl_b32 s{sPW}, s{sJJ}, 2
        s_add_u32 s{sPO}, s{sPW}, 4
        s_and_b32 s{sPO}, s{sPO}, 15
        s_and_b32 s3, s2, 7
        s_lshl_b32 s3, s3, 3
        s_add_u32 s3, s3, s{sB}
        s_lshl_b32 s{sTMP}, s3, 7
        v_lshlrev_b32 v{VF}, 2, v{TID}
        v_lshlrev_b32 v{VO}, 4, v{TID}
        v_mov_b32 v{VP}, s{sE}
        v_mov_b32 v140, v{TID}
        s_mul_i32 s{sSW}, s{sJJ}, 288
        s_and_b32 s{sSW}, s{sSW}, 0xffc0
        s_mul_i32 s3, s{sWP}, {16 * 1152}
        s_add_u32 s{sSW}, s{sSW}, s3
        s_mul_i32 s{sMW}, s{sWP}, 5120
        s_lshl_b32 s{sMO}, s{sWP}, 12
        s_add_u32 s{sMO}, s{sMO}, {OOF}
        s_lshl_b32 s{sM9}, s{sWP}, 9
        s_lshl_b32 s{sS9}, s{sKS}, 15
        s_add_u32 s{sS9}, s{sS9}, s{sM9}
        s_add_u32 s{sS9}, s{sS9}, {1 << 20}
        s_add_u32 s{sM9}, s{sM9}, {OOF + 16384}
        s_lshl_b32 s{sSO}, s{sKS}, 16
        s_lshl_b32 s3, s{sWP}, 18
        s_add_u32 s{sSO}, s{sSO}, s3
        s_lshl_b32 s3, s{sB}, 2
        s_lshl_b32 s{sNB}, 1, s3
        s_mov_b32 s{sIB}, 0
        s_mov_b32 s{sIBW}, 0
        s_mov_b32 s3, 52429
        """
        for n in range(5):
            o += f"""
        v_add_u32 v131, {64 * n}, v{TID}
        v_mul_lo_u32 v132, s3, v131
        v_lshrrev_b32 v132, 20, v132
        v_mul_u32_u24 v133, 20, v132
        v_sub_u32 v133, v131, v133
        v_bfe_u32 v134, v132, 3, 1
        v_lshlrev_b32 v134, 1, v134
        v_xor_b32 v133, v133, v134
        v_mul_u32_u24 v132, 1152, v132
        v_lshl_add_u32 v132, v133, 4, v132
        v_add_u32 v{VW[n]}, {3072 - (n & 3) * 1024}, v132
        """
        o += f"""
        v_lshrrev_b32 v131, 4, v{TID}
        v_bfe_u32 v132, v{TID}, 2, 2
        v_lshl_add_u32 v132, v131, 3, v132
        v_mul_u32_u24 v132, 320, v132
        v_bfe_u32 v133, v{TID}, 1, 1
        v_lshl_add_u32 v132, v133, 4, v132
        v_and_b32 v133, 1, v{TID}
        v_lshl_add_u32 v132, v133, 3, v132
        v_and_b32 v133, 1, v131
        v_lshl_add_u32 v134, v133, 5, v132
        v_xor_b32 v135, 1, v133
        v_lshl_add_u32 v135, v135, 5, v132
        v_add_u32 v136, 64, v134
        s_bitcmp0_b32 s{sJJ}, 0
        s_cselect_b64 vcc, -1, 0
        s_lshl_b32 s3, s{sWP}, 6
        v_cndmask_b32 v{A0}, v135, v134, vcc
        v_cndmask_b32 v{A1}, v136, v135, vcc
        v_add_u32 v{A90}, s3, v{A0}
        v_add_u32 v{A91}, s3, v{A1}
        v_and_b32 v132, 15, v{TID}
        v_lshlrev_b32 v132, 4, v132
        v_lshrrev_b32 v131, 1, v131
        v_lshl_add_u32 v134, v133, 9, v132
        v_lshl_add_u32 v134, v131, 10, v134
        v_add_u32 v{AB}, s{sMO}, v134
        v_lshl_add_u32 v134, v133, 8, v132
        v_lshl_add_u32 v134, v131, 9, v134
        v_add_u32 v{AB9}, {OOF + 16384}, v134
        """
        return [l.strip() for l in o.split('\n') if l.strip()]
    if part == 3:
        P(issW()); return
    P(f"""
    s_cmp_ge_u32 s{sW}, 4
    s_cbranch_scc1 P2_G1
    s_waitcnt vmcnt(0)
    s_barrier
    """)
    stamp(5)
    fl = f's_mov_b64 exec, 0xff\nbuffer_load_dword v{VP}, v{VF}, s[52:55], s{sTMP} offen sc1\ns_mov_b64 exec, -1\n'
    P('v_mov_b32 v137, 163832\nv_mov_b32 v138, 0\nds_write_b32 v137, v138')
    P(issW() + issW() + issW())
    P(f's_cmp_lg_u32 s{sW}, 0\ns_cbranch_scc1 P2_F0\n{fl}P2_F0:')
    P(f"""
    s_waitcnt vmcnt(10)
    s_barrier
    s_waitcnt vmcnt(5)
    s_barrier
    s_waitcnt vmcnt(0)
    s_mov_b32 s{sNB}, 0
    s_mov_b32 s{sCNT}, 2
    s_sub_u32 s{sPW}, s{sPW}, 2
    P2_LD:
    s_cmp_eq_u32 s{sCNT}, 8
    s_cselect_b32 s3, 8, 2
    s_cselect_b32 s{sNB}, 4, s{sNB}
    s_add_u32 s{sPW}, s{sPW}, s3
    s_and_b32 s{sPW}, s{sPW}, 15
    s_cmp_lg_u32 s{sW}, 0
    s_cbranch_scc1 P2_PO
    s_lshr_b32 s3, s{sPW}, 2
    s_add_u32 s3, s3, s{sNB}
    s_mov_b32 s{sSPIN}, {OPT['spin']}
    P2_PF:
    v_cmp_eq_u32 vcc, s{sE}, v{VP}
    s_bitcmp1_b32 vcc_lo, s3
    s_cbranch_scc1 P2_PG
    {fl}
    s_sub_u32 s{sSPIN}, s{sSPIN}, 1
    s_waitcnt vmcnt(0)
    s_cbranch_scc0 P2_PF
    P2_PG:
    v_mov_b32 v138, s{sCNT}
    ds_write_b32 v137, v138
    s_cmp_lg_u32 s{sCNT}, 6
    s_cbranch_scc1 P2_PN
    {fl}
    s_branch P2_PN
    P2_PO:
    ds_read_b32 v138, v137
    s_waitcnt lgkmcnt(0)
    v_readfirstlane_b32 s6, v138
    s_cmp_eq_u32 s6, s{sCNT}
    s_cbranch_scc0 P2_PO
    P2_PN:
    s_mov_b32 s{sPO}, s{sPW}
    """)
    P(issO() + issW() + 's_waitcnt vmcnt(10)\ns_barrier\n' + issO() + issW())
    P(f's_add_u32 s{sCNT}, s{sCNT}, 2\ns_cmp_lt_u32 s{sCNT}, 14\ns_waitcnt vmcnt(10)\ns_barrier\ns_cbranch_scc1 P2_LD')
    P('s_waitcnt vmcnt(0)\ns_barrier\ns_barrier\ns_branch P2_RED')
    ACC = [[4 * (2 * t + j) for j in range(2)] for t in range(9)]; AC9 = [72, 76, 80]
    SET = [dict(A=[144 + 4 * t for t in range(9)], A9=[180, 184], B=[188, 192], B9=196),
           dict(A=[200 + 4 * t for t in range(9)], A9=[236, 240], B=[244, 248], B9=252)]
    P(f"""
    P2_G1:
    s_lshl_b32 s6, s{sTID}, 2
    s_add_u32 s6, s6, s{sKS}
    s_lshl_b32 s6, s6, 2
    s_add_u32 s6, s6, s{sWP}
    s_mul_i32 s6, s6, 11264
    s_add_u32 s6, s6, {WS_PART}
    s_add_u32 s16, s66, s6
    s_addc_u32 s17, s67, 0
    s_mov_b32 s18, 11264
    s_mov_b32 s19, 0x20000
    s_mov_b32 s{sIB}, 0
    s_mov_b32 s{sCNT}, 1
    s_mov_b32 s{sDL}, {WST}
    s_mov_b32 s{sD2}, {OST}
    s_lshl_b32 s6, s{sJJ}, 2
    s_add_u32 s{sTMP}, s6, s{sTMP}
    s_barrier
    s_cmp_eq_u32 s{sW}, 4
    s_cbranch_scc0 P2_FA
    {wb('P2_WA', True)}
    s_mov_b64 exec, 1
    buffer_store_dword v{VP}, v{VF}, s[52:55], s{sTMP} offen sc1
    s_mov_b64 exec, -1
    P2_FA:
    """)
    stamp(6)
    def rd(st, K):
        o = [f'ds_read_b128 {vr(st["B"][j], 4)}, v{AB} offset:{K * 2048 + j * 256}' for j in range(2)]
        for t in range(9):
            o += [f'ds_read_b64_tr_b16 {vr(st["A"][t] + 2 * j, 2)}, v{[A0, A1][t & 1]} offset:{K * 10240 + j * 1280 + 64 * (t >> 1)}' for j in range(2)]
            if t == 7: o.append(f'ds_read_b128 {vr(st["B9"], 4)}, v{AB9} offset:{K * 1024}')
        for t in range(2):
            o += [f'ds_read_b64_tr_b16 {vr(st["A9"][t] + 2 * j, 2)}, v{[A90, A91][t]} offset:{K * 10240 + j * 1280}' for j in range(2)]
        return o
    last = []
    def step(cur, rds, extra=(), first=False, tailbr=None):
        z = lambda d, a, b: f'v_mfma_f32_16x16x32_bf16 {vr(d, 4)}, {vr(a, 4)}, {vr(b, 4)}, 0' if first else mf16(d, a, b)
        m = []
        for t in range(9): m += [z(ACC[t][0], cur['A'][t], cur['B'][0]), z(ACC[t][1], cur['A'][t], cur['B'][1])]
        m += [z(AC9[2], cur['A'][8], cur['B9']), z(AC9[0], cur['A9'][0], cur['B9']), z(AC9[1], cur['A9'][1], cur['B9'])]
        for i in (0, 6, 12): m[i] += f' ; need {vr(cur["A"][i // 2 + 2], 4)}'
        m[18] += f' ; need {vr(cur["A9"][1], 4)}'
        rds = list(rds); extra = list(extra)
        for i, x in enumerate(m):
            if tailbr and i == len(m) - 1:
                assert not extra and not rds
                P(f's_cbranch_scc1 {tailbr}'); last.append(x)
            P(x)
            n = 2 if i % 3 != 2 else 1
            if rds: P.extend(rds[:n]); rds = rds[n:]
            elif extra: P.extend(extra[:2]); extra = extra[2:]
        assert not rds
        P.extend(extra)
    upd = [f'v_add_u32 v{r}, s{sDL}, v{r}' for r in (A0, A1, A90, A91)] + [f'v_add_u32 v{r}, s{sD2}, v{r}' for r in (AB, AB9)]
    ring = [f's_add_u32 s{sIB}, s{sIB}, 1', f's_and_b32 s{sIB}, s{sIB}, 3', f's_cmp_eq_u32 s{sIB}, {NB - 1}',
            f's_cselect_b32 s{sDL}, {-(NB - 1) * WST & 0xffffffff}, {WST}', f's_cselect_b32 s{sD2}, {-(NB - 1) * OST & 0xffffffff}, {OST}']
    P.extend(rd(SET[0], 0))
    step(SET[0], rd(SET[1], 1), upd, first=True)
    P('s_barrier\ns_branch P2_M\nP2_L:')
    if OPT['tl'] == 1: stamp(2, 3); stamp(7, 8); stamp(3, 12)
    step(SET[0], rd(SET[1], 1), upd + [f's_add_u32 s{sCNT}, s{sCNT}, 1', f's_cmp_eq_u32 s{sCNT}, {OPT["fb"]}'], tailbr='P2_SPEC')
    P('s_barrier\nP2_M:')
    step(SET[1], rd(SET[0], 0), ring + [f's_cmp_lt_u32 s{sCNT}, 16'])
    P('s_cbranch_scc1 P2_L\ns_branch P2_E\nP2_SPEC:\n' + last[0])
    P(f"""
    s_waitcnt vmcnt(0)
    s_barrier
    s_cmp_eq_u32 s{sW}, 4
    s_cbranch_scc0 P2_M
    {wb('P2_WB', False)}
    s_mov_b64 exec, 1
    buffer_store_dword v{VP}, v{VF}, s[52:55], s{sTMP} offen offset:16 sc1
    s_mov_b64 exec, -1
    s_branch P2_M
    P2_E:
    """)
    stamp(9)
    units = [(ACC[2 * u][j], ACC[2 * u + 1][j]) for j in range(2) for u in range(4)] + [(ACC[8][0], ACC[8][1]), (AC9[0], AC9[1]), (AC9[2], AC9[2])]
    for i, (x, y) in enumerate(units):
        d = 84 + 4 * i if i < 9 else 144 + 4 * i
        P(f'v_cvt_pk_bf16_f32 v{d}, v{x}, v{x + 1}\nv_cvt_pk_bf16_f32 v{d + 1}, v{x + 2}, v{x + 3}')
        P(f'v_cvt_pk_bf16_f32 v{d + 2}, v{y}, v{y + 1}\nv_cvt_pk_bf16_f32 v{d + 3}, v{y + 2}, v{y + 3}')
        if i % 4 == 0: P(f's_mov_b32 s3, {i * 1024}')
        P(f'v_permlane16_swap_b32 v{d}, v{d + 2}\nv_permlane16_swap_b32 v{d + 1}, v{d + 3}')
        P(f'buffer_store_dwordx4 {vr(d, 4)}, v{VO}, s[16:19], s3 offen offset:{(i % 4) * 1024} sc1')
    P(f"""
    P2_RED:
    s_lshl_b32 s{sTMP}, s{sTID}, 7
    s_add_u32 s{sTMP}, s{sTMP}, 8192
    s_lshl_b32 s7, s{sKS}, 2
    s_add_u32 s7, s7, s{sTMP}
    s_lshl_b32 s6, s{sTID}, 4
    s_add_u32 s6, s6, s{sKS}
    s_mul_i32 s6, s6, 11264
    s_add_u32 s6, s6, {WS_PART}
    s_add_u32 s16, s66, s6
    s_addc_u32 s17, s67, 0
    s_mov_b32 s18, {3 * 45056 + 11264}
    s_mov_b32 s19, 0x20000
    s_mul_i32 s6, s{sB}, {144 * 2304}
    s_mul_i32 s3, s{sBR}, 1152
    s_add_u32 s6, s6, s3
    s_mul_i32 s3, s{sJJ}, 288
    s_add_u32 s6, s6, s3
    s_add_u32 s12, s68, s6
    s_addc_u32 s13, s69, 0
    s_sub_u32 s14, {1152 * 2304}, s6
    s_mov_b32 s15, 0x20000
    v_mov_b32 v{VP}, s{sE}
    s_mov_b64 s[{sNEED}:{sNEED + 1}], 15
    v_and_b32 v4, 15, v140
    v_mul_u32_u24 v4, 2304, v4
    v_lshrrev_b32 v5, 5, v140
    v_lshl_add_u32 v4, v5, 4, v4
    v_bfe_u32 v5, v140, 4, 1
    v_lshl_add_u32 v6, v5, 5, v4
    s_lshl_b32 s40, s{sKS}, 1
    s_lshr_b32 s3, s{sW}, 2
    s_add_u32 s40, s40, s3
    s_mul_i32 s40, s40, {16 * 2304}
    s_and_b32 s3, s{sW}, 3
    s_lshl_b32 s3, s3, 6
    s_add_u32 s40, s40, s3
    s_lshl_b32 s41, s{sW}, 10
    s_mul_i32 s42, s{sKS}, {32 * 2304}
    s_add_u32 s42, s42, 256
    s_lshl_b32 s3, s{sKS}, 6
    s_add_u32 s3, s3, {128 * 2304}
    s_cmp_eq_u32 s{sW}, 1
    s_cselect_b32 s42, s3, s42
    s_cselect_b32 s45, 32, 0
    s_cmp_eq_u32 s{sW}, 2
    s_cselect_b32 s42, {128 * 2304 + 256}, s42
    s_cmp_eq_u32 s{sW}, 0
    s_cselect_b32 s45, {16 * 2304}, s45
    v_mul_lo_u32 v7, s45, v5
    v_add_u32 v7, v7, v4
    s_cmp_lg_u32 s{sKS}, 0
    s_cselect_b32 s45, 2, 3
    s_waitcnt vmcnt(0)
    s_barrier
    s_cmp_eq_u32 s{sW}, 7
    s_cbranch_scc0 P2_NG
    s_mov_b64 exec, 1
    buffer_store_dword v{VP}, v{VF}, s[52:55], s7 offen sc1
    s_mov_b64 exec, -1
    P2_NG:
    """)
    stamp(10)
    P(poll('P2_PR', sTMP))
    stamp(11)
    def loads(base, so):
        for k in range(4):
            P(f's_add_u32 s3, s{so}, {k * 45056}\nbuffer_load_dwordx4 {vr(base + 4 * k, 4)}, v{VO}, s[16:19], s3 offen sc1')
    def reduce(base, va, so, left):
        for k in range(4):
            P(f's_waitcnt vmcnt({left + 3 - k})')
            for i in range(4):
                src = base + 4 * k + i; t = 16 if k == 0 else 24
                P(f'v_lshlrev_b32 v{t + 2 * i}, 16, v{src}\nv_and_b32 v{t + 1 + 2 * i}, s46, v{src}')
            if k:
                for i in range(8): P(f'v_add_f32 v{16 + i}, v{16 + i}, v{24 + i}')
        for i in range(4): P(f'v_cvt_pk_bf16_f32 v{base + i}, v{16 + 2 * i}, v{17 + 2 * i}')
        P(f'buffer_store_dwordx4 {vr(base, 4)}, v{va}, s[12:15], s{so} offen')
    P('s_mov_b32 s46, 0xffff0000')
    loads(32, 41)
    P(f's_cmp_lt_u32 s{sW}, s45\ns_cbranch_scc1 P2_R2')
    reduce(32, 6, 40, 0)
    P(f's_branch P2_RE\nP2_R2:\ns_add_u32 s41, s41, 8192')
    loads(48, 41)
    reduce(32, 6, 40, 4)
    reduce(48, 7, 42, 1)
    P('P2_RE:')
    if OPT['stamps']:
        P('s_waitcnt vmcnt(0)'); stamp(8)

def k1():
    P = Prog()
    O, S, CN, Q, PP, O9, Q9, S9, CN9, P9 = 0, 64, 96, 112, 144, 160, 192, 208, 212, 216
    L, L9, VOK, VOV, AK, AK9, AV9, TID = 218, 219, 220, 221, 222, 223, 224, 225
    VA = 226
    T0, T1, AL, AL9, X0, X1 = 230, 231, 232, 233, 234, 235
    FB = [236, 240, 244, 248, 252]
    ACC = [[0, 16, 32, 48], [64, 80, 144, 176]]; ACC9 = [[160, 164], [168, 172]]
    QW = [230, 231, 232, 233]; QX = [234, 235]; QX9, QW9, VOW, VOX, HOLD = 216, 217, 218, 219, 212
    QB, QB9 = [96, 100], 104
    QF = [112, 116, 120, 124, 128, 132, 136, 140, 236, 240]
    sW, sWP, sP, sB, sJ, sBR = 24, 25, 26, 27, 28, 29
    sCNT, sW0, sX, sMC, sIB, sDL = 30, 31, 33, 35, 36, 37
    sEX = 38
    sIK, sROT = 31, 49
    sIS, sSK, sSV, sDK, sDV, sT, sCL, sRARE, sTMP, sTM2, sMW, sKP, sVP, sE = 40, 41, 42, 43, 44, 45, 46, 47, 48, 49, 50, 51, 32, 34
    NSB = OPT['nsb']; STGS = 25600; STG0 = 163840 - NSB * STGS
    SB0 = (NSB - 18) % NSB
    QXCH, Q9B = 131072, 98304 + 16384
    nk, ntw = OPT['nt_kv'], OPT['nt_w']
    def stamp(k, at=None):
        if OPT['stamps'] == 3: return
        if OPT['stamps']:
            if at is not None: P(f's_cmp_lg_u32 s{sCNT}, {at}\ns_cbranch_scc1 K1_ST{k}_{len(P.ins)}'); lbl = P.ins[-1].target
            P(('s_memtime' if OPT['stamps'] == 2 else 's_memrealtime') + ' s[%d:%d]' % (70 + 2 * k, 71 + 2 * k))
            if at is not None: P(f'{lbl}:')
            if k == 1 and OPT['stamps'] == 1: P('s_memtime s[96:97]')
            if k == 4 and OPT['stamps'] == 1: P('s_memtime s[98:99]')
            if k == 2 and OPT['stamps'] == 1: P('s_memtime s[94:95]')
    P(f"""
    s_cmp_ge_u32 s2, 256
    s_cbranch_scc1 K1_END
    s_bfe_u32 s{sBR}, s2, 0x10002
    s_mul_i32 s6, s{sBR}, 40
    s_add_u32 s4, s0, s6
    s_addc_u32 s5, s1, 0
    s_load_dwordx8 s[56:63], s[4:5], 0
    s_load_dwordx4 s[64:67], s[0:1], 88
    s_load_dwordx2 s[68:69], s[0:1], 80
    s_load_dwordx2 s[100:101], s[4:5], 32
    """)
    if OPT['stamps']:
        for k in range(70, 100, 2): P(f's_mov_b64 s[{k}:{k + 1}], 0')
    stamp(0)
    P(f"""
    v_lshrrev_b32 v1, 6, v0
    v_and_b32 v{TID}, 63, v0
    v_readfirstlane_b32 s{sW}, v1
    v_lshrrev_b32 v2, 4, v{TID}
    v_and_b32 v3, 15, v{TID}
    s_and_b32 s3, s2, 3
    s_lshl_b32 s3, s3, 2
    s_bfe_u32 s7, s2, 0x20003
    s_add_u32 s{sJ}, s3, s7
    s_lshr_b32 s{sB}, s2, 5
    s_and_b32 s{sWP}, s{sW}, 3
    s_lshr_b32 s{sP}, s{sW}, 2
    v_lshlrev_b32 v4, 2, v2
    v_xor_b32 v4, v4, v3
    v_lshlrev_b32 v4, 4, v4
    v_lshl_add_u32 v{VOW}, v2, 13, v4
    v_lshrrev_b32 v8, 2, v{TID}
    v_and_b32 v9, 3, v{TID}
    v_xor_b32 v9, v9, v2
    v_mul_u32_u24 v8, 1152, v8
    v_lshl_add_u32 v{VOX}, v9, 4, v8
    s_lshl_b32 s3, s{sWP}, 2
    v_or_b32 v5, s3, v2
    v_xor_b32 v5, v5, v3
    v_lshlrev_b32 v5, 4, v5
    s_lshl_b32 s{sMW}, s{sWP}, 12
    v_lshl_add_u32 v5, v2, 8, v5
    v_add_u32 v{VOK}, s{sMW}, v5
    v_lshl_add_u32 v5, v2, 8, v4
    v_add_u32 v{VOV}, s{sMW}, v5
    s_lshl_b32 s{sW0}, s{sWP}, 16
    s_mul_i32 s{sX}, s{sWP}, 18432
    s_mul_i32 s{sMC}, s{sWP}, 3072
    s_lshl_b32 s3, s{sWP}, 4
    s_lshl_b64 s[{sEX}:{sEX + 1}], 0xffff, s3
    s_mul_i32 s6, s{sB}, 165888
    s_lshl_b32 s7, s{sJ}, 9
    s_mov_b32 s11, 0x20000
    s_mov_b32 s22, {165888 + 2048}
    s_mov_b32 s23, 0x20000
    s_sub_u32 s10, {576 * 8192}, s7
    s_mov_b32 s{sIB}, {STG0}
    s_lshl_b32 s{sTMP}, s{sB}, 5
    s_lshl_b32 s{sTM2}, s{sJ}, 1
    s_add_u32 s{sTMP}, s{sTMP}, s{sTM2}
    s_lshl_b32 s{sTMP}, s{sTMP}, 17
    s_mov_b32 s14, 262144
    s_mov_b32 s15, 0x20000
    s_mov_b32 s18, 262144
    s_mov_b32 s19, 0x20000
    s_mov_b32 s{sCNT}, 0
    s_cmp_ge_u32 s{sW}, 4
    s_waitcnt lgkmcnt(0)
    s_cbranch_scc1 K1_G1
    s_add_u32 s8, s62, s7
    s_addc_u32 s9, s63, 0
    s_add_u32 s20, s56, s6
    s_addc_u32 s21, s57, 0
    s_sub_u32 s20, s20, 2048
    s_subb_u32 s21, s21, 0
    """)
    kvsrd = f"""
    s_add_u32 s12, s58, s{sTMP}
    s_addc_u32 s13, s59, 0
    s_add_u32 s16, s60, s{sTMP}
    s_addc_u32 s17, s61, 0
    s_lshr_b32 s{sROT}, s2, 3
    s_mul_i32 s3, s2, {OPT['rotx']}
    s_mul_i32 s{sROT}, s{sROT}, {OPT['rot']}
    s_add_u32 s{sROT}, s{sROT}, s3
    s_lshl_b32 s{sROT}, s{sROT}, 14
    s_add_u32 s52, s66, {WS_FLAG}
    s_addc_u32 s53, s67, 0
    s_mov_b32 s54, 16384
    s_mov_b32 s55, 0x20000
    """
    lanec = f"""
    v_bfe_u32 v10, v{TID}, 2, 2
    v_and_b32 v11, 3, v{TID}
    v_lshrrev_b32 v12, 5, v{TID}
    v_and_b32 v13, 1, v2
    v_and_b32 v20, 1, v11
    v_lshrrev_b32 v15, 1, v11
    v_lshlrev_b32 v16, 2, v10
    v_lshl_add_u32 v17, v13, 1, v20
    v_xor_b32 v17, v17, v16
    v_lshlrev_b32 v17, 4, v17
    v_lshl_add_u32 v17, v15, 3, v17
    v_lshl_add_u32 v17, v10, 8, v17
    s_lshl_b32 s3, s{sP}, 14
    s_add_u32 s{sMW}, s{sMW}, s3
    s_add_u32 s6, s3, 65536
    v_lshl_add_u32 v18, v12, 10, v17
    v_add_u32 v{VA}, s6, v18
    v_xor_b32 v{VA + 1}, 64, v{VA}
    v_xor_b32 v{VA + 2}, 0x80, v{VA}
    v_xor_b32 v{VA + 3}, 0xc0, v{VA}
    v_bfe_u32 v23, v{TID}, 3, 2
    v_bfe_u32 v24, v{TID}, 2, 1
    v_lshl_add_u32 v25, v23, 2, v11
    v_xor_b32 v25, v25, v12
    v_lshlrev_b32 v25, 4, v25
    v_lshl_add_u32 v25, v11, 8, v25
    v_lshl_add_u32 v25, v24, 10, v25
    v_lshl_add_u32 v25, v23, 12, v25
    v_add_u32 v{AK}, s3, v25
    s_lshl_b32 s7, s{sWP}, 10
    s_add_u32 s6, s3, s7
    v_xor_b32 v25, v2, v3
    v_lshlrev_b32 v25, 4, v25
    v_lshl_add_u32 v25, v11, 8, v25
    v_lshl_add_u32 v25, v10, 12, v25
    v_add_u32 v{AK9}, s6, v25
    v_xor_b32 v25, v15, v16
    v_lshlrev_b32 v25, 4, v25
    v_lshl_add_u32 v25, v20, 3, v25
    v_lshl_add_u32 v25, v10, 8, v25
    v_lshl_add_u32 v25, v2, 12, v25
    s_add_u32 s6, s6, 65536
    s_lshl_b32 s7, s{sWP}, 6
    v_xor_b32 v25, s7, v25
    v_add_u32 v{AV9}, s6, v25
    v_mul_u32_u24 v26, 272, v3
    v_lshl_add_u32 v27, v2, 4, v26
    s_mul_i32 s6, s{sP}, 4352
    s_add_u32 s6, s6, {Q9B}
    v_add_u32 v{S9}, s6, v27
    v_lshlrev_b32 v27, 4, v{TID}
    s_lshl_b32 s6, s{sWP}, 13
    s_add_u32 s6, s6, {QXCH}
    v_add_u32 v{S9 + 1}, s6, v27
    """
    loopinit = f"""
    s_mov_b32 s{sCNT}, 1
    s_mov_b32 s{sKP}, 32768
    s_mov_b32 s{sVP}, 65536
    s_mov_b32 s{sDK}, 32768
    s_mov_b32 s{sDV}, 0
    s_mov_b32 s{sIS}, 131072
    s_mov_b32 s{sIK}, 0
    s_mov_b32 s33, 0
    s_mul_i32 s3, s{sP}, {OPT['rotp'] * 16384}
    s_add_u32 s3, s3, s{sROT}
    s_add_u32 s{sSV}, s3, 16384
    s_and_b32 s{sSV}, s{sSV}, 0x1ffff
    s_add_u32 s{sSK}, s3, 49152
    s_and_b32 s{sSK}, s{sSK}, 0x1ffff
    s_mov_b32 s{sCL}, 0xff800000
    s_mov_b32 s{sRARE}, 0
    """
    obase = f"""
    s_lshl_b32 s6, s{sBR}, 3
    s_add_u32 s6, s6, s{sB}
    s_mul_i32 s6, s6, 1179648
    s_mul_i32 s7, s{sWP}, {262144 - 4096}
    s_add_u32 s6, s6, s7
    s_lshl_b32 s7, s{sJ}, 1
    s_add_u32 s7, s7, s{sP}
    s_lshl_b32 s7, s7, 13
    s_add_u32 s6, s6, s7
    s_add_u32 s56, s66, s6
    s_addc_u32 s57, s67, 0
    """
    narrow = f's_lshl_b32 s3, s{sP}, 17\ns_add_u32 s12, s12, s3\ns_addc_u32 s13, s13, 0\ns_add_u32 s16, s16, s3\ns_addc_u32 s17, s17, 0\ns_mov_b32 s14, 131072\ns_mov_b32 s18, 131072'
    getE = f'v_mov_b32 v{AL}, {Q9B + 8704}\nds_read_b32 v{AL}, v{AL}' if OPT['fused'] else ''
    getE2 = f'v_readfirstlane_b32 s{sE}, v{AL}' if OPT['fused'] else ''
    queue = []
    def vm(text, tag): P(text); queue.append(tag)
    BS = [int(c, 36) for c in str(OPT['bs'])]; BN = OPT['bn'] if BS else 0
    bpos = {}
    def wait_for(tag):
        idx = max(i for i, t in enumerate(queue) if t == tag)
        n = len(queue) - 1 - idx
        young = [c for c, p_ in bpos.items() if p_ > idx]
        if young and n + BN <= 63 and len(young) < 4:
            lbl = f'K1_BW{len(P.ins)}'
            P(f's_bitcmp1_b32 s{sCLS}, 0' if False else f's_and_b32 s3, s{sCLS}, {sum(1 << c for c in young)}\ns_cbranch_scc1 {lbl}\ns_waitcnt vmcnt({min(63, n)})\n{lbl}:\ns_waitcnt vmcnt({n + BN})')
        elif len(young) == 4: P(f's_waitcnt vmcnt({min(63, n + BN)})')
        else: P(f's_waitcnt vmcnt({min(63, n)})')
    def stage(s):
        if OPT['nost'] and s >= 3: queue.append(('s', s)); return
        buf = STG0 + ((s + SB0) % NSB) * STGS
        for hd in range(2):
            P(f's_add_u32 m0, s{sMC}, {buf + hd * 12288}\ns_add_u32 s3, s{sW0}, {s * 262144 + hd * 256}')
            vm(f'buffer_load_dwordx4 v{VOW}, s[8:11], s3 offen {ntw} lds', ('s', s))
            P(f's_add_u32 s3, s3, {32768 - 1024}')
            vm(f'buffer_load_dwordx4 v{VOW}, s[8:11], s3 offen offset:1024 {ntw} lds', ('s', s))
            P(f's_add_u32 s3, s{sX}, {s * 64 + hd * 4 * 18432}')
            vm(f'buffer_load_dwordx4 v{VOX}, s[20:23], s3 offen offset:2048 {ntw} lds', ('s', s))
        P(f's_mov_b32 m0, {buf + 24576}\ns_mov_b32 s3, {s * 64 + 128 * 1152 + 2048}\ns_mov_b64 exec, s[{sEX}:{sEX + 1}]')
        vm(f'buffer_load_dwordx4 v{VOX}, s[20:23], s3 offen {ntw} lds', ('s', s))
        P('s_mov_b64 exec, -1')
    VTW, VTX, sTW, sTX, sCLS = 232, 233, 45, 46, 47
    def touch(s):
        if s >= 18 or not OPT['tlead']: return
        P(f's_add_u32 s3, s{sTW}, {s * 262144}\ns_add_u32 s6, s{sTX}, {s * 64}\ns_mov_b64 exec, 0x1ff')
        vm(f'buffer_load_dword v{X0}, v{VTW}, s[8:11], s3 offen {ntw}', ('t', s))
        vm(f'buffer_load_dword v{X1}, v{VTX}, s[20:23], s6 offen {ntw}', ('t', s))
        P('s_mov_b64 exec, -1')
    def ltouch():
        TR = OPT['trows']
        P(f"""
        v_lshrrev_b32 v{VTW}, 3, v{TID}
        v_and_b32 v{VTX}, 7, v{TID}
        v_lshlrev_b32 v{VTX}, 6, v{VTX}
        v_lshl_add_u32 v{VTW}, v{VTW}, 13, v{VTX}
        v_lshlrev_b32 v{VTX}, 6, v{TID}
        s_lshl_b32 s3, s{sB}, 2
        s_add_u32 s3, s3, s{sWP}
        s_mul_i32 s3, s3, {TR * 8192}
        s_add_u32 s3, s3, {(576 - 32 * TR) * 8192}
        s_bfe_u32 s6, s2, 0x20003
        s_lshl_b32 s6, s6, 2
        s_add_u32 s6, s6, s{sWP}
        s_mul_i32 s6, s6, {162 * 64}
        s_add_u32 s6, s6, 2048
        """)
        tw = [(i, min(8, TR - 8 * i) * 8) for i in range((TR + 7) // 8)]; tx = [(0, 64), (1, 64), (2, 34)]
        for i in range(3):
            for (lst, v, srd, so, step) in ((tw, VTW, 8, 3, 8 * 8192), (tx, VTX, 20, 6, 4096)):
                if i >= len(lst): continue
                n = lst[i][1]
                if n < 64: P(f's_mov_b64 exec, {hex((1 << n) - 1)}' if n <= 31 else f's_mov_b32 exec_hi, {(1 << (n - 32)) - 1}')
                vm(f'buffer_load_dword v{X0}, v{v}, s[{srd}:{srd + 3}], s{so} offen {ntw}', ('t', 0))
                if n < 64: P('s_mov_b64 exec, -1')
                P(f's_add_u32 s{so}, s{so}, {step}')
    def otouch():
        P(f"""
        s_lshl_b32 s6, s{sBR}, 3
        s_add_u32 s6, s6, s{sB}
        s_mul_i32 s6, s6, 1179648
        s_add_u32 s56, s66, s6
        s_addc_u32 s57, s67, 0
        s_mov_b32 s58, 1179648
        s_mov_b32 s59, 0x20000
        v_lshlrev_b32 v{VTW}, 7, v{TID}
        s_lshl_b32 s3, s{sWP}, 18
        s_lshl_b32 s6, s{sJ}, 14
        s_add_u32 s3, s3, s6
        """)
        vm(f'buffer_load_dword v{X0}, v{VTW}, s[56:59], s3 offen', ('t', 1))
        P('s_add_u32 s3, s3, 8192')
        vm(f'buffer_load_dword v{X0}, v{VTW}, s[56:59], s3 offen', ('t', 1))
        P(f's_lshl_b32 s3, s{sJ}, 13\ns_lshl_b32 s6, s{sWP}, 11\ns_add_u32 s3, s3, s6\ns_add_u32 s3, s3, {1 << 20}\ns_mov_b64 exec, 0xffff')
        vm(f'buffer_load_dword v{X0}, v{VTW}, s[56:59], s3 offen', ('t', 1))
        P('s_mov_b64 exec, -1')
    PRE = {(0, 0): [64, 68, 72, 76], (0, 1): [80, 84, 88, 92], (1, 0): [112, 116, 120, 124], (1, 1): [128, 132, 136, 140],
           (2, 0): [192, 196, 200, 204], (2, 1): [236, 240, 244, 248], (3, 0): [96, 100, 104, 252], (3, 1): [144, 148, 152, 156]}
    SRC = {0: (VOK, 12, 0), 1: (VOK, 12, 16384), 2: (VOV, 16, 0), 3: (VOK, 12, 32768)}
    FREE = {(0, 0): 0 if NSB <= 5 else 13, (0, 1): 0 if NSB <= 5 else 13, (1, 0): 15, (1, 1): 15, (2, 0): 16, (2, 1): 16, (3, 0): 17, (3, 1): 19}
    inreg = set()
    def kvload(step, u, hd, n):
        if OPT['nokv'] & 1: return
        vo, srd, off = SRC[u]
        P(f's_add_u32 s3, s{sROT}, {off + hd * OPT["rotp"] * 16384}\ns_and_b32 s3, s3, 0x1ffff' + (f'\ns_add_u32 s3, s3, 131072' if hd else ''))
        if step >= FREE[u, hd]:
            P(f's_add_u32 m0, s{sMW}, {u * 32768 + hd * 16384}\ns_nop 0')
            vm(f'buffer_load_dwordx4 v{vo}, s[{srd}:{srd + 3}], s3 offen offset:{n * 1024} {nk} lds', ('k', u))
        else:
            vm(f'buffer_load_dwordx4 {vr(PRE[u, hd][n], 4)}, v{vo}, s[{srd}:{srd + 3}], s3 offen offset:{n * 1024} {nk}', ('r', u, hd)); inreg.add((u, hd, n))
    def kvdump(step):
        if OPT['nokv'] & 2: return
        for (u, hd), f in FREE.items():
            ns = [n for n in range(4) if (u, hd, n) in inreg]
            if f != step or not ns: continue
            if (u, hd) in btag: P(f's_waitcnt vmcnt({min(63, len(queue) - btag[u, hd])})')
            if ('r', u, hd) in queue: wait_for(('r', u, hd))
            base = u * 32768 + hd * 16384
            for n in ns: P(f'ds_write_b128 v{[T0, T1][base >> 16]}, {vr(PRE[u, hd][n], 4)} offset:{(base & 0xffff) + n * 1024}')
    kvq = [(u, hd, n) for u in range(4) for hd in range(2) for n in range(4)]
    npre, dist = OPT['npre'], OPT['dist']
    sched = [int(c, 36) for c in str(OPT['kvs'])] + [0] * 30
    assert sum(sched) + abs(OPT['kpre']) + BN == 32 and dist <= NSB - 1 and npre <= NSB
    burst = [kvq.pop(0) for _ in range(BN)]; btag = {}
    if BS: P(f's_and_b32 s3, s{sJ}, 3\ns_lshl_b32 s{sCLS}, 1, s3')
    nxt = 0
    for s in range(npre): stage(s); nxt += 1
    if OPT['tlead']:
        P(f"""
        v_lshlrev_b32 v{VTW}, 6, v{TID}
        v_mul_u32_u24 v{VTX}, 1152, v{TID}
        s_lshl_b32 s{sTW}, s{sB}, 2
        s_add_u32 s{sTW}, s{sTW}, s{sWP}
        s_lshl_b32 s{sTW}, s{sTW}, 13
        s_bfe_u32 s{sTX}, s2, 0x20003
        s_lshl_b32 s{sTX}, s{sTX}, 2
        s_add_u32 s{sTX}, s{sTX}, s{sWP}
        s_mul_i32 s{sTX}, s{sTX}, {9 * 1152}
        s_add_u32 s{sTX}, s{sTX}, 2048
        """)
        for s in range(npre, dist + OPT['tlead']): touch(s)
    if OPT['kpre']:
        P(kvsrd)
        for _ in range(max(0, OPT['kpre'])): kvload(0, *kvq.pop(0))
    if OPT['ts'] == -1: ltouch()
    for _ in range(max(0, -OPT['kpre'])): kvload(0, *kvq.pop(0))
    later = ['' if OPT['kpre'] else kvsrd] + [f'v_lshlrev_b32 v{T0}, 4, v{TID}\nv_add_u32 v{T0}, s{sMW}, v{T0}\nv_add_u32 v{T1}, 0x10000, v{T0}', lanec]
    zs = list(range(108, 112)) + list(range(O9, O9 + 32)) + list(range(CN9, CN9 + 4)) + list(range(63, -1, -1))
    later += ['\n'.join(f'v_mov_b32 v{r}, 0' for r in zs[i:i + 26]) for i in range(0, len(zs), 26)]
    P(later.pop(0))
    for s in range(19):
        if OPT['stamps'] == 2 and s == OPT['sq']: stamp(5)
        if OPT['stamps'] == 2 and s == OPT['sq'] + 1: stamp(6)
        if OPT['stamps'] == 3 and OPT['sq'] == 99 and 1 <= s <= 5: P(f's_memtime s[{70 + 6 * s - 4}:{71 + 6 * s - 4}]')
        if s < 18: wait_for(('s', s))
        if OPT['stamps'] == 3 and OPT['sq'] == 99 and 1 <= s <= 4: P(f's_memtime s[{70 + 6 * s - 2}:{71 + 6 * s - 2}]')
        if OPT['stamps'] == 2 and s == OPT['sq']: stamp(3)
        P('s_barrier')
        if OPT['stamps'] == 2 and s == OPT['sq']: stamp(2)
        if s == 0 and OPT['stamps'] == 1: stamp(1)
        S3 = [0, 1, 2, 3, 4, 5, 6, 8, 10, 12, 13, 14, 15, 16, 18]
        if OPT['stamps'] == 3 and OPT['sq'] == 99:
            if s <= 4: P(f's_memtime s[{70 + 6 * s}:{71 + 6 * s}]')
        elif OPT['stamps'] == 3 and s in S3: P(f's_memtime s[{70 + 2 * S3.index(s)}:{71 + 2 * S3.index(s)}]')
        if OPT['sp']:
            for _ in range(int((str(OPT['sp']) + '0' * 20)[s])):
                assert nxt <= s + NSB - 1
                stage(nxt); nxt += 1
            if OPT['ts'] == s: ltouch()
            if OPT['ot'] == s: otouch()
        n = 0
        while not OPT['sp'] and nxt < 18 and nxt <= s + dist and n < 2: stage(nxt); nxt += 1; n += 1
        touch(s + dist + OPT['tlead'])
        if s in BS:
            cl_ = [c for c in range(4) if BS[c] == s]; lbl = f'K1_BU{s}'
            P(f's_and_b32 s3, s{sCLS}, {sum(1 << c for c in cl_)}\ns_cbranch_scc0 {lbl}')
            keepq = len(queue)
            for pc in burst: kvload(s, *pc)
            del queue[keepq:]
            for c in cl_: bpos[c] = keepq
            P(f'{lbl}:')
            if len(bpos) == 4:
                for u_, hd_, n_ in burst: btag[(u_, hd_)] = keepq
        kvdump(s)
        for _ in range(sched[s]): kvload(s, *kvq.pop(0))
        if later: P(later.pop(0))
    assert nxt == 18 and not later
    for r in list(range(96, 108)) + [L, L9]: P(f'v_mov_b32 v{r}, 0')
    P(loopinit)
    if OPT['stamps'] == 1: stamp(2)
    if (0, 1) in btag: P(f's_waitcnt vmcnt({min(63, len(queue) - btag[0, 1])})')
    if ('k', 0) in queue: wait_for(('k', 0))
    P('s_barrier')
    P(getE)
    for kk in range(8): P(f'ds_read_b128 {vr(Q + 4 * kk, 4)}, v{S9 + 1} offset:{kk * 1024}')
    for kk in range(4): P(f'ds_read_b128 {vr(Q9 + 4 * kk, 4)}, v{S9} offset:{kk * 64}')
    P('s_barrier')
    P(getE2)
    kvdump(19)
    for _ in range(sched[19]): kvload(19, *kvq.pop(0))
    assert not kvq
    P(narrow)
    after = lambda u: (len(queue) - 1 - max(i for i, t in enumerate(queue) if t == ('k', u))) if ('k', u) in queue else 60
    X1N = min(63, after(1) + 4) if OPT['nbar'] == 2 else min(63, after(1) + 4, after(2) + 4)
    P('s_branch K1_HEAD')
    P('K1_G1:')
    P(kvsrd)
    if OPT['fused']:
        P(f"""
                v_mov_b32 v246, 0
        s_cmp_eq_u32 s{sW}, 4
        s_cbranch_scc0 K1_E0
        buffer_load_dword v244, v246, s[52:55], 0 offen sc1
        K1_E0:
        """)
    def touches():
        P(f"""
        s_lshl_b32 s7, s{sJ}, 9
        s_mul_i32 s6, s{sB}, 165888
        s_add_u32 s8, s62, s7
        s_addc_u32 s9, s63, 0
        s_add_u32 s20, s56, s6
        s_addc_u32 s21, s57, 0
        s_mov_b32 s22, 165888
        v_lshrrev_b32 v28, 3, v{TID}
        v_and_b32 v29, 7, v{TID}
        v_lshlrev_b32 v29, 6, v29
        v_lshl_add_u32 v28, v28, 13, v29
        v_lshlrev_b32 v29, 6, v{TID}
        s_lshl_b32 s3, s{sB}, 2
        s_add_u32 s3, s3, s{sWP}
        s_mul_i32 s3, s3, {TR * 8192}
        s_add_u32 s3, s3, {(576 - 32 * TR) * 8192}
        s_bfe_u32 s6, s2, 0x20003
        s_lshl_b32 s6, s6, 2
        s_add_u32 s6, s6, s{sWP}
        s_mul_i32 s6, s6, {162 * 64}
        """)
        tw = [(i, min(8, TR - 8 * i) * 8) for i in range((TR + 7) // 8)]; tx = [(0, 64), (1, 64), (2, 34)]
        k = 0
        for i in range(3):
            for (lst, v, srd, so, step) in ((tw, 28, 8, 3, 8 * 8192), (tx, 29, 20, 6, 4096)):
                if i >= len(lst): continue
                n = lst[i][1]
                if n < 64: P(f's_mov_b64 exec, {hex((1 << n) - 1)}' if n <= 31 else f's_mov_b32 exec_hi, {(1 << (n - 32)) - 1}')
                P(f'buffer_load_dword v{248 + k}, v{v}, s[{srd}:{srd + 3}], s{so} offen {ntw}'); k += 1
                if n < 64: P('s_mov_b64 exec, -1')
                P(f's_add_u32 s{so}, s{so}, {step}')
        return k
    def ptouch():
        pg = OPT['ptouch']
        P(f"""
        s_lshl_b32 s7, s{sJ}, 9
        s_mul_i32 s6, s{sB}, 165888
        s_add_u32 s8, s62, s7
        s_addc_u32 s9, s63, 0
        s_add_u32 s20, s56, s6
        s_addc_u32 s21, s57, 0
        s_mov_b32 s22, 165888
        v_lshlrev_b32 v28, 16, v{TID}
        s_lshl_b32 s3, s{sWP}, 20
        s_add_u32 s3, s3, {65536 * 4}
        s_mov_b64 exec, 0xffff
        buffer_load_dword v248, v28, s[8:11], s3 offen
        s_mov_b64 exec, 0xf
        s_mov_b32 s3, {65536 * 68}
        s_cmp_eq_u32 s{sWP}, 0
        s_cbranch_scc0 K1_PT1
        buffer_load_dword v249, v28, s[8:11], s3 offen
        buffer_load_dword v250, v28, s[20:23], 0 offen
        s_branch K1_PT2
        K1_PT1:
        buffer_load_dword v249, v28, s[12:15], 0 offen {nk}
        buffer_load_dword v250, v28, s[16:19], 0 offen {nk}
        K1_PT2:
        s_mov_b64 exec, -1
        """)
    TR = OPT['trows']
    NT = (TR + 7) // 8 + 3
    if OPT['ctouch']:
        P(f"""
        s_cmp_eq_u32 s{sW}, 5
        s_cbranch_scc0 K1_CT
        s_getpc_b64 s[6:7]
        K1_PC:
        s_sub_u32 s6, s6, @PCOFF@
        s_subb_u32 s7, s7, 0
        v_lshlrev_b32 v28, 7, v{TID}
        v_mov_b32 v31, s7
        """)
        for k in range(OPT['ctouch']):
            P(f"""
            v_min_u32 v29, @CODELEN@, v28
            v_add_co_u32 v30, vcc, s6, v29
            v_addc_co_u32 v31, vcc, 0, v31, vcc
            global_load_dword v{252 + k % 4}, v[30:31], off
            v_mov_b32 v31, s7
            v_add_u32 v28, 8192, v28
            """)
        P('K1_CT:')
    if OPT['wtouch'] == 1: touches()
    if OPT['ptouch']: ptouch(); NT = 3
    P(lanec)
    if OPT['wtouch'] == 2: touches()
    P(f"""
    v_mul_u32_u24 v18, 3072, v12
    v_add_u32 v18, {STG0 + SB0 * STGS}, v18
    v_add_u32 v{QW[0]}, v17, v18
    v_xor_b32 v{QW[1]}, 64, v{QW[0]}
    v_xor_b32 v{QW[2]}, 0x80, v{QW[0]}
    v_xor_b32 v{QW[3]}, 0xc0, v{QW[0]}
    s_lshl_b32 s6, s{sWP}, 2
    v_add_u32 v18, s6, v15
    v_xor_b32 v18, v18, v16
    v_lshlrev_b32 v18, 4, v18
    v_lshl_add_u32 v18, v20, 3, v18
    v_lshl_add_u32 v18, v10, 8, v18
    v_mul_u32_u24 v19, 3072, v2
    v_add_u32 v19, {STG0 + SB0 * STGS}, v19
    v_add_u32 v{QW9}, v18, v19
    v_xor_b32 v22, v12, v10
    v_lshlrev_b32 v22, 4, v22
    v_lshl_add_u32 v22, v3, 6, v22
    v_mul_u32_u24 v19, 3072, v13
    s_mul_i32 s6, s{sWP}, 6144
    s_add_u32 s6, s6, {STG0 + SB0 * STGS + 2048}
    v_add3_u32 v{QX[0]}, v22, v19, s6
    v_xor_b32 v{QX[1]}, 32, v{QX[0]}
    v_xor_b32 v22, v2, v10
    v_lshlrev_b32 v22, 4, v22
    v_lshl_add_u32 v22, v3, 6, v22
    v_add_u32 v{QX9}, {STG0 + SB0 * STGS + 24576}, v22
    v_lshl_add_u32 v27, v2, 3, v26
    s_lshl_b32 s6, s{sWP}, 6
    s_add_u32 s6, s6, {Q9B}
    v_add_u32 v{S9 + 2}, s6, v27
    """)
    z = list(range(CN9, CN9 + 4)) + list(range(108, 112)) + [L, L9]
    for hd in range(2):
        for a in ACC[hd]: z += list(range(a, a + 16))
        for a in ACC9[hd]: z += list(range(a, a + 4))
    for r in z: P(f'v_mov_b32 v{r}, 0')
    if OPT['fused']:
        P(f"""
        s_cmp_eq_u32 s{sW}, 4
        s_cbranch_scc0 K1_E1
        s_mov_b32 s8, s64
        s_mov_b32 s9, s65
        s_mov_b32 s10, 256
        s_waitcnt vmcnt({NT if OPT['wtouch'] or OPT['ptouch'] else 0})
        v_add_u32 v244, 1, v244
        v_max_u32 v244, 1, v244
        v_mov_b32 v245, 0
        v_mov_b32 v247, v244
        s_mov_b64 exec, 1
        buffer_atomic_cmpswap v[244:245], v246, s[8:11], 0 offen sc0
        s_mov_b64 exec, -1
        K1_E1:
        """)
    P(f's_mov_b32 s{sIB}, {SB0}\ns_barrier')
    if OPT['stamps'] == 1: stamp(1)
    qit = []
    def qmain(kk, hd, dt):
        return (lambda F: [f'ds_read_b64_tr_b16 {vr(F + 2 * j, 2)}, v{QW[dt]} offset:{hd * 12288 + kk * 6144 + j * 1024}' for j in range(2)],
                lambda F: mf32(ACC[hd][dt], F, QB[kk]))
    def q9(hd, t):
        return (lambda F: [f'ds_read_b64_tr_b16 {vr(F + 2 * j, 2)}, v{QW9} offset:{hd * 12288 + t * 32 + j * 1024}' for j in range(2)],
                lambda F: mf16(ACC9[hd][t], F, QB9))
    qit = [qmain(0, hd, dt) for hd in range(2) for dt in range(4)] + [q9(hd, t) for hd in range(2) for t in range(2)] + [qmain(1, hd, dt) for hd in range(2) for dt in range(4)]
    nq = len(QF); NQ = len(qit); QD = OPT['qdelay']
    qrd = lambda i: qit[i % NQ][0](QF[i % nq])
    bheads = [f'ds_read_b128 {vr(QB[0], 4)}, v{QX[0]}', f'ds_read_b128 {vr(QB9, 4)}, v{QX9}']
    upd = [f'v_add_u32 v{r}, s{sDL}, v{r}' for r in QW + QX + [QX9, QW9]]
    P(bheads[0])
    for i in range(nq):
        P.extend(qrd(i))
        if i == 3: P(bheads[1])
    def qmf(i):
        m = qit[i][1](QF[i % nq])
        if i % 2 == 0 and i + 1 < NQ: m += f' ; need {vr(QF[(i + 1) % nq], 4)}'
        return m
    cut = NQ - nq + QD + 1
    P('s_branch K1_QM\nK1_QL:\ns_barrier')
    if OPT['stamps'] == 2: stamp(2, OPT['sq'])
    qpend = [bheads[0]] + [x for jj in range(QD + 1) for x in qrd(jj)]
    for i in range(cut, NQ):
        P(qmf(i))
        qpend += qrd(i + nq)
        if i == NQ - 2: qpend.append(bheads[1])
        n = len(qpend) if i == NQ - 1 else 4
        P.extend(qpend[:n]); qpend = qpend[n:]
    P('K1_QM:')
    if OPT['stamps'] == 1 and not OPT['fused']: stamp(5, 3); stamp(6, 6); stamp(9, 9); stamp(10, 12)
    if OPT['stamps'] == 2: stamp(5, OPT['sq'] - 1); stamp(6, OPT['sq'])
    for i in range(cut):
        P(qmf(i))
        if i + nq < NQ: P.extend(qrd(i + nq))
        if i == 0: P(f'ds_read_b128 {vr(QB[1], 4)}, v{QX[1]}')
        if OPT['qnop'] and i % 2 == 1: P(f's_nop {OPT["qnop"]}')
        if i == 2: P(f's_cmp_eq_u32 s{sIB}, {NSB - 1}\ns_cselect_b32 s{sDL}, {-(NSB - 1) * STGS & 0xffffffff}, {STGS}')
        if i == 4: P(f's_add_u32 s{sIB}, s{sIB}, 1\ns_cmp_eq_u32 s{sIB}, {NSB}\ns_cselect_b32 s{sIB}, 0, s{sIB}')
        if i == 10: P.extend(upd[:4])
        if i == 11:
            P.extend(upd[4:])
            if OPT['stamps'] == 2: stamp(3, OPT['sq'] - 1)
            P(f's_add_u32 s{sCNT}, s{sCNT}, 1\ns_cmp_lt_u32 s{sCNT}, 18')
    P('s_cbranch_scc1 K1_QL\ns_barrier')
    for i in range(cut, NQ): P(qmf(i))
    if OPT['stamps'] == 1: stamp(2)
    P(f's_mov_b32 s6, {CSCALE}')
    for hd in range(2):
        for t in range(2):
            a = ACC9[hd][t]
            for i in range(4): P(f'v_mul_f32 v{a + i}, s6, v{a + i}')
            P(f'v_cvt_pk_bf16_f32 v{a}, v{a}, v{a + 1}\nv_cvt_pk_bf16_f32 v{a + 1}, v{a + 2}, v{a + 3}')
            P(f'ds_write_b64 v{S9 + 2}, {vr(a, 2)} offset:{hd * 4352 + t * 32}')
    for dt in [0, 1, 2, 3]:
        a = ACC[0][dt]
        for i in range(16): P(f'v_mul_f32 v{a + i}, s6, v{a + i}')
        for hf in range(2):
            for i in range(4): P(f'v_cvt_pk_bf16_f32 v{a + 8 * hf + i}, v{a + 8 * hf + 2 * i}, v{a + 8 * hf + 2 * i + 1}')
            P(f'ds_write_b128 v{S9 + 1}, {vr(a + 8 * hf, 4)} offset:{(2 * dt + hf) * 1024}')
    P('s_waitcnt vmcnt(0)')
    if OPT['fused']:
        P(f"""
        s_cmp_eq_u32 s{sW}, 4
        s_cbranch_scc0 K1_E2
        s_waitcnt vmcnt(0)
        v_cmp_eq_u32 vcc, 0, v244
        v_mov_b32 v246, {Q9B + 8704}
        s_mov_b64 exec, 1
        v_cndmask_b32 v244, v244, v247, vcc
        ds_write_b32 v246, v244
        s_getreg_b32 s3, hwreg(HW_REG_XCC_ID, 0, 4)
        v_lshl_add_u32 v245, v244, 4, s3
        s_and_b32 s3, s2, 7
        s_lshl_b32 s3, s3, 3
        s_add_u32 s3, s3, s{sB}
        s_lshl_b32 s3, s3, 5
        s_and_b32 s7, s{sJ}, 3
        s_add_u32 s3, s3, s7
        s_lshl_b32 s3, s3, 2
        v_mov_b32 v246, s3
        buffer_store_dword v245, v246, s[52:55], 0 offen offset:32 sc1
        s_mov_b64 exec, -1
        K1_E2:
        """)
    P(loopinit); P(narrow)
    P('s_barrier')
    P(getE)
    for kk in range(4): P(f'ds_read_b128 {vr(Q9 + 4 * kk, 4)}, v{S9} offset:{kk * 64}')
    for i in range(16): P(f'v_mul_f32 v{ACC[1][0] + i}, s6, v{ACC[1][0] + i}')
    P('s_barrier')
    P(getE2)
    for dt in range(4):
        a = ACC[1][dt]
        if dt:
            for i in range(16): P(f'v_mul_f32 v{a + i}, s6, v{a + i}')
        for i in range(8): P(f'v_cvt_pk_bf16_f32 v{Q + dt * 8 + i}, v{a + 2 * i}, v{a + 2 * i + 1}')
    for r in list(range(O, O + 64)) + list(range(CN, CN + 12)) + list(range(O9, O9 + 32)): P(f'v_mov_b32 v{r}, 0')
    P('s_barrier\nK1_HEAD:' if OPT['nbar'] == 2 else 'K1_HEAD:')

    def dma_sites(vo, srd, so, mb):
        out = []
        for n in range(4):
            g = [f's_add_u32 m0, s{mb}, s{sMW}', 's_nop 0'] if n == 0 else []
            g.append(f'buffer_load_dwordx4 v{vo}, s[{srd}:{srd + 3}], s{so} offen offset:{n * 1024} {nk} lds')
            if n == 3: g += [f's_add_u32 s{so}, s{so}, 16384', f's_and_b32 s{so}, s{so}, 0x1ffff']
            out.append(g)
        return out
    dmaV = dma_sites(VOV, 16, sSV, sIS); dmaK = dma_sites(VOK, 12, sSK, sIK)
    pre = OPT['opre'] == 1
    book = f"""s_cmp_lt_u32 s{sCNT}, {8 if pre else 7}
    s_cselect_b32 s{sIS}, s{sKP}, 0x30000
    s_add_u32 s{sKP}, s{sKP}, 65536
    s_cmp_ge_u32 s{sKP}, 163840
    s_cselect_b32 s3, 163840, 0
    s_sub_u32 s{sKP}, s{sKP}, s3
    s_sub_u32 s{sDK}, 65536, s3
    s_cmp_lt_u32 s{sCNT}, 5
    s_cselect_b32 s{sIK}, s{sVP}, 0x30000
    s_add_u32 s{sVP}, s{sVP}, 65536
    s_cmp_ge_u32 s{sVP}, 163840
    s_cselect_b32 s3, 163840, 0
    s_sub_u32 s{sVP}, s{sVP}, s3
    s_sub_u32 s{sDV}, 65536, s3""".split('\n')
    if OPT['nbar'] == 1:
        book = f"""s_mov_b32 s{sIS}, s{sKP}
    s_nop 0
    s_add_u32 s{sKP}, s{sKP}, 65536
    s_cmp_ge_u32 s{sKP}, 163840
    s_cselect_b32 s3, 163840, 0
    s_sub_u32 s{sKP}, s{sKP}, s3
    s_sub_u32 s{sDK}, 65536, s3
    s_cmp_lt_u32 s{sCNT}, 6
    s_cselect_b32 s{sIK}, s33, 0x30000
    s_mov_b32 s33, s{sVP}
    s_add_u32 s{sVP}, s{sVP}, 65536
    s_cmp_ge_u32 s{sVP}, 163840
    s_cselect_b32 s3, 163840, 0
    s_sub_u32 s{sVP}, s{sVP}, s3
    s_sub_u32 s{sDV}, 65536, s3""".split('\n')
        book.remove('    s_nop 0'); book.insert(6, 's_nop 0')
    book2 = f"""s_cmp_eq_u32 s{sCNT}, 6
    s_cselect_b32 s{sIK}, s6, s{sIK}
    s_cselect_b32 s12, s56, s12
    s_cselect_b32 s13, s57, s13
    s_cselect_b32 s14, 20480, s14
    s_cselect_b32 s{sSK}, 0, s{sSK}
    s_cmp_eq_u32 s{sCNT}, 7
    s_cselect_b32 s16, s56, s16
    s_cselect_b32 s17, s57, s17
    s_cselect_b32 s18, 20480, s18
    s_cselect_b32 s{sSV}, 4096, s{sSV}""".split('\n') if pre else []
    if pre: book.insert(7, f's_mov_b32 s6, s{sVP}')
    vupd = [f'v_add_u32 v{VA + i}, s{sDV}, v{VA + i}' for i in range(4)] + [f'v_add_u32 v{AV9}, s{sDV}, v{AV9}']
    kupd = [f'v_add_u32 v{AK}, s{sDK}, v{AK}', f'v_add_u32 v{AK9}, s{sDK}, v{AK9}']
    def kmain(kk, mt):
        tmp = [T0, T1][kk & 1]
        pre = [f'v_xor_b32 v{tmp}, {kk << 5}, v{AK}'] if (mt == 0 and kk) else []
        ad = tmp if kk else AK
        return dict(rd=lambda F: pre + [f'ds_read_b128 {vr(F, 4)}, v{ad} offset:{mt * 2048}'],
                    mf=lambda F: [mf32(S + 16 * mt, F, Q + 4 * kk, CN if kk == 0 else None)], w=32)
    def k9(kk):
        pre = [f'v_xor_b32 v{X0}, {kk << 6}, v{AK9}'] if kk else []
        ad = X0 if kk else AK9
        return dict(rd=lambda F: pre + [f'ds_read_b128 {vr(F, 4)}, v{ad}'],
                    mf=lambda F: [mf16(S9, F, Q9 + 4 * kk, CN9 if kk == 0 else None)], w=16)
    def vmain(ks, dt):
        mt, u = ks >> 1, ks & 1
        return dict(rd=lambda F: [f'ds_read_b64_tr_b16 {vr(F + 2 * j, 2)}, v{VA + dt} offset:{u * 8192 + j * 4096 + mt * 2048}' for j in range(2)],
                    mf=lambda F: [mf32(O + 16 * dt, F, PP + 4 * ks)], w=32)
    def v9(pp):
        pre = [f'v_xor_b32 v{X1}, {pp << 6}, v{AV9}'] if pp else []
        ad = X1 if pp else AV9
        return dict(rd=lambda F: pre + [f'ds_read_b64_tr_b16 {vr(F + 2 * j, 2)}, v{ad} offset:{32 * j}' for j in range(2)],
                    mf=lambda F: [mf16h(O9 + 4 * (2 * pp + j), F + 2 * j, P9) for j in range(2)], w=32)
    itA = []
    for kk in range(8):
        itA += [kmain(kk, 0), kmain(kk, 1)]
        if 1 <= kk <= 4: itA.append(k9(kk - 1))
    itC = []
    for dt in range(4): itC += [vmain(0, dt), v9(dt)]
    for ks in range(1, 4): itC += [vmain(ks, dt) for dt in range(4)]
    lastP = {0: 6, 1: 11, 2: 15, 3: 19, 9: 7}
    nb = len(FB); items = itA + itC; N = len(items); nA = len(itA)
    assert N % nb == 0 and nA % nb == 0
    RD = lambda i: items[i % N]['rd'](FB[i % nb])
    DL = OPT['bdelay']
    def MF(i, pair=True):
        m = items[i]['mf'](FB[i % nb])
        if pair and OPT['pairw'] and i % 2 == 0 and (i + 1) % nA != 0: m[0] += f' ; need {vr(FB[(i + 1) % nb], 4)}'
        return m
    def sync(wait='vmcnt(12)'): return [f's_waitcnt {wait}', 's_barrier']
    def gsync(lbl, group0, wait):
        return [f's_cmp_lt_u32 s{sW}, 4', f's_cbranch_scc{0 if group0 else 1} {lbl}', f's_waitcnt {wait}', 's_barrier', f'{lbl}:']
    DS = OPT['dstep']
    mx = [f'v_max3_f32 v{T1}, v{S9}, v{S9 + 1}, v{S9 + 2}', f'v_max_f32 v{T1}, v{T1}, v{S9 + 3}', f'v_max3_f32 v{T0}, v{S}, v{S + 1}, v{S + 2}']
    mx += [f'v_max3_f32 v{T0}, v{T0}, v{S + 3 + 2 * i}, v{S + 4 + 2 * i}' for i in range(6)]
    mx += [f'v_max3_f32 v{X0}, v{S + 16}, v{S + 17}, v{S + 18}']
    mx += [f'v_max3_f32 v{X0}, v{X0}, v{S + 19 + 2 * i}, v{S + 20 + 2 * i}' for i in range(6)]
    mx += [f'v_max3_f32 v{X0}, v{X0}, v{S + 15}, v{S + 31}', f'v_max_f32 v{T0}, v{T0}, v{X0}', f'v_max_f32 v{X0}, v{T0}, v{T1}', f'v_cmp_lt_f32 vcc, s{sT}, v{X0}']
    fill = []
    for ks in range(4):
        b = S + 8 * ks
        for i in range(0, 8, 2):
            fill += [(0, f'v_exp_f32 v{b + i}, v{b + i}'), (0, f'v_exp_f32 v{b + i + 1}, v{b + i + 1}')]
            if i: fill += [(0, f'v_add_f32 v{L}, v{L}, v{b + i - 2}'), (0, f'v_add_f32 v{L}, v{L}, v{b + i - 1}')]
        if ks == 0: fill += [(0, f'v_exp_f32 v{S9 + i}, v{S9 + i}') for i in range(4)]
        fill += [(0, f'v_add_f32 v{L}, v{L}, v{b + 6}'), (0, f'v_add_f32 v{L}, v{L}, v{b + 7}')]
        if ks == 0: fill += [(0, f'v_add_f32 v{L9}, v{L9}, v{S9 + i}') for i in range(4)]
        fill += [(lastP[ks], f'v_cvt_pk_bf16_f32 v{PP + 4 * ks + i}, v{b + 2 * i}, v{b + 2 * i + 1}') for i in range(4)]
        if ks == 0: fill += [(lastP[9], f'v_cvt_pk_bf16_f32 v{P9 + i}, v{S9 + 2 * i}, v{S9 + 2 * i + 1}') for i in range(2)]
    wosrd = f"""
    s_and_b32 s6, s2, 3
    s_mul_i32 s6, s6, {1024 * 1152}
    s_add_u32 s8, s100, s6
    s_addc_u32 s9, s101, 0
    s_sub_u32 s8, s8, 3072
    s_subb_u32 s9, s9, 0
    s_sub_u32 s10, {4096 * 1152 + 3072}, s6
    s_mov_b32 s11, 0x20000
    """
    def wotouch(drop):
        d1, d2, sfx = ('', '', 'lds') if drop else (f'v{Q + 1}, ', f'v{Q + 2}, ', '')
        va = X0 if drop else Q
        return f"""
    s_lshr_b32 s6, s2, 3
    s_lshl_b32 s6, s6, 3
    s_add_u32 s6, s6, s{sW}
    s_mul_i32 s6, s6, {36 * 128}
    s_add_u32 s6, s6, 3072
    {f's_add_u32 m0, s{sIS}, s{sMW}' if drop else ''}
    v_lshlrev_b32 v{va}, 6, v{TID}
    buffer_load_dword {d1}v{va}, s[8:11], s6 offen {OPT['nt_wo']} {sfx}
    s_add_u32 s6, s6, 4096
    s_mov_b64 exec, 0xff
    buffer_load_dword {d2}v{va}, s[8:11], s6 offen {OPT['nt_wo']} {sfx}
    s_mov_b64 exec, -1
    """
    if OPT['wot'] >= 2: P(wosrd)
    if OPT['opre'] == 1: P(obase)
    if OPT['opre'] >= 2:
        P(f"""
        s_lshl_b32 s6, s{sBR}, 3
        s_add_u32 s6, s6, s{sB}
        s_mul_i32 s6, s6, 1179648
        s_add_u32 s56, s66, s6
        s_addc_u32 s57, s67, 0
        s_mov_b32 s58, 1179648
        s_mov_b32 s59, 0x20000
        """)
    opre2 = f"""
    s_cmp_lg_u32 s{sCNT}, {OPT['opre']}
    s_cbranch_scc1 K1_OP
    s_add_u32 m0, s{sIS}, s{sMW}
    s_lshl_b32 s6, s{sJ}, 1
    s_add_u32 s6, s6, s{sP}
    s_lshl_b32 s7, s6, 13
    s_lshl_b32 s3, s{sWP}, 18
    s_add_u32 s7, s7, s3
    v_lshlrev_b32 v{X0}, 7, v{TID}
    buffer_load_dword v{X0}, s[56:59], s7 offen lds
    s_lshl_b32 s6, s6, 12
    s_lshl_b32 s7, s{sWP}, 10
    s_add_u32 s6, s6, s7
    s_add_u32 s6, s6, {1 << 20}
    s_mov_b64 exec, 0xff
    buffer_load_dword v{X0}, s[56:59], s6 offen lds
    s_mov_b64 exec, -1
    K1_OP:
    """
    if OPT['wot'] == 2: P(wotouch(True))
    for i in range(nb): P.extend(RD(i))
    if OPT['stamps'] == 1: stamp(7)
    for i in range(nA):
        P.extend(MF(i))
        if i + nb < nA: P.extend(RD(i + nb))
        if i + nb - nA == DL: P.extend(sync('vmcnt(63)') if OPT['nbar'] == 2 else gsync('K1_Y0', False, 'vmcnt(63)'))
        if i in (1, 3, 5, 7): P.extend(dmaV[(i - 1) // 2])
    if OPT['nbar'] == 1: P(f's_mov_b32 s{sIS}, 0x30000\ns_sub_u32 s{sSV}, s{sSV}, 16384\ns_and_b32 s{sSV}, s{sSV}, 0x1ffff')
    if OPT['pa'] != OPT['pc']: P(f's_setprio {OPT["pc"]}')
    P.extend(kupd + mx[:-1]); P('s_branch K1_RARE1\nK1_CPB:')
    P(f's_mov_b32 s{sRARE}, 0')
    ktail = [q for q in range(4) if DL + q * DS < nb]
    for i, (_, t) in enumerate(fill):
        P(t)
        if i == len(fill) - 12:
            P.extend(sync(f'vmcnt({X1N})') if OPT['nbar'] == 2 else gsync('K1_X1', True, f'vmcnt({X1N})'))
            for jj in range(nb): P.extend(RD(jj))
            for q in ktail if OPT['nbar'] == 2 else []: P.extend(dmaK[q])
    P('K1_TOP:')
    if OPT['stamps'] == 1 and not OPT['fused']: stamp(11, 2); stamp(8, 5)
    if OPT['pa'] != OPT['pc']: P(f's_setprio {OPT["pa"]}')
    if OPT['stamps'] == 2: stamp(7, 3); stamp(11, 4)
    def sites(pos, dm):
        return [x for q in range(4) if q * DS == pos for x in dm[q]]
    for i in range(nA):
        P.extend(MF(i))
        j = i + nb - nA
        if j < 0: P.extend(RD(i + nb))
        elif j == DL:
            if OPT['stamps'] == 2: stamp(9, 3)
            P.extend(sync() if OPT['nbar'] == 2 else gsync('K1_Y', False, 'vmcnt(4)'))
            if OPT['stamps'] == 2: stamp(1, 3)
            for jj in range(DL + 1): P.extend(RD(nA + jj))
        elif j > DL: P.extend(RD(i + nb))
        P.extend(sites(i + nb - DL, dmaK) if OPT['nbar'] == 2 else sites(i, dmaV))
        if j == DL and OPT['wot'] >= 3: P(f's_cmp_lg_u32 s{sCNT}, {OPT["wot"]}\ns_cbranch_scc1 K1_WT' + wotouch(True) + 'K1_WT:')
        if j == DL and OPT['opre'] >= 2: P(opre2)
        if j >= DL and OPT['nbar'] == 2: P.extend(sites(j - DL, dmaV))
        if i == 2: P.extend(vupd)
        if OPT['anop'] and i % 2 == 1: P(f's_nop {OPT["anop"]}')
        if i == 9: P.extend(book[:7])
        if i == 11: P.extend(book[7:])
        if i == 13: P.extend(book2)
    if OPT['stamps'] == 2: stamp(8, 3)
    if OPT['pa'] != OPT['pc']: P(f's_setprio {OPT["pc"]}')
    cost = lambda t: 2 if 'exp' in t else (0 if 'BR' in t else 1)
    full = [(0, t) for t in kupd + mx] + [(0, 'BR')] + fill
    tot = sum(cost(t) for _, t in full)
    pend = list(full); acc = 0; cw = 0; wsum = sum(it['w'] for it in itC)
    for c in range(len(itC)):
        i = nA + c
        P.extend(MF(i)); cw += itC[c]['w']
        j = i + nb - N
        if j < 0: P.extend(RD(i + nb))
        elif j == DL:
            if OPT['stamps'] == 2: stamp(4, 3)
            P.extend(sync() if OPT['nbar'] == 2 else gsync('K1_X', True, 'vmcnt(4)'))
            if OPT['stamps'] == 2: stamp(12, 3)
            for jj in range(DL + 1): P.extend(RD(jj))
        elif j > DL: P.extend(RD(i + nb))
        P.extend(sites(c + nb - DL, dmaV) if OPT['nbar'] == 2 else sites(c, dmaK))
        if j >= DL and OPT['nbar'] == 2: P.extend(sites(j - DL, dmaK))
        goal = tot * min(1.0, cw / (wsum - 32))
        q = 0
        while q < len(pend) and acc + cost(pend[q][1]) <= goal + 1:
            if pend[q][0] > c: q += 1; continue
            acc += cost(pend[q][1]); t = pend.pop(q)[1]
            P('s_cbranch_vccnz K1_RARE1\nK1_R1B:' if t == 'BR' else t)
    for _, t in pend: P(t)
    if OPT['stamps'] == 2: stamp(10, 3)
    P(f"""
    s_add_u32 s{sCNT}, s{sCNT}, 1
    s_add_u32 s3, s{sCNT}, s{sRARE}
    s_cmp_lt_u32 s3, 8
    s_cbranch_scc1 K1_TOP
    s_cmp_lg_u32 s{sRARE}, 0
    s_cbranch_scc1 K1_RARE2
    K1_NEXT:
    s_cmp_lt_u32 s{sCNT}, 8
    s_cbranch_scc1 K1_TOP
    s_branch K1_PVO
    """)
    P(f"""
    K1_RARE1:
    v_mov_b32 v{X0}, v{T0}
    v_mov_b32 v{X1}, v{T1}
    v_permlane32_swap_b32 v{T0}, v{X0}
    v_permlane32_swap_b32 v{T1}, v{X1}
    v_max3_f32 v{T0}, v{T0}, v{X0}, s{sCL}
    v_max_f32 v{T1}, v{T1}, v{X1}
    v_mov_b32 v{X1}, v{T1}
    v_max_f32 v{AL}, 0, v{T0}
    v_permlane16_swap_b32 v{T1}, v{X1}
    v_max3_f32 v{T1}, v{T1}, v{X1}, s{sCL}
    v_max_f32 v{AL9}, 0, v{T1}
    v_exp_f32 v{AL}, -v{AL}
    v_exp_f32 v{AL9}, -v{AL9}
    """)
    for i in range(32): P(f'v_sub_f32 v{S + i}, v{S + i}, v{T0}')
    for i in range(16): P(f'v_sub_f32 v{CN + i}, v{CN + i}, v{T0}')
    for i in range(4): P(f'v_sub_f32 v{S9 + i}, v{S9 + i}, v{T1}')
    for i in range(4): P(f'v_sub_f32 v{CN9 + i}, v{CN9 + i}, v{T1}')
    P(f"""
    v_mul_f32 v{L}, v{L}, v{AL}
    v_mul_f32 v{L9}, v{L9}, v{AL9}
    s_mov_b32 s{sT}, {f2u(8.0)}
    s_cmp_lg_u32 s{sCL}, 0
    s_mov_b32 s{sCL}, 0
    s_mov_b32 s{sRARE}, 8
    s_cbranch_scc1 K1_CPB
    s_branch K1_R1B
    K1_RARE2:
    """)
    for i in range(64): P(f'v_mul_f32 v{O + i}, v{O + i}, v{AL}')
    for i in range(32): P(f'v_mul_f32 v{O9 + i}, v{O9 + i}, v{AL9}')
    P(f"""
    s_mov_b32 s{sRARE}, 0
    s_branch K1_NEXT
    K1_PVO:
    """)
    if OPT['stamps'] == 1: stamp(3)
    P.extend(vupd)
    P(f's_and_b32 s{sKP}, s2, 3')
    if OPT['wot'] == 1: P(wosrd + wotouch(False))
    elif OPT['wot'] == 0: P(wosrd)
    P.extend(sync('vmcnt(2)' if OPT['wot'] == 1 else 'vmcnt(0)') if OPT['nbar'] == 2 else gsync('K1_Y8', False, 'vmcnt(2)' if OPT['wot'] == 1 else 'vmcnt(0)'))
    if OPT['fused'] and OPT['loc']:
        P(f"""
        s_cmp_eq_u32 s{sW}, 4
        s_cbranch_scc0 K1_XL
        s_and_b32 s3, s2, 7
        s_lshl_b32 s3, s3, 3
        s_add_u32 s3, s3, s{sB}
        s_lshl_b32 s3, s3, 7
        v_lshlrev_b32 v{Q + 3}, 2, v{TID}
        s_mov_b64 exec, 15
        buffer_load_dword v{Q + 3}, v{Q + 3}, s[52:55], s3 offen offset:32 sc1
        s_mov_b64 exec, -1
        K1_XL:
        """)
    for i in range(nb): P.extend(RD(nA + i))
    groups = [MF(nA + c) + (RD(nA + c + nb) if c + nb < len(itC) else []) for c in range(len(itC))]
    epi = f'''
    s_lshl_b32 s6, s{sBR}, 3
    s_add_u32 s6, s6, s{sB}
    s_mul_i32 s6, s6, 1179648
    s_add_u32 s20, s66, s6
    s_addc_u32 s21, s67, 0
    s_mov_b32 s22, 1179648
    s_mov_b32 s23, 0x20000
    s_lshl_b32 s6, s{sJ}, 1
    s_add_u32 s6, s6, s{sP}
    s_lshl_b32 s7, s6, 13
    s_lshl_b32 s{sSK}, s{sWP}, 18
    s_add_u32 s{sSK}, s{sSK}, s7
    s_add_u32 s{sSV}, s{sSK}, 4096
    s_lshl_b32 s{sIS}, s6, 12
    s_lshl_b32 s7, s{sWP}, 10
    s_add_u32 s{sIS}, s{sIS}, s7
    s_add_u32 s{sIS}, s{sIS}, {1 << 20}
    v_mov_b32 v{T0}, v{L}
    v_mov_b32 v{T1}, v{L9}
    v_lshlrev_b32 v{VOK}, 4, v{TID}
    v_permlane32_swap_b32 v{L}, v{T0}
    v_permlane32_swap_b32 v{L9}, v{T1}
    v_add_f32 v{L}, v{L}, v{T0}
    v_add_f32 v{L9}, v{L9}, v{T1}
    v_mov_b32 v{T1}, v{L9}
    v_rcp_f32 v{AL}, v{L}
    v_permlane16_swap_b32 v{L9}, v{T1}
    v_add_f32 v{CN9 + 1}, v{L9}, v{T1}
    '''.strip().split('\n')
    epi += f"""s_cmp_lt_u32 s{sW}, 4
    s_cselect_b32 s45, 118784, 65536
    s_cselect_b32 s46, 135168, 155648
    s_lshl_b32 s7, s{sWP}, 11
    s_add_u32 s6, s45, s7
    v_add_u32 v116, s6, v{VOK}
    s_add_u32 s6, s46, s7
    v_add_u32 v117, s6, v{VOK}
    v_and_b32 v119, 15, v{TID}
    v_lshlrev_b32 v119, 3, v119
    s_lshl_b32 s7, s{sW}, 7
    s_add_u32 s7, s7, 20480
    v_add_u32 v118, s7, v119""".split('\n')
    wr9 = [f'ds_write_b64 v118, {vr(CN9, 2)}'] + [f'ds_write_b128 v{116 if sl < 3 else 117}, {vr(O9 + 8 * sl + 4 * t, 4)} offset:{(sl - 1) * 8192 * (sl < 3) + t * 1024}' for sl in range(1, 4) for t in range(2)]
    n1 = len(epi)
    epi += phase2(P, stamp, locals(), 0)
    epi += f"""s_mul_i32 s6, s{sP}, 36864
    s_lshl_b32 s7, s{sWP}, 12
    s_add_u32 s6, s6, s7
    s_add_u32 s6, s6, 81920
    v_add_u32 v{AL9}, s6, v{VOK}
    s_lshl_b32 s6, s{sW}, 7
    s_add_u32 s6, s6, 20480
    v_add_u32 v{S + 28}, s6, v119
    v_xor_b32 v{S + 29}, 0x80, v{S + 28}
    v_xor_b32 v{S + 30}, 0x100, v{S + 28}
    v_xor_b32 v{S + 31}, 0x180, v{S + 28}
    s_xor_b32 s7, s{sWP}, 1
    s_lshl_b32 s7, s7, 11
    s_add_u32 s7, s7, s45
    v_add_u32 v{S + 25}, s7, v{VOK}
    s_xor_b32 s7, s{sWP}, 2
    s_lshl_b32 s7, s7, 11
    s_add_u32 s7, s7, s45
    s_add_u32 s7, s7, 8192
    v_add_u32 v{S + 26}, s7, v{VOK}
    s_xor_b32 s7, s{sWP}, 3
    s_lshl_b32 s7, s7, 11
    s_add_u32 s7, s7, s46
    v_add_u32 v{S + 27}, s7, v{VOK}
    v_lshrrev_b32 v131, 5, v{TID}
    v_bfe_u32 v132, v{TID}, 4, 1
    v_lshlrev_b32 v137, 1, v119
    v_lshl_add_u32 v137, v131, 8, v137
    v_lshl_add_u32 v137, v132, 3, v137
    s_lshr_b32 s6, s{sW}, 1
    s_mul_i32 s6, s6, 18432
    s_and_b32 s7, s{sW}, 1
    s_lshl_b32 s7, s7, 10
    s_add_u32 s6, s6, s7
    s_add_u32 s6, s6, {81920 + 16384}
    v_add_u32 v138, s6, v137""".split('\n')
    epi = [e.strip() for e in epi]
    per = -(-len(epi) // len(groups))
    i = 0
    for gi, g in enumerate(groups):
        P.extend(g)
        j = min(len(epi), i + per)
        while j < len(epi) and (epi[j].split()[0] in ('s_addc_u32', 's_cselect_b64', 's_cselect_b32', 'v_cndmask_b32')): j += 1
        P.extend(epi[i:j]); i = j
        if gi >= 10 and wr9:
            assert i >= n1
            P(wr9.pop(0))
    P.extend(epi[i:]); P.extend(wr9)
    ST = CN; PT = [None, Q9, Q9 + 8, PP]; R9 = PP + 8
    P('s_barrier')
    for w in range(4): P(f'ds_read_b64 {vr(ST + 2 * w, 2)}, v{S + 28 + w}')
    for w in range(1, 4):
        for t in range(2): P(f'ds_read_b128 {vr(PT[w] + 4 * t, 4)}, v{S + 24 + w} offset:{t * 1024}')
    P(f's_cmp_lt_u32 s{sW}, 4\ns_cbranch_scc0 K1_Z')
    phase2(P, stamp, locals(), 3)
    P('s_barrier\nK1_Z:')
    if OPT['stamps'] == 1: stamp(4)
    os_ = '' if OPT['loc'] else 'sc1'
    mg = [f'v_min3_f32 v{ST + 8}, v{ST}, v{ST + 2}, v{ST + 4}', f'v_min_f32 v{ST + 8}, v{ST + 8}, v{ST + 6}']
    mg += [f'v_sub_f32 v{ST + 2 * w}, v{ST + 8}, v{ST + 2 * w}' for w in range(4)]
    mg += [f'v_exp_f32 v{ST + 2 * w}, v{ST + 2 * w}' for w in range(4)]
    mg += [f'v_mul_f32 v{ST + 9}, v{ST}, v{ST + 1}'] + [f'v_fmac_f32 v{ST + 9}, v{ST + 2 * w}, v{ST + 2 * w + 1}' for w in range(1, 4)]
    mg += [f'v_rcp_f32 v{ST + 9}, v{ST + 9}']
    mg += [f'v_mul_f32 v{R9 + i}, v{O9 + i}, v{ST}' for i in range(8)]
    for w in range(1, 4): mg += [f'v_fmac_f32 v{R9 + i}, v{PT[w] + i}, v{ST + 2 * w}' for i in range(8)]
    mg += [f'v_mul_f32 v{R9 + i}, v{R9 + i}, v{ST + 9}' for i in range(8)]
    for t in range(2):
        mg += [f'v_cvt_pk_bf16_f32 v{ST + 10 + 2 * t}, v{R9 + 4 * t}, v{R9 + 4 * t + 1}', f'v_cvt_pk_bf16_f32 v{ST + 11 + 2 * t}, v{R9 + 4 * t + 2}, v{R9 + 4 * t + 3}',
               f'ds_write_b64 v138, {vr(ST + 10 + 2 * t, 2)} offset:{t * 512}', f'buffer_store_dwordx2 {vr(ST + 10 + 2 * t, 2)}, v137, s[20:23], s{sIS} offen offset:{t * 512} {os_}']
    for dt in range(4):
        for i in range(16): P(f'v_mul_f32 v{O + 16 * dt + i}, v{O + 16 * dt + i}, v{AL}')
        for hf in range(2):
            d = S + 8 * dt + 4 * hf
            for i in range(4): P(f'v_cvt_pk_bf16_f32 v{d + i}, v{O + 16 * dt + 8 * hf + 2 * i}, v{O + 16 * dt + 8 * hf + 2 * i + 1}')
            ks = 2 * dt + hf
            P(f'ds_write_b128 v{AL9}, {vr(d, 4)} offset:{(ks >> 2) * 18432 + (ks & 3) * 1024}')
            if not OPT['lates']: P(f'buffer_store_dwordx4 {vr(d, 4)}, v{VOK}, s[20:23], s{sSK if ks < 4 else sSV} offen offset:{(ks & 3) * 1024} {os_}')
        if dt == 0: P.extend(mg)
    if OPT['lates']:
        for ks in range(8): P(f'buffer_store_dwordx4 {vr(S + 4 * ks, 4)}, v{VOK}, s[20:23], s{sSK if ks < 4 else sSV} offen offset:{(ks & 3) * 1024} {os_}')
    if OPT['fused']: phase2(P, stamp, locals(), 2)
    if OPT['stamps']:
        P('K1_STAMPS:' if OPT['fused'] else 's_waitcnt vmcnt(0)')
        if not OPT['fused']: stamp(4)
        P(f'''
        s_waitcnt lgkmcnt(0)
        s_add_u32 s20, s66, {WS_STAMP}
        s_addc_u32 s21, s67, 0
        s_mov_b32 s22, 0x100000
        s_mov_b32 s23, 0x20000
        s_lshl_b32 s6, s2, 3
        s_add_u32 s6, s6, s{sW}
        s_lshl_b32 s6, s6, 7
        v_mov_b32 v2, s6
        s_mov_b64 exec, 1
        ''')
        if OPT['probe'] >= 0:
            k = OPT['probe']
            lo, base = (98, 96) if k == 99 else (70 + 2 * k, 70)
            P(f"""
            s_cmp_lg_u32 s2, {OPT['pwg']}
            s_cbranch_scc1 K1_END
            s_cmp_lg_u32 s{sW}, {OPT['pw']}
            s_cbranch_scc1 K1_END
            s_sub_u32 s6, s{lo}, s{base}
            s_mul_i32 s6, s6, {1 if k == 99 else 10}
            s_memrealtime s[72:73]
            s_waitcnt lgkmcnt(0)
            s_add_u32 s6, s6, s72
            {'s_add_u32 s6, s70, 30000' if k == 0 else ''}
            K1_SPIN:
            s_memrealtime s[72:73]
            s_waitcnt lgkmcnt(0)
            s_sub_u32 s7, s72, s6
            s_cmp_lt_i32 s7, 0
            s_cbranch_scc1 K1_SPIN
            s_branch K1_END
            """)
        if OPT['dbgst']:
            P('s_mov_b32 s20, s64\ns_mov_b32 s21, s65\ns_mov_b32 s22, 256\nv_mov_b32 v2, 0\ns_not_b32 s70, s70')
            for i, k in enumerate([0, 1, 2, 7, 3, 4, 5, 6, 9, 10, 11, 8]):
                P(f'v_mov_b32 v4, s{70 + 2 * k}\nbuffer_atomic_umax v4, v2, s[20:23], 0 offen offset:{4 + 4 * i}\ns_nop 1')
        for k in range(0 if OPT['dbgst'] else 15):
            P(f'v_mov_b32 v4, s{70 + 2 * k}\nv_mov_b32 v5, s{71 + 2 * k}\nbuffer_store_dwordx2 v[4:5], v2, s[20:23], 0 offen offset:{8 * k}\ns_nop 1')
    P('K1_END:\ns_endpgm')
    a0 = [i for i, x in enumerate(P.ins) if x.text == 'K1_G1:'][0]; a1 = [i for i, x in enumerate(P.ins) if x.text == 'K1_PVO:'][0]
    keep = []; dcount = [0]
    kt = [i for i, x in enumerate(P.ins) if x.text == 'K1_TOP:'][0]
    kp0 = [i for i, x in enumerate(P.ins) if x.text == 'K1_G1:'][0]; kp1 = [i for i, x in enumerate(P.ins) if x.text == 'K1_QL:'][0]
    for i, x in enumerate(P.ins):
        if a0 < i < a1:
            if OPT['nodma'] and x.dma and not (kp0 < i < kp1): continue
            if OPT['nobar'] and x.kind == 'barrier': continue
            if OPT['noexp'] and x.kind in ('valu', 'trans') and ('exp' in x.text or 'v_add_f32' in x.text or 'cvt_pk' in x.text or 'max3' in x.text): continue
            if OPT['nolds'] and x.kind == 'ds_r': continue
            if OPT['diag'] & 1 and i > kt and 'v_add_f32' in x.text: continue
            if OPT['diag'] & 2 and i > kt and 'v_max3' in x.text and 's46' not in x.text: continue
            if OPT['diag'] & 4 and i > kt and x.kind == 'ds_r':
                dcount[0] += 1
                if (dcount[0] // 4) % 2: continue
            if OPT['diag'] & 8 and i > kt and '16x16x16' in x.text: continue
            if OPT['diag'] & 16 and i > kt and 'v_exp' in x.text and '-v' not in x.text:
                x = parse(x.text.replace('v_exp_f32', 'v_mov_b32'))
            if OPT['nomf'] and i > kt and (x.kind in ('mfma', 'ds_r', 'trans') or (x.kind == 'valu' and 'v_cmp' not in x.text)): continue
        keep.append(x)
    P.ins = keep
    return P.finish()

def desc(name, vg, sg=102):
    return f'''.amdhsa_kernel {name}
  .amdhsa_next_free_vgpr {vg}
  .amdhsa_next_free_sgpr {sg}
  .amdhsa_accum_offset {(vg + 3) // 4 * 4}
  .amdhsa_group_segment_fixed_size 0
  .amdhsa_kernarg_size 104
  .amdhsa_user_sgpr_count 2
  .amdhsa_user_sgpr_kernarg_segment_ptr 1
  .amdhsa_system_sgpr_workgroup_id_x 1
  .amdhsa_float_denorm_mode_32 3
.end_amdhsa_kernel
'''

def main():
    ref = open('cdna_kernels/%s.s.ref' % NAME).read().split('\n')
    hdr = [l for l in ref if l.startswith(';') and '@launch' not in l and 'Override launch' not in l and 'grid=ceil' not in l]
    hdr = hdr[:14]
    ks = [('attn_kernel', k1(), 256, '(256,1,1)', '(%d,1,1)' % OPT['blk'], 163840),
          ]
    out = '\n'.join(hdr) + '\n'
    if OPT['fused']:
        ks = [(NAME + '_kernel',) + ks[0][1:]]
        out += f'; @launch grid={ks[0][3]} block={ks[0][4]} lds={ks[0][5]}\n'
    else:
        for n, _, _, g, b, l in ks: out += f'; @launch kernel={n} grid={g} block={b} lds={l}\n'
    out += '.amdgcn_target "amdgcn-amd-amdhsa--gfx950"\n.text\n'
    for n, body, _, _, _, _ in ks:
        out += f'.globl {n}\n.p2align 8\n.type {n},@function\n{n}:\n' + 'K1_START:\n' + body.replace('@CODELEN@', 'K1_END-K1_START').replace('@PCOFF@', 'K1_PC-K1_START')
    out += '.section .rodata,"a"\n'
    for n, _, vg, _, _, _ in ks: out += '.p2align 6\n' + desc(n, vg)
    open(sys.argv[1], 'w').write(out)
main()
```

```python
import sys, struct, math
from asmlib import *

NAME = 'concat_heads__mha_block_cached__gqa_block_cached__near_ridge'
def f2u(x): return struct.unpack('<I', struct.pack('<f', x))[0]
CSCALE = f2u(math.log2(math.e) / math.sqrt(128.0))

OPT = dict(nt_kv='nt', nt_w='', nt_x='', ostore='', stamps=0, touch=0, k2nb=3, nt_wo='', nt_o='', nodma=0, nobar=0, noexp=0, nolds=0, prio=0, bdelay=1, blk=512, pa=0, pc=1, pairw=1, qdelay=3, wtouch=0, kvs='000000000000044460a4', nsb=5, dstep=2, trows=15, tlead=0, ptouch=0, tl=0, nopoll=0, ot=-9, opre=0, dyn=0, fb=2, kpre=0, tb='', bs='', bn=16, diag=0, nbar=2, rot=1, rotx=0, rotp=4, lates=0, qnop=0, anop=0, ctouch=0, sp='01111111122111', ts=-1, npre=3, dist=3, sq=9, fused=1, p2nb=3, wot=1, ld2='', spin=200000, dbgst=0, loc=1, bgwb=0, nomf=0, nokv=0, nost=0, probe=-1, pwg=8, pw=4)
for a in sys.argv[2:]:
    k, v = a.split('=')
    OPT[k] = int(v) if (v.lstrip('-').isdigit() and k not in ('kvs', 'sp', 'bs')) else v

WS_O_BR = 36 * 256 * 1024
WS_PART = 0x1400000
WS_FLAG = 0x3000000
WS_STAMP = 0x4000000

def lanes(P, dst, expr_list):
    for e in expr_list: P(e)

def mf32(d, a, b, c=None):
    return f'v_mfma_f32_32x32x16_bf16 {vr(d, 16)}, {vr(a, 4)}, {vr(b, 4)}, {vr(d if c is None else c, 16)}'
def mf16(d, a, b, c=None):
    return f'v_mfma_f32_16x16x32_bf16 {vr(d, 4)}, {vr(a, 4)}, {vr(b, 4)}, {vr(d if c is None else c, 4)}'
def mf16h(d, a, b):
    return f'v_mfma_f32_16x16x16_bf16 {vr(d, 4)}, {vr(a, 2)}, {vr(b, 2)}, {vr(d, 4)}'


def phase2(P, stamp, env, part):
    sW, sWP, sBR, sE, sKS, TID, sB, sJ = env['sW'], env['sWP'], env['sBR'], env['sE'], env['sKP'], env['TID'], env['sB'], env['sJ']
    NB = 4; WST, OST, OOF = 20480, 18432, 81920
    sJJ, sTID, sCNT, sIB, sDL, sTMP, sSPIN = 56, 58, 30, 36, 37, 48, 44
    sSW, sSO, sMW, sMO, sPW, sPO, sIBW, sNB, sM9, sD2, sS9 = 59, 60, 61, 62, 63, 35, 31, 33, 43, 47, 57
    if OPT['stamps'] != 1: stamp = lambda *a: None
    sNEED = 38
    VW = [120, 121, 122, 123, 124]; VO, VF, VP = 141, 142, 143
    A0, A1, A90, A91, AB, AB9 = 125, 126, 127, 128, 129, 130
    done = 'K1_STAMPS' if OPT['stamps'] else 'K1_END'
    def poll(lbl, off):
        return f"""
    s_mov_b32 s{sSPIN}, {OPT['spin']}
    {lbl}:
    s_mov_b64 exec, 15
    buffer_load_dword v{VP}, v{VF}, s[52:55], s{off} offen sc1
    s_mov_b64 exec, -1
    s_sub_u32 s{sSPIN}, s{sSPIN}, 1
    s_cbranch_scc1 {lbl}X
    s_waitcnt vmcnt(0)
    v_cmp_eq_u32 vcc, s{sE}, v{VP}
    s_and_b64 s[6:7], vcc, s[{sNEED}:{sNEED + 1}]
    s_cmp_eq_u64 s[6:7], s[{sNEED}:{sNEED + 1}]
    s_cbranch_scc0 {lbl}
    {lbl}X:
    """
    def wb(lbl, first):
        if not OPT['loc']: return ''
        o = ''
        if first: o = f"""
    s_getreg_b32 s3, hwreg(HW_REG_XCC_ID, 0, 4)
    s_lshl_b32 s7, s{sE}, 4
    s_add_u32 s3, s3, s7
    s_waitcnt vmcnt(10)
    v_cmp_eq_u32 vcc, s3, v{env['Q'] + 3}
    s_and_b32 s{sNB}, vcc_lo, 15
    """
        return o + f"""
    s_cmp_eq_u32 s{sNB}, {15 if OPT['loc'] == 1 else 0}
    s_cbranch_scc1 {lbl}
    buffer_wbl2 sc1
    s_waitcnt vmcnt(0)
    {lbl}:
    """
    def issW():
        o = f's_mul_i32 s7, s{sPW}, {64 * 1152}\ns_add_u32 s7, s7, s{sSW}\ns_add_u32 m0, s{sIBW}, s{sMW}\ns_add_u32 s{sPW}, s{sPW}, 1\n'
        for n in range(5):
            if n == 4: o += 's_add_u32 m0, m0, 4096\ns_nop 0\n'
            o += f'buffer_load_dwordx4 v{VW[n]}, s[8:11], s7 offen offset:{(n & 3) * 1024} {OPT["nt_wo"]} lds\n'
        return o + f's_and_b32 s{sPW}, s{sPW}, 15\ns_add_u32 s{sIBW}, s{sIBW}, {WST}\ns_cmp_eq_u32 s{sIBW}, {NB * WST}\ns_cselect_b32 s{sIBW}, 0, s{sIBW}\n'
    def issO():
        o = f's_add_u32 m0, s{sIB}, s{sMO}\ns_lshl_b32 s7, s{sPO}, 12\ns_add_u32 s7, s7, s{sSO}\n'
        for e in range(4): o += f'buffer_load_dwordx4 v{VO}, s[20:23], s7 offen offset:{e * 1024} {OPT["ld2"]} lds\n'
        o += f's_add_u32 m0, s{sIB}, s{sM9}\ns_lshl_b32 s7, s{sPO}, 11\ns_add_u32 s7, s7, s{sS9}\ns_mov_b32 exec_hi, 0\n'
        o += f'buffer_load_dwordx4 v{VO}, s[20:23], s7 offen {OPT["ld2"]} lds\ns_mov_b32 exec_hi, -1\n'
        return o + f's_add_u32 s{sPO}, s{sPO}, 1\ns_and_b32 s{sPO}, s{sPO}, 15\ns_add_u32 s{sIB}, s{sIB}, {OST}\ns_cmp_eq_u32 s{sIB}, {NB * OST}\ns_cselect_b32 s{sIB}, 0, s{sIB}\n'
    if part == 0:
        o = f"""
        s_and_b32 s{sJJ}, s{sJ}, 3
        s_lshl_b32 s{sTID}, s{sBR}, 3
        s_add_u32 s{sTID}, s{sTID}, s{sB}
        s_lshl_b32 s{sTID}, s{sTID}, 2
        s_add_u32 s{sTID}, s{sTID}, s{sJJ}
        s_lshl_b32 s{sPW}, s{sJJ}, 2
        s_add_u32 s{sPO}, s{sPW}, 4
        s_and_b32 s{sPO}, s{sPO}, 15
        s_and_b32 s3, s2, 7
        s_lshl_b32 s3, s3, 3
        s_add_u32 s3, s3, s{sB}
        s_lshl_b32 s{sTMP}, s3, 7
        v_lshlrev_b32 v{VF}, 2, v{TID}
        v_lshlrev_b32 v{VO}, 4, v{TID}
        v_mov_b32 v{VP}, s{sE}
        v_mov_b32 v140, v{TID}
        s_mul_i32 s{sSW}, s{sJJ}, 288
        s_and_b32 s{sSW}, s{sSW}, 0xffc0
        s_mul_i32 s3, s{sWP}, {16 * 1152}
        s_add_u32 s{sSW}, s{sSW}, s3
        s_mul_i32 s{sMW}, s{sWP}, 5120
        s_lshl_b32 s{sMO}, s{sWP}, 12
        s_add_u32 s{sMO}, s{sMO}, {OOF}
        s_lshl_b32 s{sM9}, s{sWP}, 9
        s_lshl_b32 s{sS9}, s{sKS}, 15
        s_add_u32 s{sS9}, s{sS9}, s{sM9}
        s_add_u32 s{sS9}, s{sS9}, {1 << 20}
        s_add_u32 s{sM9}, s{sM9}, {OOF + 16384}
        s_lshl_b32 s{sSO}, s{sKS}, 16
        s_lshl_b32 s3, s{sWP}, 18
        s_add_u32 s{sSO}, s{sSO}, s3
        s_lshl_b32 s3, s{sB}, 2
        s_lshl_b32 s{sNB}, 1, s3
        s_mov_b32 s{sIB}, 0
        s_mov_b32 s{sIBW}, 0
        s_mov_b32 s3, 52429
        """
        for n in range(5):
            o += f"""
        v_add_u32 v131, {64 * n}, v{TID}
        v_mul_lo_u32 v132, s3, v131
        v_lshrrev_b32 v132, 20, v132
        v_mul_u32_u24 v133, 20, v132
        v_sub_u32 v133, v131, v133
        v_bfe_u32 v134, v132, 3, 1
        v_lshlrev_b32 v134, 1, v134
        v_xor_b32 v133, v133, v134
        v_mul_u32_u24 v132, 1152, v132
        v_lshl_add_u32 v132, v133, 4, v132
        v_add_u32 v{VW[n]}, {3072 - (n & 3) * 1024}, v132
        """
        o += f"""
        v_lshrrev_b32 v131, 4, v{TID}
        v_bfe_u32 v132, v{TID}, 2, 2
        v_lshl_add_u32 v132, v131, 3, v132
        v_mul_u32_u24 v132, 320, v132
        v_bfe_u32 v133, v{TID}, 1, 1
        v_lshl_add_u32 v132, v133, 4, v132
        v_and_b32 v133, 1, v{TID}
        v_lshl_add_u32 v132, v133, 3, v132
        v_and_b32 v133, 1, v131
        v_lshl_add_u32 v134, v133, 5, v132
        v_xor_b32 v135, 1, v133
        v_lshl_add_u32 v135, v135, 5, v132
        v_add_u32 v136, 64, v134
        s_bitcmp0_b32 s{sJJ}, 0
        s_cselect_b64 vcc, -1, 0
        s_lshl_b32 s3, s{sWP}, 6
        v_cndmask_b32 v{A0}, v135, v134, vcc
        v_cndmask_b32 v{A1}, v136, v135, vcc
        v_add_u32 v{A90}, s3, v{A0}
        v_add_u32 v{A91}, s3, v{A1}
        v_and_b32 v132, 15, v{TID}
        v_lshlrev_b32 v132, 4, v132
        v_lshrrev_b32 v131, 1, v131
        v_lshl_add_u32 v134, v133, 9, v132
        v_lshl_add_u32 v134, v131, 10, v134
        v_add_u32 v{AB}, s{sMO}, v134
        v_lshl_add_u32 v134, v133, 8, v132
        v_lshl_add_u32 v134, v131, 9, v134
        v_add_u32 v{AB9}, {OOF + 16384}, v134
        """
        return [l.strip() for l in o.split('\n') if l.strip()]
    if part == 3:
        P(issW()); return
    P(f"""
    s_cmp_ge_u32 s{sW}, 4
    s_cbranch_scc1 P2_G1
    s_waitcnt vmcnt(0)
    s_barrier
    """)
    stamp(5)
    def fl(l): return (f's_mov_b64 exec, 0xff\ns_cmp_eq_u32 s{sD2}, {15 if OPT["loc"] == 1 else 0}\ns_cbranch_scc1 {l}L\nbuffer_load_dword v{VP}, v{VF}, s[52:55], s{sTMP} offen sc1\ns_branch {l}M\n'
                       f'{l}L:\nbuffer_load_dword v{VP}, v{VF}, s[52:55], s{sDL} offen nt\n{l}M:\ns_mov_b64 exec, -1\n')
    P(f"""
    s_getreg_b32 s3, hwreg(HW_REG_XCC_ID, 0, 4)
    s_lshl_b32 s7, s{sE}, 4
    s_add_u32 s3, s3, s7
    v_cmp_eq_u32 vcc, s3, v{env['Q'] + 3}
    s_and_b32 s{sD2}, vcc_lo, 15
    s_add_u32 s{sDL}, s{sTMP}, 16384
    """)
    P('v_mov_b32 v137, 163832\nv_mov_b32 v138, 0\nds_write_b32 v137, v138')
    P(issW() + issW() + issW())
    P(f's_cmp_lg_u32 s{sW}, 0\ns_cbranch_scc1 P2_F0\n{fl("P2_F1")}P2_F0:')
    P(f"""
    s_waitcnt vmcnt(10)
    s_barrier
    s_waitcnt vmcnt(5)
    s_barrier
    s_waitcnt vmcnt(0)
    s_mov_b32 s{sNB}, 0
    s_mov_b32 s{sCNT}, 2
    s_sub_u32 s{sPW}, s{sPW}, 2
    P2_LD:
    s_cmp_eq_u32 s{sCNT}, 8
    s_cselect_b32 s3, 8, 2
    s_cselect_b32 s{sNB}, 4, s{sNB}
    s_add_u32 s{sPW}, s{sPW}, s3
    s_and_b32 s{sPW}, s{sPW}, 15
    s_cmp_lg_u32 s{sW}, 0
    s_cbranch_scc1 P2_PO
    s_lshr_b32 s3, s{sPW}, 2
    s_add_u32 s3, s3, s{sNB}
    s_mov_b32 s{sSPIN}, {OPT['spin']}
    P2_PF:
    v_cmp_eq_u32 vcc, s{sE}, v{VP}
    s_bitcmp1_b32 vcc_lo, s3
    s_cbranch_scc1 P2_PG
    {fl('P2_F2')}
    s_sub_u32 s{sSPIN}, s{sSPIN}, 1
    s_waitcnt vmcnt(0)
    s_cbranch_scc0 P2_PF
    P2_PG:
    v_mov_b32 v138, s{sCNT}
    ds_write_b32 v137, v138
    s_cmp_lg_u32 s{sCNT}, 6
    s_cbranch_scc1 P2_PN
    {fl('P2_F3')}
    s_branch P2_PN
    P2_PO:
    ds_read_b32 v138, v137
    s_waitcnt lgkmcnt(0)
    v_readfirstlane_b32 s6, v138
    s_cmp_eq_u32 s6, s{sCNT}
    s_cbranch_scc0 P2_PO
    P2_PN:
    s_mov_b32 s{sPO}, s{sPW}
    """)
    P(issO() + issW() + 's_waitcnt vmcnt(10)\ns_barrier\n' + issO() + issW())
    P(f's_add_u32 s{sCNT}, s{sCNT}, 2\ns_cmp_lt_u32 s{sCNT}, 14\ns_waitcnt vmcnt(10)\ns_barrier\ns_cbranch_scc1 P2_LD')
    P('s_waitcnt vmcnt(0)\ns_barrier\ns_barrier\ns_branch P2_RED')
    ACC = [[4 * (2 * t + j) for j in range(2)] for t in range(9)]; AC9 = [72, 76, 80]
    SET = [dict(A=[144 + 4 * t for t in range(9)], A9=[180, 184], B=[188, 192], B9=196),
           dict(A=[200 + 4 * t for t in range(9)], A9=[236, 240], B=[244, 248], B9=252)]
    P(f"""
    P2_G1:
    s_lshl_b32 s6, s{sTID}, 2
    s_add_u32 s6, s6, s{sKS}
    s_lshl_b32 s6, s6, 2
    s_add_u32 s6, s6, s{sWP}
    s_mul_i32 s6, s6, 11264
    s_add_u32 s6, s6, {WS_PART}
    s_add_u32 s16, s66, s6
    s_addc_u32 s17, s67, 0
    s_mov_b32 s18, 11264
    s_mov_b32 s19, 0x20000
    s_mov_b32 s{sIB}, 0
    s_mov_b32 s{sCNT}, 1
    s_mov_b32 s{sDL}, {WST}
    s_mov_b32 s{sD2}, {OST}
    s_lshl_b32 s6, s{sJJ}, 2
    s_add_u32 s{sTMP}, s6, s{sTMP}
    s_barrier
    s_cmp_eq_u32 s{sW}, 4
    s_cbranch_scc0 P2_FA
    s_add_u32 s{sSPIN}, s{sTMP}, 16384
    s_mov_b64 exec, 1
    buffer_store_dword v{VP}, v{VF}, s[52:55], s{sSPIN} offen
    s_mov_b64 exec, -1
    {wb('P2_WA', True).replace('vmcnt(10)', 'vmcnt(11)')}
    s_mov_b64 exec, 1
    buffer_store_dword v{VP}, v{VF}, s[52:55], s{sTMP} offen sc1
    s_mov_b64 exec, -1
    P2_FA:
    """)
    stamp(6)
    def rd(st, K):
        o = [f'ds_read_b128 {vr(st["B"][j], 4)}, v{AB} offset:{K * 2048 + j * 256}' for j in range(2)]
        for t in range(9):
            o += [f'ds_read_b64_tr_b16 {vr(st["A"][t] + 2 * j, 2)}, v{[A0, A1][t & 1]} offset:{K * 10240 + j * 1280 + 64 * (t >> 1)}' for j in range(2)]
            if t == 7: o.append(f'ds_read_b128 {vr(st["B9"], 4)}, v{AB9} offset:{K * 1024}')
        for t in range(2):
            o += [f'ds_read_b64_tr_b16 {vr(st["A9"][t] + 2 * j, 2)}, v{[A90, A91][t]} offset:{K * 10240 + j * 1280}' for j in range(2)]
        return o
    last = []
    def step(cur, rds, extra=(), first=False, tailbr=None):
        z = lambda d, a, b: f'v_mfma_f32_16x16x32_bf16 {vr(d, 4)}, {vr(a, 4)}, {vr(b, 4)}, 0' if first else mf16(d, a, b)
        m = []
        for t in range(9): m += [z(ACC[t][0], cur['A'][t], cur['B'][0]), z(ACC[t][1], cur['A'][t], cur['B'][1])]
        m += [z(AC9[2], cur['A'][8], cur['B9']), z(AC9[0], cur['A9'][0], cur['B9']), z(AC9[1], cur['A9'][1], cur['B9'])]
        for i in (0, 6, 12): m[i] += f' ; need {vr(cur["A"][i // 2 + 2], 4)}'
        m[18] += f' ; need {vr(cur["A9"][1], 4)}'
        rds = list(rds); extra = list(extra)
        for i, x in enumerate(m):
            if tailbr and i == len(m) - 1:
                assert not extra and not rds
                P(f's_cbranch_scc1 {tailbr}'); last.append(x)
            P(x)
            n = 2 if i % 3 != 2 else 1
            if rds: P.extend(rds[:n]); rds = rds[n:]
            elif extra: P.extend(extra[:2]); extra = extra[2:]
        assert not rds
        P.extend(extra)
    upd = [f'v_add_u32 v{r}, s{sDL}, v{r}' for r in (A0, A1, A90, A91)] + [f'v_add_u32 v{r}, s{sD2}, v{r}' for r in (AB, AB9)]
    ring = [f's_add_u32 s{sIB}, s{sIB}, 1', f's_and_b32 s{sIB}, s{sIB}, 3', f's_cmp_eq_u32 s{sIB}, {NB - 1}',
            f's_cselect_b32 s{sDL}, {-(NB - 1) * WST & 0xffffffff}, {WST}', f's_cselect_b32 s{sD2}, {-(NB - 1) * OST & 0xffffffff}, {OST}']
    P.extend(rd(SET[0], 0))
    step(SET[0], rd(SET[1], 1), upd, first=True)
    P('s_barrier\ns_branch P2_M\nP2_L:')
    if OPT['tl'] == 1: stamp(2, 3); stamp(7, 8); stamp(3, 12)
    step(SET[0], rd(SET[1], 1), upd + [f's_add_u32 s{sCNT}, s{sCNT}, 1', f's_cmp_eq_u32 s{sCNT}, {OPT["fb"]}'], tailbr='P2_SPEC')
    P('s_barrier\nP2_M:')
    step(SET[1], rd(SET[0], 0), ring + [f's_cmp_lt_u32 s{sCNT}, 16'])
    P('s_cbranch_scc1 P2_L\ns_branch P2_E\nP2_SPEC:\n' + last[0])
    P(f"""
    s_waitcnt vmcnt(0)
    s_barrier
    s_cmp_eq_u32 s{sW}, 4
    s_cbranch_scc0 P2_M
    s_mov_b64 exec, 1
    buffer_store_dword v{VP}, v{VF}, s[52:55], s{sSPIN} offen offset:16
    s_mov_b64 exec, -1
    {wb('P2_WB', False)}
    s_mov_b64 exec, 1
    buffer_store_dword v{VP}, v{VF}, s[52:55], s{sTMP} offen offset:16 sc1
    s_mov_b64 exec, -1
    s_branch P2_M
    P2_E:
    """)
    stamp(9)
    units = [(ACC[2 * u][j], ACC[2 * u + 1][j]) for j in range(2) for u in range(4)] + [(ACC[8][0], ACC[8][1]), (AC9[0], AC9[1]), (AC9[2], AC9[2])]
    dst = [84 + 4 * i if i < 9 else 144 + 4 * i for i in range(11)]
    def pack(i):
        x, y = units[i]; d = dst[i]
        P(f'v_cvt_pk_bf16_f32 v{d}, v{x}, v{x + 1}\nv_cvt_pk_bf16_f32 v{d + 1}, v{x + 2}, v{x + 3}')
        P(f'v_cvt_pk_bf16_f32 v{d + 2}, v{y}, v{y + 1}\nv_cvt_pk_bf16_f32 v{d + 3}, v{y + 2}, v{y + 3}')
        if i % 4 == 0: P(f's_mov_b32 s3, {i * 1024}')
        P(f'v_permlane16_swap_b32 v{d}, v{d + 2}\nv_permlane16_swap_b32 v{d + 1}, v{d + 3}')
    P(f's_cmp_eq_u32 s{sWP}, s{sKS}\ns_cbranch_scc1 P2_OWN')
    for i in range(11):
        pack(i); P(f'buffer_store_dwordx4 {vr(dst[i], 4)}, v{VO}, s[16:19], s3 offen offset:{(i % 4) * 1024} sc1')
    P('s_branch P2_RED\nP2_OWN:')
    for i in range(11):
        pack(i); P(f'ds_write_b128 v{VO}, {vr(dst[i], 4)} offset:{i * 1024}')
    P(f"""
    P2_RED:
    s_lshl_b32 s{sTMP}, s{sTID}, 7
    s_add_u32 s{sTMP}, s{sTMP}, 8192
    s_lshl_b32 s7, s{sKS}, 2
    s_add_u32 s7, s7, s{sTMP}
    s_lshl_b32 s6, s{sTID}, 4
    s_add_u32 s6, s6, s{sKS}
    s_mul_i32 s6, s6, 11264
    s_add_u32 s6, s6, {WS_PART}
    s_add_u32 s16, s66, s6
    s_addc_u32 s17, s67, 0
    s_mov_b32 s18, {3 * 45056 + 11264}
    s_mov_b32 s19, 0x20000
    s_mul_i32 s6, s{sB}, {144 * 2304}
    s_mul_i32 s3, s{sBR}, 1152
    s_add_u32 s6, s6, s3
    s_mul_i32 s3, s{sJJ}, 288
    s_add_u32 s6, s6, s3
    s_add_u32 s12, s68, s6
    s_addc_u32 s13, s69, 0
    s_sub_u32 s14, {1152 * 2304}, s6
    s_mov_b32 s15, 0x20000
    v_mov_b32 v{VP}, s{sE}
    s_mov_b64 s[{sNEED}:{sNEED + 1}], 15
    v_and_b32 v4, 15, v140
    v_mul_u32_u24 v4, 2304, v4
    v_lshrrev_b32 v5, 5, v140
    v_lshl_add_u32 v4, v5, 4, v4
    v_bfe_u32 v5, v140, 4, 1
    v_lshl_add_u32 v6, v5, 5, v4
    s_lshl_b32 s40, s{sKS}, 1
    s_lshr_b32 s3, s{sW}, 2
    s_add_u32 s40, s40, s3
    s_mul_i32 s40, s40, {16 * 2304}
    s_and_b32 s3, s{sW}, 3
    s_lshl_b32 s3, s3, 6
    s_add_u32 s40, s40, s3
    s_lshl_b32 s41, s{sW}, 10
    s_mul_i32 s42, s{sKS}, {32 * 2304}
    s_add_u32 s42, s42, 256
    s_lshl_b32 s3, s{sKS}, 6
    s_add_u32 s3, s3, {128 * 2304}
    s_cmp_eq_u32 s{sW}, 1
    s_cselect_b32 s42, s3, s42
    s_cselect_b32 s45, 32, 0
    s_cmp_eq_u32 s{sW}, 2
    s_cselect_b32 s42, {128 * 2304 + 256}, s42
    s_cmp_eq_u32 s{sW}, 0
    s_cselect_b32 s45, {16 * 2304}, s45
    v_mul_lo_u32 v7, s45, v5
    v_add_u32 v7, v7, v4
    s_cmp_lg_u32 s{sKS}, 0
    s_cselect_b32 s45, 2, 3
    s_waitcnt vmcnt(0)
    s_barrier
    s_cmp_eq_u32 s{sW}, 7
    s_cbranch_scc0 P2_NG
    s_mov_b64 exec, 1
    buffer_store_dword v{VP}, v{VF}, s[52:55], s7 offen sc1
    s_mov_b64 exec, -1
    P2_NG:
    """)
    stamp(10)
    P(f"""
    s_lshl_b32 s3, s{sW}, 10
    v_add_u32 v8, s3, v{VO}
    ds_read_b128 v[32:35], v8
    ds_read_b128 v[48:51], v8 offset:8192
    s_cmp_lg_u32 s{sW}, 0
    s_cbranch_scc1 P2_PW
    """ + poll('P2_PR', sTMP) + 'P2_PW:\ns_barrier')
    stamp(11)
    def loads(base, so):
        for k in range(1, 4):
            P(f's_add_u32 s3, s{sKS}, {k}\ns_and_b32 s3, s3, 3\ns_mul_i32 s3, s3, 45056\ns_add_u32 s3, s3, s{so}\nbuffer_load_dwordx4 {vr(base + 4 * k, 4)}, v{VO}, s[16:19], s3 offen sc1')
    def reduce(base, va, so, left):
        for k in range(4):
            if k: P(f's_waitcnt vmcnt({left + 3 - k})')
            for i in range(4):
                src = base + 4 * k + i; t = 16 if k == 0 else 24
                P(f'v_lshlrev_b32 v{t + 2 * i}, 16, v{src}\nv_and_b32 v{t + 1 + 2 * i}, s46, v{src}')
            if k:
                for i in range(8): P(f'v_add_f32 v{16 + i}, v{16 + i}, v{24 + i}')
        for i in range(4): P(f'v_cvt_pk_bf16_f32 v{base + i}, v{16 + 2 * i}, v{17 + 2 * i}')
        P(f'buffer_store_dwordx4 {vr(base, 4)}, v{va}, s[12:15], s{so} offen')
    P('s_mov_b32 s46, 0xffff0000')
    loads(32, 41)
    P(f's_cmp_lt_u32 s{sW}, s45\ns_cbranch_scc1 P2_R2')
    reduce(32, 6, 40, 0)
    P(f's_branch P2_RE\nP2_R2:\ns_add_u32 s41, s41, 8192')
    loads(48, 41)
    reduce(32, 6, 40, 3)
    reduce(48, 7, 42, 1)
    P('P2_RE:')
    if OPT['stamps']:
        P('s_waitcnt vmcnt(0)'); stamp(8)

def k1():
    P = Prog()
    O, S, CN, Q, PP, O9, Q9, S9, CN9, P9 = 0, 64, 96, 112, 144, 160, 192, 208, 212, 216
    L, L9, VOK, VOV, AK, AK9, AV9, TID = 218, 219, 220, 221, 222, 223, 224, 225
    VA = 226
    T0, T1, AL, AL9, X0, X1 = 230, 231, 232, 233, 234, 235
    FB = [236, 240, 244, 248, 252]
    ACC = [[0, 16, 32, 48], [64, 80, 144, 176]]; ACC9 = [[160, 164], [168, 172]]
    QW = [230, 231, 232, 233]; QX = [234, 235]; QX9, QW9, VOW, VOX, HOLD = 216, 217, 218, 219, 212
    QB, QB9 = [96, 100], 104
    QF = [112, 116, 120, 124, 128, 132, 136, 140, 236, 240]
    sW, sWP, sP, sB, sJ, sBR = 24, 25, 26, 27, 28, 29
    sCNT, sW0, sX, sMC, sIB, sDL = 30, 31, 33, 35, 36, 37
    sEX = 38
    sIK, sROT = 31, 49
    sIS, sSK, sSV, sDK, sDV, sT, sCL, sRARE, sTMP, sTM2, sMW, sKP, sVP, sE = 40, 41, 42, 43, 44, 45, 46, 47, 48, 49, 50, 51, 32, 34
    NSB = OPT['nsb']; STGS = 25600; STG0 = 163840 - NSB * STGS
    SB0 = (NSB - 18) % NSB
    QXCH, Q9B = 131072, 98304 + 16384
    nk, ntw = OPT['nt_kv'], OPT['nt_w']
    def stamp(k, at=None):
        if OPT['stamps'] == 3: return
        if OPT['stamps']:
            if at is not None: P(f's_cmp_lg_u32 s{sCNT}, {at}\ns_cbranch_scc1 K1_ST{k}_{len(P.ins)}'); lbl = P.ins[-1].target
            P(('s_memtime' if OPT['stamps'] == 2 else 's_memrealtime') + ' s[%d:%d]' % (70 + 2 * k, 71 + 2 * k))
            if at is not None: P(f'{lbl}:')
            if k == 1 and OPT['stamps'] == 1: P('s_memtime s[96:97]')
            if k == 4 and OPT['stamps'] == 1: P('s_memtime s[98:99]')
            if k == 2 and OPT['stamps'] == 1: P('s_memtime s[94:95]')
    P(f"""
    s_cmp_ge_u32 s2, 256
    s_cbranch_scc1 K1_END
    s_bfe_u32 s{sBR}, s2, 0x10002
    s_mul_i32 s6, s{sBR}, 40
    s_add_u32 s4, s0, s6
    s_addc_u32 s5, s1, 0
    s_load_dwordx8 s[56:63], s[4:5], 0
    s_load_dwordx4 s[64:67], s[0:1], 88
    s_load_dwordx2 s[68:69], s[0:1], 80
    s_load_dwordx2 s[100:101], s[4:5], 32
    """)
    if OPT['stamps']:
        for k in range(70, 100, 2): P(f's_mov_b64 s[{k}:{k + 1}], 0')
    stamp(0)
    P(f"""
    v_lshrrev_b32 v1, 6, v0
    v_and_b32 v{TID}, 63, v0
    v_readfirstlane_b32 s{sW}, v1
    v_lshrrev_b32 v2, 4, v{TID}
    v_and_b32 v3, 15, v{TID}
    s_and_b32 s3, s2, 3
    s_lshl_b32 s3, s3, 2
    s_bfe_u32 s7, s2, 0x20003
    s_add_u32 s{sJ}, s3, s7
    s_lshr_b32 s{sB}, s2, 5
    s_and_b32 s{sWP}, s{sW}, 3
    s_lshr_b32 s{sP}, s{sW}, 2
    v_lshlrev_b32 v4, 2, v2
    v_xor_b32 v4, v4, v3
    v_lshlrev_b32 v4, 4, v4
    v_lshl_add_u32 v{VOW}, v2, 13, v4
    v_lshrrev_b32 v8, 2, v{TID}
    v_and_b32 v9, 3, v{TID}
    v_xor_b32 v9, v9, v2
    v_mul_u32_u24 v8, 1152, v8
    v_lshl_add_u32 v{VOX}, v9, 4, v8
    s_lshl_b32 s3, s{sWP}, 2
    v_or_b32 v5, s3, v2
    v_xor_b32 v5, v5, v3
    v_lshlrev_b32 v5, 4, v5
    s_lshl_b32 s{sMW}, s{sWP}, 12
    v_lshl_add_u32 v5, v2, 8, v5
    v_add_u32 v{VOK}, s{sMW}, v5
    v_lshl_add_u32 v5, v2, 8, v4
    v_add_u32 v{VOV}, s{sMW}, v5
    s_lshl_b32 s{sW0}, s{sWP}, 16
    s_mul_i32 s{sX}, s{sWP}, 18432
    s_mul_i32 s{sMC}, s{sWP}, 3072
    s_lshl_b32 s3, s{sWP}, 4
    s_lshl_b64 s[{sEX}:{sEX + 1}], 0xffff, s3
    s_mul_i32 s6, s{sB}, 165888
    s_lshl_b32 s7, s{sJ}, 9
    s_mov_b32 s11, 0x20000
    s_mov_b32 s22, {165888 + 2048}
    s_mov_b32 s23, 0x20000
    s_sub_u32 s10, {576 * 8192}, s7
    s_mov_b32 s{sIB}, {STG0}
    s_lshl_b32 s{sTMP}, s{sB}, 5
    s_lshl_b32 s{sTM2}, s{sJ}, 1
    s_add_u32 s{sTMP}, s{sTMP}, s{sTM2}
    s_lshl_b32 s{sTMP}, s{sTMP}, 17
    s_mov_b32 s14, 262144
    s_mov_b32 s15, 0x20000
    s_mov_b32 s18, 262144
    s_mov_b32 s19, 0x20000
    s_mov_b32 s{sCNT}, 0
    s_cmp_ge_u32 s{sW}, 4
    s_waitcnt lgkmcnt(0)
    s_cbranch_scc1 K1_G1
    s_add_u32 s8, s62, s7
    s_addc_u32 s9, s63, 0
    s_add_u32 s20, s56, s6
    s_addc_u32 s21, s57, 0
    s_sub_u32 s20, s20, 2048
    s_subb_u32 s21, s21, 0
    """)
    kvsrd = f"""
    s_add_u32 s12, s58, s{sTMP}
    s_addc_u32 s13, s59, 0
    s_add_u32 s16, s60, s{sTMP}
    s_addc_u32 s17, s61, 0
    s_lshr_b32 s{sROT}, s2, 3
    s_mul_i32 s3, s2, {OPT['rotx']}
    s_mul_i32 s{sROT}, s{sROT}, {OPT['rot']}
    s_add_u32 s{sROT}, s{sROT}, s3
    s_lshl_b32 s{sROT}, s{sROT}, 14
    s_add_u32 s52, s66, {WS_FLAG}
    s_addc_u32 s53, s67, 0
    s_mov_b32 s54, 32768
    s_mov_b32 s55, 0x20000
    """
    lanec = f"""
    v_bfe_u32 v10, v{TID}, 2, 2
    v_and_b32 v11, 3, v{TID}
    v_lshrrev_b32 v12, 5, v{TID}
    v_and_b32 v13, 1, v2
    v_and_b32 v20, 1, v11
    v_lshrrev_b32 v15, 1, v11
    v_lshlrev_b32 v16, 2, v10
    v_lshl_add_u32 v17, v13, 1, v20
    v_xor_b32 v17, v17, v16
    v_lshlrev_b32 v17, 4, v17
    v_lshl_add_u32 v17, v15, 3, v17
    v_lshl_add_u32 v17, v10, 8, v17
    s_lshl_b32 s3, s{sP}, 14
    s_add_u32 s{sMW}, s{sMW}, s3
    s_add_u32 s6, s3, 65536
    v_lshl_add_u32 v18, v12, 10, v17
    v_add_u32 v{VA}, s6, v18
    v_xor_b32 v{VA + 1}, 64, v{VA}
    v_xor_b32 v{VA + 2}, 0x80, v{VA}
    v_xor_b32 v{VA + 3}, 0xc0, v{VA}
    v_bfe_u32 v23, v{TID}, 3, 2
    v_bfe_u32 v24, v{TID}, 2, 1
    v_lshl_add_u32 v25, v23, 2, v11
    v_xor_b32 v25, v25, v12
    v_lshlrev_b32 v25, 4, v25
    v_lshl_add_u32 v25, v11, 8, v25
    v_lshl_add_u32 v25, v24, 10, v25
    v_lshl_add_u32 v25, v23, 12, v25
    v_add_u32 v{AK}, s3, v25
    s_lshl_b32 s7, s{sWP}, 10
    s_add_u32 s6, s3, s7
    v_xor_b32 v25, v2, v3
    v_lshlrev_b32 v25, 4, v25
    v_lshl_add_u32 v25, v11, 8, v25
    v_lshl_add_u32 v25, v10, 12, v25
    v_add_u32 v{AK9}, s6, v25
    v_xor_b32 v25, v15, v16
    v_lshlrev_b32 v25, 4, v25
    v_lshl_add_u32 v25, v20, 3, v25
    v_lshl_add_u32 v25, v10, 8, v25
    v_lshl_add_u32 v25, v2, 12, v25
    s_add_u32 s6, s6, 65536
    s_lshl_b32 s7, s{sWP}, 6
    v_xor_b32 v25, s7, v25
    v_add_u32 v{AV9}, s6, v25
    v_mul_u32_u24 v26, 272, v3
    v_lshl_add_u32 v27, v2, 4, v26
    s_mul_i32 s6, s{sP}, 4352
    s_add_u32 s6, s6, {Q9B}
    v_add_u32 v{S9}, s6, v27
    v_lshlrev_b32 v27, 4, v{TID}
    s_lshl_b32 s6, s{sWP}, 13
    s_add_u32 s6, s6, {QXCH}
    v_add_u32 v{S9 + 1}, s6, v27
    """
    loopinit = f"""
    s_mov_b32 s{sCNT}, 1
    s_mov_b32 s{sKP}, 32768
    s_mov_b32 s{sVP}, 65536
    s_mov_b32 s{sDK}, 32768
    s_mov_b32 s{sDV}, 0
    s_mov_b32 s{sIS}, 131072
    s_mov_b32 s{sIK}, 0
    s_mov_b32 s33, 0
    s_mul_i32 s3, s{sP}, {OPT['rotp'] * 16384}
    s_add_u32 s3, s3, s{sROT}
    s_add_u32 s{sSV}, s3, 16384
    s_and_b32 s{sSV}, s{sSV}, 0x1ffff
    s_add_u32 s{sSK}, s3, 49152
    s_and_b32 s{sSK}, s{sSK}, 0x1ffff
    s_mov_b32 s{sCL}, 0xff800000
    s_mov_b32 s{sRARE}, 0
    """
    obase = f"""
    s_lshl_b32 s6, s{sBR}, 3
    s_add_u32 s6, s6, s{sB}
    s_mul_i32 s6, s6, 1179648
    s_mul_i32 s7, s{sWP}, {262144 - 4096}
    s_add_u32 s6, s6, s7
    s_lshl_b32 s7, s{sJ}, 1
    s_add_u32 s7, s7, s{sP}
    s_lshl_b32 s7, s7, 13
    s_add_u32 s6, s6, s7
    s_add_u32 s56, s66, s6
    s_addc_u32 s57, s67, 0
    """
    narrow = f's_lshl_b32 s3, s{sP}, 17\ns_add_u32 s12, s12, s3\ns_addc_u32 s13, s13, 0\ns_add_u32 s16, s16, s3\ns_addc_u32 s17, s17, 0\ns_mov_b32 s14, 131072\ns_mov_b32 s18, 131072'
    getE = f'v_mov_b32 v{AL}, {Q9B + 8704}\nds_read_b32 v{AL}, v{AL}' if OPT['fused'] else ''
    getE2 = f'v_readfirstlane_b32 s{sE}, v{AL}' if OPT['fused'] else ''
    queue = []
    def vm(text, tag): P(text); queue.append(tag)
    BS = [int(c, 36) for c in str(OPT['bs'])]; BN = OPT['bn'] if BS else 0
    bpos = {}
    def wait_for(tag):
        idx = max(i for i, t in enumerate(queue) if t == tag)
        n = len(queue) - 1 - idx
        young = [c for c, p_ in bpos.items() if p_ > idx]
        if young and n + BN <= 63 and len(young) < 4:
            lbl = f'K1_BW{len(P.ins)}'
            P(f's_bitcmp1_b32 s{sCLS}, 0' if False else f's_and_b32 s3, s{sCLS}, {sum(1 << c for c in young)}\ns_cbranch_scc1 {lbl}\ns_waitcnt vmcnt({min(63, n)})\n{lbl}:\ns_waitcnt vmcnt({n + BN})')
        elif len(young) == 4: P(f's_waitcnt vmcnt({min(63, n + BN)})')
        else: P(f's_waitcnt vmcnt({min(63, n)})')
    def stage(s):
        if OPT['nost'] and s >= 3: queue.append(('s', s)); return
        buf = STG0 + ((s + SB0) % NSB) * STGS
        for hd in range(2):
            P(f's_add_u32 m0, s{sMC}, {buf + hd * 12288}\ns_add_u32 s3, s{sW0}, {s * 262144 + hd * 256}')
            vm(f'buffer_load_dwordx4 v{VOW}, s[8:11], s3 offen {ntw} lds', ('s', s))
            P(f's_add_u32 s3, s3, {32768 - 1024}')
            vm(f'buffer_load_dwordx4 v{VOW}, s[8:11], s3 offen offset:1024 {ntw} lds', ('s', s))
            P(f's_add_u32 s3, s{sX}, {s * 64 + hd * 4 * 18432}')
            vm(f'buffer_load_dwordx4 v{VOX}, s[20:23], s3 offen offset:2048 {ntw} lds', ('s', s))
        P(f's_mov_b32 m0, {buf + 24576}\ns_mov_b32 s3, {s * 64 + 128 * 1152 + 2048}\ns_mov_b64 exec, s[{sEX}:{sEX + 1}]')
        vm(f'buffer_load_dwordx4 v{VOX}, s[20:23], s3 offen {ntw} lds', ('s', s))
        P('s_mov_b64 exec, -1')
    VTW, VTX, sTW, sTX, sCLS = 232, 233, 45, 46, 47
    def touch(s):
        if s >= 18 or not OPT['tlead']: return
        P(f's_add_u32 s3, s{sTW}, {s * 262144}\ns_add_u32 s6, s{sTX}, {s * 64}\ns_mov_b64 exec, 0x1ff')
        vm(f'buffer_load_dword v{X0}, v{VTW}, s[8:11], s3 offen {ntw}', ('t', s))
        vm(f'buffer_load_dword v{X1}, v{VTX}, s[20:23], s6 offen {ntw}', ('t', s))
        P('s_mov_b64 exec, -1')
    def ltouch():
        TR = OPT['trows']
        P(f"""
        v_lshrrev_b32 v{VTW}, 3, v{TID}
        v_and_b32 v{VTX}, 7, v{TID}
        v_lshlrev_b32 v{VTX}, 6, v{VTX}
        v_lshl_add_u32 v{VTW}, v{VTW}, 13, v{VTX}
        v_lshlrev_b32 v{VTX}, 6, v{TID}
        s_lshl_b32 s3, s{sB}, 2
        s_add_u32 s3, s3, s{sWP}
        s_mul_i32 s3, s3, {TR * 8192}
        s_add_u32 s3, s3, {(576 - 32 * TR) * 8192}
        s_bfe_u32 s6, s2, 0x20003
        s_lshl_b32 s6, s6, 2
        s_add_u32 s6, s6, s{sWP}
        s_mul_i32 s6, s6, {162 * 64}
        s_add_u32 s6, s6, 2048
        """)
        tw = [(i, min(8, TR - 8 * i) * 8) for i in range((TR + 7) // 8)]; tx = [(0, 64), (1, 64), (2, 34)]
        for i in range(3):
            for (lst, v, srd, so, step) in ((tw, VTW, 8, 3, 8 * 8192), (tx, VTX, 20, 6, 4096)):
                if i >= len(lst): continue
                n = lst[i][1]
                if n < 64: P(f's_mov_b64 exec, {hex((1 << n) - 1)}' if n <= 31 else f's_mov_b32 exec_hi, {(1 << (n - 32)) - 1}')
                vm(f'buffer_load_dword v{X0}, v{v}, s[{srd}:{srd + 3}], s{so} offen {ntw}', ('t', 0))
                if n < 64: P('s_mov_b64 exec, -1')
                P(f's_add_u32 s{so}, s{so}, {step}')
    def btouch(a, b):
        n = b - a; l0, l1 = a // 2, (b + 1) // 2; nl = l1 - l0
        mg = (65536 + nl - 1) // nl
        assert all((i * mg) >> 16 == i // nl for i in range(64)) and 4 * n <= 64 and 9 * nl <= 64
        P(f"""
        v_lshrrev_b32 v{VTW}, 2, v{TID}
        v_and_b32 v{VTX}, 3, v{TID}
        v_lshlrev_b32 v{VTX}, 7, v{VTX}
        v_lshl_add_u32 v{VTW}, v{VTW}, 13, v{VTX}
        v_mul_u32_u24 v{X1}, {mg}, v{TID}
        v_lshrrev_b32 v{X1}, 16, v{X1}
        v_mul_u32_u24 v{VTX}, {1152 - 128 * nl}, v{X1}
        v_lshl_add_u32 v{VTX}, v{TID}, 7, v{VTX}
        s_lshl_b32 s3, s{sB}, 2
        s_add_u32 s3, s3, s{sWP}
        s_mul_i32 s3, s3, {n * 8192}
        s_add_u32 s3, s3, {32 * a * 8192}
        s_and_b32 s6, s{sJ}, 3
        s_lshl_b32 s6, s6, 2
        s_add_u32 s6, s6, s{sWP}
        s_mul_i32 s6, s6, {9 * 1152}
        s_add_u32 s6, s6, {2048 + 128 * l0}
        """)
        for cnt, v, srd, so in ((4 * n, VTW, 8, 3), (9 * nl, VTX, 20, 6)):
            P(f's_mov_b64 exec, {hex((1 << cnt) - 1)}' if cnt <= 31 else f's_mov_b32 exec_lo, -1\ns_mov_b32 exec_hi, {hex((1 << (cnt - 32)) - 1)}')
            vm(f'buffer_load_dword v{X0}, v{v}, s[{srd}:{srd + 3}], s{so} offen {ntw}', ('t', 2))
        P('s_mov_b64 exec, -1')
    TB = [tuple(int(y) for y in x.split(':')) for x in str(OPT['tb']).split(',') if x]
    def otouch():
        P(f"""
        s_lshl_b32 s6, s{sBR}, 3
        s_add_u32 s6, s6, s{sB}
        s_mul_i32 s6, s6, 1179648
        s_add_u32 s56, s66, s6
        s_addc_u32 s57, s67, 0
        s_mov_b32 s58, 1179648
        s_mov_b32 s59, 0x20000
        v_lshlrev_b32 v{VTW}, 7, v{TID}
        s_lshl_b32 s3, s{sWP}, 18
        s_lshl_b32 s6, s{sJ}, 14
        s_add_u32 s3, s3, s6
        """)
        vm(f'buffer_load_dword v{X0}, v{VTW}, s[56:59], s3 offen', ('t', 1))
        P('s_add_u32 s3, s3, 8192')
        vm(f'buffer_load_dword v{X0}, v{VTW}, s[56:59], s3 offen', ('t', 1))
        P(f's_lshl_b32 s3, s{sJ}, 13\ns_lshl_b32 s6, s{sWP}, 11\ns_add_u32 s3, s3, s6\ns_add_u32 s3, s3, {1 << 20}\ns_mov_b64 exec, 0xffff')
        vm(f'buffer_load_dword v{X0}, v{VTW}, s[56:59], s3 offen', ('t', 1))
        P('s_mov_b64 exec, -1')
    PRE = {(0, 0): [64, 68, 72, 76], (0, 1): [80, 84, 88, 92], (1, 0): [112, 116, 120, 124], (1, 1): [128, 132, 136, 140],
           (2, 0): [192, 196, 200, 204], (2, 1): [236, 240, 244, 248], (3, 0): [96, 100, 104, 252], (3, 1): [144, 148, 152, 156]}
    SRC = {0: (VOK, 12, 0), 1: (VOK, 12, 16384), 2: (VOV, 16, 0), 3: (VOK, 12, 32768)}
    FREE = {(0, 0): 0 if NSB <= 5 else 13, (0, 1): 0 if NSB <= 5 else 13, (1, 0): 15, (1, 1): 15, (2, 0): 16, (2, 1): 16, (3, 0): 17, (3, 1): 19}
    inreg = set()
    def kvload(step, u, hd, n):
        if OPT['nokv'] & 1: return
        vo, srd, off = SRC[u]
        P(f's_add_u32 s3, s{sROT}, {off + hd * OPT["rotp"] * 16384}\ns_and_b32 s3, s3, 0x1ffff' + (f'\ns_add_u32 s3, s3, 131072' if hd else ''))
        if step >= FREE[u, hd]:
            P(f's_add_u32 m0, s{sMW}, {u * 32768 + hd * 16384}\ns_nop 0')
            vm(f'buffer_load_dwordx4 v{vo}, s[{srd}:{srd + 3}], s3 offen offset:{n * 1024} {nk} lds', ('k', u))
        else:
            vm(f'buffer_load_dwordx4 {vr(PRE[u, hd][n], 4)}, v{vo}, s[{srd}:{srd + 3}], s3 offen offset:{n * 1024} {nk}', ('r', u, hd)); inreg.add((u, hd, n))
    def kvdump(step):
        if OPT['nokv'] & 2: return
        for (u, hd), f in FREE.items():
            ns = [n for n in range(4) if (u, hd, n) in inreg]
            if f != step or not ns: continue
            if (u, hd) in btag: P(f's_waitcnt vmcnt({min(63, len(queue) - btag[u, hd])})')
            if ('r', u, hd) in queue: wait_for(('r', u, hd))
            base = u * 32768 + hd * 16384
            for n in ns: P(f'ds_write_b128 v{[T0, T1][base >> 16]}, {vr(PRE[u, hd][n], 4)} offset:{(base & 0xffff) + n * 1024}')
    kvq = [(u, hd, n) for u in range(4) for hd in range(2) for n in range(4)]
    npre, dist = OPT['npre'], OPT['dist']
    sched = [int(c, 36) for c in str(OPT['kvs'])] + [0] * 30
    assert sum(sched) + abs(OPT['kpre']) + BN == 32 and dist <= NSB - 1 and npre <= NSB
    burst = [kvq.pop(0) for _ in range(BN)]; btag = {}
    if BS: P(f's_and_b32 s3, s{sJ}, 3\ns_lshl_b32 s{sCLS}, 1, s3')
    nxt = 0
    for s in range(npre): stage(s); nxt += 1
    if OPT['tlead']:
        P(f"""
        v_lshlrev_b32 v{VTW}, 6, v{TID}
        v_mul_u32_u24 v{VTX}, 1152, v{TID}
        s_lshl_b32 s{sTW}, s{sB}, 2
        s_add_u32 s{sTW}, s{sTW}, s{sWP}
        s_lshl_b32 s{sTW}, s{sTW}, 13
        s_bfe_u32 s{sTX}, s2, 0x20003
        s_lshl_b32 s{sTX}, s{sTX}, 2
        s_add_u32 s{sTX}, s{sTX}, s{sWP}
        s_mul_i32 s{sTX}, s{sTX}, {9 * 1152}
        s_add_u32 s{sTX}, s{sTX}, 2048
        """)
        for s in range(npre, dist + OPT['tlead']): touch(s)
    if OPT['kpre']:
        P(kvsrd)
        for _ in range(max(0, OPT['kpre'])): kvload(0, *kvq.pop(0))
    if OPT['ts'] == -1: ltouch()
    for st_, a_, b_ in TB:
        if st_ == -1: btouch(a_, b_)
    for _ in range(max(0, -OPT['kpre'])): kvload(0, *kvq.pop(0))
    later = ['' if OPT['kpre'] else kvsrd] + [f'v_lshlrev_b32 v{T0}, 4, v{TID}\nv_add_u32 v{T0}, s{sMW}, v{T0}\nv_add_u32 v{T1}, 0x10000, v{T0}', lanec]
    zs = list(range(108, 112)) + list(range(O9, O9 + 32)) + list(range(CN9, CN9 + 4)) + list(range(63, -1, -1))
    later += ['\n'.join(f'v_mov_b32 v{r}, 0' for r in zs[i:i + 26]) for i in range(0, len(zs), 26)]
    P(later.pop(0))
    for s in range(19):
        if OPT['stamps'] == 2 and s == OPT['sq']: stamp(5)
        if OPT['stamps'] == 2 and s == OPT['sq'] + 1: stamp(6)
        if OPT['stamps'] == 3 and OPT['sq'] == 99 and 1 <= s <= 5: P(f's_memtime s[{70 + 6 * s - 4}:{71 + 6 * s - 4}]')
        if s < 18: wait_for(('s', s))
        if OPT['stamps'] == 3 and OPT['sq'] == 99 and 1 <= s <= 4: P(f's_memtime s[{70 + 6 * s - 2}:{71 + 6 * s - 2}]')
        if OPT['stamps'] == 2 and s == OPT['sq']: stamp(3)
        P('s_barrier')
        if OPT['stamps'] == 2 and s == OPT['sq']: stamp(2)
        if s == 0 and OPT['stamps'] == 1: stamp(1)
        S3 = [0, 1, 2, 3, 4, 5, 6, 8, 10, 12, 13, 14, 15, 16, 18]
        if OPT['stamps'] == 3 and OPT['sq'] == 99:
            if s <= 4: P(f's_memtime s[{70 + 6 * s}:{71 + 6 * s}]')
        elif OPT['stamps'] == 3 and s in S3: P(f's_memtime s[{70 + 2 * S3.index(s)}:{71 + 2 * S3.index(s)}]')
        if OPT['sp']:
            for _ in range(int((str(OPT['sp']) + '0' * 20)[s])):
                assert nxt <= s + NSB - 1
                stage(nxt); nxt += 1
            if OPT['ts'] == s: ltouch()
            for st_, a_, b_ in TB:
                if st_ == s: btouch(a_, b_)
            if OPT['ot'] == s: otouch()
        n = 0
        while not OPT['sp'] and nxt < 18 and nxt <= s + dist and n < 2: stage(nxt); nxt += 1; n += 1
        touch(s + dist + OPT['tlead'])
        if s in BS:
            cl_ = [c for c in range(4) if BS[c] == s]; lbl = f'K1_BU{s}'
            P(f's_and_b32 s3, s{sCLS}, {sum(1 << c for c in cl_)}\ns_cbranch_scc0 {lbl}')
            keepq = len(queue)
            for pc in burst: kvload(s, *pc)
            del queue[keepq:]
            for c in cl_: bpos[c] = keepq
            P(f'{lbl}:')
            if len(bpos) == 4:
                for u_, hd_, n_ in burst: btag[(u_, hd_)] = keepq
        kvdump(s)
        for _ in range(sched[s]): kvload(s, *kvq.pop(0))
        if later: P(later.pop(0))
    assert nxt == 18 and not later
    for r in list(range(96, 108)) + [L, L9]: P(f'v_mov_b32 v{r}, 0')
    P(loopinit)
    if OPT['stamps'] == 1: stamp(2)
    if (0, 1) in btag: P(f's_waitcnt vmcnt({min(63, len(queue) - btag[0, 1])})')
    if ('k', 0) in queue: wait_for(('k', 0))
    P('s_barrier')
    P(getE)
    for kk in range(8): P(f'ds_read_b128 {vr(Q + 4 * kk, 4)}, v{S9 + 1} offset:{kk * 1024}')
    for kk in range(4): P(f'ds_read_b128 {vr(Q9 + 4 * kk, 4)}, v{S9} offset:{kk * 64}')
    P('s_barrier')
    P(getE2)
    kvdump(19)
    for _ in range(sched[19]): kvload(19, *kvq.pop(0))
    assert not kvq
    P(narrow)
    after = lambda u: (len(queue) - 1 - max(i for i, t in enumerate(queue) if t == ('k', u))) if ('k', u) in queue else 60
    X1N = min(63, after(1) + 4) if OPT['nbar'] == 2 else min(63, after(1) + 4, after(2) + 4)
    P('s_branch K1_HEAD')
    P('K1_G1:')
    P(kvsrd)
    if OPT['fused']:
        P(f"""
                v_mov_b32 v246, 0
        s_cmp_eq_u32 s{sW}, 4
        s_cbranch_scc0 K1_E0
        buffer_load_dword v244, v246, s[52:55], 0 offen sc1
        K1_E0:
        """)
    def touches():
        P(f"""
        s_lshl_b32 s7, s{sJ}, 9
        s_mul_i32 s6, s{sB}, 165888
        s_add_u32 s8, s62, s7
        s_addc_u32 s9, s63, 0
        s_add_u32 s20, s56, s6
        s_addc_u32 s21, s57, 0
        s_mov_b32 s22, 165888
        v_lshrrev_b32 v28, 3, v{TID}
        v_and_b32 v29, 7, v{TID}
        v_lshlrev_b32 v29, 6, v29
        v_lshl_add_u32 v28, v28, 13, v29
        v_lshlrev_b32 v29, 6, v{TID}
        s_lshl_b32 s3, s{sB}, 2
        s_add_u32 s3, s3, s{sWP}
        s_mul_i32 s3, s3, {TR * 8192}
        s_add_u32 s3, s3, {(576 - 32 * TR) * 8192}
        s_bfe_u32 s6, s2, 0x20003
        s_lshl_b32 s6, s6, 2
        s_add_u32 s6, s6, s{sWP}
        s_mul_i32 s6, s6, {162 * 64}
        """)
        tw = [(i, min(8, TR - 8 * i) * 8) for i in range((TR + 7) // 8)]; tx = [(0, 64), (1, 64), (2, 34)]
        k = 0
        for i in range(3):
            for (lst, v, srd, so, step) in ((tw, 28, 8, 3, 8 * 8192), (tx, 29, 20, 6, 4096)):
                if i >= len(lst): continue
                n = lst[i][1]
                if n < 64: P(f's_mov_b64 exec, {hex((1 << n) - 1)}' if n <= 31 else f's_mov_b32 exec_hi, {(1 << (n - 32)) - 1}')
                P(f'buffer_load_dword v{248 + k}, v{v}, s[{srd}:{srd + 3}], s{so} offen {ntw}'); k += 1
                if n < 64: P('s_mov_b64 exec, -1')
                P(f's_add_u32 s{so}, s{so}, {step}')
        return k
    def ptouch():
        pg = OPT['ptouch']
        P(f"""
        s_lshl_b32 s7, s{sJ}, 9
        s_mul_i32 s6, s{sB}, 165888
        s_add_u32 s8, s62, s7
        s_addc_u32 s9, s63, 0
        s_add_u32 s20, s56, s6
        s_addc_u32 s21, s57, 0
        s_mov_b32 s22, 165888
        v_lshlrev_b32 v28, 16, v{TID}
        s_lshl_b32 s3, s{sWP}, 20
        s_add_u32 s3, s3, {65536 * 4}
        s_mov_b64 exec, 0xffff
        buffer_load_dword v248, v28, s[8:11], s3 offen
        s_mov_b64 exec, 0xf
        s_mov_b32 s3, {65536 * 68}
        s_cmp_eq_u32 s{sWP}, 0
        s_cbranch_scc0 K1_PT1
        buffer_load_dword v249, v28, s[8:11], s3 offen
        buffer_load_dword v250, v28, s[20:23], 0 offen
        s_branch K1_PT2
        K1_PT1:
        buffer_load_dword v249, v28, s[12:15], 0 offen {nk}
        buffer_load_dword v250, v28, s[16:19], 0 offen {nk}
        K1_PT2:
        s_mov_b64 exec, -1
        """)
    TR = OPT['trows']
    NT = (TR + 7) // 8 + 3
    if OPT['ctouch']:
        P(f"""
        s_cmp_eq_u32 s{sW}, 5
        s_cbranch_scc0 K1_CT
        s_getpc_b64 s[6:7]
        K1_PC:
        s_sub_u32 s6, s6, @PCOFF@
        s_subb_u32 s7, s7, 0
        v_lshlrev_b32 v28, 7, v{TID}
        v_mov_b32 v31, s7
        """)
        for k in range(OPT['ctouch']):
            P(f"""
            v_min_u32 v29, @CODELEN@, v28
            v_add_co_u32 v30, vcc, s6, v29
            v_addc_co_u32 v31, vcc, 0, v31, vcc
            global_load_dword v{252 + k % 4}, v[30:31], off
            v_mov_b32 v31, s7
            v_add_u32 v28, 8192, v28
            """)
        P('K1_CT:')
    if OPT['wtouch'] == 1: touches()
    if OPT['ptouch']: ptouch(); NT = 3
    P(lanec)
    if OPT['wtouch'] == 2: touches()
    P(f"""
    v_mul_u32_u24 v18, 3072, v12
    v_add_u32 v18, {STG0 + SB0 * STGS}, v18
    v_add_u32 v{QW[0]}, v17, v18
    v_xor_b32 v{QW[1]}, 64, v{QW[0]}
    v_xor_b32 v{QW[2]}, 0x80, v{QW[0]}
    v_xor_b32 v{QW[3]}, 0xc0, v{QW[0]}
    s_lshl_b32 s6, s{sWP}, 2
    v_add_u32 v18, s6, v15
    v_xor_b32 v18, v18, v16
    v_lshlrev_b32 v18, 4, v18
    v_lshl_add_u32 v18, v20, 3, v18
    v_lshl_add_u32 v18, v10, 8, v18
    v_mul_u32_u24 v19, 3072, v2
    v_add_u32 v19, {STG0 + SB0 * STGS}, v19
    v_add_u32 v{QW9}, v18, v19
    v_xor_b32 v22, v12, v10
    v_lshlrev_b32 v22, 4, v22
    v_lshl_add_u32 v22, v3, 6, v22
    v_mul_u32_u24 v19, 3072, v13
    s_mul_i32 s6, s{sWP}, 6144
    s_add_u32 s6, s6, {STG0 + SB0 * STGS + 2048}
    v_add3_u32 v{QX[0]}, v22, v19, s6
    v_xor_b32 v{QX[1]}, 32, v{QX[0]}
    v_xor_b32 v22, v2, v10
    v_lshlrev_b32 v22, 4, v22
    v_lshl_add_u32 v22, v3, 6, v22
    v_add_u32 v{QX9}, {STG0 + SB0 * STGS + 24576}, v22
    v_lshl_add_u32 v27, v2, 3, v26
    s_lshl_b32 s6, s{sWP}, 6
    s_add_u32 s6, s6, {Q9B}
    v_add_u32 v{S9 + 2}, s6, v27
    """)
    z = list(range(CN9, CN9 + 4)) + list(range(108, 112)) + [L, L9]
    for hd in range(2):
        for a in ACC[hd]: z += list(range(a, a + 16))
        for a in ACC9[hd]: z += list(range(a, a + 4))
    for r in z: P(f'v_mov_b32 v{r}, 0')
    if OPT['fused']:
        P(f"""
        s_cmp_eq_u32 s{sW}, 4
        s_cbranch_scc0 K1_E1
        s_mov_b32 s8, s64
        s_mov_b32 s9, s65
        s_mov_b32 s10, 256
        s_waitcnt vmcnt({NT if OPT['wtouch'] or OPT['ptouch'] else 0})
        v_add_u32 v244, 1, v244
        v_max_u32 v244, 1, v244
        v_mov_b32 v245, 0
        v_mov_b32 v247, v244
        s_mov_b64 exec, 1
        buffer_atomic_cmpswap v[244:245], v246, s[8:11], 0 offen sc0
        s_mov_b64 exec, -1
        K1_E1:
        """)
    P(f's_mov_b32 s{sIB}, {SB0}\ns_barrier')
    if OPT['stamps'] == 1: stamp(1)
    qit = []
    def qmain(kk, hd, dt):
        return (lambda F: [f'ds_read_b64_tr_b16 {vr(F + 2 * j, 2)}, v{QW[dt]} offset:{hd * 12288 + kk * 6144 + j * 1024}' for j in range(2)],
                lambda F: mf32(ACC[hd][dt], F, QB[kk]))
    def q9(hd, t):
        return (lambda F: [f'ds_read_b64_tr_b16 {vr(F + 2 * j, 2)}, v{QW9} offset:{hd * 12288 + t * 32 + j * 1024}' for j in range(2)],
                lambda F: mf16(ACC9[hd][t], F, QB9))
    qit = [qmain(0, hd, dt) for hd in range(2) for dt in range(4)] + [q9(hd, t) for hd in range(2) for t in range(2)] + [qmain(1, hd, dt) for hd in range(2) for dt in range(4)]
    nq = len(QF); NQ = len(qit); QD = OPT['qdelay']
    qrd = lambda i: qit[i % NQ][0](QF[i % nq])
    bheads = [f'ds_read_b128 {vr(QB[0], 4)}, v{QX[0]}', f'ds_read_b128 {vr(QB9, 4)}, v{QX9}']
    upd = [f'v_add_u32 v{r}, s{sDL}, v{r}' for r in QW + QX + [QX9, QW9]]
    P(bheads[0])
    for i in range(nq):
        P.extend(qrd(i))
        if i == 3: P(bheads[1])
    def qmf(i):
        m = qit[i][1](QF[i % nq])
        if i % 2 == 0 and i + 1 < NQ: m += f' ; need {vr(QF[(i + 1) % nq], 4)}'
        return m
    cut = NQ - nq + QD + 1
    P('s_branch K1_QM\nK1_QL:\ns_barrier')
    if OPT['stamps'] == 2: stamp(2, OPT['sq'])
    qpend = [bheads[0]] + [x for jj in range(QD + 1) for x in qrd(jj)]
    for i in range(cut, NQ):
        P(qmf(i))
        qpend += qrd(i + nq)
        if i == NQ - 2: qpend.append(bheads[1])
        n = len(qpend) if i == NQ - 1 else 4
        P.extend(qpend[:n]); qpend = qpend[n:]
    P('K1_QM:')
    if OPT['stamps'] == 1 and not OPT['fused']: stamp(5, 3); stamp(6, 6); stamp(9, 9); stamp(10, 12)
    if OPT['stamps'] == 2: stamp(5, OPT['sq'] - 1); stamp(6, OPT['sq'])
    for i in range(cut):
        P(qmf(i))
        if i + nq < NQ: P.extend(qrd(i + nq))
        if i == 0: P(f'ds_read_b128 {vr(QB[1], 4)}, v{QX[1]}')
        if OPT['qnop'] and i % 2 == 1: P(f's_nop {OPT["qnop"]}')
        if i == 2: P(f's_cmp_eq_u32 s{sIB}, {NSB - 1}\ns_cselect_b32 s{sDL}, {-(NSB - 1) * STGS & 0xffffffff}, {STGS}')
        if i == 4: P(f's_add_u32 s{sIB}, s{sIB}, 1\ns_cmp_eq_u32 s{sIB}, {NSB}\ns_cselect_b32 s{sIB}, 0, s{sIB}')
        if i == 10: P.extend(upd[:4])
        if i == 11:
            P.extend(upd[4:])
            if OPT['stamps'] == 2: stamp(3, OPT['sq'] - 1)
            P(f's_add_u32 s{sCNT}, s{sCNT}, 1\ns_cmp_lt_u32 s{sCNT}, 18')
    P('s_cbranch_scc1 K1_QL\ns_barrier')
    for i in range(cut, NQ): P(qmf(i))
    if OPT['stamps'] == 1: stamp(2)
    P(f's_mov_b32 s6, {CSCALE}')
    for hd in range(2):
        for t in range(2):
            a = ACC9[hd][t]
            for i in range(4): P(f'v_mul_f32 v{a + i}, s6, v{a + i}')
            P(f'v_cvt_pk_bf16_f32 v{a}, v{a}, v{a + 1}\nv_cvt_pk_bf16_f32 v{a + 1}, v{a + 2}, v{a + 3}')
            P(f'ds_write_b64 v{S9 + 2}, {vr(a, 2)} offset:{hd * 4352 + t * 32}')
    for dt in [0, 1, 2, 3]:
        a = ACC[0][dt]
        for i in range(16): P(f'v_mul_f32 v{a + i}, s6, v{a + i}')
        for hf in range(2):
            for i in range(4): P(f'v_cvt_pk_bf16_f32 v{a + 8 * hf + i}, v{a + 8 * hf + 2 * i}, v{a + 8 * hf + 2 * i + 1}')
            P(f'ds_write_b128 v{S9 + 1}, {vr(a + 8 * hf, 4)} offset:{(2 * dt + hf) * 1024}')
    P('s_waitcnt vmcnt(0)')
    if OPT['fused']:
        P(f"""
        s_cmp_eq_u32 s{sW}, 4
        s_cbranch_scc0 K1_E2
        s_waitcnt vmcnt(0)
        v_cmp_eq_u32 vcc, 0, v244
        v_mov_b32 v246, {Q9B + 8704}
        s_mov_b64 exec, 1
        v_cndmask_b32 v244, v244, v247, vcc
        ds_write_b32 v246, v244
        s_getreg_b32 s3, hwreg(HW_REG_XCC_ID, 0, 4)
        v_lshl_add_u32 v245, v244, 4, s3
        s_and_b32 s3, s2, 7
        s_lshl_b32 s3, s3, 3
        s_add_u32 s3, s3, s{sB}
        s_lshl_b32 s3, s3, 5
        s_and_b32 s7, s{sJ}, 3
        s_add_u32 s3, s3, s7
        s_lshl_b32 s3, s3, 2
        v_mov_b32 v246, s3
        buffer_store_dword v245, v246, s[52:55], 0 offen offset:32 sc1
        s_mov_b64 exec, -1
        K1_E2:
        """)
    P(loopinit); P(narrow)
    P('s_barrier')
    P(getE)
    for kk in range(4): P(f'ds_read_b128 {vr(Q9 + 4 * kk, 4)}, v{S9} offset:{kk * 64}')
    for i in range(16): P(f'v_mul_f32 v{ACC[1][0] + i}, s6, v{ACC[1][0] + i}')
    P('s_barrier')
    P(getE2)
    for dt in range(4):
        a = ACC[1][dt]
        if dt:
            for i in range(16): P(f'v_mul_f32 v{a + i}, s6, v{a + i}')
        for i in range(8): P(f'v_cvt_pk_bf16_f32 v{Q + dt * 8 + i}, v{a + 2 * i}, v{a + 2 * i + 1}')
    for r in list(range(O, O + 64)) + list(range(CN, CN + 12)) + list(range(O9, O9 + 32)): P(f'v_mov_b32 v{r}, 0')
    P('s_barrier\nK1_HEAD:' if OPT['nbar'] == 2 else 'K1_HEAD:')

    def dma_sites(vo, srd, so, mb):
        out = []
        for n in range(4):
            g = [f's_add_u32 m0, s{mb}, s{sMW}', 's_nop 0'] if n == 0 else []
            g.append(f'buffer_load_dwordx4 v{vo}, s[{srd}:{srd + 3}], s{so} offen offset:{n * 1024} {nk} lds')
            if n == 3: g += [f's_add_u32 s{so}, s{so}, 16384', f's_and_b32 s{so}, s{so}, 0x1ffff']
            out.append(g)
        return out
    dmaV = dma_sites(VOV, 16, sSV, sIS); dmaK = dma_sites(VOK, 12, sSK, sIK)
    pre = OPT['opre'] == 1
    book = f"""s_cmp_lt_u32 s{sCNT}, {8 if pre else 7}
    s_cselect_b32 s{sIS}, s{sKP}, 0x30000
    s_add_u32 s{sKP}, s{sKP}, 65536
    s_cmp_ge_u32 s{sKP}, 163840
    s_cselect_b32 s3, 163840, 0
    s_sub_u32 s{sKP}, s{sKP}, s3
    s_sub_u32 s{sDK}, 65536, s3
    s_cmp_lt_u32 s{sCNT}, 5
    s_cselect_b32 s{sIK}, s{sVP}, 0x30000
    s_add_u32 s{sVP}, s{sVP}, 65536
    s_cmp_ge_u32 s{sVP}, 163840
    s_cselect_b32 s3, 163840, 0
    s_sub_u32 s{sVP}, s{sVP}, s3
    s_sub_u32 s{sDV}, 65536, s3""".split('\n')
    if OPT['nbar'] == 1:
        book = f"""s_mov_b32 s{sIS}, s{sKP}
    s_nop 0
    s_add_u32 s{sKP}, s{sKP}, 65536
    s_cmp_ge_u32 s{sKP}, 163840
    s_cselect_b32 s3, 163840, 0
    s_sub_u32 s{sKP}, s{sKP}, s3
    s_sub_u32 s{sDK}, 65536, s3
    s_cmp_lt_u32 s{sCNT}, 6
    s_cselect_b32 s{sIK}, s33, 0x30000
    s_mov_b32 s33, s{sVP}
    s_add_u32 s{sVP}, s{sVP}, 65536
    s_cmp_ge_u32 s{sVP}, 163840
    s_cselect_b32 s3, 163840, 0
    s_sub_u32 s{sVP}, s{sVP}, s3
    s_sub_u32 s{sDV}, 65536, s3""".split('\n')
        book.remove('    s_nop 0'); book.insert(6, 's_nop 0')
    book2 = f"""s_cmp_eq_u32 s{sCNT}, 6
    s_cselect_b32 s{sIK}, s6, s{sIK}
    s_cselect_b32 s12, s56, s12
    s_cselect_b32 s13, s57, s13
    s_cselect_b32 s14, 20480, s14
    s_cselect_b32 s{sSK}, 0, s{sSK}
    s_cmp_eq_u32 s{sCNT}, 7
    s_cselect_b32 s16, s56, s16
    s_cselect_b32 s17, s57, s17
    s_cselect_b32 s18, 20480, s18
    s_cselect_b32 s{sSV}, 4096, s{sSV}""".split('\n') if pre else []
    if pre: book.insert(7, f's_mov_b32 s6, s{sVP}')
    vupd = [f'v_add_u32 v{VA + i}, s{sDV}, v{VA + i}' for i in range(4)] + [f'v_add_u32 v{AV9}, s{sDV}, v{AV9}']
    kupd = [f'v_add_u32 v{AK}, s{sDK}, v{AK}', f'v_add_u32 v{AK9}, s{sDK}, v{AK9}']
    def kmain(kk, mt):
        tmp = [T0, T1][kk & 1]
        pre = [f'v_xor_b32 v{tmp}, {kk << 5}, v{AK}'] if (mt == 0 and kk) else []
        ad = tmp if kk else AK
        return dict(rd=lambda F: pre + [f'ds_read_b128 {vr(F, 4)}, v{ad} offset:{mt * 2048}'],
                    mf=lambda F: [mf32(S + 16 * mt, F, Q + 4 * kk, CN if kk == 0 else None)], w=32)
    def k9(kk):
        pre = [f'v_xor_b32 v{X0}, {kk << 6}, v{AK9}'] if kk else []
        ad = X0 if kk else AK9
        return dict(rd=lambda F: pre + [f'ds_read_b128 {vr(F, 4)}, v{ad}'],
                    mf=lambda F: [mf16(S9, F, Q9 + 4 * kk, CN9 if kk == 0 else None)], w=16)
    def vmain(ks, dt):
        mt, u = ks >> 1, ks & 1
        return dict(rd=lambda F: [f'ds_read_b64_tr_b16 {vr(F + 2 * j, 2)}, v{VA + dt} offset:{u * 8192 + j * 4096 + mt * 2048}' for j in range(2)],
                    mf=lambda F: [mf32(O + 16 * dt, F, PP + 4 * ks)], w=32)
    def v9(pp):
        pre = [f'v_xor_b32 v{X1}, {pp << 6}, v{AV9}'] if pp else []
        ad = X1 if pp else AV9
        return dict(rd=lambda F: pre + [f'ds_read_b64_tr_b16 {vr(F + 2 * j, 2)}, v{ad} offset:{32 * j}' for j in range(2)],
                    mf=lambda F: [mf16h(O9 + 4 * (2 * pp + j), F + 2 * j, P9) for j in range(2)], w=32)
    itA = []
    for kk in range(8):
        itA += [kmain(kk, 0), kmain(kk, 1)]
        if 1 <= kk <= 4: itA.append(k9(kk - 1))
    itC = []
    for dt in range(4): itC += [vmain(0, dt), v9(dt)]
    for ks in range(1, 4): itC += [vmain(ks, dt) for dt in range(4)]
    lastP = {0: 6, 1: 11, 2: 15, 3: 19, 9: 7}
    nb = len(FB); items = itA + itC; N = len(items); nA = len(itA)
    assert N % nb == 0 and nA % nb == 0
    RD = lambda i: items[i % N]['rd'](FB[i % nb])
    DL = OPT['bdelay']
    def MF(i, pair=True):
        m = items[i]['mf'](FB[i % nb])
        if pair and OPT['pairw'] and i % 2 == 0 and (i + 1) % nA != 0: m[0] += f' ; need {vr(FB[(i + 1) % nb], 4)}'
        return m
    def sync(wait='vmcnt(12)'): return [f's_waitcnt {wait}', 's_barrier']
    def gsync(lbl, group0, wait):
        return [f's_cmp_lt_u32 s{sW}, 4', f's_cbranch_scc{0 if group0 else 1} {lbl}', f's_waitcnt {wait}', 's_barrier', f'{lbl}:']
    DS = OPT['dstep']
    mx = [f'v_max3_f32 v{T1}, v{S9}, v{S9 + 1}, v{S9 + 2}', f'v_max_f32 v{T1}, v{T1}, v{S9 + 3}', f'v_max3_f32 v{T0}, v{S}, v{S + 1}, v{S + 2}']
    mx += [f'v_max3_f32 v{T0}, v{T0}, v{S + 3 + 2 * i}, v{S + 4 + 2 * i}' for i in range(6)]
    mx += [f'v_max3_f32 v{X0}, v{S + 16}, v{S + 17}, v{S + 18}']
    mx += [f'v_max3_f32 v{X0}, v{X0}, v{S + 19 + 2 * i}, v{S + 20 + 2 * i}' for i in range(6)]
    mx += [f'v_max3_f32 v{X0}, v{X0}, v{S + 15}, v{S + 31}', f'v_max_f32 v{T0}, v{T0}, v{X0}', f'v_max_f32 v{X0}, v{T0}, v{T1}', f'v_cmp_lt_f32 vcc, s{sT}, v{X0}']
    fill = []
    for ks in range(4):
        b = S + 8 * ks
        for i in range(0, 8, 2):
            fill += [(0, f'v_exp_f32 v{b + i}, v{b + i}'), (0, f'v_exp_f32 v{b + i + 1}, v{b + i + 1}')]
            if i: fill += [(0, f'v_add_f32 v{L}, v{L}, v{b + i - 2}'), (0, f'v_add_f32 v{L}, v{L}, v{b + i - 1}')]
        if ks == 0: fill += [(0, f'v_exp_f32 v{S9 + i}, v{S9 + i}') for i in range(4)]
        fill += [(0, f'v_add_f32 v{L}, v{L}, v{b + 6}'), (0, f'v_add_f32 v{L}, v{L}, v{b + 7}')]
        if ks == 0: fill += [(0, f'v_add_f32 v{L9}, v{L9}, v{S9 + i}') for i in range(4)]
        fill += [(lastP[ks], f'v_cvt_pk_bf16_f32 v{PP + 4 * ks + i}, v{b + 2 * i}, v{b + 2 * i + 1}') for i in range(4)]
        if ks == 0: fill += [(lastP[9], f'v_cvt_pk_bf16_f32 v{P9 + i}, v{S9 + 2 * i}, v{S9 + 2 * i + 1}') for i in range(2)]
    wosrd = f"""
    s_and_b32 s6, s2, 3
    s_mul_i32 s6, s6, {1024 * 1152}
    s_add_u32 s8, s100, s6
    s_addc_u32 s9, s101, 0
    s_sub_u32 s8, s8, 3072
    s_subb_u32 s9, s9, 0
    s_sub_u32 s10, {4096 * 1152 + 3072}, s6
    s_mov_b32 s11, 0x20000
    """
    def wotouch(drop):
        d1, d2, sfx = ('', '', 'lds') if drop else (f'v{Q + 1}, ', f'v{Q + 2}, ', '')
        va = X0 if drop else Q
        return f"""
    s_lshr_b32 s6, s2, 3
    s_lshl_b32 s6, s6, 3
    s_add_u32 s6, s6, s{sW}
    s_mul_i32 s6, s6, {36 * 128}
    s_add_u32 s6, s6, 3072
    {f's_add_u32 m0, s{sIS}, s{sMW}' if drop else ''}
    v_lshlrev_b32 v{va}, 6, v{TID}
    buffer_load_dword {d1}v{va}, s[8:11], s6 offen {OPT['nt_wo']} {sfx}
    s_add_u32 s6, s6, 4096
    s_mov_b64 exec, 0xff
    buffer_load_dword {d2}v{va}, s[8:11], s6 offen {OPT['nt_wo']} {sfx}
    s_mov_b64 exec, -1
    """
    if OPT['wot'] >= 2: P(wosrd)
    if OPT['opre'] == 1: P(obase)
    if OPT['opre'] >= 2:
        P(f"""
        s_lshl_b32 s6, s{sBR}, 3
        s_add_u32 s6, s6, s{sB}
        s_mul_i32 s6, s6, 1179648
        s_add_u32 s56, s66, s6
        s_addc_u32 s57, s67, 0
        s_mov_b32 s58, 1179648
        s_mov_b32 s59, 0x20000
        """)
    opre2 = f"""
    s_cmp_lg_u32 s{sCNT}, {OPT['opre']}
    s_cbranch_scc1 K1_OP
    s_add_u32 m0, s{sIS}, s{sMW}
    s_lshl_b32 s6, s{sJ}, 1
    s_add_u32 s6, s6, s{sP}
    s_lshl_b32 s7, s6, 13
    s_lshl_b32 s3, s{sWP}, 18
    s_add_u32 s7, s7, s3
    v_lshlrev_b32 v{X0}, 7, v{TID}
    buffer_load_dword v{X0}, s[56:59], s7 offen lds
    s_lshl_b32 s6, s6, 12
    s_lshl_b32 s7, s{sWP}, 10
    s_add_u32 s6, s6, s7
    s_add_u32 s6, s6, {1 << 20}
    s_mov_b64 exec, 0xff
    buffer_load_dword v{X0}, s[56:59], s6 offen lds
    s_mov_b64 exec, -1
    K1_OP:
    """
    if OPT['wot'] == 2: P(wotouch(True))
    for i in range(nb): P.extend(RD(i))
    if OPT['stamps'] == 1: stamp(7)
    for i in range(nA):
        P.extend(MF(i))
        if i + nb < nA: P.extend(RD(i + nb))
        if i + nb - nA == DL: P.extend(sync('vmcnt(63)') if OPT['nbar'] == 2 else gsync('K1_Y0', False, 'vmcnt(63)'))
        if i in (1, 3, 5, 7): P.extend(dmaV[(i - 1) // 2])
    if OPT['nbar'] == 1: P(f's_mov_b32 s{sIS}, 0x30000\ns_sub_u32 s{sSV}, s{sSV}, 16384\ns_and_b32 s{sSV}, s{sSV}, 0x1ffff')
    if OPT['pa'] != OPT['pc']: P(f's_setprio {OPT["pc"]}')
    P.extend(kupd + mx[:-1]); P('s_branch K1_RARE1\nK1_CPB:')
    P(f's_mov_b32 s{sRARE}, 0')
    ktail = [q for q in range(4) if DL + q * DS < nb]
    for i, (_, t) in enumerate(fill):
        P(t)
        if i == len(fill) - 12:
            P.extend(sync(f'vmcnt({X1N})') if OPT['nbar'] == 2 else gsync('K1_X1', True, f'vmcnt({X1N})'))
            for jj in range(nb): P.extend(RD(jj))
            for q in ktail if OPT['nbar'] == 2 else []: P.extend(dmaK[q])
    P('K1_TOP:')
    if OPT['stamps'] == 1 and not OPT['fused']: stamp(11, 2); stamp(8, 5)
    if OPT['pa'] != OPT['pc']: P(f's_setprio {OPT["pa"]}')
    if OPT['stamps'] == 2: stamp(7, 3); stamp(11, 4)
    def sites(pos, dm):
        return [x for q in range(4) if q * DS == pos for x in dm[q]]
    for i in range(nA):
        P.extend(MF(i))
        j = i + nb - nA
        if j < 0: P.extend(RD(i + nb))
        elif j == DL:
            if OPT['stamps'] == 2: stamp(9, 3)
            P.extend(sync() if OPT['nbar'] == 2 else gsync('K1_Y', False, 'vmcnt(4)'))
            if OPT['stamps'] == 2: stamp(1, 3)
            for jj in range(DL + 1): P.extend(RD(nA + jj))
        elif j > DL: P.extend(RD(i + nb))
        P.extend(sites(i + nb - DL, dmaK) if OPT['nbar'] == 2 else sites(i, dmaV))
        if j == DL and OPT['wot'] >= 3: P(f's_cmp_lg_u32 s{sCNT}, {OPT["wot"]}\ns_cbranch_scc1 K1_WT' + wotouch(True) + 'K1_WT:')
        if j == DL and OPT['opre'] >= 2: P(opre2)
        if j >= DL and OPT['nbar'] == 2: P.extend(sites(j - DL, dmaV))
        if i == 2: P.extend(vupd)
        if OPT['anop'] and i % 2 == 1: P(f's_nop {OPT["anop"]}')
        if i == 9: P.extend(book[:7])
        if i == 11: P.extend(book[7:])
        if i == 13: P.extend(book2)
    if OPT['stamps'] == 2: stamp(8, 3)
    if OPT['pa'] != OPT['pc']: P(f's_setprio {OPT["pc"]}')
    cost = lambda t: 2 if 'exp' in t else (0 if 'BR' in t else 1)
    full = [(0, t) for t in kupd + mx] + [(0, 'BR')] + fill
    tot = sum(cost(t) for _, t in full)
    pend = list(full); acc = 0; cw = 0; wsum = sum(it['w'] for it in itC)
    for c in range(len(itC)):
        i = nA + c
        P.extend(MF(i)); cw += itC[c]['w']
        j = i + nb - N
        if j < 0: P.extend(RD(i + nb))
        elif j == DL:
            if OPT['stamps'] == 2: stamp(4, 3)
            P.extend(sync() if OPT['nbar'] == 2 else gsync('K1_X', True, 'vmcnt(4)'))
            if OPT['stamps'] == 2: stamp(12, 3)
            for jj in range(DL + 1): P.extend(RD(jj))
        elif j > DL: P.extend(RD(i + nb))
        P.extend(sites(c + nb - DL, dmaV) if OPT['nbar'] == 2 else sites(c, dmaK))
        if j >= DL and OPT['nbar'] == 2: P.extend(sites(j - DL, dmaK))
        goal = tot * min(1.0, cw / (wsum - 32))
        q = 0
        while q < len(pend) and acc + cost(pend[q][1]) <= goal + 1:
            if pend[q][0] > c: q += 1; continue
            acc += cost(pend[q][1]); t = pend.pop(q)[1]
            P('s_cbranch_vccnz K1_RARE1\nK1_R1B:' if t == 'BR' else t)
    for _, t in pend: P(t)
    if OPT['stamps'] == 2: stamp(10, 3)
    P(f"""
    s_add_u32 s{sCNT}, s{sCNT}, 1
    s_add_u32 s3, s{sCNT}, s{sRARE}
    s_cmp_lt_u32 s3, 8
    s_cbranch_scc1 K1_TOP
    s_cmp_lg_u32 s{sRARE}, 0
    s_cbranch_scc1 K1_RARE2
    K1_NEXT:
    s_cmp_lt_u32 s{sCNT}, 8
    s_cbranch_scc1 K1_TOP
    s_branch K1_PVO
    """)
    P(f"""
    K1_RARE1:
    v_mov_b32 v{X0}, v{T0}
    v_mov_b32 v{X1}, v{T1}
    v_permlane32_swap_b32 v{T0}, v{X0}
    v_permlane32_swap_b32 v{T1}, v{X1}
    v_max3_f32 v{T0}, v{T0}, v{X0}, s{sCL}
    v_max_f32 v{T1}, v{T1}, v{X1}
    v_mov_b32 v{X1}, v{T1}
    v_max_f32 v{AL}, 0, v{T0}
    v_permlane16_swap_b32 v{T1}, v{X1}
    v_max3_f32 v{T1}, v{T1}, v{X1}, s{sCL}
    v_max_f32 v{AL9}, 0, v{T1}
    v_exp_f32 v{AL}, -v{AL}
    v_exp_f32 v{AL9}, -v{AL9}
    """)
    for i in range(32): P(f'v_sub_f32 v{S + i}, v{S + i}, v{T0}')
    for i in range(16): P(f'v_sub_f32 v{CN + i}, v{CN + i}, v{T0}')
    for i in range(4): P(f'v_sub_f32 v{S9 + i}, v{S9 + i}, v{T1}')
    for i in range(4): P(f'v_sub_f32 v{CN9 + i}, v{CN9 + i}, v{T1}')
    P(f"""
    v_mul_f32 v{L}, v{L}, v{AL}
    v_mul_f32 v{L9}, v{L9}, v{AL9}
    s_mov_b32 s{sT}, {f2u(8.0)}
    s_cmp_lg_u32 s{sCL}, 0
    s_mov_b32 s{sCL}, 0
    s_mov_b32 s{sRARE}, 8
    s_cbranch_scc1 K1_CPB
    s_branch K1_R1B
    K1_RARE2:
    """)
    for i in range(64): P(f'v_mul_f32 v{O + i}, v{O + i}, v{AL}')
    for i in range(32): P(f'v_mul_f32 v{O9 + i}, v{O9 + i}, v{AL9}')
    P(f"""
    s_mov_b32 s{sRARE}, 0
    s_branch K1_NEXT
    K1_PVO:
    """)
    if OPT['stamps'] == 1: stamp(3)
    P.extend(vupd)
    P(f's_and_b32 s{sKP}, s2, 3')
    if OPT['wot'] == 1: P(wosrd + wotouch(False))
    elif OPT['wot'] == 0: P(wosrd)
    P.extend(sync('vmcnt(2)' if OPT['wot'] == 1 else 'vmcnt(0)') if OPT['nbar'] == 2 else gsync('K1_Y8', False, 'vmcnt(2)' if OPT['wot'] == 1 else 'vmcnt(0)'))
    if OPT['fused'] and OPT['loc']:
        P(f"""
        s_cmp_eq_u32 s{sWP}, 0
        s_cbranch_scc0 K1_XL
        s_and_b32 s3, s2, 7
        s_lshl_b32 s3, s3, 3
        s_add_u32 s3, s3, s{sB}
        s_lshl_b32 s3, s3, 7
        v_lshlrev_b32 v{Q + 3}, 2, v{TID}
        s_mov_b64 exec, 15
        s_add_u32 s7, s3, 16384
        buffer_load_dword v{Q + 2}, v{Q + 3}, s[52:55], s7 offen nt
        buffer_load_dword v{Q + 3}, v{Q + 3}, s[52:55], s3 offen offset:32 sc1
        s_mov_b64 exec, -1
        K1_XL:
        """)
    for i in range(nb): P.extend(RD(nA + i))
    groups = [MF(nA + c) + (RD(nA + c + nb) if c + nb < len(itC) else []) for c in range(len(itC))]
    epi = f'''
    s_lshl_b32 s6, s{sBR}, 3
    s_add_u32 s6, s6, s{sB}
    s_mul_i32 s6, s6, 1179648
    s_add_u32 s20, s66, s6
    s_addc_u32 s21, s67, 0
    s_mov_b32 s22, 1179648
    s_mov_b32 s23, 0x20000
    s_lshl_b32 s6, s{sJ}, 1
    s_add_u32 s6, s6, s{sP}
    s_lshl_b32 s7, s6, 13
    s_lshl_b32 s{sSK}, s{sWP}, 18
    s_add_u32 s{sSK}, s{sSK}, s7
    s_add_u32 s{sSV}, s{sSK}, 4096
    s_lshl_b32 s{sIS}, s6, 12
    s_lshl_b32 s7, s{sWP}, 10
    s_add_u32 s{sIS}, s{sIS}, s7
    s_add_u32 s{sIS}, s{sIS}, {1 << 20}
    v_mov_b32 v{T0}, v{L}
    v_mov_b32 v{T1}, v{L9}
    v_lshlrev_b32 v{VOK}, 4, v{TID}
    v_permlane32_swap_b32 v{L}, v{T0}
    v_permlane32_swap_b32 v{L9}, v{T1}
    v_add_f32 v{L}, v{L}, v{T0}
    v_add_f32 v{L9}, v{L9}, v{T1}
    v_mov_b32 v{T1}, v{L9}
    v_rcp_f32 v{AL}, v{L}
    v_permlane16_swap_b32 v{L9}, v{T1}
    v_add_f32 v{CN9 + 1}, v{L9}, v{T1}
    '''.strip().split('\n')
    epi += f"""s_cmp_lt_u32 s{sW}, 4
    s_cselect_b32 s45, 118784, 65536
    s_cselect_b32 s46, 135168, 155648
    s_lshl_b32 s7, s{sWP}, 11
    s_add_u32 s6, s45, s7
    v_add_u32 v116, s6, v{VOK}
    s_add_u32 s6, s46, s7
    v_add_u32 v117, s6, v{VOK}
    v_and_b32 v119, 15, v{TID}
    v_lshlrev_b32 v119, 3, v119
    s_lshl_b32 s7, s{sW}, 7
    s_add_u32 s7, s7, 20480
    v_add_u32 v118, s7, v119""".split('\n')
    wr9 = [f'ds_write_b64 v118, {vr(CN9, 2)}'] + [f'ds_write_b128 v{116 if sl < 3 else 117}, {vr(O9 + 8 * sl + 4 * t, 4)} offset:{(sl - 1) * 8192 * (sl < 3) + t * 1024}' for sl in range(1, 4) for t in range(2)]
    n1 = len(epi)
    epi += phase2(P, stamp, locals(), 0)
    epi += f"""s_mul_i32 s6, s{sP}, 36864
    s_lshl_b32 s7, s{sWP}, 12
    s_add_u32 s6, s6, s7
    s_add_u32 s6, s6, 81920
    v_add_u32 v{AL9}, s6, v{VOK}
    s_lshl_b32 s6, s{sW}, 7
    s_add_u32 s6, s6, 20480
    v_add_u32 v{S + 28}, s6, v119
    v_xor_b32 v{S + 29}, 0x80, v{S + 28}
    v_xor_b32 v{S + 30}, 0x100, v{S + 28}
    v_xor_b32 v{S + 31}, 0x180, v{S + 28}
    s_xor_b32 s7, s{sWP}, 1
    s_lshl_b32 s7, s7, 11
    s_add_u32 s7, s7, s45
    v_add_u32 v{S + 25}, s7, v{VOK}
    s_xor_b32 s7, s{sWP}, 2
    s_lshl_b32 s7, s7, 11
    s_add_u32 s7, s7, s45
    s_add_u32 s7, s7, 8192
    v_add_u32 v{S + 26}, s7, v{VOK}
    s_xor_b32 s7, s{sWP}, 3
    s_lshl_b32 s7, s7, 11
    s_add_u32 s7, s7, s46
    v_add_u32 v{S + 27}, s7, v{VOK}
    v_lshrrev_b32 v131, 5, v{TID}
    v_bfe_u32 v132, v{TID}, 4, 1
    v_lshlrev_b32 v137, 1, v119
    v_lshl_add_u32 v137, v131, 8, v137
    v_lshl_add_u32 v137, v132, 3, v137
    s_lshr_b32 s6, s{sW}, 1
    s_mul_i32 s6, s6, 18432
    s_and_b32 s7, s{sW}, 1
    s_lshl_b32 s7, s7, 10
    s_add_u32 s6, s6, s7
    s_add_u32 s6, s6, {81920 + 16384}
    v_add_u32 v138, s6, v137""".split('\n')
    epi = [e.strip() for e in epi]
    per = -(-len(epi) // len(groups))
    i = 0
    for gi, g in enumerate(groups):
        P.extend(g)
        j = min(len(epi), i + per)
        while j < len(epi) and (epi[j].split()[0] in ('s_addc_u32', 's_cselect_b64', 's_cselect_b32', 'v_cndmask_b32')): j += 1
        P.extend(epi[i:j]); i = j
        if gi >= 10 and wr9:
            assert i >= n1
            P(wr9.pop(0))
    P.extend(epi[i:]); P.extend(wr9)
    ST = CN; PT = [None, Q9, Q9 + 8, PP]; R9 = PP + 8
    P('s_barrier')
    for w in range(4): P(f'ds_read_b64 {vr(ST + 2 * w, 2)}, v{S + 28 + w}')
    for w in range(1, 4):
        for t in range(2): P(f'ds_read_b128 {vr(PT[w] + 4 * t, 4)}, v{S + 24 + w} offset:{t * 1024}')
    P(f's_cmp_lt_u32 s{sW}, 4\ns_cbranch_scc0 K1_Z')
    phase2(P, stamp, locals(), 3)
    P('s_barrier\nK1_Z:')
    if OPT['stamps'] == 1: stamp(4)
    os_ = '' if OPT['loc'] else 'sc1'
    mg = [f'v_min3_f32 v{ST + 8}, v{ST}, v{ST + 2}, v{ST + 4}', f'v_min_f32 v{ST + 8}, v{ST + 8}, v{ST + 6}']
    mg += [f'v_sub_f32 v{ST + 2 * w}, v{ST + 8}, v{ST + 2 * w}' for w in range(4)]
    mg += [f'v_exp_f32 v{ST + 2 * w}, v{ST + 2 * w}' for w in range(4)]
    mg += [f'v_mul_f32 v{ST + 9}, v{ST}, v{ST + 1}'] + [f'v_fmac_f32 v{ST + 9}, v{ST + 2 * w}, v{ST + 2 * w + 1}' for w in range(1, 4)]
    mg += [f'v_rcp_f32 v{ST + 9}, v{ST + 9}']
    mg += [f'v_mul_f32 v{R9 + i}, v{O9 + i}, v{ST}' for i in range(8)]
    for w in range(1, 4): mg += [f'v_fmac_f32 v{R9 + i}, v{PT[w] + i}, v{ST + 2 * w}' for i in range(8)]
    mg += [f'v_mul_f32 v{R9 + i}, v{R9 + i}, v{ST + 9}' for i in range(8)]
    for t in range(2):
        mg += [f'v_cvt_pk_bf16_f32 v{ST + 10 + 2 * t}, v{R9 + 4 * t}, v{R9 + 4 * t + 1}', f'v_cvt_pk_bf16_f32 v{ST + 11 + 2 * t}, v{R9 + 4 * t + 2}, v{R9 + 4 * t + 3}',
               f'ds_write_b64 v138, {vr(ST + 10 + 2 * t, 2)} offset:{t * 512}', f'buffer_store_dwordx2 {vr(ST + 10 + 2 * t, 2)}, v137, s[20:23], s{sIS} offen offset:{t * 512} {os_}']
    for dt in range(4):
        for i in range(16): P(f'v_mul_f32 v{O + 16 * dt + i}, v{O + 16 * dt + i}, v{AL}')
        for hf in range(2):
            d = S + 8 * dt + 4 * hf
            for i in range(4): P(f'v_cvt_pk_bf16_f32 v{d + i}, v{O + 16 * dt + 8 * hf + 2 * i}, v{O + 16 * dt + 8 * hf + 2 * i + 1}')
            ks = 2 * dt + hf
            P(f'ds_write_b128 v{AL9}, {vr(d, 4)} offset:{(ks >> 2) * 18432 + (ks & 3) * 1024}')
            if not OPT['lates']: P(f'buffer_store_dwordx4 {vr(d, 4)}, v{VOK}, s[20:23], s{sSK if ks < 4 else sSV} offen offset:{(ks & 3) * 1024} {os_}')
        if dt == 0: P.extend(mg)
    if OPT['lates']:
        for ks in range(8): P(f'buffer_store_dwordx4 {vr(S + 4 * ks, 4)}, v{VOK}, s[20:23], s{sSK if ks < 4 else sSV} offen offset:{(ks & 3) * 1024} {os_}')
    if OPT['fused']: phase2(P, stamp, locals(), 2)
    if OPT['stamps']:
        P('K1_STAMPS:' if OPT['fused'] else 's_waitcnt vmcnt(0)')
        if not OPT['fused']: stamp(4)
        P(f'''
        s_waitcnt lgkmcnt(0)
        s_add_u32 s20, s66, {WS_STAMP}
        s_addc_u32 s21, s67, 0
        s_mov_b32 s22, 0x100000
        s_mov_b32 s23, 0x20000
        s_lshl_b32 s6, s2, 3
        s_add_u32 s6, s6, s{sW}
        s_lshl_b32 s6, s6, 7
        v_mov_b32 v2, s6
        s_mov_b64 exec, 1
        ''')
        if OPT['probe'] >= 0:
            k = OPT['probe']
            lo, base = (98, 96) if k == 99 else (70 + 2 * k, 70)
            P(f"""
            s_cmp_lg_u32 s2, {OPT['pwg']}
            s_cbranch_scc1 K1_END
            s_cmp_lg_u32 s{sW}, {OPT['pw']}
            s_cbranch_scc1 K1_END
            s_sub_u32 s6, s{lo}, s{base}
            s_mul_i32 s6, s6, {1 if k == 99 else 10}
            s_memrealtime s[72:73]
            s_waitcnt lgkmcnt(0)
            s_add_u32 s6, s6, s72
            {'s_add_u32 s6, s70, 30000' if k == 0 else ''}
            K1_SPIN:
            s_memrealtime s[72:73]
            s_waitcnt lgkmcnt(0)
            s_sub_u32 s7, s72, s6
            s_cmp_lt_i32 s7, 0
            s_cbranch_scc1 K1_SPIN
            s_branch K1_END
            """)
        if OPT['dbgst']:
            P('s_mov_b32 s20, s64\ns_mov_b32 s21, s65\ns_mov_b32 s22, 256\nv_mov_b32 v2, 0\ns_not_b32 s70, s70')
            for i, k in enumerate([0, 1, 2, 7, 3, 4, 5, 6, 9, 10, 11, 8]):
                P(f'v_mov_b32 v4, s{70 + 2 * k}\nbuffer_atomic_umax v4, v2, s[20:23], 0 offen offset:{4 + 4 * i}\ns_nop 1')
        for k in range(0 if OPT['dbgst'] else 15):
            P(f'v_mov_b32 v4, s{70 + 2 * k}\nv_mov_b32 v5, s{71 + 2 * k}\nbuffer_store_dwordx2 v[4:5], v2, s[20:23], 0 offen offset:{8 * k}\ns_nop 1')
    P('K1_END:\ns_endpgm')
    a0 = [i for i, x in enumerate(P.ins) if x.text == 'K1_G1:'][0]; a1 = [i for i, x in enumerate(P.ins) if x.text == 'K1_PVO:'][0]
    keep = []; dcount = [0]
    kt = [i for i, x in enumerate(P.ins) if x.text == 'K1_TOP:'][0]
    kp0 = [i for i, x in enumerate(P.ins) if x.text == 'K1_G1:'][0]; kp1 = [i for i, x in enumerate(P.ins) if x.text == 'K1_QL:'][0]
    for i, x in enumerate(P.ins):
        if a0 < i < a1:
            if OPT['nodma'] and x.dma and not (kp0 < i < kp1): continue
            if OPT['nobar'] and x.kind == 'barrier': continue
            if OPT['noexp'] and x.kind in ('valu', 'trans') and ('exp' in x.text or 'v_add_f32' in x.text or 'cvt_pk' in x.text or 'max3' in x.text): continue
            if OPT['nolds'] and x.kind == 'ds_r': continue
            if OPT['diag'] & 1 and i > kt and 'v_add_f32' in x.text: continue
            if OPT['diag'] & 2 and i > kt and 'v_max3' in x.text and 's46' not in x.text: continue
            if OPT['diag'] & 4 and i > kt and x.kind == 'ds_r':
                dcount[0] += 1
                if (dcount[0] // 4) % 2: continue
            if OPT['diag'] & 8 and i > kt and '16x16x16' in x.text: continue
            if OPT['diag'] & 16 and i > kt and 'v_exp' in x.text and '-v' not in x.text:
                x = parse(x.text.replace('v_exp_f32', 'v_mov_b32'))
            if OPT['nomf'] and i > kt and (x.kind in ('mfma', 'ds_r', 'trans') or (x.kind == 'valu' and 'v_cmp' not in x.text)): continue
        keep.append(x)
    P.ins = keep
    return P.finish()

def desc(name, vg, sg=102):
    return f'''.amdhsa_kernel {name}
  .amdhsa_next_free_vgpr {vg}
  .amdhsa_next_free_sgpr {sg}
  .amdhsa_accum_offset {(vg + 3) // 4 * 4}
  .amdhsa_group_segment_fixed_size 0
  .amdhsa_kernarg_size 104
  .amdhsa_user_sgpr_count 2
  .amdhsa_user_sgpr_kernarg_segment_ptr 1
  .amdhsa_system_sgpr_workgroup_id_x 1
  .amdhsa_float_denorm_mode_32 3
.end_amdhsa_kernel
'''

def main():
    ref = open('cdna_kernels/%s.s.ref' % NAME).read().split('\n')
    hdr = [l for l in ref if l.startswith(';') and '@launch' not in l and 'Override launch' not in l and 'grid=ceil' not in l]
    hdr = hdr[:14]
    ks = [('attn_kernel', k1(), 256, '(256,1,1)', '(%d,1,1)' % OPT['blk'], 163840),
          ]
    out = '\n'.join(hdr) + '\n'
    if OPT['fused']:
        ks = [(NAME + '_kernel',) + ks[0][1:]]
        out += f'; @launch grid={ks[0][3]} block={ks[0][4]} lds={ks[0][5]}\n'
    else:
        for n, _, _, g, b, l in ks: out += f'; @launch kernel={n} grid={g} block={b} lds={l}\n'
    out += '.amdgcn_target "amdgcn-amd-amdhsa--gfx950"\n.text\n'
    for n, body, _, _, _, _ in ks:
        out += f'.globl {n}\n.p2align 8\n.type {n},@function\n{n}:\n' + 'K1_START:\n' + body.replace('@CODELEN@', 'K1_END-K1_START').replace('@PCOFF@', 'K1_PC-K1_START')
    out += '.section .rodata,"a"\n'
    for n, _, vg, _, _, _ in ks: out += '.p2align 6\n' + desc(n, vg)
    open(sys.argv[1], 'w').write(out)
main()
```

```python
import sys, struct, math
from asmlib import *

NAME = 'concat_heads__mha_block_cached__gqa_block_cached__near_ridge'
def f2u(x): return struct.unpack('<I', struct.pack('<f', x))[0]
CSCALE = f2u(math.log2(math.e) / math.sqrt(128.0))

OPT = dict(nt_kv='nt', nt_w='', nt_x='', ostore='', stamps=0, touch=0, k2nb=3, nt_wo='', nt_o='', nodma=0, nobar=0, noexp=0, nolds=0, prio=0, bdelay=1, blk=512, pa=0, pc=1, pairw=1, qdelay=3, wtouch=0, kvs='000000000000044460a4', nsb=5, dstep=2, trows=15, tlead=0, ptouch=0, tl=0, nopoll=0, ot=-9, opre=0, dyn=0, fb=2, kpre=0, d3=0, opv=0, cts=-9, tb='', bs='', bn=16, diag=0, nbar=2, rot=1, rotx=0, rotp=4, lates=0, qnop=0, anop=0, ctouch=0, sp='01111111122111', ts=-1, npre=3, dist=3, sq=9, fused=1, p2nb=3, wot=1, ld2='', spin=200000, dbgst=0, loc=1, bgwb=0, nomf=0, nokv=0, nost=0, probe=-1, pwg=8, pw=4)
for a in sys.argv[2:]:
    k, v = a.split('=')
    OPT[k] = int(v) if (v.lstrip('-').isdigit() and k not in ('kvs', 'sp', 'bs')) else v

WS_O_BR = 36 * 256 * 1024
WS_PART = 0x1400000
WS_FLAG = 0x3000000
WS_STAMP = 0x4000000

def lanes(P, dst, expr_list):
    for e in expr_list: P(e)

def mf32(d, a, b, c=None):
    return f'v_mfma_f32_32x32x16_bf16 {vr(d, 16)}, {vr(a, 4)}, {vr(b, 4)}, {vr(d if c is None else c, 16)}'
def mf16(d, a, b, c=None):
    return f'v_mfma_f32_16x16x32_bf16 {vr(d, 4)}, {vr(a, 4)}, {vr(b, 4)}, {vr(d if c is None else c, 4)}'
def mf16h(d, a, b):
    return f'v_mfma_f32_16x16x16_bf16 {vr(d, 4)}, {vr(a, 2)}, {vr(b, 2)}, {vr(d, 4)}'


def phase2(P, stamp, env, part):
    sW, sWP, sBR, sE, sKS, TID, sB, sJ = env['sW'], env['sWP'], env['sBR'], env['sE'], env['sKP'], env['TID'], env['sB'], env['sJ']
    NB = 4; WST, OST, OOF = 20480, 18432, 81920
    sJJ, sTID, sCNT, sIB, sDL, sTMP, sSPIN = 56, 58, 30, 36, 37, 48, 44
    sSW, sSO, sMW, sMO, sPW, sPO, sIBW, sNB, sM9, sD2, sS9 = 59, 60, 61, 62, 63, 35, 31, 33, 43, 47, 57
    if OPT['stamps'] != 1: stamp = lambda *a: None
    sNEED = 38
    VW = [120, 121, 122, 123, 124]; VO, VF, VP = 141, 142, 143
    A0, A1, A90, A91, AB, AB9 = 125, 126, 127, 128, 129, 130
    done = 'K1_STAMPS' if OPT['stamps'] else 'K1_END'
    def poll(lbl, off):
        return f"""
    s_mov_b32 s{sSPIN}, {OPT['spin']}
    {lbl}:
    s_mov_b64 exec, 15
    buffer_load_dword v{VP}, v{VF}, s[52:55], s{off} offen sc1
    s_mov_b64 exec, -1
    s_sub_u32 s{sSPIN}, s{sSPIN}, 1
    s_cbranch_scc1 {lbl}X
    s_waitcnt vmcnt(0)
    v_cmp_eq_u32 vcc, s{sE}, v{VP}
    s_and_b64 s[6:7], vcc, s[{sNEED}:{sNEED + 1}]
    s_cmp_eq_u64 s[6:7], s[{sNEED}:{sNEED + 1}]
    s_cbranch_scc0 {lbl}
    {lbl}X:
    """
    def wb(lbl, first):
        if not OPT['loc']: return ''
        o = ''
        if first: o = f"""
    s_getreg_b32 s3, hwreg(HW_REG_XCC_ID, 0, 4)
    s_lshl_b32 s7, s{sE}, 4
    s_add_u32 s3, s3, s7
    s_waitcnt vmcnt(10)
    v_cmp_eq_u32 vcc, s3, v{env['Q'] + 3}
    s_and_b32 s{sNB}, vcc_lo, 15
    """
        return o + f"""
    s_cmp_eq_u32 s{sNB}, {15 if OPT['loc'] == 1 else 0}
    s_cbranch_scc1 {lbl}
    buffer_wbl2 sc1
    s_waitcnt vmcnt(0)
    {lbl}:
    """
    def issW():
        o = f's_mul_i32 s7, s{sPW}, {64 * 1152}\ns_add_u32 s7, s7, s{sSW}\ns_add_u32 m0, s{sIBW}, s{sMW}\ns_add_u32 s{sPW}, s{sPW}, 1\n'
        for n in range(5):
            if n == 4: o += 's_add_u32 m0, m0, 4096\ns_nop 0\n'
            o += f'buffer_load_dwordx4 v{VW[n]}, s[8:11], s7 offen offset:{(n & 3) * 1024} {OPT["nt_wo"]} lds\n'
        return o + f's_and_b32 s{sPW}, s{sPW}, 15\ns_add_u32 s{sIBW}, s{sIBW}, {WST}\ns_cmp_eq_u32 s{sIBW}, {NB * WST}\ns_cselect_b32 s{sIBW}, 0, s{sIBW}\n'
    def issO():
        o = f's_add_u32 m0, s{sIB}, s{sMO}\ns_lshl_b32 s7, s{sPO}, 12\ns_add_u32 s7, s7, s{sSO}\n'
        for e in range(4): o += f'buffer_load_dwordx4 v{VO}, s[20:23], s7 offen offset:{e * 1024} {OPT["ld2"]} lds\n'
        o += f's_add_u32 m0, s{sIB}, s{sM9}\ns_lshl_b32 s7, s{sPO}, 11\ns_add_u32 s7, s7, s{sS9}\ns_mov_b32 exec_hi, 0\n'
        o += f'buffer_load_dwordx4 v{VO}, s[20:23], s7 offen {OPT["ld2"]} lds\ns_mov_b32 exec_hi, -1\n'
        return o + f's_add_u32 s{sPO}, s{sPO}, 1\ns_and_b32 s{sPO}, s{sPO}, 15\ns_add_u32 s{sIB}, s{sIB}, {OST}\ns_cmp_eq_u32 s{sIB}, {NB * OST}\ns_cselect_b32 s{sIB}, 0, s{sIB}\n'
    if part == 0:
        o = f"""
        s_and_b32 s{sJJ}, s{sJ}, 3
        s_lshl_b32 s{sTID}, s{sBR}, 3
        s_add_u32 s{sTID}, s{sTID}, s{sB}
        s_lshl_b32 s{sTID}, s{sTID}, 2
        s_add_u32 s{sTID}, s{sTID}, s{sJJ}
        s_lshl_b32 s{sPW}, s{sJJ}, 2
        s_add_u32 s{sPO}, s{sPW}, 4
        s_and_b32 s{sPO}, s{sPO}, 15
        s_and_b32 s3, s2, 7
        s_lshl_b32 s3, s3, 3
        s_add_u32 s3, s3, s{sB}
        s_lshl_b32 s{sTMP}, s3, 7
        v_lshlrev_b32 v{VF}, 2, v{TID}
        v_lshlrev_b32 v{VO}, 4, v{TID}
        v_mov_b32 v{VP}, s{sE}
        v_mov_b32 v140, v{TID}
        s_mul_i32 s{sSW}, s{sJJ}, 288
        s_and_b32 s{sSW}, s{sSW}, 0xffc0
        s_mul_i32 s3, s{sWP}, {16 * 1152}
        s_add_u32 s{sSW}, s{sSW}, s3
        s_mul_i32 s{sMW}, s{sWP}, 5120
        s_lshl_b32 s{sMO}, s{sWP}, 12
        s_add_u32 s{sMO}, s{sMO}, {OOF}
        s_lshl_b32 s{sM9}, s{sWP}, 9
        s_lshl_b32 s{sS9}, s{sKS}, 15
        s_add_u32 s{sS9}, s{sS9}, s{sM9}
        s_add_u32 s{sS9}, s{sS9}, {1 << 20}
        s_add_u32 s{sM9}, s{sM9}, {OOF + 16384}
        s_lshl_b32 s{sSO}, s{sKS}, 16
        s_lshl_b32 s3, s{sWP}, 18
        s_add_u32 s{sSO}, s{sSO}, s3
        s_lshl_b32 s3, s{sB}, 2
        s_lshl_b32 s{sNB}, 1, s3
        s_mov_b32 s{sIB}, 0
        s_mov_b32 s{sIBW}, 0
        s_mov_b32 s3, 52429
        """
        for n in range(5):
            o += f"""
        v_add_u32 v131, {64 * n}, v{TID}
        v_mul_lo_u32 v132, s3, v131
        v_lshrrev_b32 v132, 20, v132
        v_mul_u32_u24 v133, 20, v132
        v_sub_u32 v133, v131, v133
        v_bfe_u32 v134, v132, 3, 1
        v_lshlrev_b32 v134, 1, v134
        v_xor_b32 v133, v133, v134
        v_mul_u32_u24 v132, 1152, v132
        v_lshl_add_u32 v132, v133, 4, v132
        v_add_u32 v{VW[n]}, {3072 - (n & 3) * 1024}, v132
        """
        o += f"""
        v_lshrrev_b32 v131, 4, v{TID}
        v_bfe_u32 v132, v{TID}, 2, 2
        v_lshl_add_u32 v132, v131, 3, v132
        v_mul_u32_u24 v132, 320, v132
        v_bfe_u32 v133, v{TID}, 1, 1
        v_lshl_add_u32 v132, v133, 4, v132
        v_and_b32 v133, 1, v{TID}
        v_lshl_add_u32 v132, v133, 3, v132
        v_and_b32 v133, 1, v131
        v_lshl_add_u32 v134, v133, 5, v132
        v_xor_b32 v135, 1, v133
        v_lshl_add_u32 v135, v135, 5, v132
        v_add_u32 v136, 64, v134
        s_bitcmp0_b32 s{sJJ}, 0
        s_cselect_b64 vcc, -1, 0
        s_lshl_b32 s3, s{sWP}, 6
        v_cndmask_b32 v{A0}, v135, v134, vcc
        v_cndmask_b32 v{A1}, v136, v135, vcc
        v_add_u32 v{A90}, s3, v{A0}
        v_add_u32 v{A91}, s3, v{A1}
        v_and_b32 v132, 15, v{TID}
        v_lshlrev_b32 v132, 4, v132
        v_lshrrev_b32 v131, 1, v131
        v_lshl_add_u32 v134, v133, 9, v132
        v_lshl_add_u32 v134, v131, 10, v134
        v_add_u32 v{AB}, s{sMO}, v134
        v_lshl_add_u32 v134, v133, 8, v132
        v_lshl_add_u32 v134, v131, 9, v134
        v_add_u32 v{AB9}, {OOF + 16384}, v134
        """
        return [l.strip() for l in o.split('\n') if l.strip()]
    if part == 3:
        P(issW()); return
    P(f"""
    s_cmp_ge_u32 s{sW}, 4
    s_cbranch_scc1 P2_G1
    s_waitcnt vmcnt(0)
    s_barrier
    """)
    stamp(5)
    def fl(l): return (f's_mov_b64 exec, 0xff\ns_cmp_eq_u32 s{sD2}, {15 if OPT["loc"] == 1 else 0}\ns_cbranch_scc1 {l}L\nbuffer_load_dword v{VP}, v{VF}, s[52:55], s{sTMP} offen sc1\ns_branch {l}M\n'
                       f'{l}L:\nbuffer_load_dword v{VP}, v{VF}, s[52:55], s{sDL} offen nt\n{l}M:\ns_mov_b64 exec, -1\n')
    P(f"""
    s_getreg_b32 s3, hwreg(HW_REG_XCC_ID, 0, 4)
    s_lshl_b32 s7, s{sE}, 4
    s_add_u32 s3, s3, s7
    v_cmp_eq_u32 vcc, s3, v{env['Q'] + 3}
    s_and_b32 s{sD2}, vcc_lo, 15
    s_add_u32 s{sDL}, s{sTMP}, 16384
    """)
    P('v_mov_b32 v137, 163832\nv_mov_b32 v138, 0\nds_write_b32 v137, v138')
    P(issW() + issW() + issW())
    P(f's_cmp_lg_u32 s{sW}, 0\ns_cbranch_scc1 P2_F0\n{fl("P2_F1")}P2_F0:')
    P(f"""
    s_waitcnt vmcnt(10)
    s_barrier
    s_waitcnt vmcnt(5)
    s_barrier
    s_waitcnt vmcnt(0)
    s_mov_b32 s{sNB}, 0
    s_mov_b32 s{sCNT}, 2
    s_sub_u32 s{sPW}, s{sPW}, 2
    P2_LD:
    s_cmp_eq_u32 s{sCNT}, 8
    s_cselect_b32 s3, 8, 2
    s_cselect_b32 s{sNB}, 4, s{sNB}
    s_add_u32 s{sPW}, s{sPW}, s3
    s_and_b32 s{sPW}, s{sPW}, 15
    s_cmp_lg_u32 s{sW}, 0
    s_cbranch_scc1 P2_PO
    s_lshr_b32 s3, s{sPW}, 2
    s_add_u32 s3, s3, s{sNB}
    s_mov_b32 s{sSPIN}, {OPT['spin']}
    P2_PF:
    v_cmp_eq_u32 vcc, s{sE}, v{VP}
    s_bitcmp1_b32 vcc_lo, s3
    s_cbranch_scc1 P2_PG
    {fl('P2_F2')}
    s_sub_u32 s{sSPIN}, s{sSPIN}, 1
    s_waitcnt vmcnt(0)
    s_cbranch_scc0 P2_PF
    P2_PG:
    v_mov_b32 v138, s{sCNT}
    ds_write_b32 v137, v138
    s_cmp_lg_u32 s{sCNT}, 6
    s_cbranch_scc1 P2_PN
    {fl('P2_F3')}
    s_branch P2_PN
    P2_PO:
    ds_read_b32 v138, v137
    s_waitcnt lgkmcnt(0)
    v_readfirstlane_b32 s6, v138
    s_cmp_eq_u32 s6, s{sCNT}
    s_cbranch_scc0 P2_PO
    P2_PN:
    s_mov_b32 s{sPO}, s{sPW}
    """)
    if OPT['d3']:
        P(issO() + issW() + f's_cmp_eq_u32 s{sCNT}, 2\ns_cbranch_scc1 P2_D3\ns_waitcnt vmcnt(20)\ns_barrier\nP2_D3:\n' + issO() + issW())
        P(f's_add_u32 s{sCNT}, s{sCNT}, 2\ns_cmp_lt_u32 s{sCNT}, 14\ns_waitcnt vmcnt(20)\ns_barrier\ns_cbranch_scc1 P2_LD')
        P('s_waitcnt vmcnt(10)\ns_barrier\ns_waitcnt vmcnt(0)\ns_barrier\ns_barrier\ns_branch P2_RED')
    else:
        P(issO() + issW() + 's_waitcnt vmcnt(10)\ns_barrier\n' + issO() + issW())
        P(f's_add_u32 s{sCNT}, s{sCNT}, 2\ns_cmp_lt_u32 s{sCNT}, 14\ns_waitcnt vmcnt(10)\ns_barrier\ns_cbranch_scc1 P2_LD')
        P('s_waitcnt vmcnt(0)\ns_barrier\ns_barrier\ns_branch P2_RED')
    ACC = [[4 * (2 * t + j) for j in range(2)] for t in range(9)]; AC9 = [72, 76, 80]
    SET = [dict(A=[144 + 4 * t for t in range(9)], A9=[180, 184], B=[188, 192], B9=196),
           dict(A=[200 + 4 * t for t in range(9)], A9=[236, 240], B=[244, 248], B9=252)]
    P(f"""
    P2_G1:
    s_lshl_b32 s6, s{sTID}, 2
    s_add_u32 s6, s6, s{sKS}
    s_lshl_b32 s6, s6, 2
    s_add_u32 s6, s6, s{sWP}
    s_mul_i32 s6, s6, 11264
    s_add_u32 s6, s6, {WS_PART}
    s_add_u32 s16, s66, s6
    s_addc_u32 s17, s67, 0
    s_mov_b32 s18, 11264
    s_mov_b32 s19, 0x20000
    s_mov_b32 s{sIB}, 0
    s_mov_b32 s{sCNT}, 1
    s_mov_b32 s{sDL}, {WST}
    s_mov_b32 s{sD2}, {OST}
    s_lshl_b32 s6, s{sJJ}, 2
    s_add_u32 s{sTMP}, s6, s{sTMP}
    s_barrier
    s_cmp_eq_u32 s{sW}, 4
    s_cbranch_scc0 P2_FA
    s_add_u32 s{sSPIN}, s{sTMP}, 16384
    s_mov_b64 exec, 1
    buffer_store_dword v{VP}, v{VF}, s[52:55], s{sSPIN} offen
    s_mov_b64 exec, -1
    {wb('P2_WA', True).replace('vmcnt(10)', 'vmcnt(11)')}
    s_mov_b64 exec, 1
    buffer_store_dword v{VP}, v{VF}, s[52:55], s{sTMP} offen sc1
    s_mov_b64 exec, -1
    P2_FA:
    """)
    stamp(6)
    def rd(st, K):
        o = [f'ds_read_b128 {vr(st["B"][j], 4)}, v{AB} offset:{K * 2048 + j * 256}' for j in range(2)]
        for t in range(9):
            o += [f'ds_read_b64_tr_b16 {vr(st["A"][t] + 2 * j, 2)}, v{[A0, A1][t & 1]} offset:{K * 10240 + j * 1280 + 64 * (t >> 1)}' for j in range(2)]
            if t == 7: o.append(f'ds_read_b128 {vr(st["B9"], 4)}, v{AB9} offset:{K * 1024}')
        for t in range(2):
            o += [f'ds_read_b64_tr_b16 {vr(st["A9"][t] + 2 * j, 2)}, v{[A90, A91][t]} offset:{K * 10240 + j * 1280}' for j in range(2)]
        return o
    last = []
    def step(cur, rds, extra=(), first=False, tailbr=None):
        z = lambda d, a, b: f'v_mfma_f32_16x16x32_bf16 {vr(d, 4)}, {vr(a, 4)}, {vr(b, 4)}, 0' if first else mf16(d, a, b)
        m = []
        for t in range(9): m += [z(ACC[t][0], cur['A'][t], cur['B'][0]), z(ACC[t][1], cur['A'][t], cur['B'][1])]
        m += [z(AC9[2], cur['A'][8], cur['B9']), z(AC9[0], cur['A9'][0], cur['B9']), z(AC9[1], cur['A9'][1], cur['B9'])]
        for i in (0, 6, 12): m[i] += f' ; need {vr(cur["A"][i // 2 + 2], 4)}'
        m[18] += f' ; need {vr(cur["A9"][1], 4)}'
        rds = list(rds); extra = list(extra)
        for i, x in enumerate(m):
            if tailbr and i == len(m) - 1:
                assert not extra and not rds
                P(f's_cbranch_scc1 {tailbr}'); last.append(x)
            P(x)
            n = 2 if i % 3 != 2 else 1
            if rds: P.extend(rds[:n]); rds = rds[n:]
            elif extra: P.extend(extra[:2]); extra = extra[2:]
        assert not rds
        P.extend(extra)
    upd = [f'v_add_u32 v{r}, s{sDL}, v{r}' for r in (A0, A1, A90, A91)] + [f'v_add_u32 v{r}, s{sD2}, v{r}' for r in (AB, AB9)]
    ring = [f's_add_u32 s{sIB}, s{sIB}, 1', f's_and_b32 s{sIB}, s{sIB}, 3', f's_cmp_eq_u32 s{sIB}, {NB - 1}',
            f's_cselect_b32 s{sDL}, {-(NB - 1) * WST & 0xffffffff}, {WST}', f's_cselect_b32 s{sD2}, {-(NB - 1) * OST & 0xffffffff}, {OST}']
    P.extend(rd(SET[0], 0))
    step(SET[0], rd(SET[1], 1), upd, first=True)
    P('s_barrier\ns_branch P2_M\nP2_L:')
    if OPT['tl'] == 1: stamp(2, 3); stamp(7, 8); stamp(3, 12)
    step(SET[0], rd(SET[1], 1), upd + [f's_add_u32 s{sCNT}, s{sCNT}, 1', f's_cmp_eq_u32 s{sCNT}, {OPT["fb"]}'], tailbr='P2_SPEC')
    P('s_barrier\nP2_M:')
    step(SET[1], rd(SET[0], 0), ring + [f's_cmp_lt_u32 s{sCNT}, 16'])
    P('s_cbranch_scc1 P2_L\ns_branch P2_E\nP2_SPEC:\n' + last[0])
    P(f"""
    s_waitcnt vmcnt(0)
    s_barrier
    s_cmp_eq_u32 s{sW}, 4
    s_cbranch_scc0 P2_M
    s_mov_b64 exec, 1
    buffer_store_dword v{VP}, v{VF}, s[52:55], s{sSPIN} offen offset:16
    s_mov_b64 exec, -1
    {wb('P2_WB', False)}
    s_mov_b64 exec, 1
    buffer_store_dword v{VP}, v{VF}, s[52:55], s{sTMP} offen offset:16 sc1
    s_mov_b64 exec, -1
    s_branch P2_M
    P2_E:
    """)
    stamp(9)
    units = [(ACC[2 * u][j], ACC[2 * u + 1][j]) for j in range(2) for u in range(4)] + [(ACC[8][0], ACC[8][1]), (AC9[0], AC9[1]), (AC9[2], AC9[2])]
    dst = [84 + 4 * i if i < 9 else 144 + 4 * i for i in range(11)]
    def pack(i):
        x, y = units[i]; d = dst[i]
        P(f'v_cvt_pk_bf16_f32 v{d}, v{x}, v{x + 1}\nv_cvt_pk_bf16_f32 v{d + 1}, v{x + 2}, v{x + 3}')
        P(f'v_cvt_pk_bf16_f32 v{d + 2}, v{y}, v{y + 1}\nv_cvt_pk_bf16_f32 v{d + 3}, v{y + 2}, v{y + 3}')
        if i % 4 == 0: P(f's_mov_b32 s3, {i * 1024}')
        P(f'v_permlane16_swap_b32 v{d}, v{d + 2}\nv_permlane16_swap_b32 v{d + 1}, v{d + 3}')
    P(f's_cmp_eq_u32 s{sWP}, s{sKS}\ns_cbranch_scc1 P2_OWN')
    for i in range(11):
        pack(i); P(f'buffer_store_dwordx4 {vr(dst[i], 4)}, v{VO}, s[16:19], s3 offen offset:{(i % 4) * 1024} sc1')
    P('s_branch P2_RED\nP2_OWN:')
    for i in range(11):
        pack(i); P(f'ds_write_b128 v{VO}, {vr(dst[i], 4)} offset:{i * 1024}')
    P(f"""
    P2_RED:
    s_lshl_b32 s{sTMP}, s{sTID}, 7
    s_add_u32 s{sTMP}, s{sTMP}, 8192
    s_lshl_b32 s7, s{sKS}, 2
    s_add_u32 s7, s7, s{sTMP}
    s_lshl_b32 s6, s{sTID}, 4
    s_add_u32 s6, s6, s{sKS}
    s_mul_i32 s6, s6, 11264
    s_add_u32 s6, s6, {WS_PART}
    s_add_u32 s16, s66, s6
    s_addc_u32 s17, s67, 0
    s_mov_b32 s18, {3 * 45056 + 11264}
    s_mov_b32 s19, 0x20000
    s_mul_i32 s6, s{sB}, {144 * 2304}
    s_mul_i32 s3, s{sBR}, 1152
    s_add_u32 s6, s6, s3
    s_mul_i32 s3, s{sJJ}, 288
    s_add_u32 s6, s6, s3
    s_add_u32 s12, s68, s6
    s_addc_u32 s13, s69, 0
    s_sub_u32 s14, {1152 * 2304}, s6
    s_mov_b32 s15, 0x20000
    v_mov_b32 v{VP}, s{sE}
    s_mov_b64 s[{sNEED}:{sNEED + 1}], 15
    v_and_b32 v4, 15, v140
    v_mul_u32_u24 v4, 2304, v4
    v_lshrrev_b32 v5, 5, v140
    v_lshl_add_u32 v4, v5, 4, v4
    v_bfe_u32 v5, v140, 4, 1
    v_lshl_add_u32 v6, v5, 5, v4
    s_lshl_b32 s40, s{sKS}, 1
    s_lshr_b32 s3, s{sW}, 2
    s_add_u32 s40, s40, s3
    s_mul_i32 s40, s40, {16 * 2304}
    s_and_b32 s3, s{sW}, 3
    s_lshl_b32 s3, s3, 6
    s_add_u32 s40, s40, s3
    s_lshl_b32 s41, s{sW}, 10
    s_mul_i32 s42, s{sKS}, {32 * 2304}
    s_add_u32 s42, s42, 256
    s_lshl_b32 s3, s{sKS}, 6
    s_add_u32 s3, s3, {128 * 2304}
    s_cmp_eq_u32 s{sW}, 1
    s_cselect_b32 s42, s3, s42
    s_cselect_b32 s45, 32, 0
    s_cmp_eq_u32 s{sW}, 2
    s_cselect_b32 s42, {128 * 2304 + 256}, s42
    s_cmp_eq_u32 s{sW}, 0
    s_cselect_b32 s45, {16 * 2304}, s45
    v_mul_lo_u32 v7, s45, v5
    v_add_u32 v7, v7, v4
    s_cmp_lg_u32 s{sKS}, 0
    s_cselect_b32 s45, 2, 3
    s_waitcnt vmcnt(0)
    s_barrier
    s_cmp_eq_u32 s{sW}, 7
    s_cbranch_scc0 P2_NG
    s_mov_b64 exec, 1
    buffer_store_dword v{VP}, v{VF}, s[52:55], s7 offen sc1
    s_mov_b64 exec, -1
    P2_NG:
    """)
    stamp(10)
    P(f"""
    s_lshl_b32 s3, s{sW}, 10
    v_add_u32 v8, s3, v{VO}
    ds_read_b128 v[32:35], v8
    ds_read_b128 v[48:51], v8 offset:8192
    s_cmp_lg_u32 s{sW}, 0
    s_cbranch_scc1 P2_PW
    """ + poll('P2_PR', sTMP) + 'P2_PW:\ns_barrier')
    stamp(11)
    def loads(base, so):
        for k in range(1, 4):
            P(f's_add_u32 s3, s{sKS}, {k}\ns_and_b32 s3, s3, 3\ns_mul_i32 s3, s3, 45056\ns_add_u32 s3, s3, s{so}\nbuffer_load_dwordx4 {vr(base + 4 * k, 4)}, v{VO}, s[16:19], s3 offen sc1')
    def reduce(base, va, so, left):
        for k in range(4):
            if k: P(f's_waitcnt vmcnt({left + 3 - k})')
            for i in range(4):
                src = base + 4 * k + i; t = 16 if k == 0 else 24
                P(f'v_lshlrev_b32 v{t + 2 * i}, 16, v{src}\nv_and_b32 v{t + 1 + 2 * i}, s46, v{src}')
            if k:
                for i in range(8): P(f'v_add_f32 v{16 + i}, v{16 + i}, v{24 + i}')
        for i in range(4): P(f'v_cvt_pk_bf16_f32 v{base + i}, v{16 + 2 * i}, v{17 + 2 * i}')
        P(f'buffer_store_dwordx4 {vr(base, 4)}, v{va}, s[12:15], s{so} offen')
    P('s_mov_b32 s46, 0xffff0000')
    loads(32, 41)
    P(f's_cmp_lt_u32 s{sW}, s45\ns_cbranch_scc1 P2_R2')
    reduce(32, 6, 40, 0)
    P(f's_branch P2_RE\nP2_R2:\ns_add_u32 s41, s41, 8192')
    loads(48, 41)
    reduce(32, 6, 40, 3)
    reduce(48, 7, 42, 1)
    P('P2_RE:')
    if OPT['stamps']:
        P('s_waitcnt vmcnt(0)'); stamp(8)

def k1():
    P = Prog()
    O, S, CN, Q, PP, O9, Q9, S9, CN9, P9 = 0, 64, 96, 112, 144, 160, 192, 208, 212, 216
    L, L9, VOK, VOV, AK, AK9, AV9, TID = 218, 219, 220, 221, 222, 223, 224, 225
    VA = 226
    T0, T1, AL, AL9, X0, X1 = 230, 231, 232, 233, 234, 235
    FB = [236, 240, 244, 248, 252]
    ACC = [[0, 16, 32, 48], [64, 80, 144, 176]]; ACC9 = [[160, 164], [168, 172]]
    QW = [230, 231, 232, 233]; QX = [234, 235]; QX9, QW9, VOW, VOX, HOLD = 216, 217, 218, 219, 212
    QB, QB9 = [96, 100], 104
    QF = [112, 116, 120, 124, 128, 132, 136, 140, 236, 240]
    sW, sWP, sP, sB, sJ, sBR = 24, 25, 26, 27, 28, 29
    sCNT, sW0, sX, sMC, sIB, sDL = 30, 31, 33, 35, 36, 37
    sEX = 38
    sIK, sROT = 31, 49
    sIS, sSK, sSV, sDK, sDV, sT, sCL, sRARE, sTMP, sTM2, sMW, sKP, sVP, sE = 40, 41, 42, 43, 44, 45, 46, 47, 48, 49, 50, 51, 32, 34
    NSB = OPT['nsb']; STGS = 25600; STG0 = 163840 - NSB * STGS
    SB0 = (NSB - 18) % NSB
    QXCH, Q9B = 131072, 98304 + 16384
    nk, ntw = OPT['nt_kv'], OPT['nt_w']
    def stamp(k, at=None):
        if OPT['stamps'] == 3: return
        if OPT['stamps']:
            if at is not None: P(f's_cmp_lg_u32 s{sCNT}, {at}\ns_cbranch_scc1 K1_ST{k}_{len(P.ins)}'); lbl = P.ins[-1].target
            P(('s_memtime' if OPT['stamps'] == 2 else 's_memrealtime') + ' s[%d:%d]' % (70 + 2 * k, 71 + 2 * k))
            if at is not None: P(f'{lbl}:')
            if k == 1 and OPT['stamps'] == 1: P('s_memtime s[96:97]')
            if k == 4 and OPT['stamps'] == 1: P('s_memtime s[98:99]')
            if k == 2 and OPT['stamps'] == 1: P('s_memtime s[94:95]')
    P(f"""
    s_cmp_ge_u32 s2, 256
    s_cbranch_scc1 K1_END
    s_bfe_u32 s{sBR}, s2, 0x10002
    s_mul_i32 s6, s{sBR}, 40
    s_add_u32 s4, s0, s6
    s_addc_u32 s5, s1, 0
    s_load_dwordx8 s[56:63], s[4:5], 0
    s_load_dwordx4 s[64:67], s[0:1], 88
    s_load_dwordx2 s[68:69], s[0:1], 80
    s_load_dwordx2 s[100:101], s[4:5], 32
    """)
    if OPT['stamps']:
        for k in range(70, 100, 2): P(f's_mov_b64 s[{k}:{k + 1}], 0')
    stamp(0)
    P(f"""
    v_lshrrev_b32 v1, 6, v0
    v_and_b32 v{TID}, 63, v0
    v_readfirstlane_b32 s{sW}, v1
    v_lshrrev_b32 v2, 4, v{TID}
    v_and_b32 v3, 15, v{TID}
    s_and_b32 s3, s2, 3
    s_lshl_b32 s3, s3, 2
    s_bfe_u32 s7, s2, 0x20003
    s_add_u32 s{sJ}, s3, s7
    s_lshr_b32 s{sB}, s2, 5
    s_and_b32 s{sWP}, s{sW}, 3
    s_lshr_b32 s{sP}, s{sW}, 2
    v_lshlrev_b32 v4, 2, v2
    v_xor_b32 v4, v4, v3
    v_lshlrev_b32 v4, 4, v4
    v_lshl_add_u32 v{VOW}, v2, 13, v4
    v_lshrrev_b32 v8, 2, v{TID}
    v_and_b32 v9, 3, v{TID}
    v_xor_b32 v9, v9, v2
    v_mul_u32_u24 v8, 1152, v8
    v_lshl_add_u32 v{VOX}, v9, 4, v8
    s_lshl_b32 s3, s{sWP}, 2
    v_or_b32 v5, s3, v2
    v_xor_b32 v5, v5, v3
    v_lshlrev_b32 v5, 4, v5
    s_lshl_b32 s{sMW}, s{sWP}, 12
    v_lshl_add_u32 v5, v2, 8, v5
    v_add_u32 v{VOK}, s{sMW}, v5
    v_lshl_add_u32 v5, v2, 8, v4
    v_add_u32 v{VOV}, s{sMW}, v5
    s_lshl_b32 s{sW0}, s{sWP}, 16
    s_mul_i32 s{sX}, s{sWP}, 18432
    s_mul_i32 s{sMC}, s{sWP}, 3072
    s_lshl_b32 s3, s{sWP}, 4
    s_lshl_b64 s[{sEX}:{sEX + 1}], 0xffff, s3
    s_mul_i32 s6, s{sB}, 165888
    s_lshl_b32 s7, s{sJ}, 9
    s_mov_b32 s11, 0x20000
    s_mov_b32 s22, {165888 + 2048}
    s_mov_b32 s23, 0x20000
    s_sub_u32 s10, {576 * 8192}, s7
    s_mov_b32 s{sIB}, {STG0}
    s_lshl_b32 s{sTMP}, s{sB}, 5
    s_lshl_b32 s{sTM2}, s{sJ}, 1
    s_add_u32 s{sTMP}, s{sTMP}, s{sTM2}
    s_lshl_b32 s{sTMP}, s{sTMP}, 17
    s_mov_b32 s14, 262144
    s_mov_b32 s15, 0x20000
    s_mov_b32 s18, 262144
    s_mov_b32 s19, 0x20000
    s_mov_b32 s{sCNT}, 0
    s_cmp_ge_u32 s{sW}, 4
    s_waitcnt lgkmcnt(0)
    s_cbranch_scc1 K1_G1
    s_add_u32 s8, s62, s7
    s_addc_u32 s9, s63, 0
    s_add_u32 s20, s56, s6
    s_addc_u32 s21, s57, 0
    s_sub_u32 s20, s20, 2048
    s_subb_u32 s21, s21, 0
    """)
    kvsrd = f"""
    s_add_u32 s12, s58, s{sTMP}
    s_addc_u32 s13, s59, 0
    s_add_u32 s16, s60, s{sTMP}
    s_addc_u32 s17, s61, 0
    s_lshr_b32 s{sROT}, s2, 3
    s_mul_i32 s3, s2, {OPT['rotx']}
    s_mul_i32 s{sROT}, s{sROT}, {OPT['rot']}
    s_add_u32 s{sROT}, s{sROT}, s3
    s_lshl_b32 s{sROT}, s{sROT}, 14
    s_add_u32 s52, s66, {WS_FLAG}
    s_addc_u32 s53, s67, 0
    s_mov_b32 s54, 32768
    s_mov_b32 s55, 0x20000
    """
    lanec = f"""
    v_bfe_u32 v10, v{TID}, 2, 2
    v_and_b32 v11, 3, v{TID}
    v_lshrrev_b32 v12, 5, v{TID}
    v_and_b32 v13, 1, v2
    v_and_b32 v20, 1, v11
    v_lshrrev_b32 v15, 1, v11
    v_lshlrev_b32 v16, 2, v10
    v_lshl_add_u32 v17, v13, 1, v20
    v_xor_b32 v17, v17, v16
    v_lshlrev_b32 v17, 4, v17
    v_lshl_add_u32 v17, v15, 3, v17
    v_lshl_add_u32 v17, v10, 8, v17
    s_lshl_b32 s3, s{sP}, 14
    s_add_u32 s{sMW}, s{sMW}, s3
    s_add_u32 s6, s3, 65536
    v_lshl_add_u32 v18, v12, 10, v17
    v_add_u32 v{VA}, s6, v18
    v_xor_b32 v{VA + 1}, 64, v{VA}
    v_xor_b32 v{VA + 2}, 0x80, v{VA}
    v_xor_b32 v{VA + 3}, 0xc0, v{VA}
    v_bfe_u32 v23, v{TID}, 3, 2
    v_bfe_u32 v24, v{TID}, 2, 1
    v_lshl_add_u32 v25, v23, 2, v11
    v_xor_b32 v25, v25, v12
    v_lshlrev_b32 v25, 4, v25
    v_lshl_add_u32 v25, v11, 8, v25
    v_lshl_add_u32 v25, v24, 10, v25
    v_lshl_add_u32 v25, v23, 12, v25
    v_add_u32 v{AK}, s3, v25
    s_lshl_b32 s7, s{sWP}, 10
    s_add_u32 s6, s3, s7
    v_xor_b32 v25, v2, v3
    v_lshlrev_b32 v25, 4, v25
    v_lshl_add_u32 v25, v11, 8, v25
    v_lshl_add_u32 v25, v10, 12, v25
    v_add_u32 v{AK9}, s6, v25
    v_xor_b32 v25, v15, v16
    v_lshlrev_b32 v25, 4, v25
    v_lshl_add_u32 v25, v20, 3, v25
    v_lshl_add_u32 v25, v10, 8, v25
    v_lshl_add_u32 v25, v2, 12, v25
    s_add_u32 s6, s6, 65536
    s_lshl_b32 s7, s{sWP}, 6
    v_xor_b32 v25, s7, v25
    v_add_u32 v{AV9}, s6, v25
    v_mul_u32_u24 v26, 272, v3
    v_lshl_add_u32 v27, v2, 4, v26
    s_mul_i32 s6, s{sP}, 4352
    s_add_u32 s6, s6, {Q9B}
    v_add_u32 v{S9}, s6, v27
    v_lshlrev_b32 v27, 4, v{TID}
    s_lshl_b32 s6, s{sWP}, 13
    s_add_u32 s6, s6, {QXCH}
    v_add_u32 v{S9 + 1}, s6, v27
    """
    loopinit = f"""
    s_mov_b32 s{sCNT}, 1
    s_mov_b32 s{sKP}, 32768
    s_mov_b32 s{sVP}, 65536
    s_mov_b32 s{sDK}, 32768
    s_mov_b32 s{sDV}, 0
    s_mov_b32 s{sIS}, 131072
    s_mov_b32 s{sIK}, 0
    s_mov_b32 s33, 0
    s_mul_i32 s3, s{sP}, {OPT['rotp'] * 16384}
    s_add_u32 s3, s3, s{sROT}
    s_add_u32 s{sSV}, s3, 16384
    s_and_b32 s{sSV}, s{sSV}, 0x1ffff
    s_add_u32 s{sSK}, s3, 49152
    s_and_b32 s{sSK}, s{sSK}, 0x1ffff
    s_mov_b32 s{sCL}, 0xff800000
    s_mov_b32 s{sRARE}, 0
    """
    obase = f"""
    s_lshl_b32 s6, s{sBR}, 3
    s_add_u32 s6, s6, s{sB}
    s_mul_i32 s6, s6, 1179648
    s_mul_i32 s7, s{sWP}, {262144 - 4096}
    s_add_u32 s6, s6, s7
    s_lshl_b32 s7, s{sJ}, 1
    s_add_u32 s7, s7, s{sP}
    s_lshl_b32 s7, s7, 13
    s_add_u32 s6, s6, s7
    s_add_u32 s56, s66, s6
    s_addc_u32 s57, s67, 0
    """
    narrow = f's_lshl_b32 s3, s{sP}, 17\ns_add_u32 s12, s12, s3\ns_addc_u32 s13, s13, 0\ns_add_u32 s16, s16, s3\ns_addc_u32 s17, s17, 0\ns_mov_b32 s14, 131072\ns_mov_b32 s18, 131072'
    getE = f'v_mov_b32 v{AL}, {Q9B + 8704}\nds_read_b32 v{AL}, v{AL}' if OPT['fused'] else ''
    getE2 = f'v_readfirstlane_b32 s{sE}, v{AL}' if OPT['fused'] else ''
    queue = []
    def vm(text, tag): P(text); queue.append(tag)
    BS = [int(c, 36) for c in str(OPT['bs'])]; BN = OPT['bn'] if BS else 0
    bpos = {}
    def wait_for(tag):
        idx = max(i for i, t in enumerate(queue) if t == tag)
        n = len(queue) - 1 - idx
        young = [c for c, p_ in bpos.items() if p_ > idx]
        if young and n + BN <= 63 and len(young) < 4:
            lbl = f'K1_BW{len(P.ins)}'
            P(f's_bitcmp1_b32 s{sCLS}, 0' if False else f's_and_b32 s3, s{sCLS}, {sum(1 << c for c in young)}\ns_cbranch_scc1 {lbl}\ns_waitcnt vmcnt({min(63, n)})\n{lbl}:\ns_waitcnt vmcnt({n + BN})')
        elif len(young) == 4: P(f's_waitcnt vmcnt({min(63, n + BN)})')
        else: P(f's_waitcnt vmcnt({min(63, n)})')
    def stage(s):
        if OPT['nost'] and s >= 3: queue.append(('s', s)); return
        buf = STG0 + ((s + SB0) % NSB) * STGS
        for hd in range(2):
            P(f's_add_u32 m0, s{sMC}, {buf + hd * 12288}\ns_add_u32 s3, s{sW0}, {s * 262144 + hd * 256}')
            vm(f'buffer_load_dwordx4 v{VOW}, s[8:11], s3 offen {ntw} lds', ('s', s))
            P(f's_add_u32 s3, s3, {32768 - 1024}')
            vm(f'buffer_load_dwordx4 v{VOW}, s[8:11], s3 offen offset:1024 {ntw} lds', ('s', s))
            P(f's_add_u32 s3, s{sX}, {s * 64 + hd * 4 * 18432}')
            vm(f'buffer_load_dwordx4 v{VOX}, s[20:23], s3 offen offset:2048 {ntw} lds', ('s', s))
        P(f's_mov_b32 m0, {buf + 24576}\ns_mov_b32 s3, {s * 64 + 128 * 1152 + 2048}\ns_mov_b64 exec, s[{sEX}:{sEX + 1}]')
        vm(f'buffer_load_dwordx4 v{VOX}, s[20:23], s3 offen {ntw} lds', ('s', s))
        P('s_mov_b64 exec, -1')
    VTW, VTX, sTW, sTX, sCLS = 232, 233, 45, 46, 47
    def touch(s):
        if s >= 18 or not OPT['tlead']: return
        P(f's_add_u32 s3, s{sTW}, {s * 262144}\ns_add_u32 s6, s{sTX}, {s * 64}\ns_mov_b64 exec, 0x1ff')
        vm(f'buffer_load_dword v{X0}, v{VTW}, s[8:11], s3 offen {ntw}', ('t', s))
        vm(f'buffer_load_dword v{X1}, v{VTX}, s[20:23], s6 offen {ntw}', ('t', s))
        P('s_mov_b64 exec, -1')
    def ltouch():
        TR = OPT['trows']
        P(f"""
        v_lshrrev_b32 v{VTW}, 3, v{TID}
        v_and_b32 v{VTX}, 7, v{TID}
        v_lshlrev_b32 v{VTX}, 6, v{VTX}
        v_lshl_add_u32 v{VTW}, v{VTW}, 13, v{VTX}
        v_lshlrev_b32 v{VTX}, 6, v{TID}
        s_lshl_b32 s3, s{sB}, 2
        s_add_u32 s3, s3, s{sWP}
        s_mul_i32 s3, s3, {TR * 8192}
        s_add_u32 s3, s3, {(576 - 32 * TR) * 8192}
        s_bfe_u32 s6, s2, 0x20003
        s_lshl_b32 s6, s6, 2
        s_add_u32 s6, s6, s{sWP}
        s_mul_i32 s6, s6, {162 * 64}
        s_add_u32 s6, s6, 2048
        """)
        tw = [(i, min(8, TR - 8 * i) * 8) for i in range((TR + 7) // 8)]; tx = [(0, 64), (1, 64), (2, 34)]
        for i in range(3):
            for (lst, v, srd, so, step) in ((tw, VTW, 8, 3, 8 * 8192), (tx, VTX, 20, 6, 4096)):
                if i >= len(lst): continue
                n = lst[i][1]
                if n < 64: P(f's_mov_b64 exec, {hex((1 << n) - 1)}' if n <= 31 else f's_mov_b32 exec_hi, {(1 << (n - 32)) - 1}')
                vm(f'buffer_load_dword v{X0}, v{v}, s[{srd}:{srd + 3}], s{so} offen {ntw}', ('t', 0))
                if n < 64: P('s_mov_b64 exec, -1')
                P(f's_add_u32 s{so}, s{so}, {step}')
    def btouch(a, b):
        n = b - a; l0, l1 = a // 2, (b + 1) // 2; nl = l1 - l0
        mg = (65536 + nl - 1) // nl
        assert all((i * mg) >> 16 == i // nl for i in range(64)) and 4 * n <= 64 and 9 * nl <= 64
        P(f"""
        v_lshrrev_b32 v{VTW}, 2, v{TID}
        v_and_b32 v{VTX}, 3, v{TID}
        v_lshlrev_b32 v{VTX}, 7, v{VTX}
        v_lshl_add_u32 v{VTW}, v{VTW}, 13, v{VTX}
        v_mul_u32_u24 v{X1}, {mg}, v{TID}
        v_lshrrev_b32 v{X1}, 16, v{X1}
        v_mul_u32_u24 v{VTX}, {1152 - 128 * nl}, v{X1}
        v_lshl_add_u32 v{VTX}, v{TID}, 7, v{VTX}
        s_lshl_b32 s3, s{sB}, 2
        s_add_u32 s3, s3, s{sWP}
        s_mul_i32 s3, s3, {n * 8192}
        s_add_u32 s3, s3, {32 * a * 8192}
        s_and_b32 s6, s{sJ}, 3
        s_lshl_b32 s6, s6, 2
        s_add_u32 s6, s6, s{sWP}
        s_mul_i32 s6, s6, {9 * 1152}
        s_add_u32 s6, s6, {2048 + 128 * l0}
        """)
        for cnt, v, srd, so in ((4 * n, VTW, 8, 3), (9 * nl, VTX, 20, 6)):
            P(f's_mov_b64 exec, {hex((1 << cnt) - 1)}' if cnt <= 31 else f's_mov_b32 exec_lo, -1\ns_mov_b32 exec_hi, {hex((1 << (cnt - 32)) - 1)}')
            vm(f'buffer_load_dword v{X0}, v{v}, s[{srd}:{srd + 3}], s{so} offen {ntw}', ('t', 2))
        P('s_mov_b64 exec, -1')
    TB = [tuple(int(y) for y in x.split(':')) for x in str(OPT['tb']).split(',') if x]
    def otouch():
        P(f"""
        s_lshl_b32 s6, s{sBR}, 3
        s_add_u32 s6, s6, s{sB}
        s_mul_i32 s6, s6, 1179648
        s_add_u32 s56, s66, s6
        s_addc_u32 s57, s67, 0
        s_mov_b32 s58, 1179648
        s_mov_b32 s59, 0x20000
        v_lshlrev_b32 v{VTW}, 7, v{TID}
        s_lshl_b32 s3, s{sWP}, 18
        s_lshl_b32 s6, s{sJ}, 14
        s_add_u32 s3, s3, s6
        """)
        vm(f'buffer_load_dword v{X0}, v{VTW}, s[56:59], s3 offen', ('t', 1))
        P('s_add_u32 s3, s3, 8192')
        vm(f'buffer_load_dword v{X0}, v{VTW}, s[56:59], s3 offen', ('t', 1))
        P(f's_lshl_b32 s3, s{sJ}, 13\ns_lshl_b32 s6, s{sWP}, 11\ns_add_u32 s3, s3, s6\ns_add_u32 s3, s3, {1 << 20}\ns_mov_b64 exec, 0xffff')
        vm(f'buffer_load_dword v{X0}, v{VTW}, s[56:59], s3 offen', ('t', 1))
        P('s_mov_b64 exec, -1')
    PRE = {(0, 0): [64, 68, 72, 76], (0, 1): [80, 84, 88, 92], (1, 0): [112, 116, 120, 124], (1, 1): [128, 132, 136, 140],
           (2, 0): [192, 196, 200, 204], (2, 1): [236, 240, 244, 248], (3, 0): [96, 100, 104, 252], (3, 1): [144, 148, 152, 156]}
    SRC = {0: (VOK, 12, 0), 1: (VOK, 12, 16384), 2: (VOV, 16, 0), 3: (VOK, 12, 32768)}
    FREE = {(0, 0): 0 if NSB <= 5 else 13, (0, 1): 0 if NSB <= 5 else 13, (1, 0): 15, (1, 1): 15, (2, 0): 16, (2, 1): 16, (3, 0): 17, (3, 1): 19}
    inreg = set()
    def kvload(step, u, hd, n):
        if OPT['nokv'] & 1: return
        vo, srd, off = SRC[u]
        P(f's_add_u32 s3, s{sROT}, {off + hd * OPT["rotp"] * 16384}\ns_and_b32 s3, s3, 0x1ffff' + (f'\ns_add_u32 s3, s3, 131072' if hd else ''))
        if step >= FREE[u, hd]:
            P(f's_add_u32 m0, s{sMW}, {u * 32768 + hd * 16384}\ns_nop 0')
            vm(f'buffer_load_dwordx4 v{vo}, s[{srd}:{srd + 3}], s3 offen offset:{n * 1024} {nk} lds', ('k', u))
        else:
            vm(f'buffer_load_dwordx4 {vr(PRE[u, hd][n], 4)}, v{vo}, s[{srd}:{srd + 3}], s3 offen offset:{n * 1024} {nk}', ('r', u, hd)); inreg.add((u, hd, n))
    def kvdump(step):
        if OPT['nokv'] & 2: return
        for (u, hd), f in FREE.items():
            ns = [n for n in range(4) if (u, hd, n) in inreg]
            if f != step or not ns: continue
            if (u, hd) in btag: P(f's_waitcnt vmcnt({min(63, len(queue) - btag[u, hd])})')
            if ('r', u, hd) in queue: wait_for(('r', u, hd))
            base = u * 32768 + hd * 16384
            for n in ns: P(f'ds_write_b128 v{[T0, T1][base >> 16]}, {vr(PRE[u, hd][n], 4)} offset:{(base & 0xffff) + n * 1024}')
    kvq = [(u, hd, n) for u in range(4) for hd in range(2) for n in range(4)]
    npre, dist = OPT['npre'], OPT['dist']
    sched = [int(c, 36) for c in str(OPT['kvs'])] + [0] * 30
    assert sum(sched) + abs(OPT['kpre']) + BN == 32 and dist <= NSB - 1 and npre <= NSB
    burst = [kvq.pop(0) for _ in range(BN)]; btag = {}
    if BS: P(f's_and_b32 s3, s{sJ}, 3\ns_lshl_b32 s{sCLS}, 1, s3')
    nxt = 0
    for s in range(npre): stage(s); nxt += 1
    if OPT['tlead']:
        P(f"""
        v_lshlrev_b32 v{VTW}, 6, v{TID}
        v_mul_u32_u24 v{VTX}, 1152, v{TID}
        s_lshl_b32 s{sTW}, s{sB}, 2
        s_add_u32 s{sTW}, s{sTW}, s{sWP}
        s_lshl_b32 s{sTW}, s{sTW}, 13
        s_bfe_u32 s{sTX}, s2, 0x20003
        s_lshl_b32 s{sTX}, s{sTX}, 2
        s_add_u32 s{sTX}, s{sTX}, s{sWP}
        s_mul_i32 s{sTX}, s{sTX}, {9 * 1152}
        s_add_u32 s{sTX}, s{sTX}, 2048
        """)
        for s in range(npre, dist + OPT['tlead']): touch(s)
    if OPT['kpre']:
        P(kvsrd)
        for _ in range(max(0, OPT['kpre'])): kvload(0, *kvq.pop(0))
    if OPT['ts'] == -1: ltouch()
    for st_, a_, b_ in TB:
        if st_ == -1: btouch(a_, b_)
    for _ in range(max(0, -OPT['kpre'])): kvload(0, *kvq.pop(0))
    later = ['' if OPT['kpre'] else kvsrd] + [f'v_lshlrev_b32 v{T0}, 4, v{TID}\nv_add_u32 v{T0}, s{sMW}, v{T0}\nv_add_u32 v{T1}, 0x10000, v{T0}', lanec]
    zs = list(range(108, 112)) + list(range(O9, O9 + 32)) + list(range(CN9, CN9 + 4)) + list(range(63, -1, -1))
    later += ['\n'.join(f'v_mov_b32 v{r}, 0' for r in zs[i:i + 26]) for i in range(0, len(zs), 26)]
    P(later.pop(0))
    for s in range(19):
        if OPT['stamps'] == 2 and s == OPT['sq']: stamp(5)
        if OPT['stamps'] == 2 and s == OPT['sq'] + 1: stamp(6)
        if OPT['stamps'] == 3 and OPT['sq'] == 99 and 1 <= s <= 5: P(f's_memtime s[{70 + 6 * s - 4}:{71 + 6 * s - 4}]')
        if s < 18: wait_for(('s', s))
        if OPT['stamps'] == 3 and OPT['sq'] == 99 and 1 <= s <= 4: P(f's_memtime s[{70 + 6 * s - 2}:{71 + 6 * s - 2}]')
        if OPT['stamps'] == 2 and s == OPT['sq']: stamp(3)
        P('s_barrier')
        if OPT['stamps'] == 2 and s == OPT['sq']: stamp(2)
        if s == 0 and OPT['stamps'] == 1: stamp(1)
        S3 = [0, 1, 2, 3, 4, 5, 6, 8, 10, 12, 13, 14, 15, 16, 18]
        if OPT['stamps'] == 3 and OPT['sq'] == 99:
            if s <= 4: P(f's_memtime s[{70 + 6 * s}:{71 + 6 * s}]')
        elif OPT['stamps'] == 3 and s in S3: P(f's_memtime s[{70 + 2 * S3.index(s)}:{71 + 2 * S3.index(s)}]')
        if OPT['sp']:
            for _ in range(int((str(OPT['sp']) + '0' * 20)[s])):
                assert nxt <= s + NSB - 1
                stage(nxt); nxt += 1
            if OPT['ts'] == s: ltouch()
            for st_, a_, b_ in TB:
                if st_ == s: btouch(a_, b_)
            if OPT['ot'] == s: otouch()
            if OPT['cts'] == s:
                P(f"""
                s_getpc_b64 s[6:7]
                K1_PC2:
                s_add_u32 s6, s6, @PC2OFF@
                s_addc_u32 s7, s7, 0
                s_lshl_b32 s3, s{sWP}, 5
                v_add_u32 v{VTW}, s3, v{TID}
                v_lshlrev_b32 v{VTW}, 7, v{VTW}
                v_min_u32 v{VTW}, @LEN2@, v{VTW}
                v_mov_b32 v{VTX}, s7
                v_add_co_u32 v{VTW}, vcc, s6, v{VTW}
                v_addc_co_u32 v{VTX}, vcc, 0, v{VTX}, vcc
                s_mov_b32 exec_hi, 0
                """)
                vm(f'global_load_dword v{X0}, v[{VTW}:{VTX}], off', ('t', 3))
                P('s_mov_b32 exec_hi, -1')
        n = 0
        while not OPT['sp'] and nxt < 18 and nxt <= s + dist and n < 2: stage(nxt); nxt += 1; n += 1
        touch(s + dist + OPT['tlead'])
        if s in BS:
            cl_ = [c for c in range(4) if BS[c] == s]; lbl = f'K1_BU{s}'
            P(f's_and_b32 s3, s{sCLS}, {sum(1 << c for c in cl_)}\ns_cbranch_scc0 {lbl}')
            keepq = len(queue)
            for pc in burst: kvload(s, *pc)
            del queue[keepq:]
            for c in cl_: bpos[c] = keepq
            P(f'{lbl}:')
            if len(bpos) == 4:
                for u_, hd_, n_ in burst: btag[(u_, hd_)] = keepq
        kvdump(s)
        for _ in range(sched[s]): kvload(s, *kvq.pop(0))
        if later: P(later.pop(0))
    assert nxt == 18 and not later
    for r in list(range(96, 108)) + [L, L9]: P(f'v_mov_b32 v{r}, 0')
    P(loopinit)
    if OPT['stamps'] == 1: stamp(2)
    if (0, 1) in btag: P(f's_waitcnt vmcnt({min(63, len(queue) - btag[0, 1])})')
    if ('k', 0) in queue: wait_for(('k', 0))
    P('s_barrier')
    P(getE)
    for kk in range(8): P(f'ds_read_b128 {vr(Q + 4 * kk, 4)}, v{S9 + 1} offset:{kk * 1024}')
    for kk in range(4): P(f'ds_read_b128 {vr(Q9 + 4 * kk, 4)}, v{S9} offset:{kk * 64}')
    P('s_barrier')
    P(getE2)
    kvdump(19)
    for _ in range(sched[19]): kvload(19, *kvq.pop(0))
    assert not kvq
    P(narrow)
    after = lambda u: (len(queue) - 1 - max(i for i, t in enumerate(queue) if t == ('k', u))) if ('k', u) in queue else 60
    X1N = min(63, after(1) + 4) if OPT['nbar'] == 2 else min(63, after(1) + 4, after(2) + 4)
    P('s_branch K1_HEAD')
    P('K1_G1:')
    P(kvsrd)
    if OPT['fused']:
        P(f"""
                v_mov_b32 v246, 0
        s_cmp_eq_u32 s{sW}, 4
        s_cbranch_scc0 K1_E0
        buffer_load_dword v244, v246, s[52:55], 0 offen sc1
        K1_E0:
        """)
    def touches():
        P(f"""
        s_lshl_b32 s7, s{sJ}, 9
        s_mul_i32 s6, s{sB}, 165888
        s_add_u32 s8, s62, s7
        s_addc_u32 s9, s63, 0
        s_add_u32 s20, s56, s6
        s_addc_u32 s21, s57, 0
        s_mov_b32 s22, 165888
        v_lshrrev_b32 v28, 3, v{TID}
        v_and_b32 v29, 7, v{TID}
        v_lshlrev_b32 v29, 6, v29
        v_lshl_add_u32 v28, v28, 13, v29
        v_lshlrev_b32 v29, 6, v{TID}
        s_lshl_b32 s3, s{sB}, 2
        s_add_u32 s3, s3, s{sWP}
        s_mul_i32 s3, s3, {TR * 8192}
        s_add_u32 s3, s3, {(576 - 32 * TR) * 8192}
        s_bfe_u32 s6, s2, 0x20003
        s_lshl_b32 s6, s6, 2
        s_add_u32 s6, s6, s{sWP}
        s_mul_i32 s6, s6, {162 * 64}
        """)
        tw = [(i, min(8, TR - 8 * i) * 8) for i in range((TR + 7) // 8)]; tx = [(0, 64), (1, 64), (2, 34)]
        k = 0
        for i in range(3):
            for (lst, v, srd, so, step) in ((tw, 28, 8, 3, 8 * 8192), (tx, 29, 20, 6, 4096)):
                if i >= len(lst): continue
                n = lst[i][1]
                if n < 64: P(f's_mov_b64 exec, {hex((1 << n) - 1)}' if n <= 31 else f's_mov_b32 exec_hi, {(1 << (n - 32)) - 1}')
                P(f'buffer_load_dword v{248 + k}, v{v}, s[{srd}:{srd + 3}], s{so} offen {ntw}'); k += 1
                if n < 64: P('s_mov_b64 exec, -1')
                P(f's_add_u32 s{so}, s{so}, {step}')
        return k
    def ptouch():
        pg = OPT['ptouch']
        P(f"""
        s_lshl_b32 s7, s{sJ}, 9
        s_mul_i32 s6, s{sB}, 165888
        s_add_u32 s8, s62, s7
        s_addc_u32 s9, s63, 0
        s_add_u32 s20, s56, s6
        s_addc_u32 s21, s57, 0
        s_mov_b32 s22, 165888
        v_lshlrev_b32 v28, 16, v{TID}
        s_lshl_b32 s3, s{sWP}, 20
        s_add_u32 s3, s3, {65536 * 4}
        s_mov_b64 exec, 0xffff
        buffer_load_dword v248, v28, s[8:11], s3 offen
        s_mov_b64 exec, 0xf
        s_mov_b32 s3, {65536 * 68}
        s_cmp_eq_u32 s{sWP}, 0
        s_cbranch_scc0 K1_PT1
        buffer_load_dword v249, v28, s[8:11], s3 offen
        buffer_load_dword v250, v28, s[20:23], 0 offen
        s_branch K1_PT2
        K1_PT1:
        buffer_load_dword v249, v28, s[12:15], 0 offen {nk}
        buffer_load_dword v250, v28, s[16:19], 0 offen {nk}
        K1_PT2:
        s_mov_b64 exec, -1
        """)
    TR = OPT['trows']
    NT = (TR + 7) // 8 + 3
    if OPT['ctouch']:
        P(f"""
        s_cmp_eq_u32 s{sW}, 5
        s_cbranch_scc0 K1_CT
        s_getpc_b64 s[6:7]
        K1_PC:
        s_sub_u32 s6, s6, @PCOFF@
        s_subb_u32 s7, s7, 0
        v_lshlrev_b32 v28, 7, v{TID}
        v_mov_b32 v31, s7
        """)
        for k in range(OPT['ctouch']):
            P(f"""
            v_min_u32 v29, @CODELEN@, v28
            v_add_co_u32 v30, vcc, s6, v29
            v_addc_co_u32 v31, vcc, 0, v31, vcc
            global_load_dword v{252 + k % 4}, v[30:31], off
            v_mov_b32 v31, s7
            v_add_u32 v28, 8192, v28
            """)
        P('K1_CT:')
    if OPT['wtouch'] == 1: touches()
    if OPT['ptouch']: ptouch(); NT = 3
    P(lanec)
    if OPT['wtouch'] == 2: touches()
    P(f"""
    v_mul_u32_u24 v18, 3072, v12
    v_add_u32 v18, {STG0 + SB0 * STGS}, v18
    v_add_u32 v{QW[0]}, v17, v18
    v_xor_b32 v{QW[1]}, 64, v{QW[0]}
    v_xor_b32 v{QW[2]}, 0x80, v{QW[0]}
    v_xor_b32 v{QW[3]}, 0xc0, v{QW[0]}
    s_lshl_b32 s6, s{sWP}, 2
    v_add_u32 v18, s6, v15
    v_xor_b32 v18, v18, v16
    v_lshlrev_b32 v18, 4, v18
    v_lshl_add_u32 v18, v20, 3, v18
    v_lshl_add_u32 v18, v10, 8, v18
    v_mul_u32_u24 v19, 3072, v2
    v_add_u32 v19, {STG0 + SB0 * STGS}, v19
    v_add_u32 v{QW9}, v18, v19
    v_xor_b32 v22, v12, v10
    v_lshlrev_b32 v22, 4, v22
    v_lshl_add_u32 v22, v3, 6, v22
    v_mul_u32_u24 v19, 3072, v13
    s_mul_i32 s6, s{sWP}, 6144
    s_add_u32 s6, s6, {STG0 + SB0 * STGS + 2048}
    v_add3_u32 v{QX[0]}, v22, v19, s6
    v_xor_b32 v{QX[1]}, 32, v{QX[0]}
    v_xor_b32 v22, v2, v10
    v_lshlrev_b32 v22, 4, v22
    v_lshl_add_u32 v22, v3, 6, v22
    v_add_u32 v{QX9}, {STG0 + SB0 * STGS + 24576}, v22
    v_lshl_add_u32 v27, v2, 3, v26
    s_lshl_b32 s6, s{sWP}, 6
    s_add_u32 s6, s6, {Q9B}
    v_add_u32 v{S9 + 2}, s6, v27
    """)
    z = list(range(CN9, CN9 + 4)) + list(range(108, 112)) + [L, L9]
    for hd in range(2):
        for a in ACC[hd]: z += list(range(a, a + 16))
        for a in ACC9[hd]: z += list(range(a, a + 4))
    for r in z: P(f'v_mov_b32 v{r}, 0')
    if OPT['fused']:
        P(f"""
        s_cmp_eq_u32 s{sW}, 4
        s_cbranch_scc0 K1_E1
        s_mov_b32 s8, s64
        s_mov_b32 s9, s65
        s_mov_b32 s10, 256
        s_waitcnt vmcnt({NT if OPT['wtouch'] or OPT['ptouch'] else 0})
        v_add_u32 v244, 1, v244
        v_max_u32 v244, 1, v244
        v_mov_b32 v245, 0
        v_mov_b32 v247, v244
        s_mov_b64 exec, 1
        buffer_atomic_cmpswap v[244:245], v246, s[8:11], 0 offen sc0
        s_mov_b64 exec, -1
        K1_E1:
        """)
    P(f's_mov_b32 s{sIB}, {SB0}\ns_barrier')
    if OPT['stamps'] == 1: stamp(1)
    qit = []
    def qmain(kk, hd, dt):
        return (lambda F: [f'ds_read_b64_tr_b16 {vr(F + 2 * j, 2)}, v{QW[dt]} offset:{hd * 12288 + kk * 6144 + j * 1024}' for j in range(2)],
                lambda F: mf32(ACC[hd][dt], F, QB[kk]))
    def q9(hd, t):
        return (lambda F: [f'ds_read_b64_tr_b16 {vr(F + 2 * j, 2)}, v{QW9} offset:{hd * 12288 + t * 32 + j * 1024}' for j in range(2)],
                lambda F: mf16(ACC9[hd][t], F, QB9))
    qit = [qmain(0, hd, dt) for hd in range(2) for dt in range(4)] + [q9(hd, t) for hd in range(2) for t in range(2)] + [qmain(1, hd, dt) for hd in range(2) for dt in range(4)]
    nq = len(QF); NQ = len(qit); QD = OPT['qdelay']
    qrd = lambda i: qit[i % NQ][0](QF[i % nq])
    bheads = [f'ds_read_b128 {vr(QB[0], 4)}, v{QX[0]}', f'ds_read_b128 {vr(QB9, 4)}, v{QX9}']
    upd = [f'v_add_u32 v{r}, s{sDL}, v{r}' for r in QW + QX + [QX9, QW9]]
    P(bheads[0])
    for i in range(nq):
        P.extend(qrd(i))
        if i == 3: P(bheads[1])
    def qmf(i):
        m = qit[i][1](QF[i % nq])
        if i % 2 == 0 and i + 1 < NQ: m += f' ; need {vr(QF[(i + 1) % nq], 4)}'
        return m
    cut = NQ - nq + QD + 1
    P('s_branch K1_QM\nK1_QL:\ns_barrier')
    if OPT['stamps'] == 2: stamp(2, OPT['sq'])
    qpend = [bheads[0]] + [x for jj in range(QD + 1) for x in qrd(jj)]
    for i in range(cut, NQ):
        P(qmf(i))
        qpend += qrd(i + nq)
        if i == NQ - 2: qpend.append(bheads[1])
        n = len(qpend) if i == NQ - 1 else 4
        P.extend(qpend[:n]); qpend = qpend[n:]
    P('K1_QM:')
    if OPT['stamps'] == 1 and not OPT['fused']: stamp(5, 3); stamp(6, 6); stamp(9, 9); stamp(10, 12)
    if OPT['stamps'] == 2: stamp(5, OPT['sq'] - 1); stamp(6, OPT['sq'])
    for i in range(cut):
        P(qmf(i))
        if i + nq < NQ: P.extend(qrd(i + nq))
        if i == 0: P(f'ds_read_b128 {vr(QB[1], 4)}, v{QX[1]}')
        if OPT['qnop'] and i % 2 == 1: P(f's_nop {OPT["qnop"]}')
        if i == 2: P(f's_cmp_eq_u32 s{sIB}, {NSB - 1}\ns_cselect_b32 s{sDL}, {-(NSB - 1) * STGS & 0xffffffff}, {STGS}')
        if i == 4: P(f's_add_u32 s{sIB}, s{sIB}, 1\ns_cmp_eq_u32 s{sIB}, {NSB}\ns_cselect_b32 s{sIB}, 0, s{sIB}')
        if i == 10: P.extend(upd[:4])
        if i == 11:
            P.extend(upd[4:])
            if OPT['stamps'] == 2: stamp(3, OPT['sq'] - 1)
            P(f's_add_u32 s{sCNT}, s{sCNT}, 1\ns_cmp_lt_u32 s{sCNT}, 18')
    P('s_cbranch_scc1 K1_QL\nK1_QE:\ns_barrier')
    for i in range(cut, NQ): P(qmf(i))
    if OPT['stamps'] == 1: stamp(2)
    P(f's_mov_b32 s6, {CSCALE}')
    for hd in range(2):
        for t in range(2):
            a = ACC9[hd][t]
            for i in range(4): P(f'v_mul_f32 v{a + i}, s6, v{a + i}')
            P(f'v_cvt_pk_bf16_f32 v{a}, v{a}, v{a + 1}\nv_cvt_pk_bf16_f32 v{a + 1}, v{a + 2}, v{a + 3}')
            P(f'ds_write_b64 v{S9 + 2}, {vr(a, 2)} offset:{hd * 4352 + t * 32}')
    for dt in [0, 1, 2, 3]:
        a = ACC[0][dt]
        for i in range(16): P(f'v_mul_f32 v{a + i}, s6, v{a + i}')
        for hf in range(2):
            for i in range(4): P(f'v_cvt_pk_bf16_f32 v{a + 8 * hf + i}, v{a + 8 * hf + 2 * i}, v{a + 8 * hf + 2 * i + 1}')
            P(f'ds_write_b128 v{S9 + 1}, {vr(a + 8 * hf, 4)} offset:{(2 * dt + hf) * 1024}')
    P('s_waitcnt vmcnt(0)')
    if OPT['fused']:
        P(f"""
        s_cmp_eq_u32 s{sW}, 4
        s_cbranch_scc0 K1_E2
        s_waitcnt vmcnt(0)
        v_cmp_eq_u32 vcc, 0, v244
        v_mov_b32 v246, {Q9B + 8704}
        s_mov_b64 exec, 1
        v_cndmask_b32 v244, v244, v247, vcc
        ds_write_b32 v246, v244
        s_getreg_b32 s3, hwreg(HW_REG_XCC_ID, 0, 4)
        v_lshl_add_u32 v245, v244, 4, s3
        s_and_b32 s3, s2, 7
        s_lshl_b32 s3, s3, 3
        s_add_u32 s3, s3, s{sB}
        s_lshl_b32 s3, s3, 5
        s_and_b32 s7, s{sJ}, 3
        s_add_u32 s3, s3, s7
        s_lshl_b32 s3, s3, 2
        v_mov_b32 v246, s3
        buffer_store_dword v245, v246, s[52:55], 0 offen offset:32 sc1
        s_mov_b64 exec, -1
        K1_E2:
        """)
    P(loopinit); P(narrow)
    P('s_barrier')
    P(getE)
    for kk in range(4): P(f'ds_read_b128 {vr(Q9 + 4 * kk, 4)}, v{S9} offset:{kk * 64}')
    for i in range(16): P(f'v_mul_f32 v{ACC[1][0] + i}, s6, v{ACC[1][0] + i}')
    P('s_barrier')
    P(getE2)
    for dt in range(4):
        a = ACC[1][dt]
        if dt:
            for i in range(16): P(f'v_mul_f32 v{a + i}, s6, v{a + i}')
        for i in range(8): P(f'v_cvt_pk_bf16_f32 v{Q + dt * 8 + i}, v{a + 2 * i}, v{a + 2 * i + 1}')
    for r in list(range(O, O + 64)) + list(range(CN, CN + 12)) + list(range(O9, O9 + 32)): P(f'v_mov_b32 v{r}, 0')
    P('s_barrier\nK1_HEAD:' if OPT['nbar'] == 2 else 'K1_HEAD:')

    def dma_sites(vo, srd, so, mb):
        out = []
        for n in range(4):
            g = [f's_add_u32 m0, s{mb}, s{sMW}', 's_nop 0'] if n == 0 else []
            g.append(f'buffer_load_dwordx4 v{vo}, s[{srd}:{srd + 3}], s{so} offen offset:{n * 1024} {nk} lds')
            if n == 3: g += [f's_add_u32 s{so}, s{so}, 16384', f's_and_b32 s{so}, s{so}, 0x1ffff']
            out.append(g)
        return out
    dmaV = dma_sites(VOV, 16, sSV, sIS); dmaK = dma_sites(VOK, 12, sSK, sIK)
    pre = OPT['opre'] == 1
    book = f"""s_cmp_lt_u32 s{sCNT}, {8 if pre else 7}
    s_cselect_b32 s{sIS}, s{sKP}, 0x30000
    s_add_u32 s{sKP}, s{sKP}, 65536
    s_cmp_ge_u32 s{sKP}, 163840
    s_cselect_b32 s3, 163840, 0
    s_sub_u32 s{sKP}, s{sKP}, s3
    s_sub_u32 s{sDK}, 65536, s3
    s_cmp_lt_u32 s{sCNT}, 5
    s_cselect_b32 s{sIK}, s{sVP}, 0x30000
    s_add_u32 s{sVP}, s{sVP}, 65536
    s_cmp_ge_u32 s{sVP}, 163840
    s_cselect_b32 s3, 163840, 0
    s_sub_u32 s{sVP}, s{sVP}, s3
    s_sub_u32 s{sDV}, 65536, s3""".split('\n')
    if OPT['nbar'] == 1:
        book = f"""s_mov_b32 s{sIS}, s{sKP}
    s_nop 0
    s_add_u32 s{sKP}, s{sKP}, 65536
    s_cmp_ge_u32 s{sKP}, 163840
    s_cselect_b32 s3, 163840, 0
    s_sub_u32 s{sKP}, s{sKP}, s3
    s_sub_u32 s{sDK}, 65536, s3
    s_cmp_lt_u32 s{sCNT}, 6
    s_cselect_b32 s{sIK}, s33, 0x30000
    s_mov_b32 s33, s{sVP}
    s_add_u32 s{sVP}, s{sVP}, 65536
    s_cmp_ge_u32 s{sVP}, 163840
    s_cselect_b32 s3, 163840, 0
    s_sub_u32 s{sVP}, s{sVP}, s3
    s_sub_u32 s{sDV}, 65536, s3""".split('\n')
        book.remove('    s_nop 0'); book.insert(6, 's_nop 0')
    book2 = f"""s_cmp_eq_u32 s{sCNT}, 6
    s_cselect_b32 s{sIK}, s6, s{sIK}
    s_cselect_b32 s12, s56, s12
    s_cselect_b32 s13, s57, s13
    s_cselect_b32 s14, 20480, s14
    s_cselect_b32 s{sSK}, 0, s{sSK}
    s_cmp_eq_u32 s{sCNT}, 7
    s_cselect_b32 s16, s56, s16
    s_cselect_b32 s17, s57, s17
    s_cselect_b32 s18, 20480, s18
    s_cselect_b32 s{sSV}, 4096, s{sSV}""".split('\n') if pre else []
    if pre: book.insert(7, f's_mov_b32 s6, s{sVP}')
    vupd = [f'v_add_u32 v{VA + i}, s{sDV}, v{VA + i}' for i in range(4)] + [f'v_add_u32 v{AV9}, s{sDV}, v{AV9}']
    kupd = [f'v_add_u32 v{AK}, s{sDK}, v{AK}', f'v_add_u32 v{AK9}, s{sDK}, v{AK9}']
    def kmain(kk, mt):
        tmp = [T0, T1][kk & 1]
        pre = [f'v_xor_b32 v{tmp}, {kk << 5}, v{AK}'] if (mt == 0 and kk) else []
        ad = tmp if kk else AK
        return dict(rd=lambda F: pre + [f'ds_read_b128 {vr(F, 4)}, v{ad} offset:{mt * 2048}'],
                    mf=lambda F: [mf32(S + 16 * mt, F, Q + 4 * kk, CN if kk == 0 else None)], w=32)
    def k9(kk):
        pre = [f'v_xor_b32 v{X0}, {kk << 6}, v{AK9}'] if kk else []
        ad = X0 if kk else AK9
        return dict(rd=lambda F: pre + [f'ds_read_b128 {vr(F, 4)}, v{ad}'],
                    mf=lambda F: [mf16(S9, F, Q9 + 4 * kk, CN9 if kk == 0 else None)], w=16)
    def vmain(ks, dt):
        mt, u = ks >> 1, ks & 1
        return dict(rd=lambda F: [f'ds_read_b64_tr_b16 {vr(F + 2 * j, 2)}, v{VA + dt} offset:{u * 8192 + j * 4096 + mt * 2048}' for j in range(2)],
                    mf=lambda F: [mf32(O + 16 * dt, F, PP + 4 * ks)], w=32)
    def v9(pp):
        pre = [f'v_xor_b32 v{X1}, {pp << 6}, v{AV9}'] if pp else []
        ad = X1 if pp else AV9
        return dict(rd=lambda F: pre + [f'ds_read_b64_tr_b16 {vr(F + 2 * j, 2)}, v{ad} offset:{32 * j}' for j in range(2)],
                    mf=lambda F: [mf16h(O9 + 4 * (2 * pp + j), F + 2 * j, P9) for j in range(2)], w=32)
    itA = []
    for kk in range(8):
        itA += [kmain(kk, 0), kmain(kk, 1)]
        if 1 <= kk <= 4: itA.append(k9(kk - 1))
    itC = []
    for dt in range(4): itC += [vmain(0, dt), v9(dt)]
    for ks in range(1, 4): itC += [vmain(ks, dt) for dt in range(4)]
    lastP = {0: 6, 1: 11, 2: 15, 3: 19, 9: 7}
    nb = len(FB); items = itA + itC; N = len(items); nA = len(itA)
    assert N % nb == 0 and nA % nb == 0
    RD = lambda i: items[i % N]['rd'](FB[i % nb])
    DL = OPT['bdelay']
    def MF(i, pair=True):
        m = items[i]['mf'](FB[i % nb])
        if pair and OPT['pairw'] and i % 2 == 0 and (i + 1) % nA != 0: m[0] += f' ; need {vr(FB[(i + 1) % nb], 4)}'
        return m
    def sync(wait='vmcnt(12)'): return [f's_waitcnt {wait}', 's_barrier']
    def gsync(lbl, group0, wait):
        return [f's_cmp_lt_u32 s{sW}, 4', f's_cbranch_scc{0 if group0 else 1} {lbl}', f's_waitcnt {wait}', 's_barrier', f'{lbl}:']
    DS = OPT['dstep']
    mx = [f'v_max3_f32 v{T1}, v{S9}, v{S9 + 1}, v{S9 + 2}', f'v_max_f32 v{T1}, v{T1}, v{S9 + 3}', f'v_max3_f32 v{T0}, v{S}, v{S + 1}, v{S + 2}']
    mx += [f'v_max3_f32 v{T0}, v{T0}, v{S + 3 + 2 * i}, v{S + 4 + 2 * i}' for i in range(6)]
    mx += [f'v_max3_f32 v{X0}, v{S + 16}, v{S + 17}, v{S + 18}']
    mx += [f'v_max3_f32 v{X0}, v{X0}, v{S + 19 + 2 * i}, v{S + 20 + 2 * i}' for i in range(6)]
    mx += [f'v_max3_f32 v{X0}, v{X0}, v{S + 15}, v{S + 31}', f'v_max_f32 v{T0}, v{T0}, v{X0}', f'v_max_f32 v{X0}, v{T0}, v{T1}', f'v_cmp_lt_f32 vcc, s{sT}, v{X0}']
    fill = []
    for ks in range(4):
        b = S + 8 * ks
        for i in range(0, 8, 2):
            fill += [(0, f'v_exp_f32 v{b + i}, v{b + i}'), (0, f'v_exp_f32 v{b + i + 1}, v{b + i + 1}')]
            if i: fill += [(0, f'v_add_f32 v{L}, v{L}, v{b + i - 2}'), (0, f'v_add_f32 v{L}, v{L}, v{b + i - 1}')]
        if ks == 0: fill += [(0, f'v_exp_f32 v{S9 + i}, v{S9 + i}') for i in range(4)]
        fill += [(0, f'v_add_f32 v{L}, v{L}, v{b + 6}'), (0, f'v_add_f32 v{L}, v{L}, v{b + 7}')]
        if ks == 0: fill += [(0, f'v_add_f32 v{L9}, v{L9}, v{S9 + i}') for i in range(4)]
        fill += [(lastP[ks], f'v_cvt_pk_bf16_f32 v{PP + 4 * ks + i}, v{b + 2 * i}, v{b + 2 * i + 1}') for i in range(4)]
        if ks == 0: fill += [(lastP[9], f'v_cvt_pk_bf16_f32 v{P9 + i}, v{S9 + 2 * i}, v{S9 + 2 * i + 1}') for i in range(2)]
    wosrd = f"""
    s_and_b32 s6, s2, 3
    s_mul_i32 s6, s6, {1024 * 1152}
    s_add_u32 s8, s100, s6
    s_addc_u32 s9, s101, 0
    s_sub_u32 s8, s8, 3072
    s_subb_u32 s9, s9, 0
    s_sub_u32 s10, {4096 * 1152 + 3072}, s6
    s_mov_b32 s11, 0x20000
    """
    def wotouch(drop):
        d1, d2, sfx = ('', '', 'lds') if drop else (f'v{Q + 1}, ', f'v{Q + 2}, ', '')
        va = X0 if drop else Q
        return f"""
    s_lshr_b32 s6, s2, 3
    s_lshl_b32 s6, s6, 3
    s_add_u32 s6, s6, s{sW}
    s_mul_i32 s6, s6, {36 * 128}
    s_add_u32 s6, s6, 3072
    {f's_add_u32 m0, s{sIS}, s{sMW}' if drop else ''}
    v_lshlrev_b32 v{va}, 6, v{TID}
    buffer_load_dword {d1}v{va}, s[8:11], s6 offen {OPT['nt_wo']} {sfx}
    s_add_u32 s6, s6, 4096
    s_mov_b64 exec, 0xff
    buffer_load_dword {d2}v{va}, s[8:11], s6 offen {OPT['nt_wo']} {sfx}
    s_mov_b64 exec, -1
    """
    if OPT['wot'] >= 2: P(wosrd)
    if OPT['opre'] == 1: P(obase)
    if OPT['opre'] >= 2:
        P(f"""
        s_lshl_b32 s6, s{sBR}, 3
        s_add_u32 s6, s6, s{sB}
        s_mul_i32 s6, s6, 1179648
        s_add_u32 s56, s66, s6
        s_addc_u32 s57, s67, 0
        s_mov_b32 s58, 1179648
        s_mov_b32 s59, 0x20000
        """)
    opre2 = f"""
    s_cmp_lg_u32 s{sCNT}, {OPT['opre']}
    s_cbranch_scc1 K1_OP
    s_sub_u32 s6, s{sKP}, s{sDK}
    s_add_u32 m0, s6, s{sMW}
    s_lshl_b32 s6, s{sJ}, 1
    s_add_u32 s6, s6, s{sP}
    s_lshl_b32 s7, s6, 13
    s_lshl_b32 s3, s{sWP}, 18
    s_add_u32 s7, s7, s3
    v_lshlrev_b32 v{X0}, 7, v{TID}
    buffer_load_dword v{X0}, s[56:59], s7 offen lds
    s_lshl_b32 s6, s6, 12
    s_lshl_b32 s7, s{sWP}, 10
    s_add_u32 s6, s6, s7
    s_add_u32 s6, s6, {1 << 20}
    s_mov_b64 exec, 0xff
    buffer_load_dword v{X0}, s[56:59], s6 offen lds
    s_mov_b64 exec, -1
    K1_OP:
    """
    if OPT['wot'] == 2: P(wotouch(True))
    for i in range(nb): P.extend(RD(i))
    if OPT['stamps'] == 1: stamp(7)
    for i in range(nA):
        P.extend(MF(i))
        if i + nb < nA: P.extend(RD(i + nb))
        if i + nb - nA == DL: P.extend(sync('vmcnt(63)') if OPT['nbar'] == 2 else gsync('K1_Y0', False, 'vmcnt(63)'))
        if i in (1, 3, 5, 7): P.extend(dmaV[(i - 1) // 2])
    if OPT['nbar'] == 1: P(f's_mov_b32 s{sIS}, 0x30000\ns_sub_u32 s{sSV}, s{sSV}, 16384\ns_and_b32 s{sSV}, s{sSV}, 0x1ffff')
    if OPT['pa'] != OPT['pc']: P(f's_setprio {OPT["pc"]}')
    P.extend(kupd + mx[:-1]); P('s_branch K1_RARE1\nK1_CPB:')
    P(f's_mov_b32 s{sRARE}, 0')
    ktail = [q for q in range(4) if DL + q * DS < nb]
    for i, (_, t) in enumerate(fill):
        P(t)
        if i == len(fill) - 12:
            P.extend(sync(f'vmcnt({X1N})') if OPT['nbar'] == 2 else gsync('K1_X1', True, f'vmcnt({X1N})'))
            for jj in range(nb): P.extend(RD(jj))
            for q in ktail if OPT['nbar'] == 2 else []: P.extend(dmaK[q])
    P('K1_TOP:')
    if OPT['stamps'] == 1 and not OPT['fused']: stamp(11, 2); stamp(8, 5)
    if OPT['pa'] != OPT['pc']: P(f's_setprio {OPT["pa"]}')
    if OPT['stamps'] == 2: stamp(7, 3); stamp(11, 4)
    def sites(pos, dm):
        return [x for q in range(4) if q * DS == pos for x in dm[q]]
    for i in range(nA):
        P.extend(MF(i))
        j = i + nb - nA
        if j < 0: P.extend(RD(i + nb))
        elif j == DL:
            if OPT['stamps'] == 2: stamp(9, 3)
            P.extend(sync() if OPT['nbar'] == 2 else gsync('K1_Y', False, 'vmcnt(4)'))
            if OPT['stamps'] == 2: stamp(1, 3)
            for jj in range(DL + 1): P.extend(RD(nA + jj))
        elif j > DL: P.extend(RD(i + nb))
        P.extend(sites(i + nb - DL, dmaK) if OPT['nbar'] == 2 else sites(i, dmaV))
        if j == DL and OPT['wot'] >= 3: P(f's_cmp_lg_u32 s{sCNT}, {OPT["wot"]}\ns_cbranch_scc1 K1_WT' + wotouch(True) + 'K1_WT:')
        if j == DL and OPT['opre'] >= 2: P(opre2)
        if j >= DL and OPT['nbar'] == 2: P.extend(sites(j - DL, dmaV))
        if i == 2: P.extend(vupd)
        if OPT['anop'] and i % 2 == 1: P(f's_nop {OPT["anop"]}')
        if i == 9: P.extend(book[:7])
        if i == 11: P.extend(book[7:])
        if i == 13: P.extend(book2)
    if OPT['stamps'] == 2: stamp(8, 3)
    if OPT['pa'] != OPT['pc']: P(f's_setprio {OPT["pc"]}')
    cost = lambda t: 2 if 'exp' in t else (0 if 'BR' in t else 1)
    full = [(0, t) for t in kupd + mx] + [(0, 'BR')] + fill
    tot = sum(cost(t) for _, t in full)
    pend = list(full); acc = 0; cw = 0; wsum = sum(it['w'] for it in itC)
    for c in range(len(itC)):
        i = nA + c
        P.extend(MF(i)); cw += itC[c]['w']
        j = i + nb - N
        if j < 0: P.extend(RD(i + nb))
        elif j == DL:
            if OPT['stamps'] == 2: stamp(4, 3)
            P.extend(sync() if OPT['nbar'] == 2 else gsync('K1_X', True, 'vmcnt(4)'))
            if OPT['stamps'] == 2: stamp(12, 3)
            for jj in range(DL + 1): P.extend(RD(jj))
        elif j > DL: P.extend(RD(i + nb))
        P.extend(sites(c + nb - DL, dmaV) if OPT['nbar'] == 2 else sites(c, dmaK))
        if j >= DL and OPT['nbar'] == 2: P.extend(sites(j - DL, dmaK))
        goal = tot * min(1.0, cw / (wsum - 32))
        q = 0
        while q < len(pend) and acc + cost(pend[q][1]) <= goal + 1:
            if pend[q][0] > c: q += 1; continue
            acc += cost(pend[q][1]); t = pend.pop(q)[1]
            P('s_cbranch_vccnz K1_RARE1\nK1_R1B:' if t == 'BR' else t)
    for _, t in pend: P(t)
    if OPT['stamps'] == 2: stamp(10, 3)
    P(f"""
    s_add_u32 s{sCNT}, s{sCNT}, 1
    s_add_u32 s3, s{sCNT}, s{sRARE}
    s_cmp_lt_u32 s3, 8
    s_cbranch_scc1 K1_TOP
    s_cmp_lg_u32 s{sRARE}, 0
    s_cbranch_scc1 K1_RARE2
    K1_NEXT:
    s_cmp_lt_u32 s{sCNT}, 8
    s_cbranch_scc1 K1_TOP
    s_branch K1_PVO
    """)
    P(f"""
    K1_RARE1:
    v_mov_b32 v{X0}, v{T0}
    v_mov_b32 v{X1}, v{T1}
    v_permlane32_swap_b32 v{T0}, v{X0}
    v_permlane32_swap_b32 v{T1}, v{X1}
    v_max3_f32 v{T0}, v{T0}, v{X0}, s{sCL}
    v_max_f32 v{T1}, v{T1}, v{X1}
    v_mov_b32 v{X1}, v{T1}
    v_max_f32 v{AL}, 0, v{T0}
    v_permlane16_swap_b32 v{T1}, v{X1}
    v_max3_f32 v{T1}, v{T1}, v{X1}, s{sCL}
    v_max_f32 v{AL9}, 0, v{T1}
    v_exp_f32 v{AL}, -v{AL}
    v_exp_f32 v{AL9}, -v{AL9}
    """)
    for i in range(32): P(f'v_sub_f32 v{S + i}, v{S + i}, v{T0}')
    for i in range(16): P(f'v_sub_f32 v{CN + i}, v{CN + i}, v{T0}')
    for i in range(4): P(f'v_sub_f32 v{S9 + i}, v{S9 + i}, v{T1}')
    for i in range(4): P(f'v_sub_f32 v{CN9 + i}, v{CN9 + i}, v{T1}')
    P(f"""
    v_mul_f32 v{L}, v{L}, v{AL}
    v_mul_f32 v{L9}, v{L9}, v{AL9}
    s_mov_b32 s{sT}, {f2u(8.0)}
    s_cmp_lg_u32 s{sCL}, 0
    s_mov_b32 s{sCL}, 0
    s_mov_b32 s{sRARE}, 8
    s_cbranch_scc1 K1_CPB
    s_branch K1_R1B
    K1_RARE2:
    """)
    for i in range(64): P(f'v_mul_f32 v{O + i}, v{O + i}, v{AL}')
    for i in range(32): P(f'v_mul_f32 v{O9 + i}, v{O9 + i}, v{AL9}')
    P(f"""
    s_mov_b32 s{sRARE}, 0
    s_branch K1_NEXT
    K1_PVO:
    """)
    if OPT['stamps'] == 1: stamp(3)
    P.extend(vupd)
    osrd = f'''
    s_lshl_b32 s6, s{sBR}, 3
    s_add_u32 s6, s6, s{sB}
    s_mul_i32 s6, s6, 1179648
    s_add_u32 s20, s66, s6
    s_addc_u32 s21, s67, 0
    s_mov_b32 s22, 1179648
    s_mov_b32 s23, 0x20000
    s_lshl_b32 s6, s{sJ}, 1
    s_add_u32 s6, s6, s{sP}
    s_lshl_b32 s7, s6, 13
    s_lshl_b32 s{sSK}, s{sWP}, 18
    s_add_u32 s{sSK}, s{sSK}, s7
    s_add_u32 s{sSV}, s{sSK}, 4096
    s_lshl_b32 s{sIS}, s6, 12
    s_lshl_b32 s7, s{sWP}, 10
    s_add_u32 s{sIS}, s{sIS}, s7
    s_add_u32 s{sIS}, s{sIS}, {1 << 20}
'''
    if OPT['opv']:
        P(osrd + f'''
        v_lshlrev_b32 v{Q}, 7, v{TID}
        buffer_load_dword v{Q + 1}, v{Q}, s[20:23], s{sSK} offen
        s_mov_b64 exec, 0xff
        buffer_load_dword v{Q + 2}, v{Q}, s[20:23], s{sIS} offen
        s_mov_b64 exec, -1
        ''')
    P(f's_and_b32 s{sKP}, s2, 3')
    if OPT['wot'] == 1: P(wosrd + wotouch(False))
    elif OPT['wot'] == 0: P(wosrd)
    P.extend(sync(f'vmcnt({2 * (OPT["wot"] == 1) + 2 * OPT["opv"]})') if OPT['nbar'] == 2 else gsync('K1_Y8', False, f'vmcnt({2 * (OPT["wot"] == 1) + 2 * OPT["opv"]})'))
    if OPT['fused'] and OPT['loc']:
        P(f"""
        s_cmp_eq_u32 s{sWP}, 0
        s_cbranch_scc0 K1_XL
        s_and_b32 s3, s2, 7
        s_lshl_b32 s3, s3, 3
        s_add_u32 s3, s3, s{sB}
        s_lshl_b32 s3, s3, 7
        v_lshlrev_b32 v{Q + 3}, 2, v{TID}
        s_mov_b64 exec, 15
        s_add_u32 s7, s3, 16384
        buffer_load_dword v{Q + 2}, v{Q + 3}, s[52:55], s7 offen nt
        buffer_load_dword v{Q + 3}, v{Q + 3}, s[52:55], s3 offen offset:32 sc1
        s_mov_b64 exec, -1
        K1_XL:
        """)
    for i in range(nb): P.extend(RD(nA + i))
    groups = [MF(nA + c) + (RD(nA + c + nb) if c + nb < len(itC) else []) for c in range(len(itC))]
    epi = ([] if OPT['opv'] else osrd.strip().split('\n')) + f'''
    v_mov_b32 v{T0}, v{L}
    v_mov_b32 v{T1}, v{L9}
    v_lshlrev_b32 v{VOK}, 4, v{TID}
    v_permlane32_swap_b32 v{L}, v{T0}
    v_permlane32_swap_b32 v{L9}, v{T1}
    v_add_f32 v{L}, v{L}, v{T0}
    v_add_f32 v{L9}, v{L9}, v{T1}
    v_mov_b32 v{T1}, v{L9}
    v_rcp_f32 v{AL}, v{L}
    v_permlane16_swap_b32 v{L9}, v{T1}
    v_add_f32 v{CN9 + 1}, v{L9}, v{T1}
    '''.strip().split('\n')
    epi += f"""s_cmp_lt_u32 s{sW}, 4
    s_cselect_b32 s45, 118784, 65536
    s_cselect_b32 s46, 135168, 155648
    s_lshl_b32 s7, s{sWP}, 11
    s_add_u32 s6, s45, s7
    v_add_u32 v116, s6, v{VOK}
    s_add_u32 s6, s46, s7
    v_add_u32 v117, s6, v{VOK}
    v_and_b32 v119, 15, v{TID}
    v_lshlrev_b32 v119, 3, v119
    s_lshl_b32 s7, s{sW}, 7
    s_add_u32 s7, s7, 20480
    v_add_u32 v118, s7, v119""".split('\n')
    wr9 = [f'ds_write_b64 v118, {vr(CN9, 2)}'] + [f'ds_write_b128 v{116 if sl < 3 else 117}, {vr(O9 + 8 * sl + 4 * t, 4)} offset:{(sl - 1) * 8192 * (sl < 3) + t * 1024}' for sl in range(1, 4) for t in range(2)]
    n1 = len(epi)
    epi += phase2(P, stamp, locals(), 0)
    epi += f"""s_mul_i32 s6, s{sP}, 36864
    s_lshl_b32 s7, s{sWP}, 12
    s_add_u32 s6, s6, s7
    s_add_u32 s6, s6, 81920
    v_add_u32 v{AL9}, s6, v{VOK}
    s_lshl_b32 s6, s{sW}, 7
    s_add_u32 s6, s6, 20480
    v_add_u32 v{S + 28}, s6, v119
    v_xor_b32 v{S + 29}, 0x80, v{S + 28}
    v_xor_b32 v{S + 30}, 0x100, v{S + 28}
    v_xor_b32 v{S + 31}, 0x180, v{S + 28}
    s_xor_b32 s7, s{sWP}, 1
    s_lshl_b32 s7, s7, 11
    s_add_u32 s7, s7, s45
    v_add_u32 v{S + 25}, s7, v{VOK}
    s_xor_b32 s7, s{sWP}, 2
    s_lshl_b32 s7, s7, 11
    s_add_u32 s7, s7, s45
    s_add_u32 s7, s7, 8192
    v_add_u32 v{S + 26}, s7, v{VOK}
    s_xor_b32 s7, s{sWP}, 3
    s_lshl_b32 s7, s7, 11
    s_add_u32 s7, s7, s46
    v_add_u32 v{S + 27}, s7, v{VOK}
    v_lshrrev_b32 v131, 5, v{TID}
    v_bfe_u32 v132, v{TID}, 4, 1
    v_lshlrev_b32 v137, 1, v119
    v_lshl_add_u32 v137, v131, 8, v137
    v_lshl_add_u32 v137, v132, 3, v137
    s_lshr_b32 s6, s{sW}, 1
    s_mul_i32 s6, s6, 18432
    s_and_b32 s7, s{sW}, 1
    s_lshl_b32 s7, s7, 10
    s_add_u32 s6, s6, s7
    s_add_u32 s6, s6, {81920 + 16384}
    v_add_u32 v138, s6, v137""".split('\n')
    epi = [e.strip() for e in epi]
    per = -(-len(epi) // len(groups))
    i = 0
    for gi, g in enumerate(groups):
        P.extend(g)
        j = min(len(epi), i + per)
        while j < len(epi) and (epi[j].split()[0] in ('s_addc_u32', 's_cselect_b64', 's_cselect_b32', 'v_cndmask_b32')): j += 1
        P.extend(epi[i:j]); i = j
        if gi >= 10 and wr9:
            assert i >= n1
            P(wr9.pop(0))
    P.extend(epi[i:]); P.extend(wr9)
    ST = CN; PT = [None, Q9, Q9 + 8, PP]; R9 = PP + 8
    P('s_barrier')
    for w in range(4): P(f'ds_read_b64 {vr(ST + 2 * w, 2)}, v{S + 28 + w}')
    for w in range(1, 4):
        for t in range(2): P(f'ds_read_b128 {vr(PT[w] + 4 * t, 4)}, v{S + 24 + w} offset:{t * 1024}')
    P(f's_cmp_lt_u32 s{sW}, 4\ns_cbranch_scc0 K1_Z')
    phase2(P, stamp, locals(), 3)
    P('s_barrier\nK1_Z:')
    if OPT['stamps'] == 1: stamp(4)
    os_ = '' if OPT['loc'] else 'sc1'
    mg = [f'v_min3_f32 v{ST + 8}, v{ST}, v{ST + 2}, v{ST + 4}', f'v_min_f32 v{ST + 8}, v{ST + 8}, v{ST + 6}']
    mg += [f'v_sub_f32 v{ST + 2 * w}, v{ST + 8}, v{ST + 2 * w}' for w in range(4)]
    mg += [f'v_exp_f32 v{ST + 2 * w}, v{ST + 2 * w}' for w in range(4)]
    mg += [f'v_mul_f32 v{ST + 9}, v{ST}, v{ST + 1}'] + [f'v_fmac_f32 v{ST + 9}, v{ST + 2 * w}, v{ST + 2 * w + 1}' for w in range(1, 4)]
    mg += [f'v_rcp_f32 v{ST + 9}, v{ST + 9}']
    mg += [f'v_mul_f32 v{R9 + i}, v{O9 + i}, v{ST}' for i in range(8)]
    for w in range(1, 4): mg += [f'v_fmac_f32 v{R9 + i}, v{PT[w] + i}, v{ST + 2 * w}' for i in range(8)]
    mg += [f'v_mul_f32 v{R9 + i}, v{R9 + i}, v{ST + 9}' for i in range(8)]
    for t in range(2):
        mg += [f'v_cvt_pk_bf16_f32 v{ST + 10 + 2 * t}, v{R9 + 4 * t}, v{R9 + 4 * t + 1}', f'v_cvt_pk_bf16_f32 v{ST + 11 + 2 * t}, v{R9 + 4 * t + 2}, v{R9 + 4 * t + 3}',
               f'ds_write_b64 v138, {vr(ST + 10 + 2 * t, 2)} offset:{t * 512}', f'buffer_store_dwordx2 {vr(ST + 10 + 2 * t, 2)}, v137, s[20:23], s{sIS} offen offset:{t * 512} {os_}']
    for dt in range(4):
        for i in range(16): P(f'v_mul_f32 v{O + 16 * dt + i}, v{O + 16 * dt + i}, v{AL}')
        for hf in range(2):
            d = S + 8 * dt + 4 * hf
            for i in range(4): P(f'v_cvt_pk_bf16_f32 v{d + i}, v{O + 16 * dt + 8 * hf + 2 * i}, v{O + 16 * dt + 8 * hf + 2 * i + 1}')
            ks = 2 * dt + hf
            P(f'ds_write_b128 v{AL9}, {vr(d, 4)} offset:{(ks >> 2) * 18432 + (ks & 3) * 1024}')
            if not OPT['lates']: P(f'buffer_store_dwordx4 {vr(d, 4)}, v{VOK}, s[20:23], s{sSK if ks < 4 else sSV} offen offset:{(ks & 3) * 1024} {os_}')
        if dt == 0: P.extend(mg)
    if OPT['lates']:
        for ks in range(8): P(f'buffer_store_dwordx4 {vr(S + 4 * ks, 4)}, v{VOK}, s[20:23], s{sSK if ks < 4 else sSV} offen offset:{(ks & 3) * 1024} {os_}')
    if OPT['fused']: phase2(P, stamp, locals(), 2)
    if OPT['stamps']:
        P('K1_STAMPS:' if OPT['fused'] else 's_waitcnt vmcnt(0)')
        if not OPT['fused']: stamp(4)
        P(f'''
        s_waitcnt lgkmcnt(0)
        s_add_u32 s20, s66, {WS_STAMP}
        s_addc_u32 s21, s67, 0
        s_mov_b32 s22, 0x100000
        s_mov_b32 s23, 0x20000
        s_lshl_b32 s6, s2, 3
        s_add_u32 s6, s6, s{sW}
        s_lshl_b32 s6, s6, 7
        v_mov_b32 v2, s6
        s_mov_b64 exec, 1
        ''')
        if OPT['probe'] >= 0:
            k = OPT['probe']
            lo, base = (98, 96) if k == 99 else (70 + 2 * k, 70)
            P(f"""
            s_cmp_lg_u32 s2, {OPT['pwg']}
            s_cbranch_scc1 K1_END
            s_cmp_lg_u32 s{sW}, {OPT['pw']}
            s_cbranch_scc1 K1_END
            s_sub_u32 s6, s{lo}, s{base}
            s_mul_i32 s6, s6, {1 if k == 99 else 10}
            s_memrealtime s[72:73]
            s_waitcnt lgkmcnt(0)
            s_add_u32 s6, s6, s72
            {'s_add_u32 s6, s70, 30000' if k == 0 else ''}
            K1_SPIN:
            s_memrealtime s[72:73]
            s_waitcnt lgkmcnt(0)
            s_sub_u32 s7, s72, s6
            s_cmp_lt_i32 s7, 0
            s_cbranch_scc1 K1_SPIN
            s_branch K1_END
            """)
        if OPT['dbgst']:
            P('s_mov_b32 s20, s64\ns_mov_b32 s21, s65\ns_mov_b32 s22, 256\nv_mov_b32 v2, 0\ns_not_b32 s70, s70')
            for i, k in enumerate([0, 1, 2, 7, 3, 4, 5, 6, 9, 10, 11, 8]):
                P(f'v_mov_b32 v4, s{70 + 2 * k}\nbuffer_atomic_umax v4, v2, s[20:23], 0 offen offset:{4 + 4 * i}\ns_nop 1')
        for k in range(0 if OPT['dbgst'] else 15):
            P(f'v_mov_b32 v4, s{70 + 2 * k}\nv_mov_b32 v5, s{71 + 2 * k}\nbuffer_store_dwordx2 v[4:5], v2, s[20:23], 0 offen offset:{8 * k}\ns_nop 1')
    P('K1_END:\ns_endpgm')
    a0 = [i for i, x in enumerate(P.ins) if x.text == 'K1_G1:'][0]; a1 = [i for i, x in enumerate(P.ins) if x.text == 'K1_PVO:'][0]
    keep = []; dcount = [0]
    kt = [i for i, x in enumerate(P.ins) if x.text == 'K1_TOP:'][0]
    kp0 = [i for i, x in enumerate(P.ins) if x.text == 'K1_G1:'][0]; kp1 = [i for i, x in enumerate(P.ins) if x.text == 'K1_QL:'][0]
    for i, x in enumerate(P.ins):
        if a0 < i < a1:
            if OPT['nodma'] and x.dma and not (kp0 < i < kp1): continue
            if OPT['nobar'] and x.kind == 'barrier': continue
            if OPT['noexp'] and x.kind in ('valu', 'trans') and ('exp' in x.text or 'v_add_f32' in x.text or 'cvt_pk' in x.text or 'max3' in x.text): continue
            if OPT['nolds'] and x.kind == 'ds_r': continue
            if OPT['diag'] & 1 and i > kt and 'v_add_f32' in x.text: continue
            if OPT['diag'] & 2 and i > kt and 'v_max3' in x.text and 's46' not in x.text: continue
            if OPT['diag'] & 4 and i > kt and x.kind == 'ds_r':
                dcount[0] += 1
                if (dcount[0] // 4) % 2: continue
            if OPT['diag'] & 8 and i > kt and '16x16x16' in x.text: continue
            if OPT['diag'] & 16 and i > kt and 'v_exp' in x.text and '-v' not in x.text:
                x = parse(x.text.replace('v_exp_f32', 'v_mov_b32'))
            if OPT['nomf'] and i > kt and (x.kind in ('mfma', 'ds_r', 'trans') or (x.kind == 'valu' and 'v_cmp' not in x.text)): continue
        keep.append(x)
    P.ins = keep
    return P.finish()

def desc(name, vg, sg=102):
    return f'''.amdhsa_kernel {name}
  .amdhsa_next_free_vgpr {vg}
  .amdhsa_next_free_sgpr {sg}
  .amdhsa_accum_offset {(vg + 3) // 4 * 4}
  .amdhsa_group_segment_fixed_size 0
  .amdhsa_kernarg_size 104
  .amdhsa_user_sgpr_count 2
  .amdhsa_user_sgpr_kernarg_segment_ptr 1
  .amdhsa_system_sgpr_workgroup_id_x 1
  .amdhsa_float_denorm_mode_32 3
.end_amdhsa_kernel
'''

def main():
    ref = open('cdna_kernels/%s.s.ref' % NAME).read().split('\n')
    hdr = [l for l in ref if l.startswith(';') and '@launch' not in l and 'Override launch' not in l and 'grid=ceil' not in l]
    hdr = hdr[:14]
    ks = [('attn_kernel', k1(), 256, '(256,1,1)', '(%d,1,1)' % OPT['blk'], 163840),
          ]
    out = '\n'.join(hdr) + '\n'
    if OPT['fused']:
        ks = [(NAME + '_kernel',) + ks[0][1:]]
        out += f'; @launch grid={ks[0][3]} block={ks[0][4]} lds={ks[0][5]}\n'
    else:
        for n, _, _, g, b, l in ks: out += f'; @launch kernel={n} grid={g} block={b} lds={l}\n'
    out += '.amdgcn_target "amdgcn-amd-amdhsa--gfx950"\n.text\n'
    for n, body, _, _, _, _ in ks:
        out += f'.globl {n}\n.p2align 8\n.type {n},@function\n{n}:\n' + 'K1_START:\n' + body.replace('@CODELEN@', 'K1_END-K1_START').replace('@PCOFF@', 'K1_PC-K1_START').replace('@PC2OFF@', 'K1_QE-K1_PC2').replace('@LEN2@', 'K1_END-K1_QE')
    out += '.section .rodata,"a"\n'
    for n, _, vg, _, _, _ in ks: out += '.p2align 6\n' + desc(n, vg)
    open(sys.argv[1], 'w').write(out)
main()
```

```python
import sys, struct, math
from asmlib import *

NAME = 'concat_heads__mha_block_cached__gqa_block_cached__near_ridge'
def f2u(x): return struct.unpack('<I', struct.pack('<f', x))[0]
CSCALE = f2u(math.log2(math.e) / math.sqrt(128.0))

OPT = dict(nt_kv='nt', nt_w='', nt_x='', ostore='', stamps=0, touch=0, k2nb=3, nt_wo='', nt_o='', nodma=0, nobar=0, noexp=0, nolds=0, prio=0, bdelay=0, blk=512, pa=0, pc=1, pairw=1, qdelay=3, wtouch=0, kvs='000000000000044460a4', nsb=5, dstep=2, trows=15, tlead=0, ptouch=0, tl=0, nopoll=0, ot=-9, opre=0, dyn=0, fb=2, kpre=0, bh=0, bt=0, btf='', ti=0, d3=0, opv=0, cts=-9, tb='', bs='', bn=16, diag=0, nbar=1, rot=1, rotx=0, rotp=4, lates=0, qnop=0, anop=0, ctouch=0, sp='01111111122111', ts=-1, npre=3, dist=3, sq=9, fused=1, p2nb=3, wot=1, ld2='', spin=200000, dbgst=0, loc=1, bgwb=0, nomf=0, nokv=0, nost=0, probe=-1, pwg=8, pw=4)
for a in sys.argv[2:]:
    k, v = a.split('=')
    OPT[k] = int(v) if (v.lstrip('-').isdigit() and k not in ('kvs', 'sp', 'bs')) else v

WS_O_BR = 36 * 256 * 1024
WS_PART = 0x1400000
WS_FLAG = 0x3000000
WS_STAMP = 0x4000000

def lanes(P, dst, expr_list):
    for e in expr_list: P(e)

def mf32(d, a, b, c=None):
    return f'v_mfma_f32_32x32x16_bf16 {vr(d, 16)}, {vr(a, 4)}, {vr(b, 4)}, {vr(d if c is None else c, 16)}'
def mf16(d, a, b, c=None):
    return f'v_mfma_f32_16x16x32_bf16 {vr(d, 4)}, {vr(a, 4)}, {vr(b, 4)}, {vr(d if c is None else c, 4)}'
def mf16h(d, a, b):
    return f'v_mfma_f32_16x16x16_bf16 {vr(d, 4)}, {vr(a, 2)}, {vr(b, 2)}, {vr(d, 4)}'


def phase2(P, stamp, env, part):
    sW, sWP, sBR, sE, sKS, TID, sB, sJ = env['sW'], env['sWP'], env['sBR'], env['sE'], env['sKP'], env['TID'], env['sB'], env['sJ']
    NB = 4; WST, OST, OOF = 20480, 18432, 81920
    sJJ, sTID, sCNT, sIB, sDL, sTMP, sSPIN = 56, 58, 30, 36, 37, 48, 44
    sSW, sSO, sMW, sMO, sPW, sPO, sIBW, sNB, sM9, sD2, sS9 = 59, 60, 61, 62, 63, 35, 31, 33, 43, 47, 57
    if OPT['stamps'] != 1: stamp = lambda *a: None
    if OPT['ti']:
        st0 = stamp; stamp = lambda k, *a: st0(k, *a) if k == 8 else None
    sNEED = 38
    VW = [120, 121, 122, 123, 124]; VO, VF, VP = 141, 142, 143
    A0, A1, A90, A91, AB, AB9 = 125, 126, 127, 128, 129, 130
    done = 'K1_STAMPS' if OPT['stamps'] else 'K1_END'
    def poll(lbl, off):
        return f"""
    s_mov_b32 s{sSPIN}, {OPT['spin']}
    {lbl}:
    s_mov_b64 exec, 15
    buffer_load_dword v{VP}, v{VF}, s[52:55], s{off} offen sc1
    s_mov_b64 exec, -1
    s_sub_u32 s{sSPIN}, s{sSPIN}, 1
    s_cbranch_scc1 {lbl}X
    s_waitcnt vmcnt(0)
    v_cmp_eq_u32 vcc, s{sE}, v{VP}
    s_and_b64 s[6:7], vcc, s[{sNEED}:{sNEED + 1}]
    s_cmp_eq_u64 s[6:7], s[{sNEED}:{sNEED + 1}]
    s_cbranch_scc0 {lbl}
    {lbl}X:
    """
    def wb(lbl, first):
        if not OPT['loc']: return ''
        o = ''
        if first: o = f"""
    s_getreg_b32 s3, hwreg(HW_REG_XCC_ID, 0, 4)
    s_lshl_b32 s7, s{sE}, 4
    s_add_u32 s3, s3, s7
    s_waitcnt vmcnt(10)
    v_cmp_eq_u32 vcc, s3, v{env['Q'] + 3}
    s_and_b32 s{sNB}, vcc_lo, 15
    """
        return o + f"""
    s_cmp_eq_u32 s{sNB}, {15 if OPT['loc'] == 1 else 0}
    s_cbranch_scc1 {lbl}
    buffer_wbl2 sc1
    s_waitcnt vmcnt(0)
    {lbl}:
    """
    def issW():
        o = f's_mul_i32 s7, s{sPW}, {64 * 1152}\ns_add_u32 s7, s7, s{sSW}\ns_add_u32 m0, s{sIBW}, s{sMW}\ns_add_u32 s{sPW}, s{sPW}, 1\n'
        for n in range(5):
            if n == 4: o += 's_add_u32 m0, m0, 4096\ns_nop 0\n'
            o += f'buffer_load_dwordx4 v{VW[n]}, s[8:11], s7 offen offset:{(n & 3) * 1024} {OPT["nt_wo"]} lds\n'
        return o + f's_and_b32 s{sPW}, s{sPW}, 15\ns_add_u32 s{sIBW}, s{sIBW}, {WST}\ns_cmp_eq_u32 s{sIBW}, {NB * WST}\ns_cselect_b32 s{sIBW}, 0, s{sIBW}\n'
    def issO():
        o = f's_add_u32 m0, s{sIB}, s{sMO}\ns_lshl_b32 s7, s{sPO}, 12\ns_add_u32 s7, s7, s{sSO}\n'
        for e in range(4): o += f'buffer_load_dwordx4 v{VO}, s[20:23], s7 offen offset:{e * 1024} {OPT["ld2"]} lds\n'
        o += f's_add_u32 m0, s{sIB}, s{sM9}\ns_lshl_b32 s7, s{sPO}, 11\ns_add_u32 s7, s7, s{sS9}\ns_mov_b32 exec_hi, 0\n'
        o += f'buffer_load_dwordx4 v{VO}, s[20:23], s7 offen {OPT["ld2"]} lds\ns_mov_b32 exec_hi, -1\n'
        return o + f's_add_u32 s{sPO}, s{sPO}, 1\ns_and_b32 s{sPO}, s{sPO}, 15\ns_add_u32 s{sIB}, s{sIB}, {OST}\ns_cmp_eq_u32 s{sIB}, {NB * OST}\ns_cselect_b32 s{sIB}, 0, s{sIB}\n'
    if part == 0:
        o = f"""
        s_and_b32 s{sJJ}, s{sJ}, 3
        s_lshl_b32 s{sTID}, s{sBR}, 3
        s_add_u32 s{sTID}, s{sTID}, s{sB}
        s_lshl_b32 s{sTID}, s{sTID}, 2
        s_add_u32 s{sTID}, s{sTID}, s{sJJ}
        s_lshl_b32 s{sPW}, s{sJJ}, 2
        s_add_u32 s{sPO}, s{sPW}, 4
        s_and_b32 s{sPO}, s{sPO}, 15
        s_and_b32 s3, s2, 7
        s_lshl_b32 s3, s3, 3
        s_add_u32 s3, s3, s{sB}
        s_lshl_b32 s{sTMP}, s3, 7
        v_lshlrev_b32 v{VF}, 2, v{TID}
        v_lshlrev_b32 v{VO}, 4, v{TID}
        v_mov_b32 v{VP}, s{sE}
        v_mov_b32 v140, v{TID}
        s_mul_i32 s{sSW}, s{sJJ}, 288
        s_and_b32 s{sSW}, s{sSW}, 0xffc0
        s_mul_i32 s3, s{sWP}, {16 * 1152}
        s_add_u32 s{sSW}, s{sSW}, s3
        s_mul_i32 s{sMW}, s{sWP}, 5120
        s_lshl_b32 s{sMO}, s{sWP}, 12
        s_add_u32 s{sMO}, s{sMO}, {OOF}
        s_lshl_b32 s{sM9}, s{sWP}, 9
        s_lshl_b32 s{sS9}, s{sKS}, 15
        s_add_u32 s{sS9}, s{sS9}, s{sM9}
        s_add_u32 s{sS9}, s{sS9}, {1 << 20}
        s_add_u32 s{sM9}, s{sM9}, {OOF + 16384}
        s_lshl_b32 s{sSO}, s{sKS}, 16
        s_lshl_b32 s3, s{sWP}, 18
        s_add_u32 s{sSO}, s{sSO}, s3
        s_lshl_b32 s3, s{sB}, 2
        s_lshl_b32 s{sNB}, 1, s3
        s_mov_b32 s{sIB}, 0
        s_mov_b32 s{sIBW}, 0
        s_mov_b32 s3, 52429
        """
        for n in range(5):
            o += f"""
        v_add_u32 v131, {64 * n}, v{TID}
        v_mul_lo_u32 v132, s3, v131
        v_lshrrev_b32 v132, 20, v132
        v_mul_u32_u24 v133, 20, v132
        v_sub_u32 v133, v131, v133
        v_bfe_u32 v134, v132, 3, 1
        v_lshlrev_b32 v134, 1, v134
        v_xor_b32 v133, v133, v134
        v_mul_u32_u24 v132, 1152, v132
        v_lshl_add_u32 v132, v133, 4, v132
        v_add_u32 v{VW[n]}, {3072 - (n & 3) * 1024}, v132
        """
        o += f"""
        v_lshrrev_b32 v131, 4, v{TID}
        v_bfe_u32 v132, v{TID}, 2, 2
        v_lshl_add_u32 v132, v131, 3, v132
        v_mul_u32_u24 v132, 320, v132
        v_bfe_u32 v133, v{TID}, 1, 1
        v_lshl_add_u32 v132, v133, 4, v132
        v_and_b32 v133, 1, v{TID}
        v_lshl_add_u32 v132, v133, 3, v132
        v_and_b32 v133, 1, v131
        v_lshl_add_u32 v134, v133, 5, v132
        v_xor_b32 v135, 1, v133
        v_lshl_add_u32 v135, v135, 5, v132
        v_add_u32 v136, 64, v134
        s_bitcmp0_b32 s{sJJ}, 0
        s_cselect_b64 vcc, -1, 0
        s_lshl_b32 s3, s{sWP}, 6
        v_cndmask_b32 v{A0}, v135, v134, vcc
        v_cndmask_b32 v{A1}, v136, v135, vcc
        v_add_u32 v{A90}, s3, v{A0}
        v_add_u32 v{A91}, s3, v{A1}
        v_and_b32 v132, 15, v{TID}
        v_lshlrev_b32 v132, 4, v132
        v_lshrrev_b32 v131, 1, v131
        v_lshl_add_u32 v134, v133, 9, v132
        v_lshl_add_u32 v134, v131, 10, v134
        v_add_u32 v{AB}, s{sMO}, v134
        v_lshl_add_u32 v134, v133, 8, v132
        v_lshl_add_u32 v134, v131, 9, v134
        v_add_u32 v{AB9}, {OOF + 16384}, v134
        """
        return [l.strip() for l in o.split('\n') if l.strip()]
    if part == 3:
        P(issW()); return
    P(f"""
    s_cmp_ge_u32 s{sW}, 4
    s_cbranch_scc1 P2_G1
    s_waitcnt vmcnt(0)
    s_barrier
    """)
    stamp(5)
    def fl(l): return (f's_mov_b64 exec, 0xff\ns_cmp_eq_u32 s{sD2}, {15 if OPT["loc"] == 1 else 0}\ns_cbranch_scc1 {l}L\nbuffer_load_dword v{VP}, v{VF}, s[52:55], s{sTMP} offen sc1\ns_branch {l}M\n'
                       f'{l}L:\nbuffer_load_dword v{VP}, v{VF}, s[52:55], s{sDL} offen nt\n{l}M:\ns_mov_b64 exec, -1\n')
    P(f"""
    s_getreg_b32 s3, hwreg(HW_REG_XCC_ID, 0, 4)
    s_lshl_b32 s7, s{sE}, 4
    s_add_u32 s3, s3, s7
    v_cmp_eq_u32 vcc, s3, v{env['Q'] + 3}
    s_and_b32 s{sD2}, vcc_lo, 15
    s_add_u32 s{sDL}, s{sTMP}, 16384
    """)
    P('v_mov_b32 v137, 163832\nv_mov_b32 v138, 0\nds_write_b32 v137, v138')
    P(issW() + issW() + issW())
    P(f's_cmp_lg_u32 s{sW}, 0\ns_cbranch_scc1 P2_F0\n{fl("P2_F1")}P2_F0:')
    P(f"""
    s_waitcnt vmcnt(10)
    s_barrier
    s_waitcnt vmcnt(5)
    s_barrier
    s_waitcnt vmcnt(0)
    s_mov_b32 s{sNB}, 0
    s_mov_b32 s{sCNT}, 2
    s_sub_u32 s{sPW}, s{sPW}, 2
    P2_LD:
    s_cmp_eq_u32 s{sCNT}, 8
    s_cselect_b32 s3, 8, 2
    s_cselect_b32 s{sNB}, 4, s{sNB}
    s_add_u32 s{sPW}, s{sPW}, s3
    s_and_b32 s{sPW}, s{sPW}, 15
    s_cmp_lg_u32 s{sW}, 0
    s_cbranch_scc1 P2_PO
    s_lshr_b32 s3, s{sPW}, 2
    s_add_u32 s3, s3, s{sNB}
    s_mov_b32 s{sSPIN}, {OPT['spin']}
    P2_PF:
    v_cmp_eq_u32 vcc, s{sE}, v{VP}
    s_bitcmp1_b32 vcc_lo, s3
    s_cbranch_scc1 P2_PG
    {fl('P2_F2')}
    s_sub_u32 s{sSPIN}, s{sSPIN}, 1
    s_waitcnt vmcnt(0)
    s_cbranch_scc0 P2_PF
    P2_PG:
    v_mov_b32 v138, s{sCNT}
    ds_write_b32 v137, v138
    s_cmp_lg_u32 s{sCNT}, 6
    s_cbranch_scc1 P2_PN
    {fl('P2_F3')}
    s_branch P2_PN
    P2_PO:
    ds_read_b32 v138, v137
    s_waitcnt lgkmcnt(0)
    v_readfirstlane_b32 s6, v138
    s_cmp_eq_u32 s6, s{sCNT}
    s_cbranch_scc0 P2_PO
    P2_PN:
    s_mov_b32 s{sPO}, s{sPW}
    """)
    if OPT['d3']:
        P(issO() + issW() + f's_cmp_eq_u32 s{sCNT}, 2\ns_cbranch_scc1 P2_D3\ns_waitcnt vmcnt(20)\ns_barrier\nP2_D3:\n' + issO() + issW())
        P(f's_add_u32 s{sCNT}, s{sCNT}, 2\ns_cmp_lt_u32 s{sCNT}, 14\ns_waitcnt vmcnt(20)\ns_barrier\ns_cbranch_scc1 P2_LD')
        P('s_waitcnt vmcnt(10)\ns_barrier\ns_waitcnt vmcnt(0)\ns_barrier\ns_barrier\ns_branch P2_RED')
    else:
        P(issO() + issW() + 's_waitcnt vmcnt(10)\ns_barrier\n' + issO() + issW())
        P(f's_add_u32 s{sCNT}, s{sCNT}, 2\ns_cmp_lt_u32 s{sCNT}, 14\ns_waitcnt vmcnt(10)\ns_barrier\ns_cbranch_scc1 P2_LD')
        P('s_waitcnt vmcnt(0)\ns_barrier\ns_barrier\ns_branch P2_RED')
    ACC = [[4 * (2 * t + j) for j in range(2)] for t in range(9)]; AC9 = [72, 76, 80]
    SET = [dict(A=[144 + 4 * t for t in range(9)], A9=[180, 184], B=[188, 192], B9=196),
           dict(A=[200 + 4 * t for t in range(9)], A9=[236, 240], B=[244, 248], B9=252)]
    P(f"""
    P2_G1:
    s_lshl_b32 s6, s{sTID}, 2
    s_add_u32 s6, s6, s{sKS}
    s_lshl_b32 s6, s6, 2
    s_add_u32 s6, s6, s{sWP}
    s_mul_i32 s6, s6, 11264
    s_add_u32 s6, s6, {WS_PART}
    s_add_u32 s16, s66, s6
    s_addc_u32 s17, s67, 0
    s_mov_b32 s18, 11264
    s_mov_b32 s19, 0x20000
    s_mov_b32 s{sIB}, 0
    s_mov_b32 s{sCNT}, 1
    s_mov_b32 s{sDL}, {WST}
    s_mov_b32 s{sD2}, {OST}
    s_lshl_b32 s6, s{sJJ}, 2
    s_add_u32 s{sTMP}, s6, s{sTMP}
    s_barrier
    s_cmp_eq_u32 s{sW}, 4
    s_cbranch_scc0 P2_FA
    s_add_u32 s{sSPIN}, s{sTMP}, 16384
    s_mov_b64 exec, 1
    buffer_store_dword v{VP}, v{VF}, s[52:55], s{sSPIN} offen
    s_mov_b64 exec, -1
    {wb('P2_WA', True).replace('vmcnt(10)', 'vmcnt(11)')}
    s_mov_b64 exec, 1
    buffer_store_dword v{VP}, v{VF}, s[52:55], s{sTMP} offen sc1
    s_mov_b64 exec, -1
    P2_FA:
    """)
    stamp(6)
    def rd(st, K):
        o = [f'ds_read_b128 {vr(st["B"][j], 4)}, v{AB} offset:{K * 2048 + j * 256}' for j in range(2)]
        for t in range(9):
            o += [f'ds_read_b64_tr_b16 {vr(st["A"][t] + 2 * j, 2)}, v{[A0, A1][t & 1]} offset:{K * 10240 + j * 1280 + 64 * (t >> 1)}' for j in range(2)]
            if t == 7: o.append(f'ds_read_b128 {vr(st["B9"], 4)}, v{AB9} offset:{K * 1024}')
        for t in range(2):
            o += [f'ds_read_b64_tr_b16 {vr(st["A9"][t] + 2 * j, 2)}, v{[A90, A91][t]} offset:{K * 10240 + j * 1280}' for j in range(2)]
        return o
    last = []
    def step(cur, rds, extra=(), first=False, tailbr=None):
        z = lambda d, a, b: f'v_mfma_f32_16x16x32_bf16 {vr(d, 4)}, {vr(a, 4)}, {vr(b, 4)}, 0' if first else mf16(d, a, b)
        m = []
        for t in range(9): m += [z(ACC[t][0], cur['A'][t], cur['B'][0]), z(ACC[t][1], cur['A'][t], cur['B'][1])]
        m += [z(AC9[2], cur['A'][8], cur['B9']), z(AC9[0], cur['A9'][0], cur['B9']), z(AC9[1], cur['A9'][1], cur['B9'])]
        for i in (0, 6, 12): m[i] += f' ; need {vr(cur["A"][i // 2 + 2], 4)}'
        m[18] += f' ; need {vr(cur["A9"][1], 4)}'
        rds = list(rds); extra = list(extra)
        for i, x in enumerate(m):
            if tailbr and i == len(m) - 1:
                assert not extra and not rds
                P(f's_cbranch_scc1 {tailbr}'); last.append(x)
            P(x)
            n = 2 if i % 3 != 2 else 1
            if rds: P.extend(rds[:n]); rds = rds[n:]
            elif extra: P.extend(extra[:2]); extra = extra[2:]
        assert not rds
        P.extend(extra)
    upd = [f'v_add_u32 v{r}, s{sDL}, v{r}' for r in (A0, A1, A90, A91)] + [f'v_add_u32 v{r}, s{sD2}, v{r}' for r in (AB, AB9)]
    ring = [f's_add_u32 s{sIB}, s{sIB}, 1', f's_and_b32 s{sIB}, s{sIB}, 3', f's_cmp_eq_u32 s{sIB}, {NB - 1}',
            f's_cselect_b32 s{sDL}, {-(NB - 1) * WST & 0xffffffff}, {WST}', f's_cselect_b32 s{sD2}, {-(NB - 1) * OST & 0xffffffff}, {OST}']
    P.extend(rd(SET[0], 0))
    step(SET[0], rd(SET[1], 1), upd, first=True)
    P('s_barrier\ns_branch P2_M\nP2_L:')
    if OPT['tl'] == 1: stamp(2, 3); stamp(7, 8); stamp(3, 12)
    step(SET[0], rd(SET[1], 1), upd + [f's_add_u32 s{sCNT}, s{sCNT}, 1', f's_cmp_eq_u32 s{sCNT}, {OPT["fb"]}'], tailbr='P2_SPEC')
    P('s_barrier\nP2_M:')
    step(SET[1], rd(SET[0], 0), ring + [f's_cmp_lt_u32 s{sCNT}, 16'])
    P('s_cbranch_scc1 P2_L\ns_branch P2_E\nP2_SPEC:\n' + last[0])
    P(f"""
    s_waitcnt vmcnt(0)
    s_barrier
    s_cmp_eq_u32 s{sW}, 4
    s_cbranch_scc0 P2_M
    s_mov_b64 exec, 1
    buffer_store_dword v{VP}, v{VF}, s[52:55], s{sSPIN} offen offset:16
    s_mov_b64 exec, -1
    {wb('P2_WB', False)}
    s_mov_b64 exec, 1
    buffer_store_dword v{VP}, v{VF}, s[52:55], s{sTMP} offen offset:16 sc1
    s_mov_b64 exec, -1
    s_branch P2_M
    P2_E:
    """)
    stamp(9)
    units = [(ACC[2 * u][j], ACC[2 * u + 1][j]) for j in range(2) for u in range(4)] + [(ACC[8][0], ACC[8][1]), (AC9[0], AC9[1]), (AC9[2], AC9[2])]
    dst = [84 + 4 * i if i < 9 else 144 + 4 * i for i in range(11)]
    def pack(i):
        x, y = units[i]; d = dst[i]
        P(f'v_cvt_pk_bf16_f32 v{d}, v{x}, v{x + 1}\nv_cvt_pk_bf16_f32 v{d + 1}, v{x + 2}, v{x + 3}')
        P(f'v_cvt_pk_bf16_f32 v{d + 2}, v{y}, v{y + 1}\nv_cvt_pk_bf16_f32 v{d + 3}, v{y + 2}, v{y + 3}')
        if i % 4 == 0: P(f's_mov_b32 s3, {i * 1024}')
        P(f'v_permlane16_swap_b32 v{d}, v{d + 2}\nv_permlane16_swap_b32 v{d + 1}, v{d + 3}')
    P(f's_cmp_eq_u32 s{sWP}, s{sKS}\ns_cbranch_scc1 P2_OWN')
    for i in range(11):
        pack(i); P(f'buffer_store_dwordx4 {vr(dst[i], 4)}, v{VO}, s[16:19], s3 offen offset:{(i % 4) * 1024} sc1')
    P('s_branch P2_RED\nP2_OWN:')
    for i in range(11):
        pack(i); P(f'ds_write_b128 v{VO}, {vr(dst[i], 4)} offset:{i * 1024}')
    P(f"""
    P2_RED:
    s_lshl_b32 s{sTMP}, s{sTID}, 7
    s_add_u32 s{sTMP}, s{sTMP}, 8192
    s_lshl_b32 s7, s{sKS}, 2
    s_add_u32 s7, s7, s{sTMP}
    s_lshl_b32 s6, s{sTID}, 4
    s_add_u32 s6, s6, s{sKS}
    s_mul_i32 s6, s6, 11264
    s_add_u32 s6, s6, {WS_PART}
    s_add_u32 s16, s66, s6
    s_addc_u32 s17, s67, 0
    s_mov_b32 s18, {3 * 45056 + 11264}
    s_mov_b32 s19, 0x20000
    s_mul_i32 s6, s{sB}, {144 * 2304}
    s_mul_i32 s3, s{sBR}, 1152
    s_add_u32 s6, s6, s3
    s_mul_i32 s3, s{sJJ}, 288
    s_add_u32 s6, s6, s3
    s_add_u32 s12, s68, s6
    s_addc_u32 s13, s69, 0
    s_sub_u32 s14, {1152 * 2304}, s6
    s_mov_b32 s15, 0x20000
    v_mov_b32 v{VP}, s{sE}
    s_mov_b64 s[{sNEED}:{sNEED + 1}], 15
    v_and_b32 v4, 15, v140
    v_mul_u32_u24 v4, 2304, v4
    v_lshrrev_b32 v5, 5, v140
    v_lshl_add_u32 v4, v5, 4, v4
    v_bfe_u32 v5, v140, 4, 1
    v_lshl_add_u32 v6, v5, 5, v4
    s_lshl_b32 s40, s{sKS}, 1
    s_lshr_b32 s3, s{sW}, 2
    s_add_u32 s40, s40, s3
    s_mul_i32 s40, s40, {16 * 2304}
    s_and_b32 s3, s{sW}, 3
    s_lshl_b32 s3, s3, 6
    s_add_u32 s40, s40, s3
    s_lshl_b32 s41, s{sW}, 10
    s_mul_i32 s42, s{sKS}, {32 * 2304}
    s_add_u32 s42, s42, 256
    s_lshl_b32 s3, s{sKS}, 6
    s_add_u32 s3, s3, {128 * 2304}
    s_cmp_eq_u32 s{sW}, 1
    s_cselect_b32 s42, s3, s42
    s_cselect_b32 s45, 32, 0
    s_cmp_eq_u32 s{sW}, 2
    s_cselect_b32 s42, {128 * 2304 + 256}, s42
    s_cmp_eq_u32 s{sW}, 0
    s_cselect_b32 s45, {16 * 2304}, s45
    v_mul_lo_u32 v7, s45, v5
    v_add_u32 v7, v7, v4
    s_cmp_lg_u32 s{sKS}, 0
    s_cselect_b32 s45, 2, 3
    s_waitcnt vmcnt(0)
    s_barrier
    s_cmp_eq_u32 s{sW}, 7
    s_cbranch_scc0 P2_NG
    s_mov_b64 exec, 1
    buffer_store_dword v{VP}, v{VF}, s[52:55], s7 offen sc1
    s_mov_b64 exec, -1
    P2_NG:
    """)
    stamp(10)
    P(f"""
    s_lshl_b32 s3, s{sW}, 10
    v_add_u32 v8, s3, v{VO}
    ds_read_b128 v[32:35], v8
    ds_read_b128 v[48:51], v8 offset:8192
    s_cmp_lg_u32 s{sW}, 0
    s_cbranch_scc1 P2_PW
    """ + poll('P2_PR', sTMP) + 'P2_PW:\ns_barrier')
    stamp(11)
    def loads(base, so):
        for k in range(1, 4):
            P(f's_add_u32 s3, s{sKS}, {k}\ns_and_b32 s3, s3, 3\ns_mul_i32 s3, s3, 45056\ns_add_u32 s3, s3, s{so}\nbuffer_load_dwordx4 {vr(base + 4 * k, 4)}, v{VO}, s[16:19], s3 offen sc1')
    def reduce(base, va, so, left):
        for k in range(4):
            if k: P(f's_waitcnt vmcnt({left + 3 - k})')
            for i in range(4):
                src = base + 4 * k + i; t = 16 if k == 0 else 24
                P(f'v_lshlrev_b32 v{t + 2 * i}, 16, v{src}\nv_and_b32 v{t + 1 + 2 * i}, s46, v{src}')
            if k:
                for i in range(8): P(f'v_add_f32 v{16 + i}, v{16 + i}, v{24 + i}')
        for i in range(4): P(f'v_cvt_pk_bf16_f32 v{base + i}, v{16 + 2 * i}, v{17 + 2 * i}')
        P(f'buffer_store_dwordx4 {vr(base, 4)}, v{va}, s[12:15], s{so} offen')
    P('s_mov_b32 s46, 0xffff0000')
    loads(32, 41)
    P(f's_cmp_lt_u32 s{sW}, s45\ns_cbranch_scc1 P2_R2')
    reduce(32, 6, 40, 0)
    P(f's_branch P2_RE\nP2_R2:\ns_add_u32 s41, s41, 8192')
    loads(48, 41)
    reduce(32, 6, 40, 3)
    reduce(48, 7, 42, 1)
    P('P2_RE:')
    if OPT['stamps']:
        P('s_waitcnt vmcnt(0)'); stamp(8)

def k1():
    P = Prog()
    O, S, CN, Q, PP, O9, Q9, S9, CN9, P9 = 0, 64, 96, 112, 144, 160, 192, 208, 212, 216
    L, L9, VOK, VOV, AK, AK9, AV9, TID = 218, 219, 220, 221, 222, 223, 224, 225
    VA = 226
    T0, T1, AL, AL9, X0, X1 = 230, 231, 232, 233, 234, 235
    FB = [236, 240, 244, 248, 252]
    ACC = [[0, 16, 32, 48], [64, 80, 144, 176]]; ACC9 = [[160, 164], [168, 172]]
    QW = [230, 231, 232, 233]; QX = [234, 235]; QX9, QW9, VOW, VOX, HOLD = 216, 217, 218, 219, 212
    QB, QB9 = [96, 100], 104
    QF = [112, 116, 120, 124, 128, 132, 136, 140, 236, 240]
    sW, sWP, sP, sB, sJ, sBR = 24, 25, 26, 27, 28, 29
    sCNT, sW0, sX, sMC, sIB, sDL = 30, 31, 33, 35, 36, 37
    sEX = 38
    sIK, sROT = 31, 49
    sIS, sSK, sSV, sDK, sDV, sT, sCL, sRARE, sTMP, sTM2, sMW, sKP, sVP, sE = 40, 41, 42, 43, 44, 45, 46, 47, 48, 49, 50, 51, 32, 34
    NSB = OPT['nsb']; STGS = 25600; STG0 = 163840 - NSB * STGS
    SB0 = (NSB - 18) % NSB
    QXCH, Q9B = 131072, 98304 + 16384
    nk, ntw = OPT['nt_kv'], OPT['nt_w']
    def stamp(k, at=None):
        if OPT['stamps'] == 3: return
        if OPT['stamps']:
            if at is not None: P(f's_cmp_lg_u32 s{sCNT}, {at}\ns_cbranch_scc1 K1_ST{k}_{len(P.ins)}'); lbl = P.ins[-1].target
            P(('s_memtime' if OPT['stamps'] == 2 else 's_memrealtime') + ' s[%d:%d]' % (70 + 2 * k, 71 + 2 * k))
            if at is not None: P(f'{lbl}:')
            if k == 1 and OPT['stamps'] == 1: P('s_memtime s[96:97]')
            if k == 4 and OPT['stamps'] == 1: P('s_memtime s[98:99]')
            if k == 2 and OPT['stamps'] == 1: P('s_memtime s[94:95]')
    P(f"""
    s_cmp_ge_u32 s2, 256
    s_cbranch_scc1 K1_END
    s_bfe_u32 s{sBR}, s2, 0x10002
    s_mul_i32 s6, s{sBR}, 40
    s_add_u32 s4, s0, s6
    s_addc_u32 s5, s1, 0
    s_load_dwordx8 s[56:63], s[4:5], 0
    s_load_dwordx4 s[64:67], s[0:1], 88
    s_load_dwordx2 s[68:69], s[0:1], 80
    s_load_dwordx2 s[100:101], s[4:5], 32
    """)
    if OPT['stamps']:
        for k in range(70, 100, 2): P(f's_mov_b64 s[{k}:{k + 1}], 0')
    stamp(0)
    P(f"""
    v_lshrrev_b32 v1, 6, v0
    v_and_b32 v{TID}, 63, v0
    v_readfirstlane_b32 s{sW}, v1
    v_lshrrev_b32 v2, 4, v{TID}
    v_and_b32 v3, 15, v{TID}
    s_and_b32 s3, s2, 3
    s_lshl_b32 s3, s3, 2
    s_bfe_u32 s7, s2, 0x20003
    s_add_u32 s{sJ}, s3, s7
    s_lshr_b32 s{sB}, s2, 5
    s_and_b32 s{sWP}, s{sW}, 3
    s_lshr_b32 s{sP}, s{sW}, 2
    v_lshlrev_b32 v4, 2, v2
    v_xor_b32 v4, v4, v3
    v_lshlrev_b32 v4, 4, v4
    v_lshl_add_u32 v{VOW}, v2, 13, v4
    v_lshrrev_b32 v8, 2, v{TID}
    v_and_b32 v9, 3, v{TID}
    v_xor_b32 v9, v9, v2
    v_mul_u32_u24 v8, 1152, v8
    v_lshl_add_u32 v{VOX}, v9, 4, v8
    s_lshl_b32 s3, s{sWP}, 2
    v_or_b32 v5, s3, v2
    v_xor_b32 v5, v5, v3
    v_lshlrev_b32 v5, 4, v5
    s_lshl_b32 s{sMW}, s{sWP}, 12
    v_lshl_add_u32 v5, v2, 8, v5
    v_add_u32 v{VOK}, s{sMW}, v5
    v_lshl_add_u32 v5, v2, 8, v4
    v_add_u32 v{VOV}, s{sMW}, v5
    s_lshl_b32 s{sW0}, s{sWP}, 16
    s_mul_i32 s{sX}, s{sWP}, 18432
    s_mul_i32 s{sMC}, s{sWP}, 3072
    s_lshl_b32 s3, s{sWP}, 4
    s_lshl_b64 s[{sEX}:{sEX + 1}], 0xffff, s3
    s_mul_i32 s6, s{sB}, 165888
    s_lshl_b32 s7, s{sJ}, 9
    s_mov_b32 s11, 0x20000
    s_mov_b32 s22, {165888 + 2048}
    s_mov_b32 s23, 0x20000
    s_sub_u32 s10, {576 * 8192}, s7
    s_mov_b32 s{sIB}, {STG0}
    s_lshl_b32 s{sTMP}, s{sB}, 5
    s_lshl_b32 s{sTM2}, s{sJ}, 1
    s_add_u32 s{sTMP}, s{sTMP}, s{sTM2}
    s_lshl_b32 s{sTMP}, s{sTMP}, 17
    s_mov_b32 s14, 262144
    s_mov_b32 s15, 0x20000
    s_mov_b32 s18, 262144
    s_mov_b32 s19, 0x20000
    s_mov_b32 s{sCNT}, 0
    s_cmp_ge_u32 s{sW}, 4
    s_waitcnt lgkmcnt(0)
    s_cbranch_scc1 K1_G1
    s_add_u32 s8, s62, s7
    s_addc_u32 s9, s63, 0
    s_add_u32 s20, s56, s6
    s_addc_u32 s21, s57, 0
    s_sub_u32 s20, s20, 2048
    s_subb_u32 s21, s21, 0
    """)
    kvsrd = f"""
    s_add_u32 s12, s58, s{sTMP}
    s_addc_u32 s13, s59, 0
    s_add_u32 s16, s60, s{sTMP}
    s_addc_u32 s17, s61, 0
    s_lshr_b32 s{sROT}, s2, 3
    s_mul_i32 s3, s2, {OPT['rotx']}
    s_mul_i32 s{sROT}, s{sROT}, {OPT['rot']}
    s_add_u32 s{sROT}, s{sROT}, s3
    s_lshl_b32 s{sROT}, s{sROT}, 14
    s_add_u32 s52, s66, {WS_FLAG}
    s_addc_u32 s53, s67, 0
    s_mov_b32 s54, 32768
    s_mov_b32 s55, 0x20000
    """
    lanec = f"""
    v_bfe_u32 v10, v{TID}, 2, 2
    v_and_b32 v11, 3, v{TID}
    v_lshrrev_b32 v12, 5, v{TID}
    v_and_b32 v13, 1, v2
    v_and_b32 v20, 1, v11
    v_lshrrev_b32 v15, 1, v11
    v_lshlrev_b32 v16, 2, v10
    v_lshl_add_u32 v17, v13, 1, v20
    v_xor_b32 v17, v17, v16
    v_lshlrev_b32 v17, 4, v17
    v_lshl_add_u32 v17, v15, 3, v17
    v_lshl_add_u32 v17, v10, 8, v17
    s_lshl_b32 s3, s{sP}, 14
    s_add_u32 s{sMW}, s{sMW}, s3
    s_add_u32 s6, s3, 65536
    v_lshl_add_u32 v18, v12, 10, v17
    v_add_u32 v{VA}, s6, v18
    v_xor_b32 v{VA + 1}, 64, v{VA}
    v_xor_b32 v{VA + 2}, 0x80, v{VA}
    v_xor_b32 v{VA + 3}, 0xc0, v{VA}
    v_bfe_u32 v23, v{TID}, 3, 2
    v_bfe_u32 v24, v{TID}, 2, 1
    v_lshl_add_u32 v25, v23, 2, v11
    v_xor_b32 v25, v25, v12
    v_lshlrev_b32 v25, 4, v25
    v_lshl_add_u32 v25, v11, 8, v25
    v_lshl_add_u32 v25, v24, 10, v25
    v_lshl_add_u32 v25, v23, 12, v25
    v_add_u32 v{AK}, s3, v25
    s_lshl_b32 s7, s{sWP}, 10
    s_add_u32 s6, s3, s7
    v_xor_b32 v25, v2, v3
    v_lshlrev_b32 v25, 4, v25
    v_lshl_add_u32 v25, v11, 8, v25
    v_lshl_add_u32 v25, v10, 12, v25
    v_add_u32 v{AK9}, s6, v25
    v_xor_b32 v25, v15, v16
    v_lshlrev_b32 v25, 4, v25
    v_lshl_add_u32 v25, v20, 3, v25
    v_lshl_add_u32 v25, v10, 8, v25
    v_lshl_add_u32 v25, v2, 12, v25
    s_add_u32 s6, s6, 65536
    s_lshl_b32 s7, s{sWP}, 6
    v_xor_b32 v25, s7, v25
    v_add_u32 v{AV9}, s6, v25
    v_mul_u32_u24 v26, 272, v3
    v_lshl_add_u32 v27, v2, 4, v26
    s_mul_i32 s6, s{sP}, 4352
    s_add_u32 s6, s6, {Q9B}
    v_add_u32 v{S9}, s6, v27
    v_lshlrev_b32 v27, 4, v{TID}
    s_lshl_b32 s6, s{sWP}, 13
    s_add_u32 s6, s6, {QXCH}
    v_add_u32 v{S9 + 1}, s6, v27
    """
    loopinit = f"""
    s_mov_b32 s{sCNT}, 1
    s_mov_b32 s{sKP}, 32768
    s_mov_b32 s{sVP}, 65536
    s_mov_b32 s{sDK}, 32768
    s_mov_b32 s{sDV}, 0
    s_mov_b32 s{sIS}, 131072
    s_mov_b32 s{sIK}, 0
    s_mov_b32 s33, 0
    s_mul_i32 s3, s{sP}, {OPT['rotp'] * 16384}
    s_add_u32 s3, s3, s{sROT}
    s_add_u32 s{sSV}, s3, 16384
    s_and_b32 s{sSV}, s{sSV}, 0x1ffff
    s_add_u32 s{sSK}, s3, 49152
    s_and_b32 s{sSK}, s{sSK}, 0x1ffff
    s_mov_b32 s{sCL}, 0xff800000
    s_mov_b32 s{sRARE}, 0
    """
    obase = f"""
    s_lshl_b32 s6, s{sBR}, 3
    s_add_u32 s6, s6, s{sB}
    s_mul_i32 s6, s6, 1179648
    s_mul_i32 s7, s{sWP}, {262144 - 4096}
    s_add_u32 s6, s6, s7
    s_lshl_b32 s7, s{sJ}, 1
    s_add_u32 s7, s7, s{sP}
    s_lshl_b32 s7, s7, 13
    s_add_u32 s6, s6, s7
    s_add_u32 s56, s66, s6
    s_addc_u32 s57, s67, 0
    """
    narrow = f's_lshl_b32 s3, s{sP}, 17\ns_add_u32 s12, s12, s3\ns_addc_u32 s13, s13, 0\ns_add_u32 s16, s16, s3\ns_addc_u32 s17, s17, 0\ns_mov_b32 s14, 131072\ns_mov_b32 s18, 131072'
    getE = f'v_mov_b32 v{AL}, {Q9B + 8704}\nds_read_b32 v{AL}, v{AL}' if OPT['fused'] else ''
    getE2 = f'v_readfirstlane_b32 s{sE}, v{AL}' if OPT['fused'] else ''
    queue = []
    def vm(text, tag): P(text); queue.append(tag)
    BS = [int(c, 36) for c in str(OPT['bs'])]; BN = 0; BT = len(BS) // 4
    bpos = []
    def wait_for(tag):
        idx = max(i for i, t in enumerate(queue) if t == tag)
        n = len(queue) - 1 - idx
        cnt = [(1 if OPT['bh'] else 2) * sum(1 for c2, p_ in bpos if c2 == c and p_ > idx) for c in range(4)]
        vals = sorted(set(cnt))
        for v in vals[:-1]:
            lbl = f'K1_BW{len(P.ins)}'
            P(f's_and_b32 s3, s{sCLS}, {sum(1 << c for c in range(4) if cnt[c] > v)}\ns_cbranch_scc1 {lbl}\ns_waitcnt vmcnt({min(63, n + v)})\n{lbl}:')
        P(f's_waitcnt vmcnt({min(63, n + vals[-1])})')
    def stage(s):
        if OPT['nost'] and s >= 3: queue.append(('s', s)); return
        buf = STG0 + ((s + SB0) % NSB) * STGS
        for hd in range(2):
            P(f's_add_u32 m0, s{sMC}, {buf + hd * 12288}\ns_add_u32 s3, s{sW0}, {s * 262144 + hd * 256}')
            vm(f'buffer_load_dwordx4 v{VOW}, s[8:11], s3 offen {ntw} lds', ('s', s))
            P(f's_add_u32 s3, s3, {32768 - 1024}')
            vm(f'buffer_load_dwordx4 v{VOW}, s[8:11], s3 offen offset:1024 {ntw} lds', ('s', s))
            P(f's_add_u32 s3, s{sX}, {s * 64 + hd * 4 * 18432}')
            vm(f'buffer_load_dwordx4 v{VOX}, s[20:23], s3 offen offset:2048 {ntw} lds', ('s', s))
        P(f's_mov_b32 m0, {buf + 24576}\ns_mov_b32 s3, {s * 64 + 128 * 1152 + 2048}\ns_mov_b64 exec, s[{sEX}:{sEX + 1}]')
        vm(f'buffer_load_dwordx4 v{VOX}, s[20:23], s3 offen {ntw} lds', ('s', s))
        P('s_mov_b64 exec, -1')
    VTW, VTX, sTW, sTX, sCLS = 232, 233, 45, 46, 47
    def touch(s):
        if s >= 18 or not OPT['tlead']: return
        P(f's_add_u32 s3, s{sTW}, {s * 262144}\ns_add_u32 s6, s{sTX}, {s * 64}\ns_mov_b64 exec, 0x1ff')
        vm(f'buffer_load_dword v{X0}, v{VTW}, s[8:11], s3 offen {ntw}', ('t', s))
        vm(f'buffer_load_dword v{X1}, v{VTX}, s[20:23], s6 offen {ntw}', ('t', s))
        P('s_mov_b64 exec, -1')
    def ltouch():
        TR = OPT['trows']
        P(f"""
        v_lshrrev_b32 v{VTW}, 3, v{TID}
        v_and_b32 v{VTX}, 7, v{TID}
        v_lshlrev_b32 v{VTX}, 6, v{VTX}
        v_lshl_add_u32 v{VTW}, v{VTW}, 13, v{VTX}
        v_lshlrev_b32 v{VTX}, 6, v{TID}
        s_lshl_b32 s3, s{sB}, 2
        s_add_u32 s3, s3, s{sWP}
        s_mul_i32 s3, s3, {TR * 8192}
        s_add_u32 s3, s3, {(576 - 32 * TR) * 8192}
        s_bfe_u32 s6, s2, 0x20003
        s_lshl_b32 s6, s6, 2
        s_add_u32 s6, s6, s{sWP}
        s_mul_i32 s6, s6, {162 * 64}
        s_add_u32 s6, s6, 2048
        """)
        tw = [(i, min(8, TR - 8 * i) * 8) for i in range((TR + 7) // 8)]; tx = [(0, 64), (1, 64), (2, 34)]
        for i in range(3):
            for (lst, v, srd, so, step) in ((tw, VTW, 8, 3, 8 * 8192), (tx, VTX, 20, 6, 4096)):
                if i >= len(lst): continue
                n = lst[i][1]
                if n < 64: P(f's_mov_b64 exec, {hex((1 << n) - 1)}' if n <= 31 else f's_mov_b32 exec_hi, {(1 << (n - 32)) - 1}')
                vm(f'buffer_load_dword v{X0}, v{v}, s[{srd}:{srd + 3}], s{so} offen {ntw}', ('t', 0))
                if n < 64: P('s_mov_b64 exec, -1')
                P(f's_add_u32 s{so}, s{so}, {step}')
    def btouch(a, b):
        n = b - a; l0, l1 = a // 2, (b + 1) // 2; nl = l1 - l0
        mg = (65536 + nl - 1) // nl
        assert all((i * mg) >> 16 == i // nl for i in range(64)) and 4 * n <= 64 and 9 * nl <= 64
        P(f"""
        v_lshrrev_b32 v{VTW}, 2, v{TID}
        v_and_b32 v{VTX}, 3, v{TID}
        v_lshlrev_b32 v{VTX}, 7, v{VTX}
        v_lshl_add_u32 v{VTW}, v{VTW}, 13, v{VTX}
        v_mul_u32_u24 v{X1}, {mg}, v{TID}
        v_lshrrev_b32 v{X1}, 16, v{X1}
        v_mul_u32_u24 v{VTX}, {1152 - 128 * nl}, v{X1}
        v_lshl_add_u32 v{VTX}, v{TID}, 7, v{VTX}
        s_lshl_b32 s3, s{sB}, 2
        s_add_u32 s3, s3, s{sWP}
        s_mul_i32 s3, s3, {n * 8192}
        s_add_u32 s3, s3, {32 * a * 8192}
        s_and_b32 s6, s{sJ}, 3
        s_lshl_b32 s6, s6, 2
        s_add_u32 s6, s6, s{sWP}
        s_mul_i32 s6, s6, {9 * 1152}
        s_add_u32 s6, s6, {2048 + 128 * l0}
        """)
        for cnt, v, srd, so in ((4 * n, VTW, 8, 3), (9 * nl, VTX, 20, 6)):
            P(f's_mov_b64 exec, {hex((1 << cnt) - 1)}' if cnt <= 31 else f's_mov_b32 exec_lo, -1\ns_mov_b32 exec_hi, {hex((1 << (cnt - 32)) - 1)}')
            vm(f'buffer_load_dword v{X0}, v{v}, s[{srd}:{srd + 3}], s{so} offen {ntw}', ('t', 2))
        P('s_mov_b64 exec, -1')
    TB = [tuple(int(y) for y in x.split(':')) for x in str(OPT['tb']).split(',') if x]
    def otouch():
        P(f"""
        s_lshl_b32 s6, s{sBR}, 3
        s_add_u32 s6, s6, s{sB}
        s_mul_i32 s6, s6, 1179648
        s_add_u32 s56, s66, s6
        s_addc_u32 s57, s67, 0
        s_mov_b32 s58, 1179648
        s_mov_b32 s59, 0x20000
        v_lshlrev_b32 v{VTW}, 7, v{TID}
        s_lshl_b32 s3, s{sWP}, 18
        s_lshl_b32 s6, s{sJ}, 14
        s_add_u32 s3, s3, s6
        """)
        vm(f'buffer_load_dword v{X0}, v{VTW}, s[56:59], s3 offen', ('t', 1))
        P('s_add_u32 s3, s3, 8192')
        vm(f'buffer_load_dword v{X0}, v{VTW}, s[56:59], s3 offen', ('t', 1))
        P(f's_lshl_b32 s3, s{sJ}, 13\ns_lshl_b32 s6, s{sWP}, 11\ns_add_u32 s3, s3, s6\ns_add_u32 s3, s3, {1 << 20}\ns_mov_b64 exec, 0xffff')
        vm(f'buffer_load_dword v{X0}, v{VTW}, s[56:59], s3 offen', ('t', 1))
        P('s_mov_b64 exec, -1')
    PRE = {(0, 0): [64, 68, 72, 76], (0, 1): [80, 84, 88, 92], (1, 0): [112, 116, 120, 124], (1, 1): [128, 132, 136, 140],
           (2, 0): [192, 196, 200, 204], (2, 1): [236, 240, 244, 248], (3, 0): [96, 100, 104, 252], (3, 1): [144, 148, 152, 156]}
    SRC = {0: (VOK, 12, 0), 1: (VOK, 12, 16384), 2: (VOV, 16, 0), 3: (VOK, 12, 32768)}
    FREE = {(0, 0): 0 if NSB <= 5 else 13, (0, 1): 0 if NSB <= 5 else 13, (1, 0): 15, (1, 1): 15, (2, 0): 16, (2, 1): 16, (3, 0): 17, (3, 1): 19}
    inreg = set()
    def kvload(step, u, hd, n):
        if OPT['nokv'] & 1: return
        vo, srd, off = SRC[u]
        P(f's_add_u32 s3, s{sROT}, {off + hd * OPT["rotp"] * 16384}\ns_and_b32 s3, s3, 0x1ffff' + (f'\ns_add_u32 s3, s3, 131072' if hd else ''))
        if step >= FREE[u, hd]:
            P(f's_add_u32 m0, s{sMW}, {u * 32768 + hd * 16384}\ns_nop 0')
            vm(f'buffer_load_dwordx4 v{vo}, s[{srd}:{srd + 3}], s3 offen offset:{n * 1024} {nk} lds', ('k', u))
        else:
            vm(f'buffer_load_dwordx4 {vr(PRE[u, hd][n], 4)}, v{vo}, s[{srd}:{srd + 3}], s3 offen offset:{n * 1024} {nk}', ('r', u, hd)); inreg.add((u, hd, n))
    def kvdump(step):
        if OPT['nokv'] & 2: return
        for (u, hd), f in FREE.items():
            ns = [n for n in range(4) if (u, hd, n) in inreg]
            if f != step or not ns: continue
            if (u, hd) in btag: P(f's_waitcnt vmcnt({min(63, len(queue) - btag[u, hd])})')
            if ('r', u, hd) in queue: wait_for(('r', u, hd))
            base = u * 32768 + hd * 16384
            for n in ns: P(f'ds_write_b128 v{[T0, T1][base >> 16]}, {vr(PRE[u, hd][n], 4)} offset:{(base & 0xffff) + n * 1024}')
    kvq = [(u, hd, n) for u in range(4) for hd in range(2) for n in range(4)]
    npre, dist = OPT['npre'], OPT['dist']
    sched = [int(c, 36) for c in str(OPT['kvs'])] + [0] * 30
    assert sum(sched) + abs(OPT['kpre']) + (0 if BT else BN) == 32 and dist <= NSB - 1 and npre <= NSB
    btag = {}
    if BS: P(f's_and_b32 s3, s{sJ}, 3\ns_lshl_b32 s{sCLS}, 1, s3')
    nxt = 0
    for s in range(npre): stage(s); nxt += 1
    if OPT['tlead']:
        P(f"""
        v_lshlrev_b32 v{VTW}, 6, v{TID}
        v_mul_u32_u24 v{VTX}, 1152, v{TID}
        s_lshl_b32 s{sTW}, s{sB}, 2
        s_add_u32 s{sTW}, s{sTW}, s{sWP}
        s_lshl_b32 s{sTW}, s{sTW}, 13
        s_bfe_u32 s{sTX}, s2, 0x20003
        s_lshl_b32 s{sTX}, s{sTX}, 2
        s_add_u32 s{sTX}, s{sTX}, s{sWP}
        s_mul_i32 s{sTX}, s{sTX}, {9 * 1152}
        s_add_u32 s{sTX}, s{sTX}, 2048
        """)
        for s in range(npre, dist + OPT['tlead']): touch(s)
    if OPT['kpre']:
        P(kvsrd)
        for _ in range(max(0, OPT['kpre'])): kvload(0, *kvq.pop(0))
    if OPT['ts'] == -1: ltouch()
    for st_, a_, b_ in TB:
        if st_ == -1: btouch(a_, b_)
    for _ in range(max(0, -OPT['kpre'])): kvload(0, *kvq.pop(0))
    later = ['' if OPT['kpre'] else kvsrd] + [f'v_lshlrev_b32 v{T0}, 4, v{TID}\nv_add_u32 v{T0}, s{sMW}, v{T0}\nv_add_u32 v{T1}, 0x10000, v{T0}', lanec]
    zs = list(range(108, 112)) + list(range(O9, O9 + 32)) + list(range(CN9, CN9 + 4)) + list(range(63, -1, -1))
    later += ['\n'.join(f'v_mov_b32 v{r}, 0' for r in zs[i:i + 26]) for i in range(0, len(zs), 26)]
    P(later.pop(0))
    for s in range(19):
        if OPT['stamps'] == 2 and s == OPT['sq']: stamp(5)
        if OPT['stamps'] == 2 and s == OPT['sq'] + 1: stamp(6)
        if OPT['stamps'] == 3 and OPT['sq'] == 99 and 1 <= s <= 5: P(f's_memtime s[{70 + 6 * s - 4}:{71 + 6 * s - 4}]')
        if s < 18: wait_for(('s', s))
        if OPT['stamps'] == 3 and OPT['sq'] == 99 and 1 <= s <= 4: P(f's_memtime s[{70 + 6 * s - 2}:{71 + 6 * s - 2}]')
        if OPT['stamps'] == 2 and s == OPT['sq']: stamp(3)
        P('s_barrier')
        if OPT['stamps'] == 2 and s == OPT['sq']: stamp(2)
        if s == 0 and OPT['stamps'] == 1: stamp(1)
        S3 = [0, 1, 2, 3, 4, 5, 6, 8, 10, 12, 13, 14, 15, 16, 18]
        if OPT['stamps'] == 3 and OPT['sq'] == 99:
            if s <= 4: P(f's_memtime s[{70 + 6 * s}:{71 + 6 * s}]')
        elif OPT['stamps'] == 3 and s in S3: P(f's_memtime s[{70 + 2 * S3.index(s)}:{71 + 2 * S3.index(s)}]')
        if OPT['sp']:
            for _ in range(int((str(OPT['sp']) + '0' * 20)[s])):
                assert nxt <= s + NSB - 1
                stage(nxt); nxt += 1
            if OPT['ts'] == s: ltouch()
            for st_, a_, b_ in TB:
                if st_ == s: btouch(a_, b_)
            if OPT['ot'] == s: otouch()
            if OPT['cts'] == s:
                P(f"""
                s_getpc_b64 s[6:7]
                K1_PC2:
                s_add_u32 s6, s6, @PC2OFF@
                s_addc_u32 s7, s7, 0
                s_lshl_b32 s3, s{sWP}, 5
                v_add_u32 v{VTW}, s3, v{TID}
                v_lshlrev_b32 v{VTW}, 7, v{VTW}
                v_min_u32 v{VTW}, @LEN2@, v{VTW}
                v_mov_b32 v{VTX}, s7
                v_add_co_u32 v{VTW}, vcc, s6, v{VTW}
                v_addc_co_u32 v{VTX}, vcc, 0, v{VTX}, vcc
                s_mov_b32 exec_hi, 0
                """)
                vm(f'global_load_dword v{X0}, v[{VTW}:{VTX}], off', ('t', 3))
                P('s_mov_b32 exec_hi, -1')
        n = 0
        while not OPT['sp'] and nxt < 18 and nxt <= s + dist and n < 2: stage(nxt); nxt += 1; n += 1
        touch(s + dist + OPT['tlead'])
        for k in range(BT):
            cl_ = [c for c in range(4) if BS[4 * k + c] == s]
            if not cl_: continue
            lbl = f'K1_BU{s}_{k}'; srd, tile = [(12, 3), (16, 2), (12, 4), (16, 3)][k // 2 if OPT['bh'] else k]
            P(f's_and_b32 s3, s{sCLS}, {sum(1 << c for c in cl_)}\ns_cbranch_scc0 {lbl}')
            P(f'v_lshlrev_b32 v{VTW}, 7, v{TID}\nv_add_u32 v{VTW}, s{sMW}, v{VTW}\ns_mov_b32 exec_hi, 0')
            for hd in ([k % 2] if OPT['bh'] else range(2)):
                P(f's_add_u32 s3, s{sROT}, {(tile + hd * OPT["rotp"]) * 16384}\ns_and_b32 s3, s3, 0x1ffff' + ('\ns_add_u32 s3, s3, 131072' if hd else ''))
                P(f'buffer_load_dword v{X0}, v{VTW}, s[{srd}:{srd + 3}], s3 offen {OPT["btf"]}')
            P(f's_mov_b32 exec_hi, -1\n{lbl}:')
            bpos += [(c, len(queue)) for c in cl_]
        kvdump(s)
        for _ in range(sched[s]): kvload(s, *kvq.pop(0))
        if later: P(later.pop(0))
    assert nxt == 18 and not later
    for r in list(range(96, 108)) + [L, L9]: P(f'v_mov_b32 v{r}, 0')
    P(loopinit)
    if OPT['stamps'] == 1: stamp(2)
    if (0, 1) in btag: P(f's_waitcnt vmcnt({min(63, len(queue) - btag[0, 1])})')
    if ('k', 0) in queue: wait_for(('k', 0))
    P('s_barrier')
    P(getE)
    for kk in range(8): P(f'ds_read_b128 {vr(Q + 4 * kk, 4)}, v{S9 + 1} offset:{kk * 1024}')
    for kk in range(4): P(f'ds_read_b128 {vr(Q9 + 4 * kk, 4)}, v{S9} offset:{kk * 64}')
    P('s_barrier')
    P(getE2)
    kvdump(19)
    for _ in range(sched[19]): kvload(19, *kvq.pop(0))
    assert not kvq
    P(narrow)
    after = lambda u: (len(queue) - 1 - max(i for i, t in enumerate(queue) if t == ('k', u))) if ('k', u) in queue else 60
    X1N = min(63, after(1) + 4) if OPT['nbar'] == 2 else min(63, after(1) + 4, after(2) + 4)
    P('s_branch K1_HEAD')
    P('K1_G1:')
    P(kvsrd)
    if OPT['fused']:
        P(f"""
                v_mov_b32 v246, 0
        s_cmp_eq_u32 s{sW}, 4
        s_cbranch_scc0 K1_E0
        buffer_load_dword v244, v246, s[52:55], 0 offen sc1
        K1_E0:
        """)
    def touches():
        P(f"""
        s_lshl_b32 s7, s{sJ}, 9
        s_mul_i32 s6, s{sB}, 165888
        s_add_u32 s8, s62, s7
        s_addc_u32 s9, s63, 0
        s_add_u32 s20, s56, s6
        s_addc_u32 s21, s57, 0
        s_mov_b32 s22, 165888
        v_lshrrev_b32 v28, 3, v{TID}
        v_and_b32 v29, 7, v{TID}
        v_lshlrev_b32 v29, 6, v29
        v_lshl_add_u32 v28, v28, 13, v29
        v_lshlrev_b32 v29, 6, v{TID}
        s_lshl_b32 s3, s{sB}, 2
        s_add_u32 s3, s3, s{sWP}
        s_mul_i32 s3, s3, {TR * 8192}
        s_add_u32 s3, s3, {(576 - 32 * TR) * 8192}
        s_bfe_u32 s6, s2, 0x20003
        s_lshl_b32 s6, s6, 2
        s_add_u32 s6, s6, s{sWP}
        s_mul_i32 s6, s6, {162 * 64}
        """)
        tw = [(i, min(8, TR - 8 * i) * 8) for i in range((TR + 7) // 8)]; tx = [(0, 64), (1, 64), (2, 34)]
        k = 0
        for i in range(3):
            for (lst, v, srd, so, step) in ((tw, 28, 8, 3, 8 * 8192), (tx, 29, 20, 6, 4096)):
                if i >= len(lst): continue
                n = lst[i][1]
                if n < 64: P(f's_mov_b64 exec, {hex((1 << n) - 1)}' if n <= 31 else f's_mov_b32 exec_hi, {(1 << (n - 32)) - 1}')
                P(f'buffer_load_dword v{248 + k}, v{v}, s[{srd}:{srd + 3}], s{so} offen {ntw}'); k += 1
                if n < 64: P('s_mov_b64 exec, -1')
                P(f's_add_u32 s{so}, s{so}, {step}')
        return k
    def ptouch():
        pg = OPT['ptouch']
        P(f"""
        s_lshl_b32 s7, s{sJ}, 9
        s_mul_i32 s6, s{sB}, 165888
        s_add_u32 s8, s62, s7
        s_addc_u32 s9, s63, 0
        s_add_u32 s20, s56, s6
        s_addc_u32 s21, s57, 0
        s_mov_b32 s22, 165888
        v_lshlrev_b32 v28, 16, v{TID}
        s_lshl_b32 s3, s{sWP}, 20
        s_add_u32 s3, s3, {65536 * 4}
        s_mov_b64 exec, 0xffff
        buffer_load_dword v248, v28, s[8:11], s3 offen
        s_mov_b64 exec, 0xf
        s_mov_b32 s3, {65536 * 68}
        s_cmp_eq_u32 s{sWP}, 0
        s_cbranch_scc0 K1_PT1
        buffer_load_dword v249, v28, s[8:11], s3 offen
        buffer_load_dword v250, v28, s[20:23], 0 offen
        s_branch K1_PT2
        K1_PT1:
        buffer_load_dword v249, v28, s[12:15], 0 offen {nk}
        buffer_load_dword v250, v28, s[16:19], 0 offen {nk}
        K1_PT2:
        s_mov_b64 exec, -1
        """)
    TR = OPT['trows']
    NT = (TR + 7) // 8 + 3
    if OPT['ctouch']:
        P(f"""
        s_cmp_eq_u32 s{sW}, 5
        s_cbranch_scc0 K1_CT
        s_getpc_b64 s[6:7]
        K1_PC:
        s_sub_u32 s6, s6, @PCOFF@
        s_subb_u32 s7, s7, 0
        v_lshlrev_b32 v28, 7, v{TID}
        v_mov_b32 v31, s7
        """)
        for k in range(OPT['ctouch']):
            P(f"""
            v_min_u32 v29, @CODELEN@, v28
            v_add_co_u32 v30, vcc, s6, v29
            v_addc_co_u32 v31, vcc, 0, v31, vcc
            global_load_dword v{252 + k % 4}, v[30:31], off
            v_mov_b32 v31, s7
            v_add_u32 v28, 8192, v28
            """)
        P('K1_CT:')
    if OPT['wtouch'] == 1: touches()
    if OPT['ptouch']: ptouch(); NT = 3
    P(lanec)
    if OPT['wtouch'] == 2: touches()
    P(f"""
    v_mul_u32_u24 v18, 3072, v12
    v_add_u32 v18, {STG0 + SB0 * STGS}, v18
    v_add_u32 v{QW[0]}, v17, v18
    v_xor_b32 v{QW[1]}, 64, v{QW[0]}
    v_xor_b32 v{QW[2]}, 0x80, v{QW[0]}
    v_xor_b32 v{QW[3]}, 0xc0, v{QW[0]}
    s_lshl_b32 s6, s{sWP}, 2
    v_add_u32 v18, s6, v15
    v_xor_b32 v18, v18, v16
    v_lshlrev_b32 v18, 4, v18
    v_lshl_add_u32 v18, v20, 3, v18
    v_lshl_add_u32 v18, v10, 8, v18
    v_mul_u32_u24 v19, 3072, v2
    v_add_u32 v19, {STG0 + SB0 * STGS}, v19
    v_add_u32 v{QW9}, v18, v19
    v_xor_b32 v22, v12, v10
    v_lshlrev_b32 v22, 4, v22
    v_lshl_add_u32 v22, v3, 6, v22
    v_mul_u32_u24 v19, 3072, v13
    s_mul_i32 s6, s{sWP}, 6144
    s_add_u32 s6, s6, {STG0 + SB0 * STGS + 2048}
    v_add3_u32 v{QX[0]}, v22, v19, s6
    v_xor_b32 v{QX[1]}, 32, v{QX[0]}
    v_xor_b32 v22, v2, v10
    v_lshlrev_b32 v22, 4, v22
    v_lshl_add_u32 v22, v3, 6, v22
    v_add_u32 v{QX9}, {STG0 + SB0 * STGS + 24576}, v22
    v_lshl_add_u32 v27, v2, 3, v26
    s_lshl_b32 s6, s{sWP}, 6
    s_add_u32 s6, s6, {Q9B}
    v_add_u32 v{S9 + 2}, s6, v27
    """)
    z = list(range(CN9, CN9 + 4)) + list(range(108, 112)) + [L, L9]
    for hd in range(2):
        for a in ACC[hd]: z += list(range(a, a + 16))
        for a in ACC9[hd]: z += list(range(a, a + 4))
    for r in z: P(f'v_mov_b32 v{r}, 0')
    if OPT['fused']:
        P(f"""
        s_cmp_eq_u32 s{sW}, 4
        s_cbranch_scc0 K1_E1
        s_mov_b32 s8, s64
        s_mov_b32 s9, s65
        s_mov_b32 s10, 256
        s_waitcnt vmcnt({NT if OPT['wtouch'] or OPT['ptouch'] else 0})
        v_add_u32 v244, 1, v244
        v_max_u32 v244, 1, v244
        v_mov_b32 v245, 0
        v_mov_b32 v247, v244
        s_mov_b64 exec, 1
        buffer_atomic_cmpswap v[244:245], v246, s[8:11], 0 offen sc0
        s_mov_b64 exec, -1
        K1_E1:
        """)
    P(f's_mov_b32 s{sIB}, {SB0}\ns_barrier')
    if OPT['stamps'] == 1: stamp(1)
    qit = []
    def qmain(kk, hd, dt):
        return (lambda F: [f'ds_read_b64_tr_b16 {vr(F + 2 * j, 2)}, v{QW[dt]} offset:{hd * 12288 + kk * 6144 + j * 1024}' for j in range(2)],
                lambda F: mf32(ACC[hd][dt], F, QB[kk]))
    def q9(hd, t):
        return (lambda F: [f'ds_read_b64_tr_b16 {vr(F + 2 * j, 2)}, v{QW9} offset:{hd * 12288 + t * 32 + j * 1024}' for j in range(2)],
                lambda F: mf16(ACC9[hd][t], F, QB9))
    qit = [qmain(0, hd, dt) for hd in range(2) for dt in range(4)] + [q9(hd, t) for hd in range(2) for t in range(2)] + [qmain(1, hd, dt) for hd in range(2) for dt in range(4)]
    nq = len(QF); NQ = len(qit); QD = OPT['qdelay']
    qrd = lambda i: qit[i % NQ][0](QF[i % nq])
    bheads = [f'ds_read_b128 {vr(QB[0], 4)}, v{QX[0]}', f'ds_read_b128 {vr(QB9, 4)}, v{QX9}']
    upd = [f'v_add_u32 v{r}, s{sDL}, v{r}' for r in QW + QX + [QX9, QW9]]
    P(bheads[0])
    for i in range(nq):
        P.extend(qrd(i))
        if i == 3: P(bheads[1])
    def qmf(i):
        m = qit[i][1](QF[i % nq])
        if i % 2 == 0 and i + 1 < NQ: m += f' ; need {vr(QF[(i + 1) % nq], 4)}'
        return m
    cut = NQ - nq + QD + 1
    P('s_branch K1_QM\nK1_QL:\ns_barrier')
    if OPT['stamps'] == 2: stamp(2, OPT['sq'])
    qpend = [bheads[0]] + [x for jj in range(QD + 1) for x in qrd(jj)]
    for i in range(cut, NQ):
        P(qmf(i))
        qpend += qrd(i + nq)
        if i == NQ - 2: qpend.append(bheads[1])
        n = len(qpend) if i == NQ - 1 else 4
        P.extend(qpend[:n]); qpend = qpend[n:]
    P('K1_QM:')
    if OPT['stamps'] == 1 and not OPT['fused']: stamp(5, 3); stamp(6, 6); stamp(9, 9); stamp(10, 12)
    if OPT['stamps'] == 2: stamp(5, OPT['sq'] - 1); stamp(6, OPT['sq'])
    for i in range(cut):
        P(qmf(i))
        if i + nq < NQ: P.extend(qrd(i + nq))
        if i == 0: P(f'ds_read_b128 {vr(QB[1], 4)}, v{QX[1]}')
        if OPT['qnop'] and i % 2 == 1: P(f's_nop {OPT["qnop"]}')
        if i == 2: P(f's_cmp_eq_u32 s{sIB}, {NSB - 1}\ns_cselect_b32 s{sDL}, {-(NSB - 1) * STGS & 0xffffffff}, {STGS}')
        if i == 4: P(f's_add_u32 s{sIB}, s{sIB}, 1\ns_cmp_eq_u32 s{sIB}, {NSB}\ns_cselect_b32 s{sIB}, 0, s{sIB}')
        if i == 10: P.extend(upd[:4])
        if i == 11:
            P.extend(upd[4:])
            if OPT['stamps'] == 2: stamp(3, OPT['sq'] - 1)
            P(f's_add_u32 s{sCNT}, s{sCNT}, 1\ns_cmp_lt_u32 s{sCNT}, 18')
    P('s_cbranch_scc1 K1_QL\nK1_QE:\ns_barrier')
    for i in range(cut, NQ): P(qmf(i))
    if OPT['stamps'] == 1: stamp(2)
    P(f's_mov_b32 s6, {CSCALE}')
    for hd in range(2):
        for t in range(2):
            a = ACC9[hd][t]
            for i in range(4): P(f'v_mul_f32 v{a + i}, s6, v{a + i}')
            P(f'v_cvt_pk_bf16_f32 v{a}, v{a}, v{a + 1}\nv_cvt_pk_bf16_f32 v{a + 1}, v{a + 2}, v{a + 3}')
            P(f'ds_write_b64 v{S9 + 2}, {vr(a, 2)} offset:{hd * 4352 + t * 32}')
    for dt in [0, 1, 2, 3]:
        a = ACC[0][dt]
        for i in range(16): P(f'v_mul_f32 v{a + i}, s6, v{a + i}')
        for hf in range(2):
            for i in range(4): P(f'v_cvt_pk_bf16_f32 v{a + 8 * hf + i}, v{a + 8 * hf + 2 * i}, v{a + 8 * hf + 2 * i + 1}')
            P(f'ds_write_b128 v{S9 + 1}, {vr(a + 8 * hf, 4)} offset:{(2 * dt + hf) * 1024}')
    P('s_waitcnt vmcnt(0)')
    if OPT['fused']:
        P(f"""
        s_cmp_eq_u32 s{sW}, 4
        s_cbranch_scc0 K1_E2
        s_waitcnt vmcnt(0)
        v_cmp_eq_u32 vcc, 0, v244
        v_mov_b32 v246, {Q9B + 8704}
        s_mov_b64 exec, 1
        v_cndmask_b32 v244, v244, v247, vcc
        ds_write_b32 v246, v244
        s_getreg_b32 s3, hwreg(HW_REG_XCC_ID, 0, 4)
        v_lshl_add_u32 v245, v244, 4, s3
        s_and_b32 s3, s2, 7
        s_lshl_b32 s3, s3, 3
        s_add_u32 s3, s3, s{sB}
        s_lshl_b32 s3, s3, 5
        s_and_b32 s7, s{sJ}, 3
        s_add_u32 s3, s3, s7
        s_lshl_b32 s3, s3, 2
        v_mov_b32 v246, s3
        buffer_store_dword v245, v246, s[52:55], 0 offen offset:32 sc1
        s_mov_b64 exec, -1
        K1_E2:
        """)
    P(loopinit); P(narrow)
    P('s_barrier')
    P(getE)
    for kk in range(4): P(f'ds_read_b128 {vr(Q9 + 4 * kk, 4)}, v{S9} offset:{kk * 64}')
    for i in range(16): P(f'v_mul_f32 v{ACC[1][0] + i}, s6, v{ACC[1][0] + i}')
    P('s_barrier')
    P(getE2)
    for dt in range(4):
        a = ACC[1][dt]
        if dt:
            for i in range(16): P(f'v_mul_f32 v{a + i}, s6, v{a + i}')
        for i in range(8): P(f'v_cvt_pk_bf16_f32 v{Q + dt * 8 + i}, v{a + 2 * i}, v{a + 2 * i + 1}')
    for r in list(range(O, O + 64)) + list(range(CN, CN + 12)) + list(range(O9, O9 + 32)): P(f'v_mov_b32 v{r}, 0')
    P('s_barrier\nK1_HEAD:' if OPT['nbar'] == 2 else 'K1_HEAD:')

    def dma_sites(vo, srd, so, mb):
        out = []
        for n in range(4):
            g = [f's_add_u32 m0, s{mb}, s{sMW}', 's_nop 0'] if n == 0 else []
            g.append(f'buffer_load_dwordx4 v{vo}, s[{srd}:{srd + 3}], s{so} offen offset:{n * 1024} {nk} lds')
            if n == 3: g += [f's_add_u32 s{so}, s{so}, 16384', f's_and_b32 s{so}, s{so}, 0x1ffff']
            out.append(g)
        return out
    dmaV = dma_sites(VOV, 16, sSV, sIS); dmaK = dma_sites(VOK, 12, sSK, sIK)
    pre = OPT['opre'] == 1
    book = f"""s_cmp_lt_u32 s{sCNT}, {8 if pre else 7}
    s_cselect_b32 s{sIS}, s{sKP}, 0x30000
    s_add_u32 s{sKP}, s{sKP}, 65536
    s_cmp_ge_u32 s{sKP}, 163840
    s_cselect_b32 s3, 163840, 0
    s_sub_u32 s{sKP}, s{sKP}, s3
    s_sub_u32 s{sDK}, 65536, s3
    s_cmp_lt_u32 s{sCNT}, 5
    s_cselect_b32 s{sIK}, s{sVP}, 0x30000
    s_add_u32 s{sVP}, s{sVP}, 65536
    s_cmp_ge_u32 s{sVP}, 163840
    s_cselect_b32 s3, 163840, 0
    s_sub_u32 s{sVP}, s{sVP}, s3
    s_sub_u32 s{sDV}, 65536, s3""".split('\n')
    if OPT['nbar'] == 1:
        book = f"""s_mov_b32 s{sIS}, s{sKP}
    s_nop 0
    s_add_u32 s{sKP}, s{sKP}, 65536
    s_cmp_ge_u32 s{sKP}, 163840
    s_cselect_b32 s3, 163840, 0
    s_sub_u32 s{sKP}, s{sKP}, s3
    s_sub_u32 s{sDK}, 65536, s3
    s_cmp_lt_u32 s{sCNT}, 6
    s_cselect_b32 s{sIK}, s33, 0x30000
    s_mov_b32 s33, s{sVP}
    s_add_u32 s{sVP}, s{sVP}, 65536
    s_cmp_ge_u32 s{sVP}, 163840
    s_cselect_b32 s3, 163840, 0
    s_sub_u32 s{sVP}, s{sVP}, s3
    s_sub_u32 s{sDV}, 65536, s3""".split('\n')
        book.remove('    s_nop 0'); book.insert(6, 's_nop 0')
    book2 = f"""s_cmp_eq_u32 s{sCNT}, 6
    s_cselect_b32 s{sIK}, s6, s{sIK}
    s_cselect_b32 s12, s56, s12
    s_cselect_b32 s13, s57, s13
    s_cselect_b32 s14, 20480, s14
    s_cselect_b32 s{sSK}, 0, s{sSK}
    s_cmp_eq_u32 s{sCNT}, 7
    s_cselect_b32 s16, s56, s16
    s_cselect_b32 s17, s57, s17
    s_cselect_b32 s18, 20480, s18
    s_cselect_b32 s{sSV}, 4096, s{sSV}""".split('\n') if pre else []
    if pre: book.insert(7, f's_mov_b32 s6, s{sVP}')
    vupd = [f'v_add_u32 v{VA + i}, s{sDV}, v{VA + i}' for i in range(4)] + [f'v_add_u32 v{AV9}, s{sDV}, v{AV9}']
    kupd = [f'v_add_u32 v{AK}, s{sDK}, v{AK}', f'v_add_u32 v{AK9}, s{sDK}, v{AK9}']
    def kmain(kk, mt):
        tmp = [T0, T1][kk & 1]
        pre = [f'v_xor_b32 v{tmp}, {kk << 5}, v{AK}'] if (mt == 0 and kk) else []
        ad = tmp if kk else AK
        return dict(rd=lambda F: pre + [f'ds_read_b128 {vr(F, 4)}, v{ad} offset:{mt * 2048}'],
                    mf=lambda F: [mf32(S + 16 * mt, F, Q + 4 * kk, CN if kk == 0 else None)], w=32)
    def k9(kk):
        pre = [f'v_xor_b32 v{X0}, {kk << 6}, v{AK9}'] if kk else []
        ad = X0 if kk else AK9
        return dict(rd=lambda F: pre + [f'ds_read_b128 {vr(F, 4)}, v{ad}'],
                    mf=lambda F: [mf16(S9, F, Q9 + 4 * kk, CN9 if kk == 0 else None)], w=16)
    def vmain(ks, dt):
        mt, u = ks >> 1, ks & 1
        return dict(rd=lambda F: [f'ds_read_b64_tr_b16 {vr(F + 2 * j, 2)}, v{VA + dt} offset:{u * 8192 + j * 4096 + mt * 2048}' for j in range(2)],
                    mf=lambda F: [mf32(O + 16 * dt, F, PP + 4 * ks)], w=32)
    def v9(pp):
        pre = [f'v_xor_b32 v{X1}, {pp << 6}, v{AV9}'] if pp else []
        ad = X1 if pp else AV9
        return dict(rd=lambda F: pre + [f'ds_read_b64_tr_b16 {vr(F + 2 * j, 2)}, v{ad} offset:{32 * j}' for j in range(2)],
                    mf=lambda F: [mf16h(O9 + 4 * (2 * pp + j), F + 2 * j, P9) for j in range(2)], w=32)
    itA = []
    for kk in range(8):
        itA += [kmain(kk, 0), kmain(kk, 1)]
        if 1 <= kk <= 4: itA.append(k9(kk - 1))
    itC = []
    for dt in range(4): itC += [vmain(0, dt), v9(dt)]
    for ks in range(1, 4): itC += [vmain(ks, dt) for dt in range(4)]
    lastP = {0: 6, 1: 11, 2: 15, 3: 19, 9: 7}
    nb = len(FB); items = itA + itC; N = len(items); nA = len(itA)
    assert N % nb == 0 and nA % nb == 0
    RD = lambda i: items[i % N]['rd'](FB[i % nb])
    DL = OPT['bdelay']
    def MF(i, pair=True):
        m = items[i]['mf'](FB[i % nb])
        if pair and OPT['pairw'] and i % 2 == 0 and (i + 1) % nA != 0: m[0] += f' ; need {vr(FB[(i + 1) % nb], 4)}'
        return m
    def sync(wait='vmcnt(12)'): return [f's_waitcnt {wait}', 's_barrier']
    def gsync(lbl, group0, wait):
        return [f's_cmp_lt_u32 s{sW}, 4', f's_cbranch_scc{0 if group0 else 1} {lbl}', f's_waitcnt {wait}', 's_barrier', f'{lbl}:']
    DS = OPT['dstep']
    mx = [f'v_max3_f32 v{T1}, v{S9}, v{S9 + 1}, v{S9 + 2}', f'v_max_f32 v{T1}, v{T1}, v{S9 + 3}', f'v_max3_f32 v{T0}, v{S}, v{S + 1}, v{S + 2}']
    mx += [f'v_max3_f32 v{T0}, v{T0}, v{S + 3 + 2 * i}, v{S + 4 + 2 * i}' for i in range(6)]
    mx += [f'v_max3_f32 v{X0}, v{S + 16}, v{S + 17}, v{S + 18}']
    mx += [f'v_max3_f32 v{X0}, v{X0}, v{S + 19 + 2 * i}, v{S + 20 + 2 * i}' for i in range(6)]
    mx += [f'v_max3_f32 v{X0}, v{X0}, v{S + 15}, v{S + 31}', f'v_max_f32 v{T0}, v{T0}, v{X0}', f'v_max_f32 v{X0}, v{T0}, v{T1}', f'v_cmp_lt_f32 vcc, s{sT}, v{X0}']
    fill = []
    for ks in range(4):
        b = S + 8 * ks
        for i in range(0, 8, 2):
            fill += [(0, f'v_exp_f32 v{b + i}, v{b + i}'), (0, f'v_exp_f32 v{b + i + 1}, v{b + i + 1}')]
            if i: fill += [(0, f'v_add_f32 v{L}, v{L}, v{b + i - 2}'), (0, f'v_add_f32 v{L}, v{L}, v{b + i - 1}')]
        if ks == 0: fill += [(0, f'v_exp_f32 v{S9 + i}, v{S9 + i}') for i in range(4)]
        fill += [(0, f'v_add_f32 v{L}, v{L}, v{b + 6}'), (0, f'v_add_f32 v{L}, v{L}, v{b + 7}')]
        if ks == 0: fill += [(0, f'v_add_f32 v{L9}, v{L9}, v{S9 + i}') for i in range(4)]
        fill += [(lastP[ks], f'v_cvt_pk_bf16_f32 v{PP + 4 * ks + i}, v{b + 2 * i}, v{b + 2 * i + 1}') for i in range(4)]
        if ks == 0: fill += [(lastP[9], f'v_cvt_pk_bf16_f32 v{P9 + i}, v{S9 + 2 * i}, v{S9 + 2 * i + 1}') for i in range(2)]
    wosrd = f"""
    s_and_b32 s6, s2, 3
    s_mul_i32 s6, s6, {1024 * 1152}
    s_add_u32 s8, s100, s6
    s_addc_u32 s9, s101, 0
    s_sub_u32 s8, s8, 3072
    s_subb_u32 s9, s9, 0
    s_sub_u32 s10, {4096 * 1152 + 3072}, s6
    s_mov_b32 s11, 0x20000
    """
    def wotouch(drop):
        d1, d2, sfx = ('', '', 'lds') if drop else (f'v{Q + 1}, ', f'v{Q + 2}, ', '')
        va = X0 if drop else Q
        return f"""
    s_lshr_b32 s6, s2, 3
    s_lshl_b32 s6, s6, 3
    s_add_u32 s6, s6, s{sW}
    s_mul_i32 s6, s6, {36 * 128}
    s_add_u32 s6, s6, 3072
    {f's_add_u32 m0, s{sIS}, s{sMW}' if drop else ''}
    v_lshlrev_b32 v{va}, 6, v{TID}
    buffer_load_dword {d1}v{va}, s[8:11], s6 offen {OPT['nt_wo']} {sfx}
    s_add_u32 s6, s6, 4096
    s_mov_b64 exec, 0xff
    buffer_load_dword {d2}v{va}, s[8:11], s6 offen {OPT['nt_wo']} {sfx}
    s_mov_b64 exec, -1
    """
    if OPT['wot'] >= 2: P(wosrd)
    if OPT['opre'] == 1: P(obase)
    if OPT['opre'] >= 2:
        P(f"""
        s_lshl_b32 s6, s{sBR}, 3
        s_add_u32 s6, s6, s{sB}
        s_mul_i32 s6, s6, 1179648
        s_add_u32 s56, s66, s6
        s_addc_u32 s57, s67, 0
        s_mov_b32 s58, 1179648
        s_mov_b32 s59, 0x20000
        """)
    opre2 = f"""
    s_cmp_lg_u32 s{sCNT}, {OPT['opre']}
    s_cbranch_scc1 K1_OP
    s_sub_u32 s6, s{sKP}, s{sDK}
    s_add_u32 m0, s6, s{sMW}
    s_lshl_b32 s6, s{sJ}, 1
    s_add_u32 s6, s6, s{sP}
    s_lshl_b32 s7, s6, 13
    s_lshl_b32 s3, s{sWP}, 18
    s_add_u32 s7, s7, s3
    v_lshlrev_b32 v{X0}, 7, v{TID}
    buffer_load_dword v{X0}, s[56:59], s7 offen lds
    s_lshl_b32 s6, s6, 12
    s_lshl_b32 s7, s{sWP}, 10
    s_add_u32 s6, s6, s7
    s_add_u32 s6, s6, {1 << 20}
    s_mov_b64 exec, 0xff
    buffer_load_dword v{X0}, s[56:59], s6 offen lds
    s_mov_b64 exec, -1
    K1_OP:
    """
    if OPT['wot'] == 2: P(wotouch(True))
    for i in range(nb): P.extend(RD(i))
    if OPT['stamps'] == 1: stamp(7)
    for i in range(nA):
        P.extend(MF(i))
        if i + nb < nA: P.extend(RD(i + nb))
        if i + nb - nA == DL: P.extend(sync('vmcnt(63)') if OPT['nbar'] == 2 else gsync('K1_Y0', False, 'vmcnt(63)'))
        if i in (1, 3, 5, 7): P.extend(dmaV[(i - 1) // 2])
    if OPT['nbar'] == 1: P(f's_mov_b32 s{sIS}, 0x30000\ns_sub_u32 s{sSV}, s{sSV}, 16384\ns_and_b32 s{sSV}, s{sSV}, 0x1ffff')
    if OPT['pa'] != OPT['pc']: P(f's_setprio {OPT["pc"]}')
    P.extend(kupd + mx[:-1]); P('s_branch K1_RARE1\nK1_CPB:')
    P(f's_mov_b32 s{sRARE}, 0')
    ktail = [q for q in range(4) if DL + q * DS < nb]
    for i, (_, t) in enumerate(fill):
        P(t)
        if i == len(fill) - 12:
            P.extend(sync(f'vmcnt({X1N})') if OPT['nbar'] == 2 else gsync('K1_X1', True, f'vmcnt({X1N})'))
            for jj in range(nb): P.extend(RD(jj))
            for q in ktail if OPT['nbar'] == 2 else []: P.extend(dmaK[q])
    P('K1_TOP:')
    if OPT['ti']: stamp(5, 1); stamp(6, 2); stamp(9, 3); stamp(10, 5); stamp(11, 7)
    if OPT['stamps'] == 1 and not OPT['fused']: stamp(11, 2); stamp(8, 5)
    if OPT['pa'] != OPT['pc']: P(f's_setprio {OPT["pa"]}')
    if OPT['stamps'] == 2: stamp(7, 3); stamp(11, 4)
    def sites(pos, dm):
        return [x for q in range(4) if q * DS == pos for x in dm[q]]
    for i in range(nA):
        P.extend(MF(i))
        j = i + nb - nA
        if j < 0: P.extend(RD(i + nb))
        elif j == DL:
            if OPT['stamps'] == 2: stamp(9, 3)
            P.extend(sync() if OPT['nbar'] == 2 else gsync('K1_Y', False, 'vmcnt(4)'))
            if OPT['stamps'] == 2: stamp(1, 3)
            for jj in range(DL + 1): P.extend(RD(nA + jj))
        elif j > DL: P.extend(RD(i + nb))
        P.extend(sites(i + nb - DL, dmaK) if OPT['nbar'] == 2 else sites(i, dmaV))
        if j == DL and OPT['wot'] >= 3: P(f's_cmp_lg_u32 s{sCNT}, {OPT["wot"]}\ns_cbranch_scc1 K1_WT' + wotouch(True) + 'K1_WT:')
        if j == DL and OPT['opre'] >= 2: P(opre2)
        if j >= DL and OPT['nbar'] == 2: P.extend(sites(j - DL, dmaV))
        if i == 2: P.extend(vupd)
        if OPT['anop'] and i % 2 == 1: P(f's_nop {OPT["anop"]}')
        if i == 9: P.extend(book[:7])
        if i == 11: P.extend(book[7:])
        if i == 13: P.extend(book2)
    if OPT['stamps'] == 2: stamp(8, 3)
    if OPT['pa'] != OPT['pc']: P(f's_setprio {OPT["pc"]}')
    cost = lambda t: 2 if 'exp' in t else (0 if 'BR' in t else 1)
    full = [(0, t) for t in kupd + mx] + [(0, 'BR')] + fill
    tot = sum(cost(t) for _, t in full)
    pend = list(full); acc = 0; cw = 0; wsum = sum(it['w'] for it in itC)
    for c in range(len(itC)):
        i = nA + c
        P.extend(MF(i)); cw += itC[c]['w']
        j = i + nb - N
        if j < 0: P.extend(RD(i + nb))
        elif j == DL:
            if OPT['stamps'] == 2: stamp(4, 3)
            P.extend(sync() if OPT['nbar'] == 2 else gsync('K1_X', True, 'vmcnt(4)'))
            if OPT['stamps'] == 2: stamp(12, 3)
            for jj in range(DL + 1): P.extend(RD(jj))
        elif j > DL: P.extend(RD(i + nb))
        P.extend(sites(c + nb - DL, dmaV) if OPT['nbar'] == 2 else sites(c, dmaK))
        if j >= DL and OPT['nbar'] == 2: P.extend(sites(j - DL, dmaK))
        goal = tot * min(1.0, cw / (wsum - 32))
        q = 0
        while q < len(pend) and acc + cost(pend[q][1]) <= goal + 1:
            if pend[q][0] > c: q += 1; continue
            acc += cost(pend[q][1]); t = pend.pop(q)[1]
            P('s_cbranch_vccnz K1_RARE1\nK1_R1B:' if t == 'BR' else t)
    for _, t in pend: P(t)
    if OPT['stamps'] == 2: stamp(10, 3)
    P(f"""
    s_add_u32 s{sCNT}, s{sCNT}, 1
    s_add_u32 s3, s{sCNT}, s{sRARE}
    s_cmp_lt_u32 s3, 8
    s_cbranch_scc1 K1_TOP
    s_cmp_lg_u32 s{sRARE}, 0
    s_cbranch_scc1 K1_RARE2
    K1_NEXT:
    s_cmp_lt_u32 s{sCNT}, 8
    s_cbranch_scc1 K1_TOP
    s_branch K1_PVO
    """)
    P(f"""
    K1_RARE1:
    v_mov_b32 v{X0}, v{T0}
    v_mov_b32 v{X1}, v{T1}
    v_permlane32_swap_b32 v{T0}, v{X0}
    v_permlane32_swap_b32 v{T1}, v{X1}
    v_max3_f32 v{T0}, v{T0}, v{X0}, s{sCL}
    v_max_f32 v{T1}, v{T1}, v{X1}
    v_mov_b32 v{X1}, v{T1}
    v_max_f32 v{AL}, 0, v{T0}
    v_permlane16_swap_b32 v{T1}, v{X1}
    v_max3_f32 v{T1}, v{T1}, v{X1}, s{sCL}
    v_max_f32 v{AL9}, 0, v{T1}
    v_exp_f32 v{AL}, -v{AL}
    v_exp_f32 v{AL9}, -v{AL9}
    """)
    for i in range(32): P(f'v_sub_f32 v{S + i}, v{S + i}, v{T0}')
    for i in range(16): P(f'v_sub_f32 v{CN + i}, v{CN + i}, v{T0}')
    for i in range(4): P(f'v_sub_f32 v{S9 + i}, v{S9 + i}, v{T1}')
    for i in range(4): P(f'v_sub_f32 v{CN9 + i}, v{CN9 + i}, v{T1}')
    P(f"""
    v_mul_f32 v{L}, v{L}, v{AL}
    v_mul_f32 v{L9}, v{L9}, v{AL9}
    s_mov_b32 s{sT}, {f2u(8.0)}
    s_cmp_lg_u32 s{sCL}, 0
    s_mov_b32 s{sCL}, 0
    s_mov_b32 s{sRARE}, 8
    s_cbranch_scc1 K1_CPB
    s_branch K1_R1B
    K1_RARE2:
    """)
    for i in range(64): P(f'v_mul_f32 v{O + i}, v{O + i}, v{AL}')
    for i in range(32): P(f'v_mul_f32 v{O9 + i}, v{O9 + i}, v{AL9}')
    P(f"""
    s_mov_b32 s{sRARE}, 0
    s_branch K1_NEXT
    K1_PVO:
    """)
    if OPT['stamps'] == 1: stamp(3)
    P.extend(vupd)
    osrd = f'''
    s_lshl_b32 s6, s{sBR}, 3
    s_add_u32 s6, s6, s{sB}
    s_mul_i32 s6, s6, 1179648
    s_add_u32 s20, s66, s6
    s_addc_u32 s21, s67, 0
    s_mov_b32 s22, 1179648
    s_mov_b32 s23, 0x20000
    s_lshl_b32 s6, s{sJ}, 1
    s_add_u32 s6, s6, s{sP}
    s_lshl_b32 s7, s6, 13
    s_lshl_b32 s{sSK}, s{sWP}, 18
    s_add_u32 s{sSK}, s{sSK}, s7
    s_add_u32 s{sSV}, s{sSK}, 4096
    s_lshl_b32 s{sIS}, s6, 12
    s_lshl_b32 s7, s{sWP}, 10
    s_add_u32 s{sIS}, s{sIS}, s7
    s_add_u32 s{sIS}, s{sIS}, {1 << 20}
'''
    if OPT['opv']:
        P(osrd + f'''
        v_lshlrev_b32 v{Q}, 7, v{TID}
        buffer_load_dword v{Q + 1}, v{Q}, s[20:23], s{sSK} offen
        s_mov_b64 exec, 0xff
        buffer_load_dword v{Q + 2}, v{Q}, s[20:23], s{sIS} offen
        s_mov_b64 exec, -1
        ''')
    P(f's_and_b32 s{sKP}, s2, 3')
    if OPT['wot'] == 1: P(wosrd + wotouch(False))
    elif OPT['wot'] == 0: P(wosrd)
    P.extend(sync(f'vmcnt({2 * (OPT["wot"] == 1) + 2 * OPT["opv"]})') if OPT['nbar'] == 2 else gsync('K1_Y8', False, f'vmcnt({2 * (OPT["wot"] == 1) + 2 * OPT["opv"]})'))
    if OPT['fused'] and OPT['loc']:
        P(f"""
        s_cmp_eq_u32 s{sWP}, 0
        s_cbranch_scc0 K1_XL
        s_and_b32 s3, s2, 7
        s_lshl_b32 s3, s3, 3
        s_add_u32 s3, s3, s{sB}
        s_lshl_b32 s3, s3, 7
        v_lshlrev_b32 v{Q + 3}, 2, v{TID}
        s_mov_b64 exec, 15
        s_add_u32 s7, s3, 16384
        buffer_load_dword v{Q + 2}, v{Q + 3}, s[52:55], s7 offen nt
        buffer_load_dword v{Q + 3}, v{Q + 3}, s[52:55], s3 offen offset:32 sc1
        s_mov_b64 exec, -1
        K1_XL:
        """)
    for i in range(nb): P.extend(RD(nA + i))
    groups = [MF(nA + c) + (RD(nA + c + nb) if c + nb < len(itC) else []) for c in range(len(itC))]
    epi = ([] if OPT['opv'] else osrd.strip().split('\n')) + f'''
    v_mov_b32 v{T0}, v{L}
    v_mov_b32 v{T1}, v{L9}
    v_lshlrev_b32 v{VOK}, 4, v{TID}
    v_permlane32_swap_b32 v{L}, v{T0}
    v_permlane32_swap_b32 v{L9}, v{T1}
    v_add_f32 v{L}, v{L}, v{T0}
    v_add_f32 v{L9}, v{L9}, v{T1}
    v_mov_b32 v{T1}, v{L9}
    v_rcp_f32 v{AL}, v{L}
    v_permlane16_swap_b32 v{L9}, v{T1}
    v_add_f32 v{CN9 + 1}, v{L9}, v{T1}
    '''.strip().split('\n')
    epi += f"""s_cmp_lt_u32 s{sW}, 4
    s_cselect_b32 s45, 118784, 65536
    s_cselect_b32 s46, 135168, 155648
    s_lshl_b32 s7, s{sWP}, 11
    s_add_u32 s6, s45, s7
    v_add_u32 v116, s6, v{VOK}
    s_add_u32 s6, s46, s7
    v_add_u32 v117, s6, v{VOK}
    v_and_b32 v119, 15, v{TID}
    v_lshlrev_b32 v119, 3, v119
    s_lshl_b32 s7, s{sW}, 7
    s_add_u32 s7, s7, 20480
    v_add_u32 v118, s7, v119""".split('\n')
    wr9 = [f'ds_write_b64 v118, {vr(CN9, 2)}'] + [f'ds_write_b128 v{116 if sl < 3 else 117}, {vr(O9 + 8 * sl + 4 * t, 4)} offset:{(sl - 1) * 8192 * (sl < 3) + t * 1024}' for sl in range(1, 4) for t in range(2)]
    n1 = len(epi)
    epi += phase2(P, stamp, locals(), 0)
    epi += f"""s_mul_i32 s6, s{sP}, 36864
    s_lshl_b32 s7, s{sWP}, 12
    s_add_u32 s6, s6, s7
    s_add_u32 s6, s6, 81920
    v_add_u32 v{AL9}, s6, v{VOK}
    s_lshl_b32 s6, s{sW}, 7
    s_add_u32 s6, s6, 20480
    v_add_u32 v{S + 28}, s6, v119
    v_xor_b32 v{S + 29}, 0x80, v{S + 28}
    v_xor_b32 v{S + 30}, 0x100, v{S + 28}
    v_xor_b32 v{S + 31}, 0x180, v{S + 28}
    s_xor_b32 s7, s{sWP}, 1
    s_lshl_b32 s7, s7, 11
    s_add_u32 s7, s7, s45
    v_add_u32 v{S + 25}, s7, v{VOK}
    s_xor_b32 s7, s{sWP}, 2
    s_lshl_b32 s7, s7, 11
    s_add_u32 s7, s7, s45
    s_add_u32 s7, s7, 8192
    v_add_u32 v{S + 26}, s7, v{VOK}
    s_xor_b32 s7, s{sWP}, 3
    s_lshl_b32 s7, s7, 11
    s_add_u32 s7, s7, s46
    v_add_u32 v{S + 27}, s7, v{VOK}
    v_lshrrev_b32 v131, 5, v{TID}
    v_bfe_u32 v132, v{TID}, 4, 1
    v_lshlrev_b32 v137, 1, v119
    v_lshl_add_u32 v137, v131, 8, v137
    v_lshl_add_u32 v137, v132, 3, v137
    s_lshr_b32 s6, s{sW}, 1
    s_mul_i32 s6, s6, 18432
    s_and_b32 s7, s{sW}, 1
    s_lshl_b32 s7, s7, 10
    s_add_u32 s6, s6, s7
    s_add_u32 s6, s6, {81920 + 16384}
    v_add_u32 v138, s6, v137""".split('\n')
    epi = [e.strip() for e in epi]
    per = -(-len(epi) // len(groups))
    i = 0
    for gi, g in enumerate(groups):
        P.extend(g)
        j = min(len(epi), i + per)
        while j < len(epi) and (epi[j].split()[0] in ('s_addc_u32', 's_cselect_b64', 's_cselect_b32', 'v_cndmask_b32')): j += 1
        P.extend(epi[i:j]); i = j
        if gi >= 10 and wr9:
            assert i >= n1
            P(wr9.pop(0))
    P.extend(epi[i:]); P.extend(wr9)
    ST = CN; PT = [None, Q9, Q9 + 8, PP]; R9 = PP + 8
    P('s_barrier')
    for w in range(4): P(f'ds_read_b64 {vr(ST + 2 * w, 2)}, v{S + 28 + w}')
    for w in range(1, 4):
        for t in range(2): P(f'ds_read_b128 {vr(PT[w] + 4 * t, 4)}, v{S + 24 + w} offset:{t * 1024}')
    P(f's_cmp_lt_u32 s{sW}, 4\ns_cbranch_scc0 K1_Z')
    phase2(P, stamp, locals(), 3)
    P('s_barrier\nK1_Z:')
    if OPT['stamps'] == 1: stamp(4)
    os_ = '' if OPT['loc'] else 'sc1'
    mg = [f'v_min3_f32 v{ST + 8}, v{ST}, v{ST + 2}, v{ST + 4}', f'v_min_f32 v{ST + 8}, v{ST + 8}, v{ST + 6}']
    mg += [f'v_sub_f32 v{ST + 2 * w}, v{ST + 8}, v{ST + 2 * w}' for w in range(4)]
    mg += [f'v_exp_f32 v{ST + 2 * w}, v{ST + 2 * w}' for w in range(4)]
    mg += [f'v_mul_f32 v{ST + 9}, v{ST}, v{ST + 1}'] + [f'v_fmac_f32 v{ST + 9}, v{ST + 2 * w}, v{ST + 2 * w + 1}' for w in range(1, 4)]
    mg += [f'v_rcp_f32 v{ST + 9}, v{ST + 9}']
    mg += [f'v_mul_f32 v{R9 + i}, v{O9 + i}, v{ST}' for i in range(8)]
    for w in range(1, 4): mg += [f'v_fmac_f32 v{R9 + i}, v{PT[w] + i}, v{ST + 2 * w}' for i in range(8)]
    mg += [f'v_mul_f32 v{R9 + i}, v{R9 + i}, v{ST + 9}' for i in range(8)]
    for t in range(2):
        mg += [f'v_cvt_pk_bf16_f32 v{ST + 10 + 2 * t}, v{R9 + 4 * t}, v{R9 + 4 * t + 1}', f'v_cvt_pk_bf16_f32 v{ST + 11 + 2 * t}, v{R9 + 4 * t + 2}, v{R9 + 4 * t + 3}',
               f'ds_write_b64 v138, {vr(ST + 10 + 2 * t, 2)} offset:{t * 512}', f'buffer_store_dwordx2 {vr(ST + 10 + 2 * t, 2)}, v137, s[20:23], s{sIS} offen offset:{t * 512} {os_}']
    for dt in range(4):
        for i in range(16): P(f'v_mul_f32 v{O + 16 * dt + i}, v{O + 16 * dt + i}, v{AL}')
        for hf in range(2):
            d = S + 8 * dt + 4 * hf
            for i in range(4): P(f'v_cvt_pk_bf16_f32 v{d + i}, v{O + 16 * dt + 8 * hf + 2 * i}, v{O + 16 * dt + 8 * hf + 2 * i + 1}')
            ks = 2 * dt + hf
            P(f'ds_write_b128 v{AL9}, {vr(d, 4)} offset:{(ks >> 2) * 18432 + (ks & 3) * 1024}')
            if not OPT['lates']: P(f'buffer_store_dwordx4 {vr(d, 4)}, v{VOK}, s[20:23], s{sSK if ks < 4 else sSV} offen offset:{(ks & 3) * 1024} {os_}')
        if dt == 0: P.extend(mg)
    if OPT['lates']:
        for ks in range(8): P(f'buffer_store_dwordx4 {vr(S + 4 * ks, 4)}, v{VOK}, s[20:23], s{sSK if ks < 4 else sSV} offen offset:{(ks & 3) * 1024} {os_}')
    if OPT['fused']: phase2(P, stamp, locals(), 2)
    if OPT['stamps']:
        P('K1_STAMPS:' if OPT['fused'] else 's_waitcnt vmcnt(0)')
        if not OPT['fused']: stamp(4)
        P(f'''
        s_waitcnt lgkmcnt(0)
        s_add_u32 s20, s66, {WS_STAMP}
        s_addc_u32 s21, s67, 0
        s_mov_b32 s22, 0x100000
        s_mov_b32 s23, 0x20000
        s_lshl_b32 s6, s2, 3
        s_add_u32 s6, s6, s{sW}
        s_lshl_b32 s6, s6, 7
        v_mov_b32 v2, s6
        s_mov_b64 exec, 1
        ''')
        if OPT['probe'] >= 0:
            k = OPT['probe']
            lo, base = (98, 96) if k == 99 else (70 + 2 * k, 70)
            P(f"""
            s_cmp_lg_u32 s2, {OPT['pwg']}
            s_cbranch_scc1 K1_END
            s_cmp_lg_u32 s{sW}, {OPT['pw']}
            s_cbranch_scc1 K1_END
            s_sub_u32 s6, s{lo}, s{base}
            s_mul_i32 s6, s6, {1 if k == 99 else 10}
            s_memrealtime s[72:73]
            s_waitcnt lgkmcnt(0)
            s_add_u32 s6, s6, s72
            {'s_add_u32 s6, s70, 30000' if k == 0 else ''}
            K1_SPIN:
            s_memrealtime s[72:73]
            s_waitcnt lgkmcnt(0)
            s_sub_u32 s7, s72, s6
            s_cmp_lt_i32 s7, 0
            s_cbranch_scc1 K1_SPIN
            s_branch K1_END
            """)
        if OPT['dbgst']:
            P('s_mov_b32 s20, s64\ns_mov_b32 s21, s65\ns_mov_b32 s22, 256\nv_mov_b32 v2, 0\ns_not_b32 s70, s70')
            for i, k in enumerate([0, 1, 2, 7, 3, 4, 5, 6, 9, 10, 11, 8]):
                P(f'v_mov_b32 v4, s{70 + 2 * k}\nbuffer_atomic_umax v4, v2, s[20:23], 0 offen offset:{4 + 4 * i}\ns_nop 1')
        for k in range(0 if OPT['dbgst'] else 15):
            P(f'v_mov_b32 v4, s{70 + 2 * k}\nv_mov_b32 v5, s{71 + 2 * k}\nbuffer_store_dwordx2 v[4:5], v2, s[20:23], 0 offen offset:{8 * k}\ns_nop 1')
    P('K1_END:\ns_endpgm')
    a0 = [i for i, x in enumerate(P.ins) if x.text == 'K1_G1:'][0]; a1 = [i for i, x in enumerate(P.ins) if x.text == 'K1_PVO:'][0]
    keep = []; dcount = [0]
    kt = [i for i, x in enumerate(P.ins) if x.text == 'K1_TOP:'][0]
    kp0 = [i for i, x in enumerate(P.ins) if x.text == 'K1_G1:'][0]; kp1 = [i for i, x in enumerate(P.ins) if x.text == 'K1_QL:'][0]
    for i, x in enumerate(P.ins):
        if a0 < i < a1:
            if OPT['nodma'] and x.dma and not (kp0 < i < kp1): continue
            if OPT['nobar'] and x.kind == 'barrier': continue
            if OPT['noexp'] and x.kind in ('valu', 'trans') and ('exp' in x.text or 'v_add_f32' in x.text or 'cvt_pk' in x.text or 'max3' in x.text): continue
            if OPT['nolds'] and x.kind == 'ds_r': continue
            if OPT['diag'] & 1 and i > kt and 'v_add_f32' in x.text: continue
            if OPT['diag'] & 2 and i > kt and 'v_max3' in x.text and 's46' not in x.text: continue
            if OPT['diag'] & 4 and i > kt and x.kind == 'ds_r':
                dcount[0] += 1
                if (dcount[0] // 4) % 2: continue
            if OPT['diag'] & 8 and i > kt and '16x16x16' in x.text: continue
            if OPT['diag'] & 16 and i > kt and 'v_exp' in x.text and '-v' not in x.text:
                x = parse(x.text.replace('v_exp_f32', 'v_mov_b32'))
            if OPT['nomf'] and i > kt and (x.kind in ('mfma', 'ds_r', 'trans') or (x.kind == 'valu' and 'v_cmp' not in x.text)): continue
        keep.append(x)
    P.ins = keep
    return P.finish()

def desc(name, vg, sg=102):
    return f'''.amdhsa_kernel {name}
  .amdhsa_next_free_vgpr {vg}
  .amdhsa_next_free_sgpr {sg}
  .amdhsa_accum_offset {(vg + 3) // 4 * 4}
  .amdhsa_group_segment_fixed_size 0
  .amdhsa_kernarg_size 104
  .amdhsa_user_sgpr_count 2
  .amdhsa_user_sgpr_kernarg_segment_ptr 1
  .amdhsa_system_sgpr_workgroup_id_x 1
  .amdhsa_float_denorm_mode_32 3
.end_amdhsa_kernel
'''

def main():
    ref = open('cdna_kernels/%s.s.ref' % NAME).read().split('\n')
    hdr = [l for l in ref if l.startswith(';') and '@launch' not in l and 'Override launch' not in l and 'grid=ceil' not in l]
    hdr = hdr[:14]
    ks = [('attn_kernel', k1(), 256, '(256,1,1)', '(%d,1,1)' % OPT['blk'], 163840),
          ]
    out = '\n'.join(hdr) + '\n'
    if OPT['fused']:
        ks = [(NAME + '_kernel',) + ks[0][1:]]
        out += f'; @launch grid={ks[0][3]} block={ks[0][4]} lds={ks[0][5]}\n'
    else:
        for n, _, _, g, b, l in ks: out += f'; @launch kernel={n} grid={g} block={b} lds={l}\n'
    out += '.amdgcn_target "amdgcn-amd-amdhsa--gfx950"\n.text\n'
    for n, body, _, _, _, _ in ks:
        out += f'.globl {n}\n.p2align 8\n.type {n},@function\n{n}:\n' + 'K1_START:\n' + body.replace('@CODELEN@', 'K1_END-K1_START').replace('@PCOFF@', 'K1_PC-K1_START').replace('@PC2OFF@', 'K1_QE-K1_PC2').replace('@LEN2@', 'K1_END-K1_QE')
    out += '.section .rodata,"a"\n'
    for n, _, vg, _, _, _ in ks: out += '.p2align 6\n' + desc(n, vg)
    open(sys.argv[1], 'w').write(out)
main()
```

```python
import sys, struct, math
from asmlib import *

NAME = 'concat_heads__mha_block_cached__gqa_block_cached__near_ridge'
def f2u(x): return struct.unpack('<I', struct.pack('<f', x))[0]
CSCALE = f2u(math.log2(math.e) / math.sqrt(128.0))

OPT = dict(nt_kv='nt', nt_w='', nt_x='', ostore='', stamps=0, touch=0, k2nb=3, nt_wo='', nt_o='', nodma=0, nobar=0, noexp=0, nolds=0, prio=0, bdelay=0, blk=512, pa=0, pc=1, pairw=1, qdelay=3, wtouch=0, kvs='000000000000044460a4', nsb=5, dstep=2, trows=15, tlead=0, ptouch=0, tl=0, nopoll=0, ot=-9, opre=0, dyn=0, fb=2, kpre=0, nt_wd='', bh=0, bt=0, btf='', ti=0, d3=0, opv=0, cts=-9, tb='', bs='56789abc', bn=16, diag=0, nbar=1, rot=1, rotx=0, rotp=4, lates=0, qnop=0, anop=0, ctouch=0, sp='01111212111111', ts=-1, npre=3, dist=3, sq=9, fused=1, p2nb=3, wot=1, ld2='', spin=200000, dbgst=0, loc=1, bgwb=0, nomf=0, nokv=0, nost=0, probe=-1, pwg=8, pw=4)
for a in sys.argv[2:]:
    k, v = a.split('=')
    OPT[k] = int(v) if (v.lstrip('-').isdigit() and k not in ('kvs', 'sp', 'bs')) else v

WS_O_BR = 36 * 256 * 1024
WS_PART = 0x1400000
WS_FLAG = 0x3000000
WS_STAMP = 0x4000000

def lanes(P, dst, expr_list):
    for e in expr_list: P(e)

def mf32(d, a, b, c=None):
    return f'v_mfma_f32_32x32x16_bf16 {vr(d, 16)}, {vr(a, 4)}, {vr(b, 4)}, {vr(d if c is None else c, 16)}'
def mf16(d, a, b, c=None):
    return f'v_mfma_f32_16x16x32_bf16 {vr(d, 4)}, {vr(a, 4)}, {vr(b, 4)}, {vr(d if c is None else c, 4)}'
def mf16h(d, a, b):
    return f'v_mfma_f32_16x16x16_bf16 {vr(d, 4)}, {vr(a, 2)}, {vr(b, 2)}, {vr(d, 4)}'


def phase2(P, stamp, env, part):
    sW, sWP, sBR, sE, sKS, TID, sB, sJ = env['sW'], env['sWP'], env['sBR'], env['sE'], env['sKP'], env['TID'], env['sB'], env['sJ']
    NB = 4; WST, OST, OOF = 20480, 18432, 81920
    sJJ, sTID, sCNT, sIB, sDL, sTMP, sSPIN = 56, 58, 30, 36, 37, 48, 44
    sSW, sSO, sMW, sMO, sPW, sPO, sIBW, sNB, sM9, sD2, sS9 = 59, 60, 61, 62, 63, 35, 31, 33, 43, 47, 57
    if OPT['stamps'] != 1: stamp = lambda *a: None
    if OPT['ti']:
        st0 = stamp; stamp = lambda k, *a: st0(k, *a) if k == 8 else None
    sNEED = 38
    VW = [120, 121, 122, 123, 124]; VO, VF, VP = 141, 142, 143
    A0, A1, A90, A91, AB, AB9 = 125, 126, 127, 128, 129, 130
    done = 'K1_STAMPS' if OPT['stamps'] else 'K1_END'
    def poll(lbl, off):
        return f"""
    s_mov_b32 s{sSPIN}, {OPT['spin']}
    {lbl}:
    s_mov_b64 exec, 15
    buffer_load_dword v{VP}, v{VF}, s[52:55], s{off} offen sc1
    s_mov_b64 exec, -1
    s_sub_u32 s{sSPIN}, s{sSPIN}, 1
    s_cbranch_scc1 {lbl}X
    s_waitcnt vmcnt(0)
    v_cmp_eq_u32 vcc, s{sE}, v{VP}
    s_and_b64 s[6:7], vcc, s[{sNEED}:{sNEED + 1}]
    s_cmp_eq_u64 s[6:7], s[{sNEED}:{sNEED + 1}]
    s_cbranch_scc0 {lbl}
    {lbl}X:
    """
    def wb(lbl, first):
        if not OPT['loc']: return ''
        o = ''
        if first: o = f"""
    s_getreg_b32 s3, hwreg(HW_REG_XCC_ID, 0, 4)
    s_lshl_b32 s7, s{sE}, 4
    s_add_u32 s3, s3, s7
    s_waitcnt vmcnt(10)
    v_cmp_eq_u32 vcc, s3, v{env['Q'] + 3}
    s_and_b32 s{sNB}, vcc_lo, 15
    """
        return o + f"""
    s_cmp_eq_u32 s{sNB}, {15 if OPT['loc'] == 1 else 0}
    s_cbranch_scc1 {lbl}
    buffer_wbl2 sc1
    s_waitcnt vmcnt(0)
    {lbl}:
    """
    def issW():
        o = f's_mul_i32 s7, s{sPW}, {64 * 1152}\ns_add_u32 s7, s7, s{sSW}\ns_add_u32 m0, s{sIBW}, s{sMW}\ns_add_u32 s{sPW}, s{sPW}, 1\n'
        for n in range(5):
            if n == 4: o += 's_add_u32 m0, m0, 4096\ns_nop 0\n'
            o += f'buffer_load_dwordx4 v{VW[n]}, s[8:11], s7 offen offset:{(n & 3) * 1024} {OPT["nt_wo"]} lds\n'
        return o + f's_and_b32 s{sPW}, s{sPW}, 15\ns_add_u32 s{sIBW}, s{sIBW}, {WST}\ns_cmp_eq_u32 s{sIBW}, {NB * WST}\ns_cselect_b32 s{sIBW}, 0, s{sIBW}\n'
    def issO():
        o = f's_add_u32 m0, s{sIB}, s{sMO}\ns_lshl_b32 s7, s{sPO}, 12\ns_add_u32 s7, s7, s{sSO}\n'
        for e in range(4): o += f'buffer_load_dwordx4 v{VO}, s[20:23], s7 offen offset:{e * 1024} {OPT["ld2"]} lds\n'
        o += f's_add_u32 m0, s{sIB}, s{sM9}\ns_lshl_b32 s7, s{sPO}, 11\ns_add_u32 s7, s7, s{sS9}\ns_mov_b32 exec_hi, 0\n'
        o += f'buffer_load_dwordx4 v{VO}, s[20:23], s7 offen {OPT["ld2"]} lds\ns_mov_b32 exec_hi, -1\n'
        return o + f's_add_u32 s{sPO}, s{sPO}, 1\ns_and_b32 s{sPO}, s{sPO}, 15\ns_add_u32 s{sIB}, s{sIB}, {OST}\ns_cmp_eq_u32 s{sIB}, {NB * OST}\ns_cselect_b32 s{sIB}, 0, s{sIB}\n'
    if part == 0:
        o = f"""
        s_and_b32 s{sJJ}, s{sJ}, 3
        s_lshl_b32 s{sTID}, s{sBR}, 3
        s_add_u32 s{sTID}, s{sTID}, s{sB}
        s_lshl_b32 s{sTID}, s{sTID}, 2
        s_add_u32 s{sTID}, s{sTID}, s{sJJ}
        s_lshl_b32 s{sPW}, s{sJJ}, 2
        s_add_u32 s{sPO}, s{sPW}, 4
        s_and_b32 s{sPO}, s{sPO}, 15
        s_and_b32 s3, s2, 7
        s_lshl_b32 s3, s3, 3
        s_add_u32 s3, s3, s{sB}
        s_lshl_b32 s{sTMP}, s3, 7
        v_lshlrev_b32 v{VF}, 2, v{TID}
        v_lshlrev_b32 v{VO}, 4, v{TID}
        v_mov_b32 v{VP}, s{sE}
        v_mov_b32 v140, v{TID}
        s_mul_i32 s{sSW}, s{sJJ}, 288
        s_and_b32 s{sSW}, s{sSW}, 0xffc0
        s_mul_i32 s3, s{sWP}, {16 * 1152}
        s_add_u32 s{sSW}, s{sSW}, s3
        s_mul_i32 s{sMW}, s{sWP}, 5120
        s_lshl_b32 s{sMO}, s{sWP}, 12
        s_add_u32 s{sMO}, s{sMO}, {OOF}
        s_lshl_b32 s{sM9}, s{sWP}, 9
        s_lshl_b32 s{sS9}, s{sKS}, 15
        s_add_u32 s{sS9}, s{sS9}, s{sM9}
        s_add_u32 s{sS9}, s{sS9}, {1 << 20}
        s_add_u32 s{sM9}, s{sM9}, {OOF + 16384}
        s_lshl_b32 s{sSO}, s{sKS}, 16
        s_lshl_b32 s3, s{sWP}, 18
        s_add_u32 s{sSO}, s{sSO}, s3
        s_lshl_b32 s3, s{sB}, 2
        s_lshl_b32 s{sNB}, 1, s3
        s_mov_b32 s{sIB}, 0
        s_mov_b32 s{sIBW}, 0
        s_mov_b32 s3, 52429
        """
        for n in range(5):
            o += f"""
        v_add_u32 v131, {64 * n}, v{TID}
        v_mul_lo_u32 v132, s3, v131
        v_lshrrev_b32 v132, 20, v132
        v_mul_u32_u24 v133, 20, v132
        v_sub_u32 v133, v131, v133
        v_bfe_u32 v134, v132, 3, 1
        v_lshlrev_b32 v134, 1, v134
        v_xor_b32 v133, v133, v134
        v_mul_u32_u24 v132, 1152, v132
        v_lshl_add_u32 v132, v133, 4, v132
        v_add_u32 v{VW[n]}, {3072 - (n & 3) * 1024}, v132
        """
        o += f"""
        v_lshrrev_b32 v131, 4, v{TID}
        v_bfe_u32 v132, v{TID}, 2, 2
        v_lshl_add_u32 v132, v131, 3, v132
        v_mul_u32_u24 v132, 320, v132
        v_bfe_u32 v133, v{TID}, 1, 1
        v_lshl_add_u32 v132, v133, 4, v132
        v_and_b32 v133, 1, v{TID}
        v_lshl_add_u32 v132, v133, 3, v132
        v_and_b32 v133, 1, v131
        v_lshl_add_u32 v134, v133, 5, v132
        v_xor_b32 v135, 1, v133
        v_lshl_add_u32 v135, v135, 5, v132
        v_add_u32 v136, 64, v134
        s_bitcmp0_b32 s{sJJ}, 0
        s_cselect_b64 vcc, -1, 0
        s_lshl_b32 s3, s{sWP}, 6
        v_cndmask_b32 v{A0}, v135, v134, vcc
        v_cndmask_b32 v{A1}, v136, v135, vcc
        v_add_u32 v{A90}, s3, v{A0}
        v_add_u32 v{A91}, s3, v{A1}
        v_and_b32 v132, 15, v{TID}
        v_lshlrev_b32 v132, 4, v132
        v_lshrrev_b32 v131, 1, v131
        v_lshl_add_u32 v134, v133, 9, v132
        v_lshl_add_u32 v134, v131, 10, v134
        v_add_u32 v{AB}, s{sMO}, v134
        v_lshl_add_u32 v134, v133, 8, v132
        v_lshl_add_u32 v134, v131, 9, v134
        v_add_u32 v{AB9}, {OOF + 16384}, v134
        """
        return [l.strip() for l in o.split('\n') if l.strip()]
    if part == 3:
        P(issW()); return
    P(f"""
    s_cmp_ge_u32 s{sW}, 4
    s_cbranch_scc1 P2_G1
    s_waitcnt vmcnt(0)
    s_barrier
    """)
    stamp(5)
    def fl(l): return (f's_mov_b64 exec, 0xff\ns_cmp_eq_u32 s{sD2}, {15 if OPT["loc"] == 1 else 0}\ns_cbranch_scc1 {l}L\nbuffer_load_dword v{VP}, v{VF}, s[52:55], s{sTMP} offen sc1\ns_branch {l}M\n'
                       f'{l}L:\nbuffer_load_dword v{VP}, v{VF}, s[52:55], s{sDL} offen nt\n{l}M:\ns_mov_b64 exec, -1\n')
    P(f"""
    s_getreg_b32 s3, hwreg(HW_REG_XCC_ID, 0, 4)
    s_lshl_b32 s7, s{sE}, 4
    s_add_u32 s3, s3, s7
    v_cmp_eq_u32 vcc, s3, v{env['Q'] + 3}
    s_and_b32 s{sD2}, vcc_lo, 15
    s_add_u32 s{sDL}, s{sTMP}, 16384
    """)
    P('v_mov_b32 v137, 163832\nv_mov_b32 v138, 0\nds_write_b32 v137, v138')
    P(issW() + issW() + issW())
    P(f's_cmp_lg_u32 s{sW}, 0\ns_cbranch_scc1 P2_F0\n{fl("P2_F1")}P2_F0:')
    P(f"""
    s_waitcnt vmcnt(10)
    s_barrier
    s_waitcnt vmcnt(5)
    s_barrier
    s_waitcnt vmcnt(0)
    s_mov_b32 s{sNB}, 0
    s_mov_b32 s{sCNT}, 2
    s_sub_u32 s{sPW}, s{sPW}, 2
    P2_LD:
    s_cmp_eq_u32 s{sCNT}, 8
    s_cselect_b32 s3, 8, 2
    s_cselect_b32 s{sNB}, 4, s{sNB}
    s_add_u32 s{sPW}, s{sPW}, s3
    s_and_b32 s{sPW}, s{sPW}, 15
    s_cmp_lg_u32 s{sW}, 0
    s_cbranch_scc1 P2_PO
    s_lshr_b32 s3, s{sPW}, 2
    s_add_u32 s3, s3, s{sNB}
    s_mov_b32 s{sSPIN}, {OPT['spin']}
    P2_PF:
    v_cmp_eq_u32 vcc, s{sE}, v{VP}
    s_bitcmp1_b32 vcc_lo, s3
    s_cbranch_scc1 P2_PG
    {fl('P2_F2')}
    s_sub_u32 s{sSPIN}, s{sSPIN}, 1
    s_waitcnt vmcnt(0)
    s_cbranch_scc0 P2_PF
    P2_PG:
    v_mov_b32 v138, s{sCNT}
    ds_write_b32 v137, v138
    s_cmp_lg_u32 s{sCNT}, 6
    s_cbranch_scc1 P2_PN
    {fl('P2_F3')}
    s_branch P2_PN
    P2_PO:
    ds_read_b32 v138, v137
    s_waitcnt lgkmcnt(0)
    v_readfirstlane_b32 s6, v138
    s_cmp_eq_u32 s6, s{sCNT}
    s_cbranch_scc0 P2_PO
    P2_PN:
    s_mov_b32 s{sPO}, s{sPW}
    """)
    if OPT['d3']:
        P(issO() + issW() + f's_cmp_eq_u32 s{sCNT}, 2\ns_cbranch_scc1 P2_D3\ns_waitcnt vmcnt(20)\ns_barrier\nP2_D3:\n' + issO() + issW())
        P(f's_add_u32 s{sCNT}, s{sCNT}, 2\ns_cmp_lt_u32 s{sCNT}, 14\ns_waitcnt vmcnt(20)\ns_barrier\ns_cbranch_scc1 P2_LD')
        P('s_waitcnt vmcnt(10)\ns_barrier\ns_waitcnt vmcnt(0)\ns_barrier\ns_barrier\ns_branch P2_RED')
    else:
        P(issO() + issW() + 's_waitcnt vmcnt(10)\ns_barrier\n' + issO() + issW())
        P(f's_add_u32 s{sCNT}, s{sCNT}, 2\ns_cmp_lt_u32 s{sCNT}, 14\ns_waitcnt vmcnt(10)\ns_barrier\ns_cbranch_scc1 P2_LD')
        P('s_waitcnt vmcnt(0)\ns_barrier\ns_barrier\ns_branch P2_RED')
    ACC = [[4 * (2 * t + j) for j in range(2)] for t in range(9)]; AC9 = [72, 76, 80]
    SET = [dict(A=[144 + 4 * t for t in range(9)], A9=[180, 184], B=[188, 192], B9=196),
           dict(A=[200 + 4 * t for t in range(9)], A9=[236, 240], B=[244, 248], B9=252)]
    P(f"""
    P2_G1:
    s_lshl_b32 s6, s{sTID}, 2
    s_add_u32 s6, s6, s{sKS}
    s_lshl_b32 s6, s6, 2
    s_add_u32 s6, s6, s{sWP}
    s_mul_i32 s6, s6, 11264
    s_add_u32 s6, s6, {WS_PART}
    s_add_u32 s16, s66, s6
    s_addc_u32 s17, s67, 0
    s_mov_b32 s18, 11264
    s_mov_b32 s19, 0x20000
    s_mov_b32 s{sIB}, 0
    s_mov_b32 s{sCNT}, 1
    s_mov_b32 s{sDL}, {WST}
    s_mov_b32 s{sD2}, {OST}
    s_lshl_b32 s6, s{sJJ}, 2
    s_add_u32 s{sTMP}, s6, s{sTMP}
    s_barrier
    s_cmp_eq_u32 s{sW}, 4
    s_cbranch_scc0 P2_FA
    s_add_u32 s{sSPIN}, s{sTMP}, 16384
    s_mov_b64 exec, 1
    buffer_store_dword v{VP}, v{VF}, s[52:55], s{sSPIN} offen
    s_mov_b64 exec, -1
    {wb('P2_WA', True).replace('vmcnt(10)', 'vmcnt(11)')}
    s_mov_b64 exec, 1
    buffer_store_dword v{VP}, v{VF}, s[52:55], s{sTMP} offen sc1
    s_mov_b64 exec, -1
    P2_FA:
    """)
    stamp(6)
    def rd(st, K):
        o = [f'ds_read_b128 {vr(st["B"][j], 4)}, v{AB} offset:{K * 2048 + j * 256}' for j in range(2)]
        for t in range(9):
            o += [f'ds_read_b64_tr_b16 {vr(st["A"][t] + 2 * j, 2)}, v{[A0, A1][t & 1]} offset:{K * 10240 + j * 1280 + 64 * (t >> 1)}' for j in range(2)]
            if t == 7: o.append(f'ds_read_b128 {vr(st["B9"], 4)}, v{AB9} offset:{K * 1024}')
        for t in range(2):
            o += [f'ds_read_b64_tr_b16 {vr(st["A9"][t] + 2 * j, 2)}, v{[A90, A91][t]} offset:{K * 10240 + j * 1280}' for j in range(2)]
        return o
    last = []
    def step(cur, rds, extra=(), first=False, tailbr=None):
        z = lambda d, a, b: f'v_mfma_f32_16x16x32_bf16 {vr(d, 4)}, {vr(a, 4)}, {vr(b, 4)}, 0' if first else mf16(d, a, b)
        m = []
        for t in range(9): m += [z(ACC[t][0], cur['A'][t], cur['B'][0]), z(ACC[t][1], cur['A'][t], cur['B'][1])]
        m += [z(AC9[2], cur['A'][8], cur['B9']), z(AC9[0], cur['A9'][0], cur['B9']), z(AC9[1], cur['A9'][1], cur['B9'])]
        for i in (0, 6, 12): m[i] += f' ; need {vr(cur["A"][i // 2 + 2], 4)}'
        m[18] += f' ; need {vr(cur["A9"][1], 4)}'
        rds = list(rds); extra = list(extra)
        for i, x in enumerate(m):
            if tailbr and i == len(m) - 1:
                assert not extra and not rds
                P(f's_cbranch_scc1 {tailbr}'); last.append(x)
            P(x)
            n = 2 if i % 3 != 2 else 1
            if rds: P.extend(rds[:n]); rds = rds[n:]
            elif extra: P.extend(extra[:2]); extra = extra[2:]
        assert not rds
        P.extend(extra)
    upd = [f'v_add_u32 v{r}, s{sDL}, v{r}' for r in (A0, A1, A90, A91)] + [f'v_add_u32 v{r}, s{sD2}, v{r}' for r in (AB, AB9)]
    ring = [f's_add_u32 s{sIB}, s{sIB}, 1', f's_and_b32 s{sIB}, s{sIB}, 3', f's_cmp_eq_u32 s{sIB}, {NB - 1}',
            f's_cselect_b32 s{sDL}, {-(NB - 1) * WST & 0xffffffff}, {WST}', f's_cselect_b32 s{sD2}, {-(NB - 1) * OST & 0xffffffff}, {OST}']
    P.extend(rd(SET[0], 0))
    step(SET[0], rd(SET[1], 1), upd, first=True)
    P('s_barrier\ns_branch P2_M\nP2_L:')
    if OPT['tl'] == 1: stamp(2, 3); stamp(7, 8); stamp(3, 12)
    step(SET[0], rd(SET[1], 1), upd + [f's_add_u32 s{sCNT}, s{sCNT}, 1', f's_cmp_eq_u32 s{sCNT}, {OPT["fb"]}'], tailbr='P2_SPEC')
    P('s_barrier\nP2_M:')
    step(SET[1], rd(SET[0], 0), ring + [f's_cmp_lt_u32 s{sCNT}, 16'])
    P('s_cbranch_scc1 P2_L\ns_branch P2_E\nP2_SPEC:\n' + last[0])
    P(f"""
    s_waitcnt vmcnt(0)
    s_barrier
    s_cmp_eq_u32 s{sW}, 4
    s_cbranch_scc0 P2_M
    s_mov_b64 exec, 1
    buffer_store_dword v{VP}, v{VF}, s[52:55], s{sSPIN} offen offset:16
    s_mov_b64 exec, -1
    {wb('P2_WB', False)}
    s_mov_b64 exec, 1
    buffer_store_dword v{VP}, v{VF}, s[52:55], s{sTMP} offen offset:16 sc1
    s_mov_b64 exec, -1
    s_branch P2_M
    P2_E:
    """)
    stamp(9)
    units = [(ACC[2 * u][j], ACC[2 * u + 1][j]) for j in range(2) for u in range(4)] + [(ACC[8][0], ACC[8][1]), (AC9[0], AC9[1]), (AC9[2], AC9[2])]
    dst = [84 + 4 * i if i < 9 else 144 + 4 * i for i in range(11)]
    def pack(i):
        x, y = units[i]; d = dst[i]
        P(f'v_cvt_pk_bf16_f32 v{d}, v{x}, v{x + 1}\nv_cvt_pk_bf16_f32 v{d + 1}, v{x + 2}, v{x + 3}')
        P(f'v_cvt_pk_bf16_f32 v{d + 2}, v{y}, v{y + 1}\nv_cvt_pk_bf16_f32 v{d + 3}, v{y + 2}, v{y + 3}')
        if i % 4 == 0: P(f's_mov_b32 s3, {i * 1024}')
        P(f'v_permlane16_swap_b32 v{d}, v{d + 2}\nv_permlane16_swap_b32 v{d + 1}, v{d + 3}')
    P(f's_cmp_eq_u32 s{sWP}, s{sKS}\ns_cbranch_scc1 P2_OWN')
    for i in range(11):
        pack(i); P(f'buffer_store_dwordx4 {vr(dst[i], 4)}, v{VO}, s[16:19], s3 offen offset:{(i % 4) * 1024} sc1')
    P('s_branch P2_RED\nP2_OWN:')
    for i in range(11):
        pack(i); P(f'ds_write_b128 v{VO}, {vr(dst[i], 4)} offset:{i * 1024}')
    P(f"""
    P2_RED:
    s_lshl_b32 s{sTMP}, s{sTID}, 7
    s_add_u32 s{sTMP}, s{sTMP}, 8192
    s_lshl_b32 s7, s{sKS}, 2
    s_add_u32 s7, s7, s{sTMP}
    s_lshl_b32 s6, s{sTID}, 4
    s_add_u32 s6, s6, s{sKS}
    s_mul_i32 s6, s6, 11264
    s_add_u32 s6, s6, {WS_PART}
    s_add_u32 s16, s66, s6
    s_addc_u32 s17, s67, 0
    s_mov_b32 s18, {3 * 45056 + 11264}
    s_mov_b32 s19, 0x20000
    s_mul_i32 s6, s{sB}, {144 * 2304}
    s_mul_i32 s3, s{sBR}, 1152
    s_add_u32 s6, s6, s3
    s_mul_i32 s3, s{sJJ}, 288
    s_add_u32 s6, s6, s3
    s_add_u32 s12, s68, s6
    s_addc_u32 s13, s69, 0
    s_sub_u32 s14, {1152 * 2304}, s6
    s_mov_b32 s15, 0x20000
    v_mov_b32 v{VP}, s{sE}
    s_mov_b64 s[{sNEED}:{sNEED + 1}], 15
    v_and_b32 v4, 15, v140
    v_mul_u32_u24 v4, 2304, v4
    v_lshrrev_b32 v5, 5, v140
    v_lshl_add_u32 v4, v5, 4, v4
    v_bfe_u32 v5, v140, 4, 1
    v_lshl_add_u32 v6, v5, 5, v4
    s_lshl_b32 s40, s{sKS}, 1
    s_lshr_b32 s3, s{sW}, 2
    s_add_u32 s40, s40, s3
    s_mul_i32 s40, s40, {16 * 2304}
    s_and_b32 s3, s{sW}, 3
    s_lshl_b32 s3, s3, 6
    s_add_u32 s40, s40, s3
    s_lshl_b32 s41, s{sW}, 10
    s_mul_i32 s42, s{sKS}, {32 * 2304}
    s_add_u32 s42, s42, 256
    s_lshl_b32 s3, s{sKS}, 6
    s_add_u32 s3, s3, {128 * 2304}
    s_cmp_eq_u32 s{sW}, 1
    s_cselect_b32 s42, s3, s42
    s_cselect_b32 s45, 32, 0
    s_cmp_eq_u32 s{sW}, 2
    s_cselect_b32 s42, {128 * 2304 + 256}, s42
    s_cmp_eq_u32 s{sW}, 0
    s_cselect_b32 s45, {16 * 2304}, s45
    v_mul_lo_u32 v7, s45, v5
    v_add_u32 v7, v7, v4
    s_cmp_lg_u32 s{sKS}, 0
    s_cselect_b32 s45, 2, 3
    s_waitcnt vmcnt(0)
    s_barrier
    s_cmp_eq_u32 s{sW}, 7
    s_cbranch_scc0 P2_NG
    s_mov_b64 exec, 1
    buffer_store_dword v{VP}, v{VF}, s[52:55], s7 offen sc1
    s_mov_b64 exec, -1
    P2_NG:
    """)
    stamp(10)
    P(f"""
    s_lshl_b32 s3, s{sW}, 10
    v_add_u32 v8, s3, v{VO}
    ds_read_b128 v[32:35], v8
    ds_read_b128 v[48:51], v8 offset:8192
    s_cmp_lg_u32 s{sW}, 0
    s_cbranch_scc1 P2_PW
    """ + poll('P2_PR', sTMP) + 'P2_PW:\ns_barrier')
    stamp(11)
    def loads(base, so):
        for k in range(1, 4):
            P(f's_add_u32 s3, s{sKS}, {k}\ns_and_b32 s3, s3, 3\ns_mul_i32 s3, s3, 45056\ns_add_u32 s3, s3, s{so}\nbuffer_load_dwordx4 {vr(base + 4 * k, 4)}, v{VO}, s[16:19], s3 offen sc1')
    def reduce(base, va, so, left):
        for k in range(4):
            if k: P(f's_waitcnt vmcnt({left + 3 - k})')
            for i in range(4):
                src = base + 4 * k + i; t = 16 if k == 0 else 24
                P(f'v_lshlrev_b32 v{t + 2 * i}, 16, v{src}\nv_and_b32 v{t + 1 + 2 * i}, s46, v{src}')
            if k:
                for i in range(8): P(f'v_add_f32 v{16 + i}, v{16 + i}, v{24 + i}')
        for i in range(4): P(f'v_cvt_pk_bf16_f32 v{base + i}, v{16 + 2 * i}, v{17 + 2 * i}')
        P(f'buffer_store_dwordx4 {vr(base, 4)}, v{va}, s[12:15], s{so} offen')
    P('s_mov_b32 s46, 0xffff0000')
    loads(32, 41)
    P(f's_cmp_lt_u32 s{sW}, s45\ns_cbranch_scc1 P2_R2')
    reduce(32, 6, 40, 0)
    P(f's_branch P2_RE\nP2_R2:\ns_add_u32 s41, s41, 8192')
    loads(48, 41)
    reduce(32, 6, 40, 3)
    reduce(48, 7, 42, 1)
    P('P2_RE:')
    if OPT['stamps']:
        P('s_waitcnt vmcnt(0)'); stamp(8)

def k1():
    P = Prog()
    O, S, CN, Q, PP, O9, Q9, S9, CN9, P9 = 0, 64, 96, 112, 144, 160, 192, 208, 212, 216
    L, L9, VOK, VOV, AK, AK9, AV9, TID = 218, 219, 220, 221, 222, 223, 224, 225
    VA = 226
    T0, T1, AL, AL9, X0, X1 = 230, 231, 232, 233, 234, 235
    FB = [236, 240, 244, 248, 252]
    ACC = [[0, 16, 32, 48], [64, 80, 144, 176]]; ACC9 = [[160, 164], [168, 172]]
    QW = [230, 231, 232, 233]; QX = [234, 235]; QX9, QW9, VOW, VOX, HOLD = 216, 217, 218, 219, 212
    QB, QB9 = [96, 100], 104
    QF = [112, 116, 120, 124, 128, 132, 136, 140, 236, 240]
    sW, sWP, sP, sB, sJ, sBR = 24, 25, 26, 27, 28, 29
    sCNT, sW0, sX, sMC, sIB, sDL = 30, 31, 33, 35, 36, 37
    sEX = 38
    sIK, sROT = 31, 49
    sIS, sSK, sSV, sDK, sDV, sT, sCL, sRARE, sTMP, sTM2, sMW, sKP, sVP, sE = 40, 41, 42, 43, 44, 45, 46, 47, 48, 49, 50, 51, 32, 34
    NSB = OPT['nsb']; STGS = 25600; STG0 = 163840 - NSB * STGS
    SB0 = (NSB - 18) % NSB
    QXCH, Q9B = 131072, 98304 + 16384
    nk, ntw, ntd = OPT['nt_kv'], OPT['nt_w'], OPT['nt_wd']
    def stamp(k, at=None):
        if OPT['stamps'] == 3: return
        if OPT['stamps']:
            if at is not None: P(f's_cmp_lg_u32 s{sCNT}, {at}\ns_cbranch_scc1 K1_ST{k}_{len(P.ins)}'); lbl = P.ins[-1].target
            P(('s_memtime' if OPT['stamps'] == 2 else 's_memrealtime') + ' s[%d:%d]' % (70 + 2 * k, 71 + 2 * k))
            if at is not None: P(f'{lbl}:')
            if k == 1 and OPT['stamps'] == 1: P('s_memtime s[96:97]')
            if k == 4 and OPT['stamps'] == 1: P('s_memtime s[98:99]')
            if k == 2 and OPT['stamps'] == 1: P('s_memtime s[94:95]')
    P(f"""
    s_cmp_ge_u32 s2, 256
    s_cbranch_scc1 K1_END
    s_bfe_u32 s{sBR}, s2, 0x10002
    s_mul_i32 s6, s{sBR}, 40
    s_add_u32 s4, s0, s6
    s_addc_u32 s5, s1, 0
    s_load_dwordx8 s[56:63], s[4:5], 0
    s_load_dwordx4 s[64:67], s[0:1], 88
    s_load_dwordx2 s[68:69], s[0:1], 80
    s_load_dwordx2 s[100:101], s[4:5], 32
    """)
    if OPT['stamps']:
        for k in range(70, 100, 2): P(f's_mov_b64 s[{k}:{k + 1}], 0')
    stamp(0)
    P(f"""
    v_lshrrev_b32 v1, 6, v0
    v_and_b32 v{TID}, 63, v0
    v_readfirstlane_b32 s{sW}, v1
    v_lshrrev_b32 v2, 4, v{TID}
    v_and_b32 v3, 15, v{TID}
    s_and_b32 s3, s2, 3
    s_lshl_b32 s3, s3, 2
    s_bfe_u32 s7, s2, 0x20003
    s_add_u32 s{sJ}, s3, s7
    s_lshr_b32 s{sB}, s2, 5
    s_and_b32 s{sWP}, s{sW}, 3
    s_lshr_b32 s{sP}, s{sW}, 2
    v_lshlrev_b32 v4, 2, v2
    v_xor_b32 v4, v4, v3
    v_lshlrev_b32 v4, 4, v4
    v_lshl_add_u32 v{VOW}, v2, 13, v4
    v_lshrrev_b32 v8, 2, v{TID}
    v_and_b32 v9, 3, v{TID}
    v_xor_b32 v9, v9, v2
    v_mul_u32_u24 v8, 1152, v8
    v_lshl_add_u32 v{VOX}, v9, 4, v8
    s_lshl_b32 s3, s{sWP}, 2
    v_or_b32 v5, s3, v2
    v_xor_b32 v5, v5, v3
    v_lshlrev_b32 v5, 4, v5
    s_lshl_b32 s{sMW}, s{sWP}, 12
    v_lshl_add_u32 v5, v2, 8, v5
    v_add_u32 v{VOK}, s{sMW}, v5
    v_lshl_add_u32 v5, v2, 8, v4
    v_add_u32 v{VOV}, s{sMW}, v5
    s_lshl_b32 s{sW0}, s{sWP}, 16
    s_mul_i32 s{sX}, s{sWP}, 18432
    s_mul_i32 s{sMC}, s{sWP}, 3072
    s_lshl_b32 s3, s{sWP}, 4
    s_lshl_b64 s[{sEX}:{sEX + 1}], 0xffff, s3
    s_mul_i32 s6, s{sB}, 165888
    s_lshl_b32 s7, s{sJ}, 9
    s_mov_b32 s11, 0x20000
    s_mov_b32 s22, {165888 + 2048}
    s_mov_b32 s23, 0x20000
    s_sub_u32 s10, {576 * 8192}, s7
    s_mov_b32 s{sIB}, {STG0}
    s_lshl_b32 s{sTMP}, s{sB}, 5
    s_lshl_b32 s{sTM2}, s{sJ}, 1
    s_add_u32 s{sTMP}, s{sTMP}, s{sTM2}
    s_lshl_b32 s{sTMP}, s{sTMP}, 17
    s_mov_b32 s14, 262144
    s_mov_b32 s15, 0x20000
    s_mov_b32 s18, 262144
    s_mov_b32 s19, 0x20000
    s_mov_b32 s{sCNT}, 0
    s_cmp_ge_u32 s{sW}, 4
    s_waitcnt lgkmcnt(0)
    s_cbranch_scc1 K1_G1
    s_add_u32 s8, s62, s7
    s_addc_u32 s9, s63, 0
    s_add_u32 s20, s56, s6
    s_addc_u32 s21, s57, 0
    s_sub_u32 s20, s20, 2048
    s_subb_u32 s21, s21, 0
    """)
    kvsrd = f"""
    s_add_u32 s12, s58, s{sTMP}
    s_addc_u32 s13, s59, 0
    s_add_u32 s16, s60, s{sTMP}
    s_addc_u32 s17, s61, 0
    s_lshr_b32 s{sROT}, s2, 3
    s_mul_i32 s3, s2, {OPT['rotx']}
    s_mul_i32 s{sROT}, s{sROT}, {OPT['rot']}
    s_add_u32 s{sROT}, s{sROT}, s3
    s_lshl_b32 s{sROT}, s{sROT}, 14
    s_add_u32 s52, s66, {WS_FLAG}
    s_addc_u32 s53, s67, 0
    s_mov_b32 s54, 32768
    s_mov_b32 s55, 0x20000
    """
    lanec = f"""
    v_bfe_u32 v10, v{TID}, 2, 2
    v_and_b32 v11, 3, v{TID}
    v_lshrrev_b32 v12, 5, v{TID}
    v_and_b32 v13, 1, v2
    v_and_b32 v20, 1, v11
    v_lshrrev_b32 v15, 1, v11
    v_lshlrev_b32 v16, 2, v10
    v_lshl_add_u32 v17, v13, 1, v20
    v_xor_b32 v17, v17, v16
    v_lshlrev_b32 v17, 4, v17
    v_lshl_add_u32 v17, v15, 3, v17
    v_lshl_add_u32 v17, v10, 8, v17
    s_lshl_b32 s3, s{sP}, 14
    s_add_u32 s{sMW}, s{sMW}, s3
    s_add_u32 s6, s3, 65536
    v_lshl_add_u32 v18, v12, 10, v17
    v_add_u32 v{VA}, s6, v18
    v_xor_b32 v{VA + 1}, 64, v{VA}
    v_xor_b32 v{VA + 2}, 0x80, v{VA}
    v_xor_b32 v{VA + 3}, 0xc0, v{VA}
    v_bfe_u32 v23, v{TID}, 3, 2
    v_bfe_u32 v24, v{TID}, 2, 1
    v_lshl_add_u32 v25, v23, 2, v11
    v_xor_b32 v25, v25, v12
    v_lshlrev_b32 v25, 4, v25
    v_lshl_add_u32 v25, v11, 8, v25
    v_lshl_add_u32 v25, v24, 10, v25
    v_lshl_add_u32 v25, v23, 12, v25
    v_add_u32 v{AK}, s3, v25
    s_lshl_b32 s7, s{sWP}, 10
    s_add_u32 s6, s3, s7
    v_xor_b32 v25, v2, v3
    v_lshlrev_b32 v25, 4, v25
    v_lshl_add_u32 v25, v11, 8, v25
    v_lshl_add_u32 v25, v10, 12, v25
    v_add_u32 v{AK9}, s6, v25
    v_xor_b32 v25, v15, v16
    v_lshlrev_b32 v25, 4, v25
    v_lshl_add_u32 v25, v20, 3, v25
    v_lshl_add_u32 v25, v10, 8, v25
    v_lshl_add_u32 v25, v2, 12, v25
    s_add_u32 s6, s6, 65536
    s_lshl_b32 s7, s{sWP}, 6
    v_xor_b32 v25, s7, v25
    v_add_u32 v{AV9}, s6, v25
    v_mul_u32_u24 v26, 272, v3
    v_lshl_add_u32 v27, v2, 4, v26
    s_mul_i32 s6, s{sP}, 4352
    s_add_u32 s6, s6, {Q9B}
    v_add_u32 v{S9}, s6, v27
    v_lshlrev_b32 v27, 4, v{TID}
    s_lshl_b32 s6, s{sWP}, 13
    s_add_u32 s6, s6, {QXCH}
    v_add_u32 v{S9 + 1}, s6, v27
    """
    loopinit = f"""
    s_mov_b32 s{sCNT}, 1
    s_mov_b32 s{sKP}, 32768
    s_mov_b32 s{sVP}, 65536
    s_mov_b32 s{sDK}, 32768
    s_mov_b32 s{sDV}, 0
    s_mov_b32 s{sIS}, 131072
    s_mov_b32 s{sIK}, 0
    s_mov_b32 s33, 0
    s_mul_i32 s3, s{sP}, {OPT['rotp'] * 16384}
    s_add_u32 s3, s3, s{sROT}
    s_add_u32 s{sSV}, s3, 16384
    s_and_b32 s{sSV}, s{sSV}, 0x1ffff
    s_add_u32 s{sSK}, s3, 49152
    s_and_b32 s{sSK}, s{sSK}, 0x1ffff
    s_mov_b32 s{sCL}, 0xff800000
    s_mov_b32 s{sRARE}, 0
    """
    obase = f"""
    s_lshl_b32 s6, s{sBR}, 3
    s_add_u32 s6, s6, s{sB}
    s_mul_i32 s6, s6, 1179648
    s_mul_i32 s7, s{sWP}, {262144 - 4096}
    s_add_u32 s6, s6, s7
    s_lshl_b32 s7, s{sJ}, 1
    s_add_u32 s7, s7, s{sP}
    s_lshl_b32 s7, s7, 13
    s_add_u32 s6, s6, s7
    s_add_u32 s56, s66, s6
    s_addc_u32 s57, s67, 0
    """
    narrow = f's_lshl_b32 s3, s{sP}, 17\ns_add_u32 s12, s12, s3\ns_addc_u32 s13, s13, 0\ns_add_u32 s16, s16, s3\ns_addc_u32 s17, s17, 0\ns_mov_b32 s14, 131072\ns_mov_b32 s18, 131072'
    getE = f'v_mov_b32 v{AL}, {Q9B + 8704}\nds_read_b32 v{AL}, v{AL}' if OPT['fused'] else ''
    getE2 = f'v_readfirstlane_b32 s{sE}, v{AL}' if OPT['fused'] else ''
    queue = []
    def vm(text, tag): P(text); queue.append(tag)
    BS = [int(c, 36) for c in str(OPT['bs'])]; BN = 0; BT = len(BS) // 4
    bpos = []
    def wait_for(tag):
        idx = max(i for i, t in enumerate(queue) if t == tag)
        n = len(queue) - 1 - idx
        cnt = [(1 if OPT['bh'] else 2) * sum(1 for c2, p_ in bpos if c2 == c and p_ > idx) for c in range(4)]
        vals = sorted(set(cnt))
        for v in vals[:-1]:
            lbl = f'K1_BW{len(P.ins)}'
            P(f's_and_b32 s3, s{sCLS}, {sum(1 << c for c in range(4) if cnt[c] > v)}\ns_cbranch_scc1 {lbl}\ns_waitcnt vmcnt({min(63, n + v)})\n{lbl}:')
        P(f's_waitcnt vmcnt({min(63, n + vals[-1])})')
    def stage(s):
        if OPT['nost'] and s >= 3: queue.append(('s', s)); return
        buf = STG0 + ((s + SB0) % NSB) * STGS
        for hd in range(2):
            P(f's_add_u32 m0, s{sMC}, {buf + hd * 12288}\ns_add_u32 s3, s{sW0}, {s * 262144 + hd * 256}')
            vm(f'buffer_load_dwordx4 v{VOW}, s[8:11], s3 offen {ntd} lds', ('s', s))
            P(f's_add_u32 s3, s3, {32768 - 1024}')
            vm(f'buffer_load_dwordx4 v{VOW}, s[8:11], s3 offen offset:1024 {ntd} lds', ('s', s))
            P(f's_add_u32 s3, s{sX}, {s * 64 + hd * 4 * 18432}')
            vm(f'buffer_load_dwordx4 v{VOX}, s[20:23], s3 offen offset:2048 {ntd} lds', ('s', s))
        P(f's_mov_b32 m0, {buf + 24576}\ns_mov_b32 s3, {s * 64 + 128 * 1152 + 2048}\ns_mov_b64 exec, s[{sEX}:{sEX + 1}]')
        vm(f'buffer_load_dwordx4 v{VOX}, s[20:23], s3 offen {ntd} lds', ('s', s))
        P('s_mov_b64 exec, -1')
    VTW, VTX, sTW, sTX, sCLS = 232, 233, 45, 46, 47
    def touch(s):
        if s >= 18 or not OPT['tlead']: return
        P(f's_add_u32 s3, s{sTW}, {s * 262144}\ns_add_u32 s6, s{sTX}, {s * 64}\ns_mov_b64 exec, 0x1ff')
        vm(f'buffer_load_dword v{X0}, v{VTW}, s[8:11], s3 offen {ntw}', ('t', s))
        vm(f'buffer_load_dword v{X1}, v{VTX}, s[20:23], s6 offen {ntw}', ('t', s))
        P('s_mov_b64 exec, -1')
    def ltouch():
        TR = OPT['trows']
        P(f"""
        v_lshrrev_b32 v{VTW}, 3, v{TID}
        v_and_b32 v{VTX}, 7, v{TID}
        v_lshlrev_b32 v{VTX}, 6, v{VTX}
        v_lshl_add_u32 v{VTW}, v{VTW}, 13, v{VTX}
        v_lshlrev_b32 v{VTX}, 6, v{TID}
        s_lshl_b32 s3, s{sB}, 2
        s_add_u32 s3, s3, s{sWP}
        s_mul_i32 s3, s3, {TR * 8192}
        s_add_u32 s3, s3, {(576 - 32 * TR) * 8192}
        s_bfe_u32 s6, s2, 0x20003
        s_lshl_b32 s6, s6, 2
        s_add_u32 s6, s6, s{sWP}
        s_mul_i32 s6, s6, {162 * 64}
        s_add_u32 s6, s6, 2048
        """)
        tw = [(i, min(8, TR - 8 * i) * 8) for i in range((TR + 7) // 8)]; tx = [(0, 64), (1, 64), (2, 34)]
        for i in range(3):
            for (lst, v, srd, so, step) in ((tw, VTW, 8, 3, 8 * 8192), (tx, VTX, 20, 6, 4096)):
                if i >= len(lst): continue
                n = lst[i][1]
                if n < 64: P(f's_mov_b64 exec, {hex((1 << n) - 1)}' if n <= 31 else f's_mov_b32 exec_hi, {(1 << (n - 32)) - 1}')
                vm(f'buffer_load_dword v{X0}, v{v}, s[{srd}:{srd + 3}], s{so} offen {ntw}', ('t', 0))
                if n < 64: P('s_mov_b64 exec, -1')
                P(f's_add_u32 s{so}, s{so}, {step}')
    def btouch(a, b):
        n = b - a; l0, l1 = a // 2, (b + 1) // 2; nl = l1 - l0
        mg = (65536 + nl - 1) // nl
        assert all((i * mg) >> 16 == i // nl for i in range(64)) and 4 * n <= 64 and 9 * nl <= 64
        P(f"""
        v_lshrrev_b32 v{VTW}, 2, v{TID}
        v_and_b32 v{VTX}, 3, v{TID}
        v_lshlrev_b32 v{VTX}, 7, v{VTX}
        v_lshl_add_u32 v{VTW}, v{VTW}, 13, v{VTX}
        v_mul_u32_u24 v{X1}, {mg}, v{TID}
        v_lshrrev_b32 v{X1}, 16, v{X1}
        v_mul_u32_u24 v{VTX}, {1152 - 128 * nl}, v{X1}
        v_lshl_add_u32 v{VTX}, v{TID}, 7, v{VTX}
        s_lshl_b32 s3, s{sB}, 2
        s_add_u32 s3, s3, s{sWP}
        s_mul_i32 s3, s3, {n * 8192}
        s_add_u32 s3, s3, {32 * a * 8192}
        s_and_b32 s6, s{sJ}, 3
        s_lshl_b32 s6, s6, 2
        s_add_u32 s6, s6, s{sWP}
        s_mul_i32 s6, s6, {9 * 1152}
        s_add_u32 s6, s6, {2048 + 128 * l0}
        """)
        for cnt, v, srd, so in ((4 * n, VTW, 8, 3), (9 * nl, VTX, 20, 6)):
            P(f's_mov_b64 exec, {hex((1 << cnt) - 1)}' if cnt <= 31 else f's_mov_b32 exec_lo, -1\ns_mov_b32 exec_hi, {hex((1 << (cnt - 32)) - 1)}')
            vm(f'buffer_load_dword v{X0}, v{v}, s[{srd}:{srd + 3}], s{so} offen {ntw}', ('t', 2))
        P('s_mov_b64 exec, -1')
    TB = [tuple(int(y) for y in x.split(':')) for x in str(OPT['tb']).split(',') if x]
    def otouch():
        P(f"""
        s_lshl_b32 s6, s{sBR}, 3
        s_add_u32 s6, s6, s{sB}
        s_mul_i32 s6, s6, 1179648
        s_add_u32 s56, s66, s6
        s_addc_u32 s57, s67, 0
        s_mov_b32 s58, 1179648
        s_mov_b32 s59, 0x20000
        v_lshlrev_b32 v{VTW}, 7, v{TID}
        s_lshl_b32 s3, s{sWP}, 18
        s_lshl_b32 s6, s{sJ}, 14
        s_add_u32 s3, s3, s6
        """)
        vm(f'buffer_load_dword v{X0}, v{VTW}, s[56:59], s3 offen', ('t', 1))
        P('s_add_u32 s3, s3, 8192')
        vm(f'buffer_load_dword v{X0}, v{VTW}, s[56:59], s3 offen', ('t', 1))
        P(f's_lshl_b32 s3, s{sJ}, 13\ns_lshl_b32 s6, s{sWP}, 11\ns_add_u32 s3, s3, s6\ns_add_u32 s3, s3, {1 << 20}\ns_mov_b64 exec, 0xffff')
        vm(f'buffer_load_dword v{X0}, v{VTW}, s[56:59], s3 offen', ('t', 1))
        P('s_mov_b64 exec, -1')
    PRE = {(0, 0): [64, 68, 72, 76], (0, 1): [80, 84, 88, 92], (1, 0): [112, 116, 120, 124], (1, 1): [128, 132, 136, 140],
           (2, 0): [192, 196, 200, 204], (2, 1): [236, 240, 244, 248], (3, 0): [96, 100, 104, 252], (3, 1): [144, 148, 152, 156]}
    SRC = {0: (VOK, 12, 0), 1: (VOK, 12, 16384), 2: (VOV, 16, 0), 3: (VOK, 12, 32768)}
    FREE = {(0, 0): 0 if NSB <= 5 else 13, (0, 1): 0 if NSB <= 5 else 13, (1, 0): 15, (1, 1): 15, (2, 0): 16, (2, 1): 16, (3, 0): 17, (3, 1): 19}
    inreg = set()
    def kvload(step, u, hd, n):
        if OPT['nokv'] & 1: return
        vo, srd, off = SRC[u]
        P(f's_add_u32 s3, s{sROT}, {off + hd * OPT["rotp"] * 16384}\ns_and_b32 s3, s3, 0x1ffff' + (f'\ns_add_u32 s3, s3, 131072' if hd else ''))
        if step >= FREE[u, hd]:
            P(f's_add_u32 m0, s{sMW}, {u * 32768 + hd * 16384}\ns_nop 0')
            vm(f'buffer_load_dwordx4 v{vo}, s[{srd}:{srd + 3}], s3 offen offset:{n * 1024} {nk} lds', ('k', u))
        else:
            vm(f'buffer_load_dwordx4 {vr(PRE[u, hd][n], 4)}, v{vo}, s[{srd}:{srd + 3}], s3 offen offset:{n * 1024} {nk}', ('r', u, hd)); inreg.add((u, hd, n))
    def kvdump(step):
        if OPT['nokv'] & 2: return
        for (u, hd), f in FREE.items():
            ns = [n for n in range(4) if (u, hd, n) in inreg]
            if f != step or not ns: continue
            if (u, hd) in btag: P(f's_waitcnt vmcnt({min(63, len(queue) - btag[u, hd])})')
            if ('r', u, hd) in queue: wait_for(('r', u, hd))
            base = u * 32768 + hd * 16384
            for n in ns: P(f'ds_write_b128 v{[T0, T1][base >> 16]}, {vr(PRE[u, hd][n], 4)} offset:{(base & 0xffff) + n * 1024}')
    kvq = [(u, hd, n) for u in range(4) for hd in range(2) for n in range(4)]
    npre, dist = OPT['npre'], OPT['dist']
    sched = [int(c, 36) for c in str(OPT['kvs'])] + [0] * 30
    assert sum(sched) + abs(OPT['kpre']) + (0 if BT else BN) == 32 and dist <= NSB - 1 and npre <= NSB
    btag = {}
    if BS: P(f's_and_b32 s3, s{sJ}, 3\ns_lshl_b32 s{sCLS}, 1, s3')
    nxt = 0
    for s in range(npre): stage(s); nxt += 1
    if OPT['tlead']:
        P(f"""
        v_lshlrev_b32 v{VTW}, 6, v{TID}
        v_mul_u32_u24 v{VTX}, 1152, v{TID}
        s_lshl_b32 s{sTW}, s{sB}, 2
        s_add_u32 s{sTW}, s{sTW}, s{sWP}
        s_lshl_b32 s{sTW}, s{sTW}, 13
        s_bfe_u32 s{sTX}, s2, 0x20003
        s_lshl_b32 s{sTX}, s{sTX}, 2
        s_add_u32 s{sTX}, s{sTX}, s{sWP}
        s_mul_i32 s{sTX}, s{sTX}, {9 * 1152}
        s_add_u32 s{sTX}, s{sTX}, 2048
        """)
        for s in range(npre, dist + OPT['tlead']): touch(s)
    if OPT['kpre']:
        P(kvsrd)
        for _ in range(max(0, OPT['kpre'])): kvload(0, *kvq.pop(0))
    if OPT['ts'] == -1: ltouch()
    for st_, a_, b_ in TB:
        if st_ == -1: btouch(a_, b_)
    for _ in range(max(0, -OPT['kpre'])): kvload(0, *kvq.pop(0))
    later = ['' if OPT['kpre'] else kvsrd] + [f'v_lshlrev_b32 v{T0}, 4, v{TID}\nv_add_u32 v{T0}, s{sMW}, v{T0}\nv_add_u32 v{T1}, 0x10000, v{T0}', lanec]
    zs = list(range(108, 112)) + list(range(O9, O9 + 32)) + list(range(CN9, CN9 + 4)) + list(range(63, -1, -1))
    later += ['\n'.join(f'v_mov_b32 v{r}, 0' for r in zs[i:i + 26]) for i in range(0, len(zs), 26)]
    P(later.pop(0))
    for s in range(19):
        if OPT['stamps'] == 2 and s == OPT['sq']: stamp(5)
        if OPT['stamps'] == 2 and s == OPT['sq'] + 1: stamp(6)
        if OPT['stamps'] == 3 and OPT['sq'] == 99 and 1 <= s <= 5: P(f's_memtime s[{70 + 6 * s - 4}:{71 + 6 * s - 4}]')
        if s < 18: wait_for(('s', s))
        if OPT['stamps'] == 3 and OPT['sq'] == 99 and 1 <= s <= 4: P(f's_memtime s[{70 + 6 * s - 2}:{71 + 6 * s - 2}]')
        if OPT['stamps'] == 2 and s == OPT['sq']: stamp(3)
        P('s_barrier')
        if OPT['stamps'] == 2 and s == OPT['sq']: stamp(2)
        if s == 0 and OPT['stamps'] == 1: stamp(1)
        S3 = [0, 1, 2, 3, 4, 5, 6, 8, 10, 12, 13, 14, 15, 16, 18]
        if OPT['stamps'] == 3 and OPT['sq'] == 99:
            if s <= 4: P(f's_memtime s[{70 + 6 * s}:{71 + 6 * s}]')
        elif OPT['stamps'] == 3 and s in S3: P(f's_memtime s[{70 + 2 * S3.index(s)}:{71 + 2 * S3.index(s)}]')
        if OPT['sp']:
            for _ in range(int((str(OPT['sp']) + '0' * 20)[s])):
                assert nxt <= s + NSB - 1
                stage(nxt); nxt += 1
            if OPT['ts'] == s: ltouch()
            for st_, a_, b_ in TB:
                if st_ == s: btouch(a_, b_)
            if OPT['ot'] == s: otouch()
            if OPT['cts'] == s:
                P(f"""
                s_getpc_b64 s[6:7]
                K1_PC2:
                s_add_u32 s6, s6, @PC2OFF@
                s_addc_u32 s7, s7, 0
                s_lshl_b32 s3, s{sWP}, 5
                v_add_u32 v{VTW}, s3, v{TID}
                v_lshlrev_b32 v{VTW}, 7, v{VTW}
                v_min_u32 v{VTW}, @LEN2@, v{VTW}
                v_mov_b32 v{VTX}, s7
                v_add_co_u32 v{VTW}, vcc, s6, v{VTW}
                v_addc_co_u32 v{VTX}, vcc, 0, v{VTX}, vcc
                s_mov_b32 exec_hi, 0
                """)
                vm(f'global_load_dword v{X0}, v[{VTW}:{VTX}], off', ('t', 3))
                P('s_mov_b32 exec_hi, -1')
        n = 0
        while not OPT['sp'] and nxt < 18 and nxt <= s + dist and n < 2: stage(nxt); nxt += 1; n += 1
        touch(s + dist + OPT['tlead'])
        for k in range(BT):
            cl_ = [c for c in range(4) if BS[4 * k + c] == s]
            if not cl_: continue
            lbl = f'K1_BU{s}_{k}'; srd, tile = [(12, 3), (16, 2), (12, 4), (16, 3)][k // 2 if OPT['bh'] else k]
            P(f's_and_b32 s3, s{sCLS}, {sum(1 << c for c in cl_)}\ns_cbranch_scc0 {lbl}')
            P(f'v_lshlrev_b32 v{VTW}, 7, v{TID}\nv_add_u32 v{VTW}, s{sMW}, v{VTW}\ns_mov_b32 exec_hi, 0')
            for hd in ([k % 2] if OPT['bh'] else range(2)):
                P(f's_add_u32 s3, s{sROT}, {(tile + hd * OPT["rotp"]) * 16384}\ns_and_b32 s3, s3, 0x1ffff' + ('\ns_add_u32 s3, s3, 131072' if hd else ''))
                P(f'buffer_load_dword v{X0}, v{VTW}, s[{srd}:{srd + 3}], s3 offen {OPT["btf"]}')
            P(f's_mov_b32 exec_hi, -1\n{lbl}:')
            bpos += [(c, len(queue)) for c in cl_]
        kvdump(s)
        for _ in range(sched[s]): kvload(s, *kvq.pop(0))
        if later: P(later.pop(0))
    assert nxt == 18 and not later
    for r in list(range(96, 108)) + [L, L9]: P(f'v_mov_b32 v{r}, 0')
    P(loopinit)
    if OPT['stamps'] == 1: stamp(2)
    if (0, 1) in btag: P(f's_waitcnt vmcnt({min(63, len(queue) - btag[0, 1])})')
    if ('k', 0) in queue: wait_for(('k', 0))
    P('s_barrier')
    P(getE)
    for kk in range(8): P(f'ds_read_b128 {vr(Q + 4 * kk, 4)}, v{S9 + 1} offset:{kk * 1024}')
    for kk in range(4): P(f'ds_read_b128 {vr(Q9 + 4 * kk, 4)}, v{S9} offset:{kk * 64}')
    P('s_barrier')
    P(getE2)
    kvdump(19)
    for _ in range(sched[19]): kvload(19, *kvq.pop(0))
    assert not kvq
    P(narrow)
    after = lambda u: (len(queue) - 1 - max(i for i, t in enumerate(queue) if t == ('k', u))) if ('k', u) in queue else 60
    X1N = min(63, after(1) + 4) if OPT['nbar'] == 2 else min(63, after(1) + 4, after(2) + 4)
    P('s_branch K1_HEAD')
    P('K1_G1:')
    P(kvsrd)
    if OPT['fused']:
        P(f"""
                v_mov_b32 v246, 0
        s_cmp_eq_u32 s{sW}, 4
        s_cbranch_scc0 K1_E0
        buffer_load_dword v244, v246, s[52:55], 0 offen sc1
        K1_E0:
        """)
    def touches():
        P(f"""
        s_lshl_b32 s7, s{sJ}, 9
        s_mul_i32 s6, s{sB}, 165888
        s_add_u32 s8, s62, s7
        s_addc_u32 s9, s63, 0
        s_add_u32 s20, s56, s6
        s_addc_u32 s21, s57, 0
        s_mov_b32 s22, 165888
        v_lshrrev_b32 v28, 3, v{TID}
        v_and_b32 v29, 7, v{TID}
        v_lshlrev_b32 v29, 6, v29
        v_lshl_add_u32 v28, v28, 13, v29
        v_lshlrev_b32 v29, 6, v{TID}
        s_lshl_b32 s3, s{sB}, 2
        s_add_u32 s3, s3, s{sWP}
        s_mul_i32 s3, s3, {TR * 8192}
        s_add_u32 s3, s3, {(576 - 32 * TR) * 8192}
        s_bfe_u32 s6, s2, 0x20003
        s_lshl_b32 s6, s6, 2
        s_add_u32 s6, s6, s{sWP}
        s_mul_i32 s6, s6, {162 * 64}
        """)
        tw = [(i, min(8, TR - 8 * i) * 8) for i in range((TR + 7) // 8)]; tx = [(0, 64), (1, 64), (2, 34)]
        k = 0
        for i in range(3):
            for (lst, v, srd, so, step) in ((tw, 28, 8, 3, 8 * 8192), (tx, 29, 20, 6, 4096)):
                if i >= len(lst): continue
                n = lst[i][1]
                if n < 64: P(f's_mov_b64 exec, {hex((1 << n) - 1)}' if n <= 31 else f's_mov_b32 exec_hi, {(1 << (n - 32)) - 1}')
                P(f'buffer_load_dword v{248 + k}, v{v}, s[{srd}:{srd + 3}], s{so} offen {ntw}'); k += 1
                if n < 64: P('s_mov_b64 exec, -1')
                P(f's_add_u32 s{so}, s{so}, {step}')
        return k
    def ptouch():
        pg = OPT['ptouch']
        P(f"""
        s_lshl_b32 s7, s{sJ}, 9
        s_mul_i32 s6, s{sB}, 165888
        s_add_u32 s8, s62, s7
        s_addc_u32 s9, s63, 0
        s_add_u32 s20, s56, s6
        s_addc_u32 s21, s57, 0
        s_mov_b32 s22, 165888
        v_lshlrev_b32 v28, 16, v{TID}
        s_lshl_b32 s3, s{sWP}, 20
        s_add_u32 s3, s3, {65536 * 4}
        s_mov_b64 exec, 0xffff
        buffer_load_dword v248, v28, s[8:11], s3 offen
        s_mov_b64 exec, 0xf
        s_mov_b32 s3, {65536 * 68}
        s_cmp_eq_u32 s{sWP}, 0
        s_cbranch_scc0 K1_PT1
        buffer_load_dword v249, v28, s[8:11], s3 offen
        buffer_load_dword v250, v28, s[20:23], 0 offen
        s_branch K1_PT2
        K1_PT1:
        buffer_load_dword v249, v28, s[12:15], 0 offen {nk}
        buffer_load_dword v250, v28, s[16:19], 0 offen {nk}
        K1_PT2:
        s_mov_b64 exec, -1
        """)
    TR = OPT['trows']
    NT = (TR + 7) // 8 + 3
    if OPT['ctouch']:
        P(f"""
        s_cmp_eq_u32 s{sW}, 5
        s_cbranch_scc0 K1_CT
        s_getpc_b64 s[6:7]
        K1_PC:
        s_sub_u32 s6, s6, @PCOFF@
        s_subb_u32 s7, s7, 0
        v_lshlrev_b32 v28, 7, v{TID}
        v_mov_b32 v31, s7
        """)
        for k in range(OPT['ctouch']):
            P(f"""
            v_min_u32 v29, @CODELEN@, v28
            v_add_co_u32 v30, vcc, s6, v29
            v_addc_co_u32 v31, vcc, 0, v31, vcc
            global_load_dword v{252 + k % 4}, v[30:31], off
            v_mov_b32 v31, s7
            v_add_u32 v28, 8192, v28
            """)
        P('K1_CT:')
    if OPT['wtouch'] == 1: touches()
    if OPT['ptouch']: ptouch(); NT = 3
    P(lanec)
    if OPT['wtouch'] == 2: touches()
    P(f"""
    v_mul_u32_u24 v18, 3072, v12
    v_add_u32 v18, {STG0 + SB0 * STGS}, v18
    v_add_u32 v{QW[0]}, v17, v18
    v_xor_b32 v{QW[1]}, 64, v{QW[0]}
    v_xor_b32 v{QW[2]}, 0x80, v{QW[0]}
    v_xor_b32 v{QW[3]}, 0xc0, v{QW[0]}
    s_lshl_b32 s6, s{sWP}, 2
    v_add_u32 v18, s6, v15
    v_xor_b32 v18, v18, v16
    v_lshlrev_b32 v18, 4, v18
    v_lshl_add_u32 v18, v20, 3, v18
    v_lshl_add_u32 v18, v10, 8, v18
    v_mul_u32_u24 v19, 3072, v2
    v_add_u32 v19, {STG0 + SB0 * STGS}, v19
    v_add_u32 v{QW9}, v18, v19
    v_xor_b32 v22, v12, v10
    v_lshlrev_b32 v22, 4, v22
    v_lshl_add_u32 v22, v3, 6, v22
    v_mul_u32_u24 v19, 3072, v13
    s_mul_i32 s6, s{sWP}, 6144
    s_add_u32 s6, s6, {STG0 + SB0 * STGS + 2048}
    v_add3_u32 v{QX[0]}, v22, v19, s6
    v_xor_b32 v{QX[1]}, 32, v{QX[0]}
    v_xor_b32 v22, v2, v10
    v_lshlrev_b32 v22, 4, v22
    v_lshl_add_u32 v22, v3, 6, v22
    v_add_u32 v{QX9}, {STG0 + SB0 * STGS + 24576}, v22
    v_lshl_add_u32 v27, v2, 3, v26
    s_lshl_b32 s6, s{sWP}, 6
    s_add_u32 s6, s6, {Q9B}
    v_add_u32 v{S9 + 2}, s6, v27
    """)
    z = list(range(CN9, CN9 + 4)) + list(range(108, 112)) + [L, L9]
    for hd in range(2):
        for a in ACC[hd]: z += list(range(a, a + 16))
        for a in ACC9[hd]: z += list(range(a, a + 4))
    for r in z: P(f'v_mov_b32 v{r}, 0')
    if OPT['fused']:
        P(f"""
        s_cmp_eq_u32 s{sW}, 4
        s_cbranch_scc0 K1_E1
        s_mov_b32 s8, s64
        s_mov_b32 s9, s65
        s_mov_b32 s10, 256
        s_waitcnt vmcnt({NT if OPT['wtouch'] or OPT['ptouch'] else 0})
        v_add_u32 v244, 1, v244
        v_max_u32 v244, 1, v244
        v_mov_b32 v245, 0
        v_mov_b32 v247, v244
        s_mov_b64 exec, 1
        buffer_atomic_cmpswap v[244:245], v246, s[8:11], 0 offen sc0
        s_mov_b64 exec, -1
        K1_E1:
        """)
    P(f's_mov_b32 s{sIB}, {SB0}\ns_barrier')
    if OPT['stamps'] == 1: stamp(1)
    qit = []
    def qmain(kk, hd, dt):
        return (lambda F: [f'ds_read_b64_tr_b16 {vr(F + 2 * j, 2)}, v{QW[dt]} offset:{hd * 12288 + kk * 6144 + j * 1024}' for j in range(2)],
                lambda F: mf32(ACC[hd][dt], F, QB[kk]))
    def q9(hd, t):
        return (lambda F: [f'ds_read_b64_tr_b16 {vr(F + 2 * j, 2)}, v{QW9} offset:{hd * 12288 + t * 32 + j * 1024}' for j in range(2)],
                lambda F: mf16(ACC9[hd][t], F, QB9))
    qit = [qmain(0, hd, dt) for hd in range(2) for dt in range(4)] + [q9(hd, t) for hd in range(2) for t in range(2)] + [qmain(1, hd, dt) for hd in range(2) for dt in range(4)]
    nq = len(QF); NQ = len(qit); QD = OPT['qdelay']
    qrd = lambda i: qit[i % NQ][0](QF[i % nq])
    bheads = [f'ds_read_b128 {vr(QB[0], 4)}, v{QX[0]}', f'ds_read_b128 {vr(QB9, 4)}, v{QX9}']
    upd = [f'v_add_u32 v{r}, s{sDL}, v{r}' for r in QW + QX + [QX9, QW9]]
    P(bheads[0])
    for i in range(nq):
        P.extend(qrd(i))
        if i == 3: P(bheads[1])
    def qmf(i):
        m = qit[i][1](QF[i % nq])
        if i % 2 == 0 and i + 1 < NQ: m += f' ; need {vr(QF[(i + 1) % nq], 4)}'
        return m
    cut = NQ - nq + QD + 1
    P('s_branch K1_QM\nK1_QL:\ns_barrier')
    if OPT['stamps'] == 2: stamp(2, OPT['sq'])
    qpend = [bheads[0]] + [x for jj in range(QD + 1) for x in qrd(jj)]
    for i in range(cut, NQ):
        P(qmf(i))
        qpend += qrd(i + nq)
        if i == NQ - 2: qpend.append(bheads[1])
        n = len(qpend) if i == NQ - 1 else 4
        P.extend(qpend[:n]); qpend = qpend[n:]
    P('K1_QM:')
    if OPT['stamps'] == 1 and not OPT['fused']: stamp(5, 3); stamp(6, 6); stamp(9, 9); stamp(10, 12)
    if OPT['stamps'] == 2: stamp(5, OPT['sq'] - 1); stamp(6, OPT['sq'])
    for i in range(cut):
        P(qmf(i))
        if i + nq < NQ: P.extend(qrd(i + nq))
        if i == 0: P(f'ds_read_b128 {vr(QB[1], 4)}, v{QX[1]}')
        if OPT['qnop'] and i % 2 == 1: P(f's_nop {OPT["qnop"]}')
        if i == 2: P(f's_cmp_eq_u32 s{sIB}, {NSB - 1}\ns_cselect_b32 s{sDL}, {-(NSB - 1) * STGS & 0xffffffff}, {STGS}')
        if i == 4: P(f's_add_u32 s{sIB}, s{sIB}, 1\ns_cmp_eq_u32 s{sIB}, {NSB}\ns_cselect_b32 s{sIB}, 0, s{sIB}')
        if i == 10: P.extend(upd[:4])
        if i == 11:
            P.extend(upd[4:])
            if OPT['stamps'] == 2: stamp(3, OPT['sq'] - 1)
            P(f's_add_u32 s{sCNT}, s{sCNT}, 1\ns_cmp_lt_u32 s{sCNT}, 18')
    P('s_cbranch_scc1 K1_QL\nK1_QE:\ns_barrier')
    for i in range(cut, NQ): P(qmf(i))
    if OPT['stamps'] == 1: stamp(2)
    P(f's_mov_b32 s6, {CSCALE}')
    for hd in range(2):
        for t in range(2):
            a = ACC9[hd][t]
            for i in range(4): P(f'v_mul_f32 v{a + i}, s6, v{a + i}')
            P(f'v_cvt_pk_bf16_f32 v{a}, v{a}, v{a + 1}\nv_cvt_pk_bf16_f32 v{a + 1}, v{a + 2}, v{a + 3}')
            P(f'ds_write_b64 v{S9 + 2}, {vr(a, 2)} offset:{hd * 4352 + t * 32}')
    for dt in [0, 1, 2, 3]:
        a = ACC[0][dt]
        for i in range(16): P(f'v_mul_f32 v{a + i}, s6, v{a + i}')
        for hf in range(2):
            for i in range(4): P(f'v_cvt_pk_bf16_f32 v{a + 8 * hf + i}, v{a + 8 * hf + 2 * i}, v{a + 8 * hf + 2 * i + 1}')
            P(f'ds_write_b128 v{S9 + 1}, {vr(a + 8 * hf, 4)} offset:{(2 * dt + hf) * 1024}')
    P('s_waitcnt vmcnt(0)')
    if OPT['fused']:
        P(f"""
        s_cmp_eq_u32 s{sW}, 4
        s_cbranch_scc0 K1_E2
        s_waitcnt vmcnt(0)
        v_cmp_eq_u32 vcc, 0, v244
        v_mov_b32 v246, {Q9B + 8704}
        s_mov_b64 exec, 1
        v_cndmask_b32 v244, v244, v247, vcc
        ds_write_b32 v246, v244
        s_getreg_b32 s3, hwreg(HW_REG_XCC_ID, 0, 4)
        v_lshl_add_u32 v245, v244, 4, s3
        s_and_b32 s3, s2, 7
        s_lshl_b32 s3, s3, 3
        s_add_u32 s3, s3, s{sB}
        s_lshl_b32 s3, s3, 5
        s_and_b32 s7, s{sJ}, 3
        s_add_u32 s3, s3, s7
        s_lshl_b32 s3, s3, 2
        v_mov_b32 v246, s3
        buffer_store_dword v245, v246, s[52:55], 0 offen offset:32 sc1
        s_mov_b64 exec, -1
        K1_E2:
        """)
    P(loopinit); P(narrow)
    P('s_barrier')
    P(getE)
    for kk in range(4): P(f'ds_read_b128 {vr(Q9 + 4 * kk, 4)}, v{S9} offset:{kk * 64}')
    for i in range(16): P(f'v_mul_f32 v{ACC[1][0] + i}, s6, v{ACC[1][0] + i}')
    P('s_barrier')
    P(getE2)
    for dt in range(4):
        a = ACC[1][dt]
        if dt:
            for i in range(16): P(f'v_mul_f32 v{a + i}, s6, v{a + i}')
        for i in range(8): P(f'v_cvt_pk_bf16_f32 v{Q + dt * 8 + i}, v{a + 2 * i}, v{a + 2 * i + 1}')
    for r in list(range(O, O + 64)) + list(range(CN, CN + 12)) + list(range(O9, O9 + 32)): P(f'v_mov_b32 v{r}, 0')
    P('s_barrier\nK1_HEAD:' if OPT['nbar'] == 2 else 'K1_HEAD:')

    def dma_sites(vo, srd, so, mb):
        out = []
        for n in range(4):
            g = [f's_add_u32 m0, s{mb}, s{sMW}', 's_nop 0'] if n == 0 else []
            g.append(f'buffer_load_dwordx4 v{vo}, s[{srd}:{srd + 3}], s{so} offen offset:{n * 1024} {nk} lds')
            if n == 3: g += [f's_add_u32 s{so}, s{so}, 16384', f's_and_b32 s{so}, s{so}, 0x1ffff']
            out.append(g)
        return out
    dmaV = dma_sites(VOV, 16, sSV, sIS); dmaK = dma_sites(VOK, 12, sSK, sIK)
    pre = OPT['opre'] == 1
    book = f"""s_cmp_lt_u32 s{sCNT}, {8 if pre else 7}
    s_cselect_b32 s{sIS}, s{sKP}, 0x30000
    s_add_u32 s{sKP}, s{sKP}, 65536
    s_cmp_ge_u32 s{sKP}, 163840
    s_cselect_b32 s3, 163840, 0
    s_sub_u32 s{sKP}, s{sKP}, s3
    s_sub_u32 s{sDK}, 65536, s3
    s_cmp_lt_u32 s{sCNT}, 5
    s_cselect_b32 s{sIK}, s{sVP}, 0x30000
    s_add_u32 s{sVP}, s{sVP}, 65536
    s_cmp_ge_u32 s{sVP}, 163840
    s_cselect_b32 s3, 163840, 0
    s_sub_u32 s{sVP}, s{sVP}, s3
    s_sub_u32 s{sDV}, 65536, s3""".split('\n')
    if OPT['nbar'] == 1:
        book = f"""s_mov_b32 s{sIS}, s{sKP}
    s_nop 0
    s_add_u32 s{sKP}, s{sKP}, 65536
    s_cmp_ge_u32 s{sKP}, 163840
    s_cselect_b32 s3, 163840, 0
    s_sub_u32 s{sKP}, s{sKP}, s3
    s_sub_u32 s{sDK}, 65536, s3
    s_cmp_lt_u32 s{sCNT}, 6
    s_cselect_b32 s{sIK}, s33, 0x30000
    s_mov_b32 s33, s{sVP}
    s_add_u32 s{sVP}, s{sVP}, 65536
    s_cmp_ge_u32 s{sVP}, 163840
    s_cselect_b32 s3, 163840, 0
    s_sub_u32 s{sVP}, s{sVP}, s3
    s_sub_u32 s{sDV}, 65536, s3""".split('\n')
        book.remove('    s_nop 0'); book.insert(6, 's_nop 0')
    book2 = f"""s_cmp_eq_u32 s{sCNT}, 6
    s_cselect_b32 s{sIK}, s6, s{sIK}
    s_cselect_b32 s12, s56, s12
    s_cselect_b32 s13, s57, s13
    s_cselect_b32 s14, 20480, s14
    s_cselect_b32 s{sSK}, 0, s{sSK}
    s_cmp_eq_u32 s{sCNT}, 7
    s_cselect_b32 s16, s56, s16
    s_cselect_b32 s17, s57, s17
    s_cselect_b32 s18, 20480, s18
    s_cselect_b32 s{sSV}, 4096, s{sSV}""".split('\n') if pre else []
    if pre: book.insert(7, f's_mov_b32 s6, s{sVP}')
    vupd = [f'v_add_u32 v{VA + i}, s{sDV}, v{VA + i}' for i in range(4)] + [f'v_add_u32 v{AV9}, s{sDV}, v{AV9}']
    kupd = [f'v_add_u32 v{AK}, s{sDK}, v{AK}', f'v_add_u32 v{AK9}, s{sDK}, v{AK9}']
    def kmain(kk, mt):
        tmp = [T0, T1][kk & 1]
        pre = [f'v_xor_b32 v{tmp}, {kk << 5}, v{AK}'] if (mt == 0 and kk) else []
        ad = tmp if kk else AK
        return dict(rd=lambda F: pre + [f'ds_read_b128 {vr(F, 4)}, v{ad} offset:{mt * 2048}'],
                    mf=lambda F: [mf32(S + 16 * mt, F, Q + 4 * kk, CN if kk == 0 else None)], w=32)
    def k9(kk):
        pre = [f'v_xor_b32 v{X0}, {kk << 6}, v{AK9}'] if kk else []
        ad = X0 if kk else AK9
        return dict(rd=lambda F: pre + [f'ds_read_b128 {vr(F, 4)}, v{ad}'],
                    mf=lambda F: [mf16(S9, F, Q9 + 4 * kk, CN9 if kk == 0 else None)], w=16)
    def vmain(ks, dt):
        mt, u = ks >> 1, ks & 1
        return dict(rd=lambda F: [f'ds_read_b64_tr_b16 {vr(F + 2 * j, 2)}, v{VA + dt} offset:{u * 8192 + j * 4096 + mt * 2048}' for j in range(2)],
                    mf=lambda F: [mf32(O + 16 * dt, F, PP + 4 * ks)], w=32)
    def v9(pp):
        pre = [f'v_xor_b32 v{X1}, {pp << 6}, v{AV9}'] if pp else []
        ad = X1 if pp else AV9
        return dict(rd=lambda F: pre + [f'ds_read_b64_tr_b16 {vr(F + 2 * j, 2)}, v{ad} offset:{32 * j}' for j in range(2)],
                    mf=lambda F: [mf16h(O9 + 4 * (2 * pp + j), F + 2 * j, P9) for j in range(2)], w=32)
    itA = []
    for kk in range(8):
        itA += [kmain(kk, 0), kmain(kk, 1)]
        if 1 <= kk <= 4: itA.append(k9(kk - 1))
    itC = []
    for dt in range(4): itC += [vmain(0, dt), v9(dt)]
    for ks in range(1, 4): itC += [vmain(ks, dt) for dt in range(4)]
    lastP = {0: 6, 1: 11, 2: 15, 3: 19, 9: 7}
    nb = len(FB); items = itA + itC; N = len(items); nA = len(itA)
    assert N % nb == 0 and nA % nb == 0
    RD = lambda i: items[i % N]['rd'](FB[i % nb])
    DL = OPT['bdelay']
    def MF(i, pair=True):
        m = items[i]['mf'](FB[i % nb])
        if pair and OPT['pairw'] and i % 2 == 0 and (i + 1) % nA != 0: m[0] += f' ; need {vr(FB[(i + 1) % nb], 4)}'
        return m
    def sync(wait='vmcnt(12)'): return [f's_waitcnt {wait}', 's_barrier']
    def gsync(lbl, group0, wait):
        return [f's_cmp_lt_u32 s{sW}, 4', f's_cbranch_scc{0 if group0 else 1} {lbl}', f's_waitcnt {wait}', 's_barrier', f'{lbl}:']
    DS = OPT['dstep']
    mx = [f'v_max3_f32 v{T1}, v{S9}, v{S9 + 1}, v{S9 + 2}', f'v_max_f32 v{T1}, v{T1}, v{S9 + 3}', f'v_max3_f32 v{T0}, v{S}, v{S + 1}, v{S + 2}']
    mx += [f'v_max3_f32 v{T0}, v{T0}, v{S + 3 + 2 * i}, v{S + 4 + 2 * i}' for i in range(6)]
    mx += [f'v_max3_f32 v{X0}, v{S + 16}, v{S + 17}, v{S + 18}']
    mx += [f'v_max3_f32 v{X0}, v{X0}, v{S + 19 + 2 * i}, v{S + 20 + 2 * i}' for i in range(6)]
    mx += [f'v_max3_f32 v{X0}, v{X0}, v{S + 15}, v{S + 31}', f'v_max_f32 v{T0}, v{T0}, v{X0}', f'v_max_f32 v{X0}, v{T0}, v{T1}', f'v_cmp_lt_f32 vcc, s{sT}, v{X0}']
    fill = []
    for ks in range(4):
        b = S + 8 * ks
        for i in range(0, 8, 2):
            fill += [(0, f'v_exp_f32 v{b + i}, v{b + i}'), (0, f'v_exp_f32 v{b + i + 1}, v{b + i + 1}')]
            if i: fill += [(0, f'v_add_f32 v{L}, v{L}, v{b + i - 2}'), (0, f'v_add_f32 v{L}, v{L}, v{b + i - 1}')]
        if ks == 0: fill += [(0, f'v_exp_f32 v{S9 + i}, v{S9 + i}') for i in range(4)]
        fill += [(0, f'v_add_f32 v{L}, v{L}, v{b + 6}'), (0, f'v_add_f32 v{L}, v{L}, v{b + 7}')]
        if ks == 0: fill += [(0, f'v_add_f32 v{L9}, v{L9}, v{S9 + i}') for i in range(4)]
        fill += [(lastP[ks], f'v_cvt_pk_bf16_f32 v{PP + 4 * ks + i}, v{b + 2 * i}, v{b + 2 * i + 1}') for i in range(4)]
        if ks == 0: fill += [(lastP[9], f'v_cvt_pk_bf16_f32 v{P9 + i}, v{S9 + 2 * i}, v{S9 + 2 * i + 1}') for i in range(2)]
    wosrd = f"""
    s_and_b32 s6, s2, 3
    s_mul_i32 s6, s6, {1024 * 1152}
    s_add_u32 s8, s100, s6
    s_addc_u32 s9, s101, 0
    s_sub_u32 s8, s8, 3072
    s_subb_u32 s9, s9, 0
    s_sub_u32 s10, {4096 * 1152 + 3072}, s6
    s_mov_b32 s11, 0x20000
    """
    def wotouch(drop):
        d1, d2, sfx = ('', '', 'lds') if drop else (f'v{Q + 1}, ', f'v{Q + 2}, ', '')
        va = X0 if drop else Q
        return f"""
    s_lshr_b32 s6, s2, 3
    s_lshl_b32 s6, s6, 3
    s_add_u32 s6, s6, s{sW}
    s_mul_i32 s6, s6, {36 * 128}
    s_add_u32 s6, s6, 3072
    {f's_add_u32 m0, s{sIS}, s{sMW}' if drop else ''}
    v_lshlrev_b32 v{va}, 6, v{TID}
    buffer_load_dword {d1}v{va}, s[8:11], s6 offen {OPT['nt_wo']} {sfx}
    s_add_u32 s6, s6, 4096
    s_mov_b64 exec, 0xff
    buffer_load_dword {d2}v{va}, s[8:11], s6 offen {OPT['nt_wo']} {sfx}
    s_mov_b64 exec, -1
    """
    if OPT['wot'] >= 2: P(wosrd)
    if OPT['opre'] == 1: P(obase)
    if OPT['opre'] >= 2:
        P(f"""
        s_lshl_b32 s6, s{sBR}, 3
        s_add_u32 s6, s6, s{sB}
        s_mul_i32 s6, s6, 1179648
        s_add_u32 s56, s66, s6
        s_addc_u32 s57, s67, 0
        s_mov_b32 s58, 1179648
        s_mov_b32 s59, 0x20000
        """)
    opre2 = f"""
    s_cmp_lg_u32 s{sCNT}, {OPT['opre']}
    s_cbranch_scc1 K1_OP
    s_sub_u32 s6, s{sKP}, s{sDK}
    s_add_u32 m0, s6, s{sMW}
    s_lshl_b32 s6, s{sJ}, 1
    s_add_u32 s6, s6, s{sP}
    s_lshl_b32 s7, s6, 13
    s_lshl_b32 s3, s{sWP}, 18
    s_add_u32 s7, s7, s3
    v_lshlrev_b32 v{X0}, 7, v{TID}
    buffer_load_dword v{X0}, s[56:59], s7 offen lds
    s_lshl_b32 s6, s6, 12
    s_lshl_b32 s7, s{sWP}, 10
    s_add_u32 s6, s6, s7
    s_add_u32 s6, s6, {1 << 20}
    s_mov_b64 exec, 0xff
    buffer_load_dword v{X0}, s[56:59], s6 offen lds
    s_mov_b64 exec, -1
    K1_OP:
    """
    if OPT['wot'] == 2: P(wotouch(True))
    for i in range(nb): P.extend(RD(i))
    if OPT['stamps'] == 1: stamp(7)
    for i in range(nA):
        P.extend(MF(i))
        if i + nb < nA: P.extend(RD(i + nb))
        if i + nb - nA == DL: P.extend(sync('vmcnt(63)') if OPT['nbar'] == 2 else gsync('K1_Y0', False, 'vmcnt(63)'))
        if i in (1, 3, 5, 7): P.extend(dmaV[(i - 1) // 2])
    if OPT['nbar'] == 1: P(f's_mov_b32 s{sIS}, 0x30000\ns_sub_u32 s{sSV}, s{sSV}, 16384\ns_and_b32 s{sSV}, s{sSV}, 0x1ffff')
    if OPT['pa'] != OPT['pc']: P(f's_setprio {OPT["pc"]}')
    P.extend(kupd + mx[:-1]); P('s_branch K1_RARE1\nK1_CPB:')
    P(f's_mov_b32 s{sRARE}, 0')
    ktail = [q for q in range(4) if DL + q * DS < nb]
    for i, (_, t) in enumerate(fill):
        P(t)
        if i == len(fill) - 12:
            P.extend(sync(f'vmcnt({X1N})') if OPT['nbar'] == 2 else gsync('K1_X1', True, f'vmcnt({X1N})'))
            for jj in range(nb): P.extend(RD(jj))
            for q in ktail if OPT['nbar'] == 2 else []: P.extend(dmaK[q])
    P('K1_TOP:')
    if OPT['ti']: stamp(5, 1); stamp(6, 2); stamp(9, 3); stamp(10, 5); stamp(11, 7)
    if OPT['stamps'] == 1 and not OPT['fused']: stamp(11, 2); stamp(8, 5)
    if OPT['pa'] != OPT['pc']: P(f's_setprio {OPT["pa"]}')
    if OPT['stamps'] == 2: stamp(7, 3); stamp(11, 4)
    def sites(pos, dm):
        return [x for q in range(4) if q * DS == pos for x in dm[q]]
    for i in range(nA):
        P.extend(MF(i))
        j = i + nb - nA
        if j < 0: P.extend(RD(i + nb))
        elif j == DL:
            if OPT['stamps'] == 2: stamp(9, 3)
            P.extend(sync() if OPT['nbar'] == 2 else gsync('K1_Y', False, 'vmcnt(4)'))
            if OPT['stamps'] == 2: stamp(1, 3)
            for jj in range(DL + 1): P.extend(RD(nA + jj))
        elif j > DL: P.extend(RD(i + nb))
        P.extend(sites(i + nb - DL, dmaK) if OPT['nbar'] == 2 else sites(i, dmaV))
        if j == DL and OPT['wot'] >= 3: P(f's_cmp_lg_u32 s{sCNT}, {OPT["wot"]}\ns_cbranch_scc1 K1_WT' + wotouch(True) + 'K1_WT:')
        if j == DL and OPT['opre'] >= 2: P(opre2)
        if j >= DL and OPT['nbar'] == 2: P.extend(sites(j - DL, dmaV))
        if i == 2: P.extend(vupd)
        if OPT['anop'] and i % 2 == 1: P(f's_nop {OPT["anop"]}')
        if i == 9: P.extend(book[:7])
        if i == 11: P.extend(book[7:])
        if i == 13: P.extend(book2)
    if OPT['stamps'] == 2: stamp(8, 3)
    if OPT['pa'] != OPT['pc']: P(f's_setprio {OPT["pc"]}')
    cost = lambda t: 2 if 'exp' in t else (0 if 'BR' in t else 1)
    full = [(0, t) for t in kupd + mx] + [(0, 'BR')] + fill
    tot = sum(cost(t) for _, t in full)
    pend = list(full); acc = 0; cw = 0; wsum = sum(it['w'] for it in itC)
    for c in range(len(itC)):
        i = nA + c
        P.extend(MF(i)); cw += itC[c]['w']
        j = i + nb - N
        if j < 0: P.extend(RD(i + nb))
        elif j == DL:
            if OPT['stamps'] == 2: stamp(4, 3)
            P.extend(sync() if OPT['nbar'] == 2 else gsync('K1_X', True, 'vmcnt(4)'))
            if OPT['stamps'] == 2: stamp(12, 3)
            for jj in range(DL + 1): P.extend(RD(jj))
        elif j > DL: P.extend(RD(i + nb))
        P.extend(sites(c + nb - DL, dmaV) if OPT['nbar'] == 2 else sites(c, dmaK))
        if j >= DL and OPT['nbar'] == 2: P.extend(sites(j - DL, dmaK))
        goal = tot * min(1.0, cw / (wsum - 32))
        q = 0
        while q < len(pend) and acc + cost(pend[q][1]) <= goal + 1:
            if pend[q][0] > c: q += 1; continue
            acc += cost(pend[q][1]); t = pend.pop(q)[1]
            P('s_cbranch_vccnz K1_RARE1\nK1_R1B:' if t == 'BR' else t)
    for _, t in pend: P(t)
    if OPT['stamps'] == 2: stamp(10, 3)
    P(f"""
    s_add_u32 s{sCNT}, s{sCNT}, 1
    s_add_u32 s3, s{sCNT}, s{sRARE}
    s_cmp_lt_u32 s3, 8
    s_cbranch_scc1 K1_TOP
    s_cmp_lg_u32 s{sRARE}, 0
    s_cbranch_scc1 K1_RARE2
    K1_NEXT:
    s_cmp_lt_u32 s{sCNT}, 8
    s_cbranch_scc1 K1_TOP
    s_branch K1_PVO
    """)
    P(f"""
    K1_RARE1:
    v_mov_b32 v{X0}, v{T0}
    v_mov_b32 v{X1}, v{T1}
    v_permlane32_swap_b32 v{T0}, v{X0}
    v_permlane32_swap_b32 v{T1}, v{X1}
    v_max3_f32 v{T0}, v{T0}, v{X0}, s{sCL}
    v_max_f32 v{T1}, v{T1}, v{X1}
    v_mov_b32 v{X1}, v{T1}
    v_max_f32 v{AL}, 0, v{T0}
    v_permlane16_swap_b32 v{T1}, v{X1}
    v_max3_f32 v{T1}, v{T1}, v{X1}, s{sCL}
    v_max_f32 v{AL9}, 0, v{T1}
    v_exp_f32 v{AL}, -v{AL}
    v_exp_f32 v{AL9}, -v{AL9}
    """)
    for i in range(32): P(f'v_sub_f32 v{S + i}, v{S + i}, v{T0}')
    for i in range(16): P(f'v_sub_f32 v{CN + i}, v{CN + i}, v{T0}')
    for i in range(4): P(f'v_sub_f32 v{S9 + i}, v{S9 + i}, v{T1}')
    for i in range(4): P(f'v_sub_f32 v{CN9 + i}, v{CN9 + i}, v{T1}')
    P(f"""
    v_mul_f32 v{L}, v{L}, v{AL}
    v_mul_f32 v{L9}, v{L9}, v{AL9}
    s_mov_b32 s{sT}, {f2u(8.0)}
    s_cmp_lg_u32 s{sCL}, 0
    s_mov_b32 s{sCL}, 0
    s_mov_b32 s{sRARE}, 8
    s_cbranch_scc1 K1_CPB
    s_branch K1_R1B
    K1_RARE2:
    """)
    for i in range(64): P(f'v_mul_f32 v{O + i}, v{O + i}, v{AL}')
    for i in range(32): P(f'v_mul_f32 v{O9 + i}, v{O9 + i}, v{AL9}')
    P(f"""
    s_mov_b32 s{sRARE}, 0
    s_branch K1_NEXT
    K1_PVO:
    """)
    if OPT['stamps'] == 1: stamp(3)
    P.extend(vupd)
    osrd = f'''
    s_lshl_b32 s6, s{sBR}, 3
    s_add_u32 s6, s6, s{sB}
    s_mul_i32 s6, s6, 1179648
    s_add_u32 s20, s66, s6
    s_addc_u32 s21, s67, 0
    s_mov_b32 s22, 1179648
    s_mov_b32 s23, 0x20000
    s_lshl_b32 s6, s{sJ}, 1
    s_add_u32 s6, s6, s{sP}
    s_lshl_b32 s7, s6, 13
    s_lshl_b32 s{sSK}, s{sWP}, 18
    s_add_u32 s{sSK}, s{sSK}, s7
    s_add_u32 s{sSV}, s{sSK}, 4096
    s_lshl_b32 s{sIS}, s6, 12
    s_lshl_b32 s7, s{sWP}, 10
    s_add_u32 s{sIS}, s{sIS}, s7
    s_add_u32 s{sIS}, s{sIS}, {1 << 20}
'''
    if OPT['opv']:
        P(osrd + f'''
        v_lshlrev_b32 v{Q}, 7, v{TID}
        buffer_load_dword v{Q + 1}, v{Q}, s[20:23], s{sSK} offen
        s_mov_b64 exec, 0xff
        buffer_load_dword v{Q + 2}, v{Q}, s[20:23], s{sIS} offen
        s_mov_b64 exec, -1
        ''')
    P(f's_and_b32 s{sKP}, s2, 3')
    if OPT['wot'] == 1: P(wosrd + wotouch(False))
    elif OPT['wot'] == 0: P(wosrd)
    P.extend(sync(f'vmcnt({2 * (OPT["wot"] == 1) + 2 * OPT["opv"]})') if OPT['nbar'] == 2 else gsync('K1_Y8', False, f'vmcnt({2 * (OPT["wot"] == 1) + 2 * OPT["opv"]})'))
    if OPT['fused'] and OPT['loc']:
        P(f"""
        s_cmp_eq_u32 s{sWP}, 0
        s_cbranch_scc0 K1_XL
        s_and_b32 s3, s2, 7
        s_lshl_b32 s3, s3, 3
        s_add_u32 s3, s3, s{sB}
        s_lshl_b32 s3, s3, 7
        v_lshlrev_b32 v{Q + 3}, 2, v{TID}
        s_mov_b64 exec, 15
        s_add_u32 s7, s3, 16384
        buffer_load_dword v{Q + 2}, v{Q + 3}, s[52:55], s7 offen nt
        buffer_load_dword v{Q + 3}, v{Q + 3}, s[52:55], s3 offen offset:32 sc1
        s_mov_b64 exec, -1
        K1_XL:
        """)
    for i in range(nb): P.extend(RD(nA + i))
    groups = [MF(nA + c) + (RD(nA + c + nb) if c + nb < len(itC) else []) for c in range(len(itC))]
    epi = ([] if OPT['opv'] else osrd.strip().split('\n')) + f'''
    v_mov_b32 v{T0}, v{L}
    v_mov_b32 v{T1}, v{L9}
    v_lshlrev_b32 v{VOK}, 4, v{TID}
    v_permlane32_swap_b32 v{L}, v{T0}
    v_permlane32_swap_b32 v{L9}, v{T1}
    v_add_f32 v{L}, v{L}, v{T0}
    v_add_f32 v{L9}, v{L9}, v{T1}
    v_mov_b32 v{T1}, v{L9}
    v_rcp_f32 v{AL}, v{L}
    v_permlane16_swap_b32 v{L9}, v{T1}
    v_add_f32 v{CN9 + 1}, v{L9}, v{T1}
    '''.strip().split('\n')
    epi += f"""s_cmp_lt_u32 s{sW}, 4
    s_cselect_b32 s45, 118784, 65536
    s_cselect_b32 s46, 135168, 155648
    s_lshl_b32 s7, s{sWP}, 11
    s_add_u32 s6, s45, s7
    v_add_u32 v116, s6, v{VOK}
    s_add_u32 s6, s46, s7
    v_add_u32 v117, s6, v{VOK}
    v_and_b32 v119, 15, v{TID}
    v_lshlrev_b32 v119, 3, v119
    s_lshl_b32 s7, s{sW}, 7
    s_add_u32 s7, s7, 20480
    v_add_u32 v118, s7, v119""".split('\n')
    wr9 = [f'ds_write_b64 v118, {vr(CN9, 2)}'] + [f'ds_write_b128 v{116 if sl < 3 else 117}, {vr(O9 + 8 * sl + 4 * t, 4)} offset:{(sl - 1) * 8192 * (sl < 3) + t * 1024}' for sl in range(1, 4) for t in range(2)]
    n1 = len(epi)
    epi += phase2(P, stamp, locals(), 0)
    epi += f"""s_mul_i32 s6, s{sP}, 36864
    s_lshl_b32 s7, s{sWP}, 12
    s_add_u32 s6, s6, s7
    s_add_u32 s6, s6, 81920
    v_add_u32 v{AL9}, s6, v{VOK}
    s_lshl_b32 s6, s{sW}, 7
    s_add_u32 s6, s6, 20480
    v_add_u32 v{S + 28}, s6, v119
    v_xor_b32 v{S + 29}, 0x80, v{S + 28}
    v_xor_b32 v{S + 30}, 0x100, v{S + 28}
    v_xor_b32 v{S + 31}, 0x180, v{S + 28}
    s_xor_b32 s7, s{sWP}, 1
    s_lshl_b32 s7, s7, 11
    s_add_u32 s7, s7, s45
    v_add_u32 v{S + 25}, s7, v{VOK}
    s_xor_b32 s7, s{sWP}, 2
    s_lshl_b32 s7, s7, 11
    s_add_u32 s7, s7, s45
    s_add_u32 s7, s7, 8192
    v_add_u32 v{S + 26}, s7, v{VOK}
    s_xor_b32 s7, s{sWP}, 3
    s_lshl_b32 s7, s7, 11
    s_add_u32 s7, s7, s46
    v_add_u32 v{S + 27}, s7, v{VOK}
    v_lshrrev_b32 v131, 5, v{TID}
    v_bfe_u32 v132, v{TID}, 4, 1
    v_lshlrev_b32 v137, 1, v119
    v_lshl_add_u32 v137, v131, 8, v137
    v_lshl_add_u32 v137, v132, 3, v137
    s_lshr_b32 s6, s{sW}, 1
    s_mul_i32 s6, s6, 18432
    s_and_b32 s7, s{sW}, 1
    s_lshl_b32 s7, s7, 10
    s_add_u32 s6, s6, s7
    s_add_u32 s6, s6, {81920 + 16384}
    v_add_u32 v138, s6, v137""".split('\n')
    epi = [e.strip() for e in epi]
    per = -(-len(epi) // len(groups))
    i = 0
    for gi, g in enumerate(groups):
        P.extend(g)
        j = min(len(epi), i + per)
        while j < len(epi) and (epi[j].split()[0] in ('s_addc_u32', 's_cselect_b64', 's_cselect_b32', 'v_cndmask_b32')): j += 1
        P.extend(epi[i:j]); i = j
        if gi >= 10 and wr9:
            assert i >= n1
            P(wr9.pop(0))
    P.extend(epi[i:]); P.extend(wr9)
    ST = CN; PT = [None, Q9, Q9 + 8, PP]; R9 = PP + 8
    P('s_barrier')
    for w in range(4): P(f'ds_read_b64 {vr(ST + 2 * w, 2)}, v{S + 28 + w}')
    for w in range(1, 4):
        for t in range(2): P(f'ds_read_b128 {vr(PT[w] + 4 * t, 4)}, v{S + 24 + w} offset:{t * 1024}')
    P(f's_cmp_lt_u32 s{sW}, 4\ns_cbranch_scc0 K1_Z')
    phase2(P, stamp, locals(), 3)
    P('s_barrier\nK1_Z:')
    if OPT['stamps'] == 1: stamp(4)
    os_ = '' if OPT['loc'] else 'sc1'
    mg = [f'v_min3_f32 v{ST + 8}, v{ST}, v{ST + 2}, v{ST + 4}', f'v_min_f32 v{ST + 8}, v{ST + 8}, v{ST + 6}']
    mg += [f'v_sub_f32 v{ST + 2 * w}, v{ST + 8}, v{ST + 2 * w}' for w in range(4)]
    mg += [f'v_exp_f32 v{ST + 2 * w}, v{ST + 2 * w}' for w in range(4)]
    mg += [f'v_mul_f32 v{ST + 9}, v{ST}, v{ST + 1}'] + [f'v_fmac_f32 v{ST + 9}, v{ST + 2 * w}, v{ST + 2 * w + 1}' for w in range(1, 4)]
    mg += [f'v_rcp_f32 v{ST + 9}, v{ST + 9}']
    mg += [f'v_mul_f32 v{R9 + i}, v{O9 + i}, v{ST}' for i in range(8)]
    for w in range(1, 4): mg += [f'v_fmac_f32 v{R9 + i}, v{PT[w] + i}, v{ST + 2 * w}' for i in range(8)]
    mg += [f'v_mul_f32 v{R9 + i}, v{R9 + i}, v{ST + 9}' for i in range(8)]
    for t in range(2):
        mg += [f'v_cvt_pk_bf16_f32 v{ST + 10 + 2 * t}, v{R9 + 4 * t}, v{R9 + 4 * t + 1}', f'v_cvt_pk_bf16_f32 v{ST + 11 + 2 * t}, v{R9 + 4 * t + 2}, v{R9 + 4 * t + 3}',
               f'ds_write_b64 v138, {vr(ST + 10 + 2 * t, 2)} offset:{t * 512}', f'buffer_store_dwordx2 {vr(ST + 10 + 2 * t, 2)}, v137, s[20:23], s{sIS} offen offset:{t * 512} {os_}']
    for dt in range(4):
        for i in range(16): P(f'v_mul_f32 v{O + 16 * dt + i}, v{O + 16 * dt + i}, v{AL}')
        for hf in range(2):
            d = S + 8 * dt + 4 * hf
            for i in range(4): P(f'v_cvt_pk_bf16_f32 v{d + i}, v{O + 16 * dt + 8 * hf + 2 * i}, v{O + 16 * dt + 8 * hf + 2 * i + 1}')
            ks = 2 * dt + hf
            P(f'ds_write_b128 v{AL9}, {vr(d, 4)} offset:{(ks >> 2) * 18432 + (ks & 3) * 1024}')
            if not OPT['lates']: P(f'buffer_store_dwordx4 {vr(d, 4)}, v{VOK}, s[20:23], s{sSK if ks < 4 else sSV} offen offset:{(ks & 3) * 1024} {os_}')
        if dt == 0: P.extend(mg)
    if OPT['lates']:
        for ks in range(8): P(f'buffer_store_dwordx4 {vr(S + 4 * ks, 4)}, v{VOK}, s[20:23], s{sSK if ks < 4 else sSV} offen offset:{(ks & 3) * 1024} {os_}')
    if OPT['fused']: phase2(P, stamp, locals(), 2)
    if OPT['stamps']:
        P('K1_STAMPS:' if OPT['fused'] else 's_waitcnt vmcnt(0)')
        if not OPT['fused']: stamp(4)
        P(f'''
        s_waitcnt lgkmcnt(0)
        s_add_u32 s20, s66, {WS_STAMP}
        s_addc_u32 s21, s67, 0
        s_mov_b32 s22, 0x100000
        s_mov_b32 s23, 0x20000
        s_lshl_b32 s6, s2, 3
        s_add_u32 s6, s6, s{sW}
        s_lshl_b32 s6, s6, 7
        v_mov_b32 v2, s6
        s_mov_b64 exec, 1
        ''')
        if OPT['probe'] >= 0:
            k = OPT['probe']
            lo, base = (98, 96) if k == 99 else (70 + 2 * k, 70)
            P(f"""
            s_cmp_lg_u32 s2, {OPT['pwg']}
            s_cbranch_scc1 K1_END
            s_cmp_lg_u32 s{sW}, {OPT['pw']}
            s_cbranch_scc1 K1_END
            s_sub_u32 s6, s{lo}, s{base}
            s_mul_i32 s6, s6, {1 if k == 99 else 10}
            s_memrealtime s[72:73]
            s_waitcnt lgkmcnt(0)
            s_add_u32 s6, s6, s72
            {'s_add_u32 s6, s70, 30000' if k == 0 else ''}
            K1_SPIN:
            s_memrealtime s[72:73]
            s_waitcnt lgkmcnt(0)
            s_sub_u32 s7, s72, s6
            s_cmp_lt_i32 s7, 0
            s_cbranch_scc1 K1_SPIN
            s_branch K1_END
            """)
        if OPT['dbgst']:
            P('s_mov_b32 s20, s64\ns_mov_b32 s21, s65\ns_mov_b32 s22, 256\nv_mov_b32 v2, 0\ns_not_b32 s70, s70')
            for i, k in enumerate([0, 1, 2, 7, 3, 4, 5, 6, 9, 10, 11, 8]):
                P(f'v_mov_b32 v4, s{70 + 2 * k}\nbuffer_atomic_umax v4, v2, s[20:23], 0 offen offset:{4 + 4 * i}\ns_nop 1')
        for k in range(0 if OPT['dbgst'] else 15):
            P(f'v_mov_b32 v4, s{70 + 2 * k}\nv_mov_b32 v5, s{71 + 2 * k}\nbuffer_store_dwordx2 v[4:5], v2, s[20:23], 0 offen offset:{8 * k}\ns_nop 1')
    P('K1_END:\ns_endpgm')
    a0 = [i for i, x in enumerate(P.ins) if x.text == 'K1_G1:'][0]; a1 = [i for i, x in enumerate(P.ins) if x.text == 'K1_PVO:'][0]
    keep = []; dcount = [0]
    kt = [i for i, x in enumerate(P.ins) if x.text == 'K1_TOP:'][0]
    kp0 = [i for i, x in enumerate(P.ins) if x.text == 'K1_G1:'][0]; kp1 = [i for i, x in enumerate(P.ins) if x.text == 'K1_QL:'][0]
    for i, x in enumerate(P.ins):
        if a0 < i < a1:
            if OPT['nodma'] and x.dma and not (kp0 < i < kp1): continue
            if OPT['nobar'] and x.kind == 'barrier': continue
            if OPT['noexp'] and x.kind in ('valu', 'trans') and ('exp' in x.text or 'v_add_f32' in x.text or 'cvt_pk' in x.text or 'max3' in x.text): continue
            if OPT['nolds'] and x.kind == 'ds_r': continue
            if OPT['diag'] & 1 and i > kt and 'v_add_f32' in x.text: continue
            if OPT['diag'] & 2 and i > kt and 'v_max3' in x.text and 's46' not in x.text: continue
            if OPT['diag'] & 4 and i > kt and x.kind == 'ds_r':
                dcount[0] += 1
                if (dcount[0] // 4) % 2: continue
            if OPT['diag'] & 8 and i > kt and '16x16x16' in x.text: continue
            if OPT['diag'] & 16 and i > kt and 'v_exp' in x.text and '-v' not in x.text:
                x = parse(x.text.replace('v_exp_f32', 'v_mov_b32'))
            if OPT['nomf'] and i > kt and (x.kind in ('mfma', 'ds_r', 'trans') or (x.kind == 'valu' and 'v_cmp' not in x.text)): continue
        keep.append(x)
    P.ins = keep
    return P.finish()

def desc(name, vg, sg=102):
    return f'''.amdhsa_kernel {name}
  .amdhsa_next_free_vgpr {vg}
  .amdhsa_next_free_sgpr {sg}
  .amdhsa_accum_offset {(vg + 3) // 4 * 4}
  .amdhsa_group_segment_fixed_size 0
  .amdhsa_kernarg_size 104
  .amdhsa_user_sgpr_count 2
  .amdhsa_user_sgpr_kernarg_segment_ptr 1
  .amdhsa_system_sgpr_workgroup_id_x 1
  .amdhsa_float_denorm_mode_32 3
.end_amdhsa_kernel
'''

def main():
    ref = open('cdna_kernels/%s.s.ref' % NAME).read().split('\n')
    hdr = [l for l in ref if l.startswith(';') and '@launch' not in l and 'Override launch' not in l and 'grid=ceil' not in l]
    hdr = hdr[:14]
    ks = [('attn_kernel', k1(), 256, '(256,1,1)', '(%d,1,1)' % OPT['blk'], 163840),
          ]
    out = '\n'.join(hdr) + '\n'
    if OPT['fused']:
        ks = [(NAME + '_kernel',) + ks[0][1:]]
        out += f'; @launch grid={ks[0][3]} block={ks[0][4]} lds={ks[0][5]}\n'
    else:
        for n, _, _, g, b, l in ks: out += f'; @launch kernel={n} grid={g} block={b} lds={l}\n'
    out += '.amdgcn_target "amdgcn-amd-amdhsa--gfx950"\n.text\n'
    for n, body, _, _, _, _ in ks:
        out += f'.globl {n}\n.p2align 8\n.type {n},@function\n{n}:\n' + 'K1_START:\n' + body.replace('@CODELEN@', 'K1_END-K1_START').replace('@PCOFF@', 'K1_PC-K1_START').replace('@PC2OFF@', 'K1_QE-K1_PC2').replace('@LEN2@', 'K1_END-K1_QE')
    out += '.section .rodata,"a"\n'
    for n, _, vg, _, _, _ in ks: out += '.p2align 6\n' + desc(n, vg)
    open(sys.argv[1], 'w').write(out)
main()
```

```python
import sys, struct, math
from asmlib import *

NAME = 'concat_heads__mha_block_cached__gqa_block_cached__near_ridge'
def f2u(x): return struct.unpack('<I', struct.pack('<f', x))[0]
CSCALE = f2u(math.log2(math.e) / math.sqrt(128.0))

OPT = dict(nt_kv='nt', nt_w='', nt_x='', ostore='', stamps=0, touch=0, k2nb=3, nt_wo='', nt_o='', nodma=0, nobar=0, noexp=0, nolds=0, prio=0, bdelay=0, blk=512, pa=0, pc=1, pairw=1, qdelay=3, wtouch=0, kvs='000000000000044460a4', nsb=5, dstep=2, trows=15, tlead=0, ptouch=0, tl=0, nopoll=0, ot=-9, opre=0, dyn=0, fb=2, kpre=0, q16=0, ep=6, pt2=0, nt_wd='', bh=0, bt=0, btf='', ti=0, d3=0, opv=0, cts=-9, tb='', bs='56789abc', bn=16, diag=0, nbar=1, rot=1, rotx=0, rotp=4, lates=0, qnop=0, anop=0, ctouch=0, sp='01111212111111', ts=-1, npre=3, dist=3, sq=9, fused=1, p2nb=3, wot=1, ld2='', spin=200000, dbgst=0, loc=1, bgwb=0, nomf=0, nokv=0, nost=0, probe=-1, pwg=8, pw=4)
for a in sys.argv[2:]:
    k, v = a.split('=')
    OPT[k] = int(v) if (v.lstrip('-').isdigit() and k not in ('kvs', 'sp', 'bs')) else v

WS_O_BR = 36 * 256 * 1024
WS_PART = 0x1400000
WS_FLAG = 0x3000000
WS_STAMP = 0x4000000

def lanes(P, dst, expr_list):
    for e in expr_list: P(e)

def mf32(d, a, b, c=None):
    return f'v_mfma_f32_32x32x16_bf16 {vr(d, 16)}, {vr(a, 4)}, {vr(b, 4)}, {vr(d if c is None else c, 16)}'
def mf16(d, a, b, c=None):
    return f'v_mfma_f32_16x16x32_bf16 {vr(d, 4)}, {vr(a, 4)}, {vr(b, 4)}, {vr(d if c is None else c, 4)}'
def mf16h(d, a, b):
    return f'v_mfma_f32_16x16x16_bf16 {vr(d, 4)}, {vr(a, 2)}, {vr(b, 2)}, {vr(d, 4)}'


def phase2(P, stamp, env, part):
    sW, sWP, sBR, sE, sKS, TID, sB, sJ = env['sW'], env['sWP'], env['sBR'], env['sE'], env['sKP'], env['TID'], env['sB'], env['sJ']
    NB = 4; WST, OST, OOF = 20480, 18432, 81920
    sJJ, sTID, sCNT, sIB, sDL, sTMP, sSPIN = 56, 58, 30, 36, 37, 48, 44
    sSW, sSO, sMW, sMO, sPW, sPO, sIBW, sNB, sM9, sD2, sS9 = 59, 60, 61, 62, 63, 35, 31, 33, 43, 47, 57
    if OPT['stamps'] != 1: stamp = lambda *a: None
    if OPT['ti']:
        st0 = stamp; stamp = lambda k, *a: st0(k, *a) if k == 8 else None
    sNEED = 38
    VW = [120, 121, 122, 123, 124]; VO, VF, VP = 141, 142, 143
    A0, A1, A90, A91, AB, AB9 = 125, 126, 127, 128, 129, 130
    done = 'K1_STAMPS' if OPT['stamps'] else 'K1_END'
    def poll(lbl, off):
        return f"""
    s_mov_b32 s{sSPIN}, {OPT['spin']}
    {lbl}:
    s_mov_b64 exec, 15
    buffer_load_dword v{VP}, v{VF}, s[52:55], s{off} offen sc1
    s_mov_b64 exec, -1
    s_sub_u32 s{sSPIN}, s{sSPIN}, 1
    s_cbranch_scc1 {lbl}X
    s_waitcnt vmcnt(0)
    v_cmp_eq_u32 vcc, s{sE}, v{VP}
    s_and_b64 s[6:7], vcc, s[{sNEED}:{sNEED + 1}]
    s_cmp_eq_u64 s[6:7], s[{sNEED}:{sNEED + 1}]
    s_cbranch_scc0 {lbl}
    {lbl}X:
    """
    def wb(lbl, first):
        if not OPT['loc']: return ''
        o = ''
        if first: o = f"""
    s_getreg_b32 s3, hwreg(HW_REG_XCC_ID, 0, 4)
    s_lshl_b32 s7, s{sE}, 4
    s_add_u32 s3, s3, s7
    s_waitcnt vmcnt(10)
    v_cmp_eq_u32 vcc, s3, v{env['Q'] + 3}
    s_and_b32 s{sNB}, vcc_lo, 15
    """
        return o + f"""
    s_cmp_eq_u32 s{sNB}, {15 if OPT['loc'] == 1 else 0}
    s_cbranch_scc1 {lbl}
    buffer_wbl2 sc1
    s_waitcnt vmcnt(0)
    {lbl}:
    """
    def issW():
        o = f's_mul_i32 s7, s{sPW}, {64 * 1152}\ns_add_u32 s7, s7, s{sSW}\ns_add_u32 m0, s{sIBW}, s{sMW}\ns_add_u32 s{sPW}, s{sPW}, 1\n'
        for n in range(5):
            if n == 4: o += 's_add_u32 m0, m0, 4096\ns_nop 0\n'
            o += f'buffer_load_dwordx4 v{VW[n]}, s[8:11], s7 offen offset:{(n & 3) * 1024} {OPT["nt_wo"]} lds\n'
        return o + f's_and_b32 s{sPW}, s{sPW}, 15\ns_add_u32 s{sIBW}, s{sIBW}, {WST}\ns_cmp_eq_u32 s{sIBW}, {NB * WST}\ns_cselect_b32 s{sIBW}, 0, s{sIBW}\n'
    def issO():
        o = f's_add_u32 m0, s{sIB}, s{sMO}\ns_lshl_b32 s7, s{sPO}, 12\ns_add_u32 s7, s7, s{sSO}\n'
        for e in range(4): o += f'buffer_load_dwordx4 v{VO}, s[20:23], s7 offen offset:{e * 1024} {OPT["ld2"]} lds\n'
        o += f's_add_u32 m0, s{sIB}, s{sM9}\ns_lshl_b32 s7, s{sPO}, 11\ns_add_u32 s7, s7, s{sS9}\ns_mov_b32 exec_hi, 0\n'
        o += f'buffer_load_dwordx4 v{VO}, s[20:23], s7 offen {OPT["ld2"]} lds\ns_mov_b32 exec_hi, -1\n'
        return o + f's_add_u32 s{sPO}, s{sPO}, 1\ns_and_b32 s{sPO}, s{sPO}, 15\ns_add_u32 s{sIB}, s{sIB}, {OST}\ns_cmp_eq_u32 s{sIB}, {NB * OST}\ns_cselect_b32 s{sIB}, 0, s{sIB}\n'
    if part == 0:
        o = f"""
        s_and_b32 s{sJJ}, s{sJ}, 3
        s_lshl_b32 s{sTID}, s{sBR}, 3
        s_add_u32 s{sTID}, s{sTID}, s{sB}
        s_lshl_b32 s{sTID}, s{sTID}, 2
        s_add_u32 s{sTID}, s{sTID}, s{sJJ}
        s_lshl_b32 s{sPW}, s{sJJ}, 2
        s_add_u32 s{sPO}, s{sPW}, 4
        s_and_b32 s{sPO}, s{sPO}, 15
        s_and_b32 s3, s2, 7
        s_lshl_b32 s3, s3, 3
        s_add_u32 s3, s3, s{sB}
        s_lshl_b32 s{sTMP}, s3, 7
        v_lshlrev_b32 v{VF}, 2, v{TID}
        v_lshlrev_b32 v{VO}, 4, v{TID}
        v_mov_b32 v{VP}, s{sE}
        v_mov_b32 v140, v{TID}
        s_mul_i32 s{sSW}, s{sJJ}, 288
        s_and_b32 s{sSW}, s{sSW}, 0xffc0
        s_mul_i32 s3, s{sWP}, {16 * 1152}
        s_add_u32 s{sSW}, s{sSW}, s3
        s_mul_i32 s{sMW}, s{sWP}, 5120
        s_lshl_b32 s{sMO}, s{sWP}, 12
        s_add_u32 s{sMO}, s{sMO}, {OOF}
        s_lshl_b32 s{sM9}, s{sWP}, 9
        s_lshl_b32 s{sS9}, s{sKS}, 15
        s_add_u32 s{sS9}, s{sS9}, s{sM9}
        s_add_u32 s{sS9}, s{sS9}, {1 << 20}
        s_add_u32 s{sM9}, s{sM9}, {OOF + 16384}
        s_lshl_b32 s{sSO}, s{sKS}, 16
        s_lshl_b32 s3, s{sWP}, 18
        s_add_u32 s{sSO}, s{sSO}, s3
        s_lshl_b32 s3, s{sB}, 2
        s_lshl_b32 s{sNB}, 1, s3
        s_mov_b32 s{sIB}, 0
        s_mov_b32 s{sIBW}, 0
        s_mov_b32 s3, 52429
        """
        for n in range(5):
            o += f"""
        v_add_u32 v131, {64 * n}, v{TID}
        v_mul_lo_u32 v132, s3, v131
        v_lshrrev_b32 v132, 20, v132
        v_mul_u32_u24 v133, 20, v132
        v_sub_u32 v133, v131, v133
        v_bfe_u32 v134, v132, 3, 1
        v_lshlrev_b32 v134, 1, v134
        v_xor_b32 v133, v133, v134
        v_mul_u32_u24 v132, 1152, v132
        v_lshl_add_u32 v132, v133, 4, v132
        v_add_u32 v{VW[n]}, {3072 - (n & 3) * 1024}, v132
        """
        o += f"""
        v_lshrrev_b32 v131, 4, v{TID}
        v_bfe_u32 v132, v{TID}, 2, 2
        v_lshl_add_u32 v132, v131, 3, v132
        v_mul_u32_u24 v132, 320, v132
        v_bfe_u32 v133, v{TID}, 1, 1
        v_lshl_add_u32 v132, v133, 4, v132
        v_and_b32 v133, 1, v{TID}
        v_lshl_add_u32 v132, v133, 3, v132
        v_and_b32 v133, 1, v131
        v_lshl_add_u32 v134, v133, 5, v132
        v_xor_b32 v135, 1, v133
        v_lshl_add_u32 v135, v135, 5, v132
        v_add_u32 v136, 64, v134
        s_bitcmp0_b32 s{sJJ}, 0
        s_cselect_b64 vcc, -1, 0
        s_lshl_b32 s3, s{sWP}, 6
        v_cndmask_b32 v{A0}, v135, v134, vcc
        v_cndmask_b32 v{A1}, v136, v135, vcc
        v_add_u32 v{A90}, s3, v{A0}
        v_add_u32 v{A91}, s3, v{A1}
        v_and_b32 v132, 15, v{TID}
        v_lshlrev_b32 v132, 4, v132
        v_lshrrev_b32 v131, 1, v131
        v_lshl_add_u32 v134, v133, 9, v132
        v_lshl_add_u32 v134, v131, 10, v134
        v_add_u32 v{AB}, s{sMO}, v134
        v_lshl_add_u32 v134, v133, 8, v132
        v_lshl_add_u32 v134, v131, 9, v134
        v_add_u32 v{AB9}, {OOF + 16384}, v134
        """
        return [l.strip() for l in o.split('\n') if l.strip()]
    if part == 3:
        P(issW()); return
    P(f"""
    s_cmp_ge_u32 s{sW}, 4
    s_cbranch_scc1 P2_G1
    s_waitcnt vmcnt(0)
    s_barrier
    """)
    stamp(5)
    def fl(l): return (f's_mov_b64 exec, 0xff\ns_cmp_eq_u32 s{sD2}, {15 if OPT["loc"] == 1 else 0}\ns_cbranch_scc1 {l}L\nbuffer_load_dword v{VP}, v{VF}, s[52:55], s{sTMP} offen sc1\ns_branch {l}M\n'
                       f'{l}L:\nbuffer_load_dword v{VP}, v{VF}, s[52:55], s{sDL} offen nt\n{l}M:\ns_mov_b64 exec, -1\n')
    P(f"""
    s_getreg_b32 s3, hwreg(HW_REG_XCC_ID, 0, 4)
    s_lshl_b32 s7, s{sE}, 4
    s_add_u32 s3, s3, s7
    v_cmp_eq_u32 vcc, s3, v{env['Q'] + 3}
    s_and_b32 s{sD2}, vcc_lo, 15
    s_add_u32 s{sDL}, s{sTMP}, 16384
    """)
    P('v_mov_b32 v137, 163832\nv_mov_b32 v138, 0\nds_write_b32 v137, v138')
    P(issW() + issW() + issW())
    P(f's_cmp_lg_u32 s{sW}, 0\ns_cbranch_scc1 P2_F0\n{fl("P2_F1")}P2_F0:')
    P(f"""
    s_waitcnt vmcnt(10)
    s_barrier
    s_waitcnt vmcnt(5)
    s_barrier
    s_waitcnt vmcnt(0)
    s_mov_b32 s{sNB}, 0
    s_mov_b32 s{sCNT}, 2
    s_sub_u32 s{sPW}, s{sPW}, 2
    P2_LD:
    s_cmp_eq_u32 s{sCNT}, 8
    s_cselect_b32 s3, 8, 2
    s_cselect_b32 s{sNB}, 4, s{sNB}
    s_add_u32 s{sPW}, s{sPW}, s3
    s_and_b32 s{sPW}, s{sPW}, 15
    s_cmp_lg_u32 s{sW}, 0
    s_cbranch_scc1 P2_PO
    s_lshr_b32 s3, s{sPW}, 2
    s_add_u32 s3, s3, s{sNB}
    s_mov_b32 s{sSPIN}, {OPT['spin']}
    P2_PF:
    v_cmp_eq_u32 vcc, s{sE}, v{VP}
    s_bitcmp1_b32 vcc_lo, s3
    s_cbranch_scc1 P2_PG
    {fl('P2_F2')}
    s_sub_u32 s{sSPIN}, s{sSPIN}, 1
    s_waitcnt vmcnt(0)
    s_cbranch_scc0 P2_PF
    P2_PG:
    v_mov_b32 v138, s{sCNT}
    ds_write_b32 v137, v138
    s_cmp_lg_u32 s{sCNT}, 6
    s_cbranch_scc1 P2_PN
    {fl('P2_F3')}
    s_branch P2_PN
    P2_PO:
    ds_read_b32 v138, v137
    s_waitcnt lgkmcnt(0)
    v_readfirstlane_b32 s6, v138
    s_cmp_eq_u32 s6, s{sCNT}
    s_cbranch_scc0 P2_PO
    P2_PN:
    s_mov_b32 s{sPO}, s{sPW}
    """)
    if OPT['d3']:
        P(issO() + issW() + f's_cmp_eq_u32 s{sCNT}, 2\ns_cbranch_scc1 P2_D3\ns_waitcnt vmcnt(20)\ns_barrier\nP2_D3:\n' + issO() + issW())
        P(f's_add_u32 s{sCNT}, s{sCNT}, 2\ns_cmp_lt_u32 s{sCNT}, 14\ns_waitcnt vmcnt(20)\ns_barrier\ns_cbranch_scc1 P2_LD')
        P('s_waitcnt vmcnt(10)\ns_barrier\ns_waitcnt vmcnt(0)\ns_barrier\ns_barrier\ns_branch P2_RED')
    else:
        P(issO() + issW() + 's_waitcnt vmcnt(10)\ns_barrier\n' + issO() + issW())
        P(f's_add_u32 s{sCNT}, s{sCNT}, 2\ns_cmp_lt_u32 s{sCNT}, 14\ns_waitcnt vmcnt(10)\ns_barrier\ns_cbranch_scc1 P2_LD')
        P('s_waitcnt vmcnt(0)\ns_barrier\ns_barrier\ns_branch P2_RED')
    ACC = [[4 * (2 * t + j) for j in range(2)] for t in range(9)]; AC9 = [72, 76, 80]
    SET = [dict(A=[144 + 4 * t for t in range(9)], A9=[180, 184], B=[188, 192], B9=196),
           dict(A=[200 + 4 * t for t in range(9)], A9=[236, 240], B=[244, 248], B9=252)]
    P(f"""
    P2_G1:
    s_lshl_b32 s6, s{sTID}, 2
    s_add_u32 s6, s6, s{sKS}
    s_lshl_b32 s6, s6, 2
    s_add_u32 s6, s6, s{sWP}
    s_mul_i32 s6, s6, 11264
    s_add_u32 s6, s6, {WS_PART}
    s_add_u32 s16, s66, s6
    s_addc_u32 s17, s67, 0
    s_mov_b32 s18, 11264
    s_mov_b32 s19, 0x20000
    s_mov_b32 s{sIB}, 0
    s_mov_b32 s{sCNT}, 1
    s_mov_b32 s{sDL}, {WST}
    s_mov_b32 s{sD2}, {OST}
    s_lshl_b32 s6, s{sJJ}, 2
    s_add_u32 s{sTMP}, s6, s{sTMP}
    s_barrier
    s_cmp_eq_u32 s{sW}, 4
    s_cbranch_scc0 P2_FA
    s_add_u32 s{sSPIN}, s{sTMP}, 16384
    s_mov_b64 exec, 1
    buffer_store_dword v{VP}, v{VF}, s[52:55], s{sSPIN} offen
    s_mov_b64 exec, -1
    {wb('P2_WA', True).replace('vmcnt(10)', 'vmcnt(11)')}
    s_mov_b64 exec, 1
    buffer_store_dword v{VP}, v{VF}, s[52:55], s{sTMP} offen sc1
    s_mov_b64 exec, -1
    P2_FA:
    """)
    stamp(6)
    def rd(st, K):
        o = [f'ds_read_b128 {vr(st["B"][j], 4)}, v{AB} offset:{K * 2048 + j * 256}' for j in range(2)]
        for t in range(9):
            o += [f'ds_read_b64_tr_b16 {vr(st["A"][t] + 2 * j, 2)}, v{[A0, A1][t & 1]} offset:{K * 10240 + j * 1280 + 64 * (t >> 1)}' for j in range(2)]
            if t == 7: o.append(f'ds_read_b128 {vr(st["B9"], 4)}, v{AB9} offset:{K * 1024}')
        for t in range(2):
            o += [f'ds_read_b64_tr_b16 {vr(st["A9"][t] + 2 * j, 2)}, v{[A90, A91][t]} offset:{K * 10240 + j * 1280}' for j in range(2)]
        return o
    last = []
    def step(cur, rds, extra=(), first=False, tailbr=None):
        z = lambda d, a, b: f'v_mfma_f32_16x16x32_bf16 {vr(d, 4)}, {vr(a, 4)}, {vr(b, 4)}, 0' if first else mf16(d, a, b)
        m = []
        for t in range(9): m += [z(ACC[t][0], cur['A'][t], cur['B'][0]), z(ACC[t][1], cur['A'][t], cur['B'][1])]
        m += [z(AC9[2], cur['A'][8], cur['B9']), z(AC9[0], cur['A9'][0], cur['B9']), z(AC9[1], cur['A9'][1], cur['B9'])]
        for i in (0, 6, 12): m[i] += f' ; need {vr(cur["A"][i // 2 + 2], 4)}'
        m[18] += f' ; need {vr(cur["A9"][1], 4)}'
        rds = list(rds); extra = list(extra)
        for i, x in enumerate(m):
            if tailbr and i == len(m) - 1:
                assert not extra and not rds
                P(f's_cbranch_scc1 {tailbr}'); last.append(x)
            P(x)
            n = 2 if i % 3 != 2 else 1
            if rds: P.extend(rds[:n]); rds = rds[n:]
            elif extra: P.extend(extra[:2]); extra = extra[2:]
        assert not rds
        P.extend(extra)
    upd = [f'v_add_u32 v{r}, s{sDL}, v{r}' for r in (A0, A1, A90, A91)] + [f'v_add_u32 v{r}, s{sD2}, v{r}' for r in (AB, AB9)]
    ring = [f's_add_u32 s{sIB}, s{sIB}, 1', f's_and_b32 s{sIB}, s{sIB}, 3', f's_cmp_eq_u32 s{sIB}, {NB - 1}',
            f's_cselect_b32 s{sDL}, {-(NB - 1) * WST & 0xffffffff}, {WST}', f's_cselect_b32 s{sD2}, {-(NB - 1) * OST & 0xffffffff}, {OST}']
    P.extend(rd(SET[0], 0))
    step(SET[0], rd(SET[1], 1), upd, first=True)
    P('s_barrier\ns_branch P2_M\nP2_L:')
    if OPT['tl'] == 1: stamp(2, 3); stamp(7, 8); stamp(3, 12)
    step(SET[0], rd(SET[1], 1), upd + [f's_add_u32 s{sCNT}, s{sCNT}, 1', f's_cmp_eq_u32 s{sCNT}, {OPT["fb"]}'], tailbr='P2_SPEC')
    P('s_barrier\nP2_M:')
    step(SET[1], rd(SET[0], 0), ring + [f's_cmp_lt_u32 s{sCNT}, 16'])
    P('s_cbranch_scc1 P2_L\ns_branch P2_E\nP2_SPEC:\n' + last[0])
    P(f"""
    s_waitcnt vmcnt(0)
    s_barrier
    s_cmp_eq_u32 s{sW}, 4
    s_cbranch_scc0 P2_M
    s_mov_b64 exec, 1
    buffer_store_dword v{VP}, v{VF}, s[52:55], s{sSPIN} offen offset:16
    s_mov_b64 exec, -1
    {wb('P2_WB', False)}
    s_mov_b64 exec, 1
    buffer_store_dword v{VP}, v{VF}, s[52:55], s{sTMP} offen offset:16 sc1
    s_mov_b64 exec, -1
    s_branch P2_M
    P2_E:
    """)
    stamp(9)
    units = [(ACC[2 * u][j], ACC[2 * u + 1][j]) for j in range(2) for u in range(4)] + [(ACC[8][0], ACC[8][1]), (AC9[0], AC9[1]), (AC9[2], AC9[2])]
    dst = [84 + 4 * i if i < 9 else 144 + 4 * i for i in range(11)]
    def pack(i):
        x, y = units[i]; d = dst[i]
        P(f'v_cvt_pk_bf16_f32 v{d}, v{x}, v{x + 1}\nv_cvt_pk_bf16_f32 v{d + 1}, v{x + 2}, v{x + 3}')
        P(f'v_cvt_pk_bf16_f32 v{d + 2}, v{y}, v{y + 1}\nv_cvt_pk_bf16_f32 v{d + 3}, v{y + 2}, v{y + 3}')
        if i % 4 == 0: P(f's_mov_b32 s3, {i * 1024}')
        P(f'v_permlane16_swap_b32 v{d}, v{d + 2}\nv_permlane16_swap_b32 v{d + 1}, v{d + 3}')
    P(f's_cmp_eq_u32 s{sWP}, s{sKS}\ns_cbranch_scc1 P2_OWN')
    for i in range(11):
        pack(i); P(f'buffer_store_dwordx4 {vr(dst[i], 4)}, v{VO}, s[16:19], s3 offen offset:{(i % 4) * 1024} sc1')
    P('s_branch P2_RED\nP2_OWN:')
    for i in range(11):
        pack(i); P(f'ds_write_b128 v{VO}, {vr(dst[i], 4)} offset:{i * 1024}')
    P(f"""
    P2_RED:
    s_lshl_b32 s{sTMP}, s{sTID}, 7
    s_add_u32 s{sTMP}, s{sTMP}, 8192
    s_lshl_b32 s7, s{sKS}, 2
    s_add_u32 s7, s7, s{sTMP}
    s_lshl_b32 s6, s{sTID}, 4
    s_add_u32 s6, s6, s{sKS}
    s_mul_i32 s6, s6, 11264
    s_add_u32 s6, s6, {WS_PART}
    s_add_u32 s16, s66, s6
    s_addc_u32 s17, s67, 0
    s_mov_b32 s18, {3 * 45056 + 11264}
    s_mov_b32 s19, 0x20000
    s_mul_i32 s6, s{sB}, {144 * 2304}
    s_mul_i32 s3, s{sBR}, 1152
    s_add_u32 s6, s6, s3
    s_mul_i32 s3, s{sJJ}, 288
    s_add_u32 s6, s6, s3
    s_add_u32 s12, s68, s6
    s_addc_u32 s13, s69, 0
    s_sub_u32 s14, {1152 * 2304}, s6
    s_mov_b32 s15, 0x20000
    v_mov_b32 v{VP}, s{sE}
    s_mov_b64 s[{sNEED}:{sNEED + 1}], 15
    v_and_b32 v4, 15, v140
    v_mul_u32_u24 v4, 2304, v4
    v_lshrrev_b32 v5, 5, v140
    v_lshl_add_u32 v4, v5, 4, v4
    v_bfe_u32 v5, v140, 4, 1
    v_lshl_add_u32 v6, v5, 5, v4
    s_lshl_b32 s40, s{sKS}, 1
    s_lshr_b32 s3, s{sW}, 2
    s_add_u32 s40, s40, s3
    s_mul_i32 s40, s40, {16 * 2304}
    s_and_b32 s3, s{sW}, 3
    s_lshl_b32 s3, s3, 6
    s_add_u32 s40, s40, s3
    s_lshl_b32 s41, s{sW}, 10
    s_mul_i32 s42, s{sKS}, {32 * 2304}
    s_add_u32 s42, s42, 256
    s_lshl_b32 s3, s{sKS}, 6
    s_add_u32 s3, s3, {128 * 2304}
    s_cmp_eq_u32 s{sW}, 1
    s_cselect_b32 s42, s3, s42
    s_cselect_b32 s45, 32, 0
    s_cmp_eq_u32 s{sW}, 2
    s_cselect_b32 s42, {128 * 2304 + 256}, s42
    s_cmp_eq_u32 s{sW}, 0
    s_cselect_b32 s45, {16 * 2304}, s45
    v_mul_lo_u32 v7, s45, v5
    v_add_u32 v7, v7, v4
    s_cmp_lg_u32 s{sKS}, 0
    s_cselect_b32 s45, 2, 3
    s_waitcnt vmcnt(0)
    s_barrier
    s_cmp_eq_u32 s{sW}, 7
    s_cbranch_scc0 P2_NG
    s_mov_b64 exec, 1
    buffer_store_dword v{VP}, v{VF}, s[52:55], s7 offen sc1
    s_mov_b64 exec, -1
    P2_NG:
    """)
    stamp(10)
    P(f"""
    s_lshl_b32 s3, s{sW}, 10
    v_add_u32 v8, s3, v{VO}
    ds_read_b128 v[32:35], v8
    ds_read_b128 v[48:51], v8 offset:8192
    s_cmp_lg_u32 s{sW}, 0
    s_cbranch_scc1 P2_PW
    """ + poll('P2_PR', sTMP) + 'P2_PW:\ns_barrier')
    stamp(11)
    def loads(base, so):
        for k in range(1, 4):
            P(f's_add_u32 s3, s{sKS}, {k}\ns_and_b32 s3, s3, 3\ns_mul_i32 s3, s3, 45056\ns_add_u32 s3, s3, s{so}\nbuffer_load_dwordx4 {vr(base + 4 * k, 4)}, v{VO}, s[16:19], s3 offen sc1')
    def reduce(base, va, so, left):
        for k in range(4):
            if k: P(f's_waitcnt vmcnt({left + 3 - k})')
            for i in range(4):
                src = base + 4 * k + i; t = 16 if k == 0 else 24
                P(f'v_lshlrev_b32 v{t + 2 * i}, 16, v{src}\nv_and_b32 v{t + 1 + 2 * i}, s46, v{src}')
            if k:
                for i in range(8): P(f'v_add_f32 v{16 + i}, v{16 + i}, v{24 + i}')
        for i in range(4): P(f'v_cvt_pk_bf16_f32 v{base + i}, v{16 + 2 * i}, v{17 + 2 * i}')
        P(f'buffer_store_dwordx4 {vr(base, 4)}, v{va}, s[12:15], s{so} offen')
    P('s_mov_b32 s46, 0xffff0000')
    loads(32, 41)
    P(f's_cmp_lt_u32 s{sW}, s45\ns_cbranch_scc1 P2_R2')
    reduce(32, 6, 40, 0)
    P(f's_branch P2_RE\nP2_R2:\ns_add_u32 s41, s41, 8192')
    loads(48, 41)
    reduce(32, 6, 40, 3)
    reduce(48, 7, 42, 1)
    P('P2_RE:')
    if OPT['stamps']:
        P('s_waitcnt vmcnt(0)'); stamp(8)

def k1():
    P = Prog()
    O, S, CN, Q, PP, O9, Q9, S9, CN9, P9 = 0, 64, 96, 112, 144, 160, 192, 208, 212, 216
    L, L9, VOK, VOV, AK, AK9, AV9, TID = 218, 219, 220, 221, 222, 223, 224, 225
    VA = 226
    T0, T1, AL, AL9, X0, X1 = 230, 231, 232, 233, 234, 235
    FB = [236, 240, 244, 248, 252]
    ACC = [[0, 16, 32, 48], [64, 80, 144, 176]]; ACC9 = [[160, 164], [168, 172]]
    QW = [230, 231, 232, 233]; QX = [234, 235]; QX9, QW9, VOW, VOX, HOLD = 216, 217, 218, 219, 212
    QB, QB9 = [96, 100], 104
    QF = [112, 116, 120, 124, 128, 132, 136, 140, 236, 240]
    sW, sWP, sP, sB, sJ, sBR = 24, 25, 26, 27, 28, 29
    sCNT, sW0, sX, sMC, sIB, sDL = 30, 31, 33, 35, 36, 37
    sEX = 38
    sIK, sROT = 31, 49
    sIS, sSK, sSV, sDK, sDV, sT, sCL, sRARE, sTMP, sTM2, sMW, sKP, sVP, sE = 40, 41, 42, 43, 44, 45, 46, 47, 48, 49, 50, 51, 32, 34
    NSB = OPT['nsb']; STGS = 25600; STG0 = 163840 - NSB * STGS
    SB0 = (NSB - 18) % NSB
    QXCH, Q9B = 131072, 98304 + 16384
    nk, ntw, ntd = OPT['nt_kv'], OPT['nt_w'], OPT['nt_wd']
    def stamp(k, at=None):
        if OPT['stamps'] == 3: return
        if OPT['stamps']:
            if at is not None: P(f's_cmp_lg_u32 s{sCNT}, {at}\ns_cbranch_scc1 K1_ST{k}_{len(P.ins)}'); lbl = P.ins[-1].target
            P(('s_memtime' if OPT['stamps'] == 2 else 's_memrealtime') + ' s[%d:%d]' % (70 + 2 * k, 71 + 2 * k))
            if at is not None: P(f'{lbl}:')
            if k == 1 and OPT['stamps'] == 1: P('s_memtime s[96:97]')
            if k == 4 and OPT['stamps'] == 1: P('s_memtime s[98:99]')
            if k == 2 and OPT['stamps'] == 1: P('s_memtime s[94:95]')
    P(f"""
    s_cmp_ge_u32 s2, 256
    s_cbranch_scc1 K1_END
    s_bfe_u32 s{sBR}, s2, 0x10002
    s_mul_i32 s6, s{sBR}, 40
    s_add_u32 s4, s0, s6
    s_addc_u32 s5, s1, 0
    s_load_dwordx8 s[56:63], s[4:5], 0
    s_load_dwordx4 s[64:67], s[0:1], 88
    s_load_dwordx2 s[68:69], s[0:1], 80
    s_load_dwordx2 s[100:101], s[4:5], 32
    """)
    if OPT['stamps']:
        for k in range(70, 100, 2): P(f's_mov_b64 s[{k}:{k + 1}], 0')
    stamp(0)
    P(f"""
    v_lshrrev_b32 v1, 6, v0
    v_and_b32 v{TID}, 63, v0
    v_readfirstlane_b32 s{sW}, v1
    v_lshrrev_b32 v2, 4, v{TID}
    v_and_b32 v3, 15, v{TID}
    s_and_b32 s3, s2, 3
    s_lshl_b32 s3, s3, 2
    s_bfe_u32 s7, s2, 0x20003
    s_add_u32 s{sJ}, s3, s7
    s_lshr_b32 s{sB}, s2, 5
    s_and_b32 s{sWP}, s{sW}, 3
    s_lshr_b32 s{sP}, s{sW}, 2
    v_lshlrev_b32 v4, 2, v2
    v_xor_b32 v4, v4, v3
    v_lshlrev_b32 v4, 4, v4
    v_lshl_add_u32 v{VOW}, v2, 13, v4
    {f's_and_b32 s3, s{sW}, 1' if OPT['q16'] else ''}
    {'s_lshl_b32 s3, s3, 5' if OPT['q16'] else ''}
    {f'v_xor_b32 v{VOW}, s3, v{VOW}' if OPT['q16'] else ''}
    v_lshrrev_b32 v8, 2, v{TID}
    v_and_b32 v9, 3, v{TID}
    v_xor_b32 v9, v9, v2
    v_mul_u32_u24 v8, 1152, v8
    v_lshl_add_u32 v{VOX}, v9, 4, v8
    s_lshl_b32 s3, s{sWP}, 2
    v_or_b32 v5, s3, v2
    v_xor_b32 v5, v5, v3
    v_lshlrev_b32 v5, 4, v5
    s_lshl_b32 s{sMW}, s{sWP}, 12
    v_lshl_add_u32 v5, v2, 8, v5
    v_add_u32 v{VOK}, s{sMW}, v5
    v_lshl_add_u32 v5, v2, 8, v4
    v_add_u32 v{VOV}, s{sMW}, v5
    s_lshl_b32 s{sW0}, s{sWP}, 16
    s_mul_i32 s{sX}, s{sWP}, 18432
    s_mul_i32 s{sMC}, s{sWP}, 3072
    s_lshl_b32 s3, s{sWP}, 4
    s_lshl_b64 s[{sEX}:{sEX + 1}], 0xffff, s3
    s_mul_i32 s6, s{sB}, 165888
    s_lshl_b32 s7, s{sJ}, 9
    s_mov_b32 s11, 0x20000
    s_mov_b32 s22, {165888 + 2048}
    s_mov_b32 s23, 0x20000
    s_sub_u32 s10, {576 * 8192}, s7
    s_mov_b32 s{sIB}, {STG0}
    s_lshl_b32 s{sTMP}, s{sB}, 5
    s_lshl_b32 s{sTM2}, s{sJ}, 1
    s_add_u32 s{sTMP}, s{sTMP}, s{sTM2}
    s_lshl_b32 s{sTMP}, s{sTMP}, 17
    s_mov_b32 s14, 262144
    s_mov_b32 s15, 0x20000
    s_mov_b32 s18, 262144
    s_mov_b32 s19, 0x20000
    s_mov_b32 s{sCNT}, 0
    s_cmp_ge_u32 s{sW}, 4
    s_waitcnt lgkmcnt(0)
    s_cbranch_scc1 K1_G1
    s_add_u32 s8, s62, s7
    s_addc_u32 s9, s63, 0
    s_add_u32 s20, s56, s6
    s_addc_u32 s21, s57, 0
    s_sub_u32 s20, s20, 2048
    s_subb_u32 s21, s21, 0
    """)
    kvsrd = f"""
    s_add_u32 s12, s58, s{sTMP}
    s_addc_u32 s13, s59, 0
    s_add_u32 s16, s60, s{sTMP}
    s_addc_u32 s17, s61, 0
    s_lshr_b32 s{sROT}, s2, 3
    s_mul_i32 s3, s2, {OPT['rotx']}
    s_mul_i32 s{sROT}, s{sROT}, {OPT['rot']}
    s_add_u32 s{sROT}, s{sROT}, s3
    s_lshl_b32 s{sROT}, s{sROT}, 14
    s_add_u32 s52, s66, {WS_FLAG}
    s_addc_u32 s53, s67, 0
    s_mov_b32 s54, 32768
    s_mov_b32 s55, 0x20000
    """
    lanec = f"""
    v_bfe_u32 v10, v{TID}, 2, 2
    v_and_b32 v11, 3, v{TID}
    v_lshrrev_b32 v12, 5, v{TID}
    v_and_b32 v13, 1, v2
    v_and_b32 v20, 1, v11
    v_lshrrev_b32 v15, 1, v11
    v_lshlrev_b32 v16, 2, v10
    v_lshl_add_u32 v17, v13, 1, v20
    v_xor_b32 v17, v17, v16
    v_lshlrev_b32 v17, 4, v17
    v_lshl_add_u32 v17, v15, 3, v17
    v_lshl_add_u32 v17, v10, 8, v17
    s_lshl_b32 s3, s{sP}, 14
    s_add_u32 s{sMW}, s{sMW}, s3
    s_add_u32 s6, s3, 65536
    v_lshl_add_u32 v18, v12, 10, v17
    v_add_u32 v{VA}, s6, v18
    v_xor_b32 v{VA + 1}, 64, v{VA}
    v_xor_b32 v{VA + 2}, 0x80, v{VA}
    v_xor_b32 v{VA + 3}, 0xc0, v{VA}
    v_bfe_u32 v23, v{TID}, 3, 2
    v_bfe_u32 v24, v{TID}, 2, 1
    v_lshl_add_u32 v25, v23, 2, v11
    v_xor_b32 v25, v25, v12
    v_lshlrev_b32 v25, 4, v25
    v_lshl_add_u32 v25, v11, 8, v25
    v_lshl_add_u32 v25, v24, 10, v25
    v_lshl_add_u32 v25, v23, 12, v25
    {f's_lshl_b32 s7, s{sWP}, 6' if OPT['q16'] else ''}
    {'v_xor_b32 v25, s7, v25' if OPT['q16'] else ''}
    v_add_u32 v{AK}, s3, v25
    s_lshl_b32 s7, s{sWP}, 10
    s_add_u32 s6, s3, s7
    v_xor_b32 v25, v2, v3
    v_lshlrev_b32 v25, 4, v25
    v_lshl_add_u32 v25, v11, 8, v25
    v_lshl_add_u32 v25, v10, 12, v25
    v_add_u32 v{AK9}, s6, v25
    v_xor_b32 v25, v15, v16
    v_lshlrev_b32 v25, 4, v25
    v_lshl_add_u32 v25, v20, 3, v25
    v_lshl_add_u32 v25, v10, 8, v25
    v_lshl_add_u32 v25, v2, 12, v25
    s_add_u32 s6, s6, 65536
    s_lshl_b32 s7, s{sWP}, 6
    v_xor_b32 v25, s7, v25
    v_add_u32 v{AV9}, s6, v25
    v_mul_u32_u24 v26, 272, v3
    v_lshl_add_u32 v27, v2, 4, v26
    s_mul_i32 s6, s{sP}, 4352
    s_add_u32 s6, s6, {Q9B}
    v_add_u32 v{S9}, s6, v27
    v_lshlrev_b32 v27, 4, v{TID}
    s_lshl_b32 s6, s{sWP}, 13
    s_add_u32 s6, s6, {QXCH}
    v_add_u32 v{S9 + 1}, s6, v27
    """
    loopinit = f"""
    s_mov_b32 s{sCNT}, 1
    s_mov_b32 s{sKP}, 32768
    s_mov_b32 s{sVP}, 65536
    s_mov_b32 s{sDK}, 32768
    s_mov_b32 s{sDV}, 0
    s_mov_b32 s{sIS}, 131072
    s_mov_b32 s{sIK}, 0
    s_mov_b32 s33, 0
    s_mul_i32 s3, s{sP}, {OPT['rotp'] * 16384}
    s_add_u32 s3, s3, s{sROT}
    s_add_u32 s{sSV}, s3, 16384
    s_and_b32 s{sSV}, s{sSV}, 0x1ffff
    s_add_u32 s{sSK}, s3, 49152
    s_and_b32 s{sSK}, s{sSK}, 0x1ffff
    s_mov_b32 s{sCL}, 0xff800000
    s_mov_b32 s{sRARE}, 0
    """
    obase = f"""
    s_lshl_b32 s6, s{sBR}, 3
    s_add_u32 s6, s6, s{sB}
    s_mul_i32 s6, s6, 1179648
    s_mul_i32 s7, s{sWP}, {262144 - 4096}
    s_add_u32 s6, s6, s7
    s_lshl_b32 s7, s{sJ}, 1
    s_add_u32 s7, s7, s{sP}
    s_lshl_b32 s7, s7, 13
    s_add_u32 s6, s6, s7
    s_add_u32 s56, s66, s6
    s_addc_u32 s57, s67, 0
    """
    narrow = f's_lshl_b32 s3, s{sP}, 17\ns_add_u32 s12, s12, s3\ns_addc_u32 s13, s13, 0\ns_add_u32 s16, s16, s3\ns_addc_u32 s17, s17, 0\ns_mov_b32 s14, 131072\ns_mov_b32 s18, 131072'
    getE = f'v_mov_b32 v{AL}, {Q9B + 8704}\nds_read_b32 v{AL}, v{AL}' if OPT['fused'] else ''
    getE2 = f'v_readfirstlane_b32 s{sE}, v{AL}' if OPT['fused'] else ''
    queue = []
    def vm(text, tag): P(text); queue.append(tag)
    BS = [int(c, 36) for c in str(OPT['bs'])]; BN = 0; BT = len(BS) // 4
    bpos = []
    def wait_for(tag):
        idx = max(i for i, t in enumerate(queue) if t == tag)
        n = len(queue) - 1 - idx
        cnt = [(1 if OPT['bh'] else 2) * sum(1 for c2, p_ in bpos if c2 == c and p_ > idx) for c in range(4)]
        vals = sorted(set(cnt))
        for v in vals[:-1]:
            lbl = f'K1_BW{len(P.ins)}'
            P(f's_and_b32 s3, s{sCLS}, {sum(1 << c for c in range(4) if cnt[c] > v)}\ns_cbranch_scc1 {lbl}\ns_waitcnt vmcnt({min(63, n + v)})\n{lbl}:')
        P(f's_waitcnt vmcnt({min(63, n + vals[-1])})')
    def stage(s):
        if OPT['nost'] and s >= 3: queue.append(('s', s)); return
        buf = STG0 + ((s + SB0) % NSB) * STGS
        for hd in range(2):
            P(f's_add_u32 m0, s{sMC}, {buf + hd * 12288}\ns_add_u32 s3, s{sW0}, {s * 262144 + hd * 256}')
            vm(f'buffer_load_dwordx4 v{VOW}, s[8:11], s3 offen {ntd} lds', ('s', s))
            P(f's_add_u32 s3, s3, {32768 - 1024}')
            vm(f'buffer_load_dwordx4 v{VOW}, s[8:11], s3 offen offset:1024 {ntd} lds', ('s', s))
            P(f's_add_u32 s3, s{sX}, {s * 64 + hd * 4 * 18432}')
            vm(f'buffer_load_dwordx4 v{VOX}, s[20:23], s3 offen offset:2048 {ntd} lds', ('s', s))
        P(f's_mov_b32 m0, {buf + 24576}\ns_mov_b32 s3, {s * 64 + 128 * 1152 + 2048}\ns_mov_b64 exec, s[{sEX}:{sEX + 1}]')
        vm(f'buffer_load_dwordx4 v{VOX}, s[20:23], s3 offen {ntd} lds', ('s', s))
        P('s_mov_b64 exec, -1')
    VTW, VTX, sTW, sTX, sCLS = 232, 233, 45, 46, 47
    def touch(s):
        if s >= 18 or not OPT['tlead']: return
        P(f's_add_u32 s3, s{sTW}, {s * 262144}\ns_add_u32 s6, s{sTX}, {s * 64}\ns_mov_b64 exec, 0x1ff')
        vm(f'buffer_load_dword v{X0}, v{VTW}, s[8:11], s3 offen {ntw}', ('t', s))
        vm(f'buffer_load_dword v{X1}, v{VTX}, s[20:23], s6 offen {ntw}', ('t', s))
        P('s_mov_b64 exec, -1')
    def ltouch():
        TR = OPT['trows']
        P(f"""
        v_lshrrev_b32 v{VTW}, 3, v{TID}
        v_and_b32 v{VTX}, 7, v{TID}
        v_lshlrev_b32 v{VTX}, 6, v{VTX}
        v_lshl_add_u32 v{VTW}, v{VTW}, 13, v{VTX}
        v_lshlrev_b32 v{VTX}, 6, v{TID}
        s_lshl_b32 s3, s{sB}, 2
        s_add_u32 s3, s3, s{sWP}
        s_mul_i32 s3, s3, {TR * 8192}
        s_add_u32 s3, s3, {(576 - 32 * TR) * 8192}
        s_bfe_u32 s6, s2, 0x20003
        s_lshl_b32 s6, s6, 2
        s_add_u32 s6, s6, s{sWP}
        s_mul_i32 s6, s6, {162 * 64}
        s_add_u32 s6, s6, 2048
        """)
        tw = [(i, min(8, TR - 8 * i) * 8) for i in range((TR + 7) // 8)]; tx = [(0, 64), (1, 64), (2, 34)]
        for i in range(3):
            for (lst, v, srd, so, step) in ((tw, VTW, 8, 3, 8 * 8192), (tx, VTX, 20, 6, 4096)):
                if i >= len(lst): continue
                n = lst[i][1]
                if n < 64: P(f's_mov_b64 exec, {hex((1 << n) - 1)}' if n <= 31 else f's_mov_b32 exec_hi, {(1 << (n - 32)) - 1}')
                vm(f'buffer_load_dword v{X0}, v{v}, s[{srd}:{srd + 3}], s{so} offen {ntw}', ('t', 0))
                if n < 64: P('s_mov_b64 exec, -1')
                P(f's_add_u32 s{so}, s{so}, {step}')
    def btouch(a, b):
        n = b - a; l0, l1 = a // 2, (b + 1) // 2; nl = l1 - l0
        mg = (65536 + nl - 1) // nl
        assert all((i * mg) >> 16 == i // nl for i in range(64)) and 4 * n <= 64 and 9 * nl <= 64
        P(f"""
        v_lshrrev_b32 v{VTW}, 2, v{TID}
        v_and_b32 v{VTX}, 3, v{TID}
        v_lshlrev_b32 v{VTX}, 7, v{VTX}
        v_lshl_add_u32 v{VTW}, v{VTW}, 13, v{VTX}
        v_mul_u32_u24 v{X1}, {mg}, v{TID}
        v_lshrrev_b32 v{X1}, 16, v{X1}
        v_mul_u32_u24 v{VTX}, {1152 - 128 * nl}, v{X1}
        v_lshl_add_u32 v{VTX}, v{TID}, 7, v{VTX}
        s_lshl_b32 s3, s{sB}, 2
        s_add_u32 s3, s3, s{sWP}
        s_mul_i32 s3, s3, {n * 8192}
        s_add_u32 s3, s3, {32 * a * 8192}
        s_and_b32 s6, s{sJ}, 3
        s_lshl_b32 s6, s6, 2
        s_add_u32 s6, s6, s{sWP}
        s_mul_i32 s6, s6, {9 * 1152}
        s_add_u32 s6, s6, {2048 + 128 * l0}
        """)
        for cnt, v, srd, so in ((4 * n, VTW, 8, 3), (9 * nl, VTX, 20, 6)):
            P(f's_mov_b64 exec, {hex((1 << cnt) - 1)}' if cnt <= 31 else f's_mov_b32 exec_lo, -1\ns_mov_b32 exec_hi, {hex((1 << (cnt - 32)) - 1)}')
            vm(f'buffer_load_dword v{X0}, v{v}, s[{srd}:{srd + 3}], s{so} offen {ntw}', ('t', 2))
        P('s_mov_b64 exec, -1')
    TB = [tuple(int(y) for y in x.split(':')) for x in str(OPT['tb']).split(',') if x]
    def otouch():
        P(f"""
        s_lshl_b32 s6, s{sBR}, 3
        s_add_u32 s6, s6, s{sB}
        s_mul_i32 s6, s6, 1179648
        s_add_u32 s56, s66, s6
        s_addc_u32 s57, s67, 0
        s_mov_b32 s58, 1179648
        s_mov_b32 s59, 0x20000
        v_lshlrev_b32 v{VTW}, 7, v{TID}
        s_lshl_b32 s3, s{sWP}, 18
        s_lshl_b32 s6, s{sJ}, 14
        s_add_u32 s3, s3, s6
        """)
        vm(f'buffer_load_dword v{X0}, v{VTW}, s[56:59], s3 offen', ('t', 1))
        P('s_add_u32 s3, s3, 8192')
        vm(f'buffer_load_dword v{X0}, v{VTW}, s[56:59], s3 offen', ('t', 1))
        P(f's_lshl_b32 s3, s{sJ}, 13\ns_lshl_b32 s6, s{sWP}, 11\ns_add_u32 s3, s3, s6\ns_add_u32 s3, s3, {1 << 20}\ns_mov_b64 exec, 0xffff')
        vm(f'buffer_load_dword v{X0}, v{VTW}, s[56:59], s3 offen', ('t', 1))
        P('s_mov_b64 exec, -1')
    PRE = {(0, 0): [64, 68, 72, 76], (0, 1): [80, 84, 88, 92], (1, 0): [112, 116, 120, 124], (1, 1): [128, 132, 136, 140],
           (2, 0): [192, 196, 200, 204], (2, 1): [236, 240, 244, 248], (3, 0): [96, 100, 104, 252], (3, 1): [144, 148, 152, 156]}
    SRC = {0: (VOK, 12, 0), 1: (VOK, 12, 16384), 2: (VOV, 16, 0), 3: (VOK, 12, 32768)}
    FREE = {(0, 0): 0 if NSB <= 5 else 13, (0, 1): 0 if NSB <= 5 else 13, (1, 0): 15, (1, 1): 15, (2, 0): 16, (2, 1): 16, (3, 0): 17, (3, 1): 19}
    inreg = set()
    def kvload(step, u, hd, n):
        if OPT['nokv'] & 1: return
        vo, srd, off = SRC[u]
        P(f's_add_u32 s3, s{sROT}, {off + hd * OPT["rotp"] * 16384}\ns_and_b32 s3, s3, 0x1ffff' + (f'\ns_add_u32 s3, s3, 131072' if hd else ''))
        if step >= FREE[u, hd]:
            P(f's_add_u32 m0, s{sMW}, {u * 32768 + hd * 16384}\ns_nop 0')
            vm(f'buffer_load_dwordx4 v{vo}, s[{srd}:{srd + 3}], s3 offen offset:{n * 1024} {nk} lds', ('k', u))
        else:
            vm(f'buffer_load_dwordx4 {vr(PRE[u, hd][n], 4)}, v{vo}, s[{srd}:{srd + 3}], s3 offen offset:{n * 1024} {nk}', ('r', u, hd)); inreg.add((u, hd, n))
    def kvdump(step):
        if OPT['nokv'] & 2: return
        for (u, hd), f in FREE.items():
            ns = [n for n in range(4) if (u, hd, n) in inreg]
            if f != step or not ns: continue
            if (u, hd) in btag: P(f's_waitcnt vmcnt({min(63, len(queue) - btag[u, hd])})')
            if ('r', u, hd) in queue: wait_for(('r', u, hd))
            base = u * 32768 + hd * 16384
            for n in ns: P(f'ds_write_b128 v{[T0, T1][base >> 16]}, {vr(PRE[u, hd][n], 4)} offset:{(base & 0xffff) + n * 1024}')
    kvq = [(u, hd, n) for u in range(4) for hd in range(2) for n in range(4)]
    npre, dist = OPT['npre'], OPT['dist']
    sched = [int(c, 36) for c in str(OPT['kvs'])] + [0] * 30
    assert sum(sched) + abs(OPT['kpre']) + (0 if BT else BN) == 32 and dist <= NSB - 1 and npre <= NSB
    btag = {}
    if BS: P(f's_and_b32 s3, s{sJ}, 3\ns_lshl_b32 s{sCLS}, 1, s3')
    nxt = 0
    for s in range(npre): stage(s); nxt += 1
    if OPT['tlead']:
        P(f"""
        v_lshlrev_b32 v{VTW}, 6, v{TID}
        v_mul_u32_u24 v{VTX}, 1152, v{TID}
        s_lshl_b32 s{sTW}, s{sB}, 2
        s_add_u32 s{sTW}, s{sTW}, s{sWP}
        s_lshl_b32 s{sTW}, s{sTW}, 13
        s_bfe_u32 s{sTX}, s2, 0x20003
        s_lshl_b32 s{sTX}, s{sTX}, 2
        s_add_u32 s{sTX}, s{sTX}, s{sWP}
        s_mul_i32 s{sTX}, s{sTX}, {9 * 1152}
        s_add_u32 s{sTX}, s{sTX}, 2048
        """)
        for s in range(npre, dist + OPT['tlead']): touch(s)
    if OPT['kpre']:
        P(kvsrd)
        for _ in range(max(0, OPT['kpre'])): kvload(0, *kvq.pop(0))
    if OPT['ts'] == -1: ltouch()
    for st_, a_, b_ in TB:
        if st_ == -1: btouch(a_, b_)
    for _ in range(max(0, -OPT['kpre'])): kvload(0, *kvq.pop(0))
    later = ['' if OPT['kpre'] else kvsrd] + [f'v_lshlrev_b32 v{T0}, 4, v{TID}\nv_add_u32 v{T0}, s{sMW}, v{T0}\nv_add_u32 v{T1}, 0x10000, v{T0}', lanec]
    zs = list(range(108, 112)) + list(range(O9, O9 + 32)) + list(range(CN9, CN9 + 4)) + list(range(63, -1, -1))
    later += ['\n'.join(f'v_mov_b32 v{r}, 0' for r in zs[i:i + 26]) for i in range(0, len(zs), 26)]
    P(later.pop(0))
    for s in range(19):
        if OPT['stamps'] == 2 and s == OPT['sq']: stamp(5)
        if OPT['stamps'] == 2 and s == OPT['sq'] + 1: stamp(6)
        if OPT['stamps'] == 3 and OPT['sq'] == 99 and 1 <= s <= 5: P(f's_memtime s[{70 + 6 * s - 4}:{71 + 6 * s - 4}]')
        if s < 18: wait_for(('s', s))
        if OPT['stamps'] == 3 and OPT['sq'] == 99 and 1 <= s <= 4: P(f's_memtime s[{70 + 6 * s - 2}:{71 + 6 * s - 2}]')
        if OPT['stamps'] == 2 and s == OPT['sq']: stamp(3)
        P('s_barrier')
        if OPT['stamps'] == 2 and s == OPT['sq']: stamp(2)
        if s == 0 and OPT['stamps'] == 1: stamp(1)
        S3 = [0, 1, 2, 3, 4, 5, 6, 8, 10, 12, 13, 14, 15, 16, 18]
        if OPT['stamps'] == 3 and OPT['sq'] == 99:
            if s <= 4: P(f's_memtime s[{70 + 6 * s}:{71 + 6 * s}]')
        elif OPT['stamps'] == 3 and s in S3: P(f's_memtime s[{70 + 2 * S3.index(s)}:{71 + 2 * S3.index(s)}]')
        if OPT['sp']:
            for _ in range(int((str(OPT['sp']) + '0' * 20)[s])):
                assert nxt <= s + NSB - 1
                stage(nxt); nxt += 1
            if OPT['ts'] == s: ltouch()
            for st_, a_, b_ in TB:
                if st_ == s: btouch(a_, b_)
            if OPT['ot'] == s: otouch()
            if OPT['cts'] == s:
                P(f"""
                s_getpc_b64 s[6:7]
                K1_PC2:
                s_add_u32 s6, s6, @PC2OFF@
                s_addc_u32 s7, s7, 0
                s_lshl_b32 s3, s{sWP}, 5
                v_add_u32 v{VTW}, s3, v{TID}
                v_lshlrev_b32 v{VTW}, 7, v{VTW}
                v_min_u32 v{VTW}, @LEN2@, v{VTW}
                v_mov_b32 v{VTX}, s7
                v_add_co_u32 v{VTW}, vcc, s6, v{VTW}
                v_addc_co_u32 v{VTX}, vcc, 0, v{VTX}, vcc
                s_mov_b32 exec_hi, 0
                """)
                vm(f'global_load_dword v{X0}, v[{VTW}:{VTX}], off', ('t', 3))
                P('s_mov_b32 exec_hi, -1')
        n = 0
        while not OPT['sp'] and nxt < 18 and nxt <= s + dist and n < 2: stage(nxt); nxt += 1; n += 1
        touch(s + dist + OPT['tlead'])
        for k in range(BT):
            cl_ = [c for c in range(4) if BS[4 * k + c] == s]
            if not cl_: continue
            lbl = f'K1_BU{s}_{k}'; srd, tile = [(12, 3), (16, 2), (12, 4), (16, 3)][k // 2 if OPT['bh'] else k]
            P(f's_and_b32 s3, s{sCLS}, {sum(1 << c for c in cl_)}\ns_cbranch_scc0 {lbl}')
            P(f'v_lshlrev_b32 v{VTW}, 7, v{TID}\nv_add_u32 v{VTW}, s{sMW}, v{VTW}\ns_mov_b32 exec_hi, 0')
            for hd in ([k % 2] if OPT['bh'] else range(2)):
                P(f's_add_u32 s3, s{sROT}, {(tile + hd * OPT["rotp"]) * 16384}\ns_and_b32 s3, s3, 0x1ffff' + ('\ns_add_u32 s3, s3, 131072' if hd else ''))
                P(f'buffer_load_dword v{X0}, v{VTW}, s[{srd}:{srd + 3}], s3 offen {OPT["btf"]}')
            P(f's_mov_b32 exec_hi, -1\n{lbl}:')
            bpos += [(c, len(queue)) for c in cl_]
        if OPT['ep'] and s in (OPT['ep'], OPT['ep'] + 4, 18):
            P(f's_cmp_eq_u32 s{sW}, 0\ns_cbranch_scc0 K1_EP{s}\ns_mov_b64 exec, 1')
            if s == OPT['ep']: P('v_mov_b32 v214, 0\nbuffer_load_dword v212, v214, s[52:55], 0 offen sc1')
            elif s < 18:
                P(f"""
                s_mov_b32 s56, s64
                s_mov_b32 s57, s65
                s_mov_b32 s58, 256
                s_mov_b32 s59, 0x20000
                s_waitcnt vmcnt({len(queue) - epq})
                v_add_u32 v212, 1, v212
                v_max_u32 v212, 1, v212
                v_mov_b32 v213, 0
                v_mov_b32 v215, v212
                buffer_atomic_cmpswap v[212:213], v214, s[56:59], 0 offen sc0
                """)
            else:
                P(f"""
                s_waitcnt vmcnt({min(63, len(queue) - epq)})
                v_cmp_eq_u32 vcc, 0, v212
                v_mov_b32 v214, {Q9B + 8704}
                s_nop 0
                v_cndmask_b32 v212, v212, v215, vcc
                ds_write_b32 v214, v212
                """ + f"""        s_getreg_b32 s3, hwreg(HW_REG_XCC_ID, 0, 4)
        v_lshl_add_u32 v213, v212, 4, s3
        s_and_b32 s3, s2, 7
        s_lshl_b32 s3, s3, 3
        s_add_u32 s3, s3, s{sB}
        s_lshl_b32 s3, s3, 5
        s_and_b32 s7, s{sJ}, 3
        s_add_u32 s3, s3, s7
        s_lshl_b32 s3, s3, 2
        v_mov_b32 v214, s3
        buffer_store_dword v213, v214, s[52:55], 0 offen offset:32 sc1
""")
            epq = len(queue)
            P(f's_mov_b64 exec, -1\nK1_EP{s}:')
        kvdump(s)
        for _ in range(sched[s]): kvload(s, *kvq.pop(0))
        if later: P(later.pop(0))
    assert nxt == 18 and not later
    for r in list(range(96, 108)) + [L, L9] + ([212, 213, 214, 215] if OPT['ep'] else []): P(f'v_mov_b32 v{r}, 0')
    P(loopinit)
    if OPT['stamps'] == 1: stamp(2)
    if (0, 1) in btag: P(f's_waitcnt vmcnt({min(63, len(queue) - btag[0, 1])})')
    if ('k', 0) in queue: wait_for(('k', 0))
    P('s_barrier')
    P(getE)
    for kk in range(8): P(f'ds_read_b128 {vr(Q + 4 * kk, 4)}, v{S9 + 1} offset:{kk * 1024}')
    for kk in range(4): P(f'ds_read_b128 {vr(Q9 + 4 * kk, 4)}, v{S9} offset:{kk * 64}')
    P('s_barrier')
    P(getE2)
    kvdump(19)
    for _ in range(sched[19]): kvload(19, *kvq.pop(0))
    assert not kvq
    P(narrow)
    after = lambda u: (len(queue) - 1 - max(i for i, t in enumerate(queue) if t == ('k', u))) if ('k', u) in queue else 60
    X1N = min(63, after(1) + 4) if OPT['nbar'] == 2 else min(63, after(1) + 4, after(2) + 4)
    P('s_branch K1_HEAD')
    P('K1_G1:')
    P(kvsrd)
    if not OPT['ep']:
        if OPT['fused']:
            P(f"""
                    v_mov_b32 v246, 0
            s_cmp_eq_u32 s{sW}, 4
            s_cbranch_scc0 K1_E0
            buffer_load_dword v244, v246, s[52:55], 0 offen sc1
            K1_E0:
            """)
    def touches():
        P(f"""
        s_lshl_b32 s7, s{sJ}, 9
        s_mul_i32 s6, s{sB}, 165888
        s_add_u32 s8, s62, s7
        s_addc_u32 s9, s63, 0
        s_add_u32 s20, s56, s6
        s_addc_u32 s21, s57, 0
        s_mov_b32 s22, 165888
        v_lshrrev_b32 v28, 3, v{TID}
        v_and_b32 v29, 7, v{TID}
        v_lshlrev_b32 v29, 6, v29
        v_lshl_add_u32 v28, v28, 13, v29
        v_lshlrev_b32 v29, 6, v{TID}
        s_lshl_b32 s3, s{sB}, 2
        s_add_u32 s3, s3, s{sWP}
        s_mul_i32 s3, s3, {TR * 8192}
        s_add_u32 s3, s3, {(576 - 32 * TR) * 8192}
        s_bfe_u32 s6, s2, 0x20003
        s_lshl_b32 s6, s6, 2
        s_add_u32 s6, s6, s{sWP}
        s_mul_i32 s6, s6, {162 * 64}
        """)
        tw = [(i, min(8, TR - 8 * i) * 8) for i in range((TR + 7) // 8)]; tx = [(0, 64), (1, 64), (2, 34)]
        k = 0
        for i in range(3):
            for (lst, v, srd, so, step) in ((tw, 28, 8, 3, 8 * 8192), (tx, 29, 20, 6, 4096)):
                if i >= len(lst): continue
                n = lst[i][1]
                if n < 64: P(f's_mov_b64 exec, {hex((1 << n) - 1)}' if n <= 31 else f's_mov_b32 exec_hi, {(1 << (n - 32)) - 1}')
                P(f'buffer_load_dword v{248 + k}, v{v}, s[{srd}:{srd + 3}], s{so} offen {ntw}'); k += 1
                if n < 64: P('s_mov_b64 exec, -1')
                P(f's_add_u32 s{so}, s{so}, {step}')
        return k
    def ptouch():
        pg = OPT['ptouch']
        P(f"""
        s_lshl_b32 s7, s{sJ}, 9
        s_mul_i32 s6, s{sB}, 165888
        s_add_u32 s8, s62, s7
        s_addc_u32 s9, s63, 0
        s_add_u32 s20, s56, s6
        s_addc_u32 s21, s57, 0
        s_mov_b32 s22, 165888
        v_lshlrev_b32 v28, 16, v{TID}
        s_lshl_b32 s3, s{sWP}, 20
        s_add_u32 s3, s3, {65536 * 4}
        s_mov_b64 exec, 0xffff
        buffer_load_dword v248, v28, s[8:11], s3 offen
        s_mov_b64 exec, 0xf
        s_mov_b32 s3, {65536 * 68}
        s_cmp_eq_u32 s{sWP}, 0
        s_cbranch_scc0 K1_PT1
        buffer_load_dword v249, v28, s[8:11], s3 offen
        buffer_load_dword v250, v28, s[20:23], 0 offen
        s_branch K1_PT2
        K1_PT1:
        buffer_load_dword v249, v28, s[12:15], 0 offen {nk}
        buffer_load_dword v250, v28, s[16:19], 0 offen {nk}
        K1_PT2:
        s_mov_b64 exec, -1
        """)
    TR = OPT['trows']
    NT = (TR + 7) // 8 + 3
    if OPT['ctouch']:
        P(f"""
        s_cmp_eq_u32 s{sW}, 5
        s_cbranch_scc0 K1_CT
        s_getpc_b64 s[6:7]
        K1_PC:
        s_sub_u32 s6, s6, @PCOFF@
        s_subb_u32 s7, s7, 0
        v_lshlrev_b32 v28, 7, v{TID}
        v_mov_b32 v31, s7
        """)
        for k in range(OPT['ctouch']):
            P(f"""
            v_min_u32 v29, @CODELEN@, v28
            v_add_co_u32 v30, vcc, s6, v29
            v_addc_co_u32 v31, vcc, 0, v31, vcc
            global_load_dword v{252 + k % 4}, v[30:31], off
            v_mov_b32 v31, s7
            v_add_u32 v28, 8192, v28
            """)
        P('K1_CT:')
    if OPT['pt2']:
        P(f"""
        s_mov_b32 s8, s66
        s_mov_b32 s9, s67
        s_mov_b32 s10, {WS_FLAG}
        s_lshl_b32 s6, s{sBR}, 3
        s_add_u32 s6, s6, s{sB}
        s_mul_i32 s7, s6, 1179648
        s_lshl_b32 s3, s{sWP}, 18
        s_add_u32 s7, s7, s3
        s_lshl_b32 s3, s{sJ}, 14
        s_add_u32 s7, s7, s3
        v_mov_b32 v28, 0
        s_mov_b64 exec, 1
        buffer_load_dword v248, v28, s[8:11], s7 offen nt
        s_lshl_b32 s6, s6, 2
        s_and_b32 s3, s{sJ}, 3
        s_add_u32 s6, s6, s3
        s_lshl_b32 s6, s6, 2
        s_and_b32 s7, s2, 3
        s_add_u32 s6, s6, s7
        s_lshl_b32 s6, s6, 2
        s_add_u32 s6, s6, s{sWP}
        s_mul_i32 s6, s6, 11264
        s_add_u32 s6, s6, {WS_PART}
        buffer_load_dword v249, v28, s[8:11], s6 offen nt
        s_mov_b32 s8, s68
        s_mov_b32 s9, s69
        s_mov_b32 s10, {1152 * 2304}
        s_mul_i32 s6, s{sB}, {144 * 2304}
        s_mul_i32 s3, s{sWP}, {36 * 2304}
        s_add_u32 s6, s6, s3
        buffer_load_dword v250, v28, s[8:11], s6 offen nt
        s_mov_b32 s8, s100
        s_mov_b32 s9, s101
        s_mov_b32 s10, {4096 * 1152}
        s_lshl_b32 s7, s7, 2
        s_add_u32 s7, s7, s{sWP}
        s_mul_i32 s7, s7, {256 * 1152}
        buffer_load_dword v251, v28, s[8:11], s7 offen
        s_mov_b64 exec, -1
        """)
        NT = 4
    if OPT['wtouch'] == 1: touches()
    if OPT['ptouch']: ptouch(); NT = 3 + 4 * OPT['pt2']
    P(lanec)
    if OPT['wtouch'] == 2: touches()
    if not OPT['q16']:
        P(f"""
        v_mul_u32_u24 v18, 3072, v12
        v_add_u32 v18, {STG0 + SB0 * STGS}, v18
        v_add_u32 v{QW[0]}, v17, v18
        v_xor_b32 v{QW[1]}, 64, v{QW[0]}
        v_xor_b32 v{QW[2]}, 0x80, v{QW[0]}
        v_xor_b32 v{QW[3]}, 0xc0, v{QW[0]}
        s_lshl_b32 s6, s{sWP}, 2
        v_add_u32 v18, s6, v15
        v_xor_b32 v18, v18, v16
        v_lshlrev_b32 v18, 4, v18
        v_lshl_add_u32 v18, v20, 3, v18
        v_lshl_add_u32 v18, v10, 8, v18
        v_mul_u32_u24 v19, 3072, v2
        v_add_u32 v19, {STG0 + SB0 * STGS}, v19
        v_add_u32 v{QW9}, v18, v19
        v_xor_b32 v22, v12, v10
        v_lshlrev_b32 v22, 4, v22
        v_lshl_add_u32 v22, v3, 6, v22
        v_mul_u32_u24 v19, 3072, v13
        s_mul_i32 s6, s{sWP}, 6144
        s_add_u32 s6, s6, {STG0 + SB0 * STGS + 2048}
        v_add3_u32 v{QX[0]}, v22, v19, s6
        v_xor_b32 v{QX[1]}, 32, v{QX[0]}
        v_xor_b32 v22, v2, v10
        v_lshlrev_b32 v22, 4, v22
        v_lshl_add_u32 v22, v3, 6, v22
        v_add_u32 v{QX9}, {STG0 + SB0 * STGS + 24576}, v22
        v_lshl_add_u32 v27, v2, 3, v26
        s_lshl_b32 s6, s{sWP}, 6
        s_add_u32 s6, s6, {Q9B}
        v_add_u32 v{S9 + 2}, s6, v27
        """)
    QA = [230, 231, 232, 233, 234, 235, 216, 217]; QXA, QX9A = 236, 237
    if OPT['q16']:
        P(f"""
        s_lshl_b32 s6, s{sWP}, 2
        v_add_u32 v18, s6, v15
        v_xor_b32 v18, v18, v16
        v_lshlrev_b32 v19, 1, v13
        v_xor_b32 v18, v18, v19
        v_lshlrev_b32 v18, 4, v18
        v_lshl_add_u32 v18, v20, 3, v18
        v_lshl_add_u32 v18, v10, 8, v18
        v_mul_u32_u24 v19, 3072, v2
        v_add_u32 v19, {STG0 + SB0 * STGS}, v19
        v_add_u32 v{QA[0]}, v18, v19
        """)
        for k in range(1, 8): P(f'v_xor_b32 v{QA[k]}, {k << 5}, v{QA[0]}')
        P(f"""
        v_xor_b32 v22, v2, v10
        v_lshlrev_b32 v22, 4, v22
        v_lshl_add_u32 v22, v3, 6, v22
        s_mul_i32 s6, s{sWP}, 6144
        s_add_u32 s6, s6, {STG0 + SB0 * STGS + 2048}
        v_add_u32 v{QXA}, s6, v22
        v_add_u32 v{QX9A}, {STG0 + SB0 * STGS + 24576}, v22
        v_lshl_add_u32 v27, v2, 3, v26
        s_lshl_b32 s6, s{sWP}, 6
        s_add_u32 s6, s6, {Q9B}
        v_add_u32 v{S9 + 2}, s6, v27
        """)
    z = list(range(CN9, CN9 + 4)) + list(range(108, 112)) + [L, L9]
    for hd in range(2):
        for a in ACC[hd]: z += list(range(a, a + 16))
        for a in ACC9[hd]: z += list(range(a, a + 4))
    for r in z: P(f'v_mov_b32 v{r}, 0')
    if not OPT['ep']:
        P(f"""
        s_cmp_eq_u32 s{sW}, 4
        s_cbranch_scc0 K1_E1
        s_mov_b32 s8, s64
        s_mov_b32 s9, s65
        s_mov_b32 s10, 256
        s_waitcnt vmcnt({NT if OPT['wtouch'] or OPT['ptouch'] or OPT['pt2'] else 0})
        v_add_u32 v244, 1, v244
        v_max_u32 v244, 1, v244
        v_mov_b32 v245, 0
        v_mov_b32 v247, v244
        s_mov_b64 exec, 1
        buffer_atomic_cmpswap v[244:245], v246, s[8:11], 0 offen sc0
        s_mov_b64 exec, -1
        K1_E1:
        """)
    P(f's_mov_b32 s{sIB}, {SB0}\ns_barrier')
    if OPT['stamps'] == 1: stamp(1)
    if not OPT['q16']:
        qit = []
        def qmain(kk, hd, dt):
            return (lambda F: [f'ds_read_b64_tr_b16 {vr(F + 2 * j, 2)}, v{QW[dt]} offset:{hd * 12288 + kk * 6144 + j * 1024}' for j in range(2)],
                    lambda F: mf32(ACC[hd][dt], F, QB[kk]))
        def q9(hd, t):
            return (lambda F: [f'ds_read_b64_tr_b16 {vr(F + 2 * j, 2)}, v{QW9} offset:{hd * 12288 + t * 32 + j * 1024}' for j in range(2)],
                    lambda F: mf16(ACC9[hd][t], F, QB9))
        qit = [qmain(0, hd, dt) for hd in range(2) for dt in range(4)] + [q9(hd, t) for hd in range(2) for t in range(2)] + [qmain(1, hd, dt) for hd in range(2) for dt in range(4)]
        nq = len(QF); NQ = len(qit); QD = OPT['qdelay']
        qrd = lambda i: qit[i % NQ][0](QF[i % nq])
        bheads = [f'ds_read_b128 {vr(QB[0], 4)}, v{QX[0]}', f'ds_read_b128 {vr(QB9, 4)}, v{QX9}']
        upd = [f'v_add_u32 v{r}, s{sDL}, v{r}' for r in QW + QX + [QX9, QW9]]
        P(bheads[0])
        for i in range(nq):
            P.extend(qrd(i))
            if i == 3: P(bheads[1])
        def qmf(i):
            m = qit[i][1](QF[i % nq])
            if i % 2 == 0 and i + 1 < NQ: m += f' ; need {vr(QF[(i + 1) % nq], 4)}'
            return m
        cut = NQ - nq + QD + 1
        P('s_branch K1_QM\nK1_QL:\ns_barrier')
        if OPT['stamps'] == 2: stamp(2, OPT['sq'])
        qpend = [bheads[0]] + [x for jj in range(QD + 1) for x in qrd(jj)]
        for i in range(cut, NQ):
            P(qmf(i))
            qpend += qrd(i + nq)
            if i == NQ - 2: qpend.append(bheads[1])
            n = len(qpend) if i == NQ - 1 else 4
            P.extend(qpend[:n]); qpend = qpend[n:]
        P('K1_QM:')
        if OPT['stamps'] == 1 and not OPT['fused']: stamp(5, 3); stamp(6, 6); stamp(9, 9); stamp(10, 12)
        if OPT['stamps'] == 2: stamp(5, OPT['sq'] - 1); stamp(6, OPT['sq'])
        for i in range(cut):
            P(qmf(i))
            if i + nq < NQ: P.extend(qrd(i + nq))
            if i == 0: P(f'ds_read_b128 {vr(QB[1], 4)}, v{QX[1]}')
            if OPT['qnop'] and i % 2 == 1: P(f's_nop {OPT["qnop"]}')
            if i == 2: P(f's_cmp_eq_u32 s{sIB}, {NSB - 1}\ns_cselect_b32 s{sDL}, {-(NSB - 1) * STGS & 0xffffffff}, {STGS}')
            if i == 4: P(f's_add_u32 s{sIB}, s{sIB}, 1\ns_cmp_eq_u32 s{sIB}, {NSB}\ns_cselect_b32 s{sIB}, 0, s{sIB}')
            if i == 10: P.extend(upd[:4])
            if i == 11:
                P.extend(upd[4:])
                if OPT['stamps'] == 2: stamp(3, OPT['sq'] - 1)
                P(f's_add_u32 s{sCNT}, s{sCNT}, 1\ns_cmp_lt_u32 s{sCNT}, 18')
        P('s_cbranch_scc1 K1_QL\nK1_QE:\ns_barrier')
        for i in range(cut, NQ): P(qmf(i))
    else:
        acc = lambda hd, sg, qh: ACC[hd][sg >> 1] + 8 * (sg & 1) + 4 * qh
        order = [(0, 0), (0, 1), (1, 0), (1, 1)] + [(hd, sg) for sg in range(2, 8) for hd in range(2)]
        QF16 = [112 + 4 * k for k in range(8)]; BS16 = [[96, 100], [244, 248]]
        nq = 8; NQ = 16; QD = OPT['qdelay']; cut = NQ - nq + QD + 1
        qrd = lambda i: [f'ds_read_b64_tr_b16 {vr(QF16[i % nq] + 2 * j, 2)}, v{QA[order[i % NQ][1]]} offset:{order[i % NQ][0] * 12288 + j * 1024}' for j in range(2)]
        brd = lambda st: [f'ds_read_b128 {vr(BS16[st][qh], 4)}, v{QXA} offset:{qh * 3072}' for qh in range(2)] + [f'ds_read_b128 {vr(QB9, 4)}, v{QX9A}']
        def qmf(i, st):
            hd, sg = order[i]; F = QF16[i % nq]
            m = [mf16(acc(hd, sg, 0), F, BS16[st][0]), mf16(acc(hd, sg, 1), F, BS16[st][1])]
            if sg < 2: m.append(mf16(ACC9[hd][sg], F, QB9))
            if i % 2 == 0: m[0] += f' ; need {vr(QF16[(i + 1) % nq], 4)}'
            return m
        upd = [f'v_add_u32 v{r}, s{sDL}, v{r}' for r in QA + [QXA, QX9A]]
        def tail(st, reads=True):
            pend = brd(1 - st) + [x for jj in range(QD + 1) for x in qrd(jj)] if reads else []
            for i in range(cut, NQ):
                for x in qmf(i, st):
                    P(x); P.extend(pend[:2]); pend = pend[2:]
                if reads: pend += qrd(i + nq)
            P.extend(pend)
        def head(st, last):
            u = list(upd); pend = []
            for i in range(cut):
                for x in qmf(i, st):
                    P(x); P.extend(pend[:1]); pend = pend[1:]
                if i + nq < NQ: pend += qrd(i + nq)
                if i == 4: P(f's_cmp_eq_u32 s{sIB}, {NSB - 1}\ns_cselect_b32 s{sDL}, {-(NSB - 1) * STGS & 0xffffffff}, {STGS}')
                if i == 6: P(f's_add_u32 s{sIB}, s{sIB}, 1\ns_cmp_eq_u32 s{sIB}, {NSB}\ns_cselect_b32 s{sIB}, 0, s{sIB}')
                if i > NQ - nq or i == cut - 1:
                    P.extend(pend); pend = []
                    k = len(u) if i == cut - 1 else 4
                    P.extend(u[:k]); u = u[k:]
                if i == cut - 2 and last: P(f's_add_u32 s{sCNT}, s{sCNT}, 2\ns_cmp_lt_u32 s{sCNT}, 18')
        P.extend(brd(0)[:2])
        for i in range(nq):
            P.extend(qrd(i))
            if i == 0: P(brd(0)[2])
        P('s_branch K1_QM\nK1_QL:\ns_barrier')
        tail(1)
        P('K1_QM:')
        head(0, False)
        P('s_barrier')
        tail(0)
        head(1, True)
        P('s_cbranch_scc1 K1_QL\nK1_QE:\ns_barrier')
        tail(1, False)
    if OPT['stamps'] == 1: stamp(2)
    P(f's_mov_b32 s6, {CSCALE}')
    for hd in range(2):
        for t in range(2):
            a = ACC9[hd][t]
            for i in range(4): P(f'v_mul_f32 v{a + i}, s6, v{a + i}')
            P(f'v_cvt_pk_bf16_f32 v{a}, v{a}, v{a + 1}\nv_cvt_pk_bf16_f32 v{a + 1}, v{a + 2}, v{a + 3}')
            P(f'ds_write_b64 v{S9 + 2}, {vr(a, 2)} offset:{hd * 4352 + t * 32}')
    swp = lambda d: f'v_permlane16_swap_b32 v{d}, v{d + 2}\nv_permlane16_swap_b32 v{d + 1}, v{d + 3}' if OPT['q16'] else ''
    for dt in [0, 1, 2, 3]:
        a = ACC[0][dt]
        for i in range(16): P(f'v_mul_f32 v{a + i}, s6, v{a + i}')
        for hf in range(2):
            for i in range(4): P(f'v_cvt_pk_bf16_f32 v{a + 8 * hf + i}, v{a + 8 * hf + 2 * i}, v{a + 8 * hf + 2 * i + 1}')
        for hf in range(2):
            P(swp(a + 8 * hf))
            P(f'ds_write_b128 v{S9 + 1}, {vr(a + 8 * hf, 4)} offset:{(2 * dt + hf) * 1024}')
    P('s_waitcnt vmcnt(0)')
    if not OPT['ep']:
        P(f"""
        s_cmp_eq_u32 s{sW}, 4
        s_cbranch_scc0 K1_E2
        s_waitcnt vmcnt(0)
        v_cmp_eq_u32 vcc, 0, v244
        v_mov_b32 v246, {Q9B + 8704}
        s_mov_b64 exec, 1
        v_cndmask_b32 v244, v244, v247, vcc
        ds_write_b32 v246, v244
        s_getreg_b32 s3, hwreg(HW_REG_XCC_ID, 0, 4)
        v_lshl_add_u32 v245, v244, 4, s3
        s_and_b32 s3, s2, 7
        s_lshl_b32 s3, s3, 3
        s_add_u32 s3, s3, s{sB}
        s_lshl_b32 s3, s3, 5
        s_and_b32 s7, s{sJ}, 3
        s_add_u32 s3, s3, s7
        s_lshl_b32 s3, s3, 2
        v_mov_b32 v246, s3
        buffer_store_dword v245, v246, s[52:55], 0 offen offset:32 sc1
        s_mov_b64 exec, -1
        K1_E2:
        """)
    P(loopinit); P(narrow)
    P('s_barrier')
    P(getE)
    for kk in range(4): P(f'ds_read_b128 {vr(Q9 + 4 * kk, 4)}, v{S9} offset:{kk * 64}')
    for i in range(16): P(f'v_mul_f32 v{ACC[1][0] + i}, s6, v{ACC[1][0] + i}')
    P('s_barrier')
    P(getE2)
    for dt in range(4):
        a = ACC[1][dt]
        if dt:
            for i in range(16): P(f'v_mul_f32 v{a + i}, s6, v{a + i}')
        for i in range(8): P(f'v_cvt_pk_bf16_f32 v{Q + dt * 8 + i}, v{a + 2 * i}, v{a + 2 * i + 1}')
        if dt: P(swp(Q + dt * 8 - 8) + '\n' + swp(Q + dt * 8 - 4))
        if dt == 3: P(swp(Q + 24) + '\n' + swp(Q + 28))
    for r in list(range(O, O + 64)) + list(range(CN, CN + 12)) + list(range(O9, O9 + 32)): P(f'v_mov_b32 v{r}, 0')
    P('s_barrier\nK1_HEAD:' if OPT['nbar'] == 2 else 'K1_HEAD:')

    def dma_sites(vo, srd, so, mb):
        out = []
        for n in range(4):
            g = [f's_add_u32 m0, s{mb}, s{sMW}', 's_nop 0'] if n == 0 else []
            g.append(f'buffer_load_dwordx4 v{vo}, s[{srd}:{srd + 3}], s{so} offen offset:{n * 1024} {nk} lds')
            if n == 3: g += [f's_add_u32 s{so}, s{so}, 16384', f's_and_b32 s{so}, s{so}, 0x1ffff']
            out.append(g)
        return out
    dmaV = dma_sites(VOV, 16, sSV, sIS); dmaK = dma_sites(VOK, 12, sSK, sIK)
    pre = OPT['opre'] == 1
    book = f"""s_cmp_lt_u32 s{sCNT}, {8 if pre else 7}
    s_cselect_b32 s{sIS}, s{sKP}, 0x30000
    s_add_u32 s{sKP}, s{sKP}, 65536
    s_cmp_ge_u32 s{sKP}, 163840
    s_cselect_b32 s3, 163840, 0
    s_sub_u32 s{sKP}, s{sKP}, s3
    s_sub_u32 s{sDK}, 65536, s3
    s_cmp_lt_u32 s{sCNT}, 5
    s_cselect_b32 s{sIK}, s{sVP}, 0x30000
    s_add_u32 s{sVP}, s{sVP}, 65536
    s_cmp_ge_u32 s{sVP}, 163840
    s_cselect_b32 s3, 163840, 0
    s_sub_u32 s{sVP}, s{sVP}, s3
    s_sub_u32 s{sDV}, 65536, s3""".split('\n')
    if OPT['nbar'] == 1:
        book = f"""s_mov_b32 s{sIS}, s{sKP}
    s_nop 0
    s_add_u32 s{sKP}, s{sKP}, 65536
    s_cmp_ge_u32 s{sKP}, 163840
    s_cselect_b32 s3, 163840, 0
    s_sub_u32 s{sKP}, s{sKP}, s3
    s_sub_u32 s{sDK}, 65536, s3
    s_cmp_lt_u32 s{sCNT}, 6
    s_cselect_b32 s{sIK}, s33, 0x30000
    s_mov_b32 s33, s{sVP}
    s_add_u32 s{sVP}, s{sVP}, 65536
    s_cmp_ge_u32 s{sVP}, 163840
    s_cselect_b32 s3, 163840, 0
    s_sub_u32 s{sVP}, s{sVP}, s3
    s_sub_u32 s{sDV}, 65536, s3""".split('\n')
        book.remove('    s_nop 0'); book.insert(6, 's_nop 0')
    book2 = f"""s_cmp_eq_u32 s{sCNT}, 6
    s_cselect_b32 s{sIK}, s6, s{sIK}
    s_cselect_b32 s12, s56, s12
    s_cselect_b32 s13, s57, s13
    s_cselect_b32 s14, 20480, s14
    s_cselect_b32 s{sSK}, 0, s{sSK}
    s_cmp_eq_u32 s{sCNT}, 7
    s_cselect_b32 s16, s56, s16
    s_cselect_b32 s17, s57, s17
    s_cselect_b32 s18, 20480, s18
    s_cselect_b32 s{sSV}, 4096, s{sSV}""".split('\n') if pre else []
    if pre: book.insert(7, f's_mov_b32 s6, s{sVP}')
    vupd = [f'v_add_u32 v{VA + i}, s{sDV}, v{VA + i}' for i in range(4)] + [f'v_add_u32 v{AV9}, s{sDV}, v{AV9}']
    kupd = [f'v_add_u32 v{AK}, s{sDK}, v{AK}', f'v_add_u32 v{AK9}, s{sDK}, v{AK9}']
    def kmain(kk, mt):
        tmp = [T0, T1][kk & 1]
        pre = [f'v_xor_b32 v{tmp}, {kk << 5}, v{AK}'] if (mt == 0 and kk) else []
        ad = tmp if kk else AK
        return dict(rd=lambda F: pre + [f'ds_read_b128 {vr(F, 4)}, v{ad} offset:{mt * 2048}'],
                    mf=lambda F: [mf32(S + 16 * mt, F, Q + 4 * kk, CN if kk == 0 else None)], w=32)
    def k9(kk):
        pre = [f'v_xor_b32 v{X0}, {kk << 6}, v{AK9}'] if kk else []
        ad = X0 if kk else AK9
        return dict(rd=lambda F: pre + [f'ds_read_b128 {vr(F, 4)}, v{ad}'],
                    mf=lambda F: [mf16(S9, F, Q9 + 4 * kk, CN9 if kk == 0 else None)], w=16)
    def vmain(ks, dt):
        mt, u = ks >> 1, ks & 1
        return dict(rd=lambda F: [f'ds_read_b64_tr_b16 {vr(F + 2 * j, 2)}, v{VA + dt} offset:{u * 8192 + j * 4096 + mt * 2048}' for j in range(2)],
                    mf=lambda F: [mf32(O + 16 * dt, F, PP + 4 * ks)], w=32)
    def v9(pp):
        pre = [f'v_xor_b32 v{X1}, {pp << 6}, v{AV9}'] if pp else []
        ad = X1 if pp else AV9
        return dict(rd=lambda F: pre + [f'ds_read_b64_tr_b16 {vr(F + 2 * j, 2)}, v{ad} offset:{32 * j}' for j in range(2)],
                    mf=lambda F: [mf16h(O9 + 4 * (2 * pp + j), F + 2 * j, P9) for j in range(2)], w=32)
    itA = []
    for kk in range(8):
        itA += [kmain(kk, 0), kmain(kk, 1)]
        if 1 <= kk <= 4: itA.append(k9(kk - 1))
    itC = []
    for dt in range(4): itC += [vmain(0, dt), v9(dt)]
    for ks in range(1, 4): itC += [vmain(ks, dt) for dt in range(4)]
    lastP = {0: 6, 1: 11, 2: 15, 3: 19, 9: 7}
    nb = len(FB); items = itA + itC; N = len(items); nA = len(itA)
    assert N % nb == 0 and nA % nb == 0
    RD = lambda i: items[i % N]['rd'](FB[i % nb])
    DL = OPT['bdelay']
    def MF(i, pair=True):
        m = items[i]['mf'](FB[i % nb])
        if pair and OPT['pairw'] and i % 2 == 0 and (i + 1) % nA != 0: m[0] += f' ; need {vr(FB[(i + 1) % nb], 4)}'
        return m
    def sync(wait='vmcnt(12)'): return [f's_waitcnt {wait}', 's_barrier']
    def gsync(lbl, group0, wait):
        return [f's_cmp_lt_u32 s{sW}, 4', f's_cbranch_scc{0 if group0 else 1} {lbl}', f's_waitcnt {wait}', 's_barrier', f'{lbl}:']
    DS = OPT['dstep']
    mx = [f'v_max3_f32 v{T1}, v{S9}, v{S9 + 1}, v{S9 + 2}', f'v_max_f32 v{T1}, v{T1}, v{S9 + 3}', f'v_max3_f32 v{T0}, v{S}, v{S + 1}, v{S + 2}']
    mx += [f'v_max3_f32 v{T0}, v{T0}, v{S + 3 + 2 * i}, v{S + 4 + 2 * i}' for i in range(6)]
    mx += [f'v_max3_f32 v{X0}, v{S + 16}, v{S + 17}, v{S + 18}']
    mx += [f'v_max3_f32 v{X0}, v{X0}, v{S + 19 + 2 * i}, v{S + 20 + 2 * i}' for i in range(6)]
    mx += [f'v_max3_f32 v{X0}, v{X0}, v{S + 15}, v{S + 31}', f'v_max_f32 v{T0}, v{T0}, v{X0}', f'v_max_f32 v{X0}, v{T0}, v{T1}', f'v_cmp_lt_f32 vcc, s{sT}, v{X0}']
    fill = []
    for ks in range(4):
        b = S + 8 * ks
        for i in range(0, 8, 2):
            fill += [(0, f'v_exp_f32 v{b + i}, v{b + i}'), (0, f'v_exp_f32 v{b + i + 1}, v{b + i + 1}')]
            if i: fill += [(0, f'v_add_f32 v{L}, v{L}, v{b + i - 2}'), (0, f'v_add_f32 v{L}, v{L}, v{b + i - 1}')]
        if ks == 0: fill += [(0, f'v_exp_f32 v{S9 + i}, v{S9 + i}') for i in range(4)]
        fill += [(0, f'v_add_f32 v{L}, v{L}, v{b + 6}'), (0, f'v_add_f32 v{L}, v{L}, v{b + 7}')]
        if ks == 0: fill += [(0, f'v_add_f32 v{L9}, v{L9}, v{S9 + i}') for i in range(4)]
        fill += [(lastP[ks], f'v_cvt_pk_bf16_f32 v{PP + 4 * ks + i}, v{b + 2 * i}, v{b + 2 * i + 1}') for i in range(4)]
        if ks == 0: fill += [(lastP[9], f'v_cvt_pk_bf16_f32 v{P9 + i}, v{S9 + 2 * i}, v{S9 + 2 * i + 1}') for i in range(2)]
    wosrd = f"""
    s_and_b32 s6, s2, 3
    s_mul_i32 s6, s6, {1024 * 1152}
    s_add_u32 s8, s100, s6
    s_addc_u32 s9, s101, 0
    s_sub_u32 s8, s8, 3072
    s_subb_u32 s9, s9, 0
    s_sub_u32 s10, {4096 * 1152 + 3072}, s6
    s_mov_b32 s11, 0x20000
    """
    def wotouch(drop):
        d1, d2, sfx = ('', '', 'lds') if drop else (f'v{Q + 1}, ', f'v{Q + 2}, ', '')
        va = X0 if drop else Q
        return f"""
    s_lshr_b32 s6, s2, 3
    s_lshl_b32 s6, s6, 3
    s_add_u32 s6, s6, s{sW}
    s_mul_i32 s6, s6, {36 * 128}
    s_add_u32 s6, s6, 3072
    {f's_add_u32 m0, s{sIS}, s{sMW}' if drop else ''}
    v_lshlrev_b32 v{va}, 6, v{TID}
    buffer_load_dword {d1}v{va}, s[8:11], s6 offen {OPT['nt_wo']} {sfx}
    s_add_u32 s6, s6, 4096
    s_mov_b64 exec, 0xff
    buffer_load_dword {d2}v{va}, s[8:11], s6 offen {OPT['nt_wo']} {sfx}
    s_mov_b64 exec, -1
    """
    if OPT['wot'] >= 2: P(wosrd)
    if OPT['opre'] == 1: P(obase)
    if OPT['opre'] >= 2:
        P(f"""
        s_lshl_b32 s6, s{sBR}, 3
        s_add_u32 s6, s6, s{sB}
        s_mul_i32 s6, s6, 1179648
        s_add_u32 s56, s66, s6
        s_addc_u32 s57, s67, 0
        s_mov_b32 s58, 1179648
        s_mov_b32 s59, 0x20000
        """)
    opre2 = f"""
    s_cmp_lg_u32 s{sCNT}, {OPT['opre']}
    s_cbranch_scc1 K1_OP
    s_sub_u32 s6, s{sKP}, s{sDK}
    s_add_u32 m0, s6, s{sMW}
    s_lshl_b32 s6, s{sJ}, 1
    s_add_u32 s6, s6, s{sP}
    s_lshl_b32 s7, s6, 13
    s_lshl_b32 s3, s{sWP}, 18
    s_add_u32 s7, s7, s3
    v_lshlrev_b32 v{X0}, 7, v{TID}
    buffer_load_dword v{X0}, s[56:59], s7 offen lds
    s_lshl_b32 s6, s6, 12
    s_lshl_b32 s7, s{sWP}, 10
    s_add_u32 s6, s6, s7
    s_add_u32 s6, s6, {1 << 20}
    s_mov_b64 exec, 0xff
    buffer_load_dword v{X0}, s[56:59], s6 offen lds
    s_mov_b64 exec, -1
    K1_OP:
    """
    if OPT['wot'] == 2: P(wotouch(True))
    for i in range(nb): P.extend(RD(i))
    if OPT['stamps'] == 1: stamp(7)
    for i in range(nA):
        P.extend(MF(i))
        if i + nb < nA: P.extend(RD(i + nb))
        if i + nb - nA == DL: P.extend(sync('vmcnt(63)') if OPT['nbar'] == 2 else gsync('K1_Y0', False, 'vmcnt(63)'))
        if i in (1, 3, 5, 7): P.extend(dmaV[(i - 1) // 2])
    if OPT['nbar'] == 1: P(f's_mov_b32 s{sIS}, 0x30000\ns_sub_u32 s{sSV}, s{sSV}, 16384\ns_and_b32 s{sSV}, s{sSV}, 0x1ffff')
    if OPT['pa'] != OPT['pc']: P(f's_setprio {OPT["pc"]}')
    P.extend(kupd + mx[:-1]); P('s_branch K1_RARE1\nK1_CPB:')
    P(f's_mov_b32 s{sRARE}, 0')
    ktail = [q for q in range(4) if DL + q * DS < nb]
    for i, (_, t) in enumerate(fill):
        P(t)
        if i == len(fill) - 12:
            P.extend(sync(f'vmcnt({X1N})') if OPT['nbar'] == 2 else gsync('K1_X1', True, f'vmcnt({X1N})'))
            for jj in range(nb): P.extend(RD(jj))
            for q in ktail if OPT['nbar'] == 2 else []: P.extend(dmaK[q])
    P('K1_TOP:')
    if OPT['ti']: stamp(5, 1); stamp(6, 2); stamp(9, 3); stamp(10, 5); stamp(11, 7)
    if OPT['stamps'] == 1 and not OPT['fused']: stamp(11, 2); stamp(8, 5)
    if OPT['pa'] != OPT['pc']: P(f's_setprio {OPT["pa"]}')
    if OPT['stamps'] == 2: stamp(7, 3); stamp(11, 4)
    def sites(pos, dm):
        return [x for q in range(4) if q * DS == pos for x in dm[q]]
    for i in range(nA):
        P.extend(MF(i))
        j = i + nb - nA
        if j < 0: P.extend(RD(i + nb))
        elif j == DL:
            if OPT['stamps'] == 2: stamp(9, 3)
            P.extend(sync() if OPT['nbar'] == 2 else gsync('K1_Y', False, 'vmcnt(4)'))
            if OPT['stamps'] == 2: stamp(1, 3)
            for jj in range(DL + 1): P.extend(RD(nA + jj))
        elif j > DL: P.extend(RD(i + nb))
        P.extend(sites(i + nb - DL, dmaK) if OPT['nbar'] == 2 else sites(i, dmaV))
        if j == DL and OPT['wot'] >= 3: P(f's_cmp_lg_u32 s{sCNT}, {OPT["wot"]}\ns_cbranch_scc1 K1_WT' + wotouch(True) + 'K1_WT:')
        if j == DL and OPT['opre'] >= 2: P(opre2)
        if j >= DL and OPT['nbar'] == 2: P.extend(sites(j - DL, dmaV))
        if i == 2: P.extend(vupd)
        if OPT['anop'] and i % 2 == 1: P(f's_nop {OPT["anop"]}')
        if i == 9: P.extend(book[:7])
        if i == 11: P.extend(book[7:])
        if i == 13: P.extend(book2)
    if OPT['stamps'] == 2: stamp(8, 3)
    if OPT['pa'] != OPT['pc']: P(f's_setprio {OPT["pc"]}')
    cost = lambda t: 2 if 'exp' in t else (0 if 'BR' in t else 1)
    full = [(0, t) for t in kupd + mx] + [(0, 'BR')] + fill
    tot = sum(cost(t) for _, t in full)
    pend = list(full); acc = 0; cw = 0; wsum = sum(it['w'] for it in itC)
    for c in range(len(itC)):
        i = nA + c
        P.extend(MF(i)); cw += itC[c]['w']
        j = i + nb - N
        if j < 0: P.extend(RD(i + nb))
        elif j == DL:
            if OPT['stamps'] == 2: stamp(4, 3)
            P.extend(sync() if OPT['nbar'] == 2 else gsync('K1_X', True, 'vmcnt(4)'))
            if OPT['stamps'] == 2: stamp(12, 3)
            for jj in range(DL + 1): P.extend(RD(jj))
        elif j > DL: P.extend(RD(i + nb))
        P.extend(sites(c + nb - DL, dmaV) if OPT['nbar'] == 2 else sites(c, dmaK))
        if j >= DL and OPT['nbar'] == 2: P.extend(sites(j - DL, dmaK))
        goal = tot * min(1.0, cw / (wsum - 32))
        q = 0
        while q < len(pend) and acc + cost(pend[q][1]) <= goal + 1:
            if pend[q][0] > c: q += 1; continue
            acc += cost(pend[q][1]); t = pend.pop(q)[1]
            P('s_cbranch_vccnz K1_RARE1\nK1_R1B:' if t == 'BR' else t)
    for _, t in pend: P(t)
    if OPT['stamps'] == 2: stamp(10, 3)
    P(f"""
    s_add_u32 s{sCNT}, s{sCNT}, 1
    s_add_u32 s3, s{sCNT}, s{sRARE}
    s_cmp_lt_u32 s3, 8
    s_cbranch_scc1 K1_TOP
    s_cmp_lg_u32 s{sRARE}, 0
    s_cbranch_scc1 K1_RARE2
    K1_NEXT:
    s_cmp_lt_u32 s{sCNT}, 8
    s_cbranch_scc1 K1_TOP
    s_branch K1_PVO
    """)
    P(f"""
    K1_RARE1:
    v_mov_b32 v{X0}, v{T0}
    v_mov_b32 v{X1}, v{T1}
    v_permlane32_swap_b32 v{T0}, v{X0}
    v_permlane32_swap_b32 v{T1}, v{X1}
    v_max3_f32 v{T0}, v{T0}, v{X0}, s{sCL}
    v_max_f32 v{T1}, v{T1}, v{X1}
    v_mov_b32 v{X1}, v{T1}
    v_max_f32 v{AL}, 0, v{T0}
    v_permlane16_swap_b32 v{T1}, v{X1}
    v_max3_f32 v{T1}, v{T1}, v{X1}, s{sCL}
    v_max_f32 v{AL9}, 0, v{T1}
    v_exp_f32 v{AL}, -v{AL}
    v_exp_f32 v{AL9}, -v{AL9}
    """)
    for i in range(32): P(f'v_sub_f32 v{S + i}, v{S + i}, v{T0}')
    for i in range(16): P(f'v_sub_f32 v{CN + i}, v{CN + i}, v{T0}')
    for i in range(4): P(f'v_sub_f32 v{S9 + i}, v{S9 + i}, v{T1}')
    for i in range(4): P(f'v_sub_f32 v{CN9 + i}, v{CN9 + i}, v{T1}')
    P(f"""
    v_mul_f32 v{L}, v{L}, v{AL}
    v_mul_f32 v{L9}, v{L9}, v{AL9}
    s_mov_b32 s{sT}, {f2u(8.0)}
    s_cmp_lg_u32 s{sCL}, 0
    s_mov_b32 s{sCL}, 0
    s_mov_b32 s{sRARE}, 8
    s_cbranch_scc1 K1_CPB
    s_branch K1_R1B
    K1_RARE2:
    """)
    for i in range(64): P(f'v_mul_f32 v{O + i}, v{O + i}, v{AL}')
    for i in range(32): P(f'v_mul_f32 v{O9 + i}, v{O9 + i}, v{AL9}')
    P(f"""
    s_mov_b32 s{sRARE}, 0
    s_branch K1_NEXT
    K1_PVO:
    """)
    if OPT['stamps'] == 1: stamp(3)
    P.extend(vupd)
    osrd = f'''
    s_lshl_b32 s6, s{sBR}, 3
    s_add_u32 s6, s6, s{sB}
    s_mul_i32 s6, s6, 1179648
    s_add_u32 s20, s66, s6
    s_addc_u32 s21, s67, 0
    s_mov_b32 s22, 1179648
    s_mov_b32 s23, 0x20000
    s_lshl_b32 s6, s{sJ}, 1
    s_add_u32 s6, s6, s{sP}
    s_lshl_b32 s7, s6, 13
    s_lshl_b32 s{sSK}, s{sWP}, 18
    s_add_u32 s{sSK}, s{sSK}, s7
    s_add_u32 s{sSV}, s{sSK}, 4096
    s_lshl_b32 s{sIS}, s6, 12
    s_lshl_b32 s7, s{sWP}, 10
    s_add_u32 s{sIS}, s{sIS}, s7
    s_add_u32 s{sIS}, s{sIS}, {1 << 20}
'''
    if OPT['opv']:
        P(osrd + f'''
        v_lshlrev_b32 v{Q}, 7, v{TID}
        buffer_load_dword v{Q + 1}, v{Q}, s[20:23], s{sSK} offen
        s_mov_b64 exec, 0xff
        buffer_load_dword v{Q + 2}, v{Q}, s[20:23], s{sIS} offen
        s_mov_b64 exec, -1
        ''')
    P(f's_and_b32 s{sKP}, s2, 3')
    if OPT['wot'] == 1: P(wosrd + wotouch(False))
    elif OPT['wot'] == 0: P(wosrd)
    P.extend(sync(f'vmcnt({2 * (OPT["wot"] == 1) + 2 * OPT["opv"]})') if OPT['nbar'] == 2 else gsync('K1_Y8', False, f'vmcnt({2 * (OPT["wot"] == 1) + 2 * OPT["opv"]})'))
    if OPT['fused'] and OPT['loc']:
        P(f"""
        s_cmp_eq_u32 s{sWP}, 0
        s_cbranch_scc0 K1_XL
        s_and_b32 s3, s2, 7
        s_lshl_b32 s3, s3, 3
        s_add_u32 s3, s3, s{sB}
        s_lshl_b32 s3, s3, 7
        v_lshlrev_b32 v{Q + 3}, 2, v{TID}
        s_mov_b64 exec, 15
        s_add_u32 s7, s3, 16384
        buffer_load_dword v{Q + 2}, v{Q + 3}, s[52:55], s7 offen nt
        buffer_load_dword v{Q + 3}, v{Q + 3}, s[52:55], s3 offen offset:32 sc1
        s_mov_b64 exec, -1
        K1_XL:
        """)
    for i in range(nb): P.extend(RD(nA + i))
    groups = [MF(nA + c) + (RD(nA + c + nb) if c + nb < len(itC) else []) for c in range(len(itC))]
    epi = ([] if OPT['opv'] else osrd.strip().split('\n')) + f'''
    v_mov_b32 v{T0}, v{L}
    v_mov_b32 v{T1}, v{L9}
    v_lshlrev_b32 v{VOK}, 4, v{TID}
    v_permlane32_swap_b32 v{L}, v{T0}
    v_permlane32_swap_b32 v{L9}, v{T1}
    v_add_f32 v{L}, v{L}, v{T0}
    v_add_f32 v{L9}, v{L9}, v{T1}
    v_mov_b32 v{T1}, v{L9}
    v_rcp_f32 v{AL}, v{L}
    v_permlane16_swap_b32 v{L9}, v{T1}
    v_add_f32 v{CN9 + 1}, v{L9}, v{T1}
    '''.strip().split('\n')
    epi += f"""s_cmp_lt_u32 s{sW}, 4
    s_cselect_b32 s45, 118784, 65536
    s_cselect_b32 s46, 135168, 155648
    s_lshl_b32 s7, s{sWP}, 11
    s_add_u32 s6, s45, s7
    v_add_u32 v116, s6, v{VOK}
    s_add_u32 s6, s46, s7
    v_add_u32 v117, s6, v{VOK}
    v_and_b32 v119, 15, v{TID}
    v_lshlrev_b32 v119, 3, v119
    s_lshl_b32 s7, s{sW}, 7
    s_add_u32 s7, s7, 20480
    v_add_u32 v118, s7, v119""".split('\n')
    wr9 = [f'ds_write_b64 v118, {vr(CN9, 2)}'] + [f'ds_write_b128 v{116 if sl < 3 else 117}, {vr(O9 + 8 * sl + 4 * t, 4)} offset:{(sl - 1) * 8192 * (sl < 3) + t * 1024}' for sl in range(1, 4) for t in range(2)]
    n1 = len(epi)
    epi += phase2(P, stamp, locals(), 0)
    epi += f"""s_mul_i32 s6, s{sP}, 36864
    s_lshl_b32 s7, s{sWP}, 12
    s_add_u32 s6, s6, s7
    s_add_u32 s6, s6, 81920
    v_add_u32 v{AL9}, s6, v{VOK}
    s_lshl_b32 s6, s{sW}, 7
    s_add_u32 s6, s6, 20480
    v_add_u32 v{S + 28}, s6, v119
    v_xor_b32 v{S + 29}, 0x80, v{S + 28}
    v_xor_b32 v{S + 30}, 0x100, v{S + 28}
    v_xor_b32 v{S + 31}, 0x180, v{S + 28}
    s_xor_b32 s7, s{sWP}, 1
    s_lshl_b32 s7, s7, 11
    s_add_u32 s7, s7, s45
    v_add_u32 v{S + 25}, s7, v{VOK}
    s_xor_b32 s7, s{sWP}, 2
    s_lshl_b32 s7, s7, 11
    s_add_u32 s7, s7, s45
    s_add_u32 s7, s7, 8192
    v_add_u32 v{S + 26}, s7, v{VOK}
    s_xor_b32 s7, s{sWP}, 3
    s_lshl_b32 s7, s7, 11
    s_add_u32 s7, s7, s46
    v_add_u32 v{S + 27}, s7, v{VOK}
    v_lshrrev_b32 v131, 5, v{TID}
    v_bfe_u32 v132, v{TID}, 4, 1
    v_lshlrev_b32 v137, 1, v119
    v_lshl_add_u32 v137, v131, 8, v137
    v_lshl_add_u32 v137, v132, 3, v137
    s_lshr_b32 s6, s{sW}, 1
    s_mul_i32 s6, s6, 18432
    s_and_b32 s7, s{sW}, 1
    s_lshl_b32 s7, s7, 10
    s_add_u32 s6, s6, s7
    s_add_u32 s6, s6, {81920 + 16384}
    v_add_u32 v138, s6, v137""".split('\n')
    epi = [e.strip() for e in epi]
    per = -(-len(epi) // len(groups))
    i = 0
    for gi, g in enumerate(groups):
        P.extend(g)
        j = min(len(epi), i + per)
        while j < len(epi) and (epi[j].split()[0] in ('s_addc_u32', 's_cselect_b64', 's_cselect_b32', 'v_cndmask_b32')): j += 1
        P.extend(epi[i:j]); i = j
        if gi >= 10 and wr9:
            assert i >= n1
            P(wr9.pop(0))
    P.extend(epi[i:]); P.extend(wr9)
    ST = CN; PT = [None, Q9, Q9 + 8, PP]; R9 = PP + 8
    P('s_barrier')
    for w in range(4): P(f'ds_read_b64 {vr(ST + 2 * w, 2)}, v{S + 28 + w}')
    for w in range(1, 4):
        for t in range(2): P(f'ds_read_b128 {vr(PT[w] + 4 * t, 4)}, v{S + 24 + w} offset:{t * 1024}')
    P(f's_cmp_lt_u32 s{sW}, 4\ns_cbranch_scc0 K1_Z')
    phase2(P, stamp, locals(), 3)
    P('s_barrier\nK1_Z:')
    if OPT['stamps'] == 1: stamp(4)
    os_ = '' if OPT['loc'] else 'sc1'
    mg = [f'v_min3_f32 v{ST + 8}, v{ST}, v{ST + 2}, v{ST + 4}', f'v_min_f32 v{ST + 8}, v{ST + 8}, v{ST + 6}']
    mg += [f'v_sub_f32 v{ST + 2 * w}, v{ST + 8}, v{ST + 2 * w}' for w in range(4)]
    mg += [f'v_exp_f32 v{ST + 2 * w}, v{ST + 2 * w}' for w in range(4)]
    mg += [f'v_mul_f32 v{ST + 9}, v{ST}, v{ST + 1}'] + [f'v_fmac_f32 v{ST + 9}, v{ST + 2 * w}, v{ST + 2 * w + 1}' for w in range(1, 4)]
    mg += [f'v_rcp_f32 v{ST + 9}, v{ST + 9}']
    mg += [f'v_mul_f32 v{R9 + i}, v{O9 + i}, v{ST}' for i in range(8)]
    for w in range(1, 4): mg += [f'v_fmac_f32 v{R9 + i}, v{PT[w] + i}, v{ST + 2 * w}' for i in range(8)]
    mg += [f'v_mul_f32 v{R9 + i}, v{R9 + i}, v{ST + 9}' for i in range(8)]
    for t in range(2):
        mg += [f'v_cvt_pk_bf16_f32 v{ST + 10 + 2 * t}, v{R9 + 4 * t}, v{R9 + 4 * t + 1}', f'v_cvt_pk_bf16_f32 v{ST + 11 + 2 * t}, v{R9 + 4 * t + 2}, v{R9 + 4 * t + 3}',
               f'ds_write_b64 v138, {vr(ST + 10 + 2 * t, 2)} offset:{t * 512}', f'buffer_store_dwordx2 {vr(ST + 10 + 2 * t, 2)}, v137, s[20:23], s{sIS} offen offset:{t * 512} {os_}']
    for dt in range(4):
        for i in range(16): P(f'v_mul_f32 v{O + 16 * dt + i}, v{O + 16 * dt + i}, v{AL}')
        for hf in range(2):
            d = S + 8 * dt + 4 * hf
            for i in range(4): P(f'v_cvt_pk_bf16_f32 v{d + i}, v{O + 16 * dt + 8 * hf + 2 * i}, v{O + 16 * dt + 8 * hf + 2 * i + 1}')
            ks = 2 * dt + hf
            P(f'ds_write_b128 v{AL9}, {vr(d, 4)} offset:{(ks >> 2) * 18432 + (ks & 3) * 1024}')
            if not OPT['lates']: P(f'buffer_store_dwordx4 {vr(d, 4)}, v{VOK}, s[20:23], s{sSK if ks < 4 else sSV} offen offset:{(ks & 3) * 1024} {os_}')
        if dt == 0: P.extend(mg)
    if OPT['lates']:
        for ks in range(8): P(f'buffer_store_dwordx4 {vr(S + 4 * ks, 4)}, v{VOK}, s[20:23], s{sSK if ks < 4 else sSV} offen offset:{(ks & 3) * 1024} {os_}')
    if OPT['fused']: phase2(P, stamp, locals(), 2)
    if OPT['stamps']:
        P('K1_STAMPS:' if OPT['fused'] else 's_waitcnt vmcnt(0)')
        if not OPT['fused']: stamp(4)
        P(f'''
        s_waitcnt lgkmcnt(0)
        s_add_u32 s20, s66, {WS_STAMP}
        s_addc_u32 s21, s67, 0
        s_mov_b32 s22, 0x100000
        s_mov_b32 s23, 0x20000
        s_lshl_b32 s6, s2, 3
        s_add_u32 s6, s6, s{sW}
        s_lshl_b32 s6, s6, 7
        v_mov_b32 v2, s6
        s_mov_b64 exec, 1
        ''')
        if OPT['probe'] >= 0:
            k = OPT['probe']
            lo, base = (98, 96) if k == 99 else (70 + 2 * k, 70)
            P(f"""
            s_cmp_lg_u32 s2, {OPT['pwg']}
            s_cbranch_scc1 K1_END
            s_cmp_lg_u32 s{sW}, {OPT['pw']}
            s_cbranch_scc1 K1_END
            s_sub_u32 s6, s{lo}, s{base}
            s_mul_i32 s6, s6, {1 if k == 99 else 10}
            s_memrealtime s[72:73]
            s_waitcnt lgkmcnt(0)
            s_add_u32 s6, s6, s72
            {'s_add_u32 s6, s70, 30000' if k == 0 else ''}
            K1_SPIN:
            s_memrealtime s[72:73]
            s_waitcnt lgkmcnt(0)
            s_sub_u32 s7, s72, s6
            s_cmp_lt_i32 s7, 0
            s_cbranch_scc1 K1_SPIN
            s_branch K1_END
            """)
        if OPT['dbgst']:
            P('s_mov_b32 s20, s64\ns_mov_b32 s21, s65\ns_mov_b32 s22, 256\nv_mov_b32 v2, 0\ns_not_b32 s70, s70')
            for i, k in enumerate([0, 1, 2, 7, 3, 4, 5, 6, 9, 10, 11, 8]):
                P(f'v_mov_b32 v4, s{70 + 2 * k}\nbuffer_atomic_umax v4, v2, s[20:23], 0 offen offset:{4 + 4 * i}\ns_nop 1')
        for k in range(0 if OPT['dbgst'] else 15):
            P(f'v_mov_b32 v4, s{70 + 2 * k}\nv_mov_b32 v5, s{71 + 2 * k}\nbuffer_store_dwordx2 v[4:5], v2, s[20:23], 0 offen offset:{8 * k}\ns_nop 1')
    P('K1_END:\ns_endpgm')
    a0 = [i for i, x in enumerate(P.ins) if x.text == 'K1_G1:'][0]; a1 = [i for i, x in enumerate(P.ins) if x.text == 'K1_PVO:'][0]
    keep = []; dcount = [0]
    kt = [i for i, x in enumerate(P.ins) if x.text == 'K1_TOP:'][0]
    kp0 = [i for i, x in enumerate(P.ins) if x.text == 'K1_G1:'][0]; kp1 = [i for i, x in enumerate(P.ins) if x.text == 'K1_QL:'][0]
    for i, x in enumerate(P.ins):
        if a0 < i < a1:
            if OPT['nodma'] and x.dma and not (kp0 < i < kp1): continue
            if OPT['nobar'] and x.kind == 'barrier': continue
            if OPT['noexp'] and x.kind in ('valu', 'trans') and ('exp' in x.text or 'v_add_f32' in x.text or 'cvt_pk' in x.text or 'max3' in x.text): continue
            if OPT['nolds'] and x.kind == 'ds_r': continue
            if OPT['diag'] & 1 and i > kt and 'v_add_f32' in x.text: continue
            if OPT['diag'] & 2 and i > kt and 'v_max3' in x.text and 's46' not in x.text: continue
            if OPT['diag'] & 4 and i > kt and x.kind == 'ds_r':
                dcount[0] += 1
                if (dcount[0] // 4) % 2: continue
            if OPT['diag'] & 8 and i > kt and '16x16x16' in x.text: continue
            if OPT['diag'] & 16 and i > kt and 'v_exp' in x.text and '-v' not in x.text:
                x = parse(x.text.replace('v_exp_f32', 'v_mov_b32'))
            if OPT['nomf'] and i > kt and (x.kind in ('mfma', 'ds_r', 'trans') or (x.kind == 'valu' and 'v_cmp' not in x.text)): continue
        keep.append(x)
    P.ins = keep
    return P.finish()

def desc(name, vg, sg=102):
    return f'''.amdhsa_kernel {name}
  .amdhsa_next_free_vgpr {vg}
  .amdhsa_next_free_sgpr {sg}
  .amdhsa_accum_offset {(vg + 3) // 4 * 4}
  .amdhsa_group_segment_fixed_size 0
  .amdhsa_kernarg_size 104
  .amdhsa_user_sgpr_count 2
  .amdhsa_user_sgpr_kernarg_segment_ptr 1
  .amdhsa_system_sgpr_workgroup_id_x 1
  .amdhsa_float_denorm_mode_32 3
.end_amdhsa_kernel
'''

def main():
    ref = open('cdna_kernels/%s.s.ref' % NAME).read().split('\n')
    hdr = [l for l in ref if l.startswith(';') and '@launch' not in l and 'Override launch' not in l and 'grid=ceil' not in l]
    hdr = hdr[:14]
    ks = [('attn_kernel', k1(), 256, '(256,1,1)', '(%d,1,1)' % OPT['blk'], 163840),
          ]
    out = '\n'.join(hdr) + '\n'
    if OPT['fused']:
        ks = [(NAME + '_kernel',) + ks[0][1:]]
        out += f'; @launch grid={ks[0][3]} block={ks[0][4]} lds={ks[0][5]}\n'
    else:
        for n, _, _, g, b, l in ks: out += f'; @launch kernel={n} grid={g} block={b} lds={l}\n'
    out += '.amdgcn_target "amdgcn-amd-amdhsa--gfx950"\n.text\n'
    for n, body, _, _, _, _ in ks:
        out += f'.globl {n}\n.p2align 8\n.type {n},@function\n{n}:\n' + 'K1_START:\n' + body.replace('@CODELEN@', 'K1_END-K1_START').replace('@PCOFF@', 'K1_PC-K1_START').replace('@PC2OFF@', 'K1_QE-K1_PC2').replace('@LEN2@', 'K1_END-K1_QE')
    out += '.section .rodata,"a"\n'
    for n, _, vg, _, _, _ in ks: out += '.p2align 6\n' + desc(n, vg)
    open(sys.argv[1], 'w').write(out)
main()
```

```python
import sys, struct, math
from asmlib import *

NAME = 'concat_heads__mha_block_cached__gqa_block_cached__near_ridge'
def f2u(x): return struct.unpack('<I', struct.pack('<f', x))[0]
CSCALE = f2u(math.log2(math.e) / math.sqrt(128.0))

OPT = dict(nt_kv='nt', nt_w='', nt_x='', ostore='', stamps=0, touch=0, k2nb=3, nt_wo='', nt_o='', nodma=0, nobar=0, noexp=0, nolds=0, prio=0, bdelay=0, blk=512, pa=1, pc=0, pairw=1, qdelay=3, wtouch=0, kvs='000000000000044460a4', nsb=5, dstep=2, trows=15, tlead=0, ptouch=0, tl=0, nopoll=0, ot=-9, opre=0, dyn=0, fb=2, kpre=0, pq=0, pg=0, pl2=2, q16=0, ep=6, pt2=0, nt_wd='', bh=0, bt=0, btf='', ti=0, d3=0, opv=0, cts=-9, tb='-1:1:8,-1:8:18', bs='9abc', bn=16, diag=0, nbar=1, rot=1, rotx=0, rotp=4, lates=0, qnop=0, anop=0, ctouch=0, sp='12111212111111', ts=-9, npre=1, dist=3, sq=9, fused=1, p2nb=3, wot=1, ld2='', spin=200000, dbgst=0, loc=1, bgwb=0, nomf=0, nokv=0, nost=0, probe=-1, pwg=8, pw=4)
for a in sys.argv[2:]:
    k, v = a.split('=')
    OPT[k] = int(v) if (v.lstrip('-').isdigit() and k not in ('kvs', 'sp', 'bs')) else v

WS_O_BR = 36 * 256 * 1024
WS_PART = 0x1400000
WS_FLAG = 0x3000000
WS_STAMP = 0x4000000

def lanes(P, dst, expr_list):
    for e in expr_list: P(e)

def mf32(d, a, b, c=None):
    return f'v_mfma_f32_32x32x16_bf16 {vr(d, 16)}, {vr(a, 4)}, {vr(b, 4)}, {vr(d if c is None else c, 16)}'
def mf16(d, a, b, c=None):
    return f'v_mfma_f32_16x16x32_bf16 {vr(d, 4)}, {vr(a, 4)}, {vr(b, 4)}, {vr(d if c is None else c, 4)}'
def mf16h(d, a, b):
    return f'v_mfma_f32_16x16x16_bf16 {vr(d, 4)}, {vr(a, 2)}, {vr(b, 2)}, {vr(d, 4)}'


def phase2(P, stamp, env, part):
    sW, sWP, sBR, sE, sKS, TID, sB, sJ = env['sW'], env['sWP'], env['sBR'], env['sE'], env['sKP'], env['TID'], env['sB'], env['sJ']
    NB = 4; WST, OST, OOF = 20480, 18432, 81920
    sJJ, sTID, sCNT, sIB, sDL, sTMP, sSPIN = 56, 58, 30, 36, 37, 48, 44
    sSW, sSO, sMW, sMO, sPW, sPO, sIBW, sNB, sM9, sD2, sS9 = 59, 60, 61, 62, 63, 35, 31, 33, 43, 47, 57
    if OPT['stamps'] != 1: stamp = lambda *a: None
    if OPT['ti']:
        st0 = stamp; stamp = lambda k, *a: st0(k, *a) if k == 8 else None
    sNEED = 38
    VW = [120, 121, 122, 123, 124]; VO, VF, VP = 141, 142, 143
    A0, A1, A90, A91, AB, AB9 = 125, 126, 127, 128, 129, 130
    done = 'K1_STAMPS' if OPT['stamps'] else 'K1_END'
    def poll(lbl, off):
        return f"""
    s_mov_b32 s{sSPIN}, {OPT['spin']}
    {lbl}:
    s_mov_b64 exec, 15
    buffer_load_dword v{VP}, v{VF}, s[52:55], s{off} offen sc1
    s_mov_b64 exec, -1
    s_sub_u32 s{sSPIN}, s{sSPIN}, 1
    s_cbranch_scc1 {lbl}X
    s_waitcnt vmcnt(0)
    v_cmp_eq_u32 vcc, s{sE}, v{VP}
    s_and_b64 s[6:7], vcc, s[{sNEED}:{sNEED + 1}]
    s_cmp_eq_u64 s[6:7], s[{sNEED}:{sNEED + 1}]
    s_cbranch_scc0 {lbl}
    {lbl}X:
    """
    def wb(lbl, first):
        if not OPT['loc']: return ''
        o = ''
        if first: o = f"""
    s_getreg_b32 s3, hwreg(HW_REG_XCC_ID, 0, 4)
    s_lshl_b32 s7, s{sE}, 4
    s_add_u32 s3, s3, s7
    s_waitcnt vmcnt(10)
    v_cmp_eq_u32 vcc, s3, v{env['Q'] + 3}
    s_and_b32 s{sNB}, vcc_lo, 15
    """
        return o + f"""
    s_cmp_eq_u32 s{sNB}, {15 if OPT['loc'] == 1 else 0}
    s_cbranch_scc1 {lbl}
    buffer_wbl2 sc1
    s_waitcnt vmcnt(0)
    {lbl}:
    """
    def issW():
        o = f's_mul_i32 s7, s{sPW}, {64 * 1152}\ns_add_u32 s7, s7, s{sSW}\ns_add_u32 m0, s{sIBW}, s{sMW}\ns_add_u32 s{sPW}, s{sPW}, 1\n'
        for n in range(5):
            if n == 4: o += 's_add_u32 m0, m0, 4096\ns_nop 0\n'
            o += f'buffer_load_dwordx4 v{VW[n]}, s[8:11], s7 offen offset:{(n & 3) * 1024} {OPT["nt_wo"]} lds\n'
        return o + f's_and_b32 s{sPW}, s{sPW}, 15\ns_add_u32 s{sIBW}, s{sIBW}, {WST}\ns_cmp_eq_u32 s{sIBW}, {NB * WST}\ns_cselect_b32 s{sIBW}, 0, s{sIBW}\n'
    def issO():
        o = f's_add_u32 m0, s{sIB}, s{sMO}\ns_lshl_b32 s7, s{sPO}, 12\ns_add_u32 s7, s7, s{sSO}\n'
        for e in range(4): o += f'buffer_load_dwordx4 v{VO}, s[20:23], s7 offen offset:{e * 1024} {OPT["ld2"]} lds\n'
        o += f's_add_u32 m0, s{sIB}, s{sM9}\ns_lshl_b32 s7, s{sPO}, 11\ns_add_u32 s7, s7, s{sS9}\ns_mov_b32 exec_hi, 0\n'
        o += f'buffer_load_dwordx4 v{VO}, s[20:23], s7 offen {OPT["ld2"]} lds\ns_mov_b32 exec_hi, -1\n'
        return o + f's_add_u32 s{sPO}, s{sPO}, 1\ns_and_b32 s{sPO}, s{sPO}, 15\ns_add_u32 s{sIB}, s{sIB}, {OST}\ns_cmp_eq_u32 s{sIB}, {NB * OST}\ns_cselect_b32 s{sIB}, 0, s{sIB}\n'
    if part == 0:
        o = f"""
        s_and_b32 s{sJJ}, s{sJ}, 3
        s_lshl_b32 s{sTID}, s{sBR}, 3
        s_add_u32 s{sTID}, s{sTID}, s{sB}
        s_lshl_b32 s{sTID}, s{sTID}, 2
        s_add_u32 s{sTID}, s{sTID}, s{sJJ}
        s_lshl_b32 s{sPW}, s{sJJ}, 2
        s_add_u32 s{sPO}, s{sPW}, 4
        s_and_b32 s{sPO}, s{sPO}, 15
        s_and_b32 s3, s2, 7
        s_lshl_b32 s3, s3, 3
        s_add_u32 s3, s3, s{sB}
        s_lshl_b32 s{sTMP}, s3, 7
        v_lshlrev_b32 v{VF}, 2, v{TID}
        v_lshlrev_b32 v{VO}, 4, v{TID}
        v_mov_b32 v{VP}, s{sE}
        v_mov_b32 v140, v{TID}
        s_mul_i32 s{sSW}, s{sJJ}, 288
        s_and_b32 s{sSW}, s{sSW}, 0xffc0
        s_mul_i32 s3, s{sWP}, {16 * 1152}
        s_add_u32 s{sSW}, s{sSW}, s3
        s_mul_i32 s{sMW}, s{sWP}, 5120
        s_lshl_b32 s{sMO}, s{sWP}, 12
        s_add_u32 s{sMO}, s{sMO}, {OOF}
        s_lshl_b32 s{sM9}, s{sWP}, 9
        s_lshl_b32 s{sS9}, s{sKS}, 15
        s_add_u32 s{sS9}, s{sS9}, s{sM9}
        s_add_u32 s{sS9}, s{sS9}, {1 << 20}
        s_add_u32 s{sM9}, s{sM9}, {OOF + 16384}
        s_lshl_b32 s{sSO}, s{sKS}, 16
        s_lshl_b32 s3, s{sWP}, 18
        s_add_u32 s{sSO}, s{sSO}, s3
        s_lshl_b32 s3, s{sB}, 2
        s_lshl_b32 s{sNB}, 1, s3
        s_mov_b32 s{sIB}, 0
        s_mov_b32 s{sIBW}, 0
        s_mov_b32 s3, 52429
        """
        for n in range(5):
            o += f"""
        v_add_u32 v131, {64 * n}, v{TID}
        v_mul_lo_u32 v132, s3, v131
        v_lshrrev_b32 v132, 20, v132
        v_mul_u32_u24 v133, 20, v132
        v_sub_u32 v133, v131, v133
        v_bfe_u32 v134, v132, 3, 1
        v_lshlrev_b32 v134, 1, v134
        v_xor_b32 v133, v133, v134
        v_mul_u32_u24 v132, 1152, v132
        v_lshl_add_u32 v132, v133, 4, v132
        v_add_u32 v{VW[n]}, {3072 - (n & 3) * 1024}, v132
        """
        o += f"""
        v_lshrrev_b32 v131, 4, v{TID}
        v_bfe_u32 v132, v{TID}, 2, 2
        v_lshl_add_u32 v132, v131, 3, v132
        v_mul_u32_u24 v132, 320, v132
        v_bfe_u32 v133, v{TID}, 1, 1
        v_lshl_add_u32 v132, v133, 4, v132
        v_and_b32 v133, 1, v{TID}
        v_lshl_add_u32 v132, v133, 3, v132
        v_and_b32 v133, 1, v131
        v_lshl_add_u32 v134, v133, 5, v132
        v_xor_b32 v135, 1, v133
        v_lshl_add_u32 v135, v135, 5, v132
        v_add_u32 v136, 64, v134
        s_bitcmp0_b32 s{sJJ}, 0
        s_cselect_b64 vcc, -1, 0
        s_lshl_b32 s3, s{sWP}, 6
        v_cndmask_b32 v{A0}, v135, v134, vcc
        v_cndmask_b32 v{A1}, v136, v135, vcc
        v_add_u32 v{A90}, s3, v{A0}
        v_add_u32 v{A91}, s3, v{A1}
        v_and_b32 v132, 15, v{TID}
        v_lshlrev_b32 v132, 4, v132
        v_lshrrev_b32 v131, 1, v131
        v_lshl_add_u32 v134, v133, 9, v132
        v_lshl_add_u32 v134, v131, 10, v134
        v_add_u32 v{AB}, s{sMO}, v134
        v_lshl_add_u32 v134, v133, 8, v132
        v_lshl_add_u32 v134, v131, 9, v134
        v_add_u32 v{AB9}, {OOF + 16384}, v134
        """
        return [l.strip() for l in o.split('\n') if l.strip()]
    if part == 3:
        P(issW()); return
    P(f"""
    s_cmp_ge_u32 s{sW}, 4
    s_cbranch_scc1 P2_G1
    s_setprio {OPT['pl2']}
    s_waitcnt vmcnt(0)
    s_barrier
    """)
    stamp(5)
    def fl(l): return (f's_mov_b64 exec, 0xff\ns_cmp_eq_u32 s{sD2}, {15 if OPT["loc"] == 1 else 0}\ns_cbranch_scc1 {l}L\nbuffer_load_dword v{VP}, v{VF}, s[52:55], s{sTMP} offen sc1\ns_branch {l}M\n'
                       f'{l}L:\nbuffer_load_dword v{VP}, v{VF}, s[52:55], s{sDL} offen nt\n{l}M:\ns_mov_b64 exec, -1\n')
    P(f"""
    s_getreg_b32 s3, hwreg(HW_REG_XCC_ID, 0, 4)
    s_lshl_b32 s7, s{sE}, 4
    s_add_u32 s3, s3, s7
    v_cmp_eq_u32 vcc, s3, v{env['Q'] + 3}
    s_and_b32 s{sD2}, vcc_lo, 15
    s_add_u32 s{sDL}, s{sTMP}, 16384
    """)
    P('v_mov_b32 v137, 163832\nv_mov_b32 v138, 0\nds_write_b32 v137, v138')
    P(issW() + issW() + issW())
    P(f's_cmp_lg_u32 s{sW}, 0\ns_cbranch_scc1 P2_F0\n{fl("P2_F1")}P2_F0:')
    P(f"""
    s_waitcnt vmcnt(10)
    s_barrier
    s_waitcnt vmcnt(5)
    s_barrier
    s_waitcnt vmcnt(0)
    s_mov_b32 s{sNB}, 0
    s_mov_b32 s{sCNT}, 2
    s_sub_u32 s{sPW}, s{sPW}, 2
    P2_LD:
    s_cmp_eq_u32 s{sCNT}, 8
    s_cselect_b32 s3, 8, 2
    s_cselect_b32 s{sNB}, 4, s{sNB}
    s_add_u32 s{sPW}, s{sPW}, s3
    s_and_b32 s{sPW}, s{sPW}, 15
    s_cmp_lg_u32 s{sW}, 0
    s_cbranch_scc1 P2_PO
    s_lshr_b32 s3, s{sPW}, 2
    s_add_u32 s3, s3, s{sNB}
    s_mov_b32 s{sSPIN}, {OPT['spin']}
    P2_PF:
    v_cmp_eq_u32 vcc, s{sE}, v{VP}
    s_bitcmp1_b32 vcc_lo, s3
    s_cbranch_scc1 P2_PG
    {fl('P2_F2')}
    s_sub_u32 s{sSPIN}, s{sSPIN}, 1
    s_waitcnt vmcnt(0)
    s_cbranch_scc0 P2_PF
    P2_PG:
    v_mov_b32 v138, s{sCNT}
    ds_write_b32 v137, v138
    s_cmp_lg_u32 s{sCNT}, 6
    s_cbranch_scc1 P2_PN
    {fl('P2_F3')}
    s_branch P2_PN
    P2_PO:
    ds_read_b32 v138, v137
    s_waitcnt lgkmcnt(0)
    v_readfirstlane_b32 s6, v138
    s_cmp_eq_u32 s6, s{sCNT}
    s_cbranch_scc0 P2_PO
    P2_PN:
    s_mov_b32 s{sPO}, s{sPW}
    """)
    if OPT['d3']:
        P(issO() + issW() + f's_cmp_eq_u32 s{sCNT}, 2\ns_cbranch_scc1 P2_D3\ns_waitcnt vmcnt(20)\ns_barrier\nP2_D3:\n' + issO() + issW())
        P(f's_add_u32 s{sCNT}, s{sCNT}, 2\ns_cmp_lt_u32 s{sCNT}, 14\ns_waitcnt vmcnt(20)\ns_barrier\ns_cbranch_scc1 P2_LD')
        P('s_waitcnt vmcnt(10)\ns_barrier\ns_waitcnt vmcnt(0)\ns_barrier\ns_barrier\ns_branch P2_RED')
    else:
        P(issO() + issW() + 's_waitcnt vmcnt(10)\ns_barrier\n' + issO() + issW())
        P(f's_add_u32 s{sCNT}, s{sCNT}, 2\ns_cmp_lt_u32 s{sCNT}, 14\ns_waitcnt vmcnt(10)\ns_barrier\ns_cbranch_scc1 P2_LD')
        P('s_waitcnt vmcnt(0)\ns_barrier\ns_barrier\ns_branch P2_RED')
    ACC = [[4 * (2 * t + j) for j in range(2)] for t in range(9)]; AC9 = [72, 76, 80]
    SET = [dict(A=[144 + 4 * t for t in range(9)], A9=[180, 184], B=[188, 192], B9=196),
           dict(A=[200 + 4 * t for t in range(9)], A9=[236, 240], B=[244, 248], B9=252)]
    P(f"""
    P2_G1:
    s_setprio {OPT['pg']}
    s_lshl_b32 s6, s{sTID}, 2
    s_add_u32 s6, s6, s{sKS}
    s_lshl_b32 s6, s6, 2
    s_add_u32 s6, s6, s{sWP}
    s_mul_i32 s6, s6, 11264
    s_add_u32 s6, s6, {WS_PART}
    s_add_u32 s16, s66, s6
    s_addc_u32 s17, s67, 0
    s_mov_b32 s18, 11264
    s_mov_b32 s19, 0x20000
    s_mov_b32 s{sIB}, 0
    s_mov_b32 s{sCNT}, 1
    s_mov_b32 s{sDL}, {WST}
    s_mov_b32 s{sD2}, {OST}
    s_lshl_b32 s6, s{sJJ}, 2
    s_add_u32 s{sTMP}, s6, s{sTMP}
    s_barrier
    s_cmp_eq_u32 s{sW}, 4
    s_cbranch_scc0 P2_FA
    s_add_u32 s{sSPIN}, s{sTMP}, 16384
    s_mov_b64 exec, 1
    buffer_store_dword v{VP}, v{VF}, s[52:55], s{sSPIN} offen
    s_mov_b64 exec, -1
    {wb('P2_WA', True).replace('vmcnt(10)', 'vmcnt(11)')}
    s_mov_b64 exec, 1
    buffer_store_dword v{VP}, v{VF}, s[52:55], s{sTMP} offen sc1
    s_mov_b64 exec, -1
    P2_FA:
    """)
    stamp(6)
    def rd(st, K):
        o = [f'ds_read_b128 {vr(st["B"][j], 4)}, v{AB} offset:{K * 2048 + j * 256}' for j in range(2)]
        for t in range(9):
            o += [f'ds_read_b64_tr_b16 {vr(st["A"][t] + 2 * j, 2)}, v{[A0, A1][t & 1]} offset:{K * 10240 + j * 1280 + 64 * (t >> 1)}' for j in range(2)]
            if t == 7: o.append(f'ds_read_b128 {vr(st["B9"], 4)}, v{AB9} offset:{K * 1024}')
        for t in range(2):
            o += [f'ds_read_b64_tr_b16 {vr(st["A9"][t] + 2 * j, 2)}, v{[A90, A91][t]} offset:{K * 10240 + j * 1280}' for j in range(2)]
        return o
    last = []
    def step(cur, rds, extra=(), first=False, tailbr=None):
        z = lambda d, a, b: f'v_mfma_f32_16x16x32_bf16 {vr(d, 4)}, {vr(a, 4)}, {vr(b, 4)}, 0' if first else mf16(d, a, b)
        m = []
        for t in range(9): m += [z(ACC[t][0], cur['A'][t], cur['B'][0]), z(ACC[t][1], cur['A'][t], cur['B'][1])]
        m += [z(AC9[2], cur['A'][8], cur['B9']), z(AC9[0], cur['A9'][0], cur['B9']), z(AC9[1], cur['A9'][1], cur['B9'])]
        for i in (0, 6, 12): m[i] += f' ; need {vr(cur["A"][i // 2 + 2], 4)}'
        m[18] += f' ; need {vr(cur["A9"][1], 4)}'
        rds = list(rds); extra = list(extra)
        for i, x in enumerate(m):
            if tailbr and i == len(m) - 1:
                assert not extra and not rds
                P(f's_cbranch_scc1 {tailbr}'); last.append(x)
            P(x)
            n = 2 if i % 3 != 2 else 1
            if rds: P.extend(rds[:n]); rds = rds[n:]
            elif extra: P.extend(extra[:2]); extra = extra[2:]
        assert not rds
        P.extend(extra)
    upd = [f'v_add_u32 v{r}, s{sDL}, v{r}' for r in (A0, A1, A90, A91)] + [f'v_add_u32 v{r}, s{sD2}, v{r}' for r in (AB, AB9)]
    ring = [f's_add_u32 s{sIB}, s{sIB}, 1', f's_and_b32 s{sIB}, s{sIB}, 3', f's_cmp_eq_u32 s{sIB}, {NB - 1}',
            f's_cselect_b32 s{sDL}, {-(NB - 1) * WST & 0xffffffff}, {WST}', f's_cselect_b32 s{sD2}, {-(NB - 1) * OST & 0xffffffff}, {OST}']
    P.extend(rd(SET[0], 0))
    step(SET[0], rd(SET[1], 1), upd, first=True)
    P('s_barrier\ns_branch P2_M\nP2_L:')
    if OPT['tl'] == 1: stamp(2, 3); stamp(7, 8); stamp(3, 12)
    step(SET[0], rd(SET[1], 1), upd + [f's_add_u32 s{sCNT}, s{sCNT}, 1', f's_cmp_eq_u32 s{sCNT}, {OPT["fb"]}'], tailbr='P2_SPEC')
    P('s_barrier\nP2_M:')
    step(SET[1], rd(SET[0], 0), ring + [f's_cmp_lt_u32 s{sCNT}, 16'])
    P('s_cbranch_scc1 P2_L\ns_branch P2_E\nP2_SPEC:\n' + last[0])
    P(f"""
    s_waitcnt vmcnt(0)
    s_barrier
    s_cmp_eq_u32 s{sW}, 4
    s_cbranch_scc0 P2_M
    s_mov_b64 exec, 1
    buffer_store_dword v{VP}, v{VF}, s[52:55], s{sSPIN} offen offset:16
    s_mov_b64 exec, -1
    {wb('P2_WB', False)}
    s_mov_b64 exec, 1
    buffer_store_dword v{VP}, v{VF}, s[52:55], s{sTMP} offen offset:16 sc1
    s_mov_b64 exec, -1
    s_branch P2_M
    P2_E:
    """)
    stamp(9)
    units = [(ACC[2 * u][j], ACC[2 * u + 1][j]) for j in range(2) for u in range(4)] + [(ACC[8][0], ACC[8][1]), (AC9[0], AC9[1]), (AC9[2], AC9[2])]
    dst = [84 + 4 * i if i < 9 else 144 + 4 * i for i in range(11)]
    def pack(i):
        x, y = units[i]; d = dst[i]
        P(f'v_cvt_pk_bf16_f32 v{d}, v{x}, v{x + 1}\nv_cvt_pk_bf16_f32 v{d + 1}, v{x + 2}, v{x + 3}')
        P(f'v_cvt_pk_bf16_f32 v{d + 2}, v{y}, v{y + 1}\nv_cvt_pk_bf16_f32 v{d + 3}, v{y + 2}, v{y + 3}')
        if i % 4 == 0: P(f's_mov_b32 s3, {i * 1024}')
        P(f'v_permlane16_swap_b32 v{d}, v{d + 2}\nv_permlane16_swap_b32 v{d + 1}, v{d + 3}')
    P(f's_cmp_eq_u32 s{sWP}, s{sKS}\ns_cbranch_scc1 P2_OWN')
    for i in range(11):
        pack(i); P(f'buffer_store_dwordx4 {vr(dst[i], 4)}, v{VO}, s[16:19], s3 offen offset:{(i % 4) * 1024} sc1')
    P('s_branch P2_RED\nP2_OWN:')
    for i in range(11):
        pack(i); P(f'ds_write_b128 v{VO}, {vr(dst[i], 4)} offset:{i * 1024}')
    P(f"""
    P2_RED:
    s_lshl_b32 s{sTMP}, s{sTID}, 7
    s_add_u32 s{sTMP}, s{sTMP}, 8192
    s_lshl_b32 s7, s{sKS}, 2
    s_add_u32 s7, s7, s{sTMP}
    s_lshl_b32 s6, s{sTID}, 4
    s_add_u32 s6, s6, s{sKS}
    s_mul_i32 s6, s6, 11264
    s_add_u32 s6, s6, {WS_PART}
    s_add_u32 s16, s66, s6
    s_addc_u32 s17, s67, 0
    s_mov_b32 s18, {3 * 45056 + 11264}
    s_mov_b32 s19, 0x20000
    s_mul_i32 s6, s{sB}, {144 * 2304}
    s_mul_i32 s3, s{sBR}, 1152
    s_add_u32 s6, s6, s3
    s_mul_i32 s3, s{sJJ}, 288
    s_add_u32 s6, s6, s3
    s_add_u32 s12, s68, s6
    s_addc_u32 s13, s69, 0
    s_sub_u32 s14, {1152 * 2304}, s6
    s_mov_b32 s15, 0x20000
    v_mov_b32 v{VP}, s{sE}
    s_mov_b64 s[{sNEED}:{sNEED + 1}], 15
    v_and_b32 v4, 15, v140
    v_mul_u32_u24 v4, 2304, v4
    v_lshrrev_b32 v5, 5, v140
    v_lshl_add_u32 v4, v5, 4, v4
    v_bfe_u32 v5, v140, 4, 1
    v_lshl_add_u32 v6, v5, 5, v4
    s_lshl_b32 s40, s{sKS}, 1
    s_lshr_b32 s3, s{sW}, 2
    s_add_u32 s40, s40, s3
    s_mul_i32 s40, s40, {16 * 2304}
    s_and_b32 s3, s{sW}, 3
    s_lshl_b32 s3, s3, 6
    s_add_u32 s40, s40, s3
    s_lshl_b32 s41, s{sW}, 10
    s_mul_i32 s42, s{sKS}, {32 * 2304}
    s_add_u32 s42, s42, 256
    s_lshl_b32 s3, s{sKS}, 6
    s_add_u32 s3, s3, {128 * 2304}
    s_cmp_eq_u32 s{sW}, 1
    s_cselect_b32 s42, s3, s42
    s_cselect_b32 s45, 32, 0
    s_cmp_eq_u32 s{sW}, 2
    s_cselect_b32 s42, {128 * 2304 + 256}, s42
    s_cmp_eq_u32 s{sW}, 0
    s_cselect_b32 s45, {16 * 2304}, s45
    v_mul_lo_u32 v7, s45, v5
    v_add_u32 v7, v7, v4
    s_cmp_lg_u32 s{sKS}, 0
    s_cselect_b32 s45, 2, 3
    s_waitcnt vmcnt(0)
    s_barrier
    s_cmp_eq_u32 s{sW}, 7
    s_cbranch_scc0 P2_NG
    s_mov_b64 exec, 1
    buffer_store_dword v{VP}, v{VF}, s[52:55], s7 offen sc1
    s_mov_b64 exec, -1
    P2_NG:
    """)
    stamp(10)
    P(f"""
    s_lshl_b32 s3, s{sW}, 10
    v_add_u32 v8, s3, v{VO}
    ds_read_b128 v[32:35], v8
    ds_read_b128 v[48:51], v8 offset:8192
    s_cmp_lg_u32 s{sW}, 0
    s_cbranch_scc1 P2_PW
    """ + poll('P2_PR', sTMP) + 'P2_PW:\ns_barrier')
    stamp(11)
    def loads(base, so):
        for k in range(1, 4):
            P(f's_add_u32 s3, s{sKS}, {k}\ns_and_b32 s3, s3, 3\ns_mul_i32 s3, s3, 45056\ns_add_u32 s3, s3, s{so}\nbuffer_load_dwordx4 {vr(base + 4 * k, 4)}, v{VO}, s[16:19], s3 offen sc1')
    def reduce(base, va, so, left):
        for k in range(4):
            if k: P(f's_waitcnt vmcnt({left + 3 - k})')
            for i in range(4):
                src = base + 4 * k + i; t = 16 if k == 0 else 24
                P(f'v_lshlrev_b32 v{t + 2 * i}, 16, v{src}\nv_and_b32 v{t + 1 + 2 * i}, s46, v{src}')
            if k:
                for i in range(8): P(f'v_add_f32 v{16 + i}, v{16 + i}, v{24 + i}')
        for i in range(4): P(f'v_cvt_pk_bf16_f32 v{base + i}, v{16 + 2 * i}, v{17 + 2 * i}')
        P(f'buffer_store_dwordx4 {vr(base, 4)}, v{va}, s[12:15], s{so} offen')
    P('s_mov_b32 s46, 0xffff0000')
    loads(32, 41)
    P(f's_cmp_lt_u32 s{sW}, s45\ns_cbranch_scc1 P2_R2')
    reduce(32, 6, 40, 0)
    P(f's_branch P2_RE\nP2_R2:\ns_add_u32 s41, s41, 8192')
    loads(48, 41)
    reduce(32, 6, 40, 3)
    reduce(48, 7, 42, 1)
    P('P2_RE:')
    if OPT['stamps']:
        P('s_waitcnt vmcnt(0)'); stamp(8)

def k1():
    P = Prog()
    O, S, CN, Q, PP, O9, Q9, S9, CN9, P9 = 0, 64, 96, 112, 144, 160, 192, 208, 212, 216
    L, L9, VOK, VOV, AK, AK9, AV9, TID = 218, 219, 220, 221, 222, 223, 224, 225
    VA = 226
    T0, T1, AL, AL9, X0, X1 = 230, 231, 232, 233, 234, 235
    FB = [236, 240, 244, 248, 252]
    ACC = [[0, 16, 32, 48], [64, 80, 144, 176]]; ACC9 = [[160, 164], [168, 172]]
    QW = [230, 231, 232, 233]; QX = [234, 235]; QX9, QW9, VOW, VOX, HOLD = 216, 217, 218, 219, 212
    QB, QB9 = [96, 100], 104
    QF = [112, 116, 120, 124, 128, 132, 136, 140, 236, 240]
    sW, sWP, sP, sB, sJ, sBR = 24, 25, 26, 27, 28, 29
    sCNT, sW0, sX, sMC, sIB, sDL = 30, 31, 33, 35, 36, 37
    sEX = 38
    sIK, sROT = 31, 49
    sIS, sSK, sSV, sDK, sDV, sT, sCL, sRARE, sTMP, sTM2, sMW, sKP, sVP, sE = 40, 41, 42, 43, 44, 45, 46, 47, 48, 49, 50, 51, 32, 34
    NSB = OPT['nsb']; STGS = 25600; STG0 = 163840 - NSB * STGS
    SB0 = (NSB - 18) % NSB
    QXCH, Q9B = 131072, 98304 + 16384
    nk, ntw, ntd = OPT['nt_kv'], OPT['nt_w'], OPT['nt_wd']
    def stamp(k, at=None):
        if OPT['stamps'] == 3: return
        if OPT['stamps']:
            if at is not None: P(f's_cmp_lg_u32 s{sCNT}, {at}\ns_cbranch_scc1 K1_ST{k}_{len(P.ins)}'); lbl = P.ins[-1].target
            P(('s_memtime' if OPT['stamps'] == 2 else 's_memrealtime') + ' s[%d:%d]' % (70 + 2 * k, 71 + 2 * k))
            if at is not None: P(f'{lbl}:')
            if k == 1 and OPT['stamps'] == 1: P('s_memtime s[96:97]')
            if k == 4 and OPT['stamps'] == 1 and OPT['ti'] != 2: P('s_memtime s[98:99]')
            if k == 2 and OPT['stamps'] == 1: P('s_memtime s[94:95]')
    P(f"""
    s_cmp_ge_u32 s2, 256
    s_cbranch_scc1 K1_END
    s_bfe_u32 s{sBR}, s2, 0x10002
    s_mul_i32 s6, s{sBR}, 40
    s_add_u32 s4, s0, s6
    s_addc_u32 s5, s1, 0
    s_load_dwordx8 s[56:63], s[4:5], 0
    s_load_dwordx4 s[64:67], s[0:1], 88
    s_load_dwordx2 s[68:69], s[0:1], 80
    s_load_dwordx2 s[100:101], s[4:5], 32
    """)
    if OPT['stamps']:
        for k in range(70, 100, 2): P(f's_mov_b64 s[{k}:{k + 1}], 0')
    stamp(0)
    P(f"""
    v_lshrrev_b32 v1, 6, v0
    v_and_b32 v{TID}, 63, v0
    v_readfirstlane_b32 s{sW}, v1
    v_lshrrev_b32 v2, 4, v{TID}
    v_and_b32 v3, 15, v{TID}
    s_and_b32 s3, s2, 3
    s_lshl_b32 s3, s3, 2
    s_bfe_u32 s7, s2, 0x20003
    s_add_u32 s{sJ}, s3, s7
    s_lshr_b32 s{sB}, s2, 5
    s_and_b32 s{sWP}, s{sW}, 3
    s_lshr_b32 s{sP}, s{sW}, 2
    v_lshlrev_b32 v4, 2, v2
    v_xor_b32 v4, v4, v3
    v_lshlrev_b32 v4, 4, v4
    v_lshl_add_u32 v{VOW}, v2, 13, v4
    {f's_and_b32 s3, s{sW}, 1' if OPT['q16'] else ''}
    {'s_lshl_b32 s3, s3, 5' if OPT['q16'] else ''}
    {f'v_xor_b32 v{VOW}, s3, v{VOW}' if OPT['q16'] else ''}
    v_lshrrev_b32 v8, 2, v{TID}
    v_and_b32 v9, 3, v{TID}
    v_xor_b32 v9, v9, v2
    v_mul_u32_u24 v8, 1152, v8
    v_lshl_add_u32 v{VOX}, v9, 4, v8
    s_lshl_b32 s3, s{sWP}, 2
    v_or_b32 v5, s3, v2
    v_xor_b32 v5, v5, v3
    v_lshlrev_b32 v5, 4, v5
    s_lshl_b32 s{sMW}, s{sWP}, 12
    v_lshl_add_u32 v5, v2, 8, v5
    v_add_u32 v{VOK}, s{sMW}, v5
    v_lshl_add_u32 v5, v2, 8, v4
    v_add_u32 v{VOV}, s{sMW}, v5
    s_lshl_b32 s{sW0}, s{sWP}, 16
    s_mul_i32 s{sX}, s{sWP}, 18432
    s_mul_i32 s{sMC}, s{sWP}, 3072
    s_lshl_b32 s3, s{sWP}, 4
    s_lshl_b64 s[{sEX}:{sEX + 1}], 0xffff, s3
    s_mul_i32 s6, s{sB}, 165888
    s_lshl_b32 s7, s{sJ}, 9
    s_mov_b32 s11, 0x20000
    s_mov_b32 s22, {165888 + 2048}
    s_mov_b32 s23, 0x20000
    s_sub_u32 s10, {576 * 8192}, s7
    s_mov_b32 s{sIB}, {STG0}
    s_lshl_b32 s{sTMP}, s{sB}, 5
    s_lshl_b32 s{sTM2}, s{sJ}, 1
    s_add_u32 s{sTMP}, s{sTMP}, s{sTM2}
    s_lshl_b32 s{sTMP}, s{sTMP}, 17
    s_mov_b32 s14, 262144
    s_mov_b32 s15, 0x20000
    s_mov_b32 s18, 262144
    s_mov_b32 s19, 0x20000
    s_mov_b32 s{sCNT}, 0
    s_cmp_ge_u32 s{sW}, 4
    s_waitcnt lgkmcnt(0)
    s_cbranch_scc1 K1_G1
    s_add_u32 s8, s62, s7
    s_addc_u32 s9, s63, 0
    s_add_u32 s20, s56, s6
    s_addc_u32 s21, s57, 0
    s_sub_u32 s20, s20, 2048
    s_subb_u32 s21, s21, 0
    """)
    kvsrd = f"""
    s_add_u32 s12, s58, s{sTMP}
    s_addc_u32 s13, s59, 0
    s_add_u32 s16, s60, s{sTMP}
    s_addc_u32 s17, s61, 0
    s_lshr_b32 s{sROT}, s2, 3
    s_mul_i32 s3, s2, {OPT['rotx']}
    s_mul_i32 s{sROT}, s{sROT}, {OPT['rot']}
    s_add_u32 s{sROT}, s{sROT}, s3
    s_lshl_b32 s{sROT}, s{sROT}, 14
    s_add_u32 s52, s66, {WS_FLAG}
    s_addc_u32 s53, s67, 0
    s_mov_b32 s54, 32768
    s_mov_b32 s55, 0x20000
    """
    lanec = f"""
    v_bfe_u32 v10, v{TID}, 2, 2
    v_and_b32 v11, 3, v{TID}
    v_lshrrev_b32 v12, 5, v{TID}
    v_and_b32 v13, 1, v2
    v_and_b32 v20, 1, v11
    v_lshrrev_b32 v15, 1, v11
    v_lshlrev_b32 v16, 2, v10
    v_lshl_add_u32 v17, v13, 1, v20
    v_xor_b32 v17, v17, v16
    v_lshlrev_b32 v17, 4, v17
    v_lshl_add_u32 v17, v15, 3, v17
    v_lshl_add_u32 v17, v10, 8, v17
    s_lshl_b32 s3, s{sP}, 14
    s_add_u32 s{sMW}, s{sMW}, s3
    s_add_u32 s6, s3, 65536
    v_lshl_add_u32 v18, v12, 10, v17
    v_add_u32 v{VA}, s6, v18
    v_xor_b32 v{VA + 1}, 64, v{VA}
    v_xor_b32 v{VA + 2}, 0x80, v{VA}
    v_xor_b32 v{VA + 3}, 0xc0, v{VA}
    v_bfe_u32 v23, v{TID}, 3, 2
    v_bfe_u32 v24, v{TID}, 2, 1
    v_lshl_add_u32 v25, v23, 2, v11
    v_xor_b32 v25, v25, v12
    v_lshlrev_b32 v25, 4, v25
    v_lshl_add_u32 v25, v11, 8, v25
    v_lshl_add_u32 v25, v24, 10, v25
    v_lshl_add_u32 v25, v23, 12, v25
    {f's_lshl_b32 s7, s{sWP}, 6' if OPT['q16'] else ''}
    {'v_xor_b32 v25, s7, v25' if OPT['q16'] else ''}
    v_add_u32 v{AK}, s3, v25
    s_lshl_b32 s7, s{sWP}, 10
    s_add_u32 s6, s3, s7
    v_xor_b32 v25, v2, v3
    v_lshlrev_b32 v25, 4, v25
    v_lshl_add_u32 v25, v11, 8, v25
    v_lshl_add_u32 v25, v10, 12, v25
    v_add_u32 v{AK9}, s6, v25
    v_xor_b32 v25, v15, v16
    v_lshlrev_b32 v25, 4, v25
    v_lshl_add_u32 v25, v20, 3, v25
    v_lshl_add_u32 v25, v10, 8, v25
    v_lshl_add_u32 v25, v2, 12, v25
    s_add_u32 s6, s6, 65536
    s_lshl_b32 s7, s{sWP}, 6
    v_xor_b32 v25, s7, v25
    v_add_u32 v{AV9}, s6, v25
    v_mul_u32_u24 v26, 272, v3
    v_lshl_add_u32 v27, v2, 4, v26
    s_mul_i32 s6, s{sP}, 4352
    s_add_u32 s6, s6, {Q9B}
    v_add_u32 v{S9}, s6, v27
    v_lshlrev_b32 v27, 4, v{TID}
    s_lshl_b32 s6, s{sWP}, 13
    s_add_u32 s6, s6, {QXCH}
    v_add_u32 v{S9 + 1}, s6, v27
    """
    loopinit = f"""
    s_mov_b32 s{sCNT}, 1
    s_mov_b32 s{sKP}, 32768
    s_mov_b32 s{sVP}, 65536
    s_mov_b32 s{sDK}, 32768
    s_mov_b32 s{sDV}, 0
    s_mov_b32 s{sIS}, 131072
    s_mov_b32 s{sIK}, 0
    s_mov_b32 s33, 0
    s_mul_i32 s3, s{sP}, {OPT['rotp'] * 16384}
    s_add_u32 s3, s3, s{sROT}
    s_add_u32 s{sSV}, s3, 16384
    s_and_b32 s{sSV}, s{sSV}, 0x1ffff
    s_add_u32 s{sSK}, s3, 49152
    s_and_b32 s{sSK}, s{sSK}, 0x1ffff
    s_mov_b32 s{sCL}, 0xff800000
    s_mov_b32 s{sRARE}, 0
    """
    obase = f"""
    s_lshl_b32 s6, s{sBR}, 3
    s_add_u32 s6, s6, s{sB}
    s_mul_i32 s6, s6, 1179648
    s_mul_i32 s7, s{sWP}, {262144 - 4096}
    s_add_u32 s6, s6, s7
    s_lshl_b32 s7, s{sJ}, 1
    s_add_u32 s7, s7, s{sP}
    s_lshl_b32 s7, s7, 13
    s_add_u32 s6, s6, s7
    s_add_u32 s56, s66, s6
    s_addc_u32 s57, s67, 0
    """
    narrow = f's_lshl_b32 s3, s{sP}, 17\ns_add_u32 s12, s12, s3\ns_addc_u32 s13, s13, 0\ns_add_u32 s16, s16, s3\ns_addc_u32 s17, s17, 0\ns_mov_b32 s14, 131072\ns_mov_b32 s18, 131072'
    getE = f'v_mov_b32 v{AL}, {Q9B + 8704}\nds_read_b32 v{AL}, v{AL}' if OPT['fused'] else ''
    getE2 = f'v_readfirstlane_b32 s{sE}, v{AL}' if OPT['fused'] else ''
    queue = []
    def vm(text, tag): P(text); queue.append(tag)
    BS = [int(c, 36) for c in str(OPT['bs'])]; BN = 0; BT = len(BS) // 4
    bpos = []
    def wait_for(tag):
        idx = max(i for i, t in enumerate(queue) if t == tag)
        n = len(queue) - 1 - idx
        cnt = [(1 if OPT['bh'] else 2) * sum(1 for c2, p_ in bpos if c2 == c and p_ > idx) for c in range(4)]
        vals = sorted(set(cnt))
        for v in vals[:-1]:
            lbl = f'K1_BW{len(P.ins)}'
            P(f's_and_b32 s3, s{sCLS}, {sum(1 << c for c in range(4) if cnt[c] > v)}\ns_cbranch_scc1 {lbl}\ns_waitcnt vmcnt({min(63, n + v)})\n{lbl}:')
        P(f's_waitcnt vmcnt({min(63, n + vals[-1])})')
    def stage(s):
        if OPT['nost'] and s >= 3: queue.append(('s', s)); return
        buf = STG0 + ((s + SB0) % NSB) * STGS
        for hd in range(2):
            P(f's_add_u32 m0, s{sMC}, {buf + hd * 12288}\ns_add_u32 s3, s{sW0}, {s * 262144 + hd * 256}')
            vm(f'buffer_load_dwordx4 v{VOW}, s[8:11], s3 offen {ntd} lds', ('s', s))
            P(f's_add_u32 s3, s3, {32768 - 1024}')
            vm(f'buffer_load_dwordx4 v{VOW}, s[8:11], s3 offen offset:1024 {ntd} lds', ('s', s))
            P(f's_add_u32 s3, s{sX}, {s * 64 + hd * 4 * 18432}')
            vm(f'buffer_load_dwordx4 v{VOX}, s[20:23], s3 offen offset:2048 {ntd} lds', ('s', s))
        P(f's_mov_b32 m0, {buf + 24576}\ns_mov_b32 s3, {s * 64 + 128 * 1152 + 2048}\ns_mov_b64 exec, s[{sEX}:{sEX + 1}]')
        vm(f'buffer_load_dwordx4 v{VOX}, s[20:23], s3 offen {ntd} lds', ('s', s))
        P('s_mov_b64 exec, -1')
    VTW, VTX, sTW, sTX, sCLS = 232, 233, 45, 46, 47
    def touch(s):
        if s >= 18 or not OPT['tlead']: return
        P(f's_add_u32 s3, s{sTW}, {s * 262144}\ns_add_u32 s6, s{sTX}, {s * 64}\ns_mov_b64 exec, 0x1ff')
        vm(f'buffer_load_dword v{X0}, v{VTW}, s[8:11], s3 offen {ntw}', ('t', s))
        vm(f'buffer_load_dword v{X1}, v{VTX}, s[20:23], s6 offen {ntw}', ('t', s))
        P('s_mov_b64 exec, -1')
    def ltouch():
        TR = OPT['trows']
        P(f"""
        v_lshrrev_b32 v{VTW}, 3, v{TID}
        v_and_b32 v{VTX}, 7, v{TID}
        v_lshlrev_b32 v{VTX}, 6, v{VTX}
        v_lshl_add_u32 v{VTW}, v{VTW}, 13, v{VTX}
        v_lshlrev_b32 v{VTX}, 6, v{TID}
        s_lshl_b32 s3, s{sB}, 2
        s_add_u32 s3, s3, s{sWP}
        s_mul_i32 s3, s3, {TR * 8192}
        s_add_u32 s3, s3, {(576 - 32 * TR) * 8192}
        s_bfe_u32 s6, s2, 0x20003
        s_lshl_b32 s6, s6, 2
        s_add_u32 s6, s6, s{sWP}
        s_mul_i32 s6, s6, {162 * 64}
        s_add_u32 s6, s6, 2048
        """)
        tw = [(i, min(8, TR - 8 * i) * 8) for i in range((TR + 7) // 8)]; tx = [(0, 64), (1, 64), (2, 34)]
        for i in range(3):
            for (lst, v, srd, so, step) in ((tw, VTW, 8, 3, 8 * 8192), (tx, VTX, 20, 6, 4096)):
                if i >= len(lst): continue
                n = lst[i][1]
                if n < 64: P(f's_mov_b64 exec, {hex((1 << n) - 1)}' if n <= 31 else f's_mov_b32 exec_hi, {(1 << (n - 32)) - 1}')
                vm(f'buffer_load_dword v{X0}, v{v}, s[{srd}:{srd + 3}], s{so} offen {ntw}', ('t', 0))
                if n < 64: P('s_mov_b64 exec, -1')
                P(f's_add_u32 s{so}, s{so}, {step}')
    def btouch(a, b):
        n = b - a; l0, l1 = a // 2, (b + 1) // 2; nl = l1 - l0
        mg = (65536 + nl - 1) // nl
        assert all((i * mg) >> 16 == i // nl for i in range(64)) and 4 * n <= 64 and 9 * nl <= 64
        P(f"""
        v_lshrrev_b32 v{VTW}, 2, v{TID}
        v_and_b32 v{VTX}, 3, v{TID}
        v_lshlrev_b32 v{VTX}, 7, v{VTX}
        v_lshl_add_u32 v{VTW}, v{VTW}, 13, v{VTX}
        v_mul_u32_u24 v{X1}, {mg}, v{TID}
        v_lshrrev_b32 v{X1}, 16, v{X1}
        v_mul_u32_u24 v{VTX}, {1152 - 128 * nl}, v{X1}
        v_lshl_add_u32 v{VTX}, v{TID}, 7, v{VTX}
        s_lshl_b32 s3, s{sB}, 2
        s_add_u32 s3, s3, s{sWP}
        s_mul_i32 s3, s3, {n * 8192}
        s_add_u32 s3, s3, {32 * a * 8192}
        s_and_b32 s6, s{sJ}, 3
        s_lshl_b32 s6, s6, 2
        s_add_u32 s6, s6, s{sWP}
        s_mul_i32 s6, s6, {9 * 1152}
        s_add_u32 s6, s6, {2048 + 128 * l0}
        """)
        for cnt, v, srd, so in ((4 * n, VTW, 8, 3), (9 * nl, VTX, 20, 6)):
            P(f's_mov_b64 exec, {hex((1 << cnt) - 1)}' if cnt <= 31 else f's_mov_b32 exec_lo, -1\ns_mov_b32 exec_hi, {hex((1 << (cnt - 32)) - 1)}')
            vm(f'buffer_load_dword v{X0}, v{v}, s[{srd}:{srd + 3}], s{so} offen {ntw}', ('t', 2))
        P('s_mov_b64 exec, -1')
    TB = [tuple(int(y) for y in x.split(':')) for x in str(OPT['tb']).split(',') if x]
    def otouch():
        P(f"""
        s_lshl_b32 s6, s{sBR}, 3
        s_add_u32 s6, s6, s{sB}
        s_mul_i32 s6, s6, 1179648
        s_add_u32 s56, s66, s6
        s_addc_u32 s57, s67, 0
        s_mov_b32 s58, 1179648
        s_mov_b32 s59, 0x20000
        v_lshlrev_b32 v{VTW}, 7, v{TID}
        s_lshl_b32 s3, s{sWP}, 18
        s_lshl_b32 s6, s{sJ}, 14
        s_add_u32 s3, s3, s6
        """)
        vm(f'buffer_load_dword v{X0}, v{VTW}, s[56:59], s3 offen', ('t', 1))
        P('s_add_u32 s3, s3, 8192')
        vm(f'buffer_load_dword v{X0}, v{VTW}, s[56:59], s3 offen', ('t', 1))
        P(f's_lshl_b32 s3, s{sJ}, 13\ns_lshl_b32 s6, s{sWP}, 11\ns_add_u32 s3, s3, s6\ns_add_u32 s3, s3, {1 << 20}\ns_mov_b64 exec, 0xffff')
        vm(f'buffer_load_dword v{X0}, v{VTW}, s[56:59], s3 offen', ('t', 1))
        P('s_mov_b64 exec, -1')
    PRE = {(0, 0): [64, 68, 72, 76], (0, 1): [80, 84, 88, 92], (1, 0): [112, 116, 120, 124], (1, 1): [128, 132, 136, 140],
           (2, 0): [192, 196, 200, 204], (2, 1): [236, 240, 244, 248], (3, 0): [96, 100, 104, 252], (3, 1): [144, 148, 152, 156]}
    SRC = {0: (VOK, 12, 0), 1: (VOK, 12, 16384), 2: (VOV, 16, 0), 3: (VOK, 12, 32768)}
    FREE = {(0, 0): 0 if NSB <= 5 else 13, (0, 1): 0 if NSB <= 5 else 13, (1, 0): 15, (1, 1): 15, (2, 0): 16, (2, 1): 16, (3, 0): 17, (3, 1): 19}
    inreg = set()
    def kvload(step, u, hd, n):
        if OPT['nokv'] & 1: return
        vo, srd, off = SRC[u]
        P(f's_add_u32 s3, s{sROT}, {off + hd * OPT["rotp"] * 16384}\ns_and_b32 s3, s3, 0x1ffff' + (f'\ns_add_u32 s3, s3, 131072' if hd else ''))
        if step >= FREE[u, hd]:
            P(f's_add_u32 m0, s{sMW}, {u * 32768 + hd * 16384}\ns_nop 0')
            vm(f'buffer_load_dwordx4 v{vo}, s[{srd}:{srd + 3}], s3 offen offset:{n * 1024} {nk} lds', ('k', u))
        else:
            vm(f'buffer_load_dwordx4 {vr(PRE[u, hd][n], 4)}, v{vo}, s[{srd}:{srd + 3}], s3 offen offset:{n * 1024} {nk}', ('r', u, hd)); inreg.add((u, hd, n))
    def kvdump(step):
        if OPT['nokv'] & 2: return
        for (u, hd), f in FREE.items():
            ns = [n for n in range(4) if (u, hd, n) in inreg]
            if f != step or not ns: continue
            if (u, hd) in btag: P(f's_waitcnt vmcnt({min(63, len(queue) - btag[u, hd])})')
            if ('r', u, hd) in queue: wait_for(('r', u, hd))
            base = u * 32768 + hd * 16384
            for n in ns: P(f'ds_write_b128 v{[T0, T1][base >> 16]}, {vr(PRE[u, hd][n], 4)} offset:{(base & 0xffff) + n * 1024}')
    kvq = [(u, hd, n) for u in range(4) for hd in range(2) for n in range(4)]
    npre, dist = OPT['npre'], OPT['dist']
    sched = [int(c, 36) for c in str(OPT['kvs'])] + [0] * 30
    assert sum(sched) + abs(OPT['kpre']) + (0 if BT else BN) == 32 and dist <= NSB - 1 and npre <= NSB
    btag = {}
    if BS: P(f's_and_b32 s3, s{sJ}, 3\ns_lshl_b32 s{sCLS}, 1, s3')
    nxt = 0
    for s in range(npre): stage(s); nxt += 1
    if OPT['tlead']:
        P(f"""
        v_lshlrev_b32 v{VTW}, 6, v{TID}
        v_mul_u32_u24 v{VTX}, 1152, v{TID}
        s_lshl_b32 s{sTW}, s{sB}, 2
        s_add_u32 s{sTW}, s{sTW}, s{sWP}
        s_lshl_b32 s{sTW}, s{sTW}, 13
        s_bfe_u32 s{sTX}, s2, 0x20003
        s_lshl_b32 s{sTX}, s{sTX}, 2
        s_add_u32 s{sTX}, s{sTX}, s{sWP}
        s_mul_i32 s{sTX}, s{sTX}, {9 * 1152}
        s_add_u32 s{sTX}, s{sTX}, 2048
        """)
        for s in range(npre, dist + OPT['tlead']): touch(s)
    if OPT['kpre']:
        P(kvsrd)
        for _ in range(max(0, OPT['kpre'])): kvload(0, *kvq.pop(0))
    if OPT['ts'] == -1: ltouch()
    for st_, a_, b_ in TB:
        if st_ == -1: btouch(a_, b_)
    for _ in range(max(0, -OPT['kpre'])): kvload(0, *kvq.pop(0))
    later = ['' if OPT['kpre'] else kvsrd] + [f'v_lshlrev_b32 v{T0}, 4, v{TID}\nv_add_u32 v{T0}, s{sMW}, v{T0}\nv_add_u32 v{T1}, 0x10000, v{T0}', lanec]
    zs = list(range(108, 112)) + list(range(O9, O9 + 32)) + list(range(CN9, CN9 + 4)) + list(range(63, -1, -1))
    later += ['\n'.join(f'v_mov_b32 v{r}, 0' for r in zs[i:i + 26]) for i in range(0, len(zs), 26)]
    P(later.pop(0))
    for s in range(19):
        if OPT['stamps'] == 2 and s == OPT['sq']: stamp(5)
        if OPT['stamps'] == 2 and s == OPT['sq'] + 1: stamp(6)
        if OPT['stamps'] == 3 and OPT['sq'] == 99 and 1 <= s <= 5: P(f's_memtime s[{70 + 6 * s - 4}:{71 + 6 * s - 4}]')
        if s < 18: wait_for(('s', s))
        if OPT['stamps'] == 3 and OPT['sq'] == 99 and 1 <= s <= 4: P(f's_memtime s[{70 + 6 * s - 2}:{71 + 6 * s - 2}]')
        if OPT['stamps'] == 2 and s == OPT['sq']: stamp(3)
        P('s_barrier')
        if OPT['stamps'] == 2 and s == OPT['sq']: stamp(2)
        if s == 0 and OPT['stamps'] == 1: stamp(1)
        S3 = [0, 1, 2, 3, 4, 5, 6, 8, 10, 12, 13, 14, 15, 16, 18]
        if OPT['stamps'] == 3 and OPT['sq'] == 99:
            if s <= 4: P(f's_memtime s[{70 + 6 * s}:{71 + 6 * s}]')
        elif OPT['stamps'] == 3 and s in S3: P(f's_memtime s[{70 + 2 * S3.index(s)}:{71 + 2 * S3.index(s)}]')
        if OPT['sp']:
            for _ in range(int((str(OPT['sp']) + '0' * 20)[s])):
                assert nxt <= s + NSB - 1
                stage(nxt); nxt += 1
            if OPT['ts'] == s: ltouch()
            for st_, a_, b_ in TB:
                if st_ == s: btouch(a_, b_)
            if OPT['ot'] == s: otouch()
            if OPT['cts'] == s:
                P(f"""
                s_getpc_b64 s[6:7]
                K1_PC2:
                s_add_u32 s6, s6, @PC2OFF@
                s_addc_u32 s7, s7, 0
                s_lshl_b32 s3, s{sWP}, 5
                v_add_u32 v{VTW}, s3, v{TID}
                v_lshlrev_b32 v{VTW}, 7, v{VTW}
                v_min_u32 v{VTW}, @LEN2@, v{VTW}
                v_mov_b32 v{VTX}, s7
                v_add_co_u32 v{VTW}, vcc, s6, v{VTW}
                v_addc_co_u32 v{VTX}, vcc, 0, v{VTX}, vcc
                s_mov_b32 exec_hi, 0
                """)
                vm(f'global_load_dword v{X0}, v[{VTW}:{VTX}], off', ('t', 3))
                P('s_mov_b32 exec_hi, -1')
        n = 0
        while not OPT['sp'] and nxt < 18 and nxt <= s + dist and n < 2: stage(nxt); nxt += 1; n += 1
        touch(s + dist + OPT['tlead'])
        for k in range(BT):
            cl_ = [c for c in range(4) if BS[4 * k + c] == s]
            if not cl_: continue
            lbl = f'K1_BU{s}_{k}'; srd, tile = [(12, 3), (16, 2), (12, 4), (16, 3)][k // 2 if OPT['bh'] else k]
            P(f's_and_b32 s3, s{sCLS}, {sum(1 << c for c in cl_)}\ns_cbranch_scc0 {lbl}')
            P(f'v_lshlrev_b32 v{VTW}, 7, v{TID}\nv_add_u32 v{VTW}, s{sMW}, v{VTW}\ns_mov_b32 exec_hi, 0')
            for hd in ([k % 2] if OPT['bh'] else range(2)):
                P(f's_add_u32 s3, s{sROT}, {(tile + hd * OPT["rotp"]) * 16384}\ns_and_b32 s3, s3, 0x1ffff' + ('\ns_add_u32 s3, s3, 131072' if hd else ''))
                P(f'buffer_load_dword v{X0}, v{VTW}, s[{srd}:{srd + 3}], s3 offen {OPT["btf"]}')
            P(f's_mov_b32 exec_hi, -1\n{lbl}:')
            bpos += [(c, len(queue)) for c in cl_]
        if OPT['ep'] and s in (OPT['ep'], OPT['ep'] + 4, 18):
            P(f's_cmp_eq_u32 s{sW}, 0\ns_cbranch_scc0 K1_EP{s}\ns_mov_b64 exec, 1')
            if s == OPT['ep']: P('v_mov_b32 v214, 0\nbuffer_load_dword v212, v214, s[52:55], 0 offen sc1')
            elif s < 18:
                P(f"""
                s_mov_b32 s56, s64
                s_mov_b32 s57, s65
                s_mov_b32 s58, 256
                s_mov_b32 s59, 0x20000
                s_waitcnt vmcnt({len(queue) - epq})
                v_add_u32 v212, 1, v212
                v_max_u32 v212, 1, v212
                v_mov_b32 v213, 0
                v_mov_b32 v215, v212
                buffer_atomic_cmpswap v[212:213], v214, s[56:59], 0 offen sc0
                """)
            else:
                P(f"""
                s_waitcnt vmcnt({min(63, len(queue) - epq)})
                v_cmp_eq_u32 vcc, 0, v212
                v_mov_b32 v214, {Q9B + 8704}
                s_nop 0
                v_cndmask_b32 v212, v212, v215, vcc
                ds_write_b32 v214, v212
                """ + f"""        s_getreg_b32 s3, hwreg(HW_REG_XCC_ID, 0, 4)
        v_lshl_add_u32 v213, v212, 4, s3
        s_and_b32 s3, s2, 7
        s_lshl_b32 s3, s3, 3
        s_add_u32 s3, s3, s{sB}
        s_lshl_b32 s3, s3, 5
        s_and_b32 s7, s{sJ}, 3
        s_add_u32 s3, s3, s7
        s_lshl_b32 s3, s3, 2
        v_mov_b32 v214, s3
        buffer_store_dword v213, v214, s[52:55], 0 offen offset:32 sc1
""")
            epq = len(queue)
            P(f's_mov_b64 exec, -1\nK1_EP{s}:')
        kvdump(s)
        for _ in range(sched[s]): kvload(s, *kvq.pop(0))
        if later: P(later.pop(0))
    assert nxt == 18 and not later
    for r in list(range(96, 108)) + [L, L9] + ([212, 213, 214, 215] if OPT['ep'] else []): P(f'v_mov_b32 v{r}, 0')
    P(loopinit)
    if OPT['stamps'] == 1: stamp(2)
    if (0, 1) in btag: P(f's_waitcnt vmcnt({min(63, len(queue) - btag[0, 1])})')
    if ('k', 0) in queue: wait_for(('k', 0))
    P('s_barrier')
    P(getE)
    for kk in range(8): P(f'ds_read_b128 {vr(Q + 4 * kk, 4)}, v{S9 + 1} offset:{kk * 1024}')
    for kk in range(4): P(f'ds_read_b128 {vr(Q9 + 4 * kk, 4)}, v{S9} offset:{kk * 64}')
    P('s_barrier')
    P(getE2)
    kvdump(19)
    for _ in range(sched[19]): kvload(19, *kvq.pop(0))
    assert not kvq
    P(narrow)
    after = lambda u: (len(queue) - 1 - max(i for i, t in enumerate(queue) if t == ('k', u))) if ('k', u) in queue else 60
    X1N = min(63, after(1) + 4) if OPT['nbar'] == 2 else min(63, after(1) + 4, after(2) + 4)
    P('s_branch K1_HEAD')
    P('K1_G1:')
    P(kvsrd)
    if not OPT['ep']:
        if OPT['fused']:
            P(f"""
                    v_mov_b32 v246, 0
            s_cmp_eq_u32 s{sW}, 4
            s_cbranch_scc0 K1_E0
            buffer_load_dword v244, v246, s[52:55], 0 offen sc1
            K1_E0:
            """)
    def touches():
        P(f"""
        s_lshl_b32 s7, s{sJ}, 9
        s_mul_i32 s6, s{sB}, 165888
        s_add_u32 s8, s62, s7
        s_addc_u32 s9, s63, 0
        s_add_u32 s20, s56, s6
        s_addc_u32 s21, s57, 0
        s_mov_b32 s22, 165888
        v_lshrrev_b32 v28, 3, v{TID}
        v_and_b32 v29, 7, v{TID}
        v_lshlrev_b32 v29, 6, v29
        v_lshl_add_u32 v28, v28, 13, v29
        v_lshlrev_b32 v29, 6, v{TID}
        s_lshl_b32 s3, s{sB}, 2
        s_add_u32 s3, s3, s{sWP}
        s_mul_i32 s3, s3, {TR * 8192}
        s_add_u32 s3, s3, {(576 - 32 * TR) * 8192}
        s_bfe_u32 s6, s2, 0x20003
        s_lshl_b32 s6, s6, 2
        s_add_u32 s6, s6, s{sWP}
        s_mul_i32 s6, s6, {162 * 64}
        """)
        tw = [(i, min(8, TR - 8 * i) * 8) for i in range((TR + 7) // 8)]; tx = [(0, 64), (1, 64), (2, 34)]
        k = 0
        for i in range(3):
            for (lst, v, srd, so, step) in ((tw, 28, 8, 3, 8 * 8192), (tx, 29, 20, 6, 4096)):
                if i >= len(lst): continue
                n = lst[i][1]
                if n < 64: P(f's_mov_b64 exec, {hex((1 << n) - 1)}' if n <= 31 else f's_mov_b32 exec_hi, {(1 << (n - 32)) - 1}')
                P(f'buffer_load_dword v{248 + k}, v{v}, s[{srd}:{srd + 3}], s{so} offen {ntw}'); k += 1
                if n < 64: P('s_mov_b64 exec, -1')
                P(f's_add_u32 s{so}, s{so}, {step}')
        return k
    def ptouch():
        pg = OPT['ptouch']
        P(f"""
        s_lshl_b32 s7, s{sJ}, 9
        s_mul_i32 s6, s{sB}, 165888
        s_add_u32 s8, s62, s7
        s_addc_u32 s9, s63, 0
        s_add_u32 s20, s56, s6
        s_addc_u32 s21, s57, 0
        s_mov_b32 s22, 165888
        v_lshlrev_b32 v28, 16, v{TID}
        s_lshl_b32 s3, s{sWP}, 20
        s_add_u32 s3, s3, {65536 * 4}
        s_mov_b64 exec, 0xffff
        buffer_load_dword v248, v28, s[8:11], s3 offen
        s_mov_b64 exec, 0xf
        s_mov_b32 s3, {65536 * 68}
        s_cmp_eq_u32 s{sWP}, 0
        s_cbranch_scc0 K1_PT1
        buffer_load_dword v249, v28, s[8:11], s3 offen
        buffer_load_dword v250, v28, s[20:23], 0 offen
        s_branch K1_PT2
        K1_PT1:
        buffer_load_dword v249, v28, s[12:15], 0 offen {nk}
        buffer_load_dword v250, v28, s[16:19], 0 offen {nk}
        K1_PT2:
        s_mov_b64 exec, -1
        """)
    TR = OPT['trows']
    NT = (TR + 7) // 8 + 3
    if OPT['ctouch']:
        P(f"""
        s_cmp_eq_u32 s{sW}, 5
        s_cbranch_scc0 K1_CT
        s_getpc_b64 s[6:7]
        K1_PC:
        s_sub_u32 s6, s6, @PCOFF@
        s_subb_u32 s7, s7, 0
        v_lshlrev_b32 v28, 7, v{TID}
        v_mov_b32 v31, s7
        """)
        for k in range(OPT['ctouch']):
            P(f"""
            v_min_u32 v29, @CODELEN@, v28
            v_add_co_u32 v30, vcc, s6, v29
            v_addc_co_u32 v31, vcc, 0, v31, vcc
            global_load_dword v{252 + k % 4}, v[30:31], off
            v_mov_b32 v31, s7
            v_add_u32 v28, 8192, v28
            """)
        P('K1_CT:')
    if OPT['pt2']:
        P(f"""
        s_mov_b32 s8, s66
        s_mov_b32 s9, s67
        s_mov_b32 s10, {WS_FLAG}
        s_lshl_b32 s6, s{sBR}, 3
        s_add_u32 s6, s6, s{sB}
        s_mul_i32 s7, s6, 1179648
        s_lshl_b32 s3, s{sWP}, 18
        s_add_u32 s7, s7, s3
        s_lshl_b32 s3, s{sJ}, 14
        s_add_u32 s7, s7, s3
        v_mov_b32 v28, 0
        s_mov_b64 exec, 1
        buffer_load_dword v248, v28, s[8:11], s7 offen nt
        s_lshl_b32 s6, s6, 2
        s_and_b32 s3, s{sJ}, 3
        s_add_u32 s6, s6, s3
        s_lshl_b32 s6, s6, 2
        s_and_b32 s7, s2, 3
        s_add_u32 s6, s6, s7
        s_lshl_b32 s6, s6, 2
        s_add_u32 s6, s6, s{sWP}
        s_mul_i32 s6, s6, 11264
        s_add_u32 s6, s6, {WS_PART}
        buffer_load_dword v249, v28, s[8:11], s6 offen nt
        s_mov_b32 s8, s68
        s_mov_b32 s9, s69
        s_mov_b32 s10, {1152 * 2304}
        s_mul_i32 s6, s{sB}, {144 * 2304}
        s_mul_i32 s3, s{sWP}, {36 * 2304}
        s_add_u32 s6, s6, s3
        buffer_load_dword v250, v28, s[8:11], s6 offen nt
        s_mov_b32 s8, s100
        s_mov_b32 s9, s101
        s_mov_b32 s10, {4096 * 1152}
        s_lshl_b32 s7, s7, 2
        s_add_u32 s7, s7, s{sWP}
        s_mul_i32 s7, s7, {256 * 1152}
        buffer_load_dword v251, v28, s[8:11], s7 offen
        s_mov_b64 exec, -1
        """)
        NT = 4
    if OPT['wtouch'] == 1: touches()
    if OPT['ptouch']: ptouch(); NT = 3 + 4 * OPT['pt2']
    P(lanec)
    if OPT['wtouch'] == 2: touches()
    if not OPT['q16']:
        P(f"""
        v_mul_u32_u24 v18, 3072, v12
        v_add_u32 v18, {STG0 + SB0 * STGS}, v18
        v_add_u32 v{QW[0]}, v17, v18
        v_xor_b32 v{QW[1]}, 64, v{QW[0]}
        v_xor_b32 v{QW[2]}, 0x80, v{QW[0]}
        v_xor_b32 v{QW[3]}, 0xc0, v{QW[0]}
        s_lshl_b32 s6, s{sWP}, 2
        v_add_u32 v18, s6, v15
        v_xor_b32 v18, v18, v16
        v_lshlrev_b32 v18, 4, v18
        v_lshl_add_u32 v18, v20, 3, v18
        v_lshl_add_u32 v18, v10, 8, v18
        v_mul_u32_u24 v19, 3072, v2
        v_add_u32 v19, {STG0 + SB0 * STGS}, v19
        v_add_u32 v{QW9}, v18, v19
        v_xor_b32 v22, v12, v10
        v_lshlrev_b32 v22, 4, v22
        v_lshl_add_u32 v22, v3, 6, v22
        v_mul_u32_u24 v19, 3072, v13
        s_mul_i32 s6, s{sWP}, 6144
        s_add_u32 s6, s6, {STG0 + SB0 * STGS + 2048}
        v_add3_u32 v{QX[0]}, v22, v19, s6
        v_xor_b32 v{QX[1]}, 32, v{QX[0]}
        v_xor_b32 v22, v2, v10
        v_lshlrev_b32 v22, 4, v22
        v_lshl_add_u32 v22, v3, 6, v22
        v_add_u32 v{QX9}, {STG0 + SB0 * STGS + 24576}, v22
        v_lshl_add_u32 v27, v2, 3, v26
        s_lshl_b32 s6, s{sWP}, 6
        s_add_u32 s6, s6, {Q9B}
        v_add_u32 v{S9 + 2}, s6, v27
        """)
    QA = [230, 231, 232, 233, 234, 235, 216, 217]; QXA, QX9A = 236, 237
    if OPT['q16']:
        P(f"""
        s_lshl_b32 s6, s{sWP}, 2
        v_add_u32 v18, s6, v15
        v_xor_b32 v18, v18, v16
        v_lshlrev_b32 v19, 1, v13
        v_xor_b32 v18, v18, v19
        v_lshlrev_b32 v18, 4, v18
        v_lshl_add_u32 v18, v20, 3, v18
        v_lshl_add_u32 v18, v10, 8, v18
        v_mul_u32_u24 v19, 3072, v2
        v_add_u32 v19, {STG0 + SB0 * STGS}, v19
        v_add_u32 v{QA[0]}, v18, v19
        """)
        for k in range(1, 8): P(f'v_xor_b32 v{QA[k]}, {k << 5}, v{QA[0]}')
        P(f"""
        v_xor_b32 v22, v2, v10
        v_lshlrev_b32 v22, 4, v22
        v_lshl_add_u32 v22, v3, 6, v22
        s_mul_i32 s6, s{sWP}, 6144
        s_add_u32 s6, s6, {STG0 + SB0 * STGS + 2048}
        v_add_u32 v{QXA}, s6, v22
        v_add_u32 v{QX9A}, {STG0 + SB0 * STGS + 24576}, v22
        v_lshl_add_u32 v27, v2, 3, v26
        s_lshl_b32 s6, s{sWP}, 6
        s_add_u32 s6, s6, {Q9B}
        v_add_u32 v{S9 + 2}, s6, v27
        """)
    z = list(range(CN9, CN9 + 4)) + list(range(108, 112)) + [L, L9]
    for hd in range(2):
        for a in ACC[hd]: z += list(range(a, a + 16))
        for a in ACC9[hd]: z += list(range(a, a + 4))
    for r in z: P(f'v_mov_b32 v{r}, 0')
    if not OPT['ep']:
        P(f"""
        s_cmp_eq_u32 s{sW}, 4
        s_cbranch_scc0 K1_E1
        s_mov_b32 s8, s64
        s_mov_b32 s9, s65
        s_mov_b32 s10, 256
        s_waitcnt vmcnt({NT if OPT['wtouch'] or OPT['ptouch'] or OPT['pt2'] else 0})
        v_add_u32 v244, 1, v244
        v_max_u32 v244, 1, v244
        v_mov_b32 v245, 0
        v_mov_b32 v247, v244
        s_mov_b64 exec, 1
        buffer_atomic_cmpswap v[244:245], v246, s[8:11], 0 offen sc0
        s_mov_b64 exec, -1
        K1_E1:
        """)
    if OPT['pq']: P(f's_setprio {OPT["pq"]}')
    P(f's_mov_b32 s{sIB}, {SB0}\ns_barrier')
    if OPT['stamps'] == 1: stamp(1)
    if not OPT['q16']:
        qit = []
        def qmain(kk, hd, dt):
            return (lambda F: [f'ds_read_b64_tr_b16 {vr(F + 2 * j, 2)}, v{QW[dt]} offset:{hd * 12288 + kk * 6144 + j * 1024}' for j in range(2)],
                    lambda F: mf32(ACC[hd][dt], F, QB[kk]))
        def q9(hd, t):
            return (lambda F: [f'ds_read_b64_tr_b16 {vr(F + 2 * j, 2)}, v{QW9} offset:{hd * 12288 + t * 32 + j * 1024}' for j in range(2)],
                    lambda F: mf16(ACC9[hd][t], F, QB9))
        qit = [qmain(0, hd, dt) for hd in range(2) for dt in range(4)] + [q9(hd, t) for hd in range(2) for t in range(2)] + [qmain(1, hd, dt) for hd in range(2) for dt in range(4)]
        nq = len(QF); NQ = len(qit); QD = OPT['qdelay']
        qrd = lambda i: qit[i % NQ][0](QF[i % nq])
        bheads = [f'ds_read_b128 {vr(QB[0], 4)}, v{QX[0]}', f'ds_read_b128 {vr(QB9, 4)}, v{QX9}']
        upd = [f'v_add_u32 v{r}, s{sDL}, v{r}' for r in QW + QX + [QX9, QW9]]
        P(bheads[0])
        for i in range(nq):
            P.extend(qrd(i))
            if i == 3: P(bheads[1])
        def qmf(i):
            m = qit[i][1](QF[i % nq])
            if i % 2 == 0 and i + 1 < NQ: m += f' ; need {vr(QF[(i + 1) % nq], 4)}'
            return m
        cut = NQ - nq + QD + 1
        P('s_branch K1_QM\nK1_QL:\ns_barrier')
        if OPT['stamps'] == 2: stamp(2, OPT['sq'])
        qpend = [bheads[0]] + [x for jj in range(QD + 1) for x in qrd(jj)]
        for i in range(cut, NQ):
            P(qmf(i))
            qpend += qrd(i + nq)
            if i == NQ - 2: qpend.append(bheads[1])
            n = len(qpend) if i == NQ - 1 else 4
            P.extend(qpend[:n]); qpend = qpend[n:]
        P('K1_QM:')
        if OPT['stamps'] == 1 and not OPT['fused']: stamp(5, 3); stamp(6, 6); stamp(9, 9); stamp(10, 12)
        if OPT['stamps'] == 2: stamp(5, OPT['sq'] - 1); stamp(6, OPT['sq'])
        for i in range(cut):
            P(qmf(i))
            if i + nq < NQ: P.extend(qrd(i + nq))
            if i == 0: P(f'ds_read_b128 {vr(QB[1], 4)}, v{QX[1]}')
            if OPT['qnop'] and i % 2 == 1: P(f's_nop {OPT["qnop"]}')
            if i == 2: P(f's_cmp_eq_u32 s{sIB}, {NSB - 1}\ns_cselect_b32 s{sDL}, {-(NSB - 1) * STGS & 0xffffffff}, {STGS}')
            if i == 4: P(f's_add_u32 s{sIB}, s{sIB}, 1\ns_cmp_eq_u32 s{sIB}, {NSB}\ns_cselect_b32 s{sIB}, 0, s{sIB}')
            if i == 10: P.extend(upd[:4])
            if i == 11:
                P.extend(upd[4:])
                if OPT['stamps'] == 2: stamp(3, OPT['sq'] - 1)
                P(f's_add_u32 s{sCNT}, s{sCNT}, 1\ns_cmp_lt_u32 s{sCNT}, 18')
        P('s_cbranch_scc1 K1_QL\nK1_QE:\ns_barrier')
        for i in range(cut, NQ): P(qmf(i))
    else:
        acc = lambda hd, sg, qh: ACC[hd][sg >> 1] + 8 * (sg & 1) + 4 * qh
        order = [(0, 0), (0, 1), (1, 0), (1, 1)] + [(hd, sg) for sg in range(2, 8) for hd in range(2)]
        QF16 = [112 + 4 * k for k in range(8)]; BS16 = [[96, 100], [244, 248]]
        nq = 8; NQ = 16; QD = OPT['qdelay']; cut = NQ - nq + QD + 1
        qrd = lambda i: [f'ds_read_b64_tr_b16 {vr(QF16[i % nq] + 2 * j, 2)}, v{QA[order[i % NQ][1]]} offset:{order[i % NQ][0] * 12288 + j * 1024}' for j in range(2)]
        brd = lambda st: [f'ds_read_b128 {vr(BS16[st][qh], 4)}, v{QXA} offset:{qh * 3072}' for qh in range(2)] + [f'ds_read_b128 {vr(QB9, 4)}, v{QX9A}']
        def qmf(i, st):
            hd, sg = order[i]; F = QF16[i % nq]
            m = [mf16(acc(hd, sg, 0), F, BS16[st][0]), mf16(acc(hd, sg, 1), F, BS16[st][1])]
            if sg < 2: m.append(mf16(ACC9[hd][sg], F, QB9))
            if i % 2 == 0: m[0] += f' ; need {vr(QF16[(i + 1) % nq], 4)}'
            return m
        upd = [f'v_add_u32 v{r}, s{sDL}, v{r}' for r in QA + [QXA, QX9A]]
        def tail(st, reads=True):
            pend = brd(1 - st) + [x for jj in range(QD + 1) for x in qrd(jj)] if reads else []
            for i in range(cut, NQ):
                for x in qmf(i, st):
                    P(x); P.extend(pend[:2]); pend = pend[2:]
                if reads: pend += qrd(i + nq)
            P.extend(pend)
        def head(st, last):
            u = list(upd); pend = []
            for i in range(cut):
                for x in qmf(i, st):
                    P(x); P.extend(pend[:1]); pend = pend[1:]
                if i + nq < NQ: pend += qrd(i + nq)
                if i == 4: P(f's_cmp_eq_u32 s{sIB}, {NSB - 1}\ns_cselect_b32 s{sDL}, {-(NSB - 1) * STGS & 0xffffffff}, {STGS}')
                if i == 6: P(f's_add_u32 s{sIB}, s{sIB}, 1\ns_cmp_eq_u32 s{sIB}, {NSB}\ns_cselect_b32 s{sIB}, 0, s{sIB}')
                if i > NQ - nq or i == cut - 1:
                    P.extend(pend); pend = []
                    k = len(u) if i == cut - 1 else 4
                    P.extend(u[:k]); u = u[k:]
                if i == cut - 2 and last: P(f's_add_u32 s{sCNT}, s{sCNT}, 2\ns_cmp_lt_u32 s{sCNT}, 18')
        P.extend(brd(0)[:2])
        for i in range(nq):
            P.extend(qrd(i))
            if i == 0: P(brd(0)[2])
        P('s_branch K1_QM\nK1_QL:\ns_barrier')
        tail(1)
        P('K1_QM:')
        head(0, False)
        P('s_barrier')
        tail(0)
        head(1, True)
        P('s_cbranch_scc1 K1_QL\nK1_QE:\ns_barrier')
        tail(1, False)
    if OPT['stamps'] == 1: stamp(2)
    P(f's_mov_b32 s6, {CSCALE}')
    for hd in range(2):
        for t in range(2):
            a = ACC9[hd][t]
            for i in range(4): P(f'v_mul_f32 v{a + i}, s6, v{a + i}')
            P(f'v_cvt_pk_bf16_f32 v{a}, v{a}, v{a + 1}\nv_cvt_pk_bf16_f32 v{a + 1}, v{a + 2}, v{a + 3}')
            P(f'ds_write_b64 v{S9 + 2}, {vr(a, 2)} offset:{hd * 4352 + t * 32}')
    swp = lambda d: f'v_permlane16_swap_b32 v{d}, v{d + 2}\nv_permlane16_swap_b32 v{d + 1}, v{d + 3}' if OPT['q16'] else ''
    for dt in [0, 1, 2, 3]:
        a = ACC[0][dt]
        for i in range(16): P(f'v_mul_f32 v{a + i}, s6, v{a + i}')
        for hf in range(2):
            for i in range(4): P(f'v_cvt_pk_bf16_f32 v{a + 8 * hf + i}, v{a + 8 * hf + 2 * i}, v{a + 8 * hf + 2 * i + 1}')
        for hf in range(2):
            P(swp(a + 8 * hf))
            P(f'ds_write_b128 v{S9 + 1}, {vr(a + 8 * hf, 4)} offset:{(2 * dt + hf) * 1024}')
    P('s_waitcnt vmcnt(0)')
    if not OPT['ep']:
        P(f"""
        s_cmp_eq_u32 s{sW}, 4
        s_cbranch_scc0 K1_E2
        s_waitcnt vmcnt(0)
        v_cmp_eq_u32 vcc, 0, v244
        v_mov_b32 v246, {Q9B + 8704}
        s_mov_b64 exec, 1
        v_cndmask_b32 v244, v244, v247, vcc
        ds_write_b32 v246, v244
        s_getreg_b32 s3, hwreg(HW_REG_XCC_ID, 0, 4)
        v_lshl_add_u32 v245, v244, 4, s3
        s_and_b32 s3, s2, 7
        s_lshl_b32 s3, s3, 3
        s_add_u32 s3, s3, s{sB}
        s_lshl_b32 s3, s3, 5
        s_and_b32 s7, s{sJ}, 3
        s_add_u32 s3, s3, s7
        s_lshl_b32 s3, s3, 2
        v_mov_b32 v246, s3
        buffer_store_dword v245, v246, s[52:55], 0 offen offset:32 sc1
        s_mov_b64 exec, -1
        K1_E2:
        """)
    P(loopinit); P(narrow)
    P('s_barrier')
    P(getE)
    for kk in range(4): P(f'ds_read_b128 {vr(Q9 + 4 * kk, 4)}, v{S9} offset:{kk * 64}')
    for i in range(16): P(f'v_mul_f32 v{ACC[1][0] + i}, s6, v{ACC[1][0] + i}')
    P('s_barrier')
    P(getE2)
    for dt in range(4):
        a = ACC[1][dt]
        if dt:
            for i in range(16): P(f'v_mul_f32 v{a + i}, s6, v{a + i}')
        for i in range(8): P(f'v_cvt_pk_bf16_f32 v{Q + dt * 8 + i}, v{a + 2 * i}, v{a + 2 * i + 1}')
        if dt: P(swp(Q + dt * 8 - 8) + '\n' + swp(Q + dt * 8 - 4))
        if dt == 3: P(swp(Q + 24) + '\n' + swp(Q + 28))
    for r in list(range(O, O + 64)) + list(range(CN, CN + 12)) + list(range(O9, O9 + 32)): P(f'v_mov_b32 v{r}, 0')
    if OPT['pq']: P('s_setprio 0')
    P('s_barrier\nK1_HEAD:' if OPT['nbar'] == 2 else 'K1_HEAD:')

    def dma_sites(vo, srd, so, mb):
        out = []
        for n in range(4):
            g = [f's_add_u32 m0, s{mb}, s{sMW}', 's_nop 0'] if n == 0 else []
            g.append(f'buffer_load_dwordx4 v{vo}, s[{srd}:{srd + 3}], s{so} offen offset:{n * 1024} {nk} lds')
            if n == 3: g += [f's_add_u32 s{so}, s{so}, 16384', f's_and_b32 s{so}, s{so}, 0x1ffff']
            out.append(g)
        return out
    dmaV = dma_sites(VOV, 16, sSV, sIS); dmaK = dma_sites(VOK, 12, sSK, sIK)
    pre = OPT['opre'] == 1
    book = f"""s_cmp_lt_u32 s{sCNT}, {8 if pre else 7}
    s_cselect_b32 s{sIS}, s{sKP}, 0x30000
    s_add_u32 s{sKP}, s{sKP}, 65536
    s_cmp_ge_u32 s{sKP}, 163840
    s_cselect_b32 s3, 163840, 0
    s_sub_u32 s{sKP}, s{sKP}, s3
    s_sub_u32 s{sDK}, 65536, s3
    s_cmp_lt_u32 s{sCNT}, 5
    s_cselect_b32 s{sIK}, s{sVP}, 0x30000
    s_add_u32 s{sVP}, s{sVP}, 65536
    s_cmp_ge_u32 s{sVP}, 163840
    s_cselect_b32 s3, 163840, 0
    s_sub_u32 s{sVP}, s{sVP}, s3
    s_sub_u32 s{sDV}, 65536, s3""".split('\n')
    if OPT['nbar'] == 1:
        book = f"""s_mov_b32 s{sIS}, s{sKP}
    s_nop 0
    s_add_u32 s{sKP}, s{sKP}, 65536
    s_cmp_ge_u32 s{sKP}, 163840
    s_cselect_b32 s3, 163840, 0
    s_sub_u32 s{sKP}, s{sKP}, s3
    s_sub_u32 s{sDK}, 65536, s3
    s_cmp_lt_u32 s{sCNT}, 6
    s_cselect_b32 s{sIK}, s33, 0x30000
    s_mov_b32 s33, s{sVP}
    s_add_u32 s{sVP}, s{sVP}, 65536
    s_cmp_ge_u32 s{sVP}, 163840
    s_cselect_b32 s3, 163840, 0
    s_sub_u32 s{sVP}, s{sVP}, s3
    s_sub_u32 s{sDV}, 65536, s3""".split('\n')
        book.remove('    s_nop 0'); book.insert(6, 's_nop 0')
    book2 = f"""s_cmp_eq_u32 s{sCNT}, 6
    s_cselect_b32 s{sIK}, s6, s{sIK}
    s_cselect_b32 s12, s56, s12
    s_cselect_b32 s13, s57, s13
    s_cselect_b32 s14, 20480, s14
    s_cselect_b32 s{sSK}, 0, s{sSK}
    s_cmp_eq_u32 s{sCNT}, 7
    s_cselect_b32 s16, s56, s16
    s_cselect_b32 s17, s57, s17
    s_cselect_b32 s18, 20480, s18
    s_cselect_b32 s{sSV}, 4096, s{sSV}""".split('\n') if pre else []
    if pre: book.insert(7, f's_mov_b32 s6, s{sVP}')
    vupd = [f'v_add_u32 v{VA + i}, s{sDV}, v{VA + i}' for i in range(4)] + [f'v_add_u32 v{AV9}, s{sDV}, v{AV9}']
    kupd = [f'v_add_u32 v{AK}, s{sDK}, v{AK}', f'v_add_u32 v{AK9}, s{sDK}, v{AK9}']
    def kmain(kk, mt):
        tmp = [T0, T1][kk & 1]
        pre = [f'v_xor_b32 v{tmp}, {kk << 5}, v{AK}'] if (mt == 0 and kk) else []
        ad = tmp if kk else AK
        return dict(rd=lambda F: pre + [f'ds_read_b128 {vr(F, 4)}, v{ad} offset:{mt * 2048}'],
                    mf=lambda F: [mf32(S + 16 * mt, F, Q + 4 * kk, CN if kk == 0 else None)], w=32)
    def k9(kk):
        pre = [f'v_xor_b32 v{X0}, {kk << 6}, v{AK9}'] if kk else []
        ad = X0 if kk else AK9
        return dict(rd=lambda F: pre + [f'ds_read_b128 {vr(F, 4)}, v{ad}'],
                    mf=lambda F: [mf16(S9, F, Q9 + 4 * kk, CN9 if kk == 0 else None)], w=16)
    def vmain(ks, dt):
        mt, u = ks >> 1, ks & 1
        return dict(rd=lambda F: [f'ds_read_b64_tr_b16 {vr(F + 2 * j, 2)}, v{VA + dt} offset:{u * 8192 + j * 4096 + mt * 2048}' for j in range(2)],
                    mf=lambda F: [mf32(O + 16 * dt, F, PP + 4 * ks)], w=32)
    def v9(pp):
        pre = [f'v_xor_b32 v{X1}, {pp << 6}, v{AV9}'] if pp else []
        ad = X1 if pp else AV9
        return dict(rd=lambda F: pre + [f'ds_read_b64_tr_b16 {vr(F + 2 * j, 2)}, v{ad} offset:{32 * j}' for j in range(2)],
                    mf=lambda F: [mf16h(O9 + 4 * (2 * pp + j), F + 2 * j, P9) for j in range(2)], w=32)
    itA = []
    for kk in range(8):
        itA += [kmain(kk, 0), kmain(kk, 1)]
        if 1 <= kk <= 4: itA.append(k9(kk - 1))
    itC = []
    for dt in range(4): itC += [vmain(0, dt), v9(dt)]
    for ks in range(1, 4): itC += [vmain(ks, dt) for dt in range(4)]
    lastP = {0: 6, 1: 11, 2: 15, 3: 19, 9: 7}
    nb = len(FB); items = itA + itC; N = len(items); nA = len(itA)
    assert N % nb == 0 and nA % nb == 0
    RD = lambda i: items[i % N]['rd'](FB[i % nb])
    DL = OPT['bdelay']
    def MF(i, pair=True):
        m = items[i]['mf'](FB[i % nb])
        if pair and OPT['pairw'] and i % 2 == 0 and (i + 1) % nA != 0: m[0] += f' ; need {vr(FB[(i + 1) % nb], 4)}'
        return m
    def sync(wait='vmcnt(12)'): return [f's_waitcnt {wait}', 's_barrier']
    def gsync(lbl, group0, wait):
        return [f's_cmp_lt_u32 s{sW}, 4', f's_cbranch_scc{0 if group0 else 1} {lbl}', f's_waitcnt {wait}', 's_barrier', f'{lbl}:']
    DS = OPT['dstep']
    mx = [f'v_max3_f32 v{T1}, v{S9}, v{S9 + 1}, v{S9 + 2}', f'v_max_f32 v{T1}, v{T1}, v{S9 + 3}', f'v_max3_f32 v{T0}, v{S}, v{S + 1}, v{S + 2}']
    mx += [f'v_max3_f32 v{T0}, v{T0}, v{S + 3 + 2 * i}, v{S + 4 + 2 * i}' for i in range(6)]
    mx += [f'v_max3_f32 v{X0}, v{S + 16}, v{S + 17}, v{S + 18}']
    mx += [f'v_max3_f32 v{X0}, v{X0}, v{S + 19 + 2 * i}, v{S + 20 + 2 * i}' for i in range(6)]
    mx += [f'v_max3_f32 v{X0}, v{X0}, v{S + 15}, v{S + 31}', f'v_max_f32 v{T0}, v{T0}, v{X0}', f'v_max_f32 v{X0}, v{T0}, v{T1}', f'v_cmp_lt_f32 vcc, s{sT}, v{X0}']
    fill = []
    for ks in range(4):
        b = S + 8 * ks
        for i in range(0, 8, 2):
            fill += [(0, f'v_exp_f32 v{b + i}, v{b + i}'), (0, f'v_exp_f32 v{b + i + 1}, v{b + i + 1}')]
            if i: fill += [(0, f'v_add_f32 v{L}, v{L}, v{b + i - 2}'), (0, f'v_add_f32 v{L}, v{L}, v{b + i - 1}')]
        if ks == 0: fill += [(0, f'v_exp_f32 v{S9 + i}, v{S9 + i}') for i in range(4)]
        fill += [(0, f'v_add_f32 v{L}, v{L}, v{b + 6}'), (0, f'v_add_f32 v{L}, v{L}, v{b + 7}')]
        if ks == 0: fill += [(0, f'v_add_f32 v{L9}, v{L9}, v{S9 + i}') for i in range(4)]
        fill += [(lastP[ks], f'v_cvt_pk_bf16_f32 v{PP + 4 * ks + i}, v{b + 2 * i}, v{b + 2 * i + 1}') for i in range(4)]
        if ks == 0: fill += [(lastP[9], f'v_cvt_pk_bf16_f32 v{P9 + i}, v{S9 + 2 * i}, v{S9 + 2 * i + 1}') for i in range(2)]
    wosrd = f"""
    s_and_b32 s6, s2, 3
    s_mul_i32 s6, s6, {1024 * 1152}
    s_add_u32 s8, s100, s6
    s_addc_u32 s9, s101, 0
    s_sub_u32 s8, s8, 3072
    s_subb_u32 s9, s9, 0
    s_sub_u32 s10, {4096 * 1152 + 3072}, s6
    s_mov_b32 s11, 0x20000
    """
    def wotouch(drop):
        d1, d2, sfx = ('', '', 'lds') if drop else (f'v{Q + 1}, ', f'v{Q + 2}, ', '')
        va = X0 if drop else Q
        return f"""
    s_lshr_b32 s6, s2, 3
    s_lshl_b32 s6, s6, 3
    s_add_u32 s6, s6, s{sW}
    s_mul_i32 s6, s6, {36 * 128}
    s_add_u32 s6, s6, 3072
    {f's_add_u32 m0, s{sIS}, s{sMW}' if drop else ''}
    v_lshlrev_b32 v{va}, 6, v{TID}
    buffer_load_dword {d1}v{va}, s[8:11], s6 offen {OPT['nt_wo']} {sfx}
    s_add_u32 s6, s6, 4096
    s_mov_b64 exec, 0xff
    buffer_load_dword {d2}v{va}, s[8:11], s6 offen {OPT['nt_wo']} {sfx}
    s_mov_b64 exec, -1
    """
    if OPT['wot'] >= 2: P(wosrd)
    if OPT['opre'] == 1: P(obase)
    if OPT['opre'] >= 2:
        P(f"""
        s_lshl_b32 s6, s{sBR}, 3
        s_add_u32 s6, s6, s{sB}
        s_mul_i32 s6, s6, 1179648
        s_add_u32 s56, s66, s6
        s_addc_u32 s57, s67, 0
        s_mov_b32 s58, 1179648
        s_mov_b32 s59, 0x20000
        """)
    opre2 = f"""
    s_cmp_lg_u32 s{sCNT}, {OPT['opre']}
    s_cbranch_scc1 K1_OP
    s_sub_u32 s6, s{sKP}, s{sDK}
    s_add_u32 m0, s6, s{sMW}
    s_lshl_b32 s6, s{sJ}, 1
    s_add_u32 s6, s6, s{sP}
    s_lshl_b32 s7, s6, 13
    s_lshl_b32 s3, s{sWP}, 18
    s_add_u32 s7, s7, s3
    v_lshlrev_b32 v{X0}, 7, v{TID}
    buffer_load_dword v{X0}, s[56:59], s7 offen lds
    s_lshl_b32 s6, s6, 12
    s_lshl_b32 s7, s{sWP}, 10
    s_add_u32 s6, s6, s7
    s_add_u32 s6, s6, {1 << 20}
    s_mov_b64 exec, 0xff
    buffer_load_dword v{X0}, s[56:59], s6 offen lds
    s_mov_b64 exec, -1
    K1_OP:
    """
    if OPT['wot'] == 2: P(wotouch(True))
    for i in range(nb): P.extend(RD(i))
    if OPT['stamps'] == 1: stamp(7)
    for i in range(nA):
        P.extend(MF(i))
        if i + nb < nA: P.extend(RD(i + nb))
        if i + nb - nA == DL: P.extend(sync('vmcnt(63)') if OPT['nbar'] == 2 else gsync('K1_Y0', False, 'vmcnt(63)'))
        if i in (1, 3, 5, 7): P.extend(dmaV[(i - 1) // 2])
    if OPT['nbar'] == 1: P(f's_mov_b32 s{sIS}, 0x30000\ns_sub_u32 s{sSV}, s{sSV}, 16384\ns_and_b32 s{sSV}, s{sSV}, 0x1ffff')
    if OPT['pa'] != OPT['pc']: P(f's_setprio {OPT["pc"]}')
    P.extend(kupd + mx[:-1]); P('s_branch K1_RARE1\nK1_CPB:')
    P(f's_mov_b32 s{sRARE}, 0')
    ktail = [q for q in range(4) if DL + q * DS < nb]
    for i, (_, t) in enumerate(fill):
        P(t)
        if i == len(fill) - 12:
            P.extend(sync(f'vmcnt({X1N})') if OPT['nbar'] == 2 else gsync('K1_X1', True, f'vmcnt({X1N})'))
            for jj in range(nb): P.extend(RD(jj))
            for q in ktail if OPT['nbar'] == 2 else []: P.extend(dmaK[q])
    P('K1_TOP:')
    if OPT['ti'] == 1: stamp(5, 1); stamp(6, 2); stamp(9, 3); stamp(10, 5); stamp(11, 7)
    if OPT['ti'] == 2:
        for at, k, kc in ((1, 5, 9), (2, 6, 12), (5, 10, 13), (7, 11, 14)):
            P(f's_cmp_lg_u32 s{sCNT}, {at}\ns_cbranch_scc1 K1_TI{at}\ns_memrealtime s[{70 + 2 * k}:{71 + 2 * k}]\ns_memtime s[{70 + 2 * kc}:{71 + 2 * kc}]\nK1_TI{at}:')
    if OPT['stamps'] == 1 and not OPT['fused']: stamp(11, 2); stamp(8, 5)
    if OPT['pa'] != OPT['pc']: P(f's_setprio {OPT["pa"]}')
    if OPT['stamps'] == 2: stamp(7, 3); stamp(11, 4)
    def sites(pos, dm):
        return [x for q in range(4) if q * DS == pos for x in dm[q]]
    for i in range(nA):
        P.extend(MF(i))
        j = i + nb - nA
        if j < 0: P.extend(RD(i + nb))
        elif j == DL:
            if OPT['stamps'] == 2: stamp(9, 3)
            P.extend(sync() if OPT['nbar'] == 2 else gsync('K1_Y', False, 'vmcnt(4)'))
            if OPT['stamps'] == 2: stamp(1, 3)
            for jj in range(DL + 1): P.extend(RD(nA + jj))
        elif j > DL: P.extend(RD(i + nb))
        P.extend(sites(i + nb - DL, dmaK) if OPT['nbar'] == 2 else sites(i, dmaV))
        if j == DL and OPT['wot'] >= 3: P(f's_cmp_lg_u32 s{sCNT}, {OPT["wot"]}\ns_cbranch_scc1 K1_WT' + wotouch(True) + 'K1_WT:')
        if j == DL and OPT['opre'] >= 2: P(opre2)
        if j >= DL and OPT['nbar'] == 2: P.extend(sites(j - DL, dmaV))
        if i == 2: P.extend(vupd)
        if OPT['anop'] and i % 2 == 1: P(f's_nop {OPT["anop"]}')
        if i == 9: P.extend(book[:7])
        if i == 11: P.extend(book[7:])
        if i == 13: P.extend(book2)
    if OPT['stamps'] == 2: stamp(8, 3)
    if OPT['pa'] != OPT['pc']: P(f's_setprio {OPT["pc"]}')
    cost = lambda t: 2 if 'exp' in t else (0 if 'BR' in t else 1)
    full = [(0, t) for t in kupd + mx] + [(0, 'BR')] + fill
    tot = sum(cost(t) for _, t in full)
    pend = list(full); acc = 0; cw = 0; wsum = sum(it['w'] for it in itC)
    for c in range(len(itC)):
        i = nA + c
        P.extend(MF(i)); cw += itC[c]['w']
        j = i + nb - N
        if j < 0: P.extend(RD(i + nb))
        elif j == DL:
            if OPT['stamps'] == 2: stamp(4, 3)
            P.extend(sync() if OPT['nbar'] == 2 else gsync('K1_X', True, 'vmcnt(4)'))
            if OPT['stamps'] == 2: stamp(12, 3)
            for jj in range(DL + 1): P.extend(RD(jj))
        elif j > DL: P.extend(RD(i + nb))
        P.extend(sites(c + nb - DL, dmaV) if OPT['nbar'] == 2 else sites(c, dmaK))
        if j >= DL and OPT['nbar'] == 2: P.extend(sites(j - DL, dmaK))
        goal = tot * min(1.0, cw / (wsum - 32))
        q = 0
        while q < len(pend) and acc + cost(pend[q][1]) <= goal + 1:
            if pend[q][0] > c: q += 1; continue
            acc += cost(pend[q][1]); t = pend.pop(q)[1]
            P('s_cbranch_vccnz K1_RARE1\nK1_R1B:' if t == 'BR' else t)
    for _, t in pend: P(t)
    if OPT['stamps'] == 2: stamp(10, 3)
    P(f"""
    s_add_u32 s{sCNT}, s{sCNT}, 1
    s_add_u32 s3, s{sCNT}, s{sRARE}
    s_cmp_lt_u32 s3, 8
    s_cbranch_scc1 K1_TOP
    s_cmp_lg_u32 s{sRARE}, 0
    s_cbranch_scc1 K1_RARE2
    K1_NEXT:
    s_cmp_lt_u32 s{sCNT}, 8
    s_cbranch_scc1 K1_TOP
    s_branch K1_PVO
    """)
    P(f"""
    K1_RARE1:
    v_mov_b32 v{X0}, v{T0}
    v_mov_b32 v{X1}, v{T1}
    v_permlane32_swap_b32 v{T0}, v{X0}
    v_permlane32_swap_b32 v{T1}, v{X1}
    v_max3_f32 v{T0}, v{T0}, v{X0}, s{sCL}
    v_max_f32 v{T1}, v{T1}, v{X1}
    v_mov_b32 v{X1}, v{T1}
    v_max_f32 v{AL}, 0, v{T0}
    v_permlane16_swap_b32 v{T1}, v{X1}
    v_max3_f32 v{T1}, v{T1}, v{X1}, s{sCL}
    v_max_f32 v{AL9}, 0, v{T1}
    v_exp_f32 v{AL}, -v{AL}
    v_exp_f32 v{AL9}, -v{AL9}
    """)
    for i in range(32): P(f'v_sub_f32 v{S + i}, v{S + i}, v{T0}')
    for i in range(16): P(f'v_sub_f32 v{CN + i}, v{CN + i}, v{T0}')
    for i in range(4): P(f'v_sub_f32 v{S9 + i}, v{S9 + i}, v{T1}')
    for i in range(4): P(f'v_sub_f32 v{CN9 + i}, v{CN9 + i}, v{T1}')
    P(f"""
    v_mul_f32 v{L}, v{L}, v{AL}
    v_mul_f32 v{L9}, v{L9}, v{AL9}
    s_mov_b32 s{sT}, {f2u(8.0)}
    s_cmp_lg_u32 s{sCL}, 0
    s_mov_b32 s{sCL}, 0
    s_mov_b32 s{sRARE}, 8
    s_cbranch_scc1 K1_CPB
    s_branch K1_R1B
    K1_RARE2:
    """)
    for i in range(64): P(f'v_mul_f32 v{O + i}, v{O + i}, v{AL}')
    for i in range(32): P(f'v_mul_f32 v{O9 + i}, v{O9 + i}, v{AL9}')
    P(f"""
    s_mov_b32 s{sRARE}, 0
    s_branch K1_NEXT
    K1_PVO:
    """)
    if OPT['stamps'] == 1: stamp(3)
    P.extend(vupd)
    osrd = f'''
    s_lshl_b32 s6, s{sBR}, 3
    s_add_u32 s6, s6, s{sB}
    s_mul_i32 s6, s6, 1179648
    s_add_u32 s20, s66, s6
    s_addc_u32 s21, s67, 0
    s_mov_b32 s22, 1179648
    s_mov_b32 s23, 0x20000
    s_lshl_b32 s6, s{sJ}, 1
    s_add_u32 s6, s6, s{sP}
    s_lshl_b32 s7, s6, 13
    s_lshl_b32 s{sSK}, s{sWP}, 18
    s_add_u32 s{sSK}, s{sSK}, s7
    s_add_u32 s{sSV}, s{sSK}, 4096
    s_lshl_b32 s{sIS}, s6, 12
    s_lshl_b32 s7, s{sWP}, 10
    s_add_u32 s{sIS}, s{sIS}, s7
    s_add_u32 s{sIS}, s{sIS}, {1 << 20}
'''
    if OPT['opv']:
        P(osrd + f'''
        v_lshlrev_b32 v{Q}, 7, v{TID}
        buffer_load_dword v{Q + 1}, v{Q}, s[20:23], s{sSK} offen
        s_mov_b64 exec, 0xff
        buffer_load_dword v{Q + 2}, v{Q}, s[20:23], s{sIS} offen
        s_mov_b64 exec, -1
        ''')
    P(f's_and_b32 s{sKP}, s2, 3')
    if OPT['wot'] == 1: P(wosrd + wotouch(False))
    elif OPT['wot'] == 0: P(wosrd)
    P.extend(sync(f'vmcnt({2 * (OPT["wot"] == 1) + 2 * OPT["opv"]})') if OPT['nbar'] == 2 else gsync('K1_Y8', False, f'vmcnt({2 * (OPT["wot"] == 1) + 2 * OPT["opv"]})'))
    if OPT['fused'] and OPT['loc']:
        P(f"""
        s_cmp_eq_u32 s{sWP}, 0
        s_cbranch_scc0 K1_XL
        s_and_b32 s3, s2, 7
        s_lshl_b32 s3, s3, 3
        s_add_u32 s3, s3, s{sB}
        s_lshl_b32 s3, s3, 7
        v_lshlrev_b32 v{Q + 3}, 2, v{TID}
        s_mov_b64 exec, 15
        s_add_u32 s7, s3, 16384
        buffer_load_dword v{Q + 2}, v{Q + 3}, s[52:55], s7 offen nt
        buffer_load_dword v{Q + 3}, v{Q + 3}, s[52:55], s3 offen offset:32 sc1
        s_mov_b64 exec, -1
        K1_XL:
        """)
    for i in range(nb): P.extend(RD(nA + i))
    groups = [MF(nA + c) + (RD(nA + c + nb) if c + nb < len(itC) else []) for c in range(len(itC))]
    epi = ([] if OPT['opv'] else osrd.strip().split('\n')) + f'''
    v_mov_b32 v{T0}, v{L}
    v_mov_b32 v{T1}, v{L9}
    v_lshlrev_b32 v{VOK}, 4, v{TID}
    v_permlane32_swap_b32 v{L}, v{T0}
    v_permlane32_swap_b32 v{L9}, v{T1}
    v_add_f32 v{L}, v{L}, v{T0}
    v_add_f32 v{L9}, v{L9}, v{T1}
    v_mov_b32 v{T1}, v{L9}
    v_rcp_f32 v{AL}, v{L}
    v_permlane16_swap_b32 v{L9}, v{T1}
    v_add_f32 v{CN9 + 1}, v{L9}, v{T1}
    '''.strip().split('\n')
    epi += f"""s_cmp_lt_u32 s{sW}, 4
    s_cselect_b32 s45, 118784, 65536
    s_cselect_b32 s46, 135168, 155648
    s_lshl_b32 s7, s{sWP}, 11
    s_add_u32 s6, s45, s7
    v_add_u32 v116, s6, v{VOK}
    s_add_u32 s6, s46, s7
    v_add_u32 v117, s6, v{VOK}
    v_and_b32 v119, 15, v{TID}
    v_lshlrev_b32 v119, 3, v119
    s_lshl_b32 s7, s{sW}, 7
    s_add_u32 s7, s7, 20480
    v_add_u32 v118, s7, v119""".split('\n')
    wr9 = [f'ds_write_b64 v118, {vr(CN9, 2)}'] + [f'ds_write_b128 v{116 if sl < 3 else 117}, {vr(O9 + 8 * sl + 4 * t, 4)} offset:{(sl - 1) * 8192 * (sl < 3) + t * 1024}' for sl in range(1, 4) for t in range(2)]
    n1 = len(epi)
    epi += phase2(P, stamp, locals(), 0)
    epi += f"""s_mul_i32 s6, s{sP}, 36864
    s_lshl_b32 s7, s{sWP}, 12
    s_add_u32 s6, s6, s7
    s_add_u32 s6, s6, 81920
    v_add_u32 v{AL9}, s6, v{VOK}
    s_lshl_b32 s6, s{sW}, 7
    s_add_u32 s6, s6, 20480
    v_add_u32 v{S + 28}, s6, v119
    v_xor_b32 v{S + 29}, 0x80, v{S + 28}
    v_xor_b32 v{S + 30}, 0x100, v{S + 28}
    v_xor_b32 v{S + 31}, 0x180, v{S + 28}
    s_xor_b32 s7, s{sWP}, 1
    s_lshl_b32 s7, s7, 11
    s_add_u32 s7, s7, s45
    v_add_u32 v{S + 25}, s7, v{VOK}
    s_xor_b32 s7, s{sWP}, 2
    s_lshl_b32 s7, s7, 11
    s_add_u32 s7, s7, s45
    s_add_u32 s7, s7, 8192
    v_add_u32 v{S + 26}, s7, v{VOK}
    s_xor_b32 s7, s{sWP}, 3
    s_lshl_b32 s7, s7, 11
    s_add_u32 s7, s7, s46
    v_add_u32 v{S + 27}, s7, v{VOK}
    v_lshrrev_b32 v131, 5, v{TID}
    v_bfe_u32 v132, v{TID}, 4, 1
    v_lshlrev_b32 v137, 1, v119
    v_lshl_add_u32 v137, v131, 8, v137
    v_lshl_add_u32 v137, v132, 3, v137
    s_lshr_b32 s6, s{sW}, 1
    s_mul_i32 s6, s6, 18432
    s_and_b32 s7, s{sW}, 1
    s_lshl_b32 s7, s7, 10
    s_add_u32 s6, s6, s7
    s_add_u32 s6, s6, {81920 + 16384}
    v_add_u32 v138, s6, v137""".split('\n')
    epi = [e.strip() for e in epi]
    per = -(-len(epi) // len(groups))
    i = 0
    for gi, g in enumerate(groups):
        P.extend(g)
        j = min(len(epi), i + per)
        while j < len(epi) and (epi[j].split()[0] in ('s_addc_u32', 's_cselect_b64', 's_cselect_b32', 'v_cndmask_b32')): j += 1
        P.extend(epi[i:j]); i = j
        if gi >= 10 and wr9:
            assert i >= n1
            P(wr9.pop(0))
    P.extend(epi[i:]); P.extend(wr9)
    ST = CN; PT = [None, Q9, Q9 + 8, PP]; R9 = PP + 8
    P('s_barrier')
    for w in range(4): P(f'ds_read_b64 {vr(ST + 2 * w, 2)}, v{S + 28 + w}')
    for w in range(1, 4):
        for t in range(2): P(f'ds_read_b128 {vr(PT[w] + 4 * t, 4)}, v{S + 24 + w} offset:{t * 1024}')
    P(f's_cmp_lt_u32 s{sW}, 4\ns_cbranch_scc0 K1_Z')
    phase2(P, stamp, locals(), 3)
    P('s_barrier\nK1_Z:')
    if OPT['stamps'] == 1: stamp(4)
    os_ = '' if OPT['loc'] else 'sc1'
    mg = [f'v_min3_f32 v{ST + 8}, v{ST}, v{ST + 2}, v{ST + 4}', f'v_min_f32 v{ST + 8}, v{ST + 8}, v{ST + 6}']
    mg += [f'v_sub_f32 v{ST + 2 * w}, v{ST + 8}, v{ST + 2 * w}' for w in range(4)]
    mg += [f'v_exp_f32 v{ST + 2 * w}, v{ST + 2 * w}' for w in range(4)]
    mg += [f'v_mul_f32 v{ST + 9}, v{ST}, v{ST + 1}'] + [f'v_fmac_f32 v{ST + 9}, v{ST + 2 * w}, v{ST + 2 * w + 1}' for w in range(1, 4)]
    mg += [f'v_rcp_f32 v{ST + 9}, v{ST + 9}']
    mg += [f'v_mul_f32 v{R9 + i}, v{O9 + i}, v{ST}' for i in range(8)]
    for w in range(1, 4): mg += [f'v_fmac_f32 v{R9 + i}, v{PT[w] + i}, v{ST + 2 * w}' for i in range(8)]
    mg += [f'v_mul_f32 v{R9 + i}, v{R9 + i}, v{ST + 9}' for i in range(8)]
    for t in range(2):
        mg += [f'v_cvt_pk_bf16_f32 v{ST + 10 + 2 * t}, v{R9 + 4 * t}, v{R9 + 4 * t + 1}', f'v_cvt_pk_bf16_f32 v{ST + 11 + 2 * t}, v{R9 + 4 * t + 2}, v{R9 + 4 * t + 3}',
               f'ds_write_b64 v138, {vr(ST + 10 + 2 * t, 2)} offset:{t * 512}', f'buffer_store_dwordx2 {vr(ST + 10 + 2 * t, 2)}, v137, s[20:23], s{sIS} offen offset:{t * 512} {os_}']
    for dt in range(4):
        for i in range(16): P(f'v_mul_f32 v{O + 16 * dt + i}, v{O + 16 * dt + i}, v{AL}')
        for hf in range(2):
            d = S + 8 * dt + 4 * hf
            for i in range(4): P(f'v_cvt_pk_bf16_f32 v{d + i}, v{O + 16 * dt + 8 * hf + 2 * i}, v{O + 16 * dt + 8 * hf + 2 * i + 1}')
            ks = 2 * dt + hf
            P(f'ds_write_b128 v{AL9}, {vr(d, 4)} offset:{(ks >> 2) * 18432 + (ks & 3) * 1024}')
            if not OPT['lates']: P(f'buffer_store_dwordx4 {vr(d, 4)}, v{VOK}, s[20:23], s{sSK if ks < 4 else sSV} offen offset:{(ks & 3) * 1024} {os_}')
        if dt == 0: P.extend(mg)
    if OPT['lates']:
        for ks in range(8): P(f'buffer_store_dwordx4 {vr(S + 4 * ks, 4)}, v{VOK}, s[20:23], s{sSK if ks < 4 else sSV} offen offset:{(ks & 3) * 1024} {os_}')
    if OPT['fused']: phase2(P, stamp, locals(), 2)
    if OPT['stamps']:
        P('K1_STAMPS:' if OPT['fused'] else 's_waitcnt vmcnt(0)')
        if not OPT['fused']: stamp(4)
        P(f'''
        s_waitcnt lgkmcnt(0)
        s_add_u32 s20, s66, {WS_STAMP}
        s_addc_u32 s21, s67, 0
        s_mov_b32 s22, 0x100000
        s_mov_b32 s23, 0x20000
        s_lshl_b32 s6, s2, 3
        s_add_u32 s6, s6, s{sW}
        s_lshl_b32 s6, s6, 7
        v_mov_b32 v2, s6
        s_mov_b64 exec, 1
        ''')
        if OPT['probe'] >= 0:
            k = OPT['probe']
            lo, base = (98, 96) if k == 99 else (70 + 2 * k, 70)
            P(f"""
            s_cmp_lg_u32 s2, {OPT['pwg']}
            s_cbranch_scc1 K1_END
            s_cmp_lg_u32 s{sW}, {OPT['pw']}
            s_cbranch_scc1 K1_END
            s_sub_u32 s6, s{lo}, s{base}
            s_mul_i32 s6, s6, {1 if k == 99 else 10}
            s_memrealtime s[72:73]
            s_waitcnt lgkmcnt(0)
            s_add_u32 s6, s6, s72
            {'s_add_u32 s6, s70, 30000' if k == 0 else ''}
            K1_SPIN:
            s_memrealtime s[72:73]
            s_waitcnt lgkmcnt(0)
            s_sub_u32 s7, s72, s6
            s_cmp_lt_i32 s7, 0
            s_cbranch_scc1 K1_SPIN
            s_branch K1_END
            """)
        if OPT['dbgst']:
            P('s_mov_b32 s20, s64\ns_mov_b32 s21, s65\ns_mov_b32 s22, 256\nv_mov_b32 v2, 0\ns_not_b32 s70, s70')
            for i, k in enumerate([0, 1, 2, 7, 3, 4, 5, 6, 9, 10, 11, 8]):
                P(f'v_mov_b32 v4, s{70 + 2 * k}\nbuffer_atomic_umax v4, v2, s[20:23], 0 offen offset:{4 + 4 * i}\ns_nop 1')
        for k in range(0 if OPT['dbgst'] else 15):
            P(f'v_mov_b32 v4, s{70 + 2 * k}\nv_mov_b32 v5, s{71 + 2 * k}\nbuffer_store_dwordx2 v[4:5], v2, s[20:23], 0 offen offset:{8 * k}\ns_nop 1')
    P('K1_END:\ns_endpgm')
    a0 = [i for i, x in enumerate(P.ins) if x.text == 'K1_G1:'][0]; a1 = [i for i, x in enumerate(P.ins) if x.text == 'K1_PVO:'][0]
    keep = []; dcount = [0]
    kt = [i for i, x in enumerate(P.ins) if x.text == 'K1_TOP:'][0]
    kp0 = [i for i, x in enumerate(P.ins) if x.text == 'K1_G1:'][0]; kp1 = [i for i, x in enumerate(P.ins) if x.text == 'K1_QL:'][0]
    for i, x in enumerate(P.ins):
        if a0 < i < a1:
            if OPT['nodma'] and x.dma and not (kp0 < i < kp1): continue
            if OPT['nobar'] and x.kind == 'barrier': continue
            if OPT['noexp'] and x.kind in ('valu', 'trans') and ('exp' in x.text or 'v_add_f32' in x.text or 'cvt_pk' in x.text or 'max3' in x.text): continue
            if OPT['nolds'] and x.kind == 'ds_r': continue
            if OPT['diag'] & 1 and i > kt and 'v_add_f32' in x.text: continue
            if OPT['diag'] & 2 and i > kt and 'v_max3' in x.text and 's46' not in x.text: continue
            if OPT['diag'] & 4 and i > kt and x.kind == 'ds_r':
                dcount[0] += 1
                if (dcount[0] // 4) % 2: continue
            if OPT['diag'] & 8 and i > kt and '16x16x16' in x.text: continue
            if OPT['diag'] & 16 and i > kt and 'v_exp' in x.text and '-v' not in x.text:
                x = parse(x.text.replace('v_exp_f32', 'v_mov_b32'))
            if OPT['nomf'] and i > kt and (x.kind in ('mfma', 'ds_r', 'trans') or (x.kind == 'valu' and 'v_cmp' not in x.text)): continue
        keep.append(x)
    P.ins = keep
    return P.finish()

def desc(name, vg, sg=102):
    return f'''.amdhsa_kernel {name}
  .amdhsa_next_free_vgpr {vg}
  .amdhsa_next_free_sgpr {sg}
  .amdhsa_accum_offset {(vg + 3) // 4 * 4}
  .amdhsa_group_segment_fixed_size 0
  .amdhsa_kernarg_size 104
  .amdhsa_user_sgpr_count 2
  .amdhsa_user_sgpr_kernarg_segment_ptr 1
  .amdhsa_system_sgpr_workgroup_id_x 1
  .amdhsa_float_denorm_mode_32 3
.end_amdhsa_kernel
'''

def main():
    ref = open('cdna_kernels/%s.s.ref' % NAME).read().split('\n')
    hdr = [l for l in ref if l.startswith(';') and '@launch' not in l and 'Override launch' not in l and 'grid=ceil' not in l]
    hdr = hdr[:14]
    ks = [('attn_kernel', k1(), 256, '(256,1,1)', '(%d,1,1)' % OPT['blk'], 163840),
          ]
    out = '\n'.join(hdr) + '\n'
    if OPT['fused']:
        ks = [(NAME + '_kernel',) + ks[0][1:]]
        out += f'; @launch grid={ks[0][3]} block={ks[0][4]} lds={ks[0][5]}\n'
    else:
        for n, _, _, g, b, l in ks: out += f'; @launch kernel={n} grid={g} block={b} lds={l}\n'
    out += '.amdgcn_target "amdgcn-amd-amdhsa--gfx950"\n.text\n'
    for n, body, _, _, _, _ in ks:
        out += f'.globl {n}\n.p2align 8\n.type {n},@function\n{n}:\n' + 'K1_START:\n' + body.replace('@CODELEN@', 'K1_END-K1_START').replace('@PCOFF@', 'K1_PC-K1_START').replace('@PC2OFF@', 'K1_QE-K1_PC2').replace('@LEN2@', 'K1_END-K1_QE')
    out += '.section .rodata,"a"\n'
    for n, _, vg, _, _, _ in ks: out += '.p2align 6\n' + desc(n, vg)
    open(sys.argv[1], 'w').write(out)
main()
```

```python
import sys, struct, math
from asmlib import *

NAME = 'concat_heads__mha_block_cached__gqa_block_cached__near_ridge'
def f2u(x): return struct.unpack('<I', struct.pack('<f', x))[0]
CSCALE = f2u(math.log2(math.e) / math.sqrt(128.0))

OPT = dict(nt_kv='nt', nt_w='', nt_x='', ostore='', stamps=0, touch=0, k2nb=3, nt_wo='', nt_o='', nodma=0, nobar=0, noexp=0, nolds=0, prio=0, bdelay=0, blk=512, pa=1, pc=0, pairw=1, qdelay=3, wtouch=0, kvs='000000000000044460a4', nsb=5, dstep=4, trows=15, tlead=0, ptouch=0, tl=0, nopoll=0, ot=-9, opre=0, dyn=0, fb=2, kpre=0, hold=0, ep2=13, bl='K3,V2,K4,V3', pq=0, pg=0, pl2=2, q16=0, ep=6, pt2=0, nt_wd='', bh=0, bt=0, btf='', ti=0, d3=0, opv=0, cts=-9, tb='-1:1:8,-1:8:18', bs='9abc', bn=16, diag=0, nbar=1, rot=1, rotx=0, rotp=4, lates=0, qnop=0, anop=0, ctouch=0, sp='12111212111111', ts=-9, npre=1, dist=3, sq=9, fused=1, p2nb=3, wot=1, ld2='', spin=200000, dbgst=0, loc=1, bgwb=0, nomf=0, nokv=0, nost=0, probe=-1, pwg=8, pw=4)
for a in sys.argv[2:]:
    k, v = a.split('=')
    OPT[k] = int(v) if (v.lstrip('-').isdigit() and k not in ('kvs', 'sp', 'bs')) else v

WS_O_BR = 36 * 256 * 1024
WS_PART = 0x1400000
WS_FLAG = 0x3000000
WS_STAMP = 0x4000000

def lanes(P, dst, expr_list):
    for e in expr_list: P(e)

def mf32(d, a, b, c=None):
    return f'v_mfma_f32_32x32x16_bf16 {vr(d, 16)}, {vr(a, 4)}, {vr(b, 4)}, {vr(d if c is None else c, 16)}'
def mf16(d, a, b, c=None):
    return f'v_mfma_f32_16x16x32_bf16 {vr(d, 4)}, {vr(a, 4)}, {vr(b, 4)}, {vr(d if c is None else c, 4)}'
def mf16h(d, a, b):
    return f'v_mfma_f32_16x16x16_bf16 {vr(d, 4)}, {vr(a, 2)}, {vr(b, 2)}, {vr(d, 4)}'


def phase2(P, stamp, env, part):
    sW, sWP, sBR, sE, sKS, TID, sB, sJ = env['sW'], env['sWP'], env['sBR'], env['sE'], env['sKP'], env['TID'], env['sB'], env['sJ']
    NB = 4; WST, OST, OOF = 20480, 18432, 81920
    sJJ, sTID, sCNT, sIB, sDL, sTMP, sSPIN = 56, 58, 30, 36, 37, 48, 44
    sSW, sSO, sMW, sMO, sPW, sPO, sIBW, sNB, sM9, sD2, sS9 = 59, 60, 61, 62, 63, 35, 31, 33, 43, 47, 57
    if OPT['stamps'] != 1: stamp = lambda *a: None
    if OPT['ti']:
        st0 = stamp; stamp = lambda k, *a: st0(k, *a) if k == 8 else None
    sNEED = 38
    VW = [120, 121, 122, 123, 124]; VO, VF, VP = 141, 142, 143
    A0, A1, A90, A91, AB, AB9 = 125, 126, 127, 128, 129, 130
    done = 'K1_STAMPS' if OPT['stamps'] else 'K1_END'
    def poll(lbl, off):
        return f"""
    s_mov_b32 s{sSPIN}, {OPT['spin']}
    {lbl}:
    s_mov_b64 exec, 15
    buffer_load_dword v{VP}, v{VF}, s[52:55], s{off} offen sc1
    s_mov_b64 exec, -1
    s_sub_u32 s{sSPIN}, s{sSPIN}, 1
    s_cbranch_scc1 {lbl}X
    s_waitcnt vmcnt(0)
    v_cmp_eq_u32 vcc, s{sE}, v{VP}
    s_and_b64 s[6:7], vcc, s[{sNEED}:{sNEED + 1}]
    s_cmp_eq_u64 s[6:7], s[{sNEED}:{sNEED + 1}]
    s_cbranch_scc0 {lbl}
    {lbl}X:
    """
    def wb(lbl, first):
        if not OPT['loc']: return ''
        o = ''
        if first: o = f"""
    s_getreg_b32 s3, hwreg(HW_REG_XCC_ID, 0, 4)
    s_lshl_b32 s7, s{sE}, 4
    s_add_u32 s3, s3, s7
    s_waitcnt vmcnt(10)
    v_cmp_eq_u32 vcc, s3, v{env['Q'] + 3}
    s_and_b32 s{sNB}, vcc_lo, 15
    """
        return o + f"""
    s_cmp_eq_u32 s{sNB}, {15 if OPT['loc'] == 1 else 0}
    s_cbranch_scc1 {lbl}
    buffer_wbl2 sc1
    s_waitcnt vmcnt(0)
    {lbl}:
    """
    def issW():
        o = f's_mul_i32 s7, s{sPW}, {64 * 1152}\ns_add_u32 s7, s7, s{sSW}\ns_add_u32 m0, s{sIBW}, s{sMW}\ns_add_u32 s{sPW}, s{sPW}, 1\n'
        for n in range(5):
            if n == 4: o += 's_add_u32 m0, m0, 4096\ns_nop 0\n'
            o += f'buffer_load_dwordx4 v{VW[n]}, s[8:11], s7 offen offset:{(n & 3) * 1024} {OPT["nt_wo"]} lds\n'
        return o + f's_and_b32 s{sPW}, s{sPW}, 15\ns_add_u32 s{sIBW}, s{sIBW}, {WST}\ns_cmp_eq_u32 s{sIBW}, {NB * WST}\ns_cselect_b32 s{sIBW}, 0, s{sIBW}\n'
    def issO():
        o = f's_add_u32 m0, s{sIB}, s{sMO}\ns_lshl_b32 s7, s{sPO}, 12\ns_add_u32 s7, s7, s{sSO}\n'
        for e in range(4): o += f'buffer_load_dwordx4 v{VO}, s[20:23], s7 offen offset:{e * 1024} {OPT["ld2"]} lds\n'
        o += f's_add_u32 m0, s{sIB}, s{sM9}\ns_lshl_b32 s7, s{sPO}, 11\ns_add_u32 s7, s7, s{sS9}\ns_mov_b32 exec_hi, 0\n'
        o += f'buffer_load_dwordx4 v{VO}, s[20:23], s7 offen {OPT["ld2"]} lds\ns_mov_b32 exec_hi, -1\n'
        return o + f's_add_u32 s{sPO}, s{sPO}, 1\ns_and_b32 s{sPO}, s{sPO}, 15\ns_add_u32 s{sIB}, s{sIB}, {OST}\ns_cmp_eq_u32 s{sIB}, {NB * OST}\ns_cselect_b32 s{sIB}, 0, s{sIB}\n'
    if part == 0:
        o = f"""
        s_and_b32 s{sJJ}, s{sJ}, 3
        s_lshl_b32 s{sTID}, s{sBR}, 3
        s_add_u32 s{sTID}, s{sTID}, s{sB}
        s_lshl_b32 s{sTID}, s{sTID}, 2
        s_add_u32 s{sTID}, s{sTID}, s{sJJ}
        s_lshl_b32 s{sPW}, s{sJJ}, 2
        s_add_u32 s{sPO}, s{sPW}, 4
        s_and_b32 s{sPO}, s{sPO}, 15
        s_and_b32 s3, s2, 7
        s_lshl_b32 s3, s3, 3
        s_add_u32 s3, s3, s{sB}
        s_lshl_b32 s{sTMP}, s3, 7
        v_lshlrev_b32 v{VF}, 2, v{TID}
        v_lshlrev_b32 v{VO}, 4, v{TID}
        v_mov_b32 v{VP}, s{sE}
        v_mov_b32 v140, v{TID}
        s_mul_i32 s{sSW}, s{sJJ}, 288
        s_and_b32 s{sSW}, s{sSW}, 0xffc0
        s_mul_i32 s3, s{sWP}, {16 * 1152}
        s_add_u32 s{sSW}, s{sSW}, s3
        s_mul_i32 s{sMW}, s{sWP}, 5120
        s_lshl_b32 s{sMO}, s{sWP}, 12
        s_add_u32 s{sMO}, s{sMO}, {OOF}
        s_lshl_b32 s{sM9}, s{sWP}, 9
        s_lshl_b32 s{sS9}, s{sKS}, 15
        s_add_u32 s{sS9}, s{sS9}, s{sM9}
        s_add_u32 s{sS9}, s{sS9}, {1 << 20}
        s_add_u32 s{sM9}, s{sM9}, {OOF + 16384}
        s_lshl_b32 s{sSO}, s{sKS}, 16
        s_lshl_b32 s3, s{sWP}, 18
        s_add_u32 s{sSO}, s{sSO}, s3
        s_lshl_b32 s3, s{sB}, 2
        s_lshl_b32 s{sNB}, 1, s3
        s_mov_b32 s{sIB}, 0
        s_mov_b32 s{sIBW}, 0
        s_mov_b32 s3, 52429
        """
        for n in range(5):
            o += f"""
        v_add_u32 v131, {64 * n}, v{TID}
        v_mul_lo_u32 v132, s3, v131
        v_lshrrev_b32 v132, 20, v132
        v_mul_u32_u24 v133, 20, v132
        v_sub_u32 v133, v131, v133
        v_bfe_u32 v134, v132, 3, 1
        v_lshlrev_b32 v134, 1, v134
        v_xor_b32 v133, v133, v134
        v_mul_u32_u24 v132, 1152, v132
        v_lshl_add_u32 v132, v133, 4, v132
        v_add_u32 v{VW[n]}, {3072 - (n & 3) * 1024}, v132
        """
        o += f"""
        v_lshrrev_b32 v131, 4, v{TID}
        v_bfe_u32 v132, v{TID}, 2, 2
        v_lshl_add_u32 v132, v131, 3, v132
        v_mul_u32_u24 v132, 320, v132
        v_bfe_u32 v133, v{TID}, 1, 1
        v_lshl_add_u32 v132, v133, 4, v132
        v_and_b32 v133, 1, v{TID}
        v_lshl_add_u32 v132, v133, 3, v132
        v_and_b32 v133, 1, v131
        v_lshl_add_u32 v134, v133, 5, v132
        v_xor_b32 v135, 1, v133
        v_lshl_add_u32 v135, v135, 5, v132
        v_add_u32 v136, 64, v134
        s_bitcmp0_b32 s{sJJ}, 0
        s_cselect_b64 vcc, -1, 0
        s_lshl_b32 s3, s{sWP}, 6
        v_cndmask_b32 v{A0}, v135, v134, vcc
        v_cndmask_b32 v{A1}, v136, v135, vcc
        v_add_u32 v{A90}, s3, v{A0}
        v_add_u32 v{A91}, s3, v{A1}
        v_and_b32 v132, 15, v{TID}
        v_lshlrev_b32 v132, 4, v132
        v_lshrrev_b32 v131, 1, v131
        v_lshl_add_u32 v134, v133, 9, v132
        v_lshl_add_u32 v134, v131, 10, v134
        v_add_u32 v{AB}, s{sMO}, v134
        v_lshl_add_u32 v134, v133, 8, v132
        v_lshl_add_u32 v134, v131, 9, v134
        v_add_u32 v{AB9}, {OOF + 16384}, v134
        """
        return [l.strip() for l in o.split('\n') if l.strip()]
    if part == 3:
        P(issW()); return
    P(f"""
    s_cmp_ge_u32 s{sW}, 4
    s_cbranch_scc1 P2_G1
    s_setprio {OPT['pl2']}
    s_waitcnt vmcnt(0)
    s_barrier
    """)
    stamp(5)
    def fl(l): return (f's_mov_b64 exec, 0xff\ns_cmp_eq_u32 s{sD2}, {15 if OPT["loc"] == 1 else 0}\ns_cbranch_scc1 {l}L\nbuffer_load_dword v{VP}, v{VF}, s[52:55], s{sTMP} offen sc1\ns_branch {l}M\n'
                       f'{l}L:\nbuffer_load_dword v{VP}, v{VF}, s[52:55], s{sDL} offen nt\n{l}M:\ns_mov_b64 exec, -1\n')
    P(f"""
    s_getreg_b32 s3, hwreg(HW_REG_XCC_ID, 0, 4)
    s_lshl_b32 s7, s{sE}, 4
    s_add_u32 s3, s3, s7
    v_cmp_eq_u32 vcc, s3, v{env['Q'] + 3}
    s_and_b32 s{sD2}, vcc_lo, 15
    s_add_u32 s{sDL}, s{sTMP}, 16384
    """)
    P('v_mov_b32 v137, 163832\nv_mov_b32 v138, 0\nds_write_b32 v137, v138')
    P(issW() + issW() + issW())
    P(f's_cmp_lg_u32 s{sW}, 0\ns_cbranch_scc1 P2_F0\n{fl("P2_F1")}P2_F0:')
    P(f"""
    s_waitcnt vmcnt(10)
    s_barrier
    s_waitcnt vmcnt(5)
    s_barrier
    s_waitcnt vmcnt(0)
    s_mov_b32 s{sNB}, 0
    s_mov_b32 s{sCNT}, 2
    s_sub_u32 s{sPW}, s{sPW}, 2
    P2_LD:
    s_cmp_eq_u32 s{sCNT}, 8
    s_cselect_b32 s3, 8, 2
    s_cselect_b32 s{sNB}, 4, s{sNB}
    s_add_u32 s{sPW}, s{sPW}, s3
    s_and_b32 s{sPW}, s{sPW}, 15
    s_cmp_lg_u32 s{sW}, 0
    s_cbranch_scc1 P2_PO
    s_lshr_b32 s3, s{sPW}, 2
    s_add_u32 s3, s3, s{sNB}
    s_mov_b32 s{sSPIN}, {OPT['spin']}
    P2_PF:
    v_cmp_eq_u32 vcc, s{sE}, v{VP}
    s_bitcmp1_b32 vcc_lo, s3
    s_cbranch_scc1 P2_PG
    {fl('P2_F2')}
    s_sub_u32 s{sSPIN}, s{sSPIN}, 1
    s_waitcnt vmcnt(0)
    s_cbranch_scc0 P2_PF
    P2_PG:
    v_mov_b32 v138, s{sCNT}
    ds_write_b32 v137, v138
    s_cmp_lg_u32 s{sCNT}, 6
    s_cbranch_scc1 P2_PN
    {fl('P2_F3')}
    s_branch P2_PN
    P2_PO:
    ds_read_b32 v138, v137
    s_waitcnt lgkmcnt(0)
    v_readfirstlane_b32 s6, v138
    s_cmp_eq_u32 s6, s{sCNT}
    s_cbranch_scc0 P2_PO
    P2_PN:
    s_mov_b32 s{sPO}, s{sPW}
    """)
    if OPT['d3']:
        P(issO() + issW() + f's_cmp_eq_u32 s{sCNT}, 2\ns_cbranch_scc1 P2_D3\ns_waitcnt vmcnt(20)\ns_barrier\nP2_D3:\n' + issO() + issW())
        P(f's_add_u32 s{sCNT}, s{sCNT}, 2\ns_cmp_lt_u32 s{sCNT}, 14\ns_waitcnt vmcnt(20)\ns_barrier\ns_cbranch_scc1 P2_LD')
        P('s_waitcnt vmcnt(10)\ns_barrier\ns_waitcnt vmcnt(0)\ns_barrier\ns_barrier\ns_branch P2_RED')
    else:
        P(issO() + issW() + 's_waitcnt vmcnt(10)\ns_barrier\n' + issO() + issW())
        P(f's_add_u32 s{sCNT}, s{sCNT}, 2\ns_cmp_lt_u32 s{sCNT}, 14\ns_waitcnt vmcnt(10)\ns_barrier\ns_cbranch_scc1 P2_LD')
        P('s_waitcnt vmcnt(0)\ns_barrier\ns_barrier\ns_branch P2_RED')
    ACC = [[4 * (2 * t + j) for j in range(2)] for t in range(9)]; AC9 = [72, 76, 80]
    SET = [dict(A=[144 + 4 * t for t in range(9)], A9=[180, 184], B=[188, 192], B9=196),
           dict(A=[200 + 4 * t for t in range(9)], A9=[236, 240], B=[244, 248], B9=252)]
    P(f"""
    P2_G1:
    s_setprio {OPT['pg']}
    s_lshl_b32 s6, s{sTID}, 2
    s_add_u32 s6, s6, s{sKS}
    s_lshl_b32 s6, s6, 2
    s_add_u32 s6, s6, s{sWP}
    s_mul_i32 s6, s6, 11264
    s_add_u32 s6, s6, {WS_PART}
    s_add_u32 s16, s66, s6
    s_addc_u32 s17, s67, 0
    s_mov_b32 s18, 11264
    s_mov_b32 s19, 0x20000
    s_mov_b32 s{sIB}, 0
    s_mov_b32 s{sCNT}, 1
    s_mov_b32 s{sDL}, {WST}
    s_mov_b32 s{sD2}, {OST}
    s_lshl_b32 s6, s{sJJ}, 2
    s_add_u32 s{sTMP}, s6, s{sTMP}
    s_barrier
    s_cmp_eq_u32 s{sW}, 4
    s_cbranch_scc0 P2_FA
    s_add_u32 s{sSPIN}, s{sTMP}, 16384
    s_mov_b64 exec, 1
    buffer_store_dword v{VP}, v{VF}, s[52:55], s{sSPIN} offen
    s_mov_b64 exec, -1
    {wb('P2_WA', True).replace('vmcnt(10)', 'vmcnt(11)')}
    s_mov_b64 exec, 1
    buffer_store_dword v{VP}, v{VF}, s[52:55], s{sTMP} offen sc1
    s_mov_b64 exec, -1
    P2_FA:
    """)
    stamp(6)
    def rd(st, K):
        o = [f'ds_read_b128 {vr(st["B"][j], 4)}, v{AB} offset:{K * 2048 + j * 256}' for j in range(2)]
        for t in range(9):
            o += [f'ds_read_b64_tr_b16 {vr(st["A"][t] + 2 * j, 2)}, v{[A0, A1][t & 1]} offset:{K * 10240 + j * 1280 + 64 * (t >> 1)}' for j in range(2)]
            if t == 7: o.append(f'ds_read_b128 {vr(st["B9"], 4)}, v{AB9} offset:{K * 1024}')
        for t in range(2):
            o += [f'ds_read_b64_tr_b16 {vr(st["A9"][t] + 2 * j, 2)}, v{[A90, A91][t]} offset:{K * 10240 + j * 1280}' for j in range(2)]
        return o
    last = []
    def step(cur, rds, extra=(), first=False, tailbr=None):
        z = lambda d, a, b: f'v_mfma_f32_16x16x32_bf16 {vr(d, 4)}, {vr(a, 4)}, {vr(b, 4)}, 0' if first else mf16(d, a, b)
        m = []
        for t in range(9): m += [z(ACC[t][0], cur['A'][t], cur['B'][0]), z(ACC[t][1], cur['A'][t], cur['B'][1])]
        m += [z(AC9[2], cur['A'][8], cur['B9']), z(AC9[0], cur['A9'][0], cur['B9']), z(AC9[1], cur['A9'][1], cur['B9'])]
        for i in (0, 6, 12): m[i] += f' ; need {vr(cur["A"][i // 2 + 2], 4)}'
        m[18] += f' ; need {vr(cur["A9"][1], 4)}'
        rds = list(rds); extra = list(extra)
        for i, x in enumerate(m):
            if tailbr and i == len(m) - 1:
                assert not extra and not rds
                P(f's_cbranch_scc1 {tailbr}'); last.append(x)
            P(x)
            n = 2 if i % 3 != 2 else 1
            if rds: P.extend(rds[:n]); rds = rds[n:]
            elif extra: P.extend(extra[:2]); extra = extra[2:]
        assert not rds
        P.extend(extra)
    upd = [f'v_add_u32 v{r}, s{sDL}, v{r}' for r in (A0, A1, A90, A91)] + [f'v_add_u32 v{r}, s{sD2}, v{r}' for r in (AB, AB9)]
    ring = [f's_add_u32 s{sIB}, s{sIB}, 1', f's_and_b32 s{sIB}, s{sIB}, 3', f's_cmp_eq_u32 s{sIB}, {NB - 1}',
            f's_cselect_b32 s{sDL}, {-(NB - 1) * WST & 0xffffffff}, {WST}', f's_cselect_b32 s{sD2}, {-(NB - 1) * OST & 0xffffffff}, {OST}']
    P.extend(rd(SET[0], 0))
    step(SET[0], rd(SET[1], 1), upd, first=True)
    P('s_barrier\ns_branch P2_M\nP2_L:')
    if OPT['tl'] == 1: stamp(2, 3); stamp(7, 8); stamp(3, 12)
    step(SET[0], rd(SET[1], 1), upd + [f's_add_u32 s{sCNT}, s{sCNT}, 1', f's_cmp_eq_u32 s{sCNT}, {OPT["fb"]}'], tailbr='P2_SPEC')
    P('s_barrier\nP2_M:')
    step(SET[1], rd(SET[0], 0), ring + [f's_cmp_lt_u32 s{sCNT}, 16'])
    P('s_cbranch_scc1 P2_L\ns_branch P2_E\nP2_SPEC:\n' + last[0])
    P(f"""
    s_waitcnt vmcnt(0)
    s_barrier
    s_cmp_eq_u32 s{sW}, 4
    s_cbranch_scc0 P2_M
    s_mov_b64 exec, 1
    buffer_store_dword v{VP}, v{VF}, s[52:55], s{sSPIN} offen offset:16
    s_mov_b64 exec, -1
    {wb('P2_WB', False)}
    s_mov_b64 exec, 1
    buffer_store_dword v{VP}, v{VF}, s[52:55], s{sTMP} offen offset:16 sc1
    s_mov_b64 exec, -1
    s_branch P2_M
    P2_E:
    """)
    stamp(9)
    units = [(ACC[2 * u][j], ACC[2 * u + 1][j]) for j in range(2) for u in range(4)] + [(ACC[8][0], ACC[8][1]), (AC9[0], AC9[1]), (AC9[2], AC9[2])]
    dst = [84 + 4 * i if i < 9 else 144 + 4 * i for i in range(11)]
    def pack(i):
        x, y = units[i]; d = dst[i]
        P(f'v_cvt_pk_bf16_f32 v{d}, v{x}, v{x + 1}\nv_cvt_pk_bf16_f32 v{d + 1}, v{x + 2}, v{x + 3}')
        P(f'v_cvt_pk_bf16_f32 v{d + 2}, v{y}, v{y + 1}\nv_cvt_pk_bf16_f32 v{d + 3}, v{y + 2}, v{y + 3}')
        if i % 4 == 0: P(f's_mov_b32 s3, {i * 1024}')
        P(f'v_permlane16_swap_b32 v{d}, v{d + 2}\nv_permlane16_swap_b32 v{d + 1}, v{d + 3}')
    P(f's_cmp_eq_u32 s{sWP}, s{sKS}\ns_cbranch_scc1 P2_OWN')
    for i in range(11):
        pack(i); P(f'buffer_store_dwordx4 {vr(dst[i], 4)}, v{VO}, s[16:19], s3 offen offset:{(i % 4) * 1024} sc1')
    P('s_branch P2_RED\nP2_OWN:')
    for i in range(11):
        pack(i); P(f'ds_write_b128 v{VO}, {vr(dst[i], 4)} offset:{i * 1024}')
    P(f"""
    P2_RED:
    s_lshl_b32 s{sTMP}, s{sTID}, 7
    s_add_u32 s{sTMP}, s{sTMP}, 8192
    s_lshl_b32 s7, s{sKS}, 2
    s_add_u32 s7, s7, s{sTMP}
    s_lshl_b32 s6, s{sTID}, 4
    s_add_u32 s6, s6, s{sKS}
    s_mul_i32 s6, s6, 11264
    s_add_u32 s6, s6, {WS_PART}
    s_add_u32 s16, s66, s6
    s_addc_u32 s17, s67, 0
    s_mov_b32 s18, {3 * 45056 + 11264}
    s_mov_b32 s19, 0x20000
    s_mul_i32 s6, s{sB}, {144 * 2304}
    s_mul_i32 s3, s{sBR}, 1152
    s_add_u32 s6, s6, s3
    s_mul_i32 s3, s{sJJ}, 288
    s_add_u32 s6, s6, s3
    s_add_u32 s12, s68, s6
    s_addc_u32 s13, s69, 0
    s_sub_u32 s14, {1152 * 2304}, s6
    s_mov_b32 s15, 0x20000
    v_mov_b32 v{VP}, s{sE}
    s_mov_b64 s[{sNEED}:{sNEED + 1}], 15
    v_and_b32 v4, 15, v140
    v_mul_u32_u24 v4, 2304, v4
    v_lshrrev_b32 v5, 5, v140
    v_lshl_add_u32 v4, v5, 4, v4
    v_bfe_u32 v5, v140, 4, 1
    v_lshl_add_u32 v6, v5, 5, v4
    s_lshl_b32 s40, s{sKS}, 1
    s_lshr_b32 s3, s{sW}, 2
    s_add_u32 s40, s40, s3
    s_mul_i32 s40, s40, {16 * 2304}
    s_and_b32 s3, s{sW}, 3
    s_lshl_b32 s3, s3, 6
    s_add_u32 s40, s40, s3
    s_lshl_b32 s41, s{sW}, 10
    s_mul_i32 s42, s{sKS}, {32 * 2304}
    s_add_u32 s42, s42, 256
    s_lshl_b32 s3, s{sKS}, 6
    s_add_u32 s3, s3, {128 * 2304}
    s_cmp_eq_u32 s{sW}, 1
    s_cselect_b32 s42, s3, s42
    s_cselect_b32 s45, 32, 0
    s_cmp_eq_u32 s{sW}, 2
    s_cselect_b32 s42, {128 * 2304 + 256}, s42
    s_cmp_eq_u32 s{sW}, 0
    s_cselect_b32 s45, {16 * 2304}, s45
    v_mul_lo_u32 v7, s45, v5
    v_add_u32 v7, v7, v4
    s_cmp_lg_u32 s{sKS}, 0
    s_cselect_b32 s45, 2, 3
    s_waitcnt vmcnt(0)
    s_barrier
    s_cmp_eq_u32 s{sW}, 7
    s_cbranch_scc0 P2_NG
    s_mov_b64 exec, 1
    buffer_store_dword v{VP}, v{VF}, s[52:55], s7 offen sc1
    s_mov_b64 exec, -1
    P2_NG:
    """)
    stamp(10)
    P(f"""
    s_lshl_b32 s3, s{sW}, 10
    v_add_u32 v8, s3, v{VO}
    ds_read_b128 v[32:35], v8
    ds_read_b128 v[48:51], v8 offset:8192
    s_cmp_lg_u32 s{sW}, 0
    s_cbranch_scc1 P2_PW
    """ + poll('P2_PR', sTMP) + 'P2_PW:\ns_barrier')
    stamp(11)
    def loads(base, so):
        for k in range(1, 4):
            P(f's_add_u32 s3, s{sKS}, {k}\ns_and_b32 s3, s3, 3\ns_mul_i32 s3, s3, 45056\ns_add_u32 s3, s3, s{so}\nbuffer_load_dwordx4 {vr(base + 4 * k, 4)}, v{VO}, s[16:19], s3 offen sc1')
    def reduce(base, va, so, left):
        for k in range(4):
            if k: P(f's_waitcnt vmcnt({left + 3 - k})')
            for i in range(4):
                src = base + 4 * k + i; t = 16 if k == 0 else 24
                P(f'v_lshlrev_b32 v{t + 2 * i}, 16, v{src}\nv_and_b32 v{t + 1 + 2 * i}, s46, v{src}')
            if k:
                for i in range(8): P(f'v_add_f32 v{16 + i}, v{16 + i}, v{24 + i}')
        for i in range(4): P(f'v_cvt_pk_bf16_f32 v{base + i}, v{16 + 2 * i}, v{17 + 2 * i}')
        P(f'buffer_store_dwordx4 {vr(base, 4)}, v{va}, s[12:15], s{so} offen')
    P('s_mov_b32 s46, 0xffff0000')
    loads(32, 41)
    P(f's_cmp_lt_u32 s{sW}, s45\ns_cbranch_scc1 P2_R2')
    reduce(32, 6, 40, 0)
    P(f's_branch P2_RE\nP2_R2:\ns_add_u32 s41, s41, 8192')
    loads(48, 41)
    reduce(32, 6, 40, 3)
    reduce(48, 7, 42, 1)
    P('P2_RE:')
    if OPT['stamps']:
        P('s_waitcnt vmcnt(0)'); stamp(8)

def k1():
    P = Prog()
    O, S, CN, Q, PP, O9, Q9, S9, CN9, P9 = 0, 64, 96, 112, 144, 160, 192, 208, 212, 216
    L, L9, VOK, VOV, AK, AK9, AV9, TID = 218, 219, 220, 221, 222, 223, 224, 225
    VA = 226
    T0, T1, AL, AL9, X0, X1 = 230, 231, 232, 233, 234, 235
    FB = [236, 240, 244, 248, 252]
    ACC = [[0, 16, 32, 48], [64, 80, 144, 176]]; ACC9 = [[160, 164], [168, 172]]
    QW = [230, 231, 232, 233]; QX = [234, 235]; QX9, QW9, VOW, VOX, HOLD = 216, 217, 218, 219, 212
    QB, QB9 = [96, 100], 104
    QF = [112, 116, 120, 124, 128, 132, 136, 140, 236, 240]
    sW, sWP, sP, sB, sJ, sBR = 24, 25, 26, 27, 28, 29
    sCNT, sW0, sX, sMC, sIB, sDL = 30, 31, 33, 35, 36, 37
    sEX = 38
    sIK, sROT = 31, 49
    sIS, sSK, sSV, sDK, sDV, sT, sCL, sRARE, sTMP, sTM2, sMW, sKP, sVP, sE = 40, 41, 42, 43, 44, 45, 46, 47, 48, 49, 50, 51, 32, 34
    NSB = OPT['nsb']; STGS = 25600; STG0 = 163840 - NSB * STGS
    SB0 = (NSB - 18) % NSB
    QXCH, Q9B = 131072, 98304 + 16384
    nk, ntw, ntd = OPT['nt_kv'], OPT['nt_w'], OPT['nt_wd']
    def stamp(k, at=None):
        if OPT['stamps'] == 3: return
        if OPT['stamps']:
            if at is not None: P(f's_cmp_lg_u32 s{sCNT}, {at}\ns_cbranch_scc1 K1_ST{k}_{len(P.ins)}'); lbl = P.ins[-1].target
            P(('s_memtime' if OPT['stamps'] == 2 else 's_memrealtime') + ' s[%d:%d]' % (70 + 2 * k, 71 + 2 * k))
            if at is not None: P(f'{lbl}:')
            if k == 1 and OPT['stamps'] == 1: P('s_memtime s[96:97]')
            if k == 4 and OPT['stamps'] == 1 and OPT['ti'] != 2: P('s_memtime s[98:99]')
            if k == 2 and OPT['stamps'] == 1: P('s_memtime s[94:95]')
    P(f"""
    s_cmp_ge_u32 s2, 256
    s_cbranch_scc1 K1_END
    s_bfe_u32 s{sBR}, s2, 0x10002
    s_mul_i32 s6, s{sBR}, 40
    s_add_u32 s4, s0, s6
    s_addc_u32 s5, s1, 0
    s_load_dwordx8 s[56:63], s[4:5], 0
    s_load_dwordx4 s[64:67], s[0:1], 88
    s_load_dwordx2 s[68:69], s[0:1], 80
    s_load_dwordx2 s[100:101], s[4:5], 32
    """)
    if OPT['stamps']:
        for k in range(70, 100, 2): P(f's_mov_b64 s[{k}:{k + 1}], 0')
    stamp(0)
    P(f"""
    v_lshrrev_b32 v1, 6, v0
    v_and_b32 v{TID}, 63, v0
    v_readfirstlane_b32 s{sW}, v1
    v_lshrrev_b32 v2, 4, v{TID}
    v_and_b32 v3, 15, v{TID}
    s_and_b32 s3, s2, 3
    s_lshl_b32 s3, s3, 2
    s_bfe_u32 s7, s2, 0x20003
    s_add_u32 s{sJ}, s3, s7
    s_lshr_b32 s{sB}, s2, 5
    s_and_b32 s{sWP}, s{sW}, 3
    s_lshr_b32 s{sP}, s{sW}, 2
    v_lshlrev_b32 v4, 2, v2
    v_xor_b32 v4, v4, v3
    v_lshlrev_b32 v4, 4, v4
    v_lshl_add_u32 v{VOW}, v2, 13, v4
    {f's_and_b32 s3, s{sW}, 1' if OPT['q16'] else ''}
    {'s_lshl_b32 s3, s3, 5' if OPT['q16'] else ''}
    {f'v_xor_b32 v{VOW}, s3, v{VOW}' if OPT['q16'] else ''}
    v_lshrrev_b32 v8, 2, v{TID}
    v_and_b32 v9, 3, v{TID}
    v_xor_b32 v9, v9, v2
    v_mul_u32_u24 v8, 1152, v8
    v_lshl_add_u32 v{VOX}, v9, 4, v8
    s_lshl_b32 s3, s{sWP}, 2
    v_or_b32 v5, s3, v2
    v_xor_b32 v5, v5, v3
    v_lshlrev_b32 v5, 4, v5
    s_lshl_b32 s{sMW}, s{sWP}, 12
    v_lshl_add_u32 v5, v2, 8, v5
    v_add_u32 v{VOK}, s{sMW}, v5
    v_lshl_add_u32 v5, v2, 8, v4
    v_add_u32 v{VOV}, s{sMW}, v5
    s_lshl_b32 s{sW0}, s{sWP}, 16
    s_mul_i32 s{sX}, s{sWP}, 18432
    s_mul_i32 s{sMC}, s{sWP}, 3072
    s_lshl_b32 s3, s{sWP}, 4
    s_lshl_b64 s[{sEX}:{sEX + 1}], 0xffff, s3
    s_mul_i32 s6, s{sB}, 165888
    s_lshl_b32 s7, s{sJ}, 9
    s_mov_b32 s11, 0x20000
    s_mov_b32 s22, {165888 + 2048}
    s_mov_b32 s23, 0x20000
    s_sub_u32 s10, {576 * 8192}, s7
    s_mov_b32 s{sIB}, {STG0}
    s_lshl_b32 s{sTMP}, s{sB}, 5
    s_lshl_b32 s{sTM2}, s{sJ}, 1
    s_add_u32 s{sTMP}, s{sTMP}, s{sTM2}
    s_lshl_b32 s{sTMP}, s{sTMP}, 17
    s_mov_b32 s14, 262144
    s_mov_b32 s15, 0x20000
    s_mov_b32 s18, 262144
    s_mov_b32 s19, 0x20000
    s_mov_b32 s{sCNT}, 0
    s_cmp_ge_u32 s{sW}, 4
    s_waitcnt lgkmcnt(0)
    s_cbranch_scc1 K1_G1
    s_add_u32 s8, s62, s7
    s_addc_u32 s9, s63, 0
    s_add_u32 s20, s56, s6
    s_addc_u32 s21, s57, 0
    s_sub_u32 s20, s20, 2048
    s_subb_u32 s21, s21, 0
    """)
    kvsrd = f"""
    s_add_u32 s12, s58, s{sTMP}
    s_addc_u32 s13, s59, 0
    s_add_u32 s16, s60, s{sTMP}
    s_addc_u32 s17, s61, 0
    s_lshr_b32 s{sROT}, s2, 3
    s_mul_i32 s3, s2, {OPT['rotx']}
    s_mul_i32 s{sROT}, s{sROT}, {OPT['rot']}
    s_add_u32 s{sROT}, s{sROT}, s3
    s_lshl_b32 s{sROT}, s{sROT}, 14
    s_add_u32 s52, s66, {WS_FLAG}
    s_addc_u32 s53, s67, 0
    s_mov_b32 s54, 32768
    s_mov_b32 s55, 0x20000
    """
    lanec = f"""
    v_bfe_u32 v10, v{TID}, 2, 2
    v_and_b32 v11, 3, v{TID}
    v_lshrrev_b32 v12, 5, v{TID}
    v_and_b32 v13, 1, v2
    v_and_b32 v20, 1, v11
    v_lshrrev_b32 v15, 1, v11
    v_lshlrev_b32 v16, 2, v10
    v_lshl_add_u32 v17, v13, 1, v20
    v_xor_b32 v17, v17, v16
    v_lshlrev_b32 v17, 4, v17
    v_lshl_add_u32 v17, v15, 3, v17
    v_lshl_add_u32 v17, v10, 8, v17
    s_lshl_b32 s3, s{sP}, 14
    s_add_u32 s{sMW}, s{sMW}, s3
    s_add_u32 s6, s3, 65536
    v_lshl_add_u32 v18, v12, 10, v17
    v_add_u32 v{VA}, s6, v18
    v_xor_b32 v{VA + 1}, 64, v{VA}
    v_xor_b32 v{VA + 2}, 0x80, v{VA}
    v_xor_b32 v{VA + 3}, 0xc0, v{VA}
    v_bfe_u32 v23, v{TID}, 3, 2
    v_bfe_u32 v24, v{TID}, 2, 1
    v_lshl_add_u32 v25, v23, 2, v11
    v_xor_b32 v25, v25, v12
    v_lshlrev_b32 v25, 4, v25
    v_lshl_add_u32 v25, v11, 8, v25
    v_lshl_add_u32 v25, v24, 10, v25
    v_lshl_add_u32 v25, v23, 12, v25
    {f's_lshl_b32 s7, s{sWP}, 6' if OPT['q16'] else ''}
    {'v_xor_b32 v25, s7, v25' if OPT['q16'] else ''}
    v_add_u32 v{AK}, s3, v25
    s_lshl_b32 s7, s{sWP}, 10
    s_add_u32 s6, s3, s7
    v_xor_b32 v25, v2, v3
    v_lshlrev_b32 v25, 4, v25
    v_lshl_add_u32 v25, v11, 8, v25
    v_lshl_add_u32 v25, v10, 12, v25
    v_add_u32 v{AK9}, s6, v25
    v_xor_b32 v25, v15, v16
    v_lshlrev_b32 v25, 4, v25
    v_lshl_add_u32 v25, v20, 3, v25
    v_lshl_add_u32 v25, v10, 8, v25
    v_lshl_add_u32 v25, v2, 12, v25
    s_add_u32 s6, s6, 65536
    s_lshl_b32 s7, s{sWP}, 6
    v_xor_b32 v25, s7, v25
    v_add_u32 v{AV9}, s6, v25
    v_mul_u32_u24 v26, 272, v3
    v_lshl_add_u32 v27, v2, 4, v26
    s_mul_i32 s6, s{sP}, 4352
    s_add_u32 s6, s6, {Q9B}
    v_add_u32 v{S9}, s6, v27
    v_lshlrev_b32 v27, 4, v{TID}
    s_lshl_b32 s6, s{sWP}, 13
    s_add_u32 s6, s6, {QXCH}
    v_add_u32 v{S9 + 1}, s6, v27
    """
    loopinit = f"""
    s_mov_b32 s{sCNT}, 1
    s_mov_b32 s{sKP}, 32768
    s_mov_b32 s{sVP}, 65536
    s_mov_b32 s{sDK}, 32768
    s_mov_b32 s{sDV}, 0
    s_mov_b32 s{sIS}, 131072
    s_mov_b32 s{sIK}, 0
    s_mov_b32 s33, 0
    s_mul_i32 s3, s{sP}, {OPT['rotp'] * 16384}
    s_add_u32 s3, s3, s{sROT}
    s_add_u32 s{sSV}, s3, 16384
    s_and_b32 s{sSV}, s{sSV}, 0x1ffff
    s_add_u32 s{sSK}, s3, 49152
    s_and_b32 s{sSK}, s{sSK}, 0x1ffff
    s_mov_b32 s{sCL}, 0xff800000
    s_mov_b32 s{sRARE}, 0
    """
    obase = f"""
    s_lshl_b32 s6, s{sBR}, 3
    s_add_u32 s6, s6, s{sB}
    s_mul_i32 s6, s6, 1179648
    s_mul_i32 s7, s{sWP}, {262144 - 4096}
    s_add_u32 s6, s6, s7
    s_lshl_b32 s7, s{sJ}, 1
    s_add_u32 s7, s7, s{sP}
    s_lshl_b32 s7, s7, 13
    s_add_u32 s6, s6, s7
    s_add_u32 s56, s66, s6
    s_addc_u32 s57, s67, 0
    """
    narrow = f's_lshl_b32 s3, s{sP}, 17\ns_add_u32 s12, s12, s3\ns_addc_u32 s13, s13, 0\ns_add_u32 s16, s16, s3\ns_addc_u32 s17, s17, 0\ns_mov_b32 s14, 131072\ns_mov_b32 s18, 131072'
    getE = f'v_mov_b32 v{AL}, {Q9B + 8704}\nds_read_b32 v{AL}, v{AL}' if OPT['fused'] else ''
    getE2 = f'v_readfirstlane_b32 s{sE}, v{AL}' if OPT['fused'] else ''
    queue = []
    qcls = []
    cur = [(0, 1, 2, 3)]
    def vm(text, tag): P(text); queue.append(tag); qcls.append(cur[0])
    BS = [int(c, 36) for c in str(OPT['bs'])]; BN = 0; BT = len(BS) // 4
    def wait_for(tag):
        cnt = []
        for c in range(4):
            q = [t for t, k in zip(queue, qcls) if c in k]
            cnt.append(min(63, len(q) - 1 - max(i for i, t in enumerate(q) if t == tag)))
        vals = sorted(set(cnt))
        for v in vals[:-1]:
            lbl = f'K1_BW{len(P.ins)}'
            P(f's_and_b32 s3, s{sCLS}, {sum(1 << c for c in range(4) if cnt[c] > v)}\ns_cbranch_scc1 {lbl}\ns_waitcnt vmcnt({v})\n{lbl}:')
        P(f's_waitcnt vmcnt({vals[-1]})')
    def only(classes, body):
        if not classes: return
        if len(classes) == 4: return body()
        lbl = f'K1_ON{len(P.ins)}'
        P(f's_and_b32 s3, s{sCLS}, {sum(1 << c for c in classes)}\ns_cbranch_scc0 {lbl}')
        cur[0] = tuple(classes); body(); cur[0] = (0, 1, 2, 3)
        P(f'{lbl}:')
    least = lambda since: min(sum(1 for k in qcls[since:] if c in k) for c in range(4))
    def stage(s):
        if OPT['nost'] and s >= 3: queue.append(('s', s)); qcls.append(cur[0]); return
        buf = STG0 + ((s + SB0) % NSB) * STGS
        for hd in range(2):
            P(f's_add_u32 m0, s{sMC}, {buf + hd * 12288}\ns_add_u32 s3, s{sW0}, {s * 262144 + hd * 256}')
            vm(f'buffer_load_dwordx4 v{VOW}, s[8:11], s3 offen {ntd} lds', ('s', s))
            P(f's_add_u32 s3, s3, {32768 - 1024}')
            vm(f'buffer_load_dwordx4 v{VOW}, s[8:11], s3 offen offset:1024 {ntd} lds', ('s', s))
            P(f's_add_u32 s3, s{sX}, {s * 64 + hd * 4 * 18432}')
            vm(f'buffer_load_dwordx4 v{VOX}, s[20:23], s3 offen offset:2048 {ntd} lds', ('s', s))
        P(f's_mov_b32 m0, {buf + 24576}\ns_mov_b32 s3, {s * 64 + 128 * 1152 + 2048}\ns_mov_b64 exec, s[{sEX}:{sEX + 1}]')
        vm(f'buffer_load_dwordx4 v{VOX}, s[20:23], s3 offen {ntd} lds', ('s', s))
        P('s_mov_b64 exec, -1')
    VTW, VTX, sTW, sTX, sCLS = 232, 233, 45, 46, 47
    def touch(s):
        if s >= 18 or not OPT['tlead']: return
        P(f's_add_u32 s3, s{sTW}, {s * 262144}\ns_add_u32 s6, s{sTX}, {s * 64}\ns_mov_b64 exec, 0x1ff')
        vm(f'buffer_load_dword v{X0}, v{VTW}, s[8:11], s3 offen {ntw}', ('t', s))
        vm(f'buffer_load_dword v{X1}, v{VTX}, s[20:23], s6 offen {ntw}', ('t', s))
        P('s_mov_b64 exec, -1')
    def ltouch():
        TR = OPT['trows']
        P(f"""
        v_lshrrev_b32 v{VTW}, 3, v{TID}
        v_and_b32 v{VTX}, 7, v{TID}
        v_lshlrev_b32 v{VTX}, 6, v{VTX}
        v_lshl_add_u32 v{VTW}, v{VTW}, 13, v{VTX}
        v_lshlrev_b32 v{VTX}, 6, v{TID}
        s_lshl_b32 s3, s{sB}, 2
        s_add_u32 s3, s3, s{sWP}
        s_mul_i32 s3, s3, {TR * 8192}
        s_add_u32 s3, s3, {(576 - 32 * TR) * 8192}
        s_bfe_u32 s6, s2, 0x20003
        s_lshl_b32 s6, s6, 2
        s_add_u32 s6, s6, s{sWP}
        s_mul_i32 s6, s6, {162 * 64}
        s_add_u32 s6, s6, 2048
        """)
        tw = [(i, min(8, TR - 8 * i) * 8) for i in range((TR + 7) // 8)]; tx = [(0, 64), (1, 64), (2, 34)]
        for i in range(3):
            for (lst, v, srd, so, step) in ((tw, VTW, 8, 3, 8 * 8192), (tx, VTX, 20, 6, 4096)):
                if i >= len(lst): continue
                n = lst[i][1]
                if n < 64: P(f's_mov_b64 exec, {hex((1 << n) - 1)}' if n <= 31 else f's_mov_b32 exec_hi, {(1 << (n - 32)) - 1}')
                vm(f'buffer_load_dword v{X0}, v{v}, s[{srd}:{srd + 3}], s{so} offen {ntw}', ('t', 0))
                if n < 64: P('s_mov_b64 exec, -1')
                P(f's_add_u32 s{so}, s{so}, {step}')
    def btouch(a, b):
        n = b - a; l0, l1 = a // 2, (b + 1) // 2; nl = l1 - l0
        mg = (65536 + nl - 1) // nl
        assert all((i * mg) >> 16 == i // nl for i in range(64)) and 4 * n <= 64 and 9 * nl <= 64
        P(f"""
        v_lshrrev_b32 v{VTW}, 2, v{TID}
        v_and_b32 v{VTX}, 3, v{TID}
        v_lshlrev_b32 v{VTX}, 7, v{VTX}
        v_lshl_add_u32 v{VTW}, v{VTW}, 13, v{VTX}
        v_mul_u32_u24 v{X1}, {mg}, v{TID}
        v_lshrrev_b32 v{X1}, 16, v{X1}
        v_mul_u32_u24 v{VTX}, {1152 - 128 * nl}, v{X1}
        v_lshl_add_u32 v{VTX}, v{TID}, 7, v{VTX}
        s_lshl_b32 s3, s{sB}, 2
        s_add_u32 s3, s3, s{sWP}
        s_mul_i32 s3, s3, {n * 8192}
        s_add_u32 s3, s3, {32 * a * 8192}
        s_and_b32 s6, s{sJ}, 3
        s_lshl_b32 s6, s6, 2
        s_add_u32 s6, s6, s{sWP}
        s_mul_i32 s6, s6, {9 * 1152}
        s_add_u32 s6, s6, {2048 + 128 * l0}
        """)
        for cnt, v, srd, so in ((4 * n, VTW, 8, 3), (9 * nl, VTX, 20, 6)):
            P(f's_mov_b64 exec, {hex((1 << cnt) - 1)}' if cnt <= 31 else f's_mov_b32 exec_lo, -1\ns_mov_b32 exec_hi, {hex((1 << (cnt - 32)) - 1)}')
            vm(f'buffer_load_dword v{X0}, v{v}, s[{srd}:{srd + 3}], s{so} offen {ntw}', ('t', 2))
        P('s_mov_b64 exec, -1')
    TB = [tuple(int(y) for y in x.split(':')) for x in str(OPT['tb']).split(',') if x]
    def otouch():
        P(f"""
        s_lshl_b32 s6, s{sBR}, 3
        s_add_u32 s6, s6, s{sB}
        s_mul_i32 s6, s6, 1179648
        s_add_u32 s56, s66, s6
        s_addc_u32 s57, s67, 0
        s_mov_b32 s58, 1179648
        s_mov_b32 s59, 0x20000
        v_lshlrev_b32 v{VTW}, 7, v{TID}
        s_lshl_b32 s3, s{sWP}, 18
        s_lshl_b32 s6, s{sJ}, 14
        s_add_u32 s3, s3, s6
        """)
        vm(f'buffer_load_dword v{X0}, v{VTW}, s[56:59], s3 offen', ('t', 1))
        P('s_add_u32 s3, s3, 8192')
        vm(f'buffer_load_dword v{X0}, v{VTW}, s[56:59], s3 offen', ('t', 1))
        P(f's_lshl_b32 s3, s{sJ}, 13\ns_lshl_b32 s6, s{sWP}, 11\ns_add_u32 s3, s3, s6\ns_add_u32 s3, s3, {1 << 20}\ns_mov_b64 exec, 0xffff')
        vm(f'buffer_load_dword v{X0}, v{VTW}, s[56:59], s3 offen', ('t', 1))
        P('s_mov_b64 exec, -1')
    PRE = {(0, 0): [64, 68, 72, 76], (0, 1): [80, 84, 88, 92], (1, 0): [112, 116, 120, 124], (1, 1): [128, 132, 136, 140],
           (2, 0): [192, 196, 200, 204], (2, 1): [236, 240, 244, 248], (3, 0): [96, 100, 104, 252], (3, 1): [144, 148, 152, 156]}
    SRC = {0: (VOK, 12, 0), 1: (VOK, 12, 16384), 2: (VOV, 16, 0), 3: (VOK, 12, 32768)}
    FREE = {(0, 0): 0 if NSB <= 5 else 13, (0, 1): 0 if NSB <= 5 else 13, (1, 0): 15, (1, 1): 15, (2, 0): 16, (2, 1): 16, (3, 0): 17, (3, 1): 19}
    inreg = set()
    def kvload(step, u, hd, n):
        if OPT['nokv'] & 1: return
        vo, srd, off = SRC[u]
        P(f's_add_u32 s3, s{sROT}, {off + hd * OPT["rotp"] * 16384}\ns_and_b32 s3, s3, 0x1ffff' + (f'\ns_add_u32 s3, s3, 131072' if hd else ''))
        if step >= FREE[u, hd]:
            P(f's_add_u32 m0, s{sMW}, {u * 32768 + hd * 16384}\ns_nop 0')
            vm(f'buffer_load_dwordx4 v{vo}, s[{srd}:{srd + 3}], s3 offen offset:{n * 1024} {nk} lds', ('k', u))
        else:
            vm(f'buffer_load_dwordx4 {vr(PRE[u, hd][n], 4)}, v{vo}, s[{srd}:{srd + 3}], s3 offen offset:{n * 1024} {nk}', ('r', u, hd)); inreg.add((u, hd, n))
    def kvdump(step):
        if OPT['nokv'] & 2: return
        for (u, hd), f in FREE.items():
            ns = [n for n in range(4) if (u, hd, n) in inreg]
            if f != step or not ns: continue
            if (u, hd) in btag: P(f's_waitcnt vmcnt({min(63, len(queue) - btag[u, hd])})')
            if ('r', u, hd) in queue: wait_for(('r', u, hd))
            base = u * 32768 + hd * 16384
            for n in ns: P(f'ds_write_b128 v{[T0, T1][base >> 16]}, {vr(PRE[u, hd][n], 4)} offset:{(base & 0xffff) + n * 1024}')
    kvq = [(u, hd, n) for u in range(4) for hd in range(2) for n in range(4)]
    npre, dist = OPT['npre'], OPT['dist']
    sched = [int(c, 36) for c in str(OPT['kvs'])] + [0] * 30
    assert sum(sched) + abs(OPT['kpre']) + (0 if BT else BN) == 32 and dist <= NSB - 1 and npre <= NSB
    btag = {}
    if BS: P(f's_and_b32 s3, s{sJ}, 3\ns_lshl_b32 s{sCLS}, 1, s3')
    P(f"""
    s_add_u32 s52, s66, {WS_FLAG}
    s_addc_u32 s53, s67, 0
    s_mov_b32 s54, 32768
    s_mov_b32 s55, 0x20000
    s_lshl_b32 s3, s{sBR}, 3
    s_add_u32 s3, s3, s{sB}
    s_lshl_b32 s6, s3, 2
    v_mov_b32 v146, s6
    s_lshl_b32 s6, s{sBR}, 5
    s_add_u32 s6, s6, s{sB}
    s_lshl_b32 s6, s6, 7
    v_mov_b32 v147, s6
    v_mov_b32 v144, 0
    s_and_b32 s3, s2, 0x1b
    s_or_b32 s3, s3, s{sW}
    s_cbranch_scc1 K1_EPL
    s_mov_b64 exec, 1
    buffer_load_dword v144, v147, s[52:55], 0 offen sc1
    s_mov_b64 exec, -1
    K1_EPL:
    """)
    epq = 0; held = {}
    nxt = 0
    for s in range(npre): stage(s); nxt += 1
    if OPT['tlead']:
        P(f"""
        v_lshlrev_b32 v{VTW}, 6, v{TID}
        v_mul_u32_u24 v{VTX}, 1152, v{TID}
        s_lshl_b32 s{sTW}, s{sB}, 2
        s_add_u32 s{sTW}, s{sTW}, s{sWP}
        s_lshl_b32 s{sTW}, s{sTW}, 13
        s_bfe_u32 s{sTX}, s2, 0x20003
        s_lshl_b32 s{sTX}, s{sTX}, 2
        s_add_u32 s{sTX}, s{sTX}, s{sWP}
        s_mul_i32 s{sTX}, s{sTX}, {9 * 1152}
        s_add_u32 s{sTX}, s{sTX}, 2048
        """)
        for s in range(npre, dist + OPT['tlead']): touch(s)
    if OPT['kpre']:
        P(kvsrd)
        for _ in range(max(0, OPT['kpre'])): kvload(0, *kvq.pop(0))
    if OPT['ts'] == -1: ltouch()
    for st_, a_, b_ in TB:
        if st_ == -1: btouch(a_, b_)
    for _ in range(max(0, -OPT['kpre'])): kvload(0, *kvq.pop(0))
    later = ['' if OPT['kpre'] else kvsrd] + [f'v_lshlrev_b32 v{T0}, 4, v{TID}\nv_add_u32 v{T0}, s{sMW}, v{T0}\nv_add_u32 v{T1}, 0x10000, v{T0}', lanec]
    zs = list(range(108, 112)) + list(range(O9, O9 + 32)) + list(range(CN9, CN9 + 4)) + list(range(63, -1, -1))
    later += ['\n'.join(f'v_mov_b32 v{r}, 0' for r in zs[i:i + 26]) for i in range(0, len(zs), 26)]
    P(later.pop(0))
    P('s_mov_b32 s56, s64\ns_mov_b32 s57, s65\ns_mov_b32 s58, 256\ns_mov_b32 s59, 0x20000')
    for s in range(19):
        if OPT['stamps'] == 2 and s == OPT['sq']: stamp(5)
        if OPT['stamps'] == 2 and s == OPT['sq'] + 1: stamp(6)
        if OPT['stamps'] == 3 and OPT['sq'] == 99 and 1 <= s <= 5: P(f's_memtime s[{70 + 6 * s - 4}:{71 + 6 * s - 4}]')
        if s < 18: wait_for(('s', s))
        if OPT['stamps'] == 3 and OPT['sq'] == 99 and 1 <= s <= 4: P(f's_memtime s[{70 + 6 * s - 2}:{71 + 6 * s - 2}]')
        if OPT['stamps'] == 2 and s == OPT['sq']: stamp(3)
        P('s_barrier')
        if OPT['stamps'] == 2 and s == OPT['sq']: stamp(2)
        if s == 0 and OPT['stamps'] == 1: stamp(1)
        S3 = [0, 3, 5, 6, 7, 8, 9, 10, 11, 12, 13, 14, 15, 16, 18]
        if OPT['stamps'] == 3 and OPT['sq'] == 99:
            if s <= 4: P(f's_memtime s[{70 + 6 * s}:{71 + 6 * s}]')
        elif OPT['stamps'] == 3 and s in S3: P(f's_memtime s[{70 + 2 * S3.index(s)}:{71 + 2 * S3.index(s)}]')
        if s == 0:
            P(f"""
            s_and_b32 s3, s2, 0x1b
            s_or_b32 s3, s3, s{sW}
            s_cbranch_scc1 K1_EP0
            s_waitcnt vmcnt({len(queue)})
            v_add_u32 v144, 1, v144
            v_max_u32 v144, 1, v144
            s_mov_b64 exec, 1
            buffer_store_dword v144, v146, s[56:59], 0 offen sc1
            s_mov_b64 exec, -1
            K1_EP0:
            """)
        if s == 18:
            P(f"""
            s_cmp_eq_u32 s{sW}, 0
            s_cbranch_scc0 K1_EP18
            s_mov_b64 exec, 1
            s_mov_b32 s6, {OPT['spin']}
            s_waitcnt vmcnt({min(63, least(epq))})
            K1_EPW:
            v_cmp_ne_u32 vcc, 0, v144
            s_cbranch_vccnz K1_EPG
            buffer_load_dword v144, v146, s[56:59], 0 offen sc1
            s_sub_u32 s6, s6, 1
            s_waitcnt vmcnt(0)
            s_cbranch_scc0 K1_EPW
            K1_EPG:
            v_mov_b32 v146, {Q9B + 8704}
            ds_write_b32 v146, v144
            """ + f"""        s_getreg_b32 s3, hwreg(HW_REG_XCC_ID, 0, 4)
        v_lshl_add_u32 v145, v144, 4, s3
        s_and_b32 s3, s2, 7
        s_lshl_b32 s3, s3, 3
        s_add_u32 s3, s3, s{sB}
        s_lshl_b32 s3, s3, 5
        s_and_b32 s7, s{sJ}, 3
        s_add_u32 s3, s3, s7
        s_lshl_b32 s3, s3, 2
        v_mov_b32 v146, s3
        buffer_store_dword v145, v146, s[52:55], 0 offen offset:32 sc1

            s_mov_b64 exec, -1
            K1_EP18:
            """)
        if OPT['sp']:
            for c_, n_ in held.pop(s, []): only([c_], lambda: stage(n_))
            hold = [c for c in range(4) if OPT['hold'] and any(BS[4 * k + c] == s - 1 for k in range(BT))]
            for _ in range(int((str(OPT['sp']) + '0' * 20)[s])):
                assert nxt <= s + NSB - 1
                only([c for c in range(4) if c not in hold], lambda: stage(nxt))
                held.setdefault(s + 1, []).extend((c, nxt) for c in hold)
                nxt += 1
            if OPT['ts'] == s: ltouch()
            for st_, a_, b_ in TB:
                if st_ == s: btouch(a_, b_)
            if OPT['ot'] == s: otouch()
            if OPT['cts'] == s:
                P(f"""
                s_getpc_b64 s[6:7]
                K1_PC2:
                s_add_u32 s6, s6, @PC2OFF@
                s_addc_u32 s7, s7, 0
                s_lshl_b32 s3, s{sWP}, 5
                v_add_u32 v{VTW}, s3, v{TID}
                v_lshlrev_b32 v{VTW}, 7, v{VTW}
                v_min_u32 v{VTW}, @LEN2@, v{VTW}
                v_mov_b32 v{VTX}, s7
                v_add_co_u32 v{VTW}, vcc, s6, v{VTW}
                v_addc_co_u32 v{VTX}, vcc, 0, v{VTX}, vcc
                s_mov_b32 exec_hi, 0
                """)
                vm(f'global_load_dword v{X0}, v[{VTW}:{VTX}], off', ('t', 3))
                P('s_mov_b32 exec_hi, -1')
        n = 0
        while not OPT['sp'] and nxt < 18 and nxt <= s + dist and n < 2: stage(nxt); nxt += 1; n += 1
        touch(s + dist + OPT['tlead'])
        for k in range(BT):
            cl_ = [c for c in range(4) if BS[4 * k + c] == s]
            if not cl_: continue
            srd, tile = [({'K': 12, 'V': 16}[x[0]], int(x[1])) for x in OPT['bl'].split(',')][k // 2 if OPT['bh'] else k]
            def warm():
                P(f'v_lshlrev_b32 v{VTW}, 7, v{TID}\nv_add_u32 v{VTW}, s{sMW}, v{VTW}\ns_mov_b32 exec_hi, 0')
                for hd in ([k % 2] if OPT['bh'] else range(2)):
                    P(f's_add_u32 s3, s{sROT}, {(tile + hd * OPT["rotp"]) * 16384}\ns_and_b32 s3, s3, 0x1ffff' + ('\ns_add_u32 s3, s3, 131072' if hd else ''))
                    vm(f'buffer_load_dword v{X0}, v{VTW}, s[{srd}:{srd + 3}], s3 offen {OPT["btf"]}', ('t', 4))
                P('s_mov_b32 exec_hi, -1')
            only(cl_, warm)
        if s == OPT['ep2']:
            P(f's_cmp_eq_u32 s{sW}, 0\ns_cbranch_scc0 K1_EPR\ns_mov_b64 exec, 1\nbuffer_load_dword v144, v146, s[56:59], 0 offen sc1\ns_mov_b64 exec, -1\nK1_EPR:')
            epq = len(queue)
        kvdump(s)
        for _ in range(sched[s]): kvload(s, *kvq.pop(0))
        if later: P(later.pop(0))
    assert nxt == 18 and not later and not held
    for r in list(range(96, 108)) + [L, L9]: P(f'v_mov_b32 v{r}, 0')
    P(loopinit)
    if OPT['stamps'] == 1: stamp(2)
    if (0, 1) in btag: P(f's_waitcnt vmcnt({min(63, len(queue) - btag[0, 1])})')
    if ('k', 0) in queue: wait_for(('k', 0))
    P('s_barrier')
    P(getE)
    for kk in range(8): P(f'ds_read_b128 {vr(Q + 4 * kk, 4)}, v{S9 + 1} offset:{kk * 1024}')
    for kk in range(4): P(f'ds_read_b128 {vr(Q9 + 4 * kk, 4)}, v{S9} offset:{kk * 64}')
    P('s_barrier')
    P(getE2)
    kvdump(19)
    for _ in range(sched[19]): kvload(19, *kvq.pop(0))
    assert not kvq
    P(narrow)
    after = lambda u: least(1 + max(i for i, t in enumerate(queue) if t == ('k', u))) if ('k', u) in queue else 60
    X1N = min(63, after(1) + 4) if OPT['nbar'] == 2 else min(63, after(1) + 4, after(2) + 4)
    P('s_branch K1_HEAD')
    P('K1_G1:')
    P(kvsrd)
    if not OPT['ep']:
        if OPT['fused']:
            P(f"""
                    v_mov_b32 v246, 0
            s_cmp_eq_u32 s{sW}, 4
            s_cbranch_scc0 K1_E0
            buffer_load_dword v244, v246, s[52:55], 0 offen sc1
            K1_E0:
            """)
    def touches():
        P(f"""
        s_lshl_b32 s7, s{sJ}, 9
        s_mul_i32 s6, s{sB}, 165888
        s_add_u32 s8, s62, s7
        s_addc_u32 s9, s63, 0
        s_add_u32 s20, s56, s6
        s_addc_u32 s21, s57, 0
        s_mov_b32 s22, 165888
        v_lshrrev_b32 v28, 3, v{TID}
        v_and_b32 v29, 7, v{TID}
        v_lshlrev_b32 v29, 6, v29
        v_lshl_add_u32 v28, v28, 13, v29
        v_lshlrev_b32 v29, 6, v{TID}
        s_lshl_b32 s3, s{sB}, 2
        s_add_u32 s3, s3, s{sWP}
        s_mul_i32 s3, s3, {TR * 8192}
        s_add_u32 s3, s3, {(576 - 32 * TR) * 8192}
        s_bfe_u32 s6, s2, 0x20003
        s_lshl_b32 s6, s6, 2
        s_add_u32 s6, s6, s{sWP}
        s_mul_i32 s6, s6, {162 * 64}
        """)
        tw = [(i, min(8, TR - 8 * i) * 8) for i in range((TR + 7) // 8)]; tx = [(0, 64), (1, 64), (2, 34)]
        k = 0
        for i in range(3):
            for (lst, v, srd, so, step) in ((tw, 28, 8, 3, 8 * 8192), (tx, 29, 20, 6, 4096)):
                if i >= len(lst): continue
                n = lst[i][1]
                if n < 64: P(f's_mov_b64 exec, {hex((1 << n) - 1)}' if n <= 31 else f's_mov_b32 exec_hi, {(1 << (n - 32)) - 1}')
                P(f'buffer_load_dword v{248 + k}, v{v}, s[{srd}:{srd + 3}], s{so} offen {ntw}'); k += 1
                if n < 64: P('s_mov_b64 exec, -1')
                P(f's_add_u32 s{so}, s{so}, {step}')
        return k
    def ptouch():
        pg = OPT['ptouch']
        P(f"""
        s_lshl_b32 s7, s{sJ}, 9
        s_mul_i32 s6, s{sB}, 165888
        s_add_u32 s8, s62, s7
        s_addc_u32 s9, s63, 0
        s_add_u32 s20, s56, s6
        s_addc_u32 s21, s57, 0
        s_mov_b32 s22, 165888
        v_lshlrev_b32 v28, 16, v{TID}
        s_lshl_b32 s3, s{sWP}, 20
        s_add_u32 s3, s3, {65536 * 4}
        s_mov_b64 exec, 0xffff
        buffer_load_dword v248, v28, s[8:11], s3 offen
        s_mov_b64 exec, 0xf
        s_mov_b32 s3, {65536 * 68}
        s_cmp_eq_u32 s{sWP}, 0
        s_cbranch_scc0 K1_PT1
        buffer_load_dword v249, v28, s[8:11], s3 offen
        buffer_load_dword v250, v28, s[20:23], 0 offen
        s_branch K1_PT2
        K1_PT1:
        buffer_load_dword v249, v28, s[12:15], 0 offen {nk}
        buffer_load_dword v250, v28, s[16:19], 0 offen {nk}
        K1_PT2:
        s_mov_b64 exec, -1
        """)
    TR = OPT['trows']
    NT = (TR + 7) // 8 + 3
    if OPT['ctouch']:
        P(f"""
        s_cmp_eq_u32 s{sW}, 5
        s_cbranch_scc0 K1_CT
        s_getpc_b64 s[6:7]
        K1_PC:
        s_sub_u32 s6, s6, @PCOFF@
        s_subb_u32 s7, s7, 0
        v_lshlrev_b32 v28, 7, v{TID}
        v_mov_b32 v31, s7
        """)
        for k in range(OPT['ctouch']):
            P(f"""
            v_min_u32 v29, @CODELEN@, v28
            v_add_co_u32 v30, vcc, s6, v29
            v_addc_co_u32 v31, vcc, 0, v31, vcc
            global_load_dword v{252 + k % 4}, v[30:31], off
            v_mov_b32 v31, s7
            v_add_u32 v28, 8192, v28
            """)
        P('K1_CT:')
    if OPT['pt2']:
        P(f"""
        s_mov_b32 s8, s66
        s_mov_b32 s9, s67
        s_mov_b32 s10, {WS_FLAG}
        s_lshl_b32 s6, s{sBR}, 3
        s_add_u32 s6, s6, s{sB}
        s_mul_i32 s7, s6, 1179648
        s_lshl_b32 s3, s{sWP}, 18
        s_add_u32 s7, s7, s3
        s_lshl_b32 s3, s{sJ}, 14
        s_add_u32 s7, s7, s3
        v_mov_b32 v28, 0
        s_mov_b64 exec, 1
        buffer_load_dword v248, v28, s[8:11], s7 offen nt
        s_lshl_b32 s6, s6, 2
        s_and_b32 s3, s{sJ}, 3
        s_add_u32 s6, s6, s3
        s_lshl_b32 s6, s6, 2
        s_and_b32 s7, s2, 3
        s_add_u32 s6, s6, s7
        s_lshl_b32 s6, s6, 2
        s_add_u32 s6, s6, s{sWP}
        s_mul_i32 s6, s6, 11264
        s_add_u32 s6, s6, {WS_PART}
        buffer_load_dword v249, v28, s[8:11], s6 offen nt
        s_mov_b32 s8, s68
        s_mov_b32 s9, s69
        s_mov_b32 s10, {1152 * 2304}
        s_mul_i32 s6, s{sB}, {144 * 2304}
        s_mul_i32 s3, s{sWP}, {36 * 2304}
        s_add_u32 s6, s6, s3
        buffer_load_dword v250, v28, s[8:11], s6 offen nt
        s_mov_b32 s8, s100
        s_mov_b32 s9, s101
        s_mov_b32 s10, {4096 * 1152}
        s_lshl_b32 s7, s7, 2
        s_add_u32 s7, s7, s{sWP}
        s_mul_i32 s7, s7, {256 * 1152}
        buffer_load_dword v251, v28, s[8:11], s7 offen
        s_mov_b64 exec, -1
        """)
        NT = 4
    if OPT['wtouch'] == 1: touches()
    if OPT['ptouch']: ptouch(); NT = 3 + 4 * OPT['pt2']
    P(lanec)
    if OPT['wtouch'] == 2: touches()
    if not OPT['q16']:
        P(f"""
        v_mul_u32_u24 v18, 3072, v12
        v_add_u32 v18, {STG0 + SB0 * STGS}, v18
        v_add_u32 v{QW[0]}, v17, v18
        v_xor_b32 v{QW[1]}, 64, v{QW[0]}
        v_xor_b32 v{QW[2]}, 0x80, v{QW[0]}
        v_xor_b32 v{QW[3]}, 0xc0, v{QW[0]}
        s_lshl_b32 s6, s{sWP}, 2
        v_add_u32 v18, s6, v15
        v_xor_b32 v18, v18, v16
        v_lshlrev_b32 v18, 4, v18
        v_lshl_add_u32 v18, v20, 3, v18
        v_lshl_add_u32 v18, v10, 8, v18
        v_mul_u32_u24 v19, 3072, v2
        v_add_u32 v19, {STG0 + SB0 * STGS}, v19
        v_add_u32 v{QW9}, v18, v19
        v_xor_b32 v22, v12, v10
        v_lshlrev_b32 v22, 4, v22
        v_lshl_add_u32 v22, v3, 6, v22
        v_mul_u32_u24 v19, 3072, v13
        s_mul_i32 s6, s{sWP}, 6144
        s_add_u32 s6, s6, {STG0 + SB0 * STGS + 2048}
        v_add3_u32 v{QX[0]}, v22, v19, s6
        v_xor_b32 v{QX[1]}, 32, v{QX[0]}
        v_xor_b32 v22, v2, v10
        v_lshlrev_b32 v22, 4, v22
        v_lshl_add_u32 v22, v3, 6, v22
        v_add_u32 v{QX9}, {STG0 + SB0 * STGS + 24576}, v22
        v_lshl_add_u32 v27, v2, 3, v26
        s_lshl_b32 s6, s{sWP}, 6
        s_add_u32 s6, s6, {Q9B}
        v_add_u32 v{S9 + 2}, s6, v27
        """)
    QA = [230, 231, 232, 233, 234, 235, 216, 217]; QXA, QX9A = 236, 237
    if OPT['q16']:
        P(f"""
        s_lshl_b32 s6, s{sWP}, 2
        v_add_u32 v18, s6, v15
        v_xor_b32 v18, v18, v16
        v_lshlrev_b32 v19, 1, v13
        v_xor_b32 v18, v18, v19
        v_lshlrev_b32 v18, 4, v18
        v_lshl_add_u32 v18, v20, 3, v18
        v_lshl_add_u32 v18, v10, 8, v18
        v_mul_u32_u24 v19, 3072, v2
        v_add_u32 v19, {STG0 + SB0 * STGS}, v19
        v_add_u32 v{QA[0]}, v18, v19
        """)
        for k in range(1, 8): P(f'v_xor_b32 v{QA[k]}, {k << 5}, v{QA[0]}')
        P(f"""
        v_xor_b32 v22, v2, v10
        v_lshlrev_b32 v22, 4, v22
        v_lshl_add_u32 v22, v3, 6, v22
        s_mul_i32 s6, s{sWP}, 6144
        s_add_u32 s6, s6, {STG0 + SB0 * STGS + 2048}
        v_add_u32 v{QXA}, s6, v22
        v_add_u32 v{QX9A}, {STG0 + SB0 * STGS + 24576}, v22
        v_lshl_add_u32 v27, v2, 3, v26
        s_lshl_b32 s6, s{sWP}, 6
        s_add_u32 s6, s6, {Q9B}
        v_add_u32 v{S9 + 2}, s6, v27
        """)
    z = list(range(CN9, CN9 + 4)) + list(range(108, 112)) + [L, L9]
    for hd in range(2):
        for a in ACC[hd]: z += list(range(a, a + 16))
        for a in ACC9[hd]: z += list(range(a, a + 4))
    for r in z: P(f'v_mov_b32 v{r}, 0')
    if not OPT['ep']:
        P(f"""
        s_cmp_eq_u32 s{sW}, 4
        s_cbranch_scc0 K1_E1
        s_mov_b32 s8, s64
        s_mov_b32 s9, s65
        s_mov_b32 s10, 256
        s_waitcnt vmcnt({NT if OPT['wtouch'] or OPT['ptouch'] or OPT['pt2'] else 0})
        v_add_u32 v244, 1, v244
        v_max_u32 v244, 1, v244
        v_mov_b32 v245, 0
        v_mov_b32 v247, v244
        s_mov_b64 exec, 1
        buffer_atomic_cmpswap v[244:245], v246, s[8:11], 0 offen sc0
        s_mov_b64 exec, -1
        K1_E1:
        """)
    if OPT['pq']: P(f's_setprio {OPT["pq"]}')
    P(f's_mov_b32 s{sIB}, {SB0}\ns_barrier')
    if OPT['stamps'] == 1: stamp(1)
    if not OPT['q16']:
        qit = []
        def qmain(kk, hd, dt):
            return (lambda F: [f'ds_read_b64_tr_b16 {vr(F + 2 * j, 2)}, v{QW[dt]} offset:{hd * 12288 + kk * 6144 + j * 1024}' for j in range(2)],
                    lambda F: mf32(ACC[hd][dt], F, QB[kk]))
        def q9(hd, t):
            return (lambda F: [f'ds_read_b64_tr_b16 {vr(F + 2 * j, 2)}, v{QW9} offset:{hd * 12288 + t * 32 + j * 1024}' for j in range(2)],
                    lambda F: mf16(ACC9[hd][t], F, QB9))
        qit = [qmain(0, hd, dt) for hd in range(2) for dt in range(4)] + [q9(hd, t) for hd in range(2) for t in range(2)] + [qmain(1, hd, dt) for hd in range(2) for dt in range(4)]
        nq = len(QF); NQ = len(qit); QD = OPT['qdelay']
        qrd = lambda i: qit[i % NQ][0](QF[i % nq])
        bheads = [f'ds_read_b128 {vr(QB[0], 4)}, v{QX[0]}', f'ds_read_b128 {vr(QB9, 4)}, v{QX9}']
        upd = [f'v_add_u32 v{r}, s{sDL}, v{r}' for r in QW + QX + [QX9, QW9]]
        P(bheads[0])
        for i in range(nq):
            P.extend(qrd(i))
            if i == 3: P(bheads[1])
        def qmf(i):
            m = qit[i][1](QF[i % nq])
            if i % 2 == 0 and i + 1 < NQ: m += f' ; need {vr(QF[(i + 1) % nq], 4)}'
            return m
        cut = NQ - nq + QD + 1
        P('s_branch K1_QM\nK1_QL:\ns_barrier')
        if OPT['stamps'] == 2: stamp(2, OPT['sq'])
        qpend = [bheads[0]] + [x for jj in range(QD + 1) for x in qrd(jj)]
        for i in range(cut, NQ):
            P(qmf(i))
            qpend += qrd(i + nq)
            if i == NQ - 2: qpend.append(bheads[1])
            n = len(qpend) if i == NQ - 1 else 4
            P.extend(qpend[:n]); qpend = qpend[n:]
        P('K1_QM:')
        if OPT['stamps'] == 1 and not OPT['fused']: stamp(5, 3); stamp(6, 6); stamp(9, 9); stamp(10, 12)
        if OPT['stamps'] == 2: stamp(5, OPT['sq'] - 1); stamp(6, OPT['sq'])
        for i in range(cut):
            P(qmf(i))
            if i + nq < NQ: P.extend(qrd(i + nq))
            if i == 0: P(f'ds_read_b128 {vr(QB[1], 4)}, v{QX[1]}')
            if OPT['qnop'] and i % 2 == 1: P(f's_nop {OPT["qnop"]}')
            if i == 2: P(f's_cmp_eq_u32 s{sIB}, {NSB - 1}\ns_cselect_b32 s{sDL}, {-(NSB - 1) * STGS & 0xffffffff}, {STGS}')
            if i == 4: P(f's_add_u32 s{sIB}, s{sIB}, 1\ns_cmp_eq_u32 s{sIB}, {NSB}\ns_cselect_b32 s{sIB}, 0, s{sIB}')
            if i == 10: P.extend(upd[:4])
            if i == 11:
                P.extend(upd[4:])
                if OPT['stamps'] == 2: stamp(3, OPT['sq'] - 1)
                P(f's_add_u32 s{sCNT}, s{sCNT}, 1\ns_cmp_lt_u32 s{sCNT}, 18')
        P('s_cbranch_scc1 K1_QL\nK1_QE:\ns_barrier')
        for i in range(cut, NQ): P(qmf(i))
    else:
        acc = lambda hd, sg, qh: ACC[hd][sg >> 1] + 8 * (sg & 1) + 4 * qh
        order = [(0, 0), (0, 1), (1, 0), (1, 1)] + [(hd, sg) for sg in range(2, 8) for hd in range(2)]
        QF16 = [112 + 4 * k for k in range(8)]; BS16 = [[96, 100], [244, 248]]
        nq = 8; NQ = 16; QD = OPT['qdelay']; cut = NQ - nq + QD + 1
        qrd = lambda i: [f'ds_read_b64_tr_b16 {vr(QF16[i % nq] + 2 * j, 2)}, v{QA[order[i % NQ][1]]} offset:{order[i % NQ][0] * 12288 + j * 1024}' for j in range(2)]
        brd = lambda st: [f'ds_read_b128 {vr(BS16[st][qh], 4)}, v{QXA} offset:{qh * 3072}' for qh in range(2)] + [f'ds_read_b128 {vr(QB9, 4)}, v{QX9A}']
        def qmf(i, st):
            hd, sg = order[i]; F = QF16[i % nq]
            m = [mf16(acc(hd, sg, 0), F, BS16[st][0]), mf16(acc(hd, sg, 1), F, BS16[st][1])]
            if sg < 2: m.append(mf16(ACC9[hd][sg], F, QB9))
            if i % 2 == 0: m[0] += f' ; need {vr(QF16[(i + 1) % nq], 4)}'
            return m
        upd = [f'v_add_u32 v{r}, s{sDL}, v{r}' for r in QA + [QXA, QX9A]]
        def tail(st, reads=True):
            pend = brd(1 - st) + [x for jj in range(QD + 1) for x in qrd(jj)] if reads else []
            for i in range(cut, NQ):
                for x in qmf(i, st):
                    P(x); P.extend(pend[:2]); pend = pend[2:]
                if reads: pend += qrd(i + nq)
            P.extend(pend)
        def head(st, last):
            u = list(upd); pend = []
            for i in range(cut):
                for x in qmf(i, st):
                    P(x); P.extend(pend[:1]); pend = pend[1:]
                if i + nq < NQ: pend += qrd(i + nq)
                if i == 4: P(f's_cmp_eq_u32 s{sIB}, {NSB - 1}\ns_cselect_b32 s{sDL}, {-(NSB - 1) * STGS & 0xffffffff}, {STGS}')
                if i == 6: P(f's_add_u32 s{sIB}, s{sIB}, 1\ns_cmp_eq_u32 s{sIB}, {NSB}\ns_cselect_b32 s{sIB}, 0, s{sIB}')
                if i > NQ - nq or i == cut - 1:
                    P.extend(pend); pend = []
                    k = len(u) if i == cut - 1 else 4
                    P.extend(u[:k]); u = u[k:]
                if i == cut - 2 and last: P(f's_add_u32 s{sCNT}, s{sCNT}, 2\ns_cmp_lt_u32 s{sCNT}, 18')
        P.extend(brd(0)[:2])
        for i in range(nq):
            P.extend(qrd(i))
            if i == 0: P(brd(0)[2])
        P('s_branch K1_QM\nK1_QL:\ns_barrier')
        tail(1)
        P('K1_QM:')
        head(0, False)
        P('s_barrier')
        tail(0)
        head(1, True)
        P('s_cbranch_scc1 K1_QL\nK1_QE:\ns_barrier')
        tail(1, False)
    if OPT['stamps'] == 1: stamp(2)
    P(f's_mov_b32 s6, {CSCALE}')
    for hd in range(2):
        for t in range(2):
            a = ACC9[hd][t]
            for i in range(4): P(f'v_mul_f32 v{a + i}, s6, v{a + i}')
            P(f'v_cvt_pk_bf16_f32 v{a}, v{a}, v{a + 1}\nv_cvt_pk_bf16_f32 v{a + 1}, v{a + 2}, v{a + 3}')
            P(f'ds_write_b64 v{S9 + 2}, {vr(a, 2)} offset:{hd * 4352 + t * 32}')
    swp = lambda d: f'v_permlane16_swap_b32 v{d}, v{d + 2}\nv_permlane16_swap_b32 v{d + 1}, v{d + 3}' if OPT['q16'] else ''
    for dt in [0, 1, 2, 3]:
        a = ACC[0][dt]
        for i in range(16): P(f'v_mul_f32 v{a + i}, s6, v{a + i}')
        for hf in range(2):
            for i in range(4): P(f'v_cvt_pk_bf16_f32 v{a + 8 * hf + i}, v{a + 8 * hf + 2 * i}, v{a + 8 * hf + 2 * i + 1}')
        for hf in range(2):
            P(swp(a + 8 * hf))
            P(f'ds_write_b128 v{S9 + 1}, {vr(a + 8 * hf, 4)} offset:{(2 * dt + hf) * 1024}')
    P('s_waitcnt vmcnt(0)')
    if not OPT['ep']:
        P(f"""
        s_cmp_eq_u32 s{sW}, 4
        s_cbranch_scc0 K1_E2
        s_waitcnt vmcnt(0)
        v_cmp_eq_u32 vcc, 0, v244
        v_mov_b32 v246, {Q9B + 8704}
        s_mov_b64 exec, 1
        v_cndmask_b32 v244, v244, v247, vcc
        ds_write_b32 v246, v244
        s_getreg_b32 s3, hwreg(HW_REG_XCC_ID, 0, 4)
        v_lshl_add_u32 v245, v244, 4, s3
        s_and_b32 s3, s2, 7
        s_lshl_b32 s3, s3, 3
        s_add_u32 s3, s3, s{sB}
        s_lshl_b32 s3, s3, 5
        s_and_b32 s7, s{sJ}, 3
        s_add_u32 s3, s3, s7
        s_lshl_b32 s3, s3, 2
        v_mov_b32 v246, s3
        buffer_store_dword v245, v246, s[52:55], 0 offen offset:32 sc1
        s_mov_b64 exec, -1
        K1_E2:
        """)
    P(loopinit); P(narrow)
    P('s_barrier')
    P(getE)
    for kk in range(4): P(f'ds_read_b128 {vr(Q9 + 4 * kk, 4)}, v{S9} offset:{kk * 64}')
    for i in range(16): P(f'v_mul_f32 v{ACC[1][0] + i}, s6, v{ACC[1][0] + i}')
    P('s_barrier')
    P(getE2)
    for dt in range(4):
        a = ACC[1][dt]
        if dt:
            for i in range(16): P(f'v_mul_f32 v{a + i}, s6, v{a + i}')
        for i in range(8): P(f'v_cvt_pk_bf16_f32 v{Q + dt * 8 + i}, v{a + 2 * i}, v{a + 2 * i + 1}')
        if dt: P(swp(Q + dt * 8 - 8) + '\n' + swp(Q + dt * 8 - 4))
        if dt == 3: P(swp(Q + 24) + '\n' + swp(Q + 28))
    for r in list(range(O, O + 64)) + list(range(CN, CN + 12)) + list(range(O9, O9 + 32)): P(f'v_mov_b32 v{r}, 0')
    if OPT['pq']: P('s_setprio 0')
    P('s_barrier\nK1_HEAD:' if OPT['nbar'] == 2 else 'K1_HEAD:')

    def dma_sites(vo, srd, so, mb):
        out = []
        for n in range(4):
            g = [f's_add_u32 m0, s{mb}, s{sMW}', 's_nop 0'] if n == 0 else []
            g.append(f'buffer_load_dwordx4 v{vo}, s[{srd}:{srd + 3}], s{so} offen offset:{n * 1024} {nk} lds')
            if n == 3: g += [f's_add_u32 s{so}, s{so}, 16384', f's_and_b32 s{so}, s{so}, 0x1ffff']
            out.append(g)
        return out
    dmaV = dma_sites(VOV, 16, sSV, sIS); dmaK = dma_sites(VOK, 12, sSK, sIK)
    pre = OPT['opre'] == 1
    book = f"""s_cmp_lt_u32 s{sCNT}, {8 if pre else 7}
    s_cselect_b32 s{sIS}, s{sKP}, 0x30000
    s_add_u32 s{sKP}, s{sKP}, 65536
    s_cmp_ge_u32 s{sKP}, 163840
    s_cselect_b32 s3, 163840, 0
    s_sub_u32 s{sKP}, s{sKP}, s3
    s_sub_u32 s{sDK}, 65536, s3
    s_cmp_lt_u32 s{sCNT}, 5
    s_cselect_b32 s{sIK}, s{sVP}, 0x30000
    s_add_u32 s{sVP}, s{sVP}, 65536
    s_cmp_ge_u32 s{sVP}, 163840
    s_cselect_b32 s3, 163840, 0
    s_sub_u32 s{sVP}, s{sVP}, s3
    s_sub_u32 s{sDV}, 65536, s3""".split('\n')
    if OPT['nbar'] == 1:
        book = f"""s_mov_b32 s{sIS}, s{sKP}
    s_nop 0
    s_add_u32 s{sKP}, s{sKP}, 65536
    s_cmp_ge_u32 s{sKP}, 163840
    s_cselect_b32 s3, 163840, 0
    s_sub_u32 s{sKP}, s{sKP}, s3
    s_sub_u32 s{sDK}, 65536, s3
    s_cmp_lt_u32 s{sCNT}, 6
    s_cselect_b32 s{sIK}, s33, 0x30000
    s_mov_b32 s33, s{sVP}
    s_add_u32 s{sVP}, s{sVP}, 65536
    s_cmp_ge_u32 s{sVP}, 163840
    s_cselect_b32 s3, 163840, 0
    s_sub_u32 s{sVP}, s{sVP}, s3
    s_sub_u32 s{sDV}, 65536, s3""".split('\n')
        book.remove('    s_nop 0'); book.insert(6, 's_nop 0')
    book2 = f"""s_cmp_eq_u32 s{sCNT}, 6
    s_cselect_b32 s{sIK}, s6, s{sIK}
    s_cselect_b32 s12, s56, s12
    s_cselect_b32 s13, s57, s13
    s_cselect_b32 s14, 20480, s14
    s_cselect_b32 s{sSK}, 0, s{sSK}
    s_cmp_eq_u32 s{sCNT}, 7
    s_cselect_b32 s16, s56, s16
    s_cselect_b32 s17, s57, s17
    s_cselect_b32 s18, 20480, s18
    s_cselect_b32 s{sSV}, 4096, s{sSV}""".split('\n') if pre else []
    if pre: book.insert(7, f's_mov_b32 s6, s{sVP}')
    vupd = [f'v_add_u32 v{VA + i}, s{sDV}, v{VA + i}' for i in range(4)] + [f'v_add_u32 v{AV9}, s{sDV}, v{AV9}']
    kupd = [f'v_add_u32 v{AK}, s{sDK}, v{AK}', f'v_add_u32 v{AK9}, s{sDK}, v{AK9}']
    def kmain(kk, mt):
        tmp = [T0, T1][kk & 1]
        pre = [f'v_xor_b32 v{tmp}, {kk << 5}, v{AK}'] if (mt == 0 and kk) else []
        ad = tmp if kk else AK
        return dict(rd=lambda F: pre + [f'ds_read_b128 {vr(F, 4)}, v{ad} offset:{mt * 2048}'],
                    mf=lambda F: [mf32(S + 16 * mt, F, Q + 4 * kk, CN if kk == 0 else None)], w=32)
    def k9(kk):
        pre = [f'v_xor_b32 v{X0}, {kk << 6}, v{AK9}'] if kk else []
        ad = X0 if kk else AK9
        return dict(rd=lambda F: pre + [f'ds_read_b128 {vr(F, 4)}, v{ad}'],
                    mf=lambda F: [mf16(S9, F, Q9 + 4 * kk, CN9 if kk == 0 else None)], w=16)
    def vmain(ks, dt):
        mt, u = ks >> 1, ks & 1
        return dict(rd=lambda F: [f'ds_read_b64_tr_b16 {vr(F + 2 * j, 2)}, v{VA + dt} offset:{u * 8192 + j * 4096 + mt * 2048}' for j in range(2)],
                    mf=lambda F: [mf32(O + 16 * dt, F, PP + 4 * ks)], w=32)
    def v9(pp):
        pre = [f'v_xor_b32 v{X1}, {pp << 6}, v{AV9}'] if pp else []
        ad = X1 if pp else AV9
        return dict(rd=lambda F: pre + [f'ds_read_b64_tr_b16 {vr(F + 2 * j, 2)}, v{ad} offset:{32 * j}' for j in range(2)],
                    mf=lambda F: [mf16h(O9 + 4 * (2 * pp + j), F + 2 * j, P9) for j in range(2)], w=32)
    itA = []
    for kk in range(8):
        itA += [kmain(kk, 0), kmain(kk, 1)]
        if 1 <= kk <= 4: itA.append(k9(kk - 1))
    itC = []
    for dt in range(4): itC += [vmain(0, dt), v9(dt)]
    for ks in range(1, 4): itC += [vmain(ks, dt) for dt in range(4)]
    lastP = {0: 6, 1: 11, 2: 15, 3: 19, 9: 7}
    nb = len(FB); items = itA + itC; N = len(items); nA = len(itA)
    assert N % nb == 0 and nA % nb == 0
    RD = lambda i: items[i % N]['rd'](FB[i % nb])
    DL = OPT['bdelay']
    def MF(i, pair=True):
        m = items[i]['mf'](FB[i % nb])
        if pair and OPT['pairw'] and i % 2 == 0 and (i + 1) % nA != 0: m[0] += f' ; need {vr(FB[(i + 1) % nb], 4)}'
        return m
    def sync(wait='vmcnt(12)'): return [f's_waitcnt {wait}', 's_barrier']
    def gsync(lbl, group0, wait):
        return [f's_cmp_lt_u32 s{sW}, 4', f's_cbranch_scc{0 if group0 else 1} {lbl}', f's_waitcnt {wait}', 's_barrier', f'{lbl}:']
    DS = OPT['dstep']
    mx = [f'v_max3_f32 v{T1}, v{S9}, v{S9 + 1}, v{S9 + 2}', f'v_max_f32 v{T1}, v{T1}, v{S9 + 3}', f'v_max3_f32 v{T0}, v{S}, v{S + 1}, v{S + 2}']
    mx += [f'v_max3_f32 v{T0}, v{T0}, v{S + 3 + 2 * i}, v{S + 4 + 2 * i}' for i in range(6)]
    mx += [f'v_max3_f32 v{X0}, v{S + 16}, v{S + 17}, v{S + 18}']
    mx += [f'v_max3_f32 v{X0}, v{X0}, v{S + 19 + 2 * i}, v{S + 20 + 2 * i}' for i in range(6)]
    mx += [f'v_max3_f32 v{X0}, v{X0}, v{S + 15}, v{S + 31}', f'v_max_f32 v{T0}, v{T0}, v{X0}', f'v_max_f32 v{X0}, v{T0}, v{T1}', f'v_cmp_lt_f32 vcc, s{sT}, v{X0}']
    fill = []
    for ks in range(4):
        b = S + 8 * ks
        for i in range(0, 8, 2):
            fill += [(0, f'v_exp_f32 v{b + i}, v{b + i}'), (0, f'v_exp_f32 v{b + i + 1}, v{b + i + 1}')]
            if i: fill += [(0, f'v_add_f32 v{L}, v{L}, v{b + i - 2}'), (0, f'v_add_f32 v{L}, v{L}, v{b + i - 1}')]
        if ks == 0: fill += [(0, f'v_exp_f32 v{S9 + i}, v{S9 + i}') for i in range(4)]
        fill += [(0, f'v_add_f32 v{L}, v{L}, v{b + 6}'), (0, f'v_add_f32 v{L}, v{L}, v{b + 7}')]
        if ks == 0: fill += [(0, f'v_add_f32 v{L9}, v{L9}, v{S9 + i}') for i in range(4)]
        fill += [(lastP[ks], f'v_cvt_pk_bf16_f32 v{PP + 4 * ks + i}, v{b + 2 * i}, v{b + 2 * i + 1}') for i in range(4)]
        if ks == 0: fill += [(lastP[9], f'v_cvt_pk_bf16_f32 v{P9 + i}, v{S9 + 2 * i}, v{S9 + 2 * i + 1}') for i in range(2)]
    wosrd = f"""
    s_and_b32 s6, s2, 3
    s_mul_i32 s6, s6, {1024 * 1152}
    s_add_u32 s8, s100, s6
    s_addc_u32 s9, s101, 0
    s_sub_u32 s8, s8, 3072
    s_subb_u32 s9, s9, 0
    s_sub_u32 s10, {4096 * 1152 + 3072}, s6
    s_mov_b32 s11, 0x20000
    """
    def wotouch(drop):
        d1, d2, sfx = ('', '', 'lds') if drop else (f'v{Q + 1}, ', f'v{Q + 2}, ', '')
        va = X0 if drop else Q
        return f"""
    s_lshr_b32 s6, s2, 3
    s_lshl_b32 s6, s6, 3
    s_add_u32 s6, s6, s{sW}
    s_mul_i32 s6, s6, {36 * 128}
    s_add_u32 s6, s6, 3072
    {f's_add_u32 m0, s{sIS}, s{sMW}' if drop else ''}
    v_lshlrev_b32 v{va}, 6, v{TID}
    buffer_load_dword {d1}v{va}, s[8:11], s6 offen {OPT['nt_wo']} {sfx}
    s_add_u32 s6, s6, 4096
    s_mov_b64 exec, 0xff
    buffer_load_dword {d2}v{va}, s[8:11], s6 offen {OPT['nt_wo']} {sfx}
    s_mov_b64 exec, -1
    """
    if OPT['wot'] >= 2: P(wosrd)
    if OPT['opre'] == 1: P(obase)
    if OPT['opre'] >= 2:
        P(f"""
        s_lshl_b32 s6, s{sBR}, 3
        s_add_u32 s6, s6, s{sB}
        s_mul_i32 s6, s6, 1179648
        s_add_u32 s56, s66, s6
        s_addc_u32 s57, s67, 0
        s_mov_b32 s58, 1179648
        s_mov_b32 s59, 0x20000
        """)
    opre2 = f"""
    s_cmp_lg_u32 s{sCNT}, {OPT['opre']}
    s_cbranch_scc1 K1_OP
    s_sub_u32 s6, s{sKP}, s{sDK}
    s_add_u32 m0, s6, s{sMW}
    s_lshl_b32 s6, s{sJ}, 1
    s_add_u32 s6, s6, s{sP}
    s_lshl_b32 s7, s6, 13
    s_lshl_b32 s3, s{sWP}, 18
    s_add_u32 s7, s7, s3
    v_lshlrev_b32 v{X0}, 7, v{TID}
    buffer_load_dword v{X0}, s[56:59], s7 offen lds
    s_lshl_b32 s6, s6, 12
    s_lshl_b32 s7, s{sWP}, 10
    s_add_u32 s6, s6, s7
    s_add_u32 s6, s6, {1 << 20}
    s_mov_b64 exec, 0xff
    buffer_load_dword v{X0}, s[56:59], s6 offen lds
    s_mov_b64 exec, -1
    K1_OP:
    """
    if OPT['wot'] == 2: P(wotouch(True))
    for i in range(nb): P.extend(RD(i))
    if OPT['stamps'] == 1: stamp(7)
    for i in range(nA):
        P.extend(MF(i))
        if i + nb < nA: P.extend(RD(i + nb))
        if i + nb - nA == DL: P.extend(sync('vmcnt(63)') if OPT['nbar'] == 2 else gsync('K1_Y0', False, 'vmcnt(63)'))
        if i in (1, 3, 5, 7): P.extend(dmaV[(i - 1) // 2])
    if OPT['nbar'] == 1: P(f's_mov_b32 s{sIS}, 0x30000\ns_sub_u32 s{sSV}, s{sSV}, 16384\ns_and_b32 s{sSV}, s{sSV}, 0x1ffff')
    if OPT['pa'] != OPT['pc']: P(f's_setprio {OPT["pc"]}')
    P.extend(kupd + mx[:-1]); P('s_branch K1_RARE1\nK1_CPB:')
    P(f's_mov_b32 s{sRARE}, 0')
    ktail = [q for q in range(4) if DL + q * DS < nb]
    for i, (_, t) in enumerate(fill):
        P(t)
        if i == len(fill) - 12:
            P.extend(sync(f'vmcnt({X1N})') if OPT['nbar'] == 2 else gsync('K1_X1', True, f'vmcnt({X1N})'))
            for jj in range(nb): P.extend(RD(jj))
            for q in ktail if OPT['nbar'] == 2 else []: P.extend(dmaK[q])
    P('K1_TOP:')
    if OPT['ti'] == 1: stamp(5, 1); stamp(6, 2); stamp(9, 3); stamp(10, 5); stamp(11, 7)
    if OPT['ti'] == 2:
        for at, k, kc in ((1, 5, 9), (2, 6, 12), (5, 10, 13), (7, 11, 14)):
            P(f's_cmp_lg_u32 s{sCNT}, {at}\ns_cbranch_scc1 K1_TI{at}\ns_memrealtime s[{70 + 2 * k}:{71 + 2 * k}]\ns_memtime s[{70 + 2 * kc}:{71 + 2 * kc}]\nK1_TI{at}:')
    if OPT['stamps'] == 1 and not OPT['fused']: stamp(11, 2); stamp(8, 5)
    if OPT['pa'] != OPT['pc']: P(f's_setprio {OPT["pa"]}')
    if OPT['stamps'] == 2: stamp(7, 3); stamp(11, 4)
    def sites(pos, dm):
        return [x for q in range(4) if q * DS == pos for x in dm[q]]
    for i in range(nA):
        P.extend(MF(i))
        j = i + nb - nA
        if j < 0: P.extend(RD(i + nb))
        elif j == DL:
            if OPT['stamps'] == 2: stamp(9, 3)
            P.extend(sync() if OPT['nbar'] == 2 else gsync('K1_Y', False, 'vmcnt(4)'))
            if OPT['stamps'] == 2: stamp(1, 3)
            for jj in range(DL + 1): P.extend(RD(nA + jj))
        elif j > DL: P.extend(RD(i + nb))
        P.extend(sites(i + nb - DL, dmaK) if OPT['nbar'] == 2 else sites(i, dmaV))
        if j == DL and OPT['wot'] >= 3: P(f's_cmp_lg_u32 s{sCNT}, {OPT["wot"]}\ns_cbranch_scc1 K1_WT' + wotouch(True) + 'K1_WT:')
        if j == DL and OPT['opre'] >= 2: P(opre2)
        if j >= DL and OPT['nbar'] == 2: P.extend(sites(j - DL, dmaV))
        if i == 2: P.extend(vupd)
        if OPT['anop'] and i % 2 == 1: P(f's_nop {OPT["anop"]}')
        if i == 9: P.extend(book[:7])
        if i == 11: P.extend(book[7:])
        if i == 13: P.extend(book2)
    if OPT['stamps'] == 2: stamp(8, 3)
    if OPT['pa'] != OPT['pc']: P(f's_setprio {OPT["pc"]}')
    cost = lambda t: 2 if 'exp' in t else (0 if 'BR' in t else 1)
    full = [(0, t) for t in kupd + mx] + [(0, 'BR')] + fill
    tot = sum(cost(t) for _, t in full)
    pend = list(full); acc = 0; cw = 0; wsum = sum(it['w'] for it in itC)
    for c in range(len(itC)):
        i = nA + c
        P.extend(MF(i)); cw += itC[c]['w']
        j = i + nb - N
        if j < 0: P.extend(RD(i + nb))
        elif j == DL:
            if OPT['stamps'] == 2: stamp(4, 3)
            P.extend(sync() if OPT['nbar'] == 2 else gsync('K1_X', True, 'vmcnt(4)'))
            if OPT['stamps'] == 2: stamp(12, 3)
            for jj in range(DL + 1): P.extend(RD(jj))
        elif j > DL: P.extend(RD(i + nb))
        P.extend(sites(c + nb - DL, dmaV) if OPT['nbar'] == 2 else sites(c, dmaK))
        if j >= DL and OPT['nbar'] == 2: P.extend(sites(j - DL, dmaK))
        goal = tot * min(1.0, cw / (wsum - 32))
        q = 0
        while q < len(pend) and acc + cost(pend[q][1]) <= goal + 1:
            if pend[q][0] > c: q += 1; continue
            acc += cost(pend[q][1]); t = pend.pop(q)[1]
            P('s_cbranch_vccnz K1_RARE1\nK1_R1B:' if t == 'BR' else t)
    for _, t in pend: P(t)
    if OPT['stamps'] == 2: stamp(10, 3)
    P(f"""
    s_add_u32 s{sCNT}, s{sCNT}, 1
    s_add_u32 s3, s{sCNT}, s{sRARE}
    s_cmp_lt_u32 s3, 8
    s_cbranch_scc1 K1_TOP
    s_cmp_lg_u32 s{sRARE}, 0
    s_cbranch_scc1 K1_RARE2
    K1_NEXT:
    s_cmp_lt_u32 s{sCNT}, 8
    s_cbranch_scc1 K1_TOP
    s_branch K1_PVO
    """)
    P(f"""
    K1_RARE1:
    v_mov_b32 v{X0}, v{T0}
    v_mov_b32 v{X1}, v{T1}
    v_permlane32_swap_b32 v{T0}, v{X0}
    v_permlane32_swap_b32 v{T1}, v{X1}
    v_max3_f32 v{T0}, v{T0}, v{X0}, s{sCL}
    v_max_f32 v{T1}, v{T1}, v{X1}
    v_mov_b32 v{X1}, v{T1}
    v_max_f32 v{AL}, 0, v{T0}
    v_permlane16_swap_b32 v{T1}, v{X1}
    v_max3_f32 v{T1}, v{T1}, v{X1}, s{sCL}
    v_max_f32 v{AL9}, 0, v{T1}
    v_exp_f32 v{AL}, -v{AL}
    v_exp_f32 v{AL9}, -v{AL9}
    """)
    for i in range(32): P(f'v_sub_f32 v{S + i}, v{S + i}, v{T0}')
    for i in range(16): P(f'v_sub_f32 v{CN + i}, v{CN + i}, v{T0}')
    for i in range(4): P(f'v_sub_f32 v{S9 + i}, v{S9 + i}, v{T1}')
    for i in range(4): P(f'v_sub_f32 v{CN9 + i}, v{CN9 + i}, v{T1}')
    P(f"""
    v_mul_f32 v{L}, v{L}, v{AL}
    v_mul_f32 v{L9}, v{L9}, v{AL9}
    s_mov_b32 s{sT}, {f2u(8.0)}
    s_cmp_lg_u32 s{sCL}, 0
    s_mov_b32 s{sCL}, 0
    s_mov_b32 s{sRARE}, 8
    s_cbranch_scc1 K1_CPB
    s_branch K1_R1B
    K1_RARE2:
    """)
    for i in range(64): P(f'v_mul_f32 v{O + i}, v{O + i}, v{AL}')
    for i in range(32): P(f'v_mul_f32 v{O9 + i}, v{O9 + i}, v{AL9}')
    P(f"""
    s_mov_b32 s{sRARE}, 0
    s_branch K1_NEXT
    K1_PVO:
    """)
    if OPT['stamps'] == 1: stamp(3)
    P.extend(vupd)
    osrd = f'''
    s_lshl_b32 s6, s{sBR}, 3
    s_add_u32 s6, s6, s{sB}
    s_mul_i32 s6, s6, 1179648
    s_add_u32 s20, s66, s6
    s_addc_u32 s21, s67, 0
    s_mov_b32 s22, 1179648
    s_mov_b32 s23, 0x20000
    s_lshl_b32 s6, s{sJ}, 1
    s_add_u32 s6, s6, s{sP}
    s_lshl_b32 s7, s6, 13
    s_lshl_b32 s{sSK}, s{sWP}, 18
    s_add_u32 s{sSK}, s{sSK}, s7
    s_add_u32 s{sSV}, s{sSK}, 4096
    s_lshl_b32 s{sIS}, s6, 12
    s_lshl_b32 s7, s{sWP}, 10
    s_add_u32 s{sIS}, s{sIS}, s7
    s_add_u32 s{sIS}, s{sIS}, {1 << 20}
'''
    if OPT['opv']:
        P(osrd + f'''
        v_lshlrev_b32 v{Q}, 7, v{TID}
        buffer_load_dword v{Q + 1}, v{Q}, s[20:23], s{sSK} offen
        s_mov_b64 exec, 0xff
        buffer_load_dword v{Q + 2}, v{Q}, s[20:23], s{sIS} offen
        s_mov_b64 exec, -1
        ''')
    P(f's_and_b32 s{sKP}, s2, 3')
    if OPT['wot'] == 1: P(wosrd + wotouch(False))
    elif OPT['wot'] == 0: P(wosrd)
    P.extend(sync(f'vmcnt({2 * (OPT["wot"] == 1) + 2 * OPT["opv"]})') if OPT['nbar'] == 2 else gsync('K1_Y8', False, f'vmcnt({2 * (OPT["wot"] == 1) + 2 * OPT["opv"]})'))
    if OPT['fused'] and OPT['loc']:
        P(f"""
        s_cmp_eq_u32 s{sWP}, 0
        s_cbranch_scc0 K1_XL
        s_and_b32 s3, s2, 7
        s_lshl_b32 s3, s3, 3
        s_add_u32 s3, s3, s{sB}
        s_lshl_b32 s3, s3, 7
        v_lshlrev_b32 v{Q + 3}, 2, v{TID}
        s_mov_b64 exec, 15
        s_add_u32 s7, s3, 16384
        buffer_load_dword v{Q + 2}, v{Q + 3}, s[52:55], s7 offen nt
        buffer_load_dword v{Q + 3}, v{Q + 3}, s[52:55], s3 offen offset:32 sc1
        s_mov_b64 exec, -1
        K1_XL:
        """)
    for i in range(nb): P.extend(RD(nA + i))
    groups = [MF(nA + c) + (RD(nA + c + nb) if c + nb < len(itC) else []) for c in range(len(itC))]
    epi = ([] if OPT['opv'] else osrd.strip().split('\n')) + f'''
    v_mov_b32 v{T0}, v{L}
    v_mov_b32 v{T1}, v{L9}
    v_lshlrev_b32 v{VOK}, 4, v{TID}
    v_permlane32_swap_b32 v{L}, v{T0}
    v_permlane32_swap_b32 v{L9}, v{T1}
    v_add_f32 v{L}, v{L}, v{T0}
    v_add_f32 v{L9}, v{L9}, v{T1}
    v_mov_b32 v{T1}, v{L9}
    v_rcp_f32 v{AL}, v{L}
    v_permlane16_swap_b32 v{L9}, v{T1}
    v_add_f32 v{CN9 + 1}, v{L9}, v{T1}
    '''.strip().split('\n')
    epi += f"""s_cmp_lt_u32 s{sW}, 4
    s_cselect_b32 s45, 118784, 65536
    s_cselect_b32 s46, 135168, 155648
    s_lshl_b32 s7, s{sWP}, 11
    s_add_u32 s6, s45, s7
    v_add_u32 v116, s6, v{VOK}
    s_add_u32 s6, s46, s7
    v_add_u32 v117, s6, v{VOK}
    v_and_b32 v119, 15, v{TID}
    v_lshlrev_b32 v119, 3, v119
    s_lshl_b32 s7, s{sW}, 7
    s_add_u32 s7, s7, 20480
    v_add_u32 v118, s7, v119""".split('\n')
    wr9 = [f'ds_write_b64 v118, {vr(CN9, 2)}'] + [f'ds_write_b128 v{116 if sl < 3 else 117}, {vr(O9 + 8 * sl + 4 * t, 4)} offset:{(sl - 1) * 8192 * (sl < 3) + t * 1024}' for sl in range(1, 4) for t in range(2)]
    n1 = len(epi)
    epi += phase2(P, stamp, locals(), 0)
    epi += f"""s_mul_i32 s6, s{sP}, 36864
    s_lshl_b32 s7, s{sWP}, 12
    s_add_u32 s6, s6, s7
    s_add_u32 s6, s6, 81920
    v_add_u32 v{AL9}, s6, v{VOK}
    s_lshl_b32 s6, s{sW}, 7
    s_add_u32 s6, s6, 20480
    v_add_u32 v{S + 28}, s6, v119
    v_xor_b32 v{S + 29}, 0x80, v{S + 28}
    v_xor_b32 v{S + 30}, 0x100, v{S + 28}
    v_xor_b32 v{S + 31}, 0x180, v{S + 28}
    s_xor_b32 s7, s{sWP}, 1
    s_lshl_b32 s7, s7, 11
    s_add_u32 s7, s7, s45
    v_add_u32 v{S + 25}, s7, v{VOK}
    s_xor_b32 s7, s{sWP}, 2
    s_lshl_b32 s7, s7, 11
    s_add_u32 s7, s7, s45
    s_add_u32 s7, s7, 8192
    v_add_u32 v{S + 26}, s7, v{VOK}
    s_xor_b32 s7, s{sWP}, 3
    s_lshl_b32 s7, s7, 11
    s_add_u32 s7, s7, s46
    v_add_u32 v{S + 27}, s7, v{VOK}
    v_lshrrev_b32 v131, 5, v{TID}
    v_bfe_u32 v132, v{TID}, 4, 1
    v_lshlrev_b32 v137, 1, v119
    v_lshl_add_u32 v137, v131, 8, v137
    v_lshl_add_u32 v137, v132, 3, v137
    s_lshr_b32 s6, s{sW}, 1
    s_mul_i32 s6, s6, 18432
    s_and_b32 s7, s{sW}, 1
    s_lshl_b32 s7, s7, 10
    s_add_u32 s6, s6, s7
    s_add_u32 s6, s6, {81920 + 16384}
    v_add_u32 v138, s6, v137""".split('\n')
    epi = [e.strip() for e in epi]
    per = -(-len(epi) // len(groups))
    i = 0
    for gi, g in enumerate(groups):
        P.extend(g)
        j = min(len(epi), i + per)
        while j < len(epi) and (epi[j].split()[0] in ('s_addc_u32', 's_cselect_b64', 's_cselect_b32', 'v_cndmask_b32')): j += 1
        P.extend(epi[i:j]); i = j
        if gi >= 10 and wr9:
            assert i >= n1
            P(wr9.pop(0))
    P.extend(epi[i:]); P.extend(wr9)
    ST = CN; PT = [None, Q9, Q9 + 8, PP]; R9 = PP + 8
    P('s_barrier')
    for w in range(4): P(f'ds_read_b64 {vr(ST + 2 * w, 2)}, v{S + 28 + w}')
    for w in range(1, 4):
        for t in range(2): P(f'ds_read_b128 {vr(PT[w] + 4 * t, 4)}, v{S + 24 + w} offset:{t * 1024}')
    P(f's_cmp_lt_u32 s{sW}, 4\ns_cbranch_scc0 K1_Z')
    phase2(P, stamp, locals(), 3)
    P('s_barrier\nK1_Z:')
    if OPT['stamps'] == 1: stamp(4)
    os_ = '' if OPT['loc'] else 'sc1'
    mg = [f'v_min3_f32 v{ST + 8}, v{ST}, v{ST + 2}, v{ST + 4}', f'v_min_f32 v{ST + 8}, v{ST + 8}, v{ST + 6}']
    mg += [f'v_sub_f32 v{ST + 2 * w}, v{ST + 8}, v{ST + 2 * w}' for w in range(4)]
    mg += [f'v_exp_f32 v{ST + 2 * w}, v{ST + 2 * w}' for w in range(4)]
    mg += [f'v_mul_f32 v{ST + 9}, v{ST}, v{ST + 1}'] + [f'v_fmac_f32 v{ST + 9}, v{ST + 2 * w}, v{ST + 2 * w + 1}' for w in range(1, 4)]
    mg += [f'v_rcp_f32 v{ST + 9}, v{ST + 9}']
    mg += [f'v_mul_f32 v{R9 + i}, v{O9 + i}, v{ST}' for i in range(8)]
    for w in range(1, 4): mg += [f'v_fmac_f32 v{R9 + i}, v{PT[w] + i}, v{ST + 2 * w}' for i in range(8)]
    mg += [f'v_mul_f32 v{R9 + i}, v{R9 + i}, v{ST + 9}' for i in range(8)]
    for t in range(2):
        mg += [f'v_cvt_pk_bf16_f32 v{ST + 10 + 2 * t}, v{R9 + 4 * t}, v{R9 + 4 * t + 1}', f'v_cvt_pk_bf16_f32 v{ST + 11 + 2 * t}, v{R9 + 4 * t + 2}, v{R9 + 4 * t + 3}',
               f'ds_write_b64 v138, {vr(ST + 10 + 2 * t, 2)} offset:{t * 512}', f'buffer_store_dwordx2 {vr(ST + 10 + 2 * t, 2)}, v137, s[20:23], s{sIS} offen offset:{t * 512} {os_}']
    for dt in range(4):
        for i in range(16): P(f'v_mul_f32 v{O + 16 * dt + i}, v{O + 16 * dt + i}, v{AL}')
        for hf in range(2):
            d = S + 8 * dt + 4 * hf
            for i in range(4): P(f'v_cvt_pk_bf16_f32 v{d + i}, v{O + 16 * dt + 8 * hf + 2 * i}, v{O + 16 * dt + 8 * hf + 2 * i + 1}')
            ks = 2 * dt + hf
            P(f'ds_write_b128 v{AL9}, {vr(d, 4)} offset:{(ks >> 2) * 18432 + (ks & 3) * 1024}')
            if not OPT['lates']: P(f'buffer_store_dwordx4 {vr(d, 4)}, v{VOK}, s[20:23], s{sSK if ks < 4 else sSV} offen offset:{(ks & 3) * 1024} {os_}')
        if dt == 0: P.extend(mg)
    if OPT['lates']:
        for ks in range(8): P(f'buffer_store_dwordx4 {vr(S + 4 * ks, 4)}, v{VOK}, s[20:23], s{sSK if ks < 4 else sSV} offen offset:{(ks & 3) * 1024} {os_}')
    if OPT['fused']: phase2(P, stamp, locals(), 2)
    if OPT['stamps']:
        P('K1_STAMPS:' if OPT['fused'] else 's_waitcnt vmcnt(0)')
        if not OPT['fused']: stamp(4)
        P(f'''
        s_waitcnt lgkmcnt(0)
        s_add_u32 s20, s66, {WS_STAMP}
        s_addc_u32 s21, s67, 0
        s_mov_b32 s22, 0x100000
        s_mov_b32 s23, 0x20000
        s_lshl_b32 s6, s2, 3
        s_add_u32 s6, s6, s{sW}
        s_lshl_b32 s6, s6, 7
        v_mov_b32 v2, s6
        s_mov_b64 exec, 1
        ''')
        if OPT['probe'] >= 0:
            k = OPT['probe']
            lo, base = (98, 96) if k == 99 else (70 + 2 * k, 70)
            P(f"""
            s_cmp_lg_u32 s2, {OPT['pwg']}
            s_cbranch_scc1 K1_END
            s_cmp_lg_u32 s{sW}, {OPT['pw']}
            s_cbranch_scc1 K1_END
            s_sub_u32 s6, s{lo}, s{base}
            s_mul_i32 s6, s6, {1 if k == 99 else 10}
            s_memrealtime s[72:73]
            s_waitcnt lgkmcnt(0)
            s_add_u32 s6, s6, s72
            {'s_add_u32 s6, s70, 30000' if k == 0 else ''}
            K1_SPIN:
            s_memrealtime s[72:73]
            s_waitcnt lgkmcnt(0)
            s_sub_u32 s7, s72, s6
            s_cmp_lt_i32 s7, 0
            s_cbranch_scc1 K1_SPIN
            s_branch K1_END
            """)
        if OPT['dbgst']:
            P('s_mov_b32 s20, s64\ns_mov_b32 s21, s65\ns_mov_b32 s22, 256\nv_mov_b32 v2, 0\ns_not_b32 s70, s70')
            for i, k in enumerate([0, 1, 2, 7, 3, 4, 5, 6, 9, 10, 11, 8]):
                P(f'v_mov_b32 v4, s{70 + 2 * k}\nbuffer_atomic_umax v4, v2, s[20:23], 0 offen offset:{4 + 4 * i}\ns_nop 1')
        for k in range(0 if OPT['dbgst'] else 15):
            P(f'v_mov_b32 v4, s{70 + 2 * k}\nv_mov_b32 v5, s{71 + 2 * k}\nbuffer_store_dwordx2 v[4:5], v2, s[20:23], 0 offen offset:{8 * k}\ns_nop 1')
    P('K1_END:\ns_endpgm')
    a0 = [i for i, x in enumerate(P.ins) if x.text == 'K1_G1:'][0]; a1 = [i for i, x in enumerate(P.ins) if x.text == 'K1_PVO:'][0]
    keep = []; dcount = [0]
    kt = [i for i, x in enumerate(P.ins) if x.text == 'K1_TOP:'][0]
    kp0 = [i for i, x in enumerate(P.ins) if x.text == 'K1_G1:'][0]; kp1 = [i for i, x in enumerate(P.ins) if x.text == 'K1_QL:'][0]
    for i, x in enumerate(P.ins):
        if a0 < i < a1:
            if OPT['nodma'] and x.dma and not (kp0 < i < kp1): continue
            if OPT['nobar'] and x.kind == 'barrier': continue
            if OPT['noexp'] and x.kind in ('valu', 'trans') and ('exp' in x.text or 'v_add_f32' in x.text or 'cvt_pk' in x.text or 'max3' in x.text): continue
            if OPT['nolds'] and x.kind == 'ds_r': continue
            if OPT['diag'] & 1 and i > kt and 'v_add_f32' in x.text: continue
            if OPT['diag'] & 2 and i > kt and 'v_max3' in x.text and 's46' not in x.text: continue
            if OPT['diag'] & 4 and i > kt and x.kind == 'ds_r':
                dcount[0] += 1
                if (dcount[0] // 4) % 2: continue
            if OPT['diag'] & 8 and i > kt and '16x16x16' in x.text: continue
            if OPT['diag'] & 16 and i > kt and 'v_exp' in x.text and '-v' not in x.text:
                x = parse(x.text.replace('v_exp_f32', 'v_mov_b32'))
            if OPT['nomf'] and i > kt and (x.kind in ('mfma', 'ds_r', 'trans') or (x.kind == 'valu' and 'v_cmp' not in x.text)): continue
        keep.append(x)
    P.ins = keep
    return P.finish()

def desc(name, vg, sg=102):
    return f'''.amdhsa_kernel {name}
  .amdhsa_next_free_vgpr {vg}
  .amdhsa_next_free_sgpr {sg}
  .amdhsa_accum_offset {(vg + 3) // 4 * 4}
  .amdhsa_group_segment_fixed_size 0
  .amdhsa_kernarg_size 104
  .amdhsa_user_sgpr_count 2
  .amdhsa_user_sgpr_kernarg_segment_ptr 1
  .amdhsa_system_sgpr_workgroup_id_x 1
  .amdhsa_float_denorm_mode_32 3
.end_amdhsa_kernel
'''

def main():
    ref = open('cdna_kernels/%s.s.ref' % NAME).read().split('\n')
    hdr = [l for l in ref if l.startswith(';') and '@launch' not in l and 'Override launch' not in l and 'grid=ceil' not in l]
    hdr = hdr[:14]
    ks = [('attn_kernel', k1(), 256, '(256,1,1)', '(%d,1,1)' % OPT['blk'], 163840),
          ]
    out = '\n'.join(hdr) + '\n'
    if OPT['fused']:
        ks = [(NAME + '_kernel',) + ks[0][1:]]
        out += f'; @launch grid={ks[0][3]} block={ks[0][4]} lds={ks[0][5]}\n'
    else:
        for n, _, _, g, b, l in ks: out += f'; @launch kernel={n} grid={g} block={b} lds={l}\n'
    out += '.amdgcn_target "amdgcn-amd-amdhsa--gfx950"\n.text\n'
    for n, body, _, _, _, _ in ks:
        out += f'.globl {n}\n.p2align 8\n.type {n},@function\n{n}:\n' + 'K1_START:\n' + body.replace('@CODELEN@', 'K1_END-K1_START').replace('@PCOFF@', 'K1_PC-K1_START').replace('@PC2OFF@', 'K1_QE-K1_PC2').replace('@LEN2@', 'K1_END-K1_QE')
    out += '.section .rodata,"a"\n'
    for n, _, vg, _, _, _ in ks: out += '.p2align 6\n' + desc(n, vg)
    open(sys.argv[1], 'w').write(out)
main()
```
